```python
import torch

def _softmax(x, axis=-1):
    return torch.softmax(x, dim=axis)
def _gelu(x):
    return torch.nn.functional.gelu(x, approximate="tanh")
def _silu(x):
    return torch.nn.functional.silu(x)
def _sigmoid(x):
    return torch.sigmoid(x)
def _layernorm(x, axis=-1, eps=1e-5):
    m = x.mean(dim=axis, keepdim=True)
    v = x.var(dim=axis, keepdim=True, unbiased=False)
    return (x - m) / torch.sqrt(v + eps)
def _scatter_add(tgt, idx, src, axis=0):
    return tgt.clone().index_add_(axis, idx, src)
def _segment_sum(src, seg, n):
    out = torch.zeros((n,) + src.shape[1:], dtype=src.dtype)
    return out.index_add_(0, seg, src)
def _pad(x, pw):
    flat = tuple(v for pair in reversed(pw) for v in pair)
    return torch.nn.functional.pad(x, flat)

kernel_name = 'standalone__mha_block_cached__near_ridge'

def setup_inputs():

    _w = (lambda a: (lambda t: t.to(torch.bfloat16) if t.is_floating_point() else t)(torch.as_tensor(a)))
    B, Sq, D = 8, 224, 1024
    H, Sk, Dh = 32, 1024, 128
    return {
        "x": _w((lambda *s: torch.randn(*s, dtype=torch.bfloat16) * 0.8)(B, Sq, D)),
        "k_cache": _w((lambda *s: torch.randn(*s, dtype=torch.bfloat16) * 0.8)(B, H, Sk, Dh)),
        "v_cache": _w((lambda *s: torch.randn(*s, dtype=torch.bfloat16) * 0.05)(B, H, Sk, Dh)),
        "wq": _w((lambda *s: torch.randn(*s, dtype=torch.bfloat16) * 0.8)(D, H * Dh) * (D ** -0.5)),
        "wo": _w((lambda *s: torch.randn(*s, dtype=torch.bfloat16) * 0.05)(H * Dh, D) * ((H * Dh) ** -0.5)),
    }

def reference(x, k_cache, v_cache, wq, wo):
    B, Sq, D = x.shape
    H, Dh = 32, 128
    q = (lambda x, *d: x.permute(*d))((x @ wq).reshape(B, Sq, H, Dh), 0, 2, 1, 3)
    scores = torch.einsum("bhqd,bhkd->bhqk", q, k_cache) * (Dh ** -0.5)
    p = _softmax(scores, axis=-1)
    o = torch.einsum("bhqk,bhkd->bhqd", p, v_cache)
    return (lambda x, *d: x.permute(*d))(o, 0, 2, 1, 3).reshape(B, Sq, H * Dh) @ wo
```

```python
import re
class Asm:
    def __init__(self): self.L = []
    def e(self, x):
        if isinstance(x, (list, tuple)):
            for y in x: self.e(y)
        else: self.L.append("  " + x)
    def lab(self, x): self.L.append(x + ":")
    def raw(self, x): self.L.append(x)
    def text(self): return "\n".join(self.L) + "\n"

def vr(b, n=1): return "v%d" % b if n == 1 else "v[%d:%d]" % (b, b + n - 1)
def ar(b, n=1): return "a%d" % b if n == 1 else "a[%d:%d]" % (b, b + n - 1)
def sr(b, n=1): return "s%d" % b if n == 1 else "s[%d:%d]" % (b, b + n - 1)
def mfma(d, a, b, c): return "v_mfma_f32_16x16x32_bf16 %s, %s, %s, %s" % (d, a, b, c)

def weave(asm, mf, gaps):
    assert len(gaps) == len(mf)
    for m, g in zip(mf, gaps):
        asm.e(m)
        for x in g: asm.e(x)

_REG = re.compile(r"\b([vas])(\d+)\b|\b([vas])\[(\d+):(\d+)\]")
def regs(op):
    out = set()
    for m in _REG.finditer(op):
        if m.group(1): out.add((m.group(1), int(m.group(2))))
        else:
            for i in range(int(m.group(4)), int(m.group(5)) + 1): out.add((m.group(3), i))
    if re.search(r"\bvcc\b", op): out.add(("s", "vcc"))
    if re.search(r"\bm0\b", op): out.add(("s", "m0"))
    if re.search(r"\bexec\b", op): out.add(("s", "exec"))
    return out
TRANS = ("v_exp_f32", "v_rcp_f32", "v_log_f32", "v_rsq_f32", "v_sqrt_f32")
def parse(line):
    line = line.split(";")[0].strip()
    if not line or line.endswith(":") or line.startswith("."): return None
    p = line.split(None, 1)
    op = p[0]; ops = [o.strip() for o in p[1].split(",")] if len(p) > 1 else []
    d = dict(op=op, w=set(), r=set(), kind="other", line=line, ws=1)
    if op == "s_nop": d["ws"] = int(ops[0]) + 1; return d
    if op.startswith("v_mfma"):
        d["kind"] = "mfma"; d["w"] = regs(ops[0]); d["a"] = regs(ops[1]) | regs(ops[2]); d["c"] = regs(ops[3]); d["r"] = d["a"] | d["c"]
    elif op.startswith("v_"):
        d["kind"] = "valu"
        d["w"] = regs(ops[0]); d["r"] = set().union(*[regs(o) for o in ops[1:]]) if len(ops) > 1 else set()
        if op.startswith("v_permlane"): d["r"] |= d["w"]; d["w"] = d["r"]
        if op.startswith(("v_fmac", "v_mac")): d["r"] |= d["w"]
        if op.startswith("v_cndmask") and len(ops) == 3: d["r"].add(("s", "vcc"))
        d["trans"] = op.replace("_e32", "").replace("_e64", "") in TRANS
    elif op.startswith("ds_read"):
        d["kind"] = "ds"; d["w"] = regs(ops[0]); d["r"] = regs(ops[1].split()[0])
    elif op.startswith("ds_write"):
        d["kind"] = "ds"; d["r"] = set().union(*[regs(o.split()[0]) for o in ops])
    elif op.startswith(("buffer_load", "global_load")):
        d["kind"] = "vmem"
        if line.endswith(" lds"): d["r"] = set().union(*[regs(o.split()[0]) for o in ops]) | {("s", "m0")}; d["dma"] = True
        else: d["w"] = regs(ops[0]); d["r"] = set().union(*[regs(o.split()[0]) for o in ops[1:]])
    elif op.startswith(("buffer_store", "global_store", "buffer_atomic", "global_atomic")):
        d["kind"] = "vmem"; d["r"] = set().union(*[regs(o.split()[0]) for o in ops]); d["store"] = True
        d["data"] = regs(ops[0]) if op.startswith("buffer") else regs(ops[1])
        d["wide"] = op.endswith(("x4", "x3"))
    elif op.startswith("s_"):
        d["kind"] = "salu"
        if op.startswith(("s_cmp", "s_cbranch", "s_branch", "s_waitcnt", "s_barrier", "s_endpgm", "s_setprio", "s_sleep", "s_bitcmp")):
            d["r"] = set().union(*[regs(o) for o in ops]) if ops else set()
        else:
            d["w"] = regs(ops[0]); d["r"] = set().union(*[regs(o) for o in ops[1:]]) if len(ops) > 1 else set()
    return d

def need(p, c):
    n = 0
    if p["kind"] == "mfma":
        x = 4 if "32x32" in p["op"] else 0
        if c["kind"] == "mfma":
            if p["w"] & c["a"]: n = max(n, 8 + x)
            if p["w"] & c["c"] and p["w"] != c["c"]: n = max(n, 6 + x)
            if p["w"] & c["w"] and p["w"] != c["w"]: n = max(n, 6 + x)
        elif c["kind"] in ("valu", "ds", "vmem"):
            if p["w"] & (c["r"] | c["w"]): n = max(n, 8 + x)
            if c["kind"] == "valu" and p["c"] & c["w"]: n = max(n, 3 + x)
    elif p["kind"] == "valu":
        vw = {x for x in p["w"] if x[0] in "va"}; sw = {x for x in p["w"] if x[0] == "s"}
        if c["kind"] == "mfma" and vw & c["r"]: n = max(n, 2)
        if c["kind"] == "mfma" and ("s", "exec") in sw: n = max(n, 4)
        if c["kind"] == "valu":
            if p.get("trans") and not c.get("trans") and vw & c["r"]: n = max(n, 1)
            if c["op"].startswith("v_permlane") and vw & c["r"]: n = max(n, 2)
            if c["op"].startswith(("v_readfirstlane", "v_readlane")) and vw & c["r"]: n = max(n, 1)
            if sw & c["r"]: n = max(n, 2)
            if "dpp" in c["line"] and vw & c["r"]: n = max(n, 2)
        if c["kind"] == "vmem" and sw & c["r"]: n = max(n, 5)
        if c["kind"] == "salu" and sw & c["r"]: n = max(n, 1)
    elif p["kind"] == "salu":
        if ("s", "m0") in p["w"] and c.get("dma"): n = max(n, 1)
    elif p["kind"] == "vmem" and p.get("store") and p.get("wide"):
        if p["data"] & c["w"]: n = max(n, 2 if c["kind"] == "valu" else 1)
    return n

def check(lines, window=14):
    ins = []; labels = {}
    for ln in lines:
        s = ln.split(";")[0].strip()
        if s.endswith(":") and not s.startswith("."): labels[s[:-1]] = len(ins); continue
        d = parse(ln)
        if d: ins.append(d)
    errs = []
    def scan(seq, first_consumer=0):
        for j in range(first_consumer, len(seq)):
            c = seq[j]; dist = 0
            for i in range(j - 1, max(-1, j - 1 - window), -1):
                p = seq[i]
                if p["op"] in ("s_branch", "s_endpgm") and first_consumer == 0: break
                n = need(p, c)
                if n > dist: errs.append("HAZARD need %d have %d: [%s] -> [%s]" % (n, dist, p["line"], c["line"]))
                dist += p["ws"]
                if dist >= 13: break
    scan(ins)
    for k, d in enumerate(ins):
        if d["op"].startswith(("s_cbranch", "s_branch")):
            t = d["line"].split()[-1]
            if t in labels:
                pre = ins[max(0, k - window):k + 1]
                seq = pre + ins[labels[t]:labels[t] + window]
                scan(seq, len(pre))
    return sorted(set(errs))
```

```python
import sys, math, struct
from asmlib import *

NAME = "standalone__mha_block_cached__near_ridge"
def f32(x): return struct.unpack("<I", struct.pack("<f", x))[0]
CSCALE = f32(128 ** -0.5 * math.log2(math.e))
THR = f32(2.0 ** 30)

class Opt:
    stamps = False
    kv_nt = True
    xw_flags = ""
    o_store_flags = ""
    k2_o_flags = ""
    k2_w_flags = ""
    nxe = 4
    force_slow = False
O = Opt()

STAMP_OFF = 0x8000000

def zero16(d):
    return "v_mfma_f32_32x32x16_bf16 %s, v[12:15], v[12:15], 0" % d

def kernel1(a):
    KVF = " nt" if O.kv_nt else ""
    XWF = (" " + O.xw_flags) if O.xw_flags else ""
    sX, sW, sKV, sO = 16, 20, 24, 28
    sWv, sB, sH, sRH, sKH = 32, 33, 34, 35, 36
    sXoff, sWoff, sCnt, sMX, sMW, sReg, sP, sG, sFlip, sK0, sK1, sPass, sT, sT2 = 37, 38, 39, 40, 41, 42, 43, 44, 45, 46, 47, 48, 49, 52
    sC = 50
    sST = 60
    vL, vT, vT2, vT3, vL16 = 1, 2, 3, 4, 5
    vKV = 6
    vW = 10
    OK = 16
    ACC = 128
    S, E, P, V, M, L = 128, 144, 152, 160, 192, 220
    vKr, vVr = 228, 230
    vTa, vTb, vTc = 234, 235, 236
    vX = 240
    vXr = 247
    vWr = 251
    aQ, aO, aK = 0, 112, 224
    aXF, aWF = 0, 224
    nst = [0]
    def stamp():
        if O.stamps:
            a.e("s_memtime s[%d:%d]" % (sST + 2 * nst[0], sST + 2 * nst[0] + 1)); nst[0] += 1

    a.lab(NAME + "_k1_kernel")
    a.e(["s_cmp_ge_u32 s2, 256", "s_cbranch_scc1 L1_end",
         "s_load_dwordx8 s[4:11], s[0:1], 0", "s_load_dwordx4 s[12:15], s[0:1], 48"])
    stamp()
    a.e(["v_and_b32 v%d, 63, v0" % vL, "v_lshrrev_b32 v%d, 6, v0" % vT,
         "s_and_b32 s%d, s2, 7" % sT, "s_lshr_b32 s%d, s2, 3" % sT2,
         "v_readfirstlane_b32 s%d, v%d" % (sWv, vT),
         "s_and_b32 s%d, s%d, 1" % (sB, sT), "s_lshl_b32 s%d, s%d, 2" % (sB, sB),
         "s_and_b32 s%d, s%d, 3" % (sG, sT2), "s_add_u32 s%d, s%d, s%d" % (sB, sB, sG),
         "s_lshr_b32 s%d, s%d, 1" % (sH, sT), "s_lshl_b32 s%d, s%d, 3" % (sH, sH),
         "s_lshr_b32 s%d, s%d, 2" % (sG, sT2), "s_add_u32 s%d, s%d, s%d" % (sH, sH, sG),
         "s_and_b32 s%d, s%d, 1" % (sRH, sWv), "s_lshr_b32 s%d, s%d, 1" % (sKH, sWv)])
    a.e(["v_lshrrev_b32 v%d, 3, v%d" % (vT, vL),
         "v_and_b32 v%d, 7, v%d" % (vT2, vL),
         "v_and_b32 v%d, 6, v%d" % (vT3, vT),
         "v_xor_b32 v%d, v%d, v%d" % (vT3, vT3, vT2),
         "v_lshlrev_b32 v%d, 4, v%d" % (vT3, vT3),
         "v_lshl_add_u32 v%d, v%d, 8, v%d" % (vKV, vT, vT3),
         "v_lshl_add_u32 v%d, v%d, 11, v%d" % (vX, vT, vT3),
         "s_mul_i32 s%d, s%d, %d" % (sT, sWv, 7 * 16384),
         "v_add_u32 v%d, s%d, v%d" % (vX, sT, vX)])
    for j in range(1, 7): a.e("v_add_u32 v%d, %d, v%d" % (vX + j, j * 16384 - (j & 3) * 1024, vX))
    for j in range(1, 4): a.e("v_add_u32 v%d, %d, v%d" % (vKV + j, j * 1024, vKV))
    a.e(["v_and_b32 v%d, 2, v%d" % (vT3, vT), "v_lshlrev_b32 v%d, 1, v%d" % (vT3, vT3),
         "v_xor_b32 v%d, v%d, v%d" % (vT3, vT3, vT2), "v_lshlrev_b32 v%d, 4, v%d" % (vT3, vT3),
         "v_lshl_add_u32 v%d, v%d, 13, v%d" % (vW, vT, vT3),
         "s_lshl_b32 s%d, s%d, 17" % (sT, sRH),
         "s_lshl_b32 s%d, s%d, 7" % (sG, sKH), "s_add_u32 s%d, s%d, s%d" % (sT, sT, sG),
         "v_add_u32 v%d, s%d, v%d" % (vW, sT, vW),
         "v_add_u32 v%d, %d, v%d" % (vW + 1, 8 * 8192 - 1024, vW)])
    a.e(["s_lshl_b32 s%d, s%d, 15" % (sMX, sKH), "s_mul_i32 s%d, s%d, 7168" % (sT, sRH),
         "s_add_u32 s%d, s%d, s%d" % (sMX, sMX, sT), "s_add_u32 s%d, s%d, 16384" % (sMX, sMX),
         "s_lshl_b32 s%d, s%d, 11" % (sMW, sWv), "s_add_u32 s%d, s%d, 131072" % (sMW, sMW),
         "s_lshl_b32 s%d, s%d, 15" % (sReg, sWv),
         "s_and_b32 s%d, s%d, s%d" % (sFlip, sRH, sKH), "s_lshl_b32 s%d, s%d, 7" % (sFlip, sFlip),
         "s_mov_b32 s%d, 0" % sPass,
         "s_waitcnt lgkmcnt(0)"])
    a.e(["s_mul_i32 s%d, s%d, 458752" % (sT, sB), "s_add_u32 s%d, s4, s%d" % (sX, sT), "s_addc_u32 s%d, s5, 0" % (sX + 1),
         "s_mov_b32 s%d, 458752" % (sX + 2), "s_mov_b32 s%d, 0x20000" % (sX + 3),
         "s_lshl_b32 s%d, s%d, 8" % (sT, sH), "s_add_u32 s%d, s10, s%d" % (sW, sT), "s_addc_u32 s%d, s11, 0" % (sW + 1),
         "s_sub_u32 s%d, 0x800000, s%d" % (sW + 2, sT), "s_mov_b32 s%d, 0x20000" % (sW + 3),
         "s_cmp_eq_u32 s%d, 0" % sRH, "s_cselect_b32 s%d, s6, s8" % sKV, "s_cselect_b32 s%d, s7, s9" % (sKV + 1),
         "s_lshl_b32 s%d, s%d, 5" % (sT, sB), "s_add_u32 s%d, s%d, s%d" % (sT, sT, sH), "s_lshl_b32 s%d, s%d, 1" % (sT, sT),
         "s_add_u32 s%d, s%d, s%d" % (sT, sT, sKH), "s_lshl_b32 s%d, s%d, 17" % (sT, sT),
         "s_add_u32 s%d, s%d, s%d" % (sKV, sKV, sT), "s_addc_u32 s%d, s%d, 0" % (sKV + 1, sKV + 1),
         "s_mov_b32 s%d, 131072" % (sKV + 2), "s_mov_b32 s%d, 0x20000" % (sKV + 3)])

    def dmaX(j): return "buffer_load_dwordx4 v%d, s[%d:%d], s%d offen offset:%d%s lds" % (vX + j, sX, sX + 3, sXoff, (j & 3) * 1024, XWF)
    def m0X(buf, hi): return "s_add_u32 m0, s%d, %d" % (sMX, buf * 65536 + hi * 4096)
    def dmaW(j): return "buffer_load_dwordx4 v%d, s[%d:%d], s%d offen offset:%d%s lds" % (vW + j, sW, sW + 3, sWoff, j * 1024, XWF)
    def m0W(slot): return "s_add_u32 m0, s%d, %d" % (sMW, slot * 8192)
    def kv_generic_pre():
        return ["s_lshr_b32 s%d, s%d, 3" % (sG, sP), "s_lshl_b32 s%d, s%d, 13" % (sG, sG),
                "s_and_b32 s%d, s%d, 3" % (sT, sP), "s_lshl_b32 s%d, s%d, 11" % (sT, sT), "s_add_u32 s%d, s%d, s%d" % (sG, sG, sT),
                "s_and_b32 s%d, s%d, 4" % (sT, sP), "s_lshl_b32 s%d, s%d, 5" % (sT, sT), "s_xor_b32 s%d, s%d, s%d" % (sT, sT, sFlip),
                "s_add_u32 s%d, s%d, s%d" % (sG, sG, sT),
                "s_lshl_b32 s%d, s%d, 10" % (sT, sP), "s_add_u32 s%d, s%d, 1" % (sP, sP)]
    def kv_generic_m0(): return "s_add_u32 m0, s%d, s%d" % (sReg, sT)
    def kv_generic(): return "buffer_load_dwordx4 v%d, s[%d:%d], s%d offen%s lds" % (vKV, sKV, sKV + 3, sG, KVF)
    def dmaKV(i): return "buffer_load_dwordx4 v%d, s[%d:%d], s%d offen offset:%d%s lds" % (vKV + (i & 3), sKV, sKV + 3, sK1 if i >= 4 else sK0, (i & 3) * 1024, KVF)
    def m0KV(slot, hi): return "s_add_u32 m0, s%d, %d" % (sReg, slot * 8192 + hi * 4096)

    a.e(["s_mov_b32 s%d, 0" % sXoff, "s_mov_b32 s%d, 0" % sWoff, "s_mov_b32 s%d, 0" % sP])
    for st in range(2):
        a.e([m0W(2 * st), "s_nop 0", dmaW(0), dmaW(1), m0X(st, 0), "s_add_u32 s%d, s%d, 262144" % (sWoff, sWoff)])
        a.e([dmaX(j) for j in range(4)] + [m0X(st, 1), "s_nop 0"] + [dmaX(j) for j in range(4, 7)])
        a.e([m0W(2 * st + 1), "s_add_u32 s%d, s%d, 128" % (sXoff, sXoff), dmaW(0), dmaW(1), "s_add_u32 s%d, s%d, 262144" % (sWoff, sWoff)])
        a.e(kv_generic_pre() + [kv_generic_m0(), "s_nop 0", kv_generic()])
    a.e(["v_mov_b32 v%d, 0" % i for i in range(12, 16)])
    a.e(["v_lshlrev_b32 v%d, 4, v%d" % (vL16, vL),
         "v_and_b32 v%d, 15, v%d" % (vT, vL), "v_lshrrev_b32 v%d, 4, v%d" % (vT2, vL),
         "v_and_b32 v%d, 6, v%d" % (vT3, vT), "v_xor_b32 v%d, v%d, v%d" % (vT3, vT3, vT2), "v_lshlrev_b32 v%d, 4, v%d" % (vT3, vT3),
         "v_lshl_add_u32 v%d, v%d, 7, v%d" % (vT3, vT, vT3),
         "s_lshl_b32 s%d, s%d, 15" % (sT, sRH), "s_add_u32 s%d, s%d, 16384" % (sT, sT),
         "v_add_u32 v%d, s%d, v%d" % (vXr, sT, vT3), "v_xor_b32 v%d, 64, v%d" % (vXr + 1, vXr),
         "v_add_u32 v%d, 0x10000, v%d" % (vXr + 2, vXr), "v_add_u32 v%d, 0x10000, v%d" % (vXr + 3, vXr + 1)])
    for i in range(7): a.e(zero16(vr(ACC + 16 * i, 16)))
    a.e(["v_bfe_u32 v%d, v%d, 2, 2" % (vT, vL), "v_lshl_add_u32 v%d, v%d, 3, v%d" % (vT, vT2, vT),
         "v_and_b32 v%d, 2, v%d" % (vT3, vT), "v_lshlrev_b32 v%d, 1, v%d" % (vT3, vT3),
         "v_and_b32 v%d, 3, v%d" % (vT2, vL), "v_xor_b32 v%d, v%d, v%d" % (vT3, vT3, vT2), "v_lshlrev_b32 v%d, 4, v%d" % (vT3, vT3),
         "v_lshl_add_u32 v%d, v%d, 7, v%d" % (vT3, vT, vT3),
         "s_lshl_b32 s%d, s%d, 12" % (sT, sKH), "s_add_u32 s%d, s%d, 131072" % (sT, sT),
         "v_add_u32 v%d, s%d, v%d" % (vWr, sT, vT3), "v_xor_b32 v%d, 64, v%d" % (vWr + 1, vWr)])
    for i in range(7): a.e(zero16(vr(OK + 16 * i, 16)))
    for i in range(7): a.e(zero16(ar(aO + 16 * i, 16)))
    a.e(["s_mul_i32 s%d, s%d, 14" % (sT, sB), "s_mul_i32 s%d, s%d, 7" % (sG, sRH), "s_add_u32 s%d, s%d, s%d" % (sT, sT, sG),
         "s_lshl_b32 s%d, s%d, 7" % (sT, sT), "s_lshl_b32 s%d, s%d, 2" % (sG, sH), "s_add_u32 s%d, s%d, s%d" % (sT, sT, sG),
         "s_lshl_b32 s%d, s%d, 1" % (sG, sKH), "s_add_u32 s%d, s%d, s%d" % (sT, sT, sG), "s_lshl_b32 s%d, s%d, 10" % (sT, sT),
         "s_add_u32 s%d, s14, s%d" % (sO, sT), "s_addc_u32 s%d, s15, 0" % (sO + 1),
         "s_mov_b32 s%d, %d" % (sO + 2, 6 * 131072 + 2048), "s_mov_b32 s%d, 0x20000" % (sO + 3),
         "s_mov_b32 s%d, 0x%x" % (sC, CSCALE), "s_mov_b32 s%d, 0x%x" % (sC + 1, CSCALE)])

    def rdW(k):
        out = []
        for dt in range(4):
            dp, t = dt >> 1, dt & 1
            for sec in range(2):
                b = aWF + 16 * (k & 1) + 4 * dt + 2 * sec
                out.append("ds_read_b64_tr_b16 %s, v%d offset:%d" % (ar(b, 2), vWr + dp, (k & 3) * 8192 + sec * 512 + t * 8))
        return out
    def rdX(s):
        out = []
        for kk in range(2):
            for rt in range(7):
                b = aXF + 56 * (s & 1) + 28 * kk + 4 * rt
                out.append("ds_read_b128 %s, v%d offset:%d" % (ar(b, 4), vXr + 2 * (s & 1) + kk, rt * 2048))
        return out
    a.e(["s_waitcnt vmcnt(15)", "s_barrier"])
    stamp()
    a.e(rdW(0) + rdX(0))
    a.e(["s_mov_b32 s%d, 7" % sCnt, "s_waitcnt vmcnt(13) lgkmcnt(0)", "s_barrier"])

    def p1_kstep(km, mode):
        sp, kk = km >> 1, km & 1
        mf = []
        for rt in range(7):
            for dt in range(4):
                c = vr(ACC + 16 * rt + 4 * dt, 4)
                mf.append(mfma(c, ar(aWF + 16 * (km & 1) + 4 * dt, 4), ar(aXF + 56 * sp + 28 * kk + 4 * rt, 4), c))
        gaps = [[] for _ in range(28)]
        rd = []
        if mode != 31: rd += rdW(km + 1)
        if kk == 1 and mode != 31: rd += rdX(sp + 1)
        dm = []
        nxe = O.nxe
        if mode == "loop":
            def xs(js):
                r = []
                for j in js:
                    if j == 4 and j != js[0]: r += [m0X(sp, 1), "|"]
                    r.append(dmaX(j))
                return r
            if kk == 0:
                dm += [m0W(km), "|", dmaW(0), dmaW(1), m0X(sp, 0), "|"] + xs(list(range(nxe))) + ["s_add_u32 s%d, s%d, 262144" % (sWoff, sWoff)]
            else:
                dm += [m0X(sp, 1 if nxe >= 4 else 0), "|"] + xs(list(range(nxe, 7)))
                dm += [m0W(km), "|", dmaW(0), dmaW(1), "s_add_u32 s%d, s%d, 128" % (sXoff, sXoff), "s_add_u32 s%d, s%d, 262144" % (sWoff, sWoff)]
                dm += kv_generic_pre() + [kv_generic_m0(), "|", kv_generic()]
            endw = "s_waitcnt vmcnt(%d) lgkmcnt(0)" % ((5 + nxe) if kk == 0 else 13)
        elif mode == 28: endw = "s_waitcnt vmcnt(3) lgkmcnt(0)"
        elif mode == 29: endw = "s_waitcnt vmcnt(1) lgkmcnt(0)"
        elif mode == 30:
            dm += ["s_add_u32 s%d, s%d, 16384" % (sK0, sFlip), "s_xor_b32 s%d, s%d, 128" % (sK1, sK0), m0KV(2, 0), "|"] + [dmaKV(i) for i in range(4)]
            dm += [m0KV(2, 1), "|"] + [dmaKV(i) for i in range(4, 8)]
            endw = "s_waitcnt lgkmcnt(0)"
        else: endw = None
        last = 25
        g = 0
        for x in rd:
            gaps[g].append(x); g += 1
        g = 0
        for x in dm:
            if x == "|": g += 1; continue
            while len(gaps[g]) >= 2: g += 1
            gaps[g].append(x)
            if rd and g < len(rd): g += 1
        assert g <= last + 1, (g, km, mode)
        if endw:
            gaps[26].append(endw); gaps[27].append("s_barrier")
        if mode == "loop" and km == 3:
            gaps[25].append("s_sub_u32 s%d, s%d, 1" % (sCnt, sCnt)); gaps[26].append("s_cmp_lg_u32 s%d, 0" % sCnt)
        weave(a, mf, gaps)
    a.raw(".p2align 5")
    a.lab("L1_p1")
    for km in range(4): p1_kstep(km, "loop")
    a.e("s_cbranch_scc1 L1_p1")
    for km in range(4): p1_kstep(km, 28 + km)
    stamp()

    a.e(["s_lshl_b32 s%d, s%d, 13" % (sT, sWv), "s_add_u32 s%d, s%d, 131072" % (sT, sT), "v_add_u32 v%d, s%d, v%d" % (vX, sT, vL16),
         "s_add_u32 s%d, s%d, 24576" % (sT, sReg), "v_add_u32 v%d, s%d, v%d" % (vX + 1, sT, vL16),
         "s_lshl_b32 s%d, s%d, 13" % (sT, sRH), "s_add_u32 s%d, s%d, 131072" % (sT, sT), "v_add_u32 v%d, s%d, v%d" % (vX + 2, sT, vL16),
         "s_lshl_b32 s%d, s%d, 15" % (sT, sRH), "s_add_u32 s%d, s%d, 24576" % (sT, sT), "v_add_u32 v%d, s%d, v%d" % (vX + 3, sT, vL16),
         "v_add_u32 v%d, 0x10000, v%d" % (vX + 4, vX + 3)])
    for f in range(14):
        b = ACC + 8 * f
        for i in range(4): a.e("v_pk_mul_f32 %s, %s, s[%d:%d]" % (vr(b + 2 * i, 2), vr(b + 2 * i, 2), sC, sC + 1))
        for i in range(4): a.e("v_cvt_pk_bf16_f32 v%d, v%d, v%d" % (b + i, b + 2 * i, b + 2 * i + 1))
        if f < 8: a.e("ds_write_b128 v%d, %s offset:%d" % (vX, vr(b, 4), f * 1024))
        else: a.e("ds_write_b128 v%d, %s offset:%d" % (vX + 1, vr(b, 4), (f - 8) * 1024))
    a.e("s_waitcnt lgkmcnt(0)")
    a.e(["s_lshl_b32 s%d, s%d, 15" % (sT, sRH), "s_add_u32 s%d, s%d, 16384" % (sT, sT),
         "v_subrev_u32 v%d, s%d, v%d" % (vTa, sT, vXr), "v_xor_b32 v%d, 64, v%d" % (vTb, vTa),
         "s_lshl_b32 s%d, s%d, 16" % (sG, sKH),
         "v_add_u32 v%d, s%d, v%d" % (vKr, sG, vTa), "v_add_u32 v%d, s%d, v%d" % (vKr + 1, sG, vTb),
         "v_lshrrev_b32 v%d, 2, v%d" % (vT, vL),
         "v_bfe_u32 v%d, v%d, 1, 2" % (vT2, vT), "v_lshlrev_b32 v%d, 5, v%d" % (vT2, vT2),
         "v_lshl_add_u32 v%d, v%d, 7, v%d" % (vT2, vT, vT2),
         "v_and_b32 v%d, 3, v%d" % (vT3, vL), "v_lshl_add_u32 v%d, v%d, 3, v%d" % (vT2, vT3, vT2),
         "s_add_u32 s%d, s%d, 32768" % (sG, sG), "v_add_u32 v%d, s%d, v%d" % (vVr, sG, vT2)])
    for i in range(1, 4): a.e("v_xor_b32 v%d, %d, v%d" % (vVr + i, 32 * i, vVr))
    a.e(["s_waitcnt vmcnt(8)", "s_barrier"])
    for rt in range(7):
        for ks in range(4):
            dh, dp = ks >> 1, ks & 1
            f = rt * 2 + dp
            if f < 8: a.e("ds_read_b128 %s, v%d offset:%d" % (ar(aQ + 16 * rt + 4 * ks, 4), vX + 2, dh * 16384 + f * 1024))
            else: a.e("ds_read_b128 %s, v%d offset:%d" % (ar(aQ + 16 * rt + 4 * ks, 4), vX + 3 + dh, (f - 8) * 1024))
    for ks in range(4):
        a.e("ds_read_b128 %s, v%d offset:%d" % (vr(V + 4 * ks, 4), vTa + (ks & 1), (ks >> 1) * 4096))
    def rdK(i, slot):
        t, ks = i & 1, i >> 1
        return "ds_read_b128 %s, v%d offset:%d" % (ar(aK + 16 * t + 4 * ks, 4), vKr + (ks & 1), slot * 8192 + (ks >> 1) * 4096 + t * 2048)
    a.e(["s_waitcnt lgkmcnt(0)", "s_barrier"])
    NA = 2
    a.e(["s_add_u32 s%d, s%d, 8192" % (sK0, sK0), "s_add_u32 s%d, s%d, 8192" % (sK1, sK1), m0KV(3, 0), "s_nop 0"] + [dmaKV(i) for i in range(NA)])
    for ks in range(4):
        for rt in range(7):
            d = vr(M + 4 * rt, 4)
            a.e(mfma(d, vr(V + 4 * ks, 4), ar(aQ + 16 * rt + 4 * ks, 4), "0" if ks == 0 else d))
    a.e("s_nop 1")
    def xlane(op, regs_, tmp):
        for sw in ("v_permlane32_swap_b32", "v_permlane16_swap_b32"):
            for r_, t_ in zip(regs_, tmp): a.e("v_mov_b32 v%d, v%d" % (t_, r_))
            a.e("s_nop 0")
            for r_, t_ in zip(regs_, tmp): a.e("%s v%d, v%d" % (sw, r_, t_))
            for r_, t_ in zip(regs_, tmp): a.e("%s v%d, v%d, v%d" % (op, r_, r_, t_))
    for rt in range(7):
        b = M + 4 * rt
        a.e("v_max3_f32 v%d, v%d, v%d, v%d" % (b, b, b + 1, b + 2))
    for rt in range(7):
        b = M + 4 * rt
        a.e("v_max_f32 v%d, v%d, v%d" % (b, b, b + 3))
    xlane("v_max_f32", [M + 4 * rt for rt in range(7)], [M + 4 * rt + 1 for rt in range(7)])
    a.lab("L1_setm")
    for rt in range(7):
        b = M + 4 * rt
        for i in (1, 2, 3, 0): a.e("v_sub_f32 v%d, 0, v%d" % (b + i, b))
    a.lab("L1_attn")
    a.e([rdK(i, 0) for i in range(8)])
    a.e(["v_mov_b32 v%d, 0" % i for i in range(L, L + 7)])
    a.e(["v_mov_b32 v%d, 0" % i for i in range(P, P + 8)])
    a.e([zero16(vr(V, 16)), zero16(vr(V + 16, 16))])
    a.e(["s_mov_b32 s%d, 4" % sCnt, "s_waitcnt lgkmcnt(0)"])
    def qk(rt, sb):
        out = []
        for i in range(8):
            t, ks = i & 1, i >> 1
            d = vr(S + 8 * sb + 4 * t, 4)
            out.append(mfma(d, ar(aK + 16 * t + 4 * ks, 4), ar(aQ + 16 * rt + 4 * ks, 4), vr(M + 4 * rt, 4) if ks == 0 else d))
        return out
    def oacc(rt, i): return vr(OK + 16 * rt + 4 * i, 4) if i < 4 else ar(aO + 16 * rt + 4 * (i - 4), 4)
    def pv(rt, pb):
        return [mfma(oacc(rt, i), vr(V + 4 * i, 4), vr(P + 4 * pb, 4), oacc(rt, i)) for i in range(8)]
    a.e(qk(0, 0))
    a.e(["s_nop 7", "s_nop 3"])
    stamp()

    def body(js):
        for r in range(7):
            u = 7 * js + r
            mf = qk((r + 1) % 7, (u + 1) & 1) + pv((r + 6) % 7, (u + 1) & 1)
            mem = [[] for _ in range(16)]
            val = [[] for _ in range(16)]
            for e in range(8):
                val[2 * e].append("v_exp_f32 v%d, v%d" % (E + e, S + 8 * (u & 1) + e))
                val[2 * e + 1].append("v_add_f32 v%d, v%d, v%d" % (L + r, L + r, E + e))
                if e & 1: val[2 * e + 1].append("v_cvt_pk_bf16_f32 v%d, v%d, v%d" % (P + 4 * (u & 1) + (e >> 1), E + e - 1, E + e))
            ps = (js + 3) & 3
            if r == 0:
                for i in range(8):
                    for sec in range(2):
                        mem[8 + i].append("ds_read_b64_tr_b16 %s, v%d offset:%d" % (vr(V + 4 * i + 2 * sec, 2), vVr + (i & 3), js * 8192 + (i >> 2) * 4096 + sec * 2048))
                mem[1].append(dmaKV(2)); mem[5].append(dmaKV(3))
            if r == 1:
                mem[5].append("s_waitcnt lgkmcnt(0)")
                mem[1].append(m0KV(ps, 1)); mem[9].append(dmaKV(4))
            if r == 2: mem[1].append(dmaKV(5)); mem[9].append(dmaKV(6))
            if r == 3:
                mem[1].append(dmaKV(7))
                mem[5].append("s_add_u32 s%d, s%d, 8192" % (sK0, sK0)); mem[9].append("s_add_u32 s%d, s%d, 8192" % (sK1, sK1))
            if r == 4:
                mem[9].append("s_waitcnt vmcnt(16)"); mem[13].append("s_barrier")
                mem[5].append(m0KV(js, 0))
            if r == 5:
                for i in range(8): mem[i].append(rdK(i, (js + 1) & 3))
                mem[9].append(dmaKV(0)); mem[13].append("s_waitcnt lgkmcnt(0)")
            if r == 6:
                mem[1].append(dmaKV(1))
                if js == 3: mem[5].append("s_sub_u32 s%d, s%d, 1" % (sCnt, sCnt)); mem[9].append("s_cmp_lg_u32 s%d, 0" % sCnt)
            weave(a, mf, [m + v for m, v in zip(mem, val)])
    a.raw(".p2align 5")
    a.lab("L1_loop")
    for js in range(4): body(js)
    a.e("s_cbranch_scc1 L1_loop")
    a.e("s_nop 0")
    a.e(pv(6, 1))
    stamp()

    xlane("v_add_f32", [L + i for i in range(7)], [E + i for i in range(7)])
    a.e(["v_max3_f32 v%d, v%d, v%d, v%d" % (vTa, L, L + 1, L + 2), "v_max3_f32 v%d, v%d, v%d, v%d" % (vTb, L + 3, L + 4, L + 5),
         "v_add_f32 v%d, v%d, v%d" % (vTc, L, L + 1)])
    for i in range(2, 7): a.e("v_add_f32 v%d, v%d, v%d" % (vTc, vTc, L + i))
    a.e(["s_mov_b32 s%d, 0x%x" % (sT, THR if not O.force_slow else 0), "s_mul_i32 s%d, s%d, 28672" % (sG, sWv),
         "v_cmp_ngt_f32 vcc, s%d, v%d" % (sT, vTc),
         "v_add_u32 v%d, s%d, v%d" % (vTa, sG, vL16),
         "s_xor_b32 s%d, s%d, 2" % (sT2, sWv), "s_mul_i32 s%d, s%d, 28672" % (sG, sT2),
         "s_cmp_lg_u64 vcc, 0", "s_cselect_b32 s%d, 1, 0" % sT,
         "v_add_u32 v%d, s%d, v%d" % (vTb, sG, vL16),
         "v_mov_b32 v%d, s%d" % (L + 7, sT),
         "s_lshl_b32 s%d, s%d, 11" % (sG, sWv), "s_add_u32 s%d, s%d, 114688" % (sG, sG), "v_add_u32 v%d, s%d, v%d" % (vTc, sG, vL16),
         "s_lshl_b32 s%d, s%d, 2" % (sG, sWv), "s_add_u32 s%d, s%d, 122880" % (sG, sG), "v_mov_b32 v%d, s%d" % (vT, sG),
         "v_mov_b32 v%d, 122880" % vT2,
         "v_xor_b32 v%d, 4096, v%d" % (vT3, vTc),
         "s_waitcnt vmcnt(0)", "s_barrier"])
    a.e(["ds_write_b128 v%d, %s" % (vTc, vr(L, 4)), "ds_write_b128 v%d, %s offset:1024" % (vTc, vr(L + 4, 4)), "ds_write_b32 v%d, v%d" % (vT, L + 7)])
    for i in range(28): a.e("ds_write_b128 v%d, %s offset:%d" % (vTa, ar(aO + 4 * i, 4), i * 1024))
    a.e(["s_waitcnt lgkmcnt(0)", "s_barrier"])
    PL = 208
    a.e(["ds_read_b128 %s, v%d" % (vr(216, 4), vT2), "ds_read_b128 %s, v%d" % (vr(PL, 4), vT3), "ds_read_b128 %s, v%d offset:1024" % (vr(PL + 4, 4), vT3)])
    def rdP(rt): return ["ds_read_b128 %s, v%d offset:%d" % (vr(128 + 16 * (rt % 5) + 4 * i, 4), vTb, (rt * 4 + i) * 1024) for i in range(4)]
    for rt in range(3): a.e(rdP(rt))
    a.e(["s_waitcnt lgkmcnt(12)", "v_or3_b32 v216, v216, v217, v218", "v_or_b32 v216, v216, v219", "s_nop 0",
         "v_readfirstlane_b32 s%d, v216" % sT, "s_nop 0", "s_andn2_b32 s%d, s%d, s%d" % (sT, sT, sPass), "s_cmp_lg_u32 s%d, 0" % sT, "s_cbranch_scc1 L1_slow"])
    for i in range(7): a.e("v_add_f32 v%d, v%d, v%d" % (L + i, L + i, PL + i))
    for i in range(7): a.e("v_rcp_f32 v%d, v%d" % (L + i, L + i))
    OF = (" " + O.o_store_flags) if O.o_store_flags else ""
    for rt in range(7):
        if rt + 3 < 7: a.e(rdP(rt + 3))
        a.e("s_waitcnt lgkmcnt(%d)" % (4 * min(3, 6 - rt)))
        pb = 128 + 16 * (rt % 5); ob = OK + 16 * rt
        for i in range(8): a.e("v_pk_add_f32 %s, %s, %s" % (vr(ob + 2 * i, 2), vr(ob + 2 * i, 2), vr(pb + 2 * i, 2)))
        lp = L + rt
        for i in range(8):
            if lp % 2 == 0: a.e("v_pk_mul_f32 %s, %s, %s op_sel_hi:[1,0]" % (vr(ob + 2 * i, 2), vr(ob + 2 * i, 2), vr(lp, 2)))
            else: a.e("v_pk_mul_f32 %s, %s, %s op_sel:[0,1]" % (vr(ob + 2 * i, 2), vr(ob + 2 * i, 2), vr(lp - 1, 2)))
        for i in range(8): a.e("v_cvt_pk_bf16_f32 v%d, v%d, v%d" % (ob + i, ob + 2 * i, ob + 2 * i + 1))
        a.e("s_mov_b32 s%d, %d" % (sT, rt * 131072))
        for p in range(2): a.e("buffer_store_dwordx4 %s, v%d, s[%d:%d], s%d offen offset:%d%s" % (vr(ob + 4 * p, 4), vL16, sO, sO + 3, sT, p * 1024, OF))
    stamp()
    if O.stamps:
        a.e(["s_waitcnt vmcnt(0)"]); stamp()
        a.e(["s_waitcnt lgkmcnt(0)", "s_lshl_b32 s%d, s2, 2" % sT, "s_add_u32 s%d, s%d, s%d" % (sT, sT, sWv), "s_lshl_b32 s%d, s%d, 6" % (sT, sT),
             "s_add_u32 s%d, s%d, 0x%x" % (sT, sT, STAMP_OFF),
             "s_add_u32 s%d, s14, s%d" % (sO, sT), "s_addc_u32 s%d, s15, 0" % (sO + 1), "s_mov_b32 s%d, 64" % (sO + 2), "v_mov_b32 v%d, 0" % vT])
        for i in range(nst[0]):
            a.e(["s_sub_u32 s%d, s%d, s%d" % (sT, sST + 2 * i, sST), "v_mov_b32 v%d, s%d" % (vT2, sT),
                 "buffer_store_dword v%d, v%d, s[%d:%d], 0 offen offset:%d" % (vT2, vT, sO, sO + 3, 4 * i)])
    a.lab("L1_end")
    a.e("s_endpgm")

    a.lab("L1_slow")
    a.e(["s_waitcnt lgkmcnt(0)", "s_barrier", "s_mov_b32 s%d, 1" % sPass, "s_mov_b32 s%d, 16" % sCnt,
         "s_mov_b32 s%d, s%d" % (sK0, sFlip), "s_xor_b32 s%d, s%d, 128" % (sK1, sK0)])
    for rt in range(7): a.e("v_mov_b32 v%d, 0xff800000" % (M + 4 * rt))
    a.lab("L1_slow_loop")
    a.e([m0KV(0, 0), "s_nop 0"] + [dmaKV(i) for i in range(4)] + [m0KV(0, 1), "s_nop 0"] + [dmaKV(i) for i in range(4, 8)])
    a.e(["s_add_u32 s%d, s%d, 8192" % (sK0, sK0), "s_add_u32 s%d, s%d, 8192" % (sK1, sK1), "s_waitcnt vmcnt(0)", "s_barrier"])
    a.e([rdK(i, 0) for i in range(8)])
    a.e(["s_waitcnt lgkmcnt(0)", "s_barrier"])
    for rt in range(7):
        for i in range(8):
            t, ks = i & 1, i >> 1
            d = vr(S + 4 * t, 4)
            a.e(mfma(d, ar(aK + 16 * t + 4 * ks, 4), ar(aQ + 16 * rt + 4 * ks, 4), "0" if ks == 0 else d))
        a.e("s_nop 7")
        m = M + 4 * rt
        for i in range(4): a.e("v_max3_f32 v%d, v%d, v%d, v%d" % (m, m, S + 2 * i, S + 2 * i + 1))
    a.e(["s_sub_u32 s%d, s%d, 1" % (sCnt, sCnt), "s_cmp_lg_u32 s%d, 0" % sCnt, "s_cbranch_scc1 L1_slow_loop"])
    xlane("v_max_f32", [M + 4 * rt for rt in range(7)], [M + 4 * rt + 1 for rt in range(7)])
    a.e(["s_lshl_b32 s%d, s%d, 13" % (sG, sWv), "s_add_u32 s%d, s%d, 131072" % (sG, sG), "v_add_u32 v%d, s%d, v%d" % (vTc, sG, vL16),
         "v_xor_b32 v%d, 16384, v%d" % (vT3, vTc)])
    for rt in range(7): a.e("ds_write_b32 v%d, v%d offset:%d" % (vTc, M + 4 * rt, rt * 1024))
    a.e(["s_waitcnt lgkmcnt(0)", "s_barrier"])
    for rt in range(7): a.e("ds_read_b32 v%d, v%d offset:%d" % (M + 4 * rt + 1, vT3, rt * 1024))
    a.e(["s_mov_b32 s%d, s%d" % (sK0, sFlip), "s_xor_b32 s%d, s%d, 128" % (sK1, sK0)])
    for tl in range(3):
        a.e([m0KV(tl, 0), "s_nop 0"] + [dmaKV(i) for i in range(4)] + [m0KV(tl, 1), "s_nop 0"] + [dmaKV(i) for i in range(4, 8)])
        a.e(["s_add_u32 s%d, s%d, 8192" % (sK0, sK0), "s_add_u32 s%d, s%d, 8192" % (sK1, sK1)])
    a.e([m0KV(3, 0), "s_nop 0"] + [dmaKV(i) for i in range(NA)])
    for i in range(7): a.e(zero16(vr(OK + 16 * i, 16)))
    for i in range(7): a.e(zero16(ar(aO + 16 * i, 16)))
    a.e("s_waitcnt lgkmcnt(0)")
    for rt in range(7): a.e("v_max_f32 v%d, v%d, v%d" % (M + 4 * rt, M + 4 * rt, M + 4 * rt + 1))
    a.e(["s_waitcnt vmcnt(%d)" % (8 + NA), "s_barrier", "s_branch L1_setm"])

def kernel2(a):
    sOs, sWs, sOut = 16, 20, 24
    sWv, sB, sRH, sCT, sT, sG, sOo, sWo, sCnt, sM = 32, 33, 34, 35, 36, 37, 38, 39, 40, 41
    sRt = 44
    vL, vT, vT2, vT3, vL16 = 1, 2, 3, 4, 5
    vD = 6
    vR = 16
    vS = 20
    WF = 32
    ACC = 64
    RD = 176
    aOF = 0
    OFl = (" " + O.k2_o_flags) if O.k2_o_flags else ""
    WFl = (" " + O.k2_w_flags) if O.k2_w_flags else ""
    a.lab(NAME + "_k2_kernel")
    a.e(["s_cmp_ge_u32 s2, 256", "s_cbranch_scc1 L2_end",
         "s_load_dwordx4 s[4:7], s[0:1], 32", "s_load_dwordx2 s[8:9], s[0:1], 56",
         "v_and_b32 v%d, 63, v0" % vL, "v_lshrrev_b32 v%d, 6, v0" % vT,
         "s_and_b32 s%d, s2, 7" % sT, "s_lshr_b32 s%d, s2, 3" % sG,
         "v_readfirstlane_b32 s%d, v%d" % (sWv, vT),
         "s_lshr_b32 s%d, s%d, 1" % (sB, sT), "s_lshl_b32 s%d, s%d, 2" % (sB, sB), "s_and_b32 s%d, s%d, 3" % (sRH, sG), "s_add_u32 s%d, s%d, s%d" % (sB, sB, sRH),
         "s_and_b32 s%d, s%d, 1" % (sCT, sT), "s_lshl_b32 s%d, s%d, 3" % (sCT, sCT), "s_lshr_b32 s%d, s%d, 2" % (sG, sG), "s_add_u32 s%d, s%d, s%d" % (sCT, sCT, sG),
         "v_lshlrev_b32 v%d, 4, v%d" % (vL16, vL),
         "v_lshrrev_b32 v%d, 3, v%d" % (vT, vL), "v_and_b32 v%d, 7, v%d" % (vT2, vL), "v_and_b32 v%d, 6, v%d" % (vT3, vT),
         "v_xor_b32 v%d, v%d, v%d" % (vT3, vT3, vT2), "v_lshlrev_b32 v%d, 4, v%d" % (vT3, vT3),
         "v_lshl_add_u32 v%d, v%d, 11, v%d" % (vD, vT, vT3)])
    for j in range(1, 4): a.e("v_add_u32 v%d, %d, v%d" % (vD + j, j * (16384 - 1024), vD))
    a.e(["s_lshl_b32 s%d, s%d, 14" % (sM, sWv), "s_waitcnt lgkmcnt(0)",
         "s_mul_i32 s%d, s%d, %d" % (sT, sB, 7 * 131072), "s_lshl_b32 s%d, s%d, 15" % (sG, sWv), "s_add_u32 s%d, s%d, s%d" % (sT, sT, sG),
         "s_add_u32 s%d, s8, s%d" % (sOs, sT), "s_addc_u32 s%d, s9, 0" % (sOs + 1), "s_mov_b32 s%d, %d" % (sOs + 2, 6 * 131072 + 32768), "s_mov_b32 s%d, 0x20000" % (sOs + 3),
         "s_lshl_b32 s%d, s%d, 21" % (sT, sWv), "s_lshl_b32 s%d, s%d, 7" % (sG, sCT), "s_add_u32 s%d, s%d, s%d" % (sT, sT, sG),
         "s_add_u32 s%d, s4, s%d" % (sWs, sT), "s_addc_u32 s%d, s5, 0" % (sWs + 1), "s_sub_u32 s%d, 0x200000, s%d" % (sWs + 2, sG), "s_mov_b32 s%d, 0x20000" % (sWs + 3),
         "s_mov_b32 s%d, 0" % sWo])
    for rt in range(7): a.e("s_mov_b32 s%d, %d" % (sRt + rt, rt * 131072))
    def dmaW(j): return "buffer_load_dwordx4 v%d, s[%d:%d], s%d offen offset:%d%s lds" % (vD + j, sWs, sWs + 3, sWo, j * 1024, WFl)
    def m0W(slot): return "s_add_u32 m0, s%d, %d" % (sM, slot * 4096)
    def ldO(rt, km): return "buffer_load_dwordx4 %s, v%d, s[%d:%d], s%d offen offset:%d%s" % (ar(aOF + 28 * km + 4 * rt, 4), vS + 5, sOs, sOs + 3, sRt + rt, km * 1024, OFl)
    a.e("v_mov_b32 v%d, v%d" % (vS + 5, vL16))
    for km in range(4):
        a.e([m0W(km), "s_nop 0"] + [dmaW(j) for j in range(4)] + ["s_add_u32 s%d, s%d, 65536" % (sWo, sWo)] + [ldO(rt, km) for rt in range(7)])
    a.e("v_add_u32 v%d, 4096, v%d" % (vS + 5, vS + 5))
    a.e(["v_mov_b32 v%d, 0" % i for i in range(12, 16)])
    a.e(["v_lshrrev_b32 v%d, 2, v%d" % (vT, vL), "v_bfe_u32 v%d, v%d, 1, 2" % (vT2, vT), "v_xor_b32 v%d, s%d, v%d" % (vT2, sWv, vT2),
         "v_lshlrev_b32 v%d, 5, v%d" % (vT2, vT2), "v_lshl_add_u32 v%d, v%d, 7, v%d" % (vT2, vT, vT2),
         "v_and_b32 v%d, 3, v%d" % (vT3, vL), "v_lshl_add_u32 v%d, v%d, 3, v%d" % (vT2, vT3, vT2),
         "v_add_u32 v%d, s%d, v%d" % (vR, sM, vT2)])
    for i in range(1, 4): a.e("v_xor_b32 v%d, %d, v%d" % (vR + i, 32 * i, vR))
    for i in range(7): a.e(zero16(vr(ACC + 16 * i, 16)))
    for i in range(4):
        a.e(["s_xor_b32 s%d, s%d, %d" % (sT, sWv, i), "s_mul_i32 s%d, s%d, 21504" % (sT, sT),
             "s_add_u32 s%d, s%d, %d" % (sT, sT, 65536 + max(i - 1, 0) * 7168), "v_add_u32 v%d, s%d, v%d" % (vS + i, sT, vL16)])
    a.e(["s_mul_i32 s%d, s%d, %d" % (sT, sB, 112 * 2048), "s_add_u32 s%d, s6, s%d" % (sOut, sT), "s_addc_u32 s%d, s7, 0" % (sOut + 1),
         "s_mov_b32 s%d, %d" % (sOut + 2, 112 * 2048), "s_mov_b32 s%d, 0x20000" % (sOut + 3),
         "v_and_b32 v%d, 15, v%d" % (vT, vL), "v_lshrrev_b32 v%d, 4, v%d" % (vT2, vL), "v_lshlrev_b32 v%d, 3, v%d" % (vT2, vT2),
         "v_lshl_add_u32 v%d, v%d, 11, v%d" % (vT, vT, vT2),
         "s_lshl_b32 s%d, s%d, 7" % (sT, sCT), "s_lshl_b32 s%d, s%d, 5" % (sG, sWv), "s_add_u32 s%d, s%d, s%d" % (sT, sT, sG),
         "v_add_u32 v%d, s%d, v%d" % (vS + 4, sT, vT)])
    def rdW(k):
        out = []
        for i in range(4):
            for sec in range(2):
                out.append("ds_read_b64_tr_b16 %s, v%d offset:%d" % (vr(WF + 16 * (k & 1) + 4 * i + 2 * sec, 2), vR + i, (k & 3) * 4096 + sec * 2048))
        return out
    a.e(["s_waitcnt vmcnt(40)"] + rdW(0) + ["s_mov_b32 s%d, 7" % sCnt, "s_waitcnt vmcnt(29) lgkmcnt(0)"])
    def kstep(km, tail):
        mf = []; gaps = [[] for _ in range(28)]
        for rt in range(7):
            for i in range(4):
                c = vr(ACC + 16 * rt + 4 * i, 4)
                mf.append(mfma(c, vr(WF + 16 * (km & 1) + 4 * i, 4), ar(aOF + 28 * km + 4 * rt, 4), c))
        if not (tail and km == 3):
            for g, x in enumerate(rdW(km + 1)): gaps[g].append(x)
        if not tail:
            gaps[0].append(m0W(km))
            for j in range(4): gaps[1 + j // 2].append(dmaW(j))
            gaps[4].append("s_add_u32 s%d, s%d, 65536" % (sWo, sWo))
            for rt in range(7): gaps[4 * rt + 3].append(ldO(rt, km))
            if km == 3:
                gaps[27].append("v_add_u32 v%d, 4096, v%d" % (vS + 5, vS + 5))
                gaps[20].append("s_sub_u32 s%d, s%d, 1" % (sCnt, sCnt)); gaps[21].append("s_cmp_lg_u32 s%d, 0" % sCnt)
            gaps[27].append("s_waitcnt vmcnt(29) lgkmcnt(0)")
        else:
            n = (18, 7, 0, None)[km]
            if n is not None: gaps[27].append("s_waitcnt vmcnt(%d) lgkmcnt(0)" % n)
        weave(a, mf, gaps)
    a.raw(".p2align 5")
    a.lab("L2_loop")
    for km in range(4): kstep(km, False)
    a.e("s_cbranch_scc1 L2_loop")
    for km in range(4): kstep(km, True)
    a.e("s_nop 7")
    for rt in range(7):
        for i in range(1, 4): a.e("ds_write_b128 v%d, %s offset:%d" % (vS + i, vr(ACC + 16 * rt + 4 * i, 4), rt * 1024))
    a.e(["s_waitcnt lgkmcnt(0)", "s_barrier"])
    for rt in range(7):
        for i in range(1, 4): a.e("ds_read_b128 %s, v%d offset:%d" % (vr(ACC + 16 * rt + 4 * i, 4), vS, (i - 1) * 7168 + rt * 1024))
    for rt in range(7):
        a.e("s_waitcnt lgkmcnt(%d)" % min(15, 3 * (6 - rt)))
        b = ACC + 16 * rt
        for h in range(2):
            a.e("v_pk_add_f32 %s, %s, %s" % (vr(b + 2 * h, 2), vr(b + 2 * h, 2), vr(b + 4 + 2 * h, 2)))
            a.e("v_pk_add_f32 %s, %s, %s" % (vr(b + 8 + 2 * h, 2), vr(b + 8 + 2 * h, 2), vr(b + 12 + 2 * h, 2)))
        for h in range(2): a.e("v_pk_add_f32 %s, %s, %s" % (vr(b + 2 * h, 2), vr(b + 2 * h, 2), vr(b + 8 + 2 * h, 2)))
        a.e(["v_cvt_pk_bf16_f32 v%d, v%d, v%d" % (b, b, b + 1), "v_cvt_pk_bf16_f32 v%d, v%d, v%d" % (b + 1, b + 2, b + 3),
             "s_mov_b32 s%d, %d" % (sT, rt * 32768),
             "buffer_store_dwordx2 %s, v%d, s[%d:%d], s%d offen" % (vr(b, 2), vS + 4, sOut, sOut + 3, sT)])
    a.lab("L2_end")
    a.e("s_endpgm")

def desc(name, nv, acc):
    return """.amdhsa_kernel %s
  .amdhsa_next_free_vgpr %d
  .amdhsa_next_free_sgpr 102
  .amdhsa_accum_offset %d
  .amdhsa_group_segment_fixed_size 0
  .amdhsa_kernarg_size 64
  .amdhsa_user_sgpr_count 2
  .amdhsa_user_sgpr_kernarg_segment_ptr 1
  .amdhsa_system_sgpr_workgroup_id_x 1
.end_amdhsa_kernel
""" % (name, nv, acc)

def build():
    hdr = open("cdna_kernels/%s.s.ref" % NAME).read().split("; Override launch")[0]
    a = Asm()
    k1, k2 = NAME + "_k1_kernel", NAME + "_k2_kernel"
    a.raw(".amdgcn_target \"amdgcn-amd-amdhsa--gfx950\"\n.text")
    a.raw(".globl %s\n.p2align 8\n.type %s,@function" % (k1, k1))
    kernel1(a)
    a.raw(".globl %s\n.p2align 8\n.type %s,@function" % (k2, k2))
    kernel2(a)
    errs = check(a.L)
    for e in errs: print(e, file=sys.stderr)
    t = hdr + "; @launch kernel=%s grid=(256,1,1) block=(256,1,1) lds=163840\n" % k1
    t += "; @launch kernel=%s grid=(256,1,1) block=(256,1,1) lds=151552\n" % k2
    t += a.text() + ".section .rodata,\"a\"\n.p2align 6\n" + desc(k1, 512, 256) + ".p2align 6\n" + desc(k2, 512, 256)
    return t

if __name__ == "__main__":
    out = sys.argv[1] if len(sys.argv) > 1 else "cdna_kernels/%s.s" % NAME
    for kv in sys.argv[2:]:
        k, v = kv.split("=")
        cur = getattr(O, k)
        setattr(O, k, (v == "1") if isinstance(cur, bool) else type(cur)(v))
    open(out, "w").write(build())
```

```python
import sys, math, struct
from asmlib import *

NAME = "standalone__mha_block_cached__near_ridge"
def f32(x): return struct.unpack("<I", struct.pack("<f", x))[0]
CSCALE = f32(128 ** -0.5 * math.log2(math.e))
THR = f32(2.0 ** 30)

class Opt:
    stamps = False
    kv_nt = True
    xw_flags = ""
    o_store_flags = ""
    k2_o_flags = ""
    k2_w_flags = ""
    nxe = 4
    force_slow = False
    nodma = False
    nobar = False
    nords = False
O = Opt()

STAMP_OFF = 0x8000000

def zero16(d):
    return "v_mfma_f32_32x32x16_bf16 %s, v[12:15], v[12:15], 0" % d

def kernel1(a):
    KVF = " nt" if O.kv_nt else ""
    XWF = (" " + O.xw_flags) if O.xw_flags else ""
    sX, sW, sKV, sO = 16, 20, 24, 28
    sWv, sB, sH, sRH, sKH = 32, 33, 34, 35, 36
    sXoff, sWoff, sCnt, sMX, sMW, sReg, sP, sG, sFlip, sK0, sK1, sPass, sT, sT2 = 37, 38, 39, 40, 41, 42, 43, 44, 45, 46, 47, 48, 49, 52
    sC = 50
    sST = 60
    vL, vT, vT2, vT3, vL16 = 1, 2, 3, 4, 5
    vKV = 6
    vW = 10
    OK = 16
    ACC = 128
    S, E, P, V, M, L = 128, 144, 152, 160, 192, 220
    vKr, vVr = 228, 230
    vTa, vTb, vTc = 234, 235, 236
    vX = 240
    vXr = 247
    vWr = 251
    aQ, aO, aK = 0, 112, 224
    aXF, aWF = 0, 224
    nst = [0]
    def stamp():
        if O.stamps:
            a.e("s_memtime s[%d:%d]" % (sST + 2 * nst[0], sST + 2 * nst[0] + 1)); nst[0] += 1

    a.lab(NAME + "_k1_kernel")
    a.e(["s_cmp_ge_u32 s2, 256", "s_cbranch_scc1 L1_end",
         "s_load_dwordx8 s[4:11], s[0:1], 0", "s_load_dwordx4 s[12:15], s[0:1], 48"])
    stamp()
    if O.stamps: a.e("s_memrealtime s[56:57]")
    a.e(["v_and_b32 v%d, 63, v0" % vL, "v_lshrrev_b32 v%d, 6, v0" % vT,
         "s_and_b32 s%d, s2, 7" % sT, "s_lshr_b32 s%d, s2, 3" % sT2,
         "v_readfirstlane_b32 s%d, v%d" % (sWv, vT),
         "s_and_b32 s%d, s%d, 1" % (sB, sT), "s_lshl_b32 s%d, s%d, 2" % (sB, sB),
         "s_and_b32 s%d, s%d, 3" % (sG, sT2), "s_add_u32 s%d, s%d, s%d" % (sB, sB, sG),
         "s_lshr_b32 s%d, s%d, 1" % (sH, sT), "s_lshl_b32 s%d, s%d, 3" % (sH, sH),
         "s_lshr_b32 s%d, s%d, 2" % (sG, sT2), "s_add_u32 s%d, s%d, s%d" % (sH, sH, sG),
         "s_and_b32 s%d, s%d, 1" % (sRH, sWv), "s_lshr_b32 s%d, s%d, 1" % (sKH, sWv)])
    a.e(["v_lshrrev_b32 v%d, 3, v%d" % (vT, vL),
         "v_and_b32 v%d, 7, v%d" % (vT2, vL),
         "v_and_b32 v%d, 6, v%d" % (vT3, vT),
         "v_xor_b32 v%d, v%d, v%d" % (vT3, vT3, vT2),
         "v_lshlrev_b32 v%d, 4, v%d" % (vT3, vT3),
         "v_lshl_add_u32 v%d, v%d, 8, v%d" % (vKV, vT, vT3),
         "v_lshl_add_u32 v%d, v%d, 11, v%d" % (vX, vT, vT3),
         "s_mul_i32 s%d, s%d, %d" % (sT, sWv, 7 * 16384),
         "v_add_u32 v%d, s%d, v%d" % (vX, sT, vX)])
    for j in range(1, 7): a.e("v_add_u32 v%d, %d, v%d" % (vX + j, j * 16384 - (j & 3) * 1024, vX))
    for j in range(1, 4): a.e("v_add_u32 v%d, %d, v%d" % (vKV + j, j * 1024, vKV))
    a.e(["v_and_b32 v%d, 2, v%d" % (vT3, vT), "v_lshlrev_b32 v%d, 1, v%d" % (vT3, vT3),
         "v_xor_b32 v%d, v%d, v%d" % (vT3, vT3, vT2), "v_lshlrev_b32 v%d, 4, v%d" % (vT3, vT3),
         "v_lshl_add_u32 v%d, v%d, 13, v%d" % (vW, vT, vT3),
         "s_lshl_b32 s%d, s%d, 17" % (sT, sRH),
         "s_lshl_b32 s%d, s%d, 7" % (sG, sKH), "s_add_u32 s%d, s%d, s%d" % (sT, sT, sG),
         "v_add_u32 v%d, s%d, v%d" % (vW, sT, vW),
         "v_add_u32 v%d, %d, v%d" % (vW + 1, 8 * 8192 - 1024, vW)])
    a.e(["s_lshl_b32 s%d, s%d, 15" % (sMX, sKH), "s_mul_i32 s%d, s%d, 7168" % (sT, sRH),
         "s_add_u32 s%d, s%d, s%d" % (sMX, sMX, sT), "s_add_u32 s%d, s%d, 16384" % (sMX, sMX),
         "s_lshl_b32 s%d, s%d, 11" % (sMW, sWv), "s_add_u32 s%d, s%d, 131072" % (sMW, sMW),
         "s_lshl_b32 s%d, s%d, 15" % (sReg, sWv),
         "s_and_b32 s%d, s%d, s%d" % (sFlip, sRH, sKH), "s_lshl_b32 s%d, s%d, 7" % (sFlip, sFlip),
         "s_mov_b32 s%d, 0" % sPass,
         "s_waitcnt lgkmcnt(0)"])
    a.e(["s_mul_i32 s%d, s%d, 458752" % (sT, sB), "s_add_u32 s%d, s4, s%d" % (sX, sT), "s_addc_u32 s%d, s5, 0" % (sX + 1),
         "s_mov_b32 s%d, 458752" % (sX + 2), "s_mov_b32 s%d, 0x20000" % (sX + 3),
         "s_lshl_b32 s%d, s%d, 8" % (sT, sH), "s_add_u32 s%d, s10, s%d" % (sW, sT), "s_addc_u32 s%d, s11, 0" % (sW + 1),
         "s_sub_u32 s%d, 0x800000, s%d" % (sW + 2, sT), "s_mov_b32 s%d, 0x20000" % (sW + 3),
         "s_cmp_eq_u32 s%d, 0" % sRH, "s_cselect_b32 s%d, s6, s8" % sKV, "s_cselect_b32 s%d, s7, s9" % (sKV + 1),
         "s_lshl_b32 s%d, s%d, 5" % (sT, sB), "s_add_u32 s%d, s%d, s%d" % (sT, sT, sH), "s_lshl_b32 s%d, s%d, 1" % (sT, sT),
         "s_add_u32 s%d, s%d, s%d" % (sT, sT, sKH), "s_lshl_b32 s%d, s%d, 17" % (sT, sT),
         "s_add_u32 s%d, s%d, s%d" % (sKV, sKV, sT), "s_addc_u32 s%d, s%d, 0" % (sKV + 1, sKV + 1),
         "s_mov_b32 s%d, 131072" % (sKV + 2), "s_mov_b32 s%d, 0x20000" % (sKV + 3)])

    def dmaX(j): return "buffer_load_dwordx4 v%d, s[%d:%d], s%d offen offset:%d%s lds" % (vX + j, sX, sX + 3, sXoff, (j & 3) * 1024, XWF)
    def m0X(buf, hi): return "s_add_u32 m0, s%d, %d" % (sMX, buf * 65536 + hi * 4096)
    def dmaW(j): return "buffer_load_dwordx4 v%d, s[%d:%d], s%d offen offset:%d%s lds" % (vW + j, sW, sW + 3, sWoff, j * 1024, XWF)
    def m0W(slot): return "s_add_u32 m0, s%d, %d" % (sMW, slot * 8192)
    def kv_generic_pre():
        return ["s_lshr_b32 s%d, s%d, 3" % (sG, sP), "s_lshl_b32 s%d, s%d, 13" % (sG, sG),
                "s_and_b32 s%d, s%d, 3" % (sT, sP), "s_lshl_b32 s%d, s%d, 11" % (sT, sT), "s_add_u32 s%d, s%d, s%d" % (sG, sG, sT),
                "s_and_b32 s%d, s%d, 4" % (sT, sP), "s_lshl_b32 s%d, s%d, 5" % (sT, sT), "s_xor_b32 s%d, s%d, s%d" % (sT, sT, sFlip),
                "s_add_u32 s%d, s%d, s%d" % (sG, sG, sT),
                "s_lshl_b32 s%d, s%d, 10" % (sT, sP), "s_add_u32 s%d, s%d, 1" % (sP, sP)]
    def kv_generic_m0(): return "s_add_u32 m0, s%d, s%d" % (sReg, sT)
    def kv_generic(): return "buffer_load_dwordx4 v%d, s[%d:%d], s%d offen%s lds" % (vKV, sKV, sKV + 3, sG, KVF)
    def dmaKV(i): return "buffer_load_dwordx4 v%d, s[%d:%d], s%d offen offset:%d%s lds" % (vKV + (i & 3), sKV, sKV + 3, sK1 if i >= 4 else sK0, (i & 3) * 1024, KVF)
    def m0KV(slot, hi): return "s_add_u32 m0, s%d, %d" % (sReg, slot * 8192 + hi * 4096)

    a.e(["s_mov_b32 s%d, 0" % sXoff, "s_mov_b32 s%d, 0" % sWoff, "s_mov_b32 s%d, 0" % sP])
    for st in range(2):
        a.e([m0W(2 * st), "s_nop 0", dmaW(0), dmaW(1), m0X(st, 0), "s_add_u32 s%d, s%d, 262144" % (sWoff, sWoff)])
        a.e([dmaX(j) for j in range(4)] + [m0X(st, 1), "s_nop 0"] + [dmaX(j) for j in range(4, 7)])
        a.e([m0W(2 * st + 1), "s_add_u32 s%d, s%d, 128" % (sXoff, sXoff), dmaW(0), dmaW(1), "s_add_u32 s%d, s%d, 262144" % (sWoff, sWoff)])
        a.e(kv_generic_pre() + [kv_generic_m0(), "s_nop 0", kv_generic()])
    a.e(["v_mov_b32 v%d, 0" % i for i in range(12, 16)])
    a.e(["v_lshlrev_b32 v%d, 4, v%d" % (vL16, vL),
         "v_and_b32 v%d, 15, v%d" % (vT, vL), "v_lshrrev_b32 v%d, 4, v%d" % (vT2, vL),
         "v_and_b32 v%d, 6, v%d" % (vT3, vT), "v_xor_b32 v%d, v%d, v%d" % (vT3, vT3, vT2), "v_lshlrev_b32 v%d, 4, v%d" % (vT3, vT3),
         "v_lshl_add_u32 v%d, v%d, 7, v%d" % (vT3, vT, vT3),
         "s_lshl_b32 s%d, s%d, 15" % (sT, sRH), "s_add_u32 s%d, s%d, 16384" % (sT, sT),
         "v_add_u32 v%d, s%d, v%d" % (vXr, sT, vT3), "v_xor_b32 v%d, 64, v%d" % (vXr + 1, vXr),
         "v_add_u32 v%d, 0x10000, v%d" % (vXr + 2, vXr), "v_add_u32 v%d, 0x10000, v%d" % (vXr + 3, vXr + 1)])
    for i in range(7): a.e(zero16(vr(ACC + 16 * i, 16)))
    a.e(["v_bfe_u32 v%d, v%d, 2, 2" % (vT, vL), "v_lshl_add_u32 v%d, v%d, 3, v%d" % (vT, vT2, vT),
         "v_and_b32 v%d, 2, v%d" % (vT3, vT), "v_lshlrev_b32 v%d, 1, v%d" % (vT3, vT3),
         "v_and_b32 v%d, 3, v%d" % (vT2, vL), "v_xor_b32 v%d, v%d, v%d" % (vT3, vT3, vT2), "v_lshlrev_b32 v%d, 4, v%d" % (vT3, vT3),
         "v_lshl_add_u32 v%d, v%d, 7, v%d" % (vT3, vT, vT3),
         "s_lshl_b32 s%d, s%d, 12" % (sT, sKH), "s_add_u32 s%d, s%d, 131072" % (sT, sT),
         "v_add_u32 v%d, s%d, v%d" % (vWr, sT, vT3), "v_xor_b32 v%d, 64, v%d" % (vWr + 1, vWr)])
    for i in range(7): a.e(zero16(vr(OK + 16 * i, 16)))
    for i in range(7): a.e(zero16(ar(aO + 16 * i, 16)))
    a.e(["s_mul_i32 s%d, s%d, 14" % (sT, sB), "s_mul_i32 s%d, s%d, 7" % (sG, sRH), "s_add_u32 s%d, s%d, s%d" % (sT, sT, sG),
         "s_lshl_b32 s%d, s%d, 7" % (sT, sT), "s_lshl_b32 s%d, s%d, 2" % (sG, sH), "s_add_u32 s%d, s%d, s%d" % (sT, sT, sG),
         "s_lshl_b32 s%d, s%d, 1" % (sG, sKH), "s_add_u32 s%d, s%d, s%d" % (sT, sT, sG), "s_lshl_b32 s%d, s%d, 10" % (sT, sT),
         "s_add_u32 s%d, s14, s%d" % (sO, sT), "s_addc_u32 s%d, s15, 0" % (sO + 1),
         "s_mov_b32 s%d, %d" % (sO + 2, 6 * 131072 + 2048), "s_mov_b32 s%d, 0x20000" % (sO + 3),
         "s_mov_b32 s%d, 0x%x" % (sC, CSCALE), "s_mov_b32 s%d, 0x%x" % (sC + 1, CSCALE)])

    def rdW(k):
        out = []
        for dt in range(4):
            dp, t = dt >> 1, dt & 1
            for sec in range(2):
                b = aWF + 16 * (k & 1) + 4 * dt + 2 * sec
                out.append("ds_read_b64_tr_b16 %s, v%d offset:%d" % (ar(b, 2), vWr + dp, (k & 3) * 8192 + sec * 512 + t * 8))
        return out
    def rdX(s):
        out = []
        for kk in range(2):
            for rt in range(7):
                b = aXF + 56 * (s & 1) + 28 * kk + 4 * rt
                out.append("ds_read_b128 %s, v%d offset:%d" % (ar(b, 4), vXr + 2 * (s & 1) + kk, rt * 2048))
        return out
    a.e(["s_waitcnt vmcnt(15)", "s_barrier"])
    stamp()
    a.e(rdW(0) + rdX(0))
    a.e(["s_mov_b32 s%d, 7" % sCnt, "s_waitcnt vmcnt(13) lgkmcnt(0)", "s_barrier"])

    def p1_kstep(km, mode):
        sp, kk = km >> 1, km & 1
        mf = []
        for rt in range(7):
            for dt in range(4):
                c = vr(ACC + 16 * rt + 4 * dt, 4)
                mf.append(mfma(c, ar(aWF + 16 * (km & 1) + 4 * dt, 4), ar(aXF + 56 * sp + 28 * kk + 4 * rt, 4), c))
        gaps = [[] for _ in range(28)]
        rd = []
        if mode != 31: rd += rdW(km + 1)
        if kk == 1 and mode != 31: rd += rdX(sp + 1)
        dm = []
        nxe = O.nxe
        if mode == "loop":
            def xs(js):
                r = []
                for j in js:
                    if j == 4 and j != js[0]: r += [m0X(sp, 1), "|"]
                    r.append(dmaX(j))
                return r
            if kk == 0:
                dm += [m0W(km), "|", dmaW(0), dmaW(1), m0X(sp, 0), "|"] + xs(list(range(nxe))) + ["s_add_u32 s%d, s%d, 262144" % (sWoff, sWoff)]
            else:
                dm += [m0X(sp, 1 if nxe >= 4 else 0), "|"] + xs(list(range(nxe, 7)))
                dm += [m0W(km), "|", dmaW(0), dmaW(1), "s_add_u32 s%d, s%d, 128" % (sXoff, sXoff), "s_add_u32 s%d, s%d, 262144" % (sWoff, sWoff)]
                dm += kv_generic_pre() + [kv_generic_m0(), "|", kv_generic()]
            endw = "s_waitcnt vmcnt(%d) lgkmcnt(0)" % ((5 + nxe) if kk == 0 else 13)
        elif mode == 28: endw = "s_waitcnt vmcnt(3) lgkmcnt(0)"
        elif mode == 29: endw = "s_waitcnt vmcnt(1) lgkmcnt(0)"
        elif mode == 30:
            dm += ["s_add_u32 s%d, s%d, 16384" % (sK0, sFlip), "s_xor_b32 s%d, s%d, 128" % (sK1, sK0), m0KV(2, 0), "|"] + [dmaKV(i) for i in range(4)]
            dm += [m0KV(2, 1), "|"] + [dmaKV(i) for i in range(4, 8)]
            endw = "s_waitcnt lgkmcnt(0)"
        else: endw = None
        last = 25
        g = 0
        for x in rd:
            gaps[g].append(x); g += 1
        g = 0
        for x in dm:
            if x == "|": g += 1; continue
            while len(gaps[g]) >= 2: g += 1
            gaps[g].append(x)
            if rd and g < len(rd): g += 1
        assert g <= last + 1, (g, km, mode)
        if endw:
            gaps[26].append(endw); gaps[27].append("s_barrier")
        if mode == "loop" and km == 3:
            gaps[25].append("s_sub_u32 s%d, s%d, 1" % (sCnt, sCnt)); gaps[26].append("s_cmp_lg_u32 s%d, 0" % sCnt)
        weave(a, mf, gaps)
    a.raw(".p2align 5")
    a.lab("L1_p1")
    for km in range(4): p1_kstep(km, "loop")
    a.e("s_cbranch_scc1 L1_p1")
    for km in range(4): p1_kstep(km, 28 + km)
    stamp()

    a.e(["s_lshl_b32 s%d, s%d, 13" % (sT, sWv), "s_add_u32 s%d, s%d, 131072" % (sT, sT), "v_add_u32 v%d, s%d, v%d" % (vX, sT, vL16),
         "s_add_u32 s%d, s%d, 24576" % (sT, sReg), "v_add_u32 v%d, s%d, v%d" % (vX + 1, sT, vL16),
         "s_lshl_b32 s%d, s%d, 13" % (sT, sRH), "s_add_u32 s%d, s%d, 131072" % (sT, sT), "v_add_u32 v%d, s%d, v%d" % (vX + 2, sT, vL16),
         "s_lshl_b32 s%d, s%d, 15" % (sT, sRH), "s_add_u32 s%d, s%d, 24576" % (sT, sT), "v_add_u32 v%d, s%d, v%d" % (vX + 3, sT, vL16),
         "v_add_u32 v%d, 0x10000, v%d" % (vX + 4, vX + 3)])
    for f in range(14):
        b = ACC + 8 * f
        for i in range(4): a.e("v_pk_mul_f32 %s, %s, s[%d:%d]" % (vr(b + 2 * i, 2), vr(b + 2 * i, 2), sC, sC + 1))
        for i in range(4): a.e("v_cvt_pk_bf16_f32 v%d, v%d, v%d" % (b + i, b + 2 * i, b + 2 * i + 1))
        if f < 8: a.e("ds_write_b128 v%d, %s offset:%d" % (vX, vr(b, 4), f * 1024))
        else: a.e("ds_write_b128 v%d, %s offset:%d" % (vX + 1, vr(b, 4), (f - 8) * 1024))
    a.e("s_waitcnt lgkmcnt(0)")
    a.e(["s_lshl_b32 s%d, s%d, 15" % (sT, sRH), "s_add_u32 s%d, s%d, 16384" % (sT, sT),
         "v_subrev_u32 v%d, s%d, v%d" % (vTa, sT, vXr), "v_xor_b32 v%d, 64, v%d" % (vTb, vTa),
         "s_lshl_b32 s%d, s%d, 16" % (sG, sKH),
         "v_add_u32 v%d, s%d, v%d" % (vKr, sG, vTa), "v_add_u32 v%d, s%d, v%d" % (vKr + 1, sG, vTb),
         "v_lshrrev_b32 v%d, 2, v%d" % (vT, vL),
         "v_bfe_u32 v%d, v%d, 1, 2" % (vT2, vT), "v_lshlrev_b32 v%d, 5, v%d" % (vT2, vT2),
         "v_lshl_add_u32 v%d, v%d, 7, v%d" % (vT2, vT, vT2),
         "v_and_b32 v%d, 3, v%d" % (vT3, vL), "v_lshl_add_u32 v%d, v%d, 3, v%d" % (vT2, vT3, vT2),
         "s_add_u32 s%d, s%d, 32768" % (sG, sG), "v_add_u32 v%d, s%d, v%d" % (vVr, sG, vT2)])
    for i in range(1, 4): a.e("v_xor_b32 v%d, %d, v%d" % (vVr + i, 32 * i, vVr))
    a.e(["s_waitcnt vmcnt(8)", "s_barrier"])
    for rt in range(7):
        for ks in range(4):
            dh, dp = ks >> 1, ks & 1
            f = rt * 2 + dp
            if f < 8: a.e("ds_read_b128 %s, v%d offset:%d" % (ar(aQ + 16 * rt + 4 * ks, 4), vX + 2, dh * 16384 + f * 1024))
            else: a.e("ds_read_b128 %s, v%d offset:%d" % (ar(aQ + 16 * rt + 4 * ks, 4), vX + 3 + dh, (f - 8) * 1024))
    for ks in range(4):
        a.e("ds_read_b128 %s, v%d offset:%d" % (vr(V + 4 * ks, 4), vTa + (ks & 1), (ks >> 1) * 4096))
    def rdK(i, slot):
        t, ks = i & 1, i >> 1
        return "ds_read_b128 %s, v%d offset:%d" % (ar(aK + 16 * t + 4 * ks, 4), vKr + (ks & 1), slot * 8192 + (ks >> 1) * 4096 + t * 2048)
    a.e(["s_waitcnt lgkmcnt(0)", "s_barrier"])
    NA = 2
    a.e(["s_add_u32 s%d, s%d, 8192" % (sK0, sK0), "s_add_u32 s%d, s%d, 8192" % (sK1, sK1), m0KV(3, 0), "s_nop 0"] + [dmaKV(i) for i in range(NA)])
    for ks in range(4):
        for rt in range(7):
            d = vr(M + 4 * rt, 4)
            a.e(mfma(d, vr(V + 4 * ks, 4), ar(aQ + 16 * rt + 4 * ks, 4), "0" if ks == 0 else d))
    a.e("s_nop 1")
    def xlane(op, regs_, tmp):
        for sw in ("v_permlane32_swap_b32", "v_permlane16_swap_b32"):
            for r_, t_ in zip(regs_, tmp): a.e("v_mov_b32 v%d, v%d" % (t_, r_))
            a.e("s_nop 0")
            for r_, t_ in zip(regs_, tmp): a.e("%s v%d, v%d" % (sw, r_, t_))
            for r_, t_ in zip(regs_, tmp): a.e("%s v%d, v%d, v%d" % (op, r_, r_, t_))
    for rt in range(7):
        b = M + 4 * rt
        a.e("v_max3_f32 v%d, v%d, v%d, v%d" % (b, b, b + 1, b + 2))
    for rt in range(7):
        b = M + 4 * rt
        a.e("v_max_f32 v%d, v%d, v%d" % (b, b, b + 3))
    xlane("v_max_f32", [M + 4 * rt for rt in range(7)], [M + 4 * rt + 1 for rt in range(7)])
    a.lab("L1_setm")
    for rt in range(7):
        b = M + 4 * rt
        for i in (1, 2, 3, 0): a.e("v_sub_f32 v%d, 0, v%d" % (b + i, b))
    a.lab("L1_attn")
    a.e([rdK(i, 0) for i in range(8)])
    a.e(["v_mov_b32 v%d, 0" % i for i in range(L, L + 7)])
    a.e(["v_mov_b32 v%d, 0" % i for i in range(P, P + 8)])
    a.e([zero16(vr(V, 16)), zero16(vr(V + 16, 16))])
    a.e(["s_mov_b32 s%d, 4" % sCnt, "s_waitcnt lgkmcnt(0)"])
    def qk(rt, sb):
        out = []
        for i in range(8):
            t, ks = i & 1, i >> 1
            d = vr(S + 8 * sb + 4 * t, 4)
            out.append(mfma(d, ar(aK + 16 * t + 4 * ks, 4), ar(aQ + 16 * rt + 4 * ks, 4), vr(M + 4 * rt, 4) if ks == 0 else d))
        return out
    def oacc(rt, i): return vr(OK + 16 * rt + 4 * i, 4) if i < 4 else ar(aO + 16 * rt + 4 * (i - 4), 4)
    def pv(rt, pb):
        return [mfma(oacc(rt, i), vr(V + 4 * i, 4), vr(P + 4 * pb, 4), oacc(rt, i)) for i in range(8)]
    a.e(qk(0, 0))
    a.e(["s_nop 7", "s_nop 3"])
    stamp()

    def body(js):
        for r in range(7):
            u = 7 * js + r
            mf = qk((r + 1) % 7, (u + 1) & 1) + pv((r + 6) % 7, (u + 1) & 1)
            mem = [[] for _ in range(16)]
            val = [[] for _ in range(16)]
            for e in range(8):
                val[2 * e].append("v_exp_f32 v%d, v%d" % (E + e, S + 8 * (u & 1) + e))
                val[2 * e + 1].append("v_add_f32 v%d, v%d, v%d" % (L + r, L + r, E + e))
                if e & 1: val[2 * e + 1].append("v_cvt_pk_bf16_f32 v%d, v%d, v%d" % (P + 4 * (u & 1) + (e >> 1), E + e - 1, E + e))
            ps = (js + 3) & 3
            if r == 0:
                for i in range(8):
                    for sec in range(2):
                        mem[8 + i].append("ds_read_b64_tr_b16 %s, v%d offset:%d" % (vr(V + 4 * i + 2 * sec, 2), vVr + (i & 3), js * 8192 + (i >> 2) * 4096 + sec * 2048))
                mem[1].append(dmaKV(2)); mem[5].append(dmaKV(3))
            if r == 1:
                mem[5].append("s_waitcnt lgkmcnt(0)")
                mem[1].append(m0KV(ps, 1)); mem[9].append(dmaKV(4))
            if r == 2: mem[1].append(dmaKV(5)); mem[9].append(dmaKV(6))
            if r == 3:
                mem[1].append(dmaKV(7))
                mem[5].append("s_add_u32 s%d, s%d, 8192" % (sK0, sK0)); mem[9].append("s_add_u32 s%d, s%d, 8192" % (sK1, sK1))
            if r == 4:
                mem[9].append("s_waitcnt vmcnt(16)"); mem[13].append("s_barrier")
                mem[5].append(m0KV(js, 0))
            if r == 5:
                for i in range(8): mem[i].append(rdK(i, (js + 1) & 3))
                mem[9].append(dmaKV(0)); mem[13].append("s_waitcnt lgkmcnt(0)")
            if r == 6:
                mem[1].append(dmaKV(1))
                if js == 3: mem[5].append("s_sub_u32 s%d, s%d, 1" % (sCnt, sCnt)); mem[9].append("s_cmp_lg_u32 s%d, 0" % sCnt)
            if O.nodma: mem = [[x for x in m if not x.startswith("buffer_load")] for m in mem]
            if O.nobar: mem = [[x for x in m if not x.startswith("s_barrier")] for m in mem]
            if O.nords: mem = [[x for x in m if not x.startswith("ds_read")] for m in mem]
            weave(a, mf, [m + v for m, v in zip(mem, val)])
    a.raw(".p2align 5")
    a.lab("L1_loop")
    for js in range(4): body(js)
    a.e("s_cbranch_scc1 L1_loop")
    a.e("s_nop 0")
    a.e(pv(6, 1))
    stamp()

    xlane("v_add_f32", [L + i for i in range(7)], [E + i for i in range(7)])
    a.e(["v_max3_f32 v%d, v%d, v%d, v%d" % (vTa, L, L + 1, L + 2), "v_max3_f32 v%d, v%d, v%d, v%d" % (vTb, L + 3, L + 4, L + 5),
         "v_add_f32 v%d, v%d, v%d" % (vTc, L, L + 1)])
    for i in range(2, 7): a.e("v_add_f32 v%d, v%d, v%d" % (vTc, vTc, L + i))
    a.e(["s_mov_b32 s%d, 0x%x" % (sT, THR if not O.force_slow else 0), "s_mul_i32 s%d, s%d, 28672" % (sG, sWv),
         "v_cmp_ngt_f32 vcc, s%d, v%d" % (sT, vTc),
         "v_add_u32 v%d, s%d, v%d" % (vTa, sG, vL16),
         "s_xor_b32 s%d, s%d, 2" % (sT2, sWv), "s_mul_i32 s%d, s%d, 28672" % (sG, sT2),
         "s_cmp_lg_u64 vcc, 0", "s_cselect_b32 s%d, 1, 0" % sT,
         "v_add_u32 v%d, s%d, v%d" % (vTb, sG, vL16),
         "v_mov_b32 v%d, s%d" % (L + 7, sT),
         "s_lshl_b32 s%d, s%d, 11" % (sG, sWv), "s_add_u32 s%d, s%d, 114688" % (sG, sG), "v_add_u32 v%d, s%d, v%d" % (vTc, sG, vL16),
         "s_lshl_b32 s%d, s%d, 2" % (sG, sWv), "s_add_u32 s%d, s%d, 122880" % (sG, sG), "v_mov_b32 v%d, s%d" % (vT, sG),
         "v_mov_b32 v%d, 122880" % vT2,
         "v_xor_b32 v%d, 4096, v%d" % (vT3, vTc),
         "s_waitcnt vmcnt(0)", "s_barrier"])
    a.e(["ds_write_b128 v%d, %s" % (vTc, vr(L, 4)), "ds_write_b128 v%d, %s offset:1024" % (vTc, vr(L + 4, 4)), "ds_write_b32 v%d, v%d" % (vT, L + 7)])
    for i in range(28): a.e("ds_write_b128 v%d, %s offset:%d" % (vTa, ar(aO + 4 * i, 4), i * 1024))
    a.e(["s_waitcnt lgkmcnt(0)", "s_barrier"])
    PL = 208
    a.e(["ds_read_b128 %s, v%d" % (vr(216, 4), vT2), "ds_read_b128 %s, v%d" % (vr(PL, 4), vT3), "ds_read_b128 %s, v%d offset:1024" % (vr(PL + 4, 4), vT3)])
    def rdP(rt): return ["ds_read_b128 %s, v%d offset:%d" % (vr(128 + 16 * (rt % 5) + 4 * i, 4), vTb, (rt * 4 + i) * 1024) for i in range(4)]
    for rt in range(3): a.e(rdP(rt))
    a.e(["s_waitcnt lgkmcnt(12)", "v_or3_b32 v216, v216, v217, v218", "v_or_b32 v216, v216, v219", "s_nop 0",
         "v_readfirstlane_b32 s%d, v216" % sT, "s_nop 0", "s_andn2_b32 s%d, s%d, s%d" % (sT, sT, sPass), "s_cmp_lg_u32 s%d, 0" % sT, "s_cbranch_scc1 L1_slow"])
    for i in range(7): a.e("v_add_f32 v%d, v%d, v%d" % (L + i, L + i, PL + i))
    for i in range(7): a.e("v_rcp_f32 v%d, v%d" % (L + i, L + i))
    OF = (" " + O.o_store_flags) if O.o_store_flags else ""
    for rt in range(7):
        if rt + 3 < 7: a.e(rdP(rt + 3))
        a.e("s_waitcnt lgkmcnt(%d)" % (4 * min(3, 6 - rt)))
        pb = 128 + 16 * (rt % 5); ob = OK + 16 * rt
        for i in range(8): a.e("v_pk_add_f32 %s, %s, %s" % (vr(ob + 2 * i, 2), vr(ob + 2 * i, 2), vr(pb + 2 * i, 2)))
        lp = L + rt
        for i in range(8):
            if lp % 2 == 0: a.e("v_pk_mul_f32 %s, %s, %s op_sel_hi:[1,0]" % (vr(ob + 2 * i, 2), vr(ob + 2 * i, 2), vr(lp, 2)))
            else: a.e("v_pk_mul_f32 %s, %s, %s op_sel:[0,1]" % (vr(ob + 2 * i, 2), vr(ob + 2 * i, 2), vr(lp - 1, 2)))
        for i in range(8): a.e("v_cvt_pk_bf16_f32 v%d, v%d, v%d" % (ob + i, ob + 2 * i, ob + 2 * i + 1))
        a.e("s_mov_b32 s%d, %d" % (sT, rt * 131072))
        for p in range(2): a.e("buffer_store_dwordx4 %s, v%d, s[%d:%d], s%d offen offset:%d%s" % (vr(ob + 4 * p, 4), vL16, sO, sO + 3, sT, p * 1024, OF))
    stamp()
    if O.stamps:
        a.e(["s_waitcnt vmcnt(0)"]); stamp()
        a.e("s_memrealtime s[58:59]")
        a.e(["s_waitcnt lgkmcnt(0)", "s_lshl_b32 s%d, s2, 2" % sT, "s_add_u32 s%d, s%d, s%d" % (sT, sT, sWv), "s_lshl_b32 s%d, s%d, 6" % (sT, sT),
             "s_add_u32 s%d, s%d, 0x%x" % (sT, sT, STAMP_OFF),
             "s_add_u32 s%d, s14, s%d" % (sO, sT), "s_addc_u32 s%d, s15, 0" % (sO + 1), "s_mov_b32 s%d, 64" % (sO + 2), "v_mov_b32 v%d, 0" % vT])
        for i in range(nst[0]):
            a.e(["s_sub_u32 s%d, s%d, s%d" % (sT, sST + 2 * i, sST), "v_mov_b32 v%d, s%d" % (vT2, sT),
                 "buffer_store_dword v%d, v%d, s[%d:%d], 0 offen offset:%d" % (vT2, vT, sO, sO + 3, 4 * i)])
    if O.stamps:
        for i, r_ in enumerate((56, 58)):
            a.e(["v_mov_b32 v%d, s%d" % (vT2, r_), "buffer_store_dword v%d, v%d, s[%d:%d], 0 offen offset:%d" % (vT2, vT, sO, sO + 3, 56 + 4 * i)])
    a.lab("L1_end")
    a.e("s_endpgm")

    a.lab("L1_slow")
    a.e(["s_waitcnt lgkmcnt(0)", "s_barrier", "s_mov_b32 s%d, 1" % sPass, "s_mov_b32 s%d, 16" % sCnt,
         "s_mov_b32 s%d, s%d" % (sK0, sFlip), "s_xor_b32 s%d, s%d, 128" % (sK1, sK0)])
    for rt in range(7): a.e("v_mov_b32 v%d, 0xff800000" % (M + 4 * rt))
    a.lab("L1_slow_loop")
    a.e([m0KV(0, 0), "s_nop 0"] + [dmaKV(i) for i in range(4)] + [m0KV(0, 1), "s_nop 0"] + [dmaKV(i) for i in range(4, 8)])
    a.e(["s_add_u32 s%d, s%d, 8192" % (sK0, sK0), "s_add_u32 s%d, s%d, 8192" % (sK1, sK1), "s_waitcnt vmcnt(0)", "s_barrier"])
    a.e([rdK(i, 0) for i in range(8)])
    a.e(["s_waitcnt lgkmcnt(0)", "s_barrier"])
    for rt in range(7):
        for i in range(8):
            t, ks = i & 1, i >> 1
            d = vr(S + 4 * t, 4)
            a.e(mfma(d, ar(aK + 16 * t + 4 * ks, 4), ar(aQ + 16 * rt + 4 * ks, 4), "0" if ks == 0 else d))
        a.e("s_nop 7")
        m = M + 4 * rt
        for i in range(4): a.e("v_max3_f32 v%d, v%d, v%d, v%d" % (m, m, S + 2 * i, S + 2 * i + 1))
    a.e(["s_sub_u32 s%d, s%d, 1" % (sCnt, sCnt), "s_cmp_lg_u32 s%d, 0" % sCnt, "s_cbranch_scc1 L1_slow_loop"])
    xlane("v_max_f32", [M + 4 * rt for rt in range(7)], [M + 4 * rt + 1 for rt in range(7)])
    a.e(["s_lshl_b32 s%d, s%d, 13" % (sG, sWv), "s_add_u32 s%d, s%d, 131072" % (sG, sG), "v_add_u32 v%d, s%d, v%d" % (vTc, sG, vL16),
         "v_xor_b32 v%d, 16384, v%d" % (vT3, vTc)])
    for rt in range(7): a.e("ds_write_b32 v%d, v%d offset:%d" % (vTc, M + 4 * rt, rt * 1024))
    a.e(["s_waitcnt lgkmcnt(0)", "s_barrier"])
    for rt in range(7): a.e("ds_read_b32 v%d, v%d offset:%d" % (M + 4 * rt + 1, vT3, rt * 1024))
    a.e(["s_mov_b32 s%d, s%d" % (sK0, sFlip), "s_xor_b32 s%d, s%d, 128" % (sK1, sK0)])
    for tl in range(3):
        a.e([m0KV(tl, 0), "s_nop 0"] + [dmaKV(i) for i in range(4)] + [m0KV(tl, 1), "s_nop 0"] + [dmaKV(i) for i in range(4, 8)])
        a.e(["s_add_u32 s%d, s%d, 8192" % (sK0, sK0), "s_add_u32 s%d, s%d, 8192" % (sK1, sK1)])
    a.e([m0KV(3, 0), "s_nop 0"] + [dmaKV(i) for i in range(NA)])
    for i in range(7): a.e(zero16(vr(OK + 16 * i, 16)))
    for i in range(7): a.e(zero16(ar(aO + 16 * i, 16)))
    a.e("s_waitcnt lgkmcnt(0)")
    for rt in range(7): a.e("v_max_f32 v%d, v%d, v%d" % (M + 4 * rt, M + 4 * rt, M + 4 * rt + 1))
    a.e(["s_waitcnt vmcnt(%d)" % (8 + NA), "s_barrier", "s_branch L1_setm"])

def kernel2(a):
    sOs, sWs, sOut = 16, 20, 24
    sWv, sB, sRH, sCT, sT, sG, sOo, sWo, sCnt, sM = 32, 33, 34, 35, 36, 37, 38, 39, 40, 41
    sRt = 44
    vL, vT, vT2, vT3, vL16 = 1, 2, 3, 4, 5
    vD = 6
    vR = 16
    vS = 20
    WF = 32
    ACC = 64
    RD = 176
    aOF = 0
    OFl = (" " + O.k2_o_flags) if O.k2_o_flags else ""
    WFl = (" " + O.k2_w_flags) if O.k2_w_flags else ""
    a.lab(NAME + "_k2_kernel")
    a.e(["s_cmp_ge_u32 s2, 256", "s_cbranch_scc1 L2_end",
         "s_load_dwordx4 s[4:7], s[0:1], 32", "s_load_dwordx2 s[8:9], s[0:1], 56"])
    nst = [0]; sST = 60
    def stamp():
        if O.stamps:
            a.e("s_memtime s[%d:%d]" % (sST + 2 * nst[0], sST + 2 * nst[0] + 1)); nst[0] += 1
    stamp()
    if O.stamps: a.e("s_memrealtime s[56:57]")
    a.e([
         "v_and_b32 v%d, 63, v0" % vL, "v_lshrrev_b32 v%d, 6, v0" % vT,
         "s_and_b32 s%d, s2, 7" % sT, "s_lshr_b32 s%d, s2, 3" % sG,
         "v_readfirstlane_b32 s%d, v%d" % (sWv, vT),
         "s_lshr_b32 s%d, s%d, 1" % (sB, sT), "s_lshl_b32 s%d, s%d, 2" % (sB, sB), "s_and_b32 s%d, s%d, 3" % (sRH, sG), "s_add_u32 s%d, s%d, s%d" % (sB, sB, sRH),
         "s_and_b32 s%d, s%d, 1" % (sCT, sT), "s_lshl_b32 s%d, s%d, 3" % (sCT, sCT), "s_lshr_b32 s%d, s%d, 2" % (sG, sG), "s_add_u32 s%d, s%d, s%d" % (sCT, sCT, sG),
         "v_lshlrev_b32 v%d, 4, v%d" % (vL16, vL),
         "v_lshrrev_b32 v%d, 3, v%d" % (vT, vL), "v_and_b32 v%d, 7, v%d" % (vT2, vL), "v_and_b32 v%d, 6, v%d" % (vT3, vT),
         "v_xor_b32 v%d, v%d, v%d" % (vT3, vT3, vT2), "v_lshlrev_b32 v%d, 4, v%d" % (vT3, vT3),
         "v_lshl_add_u32 v%d, v%d, 11, v%d" % (vD, vT, vT3)])
    for j in range(1, 4): a.e("v_add_u32 v%d, %d, v%d" % (vD + j, j * (16384 - 1024), vD))
    a.e(["s_lshl_b32 s%d, s%d, 14" % (sM, sWv), "s_waitcnt lgkmcnt(0)",
         "s_mul_i32 s%d, s%d, %d" % (sT, sB, 7 * 131072), "s_lshl_b32 s%d, s%d, 15" % (sG, sWv), "s_add_u32 s%d, s%d, s%d" % (sT, sT, sG),
         "s_add_u32 s%d, s8, s%d" % (sOs, sT), "s_addc_u32 s%d, s9, 0" % (sOs + 1), "s_mov_b32 s%d, %d" % (sOs + 2, 6 * 131072 + 32768), "s_mov_b32 s%d, 0x20000" % (sOs + 3),
         "s_lshl_b32 s%d, s%d, 21" % (sT, sWv), "s_lshl_b32 s%d, s%d, 7" % (sG, sCT), "s_add_u32 s%d, s%d, s%d" % (sT, sT, sG),
         "s_add_u32 s%d, s4, s%d" % (sWs, sT), "s_addc_u32 s%d, s5, 0" % (sWs + 1), "s_sub_u32 s%d, 0x200000, s%d" % (sWs + 2, sG), "s_mov_b32 s%d, 0x20000" % (sWs + 3),
         "s_mov_b32 s%d, 0" % sWo])
    for rt in range(7): a.e("s_mov_b32 s%d, %d" % (sRt + rt, rt * 131072))
    def dmaW(j): return "buffer_load_dwordx4 v%d, s[%d:%d], s%d offen offset:%d%s lds" % (vD + j, sWs, sWs + 3, sWo, j * 1024, WFl)
    def m0W(slot): return "s_add_u32 m0, s%d, %d" % (sM, slot * 4096)
    def ldO(rt, km): return "buffer_load_dwordx4 %s, v%d, s[%d:%d], s%d offen offset:%d%s" % (ar(aOF + 28 * km + 4 * rt, 4), vS + 5, sOs, sOs + 3, sRt + rt, km * 1024, OFl)
    a.e("v_mov_b32 v%d, v%d" % (vS + 5, vL16))
    for km in range(4):
        a.e([m0W(km), "s_nop 0"] + [dmaW(j) for j in range(4)] + ["s_add_u32 s%d, s%d, 65536" % (sWo, sWo)] + [ldO(rt, km) for rt in range(7)])
    a.e("v_add_u32 v%d, 4096, v%d" % (vS + 5, vS + 5))
    a.e(["v_mov_b32 v%d, 0" % i for i in range(12, 16)])
    a.e(["v_lshrrev_b32 v%d, 2, v%d" % (vT, vL), "v_bfe_u32 v%d, v%d, 1, 2" % (vT2, vT), "v_xor_b32 v%d, s%d, v%d" % (vT2, sWv, vT2),
         "v_lshlrev_b32 v%d, 5, v%d" % (vT2, vT2), "v_lshl_add_u32 v%d, v%d, 7, v%d" % (vT2, vT, vT2),
         "v_and_b32 v%d, 3, v%d" % (vT3, vL), "v_lshl_add_u32 v%d, v%d, 3, v%d" % (vT2, vT3, vT2),
         "v_add_u32 v%d, s%d, v%d" % (vR, sM, vT2)])
    for i in range(1, 4): a.e("v_xor_b32 v%d, %d, v%d" % (vR + i, 32 * i, vR))
    for i in range(7): a.e(zero16(vr(ACC + 16 * i, 16)))
    for i in range(4):
        a.e(["s_xor_b32 s%d, s%d, %d" % (sT, sWv, i), "s_mul_i32 s%d, s%d, 21504" % (sT, sT),
             "s_add_u32 s%d, s%d, %d" % (sT, sT, 65536 + max(i - 1, 0) * 7168), "v_add_u32 v%d, s%d, v%d" % (vS + i, sT, vL16)])
    a.e(["s_mul_i32 s%d, s%d, %d" % (sT, sB, 112 * 2048), "s_add_u32 s%d, s6, s%d" % (sOut, sT), "s_addc_u32 s%d, s7, 0" % (sOut + 1),
         "s_mov_b32 s%d, %d" % (sOut + 2, 112 * 2048), "s_mov_b32 s%d, 0x20000" % (sOut + 3),
         "v_and_b32 v%d, 15, v%d" % (vT, vL), "v_lshrrev_b32 v%d, 4, v%d" % (vT2, vL), "v_lshlrev_b32 v%d, 3, v%d" % (vT2, vT2),
         "v_lshl_add_u32 v%d, v%d, 11, v%d" % (vT, vT, vT2),
         "s_lshl_b32 s%d, s%d, 7" % (sT, sCT), "s_lshl_b32 s%d, s%d, 5" % (sG, sWv), "s_add_u32 s%d, s%d, s%d" % (sT, sT, sG),
         "v_add_u32 v%d, s%d, v%d" % (vS + 4, sT, vT)])
    def rdW(k):
        out = []
        for i in range(4):
            for sec in range(2):
                out.append("ds_read_b64_tr_b16 %s, v%d offset:%d" % (vr(WF + 16 * (k & 1) + 4 * i + 2 * sec, 2), vR + i, (k & 3) * 4096 + sec * 2048))
        return out
    a.e(["s_waitcnt vmcnt(40)"] + rdW(0) + ["s_mov_b32 s%d, 7" % sCnt, "s_waitcnt vmcnt(29) lgkmcnt(0)"])
    def kstep(km, tail):
        mf = []; gaps = [[] for _ in range(28)]
        for rt in range(7):
            for i in range(4):
                c = vr(ACC + 16 * rt + 4 * i, 4)
                mf.append(mfma(c, vr(WF + 16 * (km & 1) + 4 * i, 4), ar(aOF + 28 * km + 4 * rt, 4), c))
        if not (tail and km == 3):
            for g, x in enumerate(rdW(km + 1)): gaps[g].append(x)
        if not tail:
            gaps[0].append(m0W(km))
            for j in range(4): gaps[1 + j // 2].append(dmaW(j))
            gaps[4].append("s_add_u32 s%d, s%d, 65536" % (sWo, sWo))
            for rt in range(7): gaps[4 * rt + 3].append(ldO(rt, km))
            if km == 3:
                gaps[27].append("v_add_u32 v%d, 4096, v%d" % (vS + 5, vS + 5))
                gaps[20].append("s_sub_u32 s%d, s%d, 1" % (sCnt, sCnt)); gaps[21].append("s_cmp_lg_u32 s%d, 0" % sCnt)
            gaps[27].append("s_waitcnt vmcnt(29) lgkmcnt(0)")
        else:
            n = (18, 7, 0, None)[km]
            if n is not None: gaps[27].append("s_waitcnt vmcnt(%d) lgkmcnt(0)" % n)
        weave(a, mf, gaps)
    stamp()
    a.raw(".p2align 5")
    a.lab("L2_loop")
    for km in range(4): kstep(km, False)
    a.e("s_cbranch_scc1 L2_loop")
    for km in range(4): kstep(km, True)
    stamp()
    a.e("s_nop 7")
    for rt in range(7):
        for i in range(1, 4): a.e("ds_write_b128 v%d, %s offset:%d" % (vS + i, vr(ACC + 16 * rt + 4 * i, 4), rt * 1024))
    a.e(["s_waitcnt lgkmcnt(0)", "s_barrier"])
    for rt in range(7):
        for i in range(1, 4): a.e("ds_read_b128 %s, v%d offset:%d" % (vr(ACC + 16 * rt + 4 * i, 4), vS, (i - 1) * 7168 + rt * 1024))
    for rt in range(7):
        a.e("s_waitcnt lgkmcnt(%d)" % min(15, 3 * (6 - rt)))
        b = ACC + 16 * rt
        for h in range(2):
            a.e("v_pk_add_f32 %s, %s, %s" % (vr(b + 2 * h, 2), vr(b + 2 * h, 2), vr(b + 4 + 2 * h, 2)))
            a.e("v_pk_add_f32 %s, %s, %s" % (vr(b + 8 + 2 * h, 2), vr(b + 8 + 2 * h, 2), vr(b + 12 + 2 * h, 2)))
        for h in range(2): a.e("v_pk_add_f32 %s, %s, %s" % (vr(b + 2 * h, 2), vr(b + 2 * h, 2), vr(b + 8 + 2 * h, 2)))
        a.e(["v_cvt_pk_bf16_f32 v%d, v%d, v%d" % (b, b, b + 1), "v_cvt_pk_bf16_f32 v%d, v%d, v%d" % (b + 1, b + 2, b + 3),
             "s_mov_b32 s%d, %d" % (sT, rt * 32768),
             "buffer_store_dwordx2 %s, v%d, s[%d:%d], s%d offen" % (vr(b, 2), vS + 4, sOut, sOut + 3, sT)])
    if O.stamps:
        stamp()
        a.e(["s_waitcnt vmcnt(0)"]); stamp()
        a.e("s_memrealtime s[58:59]")
        a.e(["s_waitcnt lgkmcnt(0)", "s_lshl_b32 s%d, s2, 2" % sT, "s_add_u32 s%d, s%d, s%d" % (sT, sT, sWv), "s_lshl_b32 s%d, s%d, 6" % (sT, sT),
             "s_add_u32 s%d, s%d, 0x%x" % (sT, sT, STAMP_OFF + 0x100000),
             "s_add_u32 s%d, s8, s%d" % (sOs, sT), "s_addc_u32 s%d, s9, 0" % (sOs + 1), "s_mov_b32 s%d, 64" % (sOs + 2), "v_mov_b32 v%d, 0" % vT])
        for i in range(nst[0]):
            a.e(["s_sub_u32 s%d, s%d, s%d" % (sT, sST + 2 * i, sST), "v_mov_b32 v%d, s%d" % (vT2, sT),
                 "buffer_store_dword v%d, v%d, s[%d:%d], 0 offen offset:%d" % (vT2, vT, sOs, sOs + 3, 4 * i)])
        for i, r_ in enumerate((56, 58)):
            a.e(["v_mov_b32 v%d, s%d" % (vT2, r_), "buffer_store_dword v%d, v%d, s[%d:%d], 0 offen offset:%d" % (vT2, vT, sOs, sOs + 3, 56 + 4 * i)])
    a.lab("L2_end")
    a.e("s_endpgm")

def desc(name, nv, acc):
    return """.amdhsa_kernel %s
  .amdhsa_next_free_vgpr %d
  .amdhsa_next_free_sgpr 102
  .amdhsa_accum_offset %d
  .amdhsa_group_segment_fixed_size 0
  .amdhsa_kernarg_size 64
  .amdhsa_user_sgpr_count 2
  .amdhsa_user_sgpr_kernarg_segment_ptr 1
  .amdhsa_system_sgpr_workgroup_id_x 1
.end_amdhsa_kernel
""" % (name, nv, acc)

def build():
    hdr = open("cdna_kernels/%s.s.ref" % NAME).read().split("; Override launch")[0]
    a = Asm()
    k1, k2 = NAME + "_k1_kernel", NAME + "_k2_kernel"
    a.raw(".amdgcn_target \"amdgcn-amd-amdhsa--gfx950\"\n.text")
    a.raw(".globl %s\n.p2align 8\n.type %s,@function" % (k1, k1))
    kernel1(a)
    a.raw(".globl %s\n.p2align 8\n.type %s,@function" % (k2, k2))
    kernel2(a)
    errs = check(a.L)
    for e in errs: print(e, file=sys.stderr)
    t = hdr + "; @launch kernel=%s grid=(256,1,1) block=(256,1,1) lds=163840\n" % k1
    t += "; @launch kernel=%s grid=(256,1,1) block=(256,1,1) lds=151552\n" % k2
    t += a.text() + ".section .rodata,\"a\"\n.p2align 6\n" + desc(k1, 512, 256) + ".p2align 6\n" + desc(k2, 512, 256)
    return t

if __name__ == "__main__":
    out = sys.argv[1] if len(sys.argv) > 1 else "cdna_kernels/%s.s" % NAME
    for kv in sys.argv[2:]:
        k, v = kv.split("=")
        cur = getattr(O, k)
        setattr(O, k, (v == "1") if isinstance(cur, bool) else type(cur)(v))
    open(out, "w").write(build())
```

```python
import sys, math, struct
from asmlib import *

NAME = "standalone__mha_block_cached__near_ridge"
def f32(x): return struct.unpack("<I", struct.pack("<f", x))[0]
CSCALE = f32(128 ** -0.5 * math.log2(math.e))
THR = f32(2.0 ** 30)

class Opt:
    stamps = False
    kv_nt = True
    xw_flags = ""
    o_store_flags = ""
    k2_o_flags = ""
    k2_w_flags = ""
    nxe = 5
    force_slow = False
    nodma = False
    ts = False
    rot = 0
    kvpf = 3
    pf_every = False
    pf_flags = ""
    pf_code = True
    p1_span = 26
    p1_nodma = False
    p1_nobar = False
    p1_nord = False
    pf_xw = True
    pf_wo = True
    burst = False
    nobar = False
    nords = False
O = Opt()

STAMP_OFF = 0x8000000

def zero16(d):
    return "v_mfma_f32_32x32x16_bf16 %s, v[12:15], v[12:15], 0" % d

def kernel1(a):
    KVF = " nt" if O.kv_nt else ""
    XWF = (" " + O.xw_flags) if O.xw_flags else ""
    sX, sW, sKV, sO = 16, 20, 24, 28
    sWv, sB, sH, sRH, sKH = 32, 33, 34, 35, 36
    sXoff, sWoff, sCnt, sMX, sMW, sReg, sP, sG, sFlip, sK0, sK1, sPass, sT, sT2 = 37, 38, 39, 40, 41, 42, 43, 44, 45, 46, 47, 48, 49, 52
    sC = 50
    sST = 60
    vL, vT, vT2, vT3, vL16 = 1, 2, 3, 4, 5
    vKV = 6
    vW = 10
    OK = 16
    ACC = 128
    S, E, P, V, M, L = 128, 144, 152, 160, 192, 220
    vKr, vVr = 228, 230
    vTa, vTb, vTc = 234, 235, 236
    vX = 240
    vXr = 247
    vWr = 251
    aQ, aO, aK = 0, 112, 224
    aXF, aWF = 0, 224
    nst = [0]
    def stamp():
        if O.stamps:
            a.e("s_memtime s[%d:%d]" % (sST + 2 * nst[0], sST + 2 * nst[0] + 1)); nst[0] += 1

    a.lab(NAME + "_k1_kernel")
    a.e(["s_cmp_ge_u32 s2, 256", "s_cbranch_scc1 L1_end",
         "s_load_dwordx8 s[4:11], s[0:1], 0", "s_load_dwordx4 s[12:15], s[0:1], 48", "s_load_dwordx2 s[54:55], s[0:1], 32"])
    stamp()
    if O.stamps: a.e("s_memrealtime s[56:57]")
    if O.pf_code:
        a.e(["s_getpc_b64 s[%d:%d]" % (sC, sC + 1)])
        a.lab("L1_pc")
        a.e(["v_lshlrev_b32 v%d, 7, v0" % vT, "v_min_u32 v%d, L_code_end-L1_pc-4, v%d" % (vT, vT),
             "v_mov_b32 v%d, s%d" % (vT2, sC + 1), "v_add_co_u32 v%d, vcc, s%d, v%d" % (vT, sC, vT), "s_nop 1",
             "v_addc_co_u32 v%d, vcc, 0, v%d, vcc" % (vT2, vT2), "global_load_dword v253, v[%d:%d], off" % (vT, vT2)])
    a.e(["v_and_b32 v%d, 63, v0" % vL, "v_lshrrev_b32 v%d, 6, v0" % vT,
         "s_and_b32 s%d, s2, 7" % sT, "s_lshr_b32 s%d, s2, 3" % sT2,
         "v_readfirstlane_b32 s%d, v%d" % (sWv, vT),
         "s_and_b32 s%d, s%d, 1" % (sB, sT), "s_lshl_b32 s%d, s%d, 2" % (sB, sB),
         "s_and_b32 s%d, s%d, 3" % (sG, sT2), "s_add_u32 s%d, s%d, s%d" % (sB, sB, sG),
         "s_lshr_b32 s%d, s%d, 1" % (sH, sT), "s_lshl_b32 s%d, s%d, 3" % (sH, sH),
         "s_lshr_b32 s%d, s%d, 2" % (sG, sT2), "s_add_u32 s%d, s%d, s%d" % (sH, sH, sG),
         "s_and_b32 s%d, s%d, 1" % (sRH, sWv), "s_lshr_b32 s%d, s%d, 1" % (sKH, sWv)])
    a.e(["v_lshrrev_b32 v%d, 3, v%d" % (vT, vL),
         "v_and_b32 v%d, 7, v%d" % (vT2, vL),
         "v_and_b32 v%d, 6, v%d" % (vT3, vT),
         "v_xor_b32 v%d, v%d, v%d" % (vT3, vT3, vT2),
         "v_lshlrev_b32 v%d, 4, v%d" % (vT3, vT3),
         "v_lshl_add_u32 v%d, v%d, 11, v%d" % (vX, vT, vT3),
         "s_mul_i32 s%d, s%d, %d" % (sT, sWv, 7 * 16384),
         "v_add_u32 v%d, s%d, v%d" % (vX, sT, vX)])
    for j in range(1, 7): a.e("v_add_u32 v%d, %d, v%d" % (vX + j, j * 16384 - (j & 3) * 1024, vX))
    a.e(["v_and_b32 v%d, 2, v%d" % (vT3, vT), "v_lshlrev_b32 v%d, 1, v%d" % (vT3, vT3),
         "v_xor_b32 v%d, v%d, v%d" % (vT3, vT3, vT2), "v_lshlrev_b32 v%d, 4, v%d" % (vT3, vT3),
         "v_lshl_add_u32 v%d, v%d, 13, v%d" % (vW, vT, vT3),
         "s_lshl_b32 s%d, s%d, 17" % (sT, sRH),
         "s_lshl_b32 s%d, s%d, 7" % (sG, sKH), "s_add_u32 s%d, s%d, s%d" % (sT, sT, sG),
         "v_add_u32 v%d, s%d, v%d" % (vW, sT, vW),
         "v_add_u32 v%d, %d, v%d" % (vW + 1, 8 * 8192 - 1024, vW)])
    a.e(["s_lshl_b32 s%d, s%d, 15" % (sMX, sKH), "s_mul_i32 s%d, s%d, 7168" % (sT, sRH),
         "s_add_u32 s%d, s%d, s%d" % (sMX, sMX, sT), "s_add_u32 s%d, s%d, 16384" % (sMX, sMX),
         "s_lshl_b32 s%d, s%d, 11" % (sMW, sWv), "s_add_u32 s%d, s%d, 131072" % (sMW, sMW),
         "s_lshl_b32 s%d, s%d, 15" % (sReg, sWv),
         "s_and_b32 s%d, s%d, s%d" % (sFlip, sRH, sKH), "s_lshl_b32 s%d, s%d, 7" % (sFlip, sFlip),
         "s_mov_b32 s%d, 0" % sPass,
         "s_waitcnt lgkmcnt(0)"])
    a.e(["s_mul_i32 s%d, s%d, 458752" % (sT, sB), "s_add_u32 s%d, s4, s%d" % (sX, sT), "s_addc_u32 s%d, s5, 0" % (sX + 1),
         "s_mov_b32 s%d, 458752" % (sX + 2), "s_mov_b32 s%d, 0x20000" % (sX + 3),
         "s_lshl_b32 s%d, s%d, 8" % (sT, sH), "s_add_u32 s%d, s10, s%d" % (sW, sT), "s_addc_u32 s%d, s11, 0" % (sW + 1),
         "s_sub_u32 s%d, 0x800000, s%d" % (sW + 2, sT), "s_mov_b32 s%d, 0x20000" % (sW + 3)])

    TS_A = ["s_memrealtime s[82:83]", "s_memtime s[84:85]"]
    TS_B = ["v_writelane_b32 v255, s82, s80", "v_writelane_b32 v0, s84, s80", "s_add_u32 s80, s80, 1"]
    def dmaX(j): return "buffer_load_dwordx4 v%d, s[%d:%d], s%d offen offset:%d%s lds" % (vX + j, sX, sX + 3, sXoff, (j & 3) * 1024, XWF)
    def m0X(buf, hi): return "s_add_u32 m0, s%d, %d" % (sMX, buf * 65536 + hi * 4096)
    def dmaW(j): return "buffer_load_dwordx4 v%d, s[%d:%d], s%d offen offset:%d%s lds" % (vW + j, sW, sW + 3, sWoff, j * 1024, XWF)
    def m0W(slot): return "s_add_u32 m0, s%d, %d" % (sMW, slot * 8192)
    def dmaKV(i): return "buffer_load_dwordx4 v%d, s[%d:%d], s%d offen offset:%d%s lds" % (vKV + (i & 3), sKV, sKV + 3, sK0, (i & 3) * 1024, KVF)
    def m0KV(slot, hi): return "s_add_u32 m0, s%d, %d" % (sReg, slot * 8192 + hi * 4096)
    incK = "s_add_u32 s%d, s%d, 4096" % (sK0, sK0)
    wrapK = "s_and_b32 s%d, s%d, 0x1ffff" % (sK0, sK0)
    def kvtile(slot): return [m0KV(slot, 0), "s_nop 0"] + [dmaKV(i) for i in range(4)] + [m0KV(slot, 1), incK] + [dmaKV(i) for i in range(4, 8)] + [incK]

    vKw, vPF = vT2, vT3
    kvw_m0 = "s_add_u32 m0, s%d, s%d" % (sReg, sK0)
    kvw = "buffer_load_dwordx4 v%d, s[%d:%d], s%d offen%s lds" % (vKw, sKV, sKV + 3, sK0, KVF)
    kvw_inc = "s_add_u32 s%d, s%d, 1024" % (sK0, sK0)
    kvpf = "buffer_load_dword v253, v%d, s[%d:%d], s%d offen %s" % (vPF, sKV, sKV + 3, sP, O.pf_flags)
    a.e(["s_mov_b32 s%d, 0" % sXoff, "s_mov_b32 s%d, 0" % sWoff])
    for st in range(2):
        a.e([m0W(2 * st), "s_nop 0", dmaW(0), dmaW(1), m0X(st, 0), "s_add_u32 s%d, s%d, 262144" % (sWoff, sWoff)])
        a.e([dmaX(j) for j in range(4)] + [m0X(st, 1), "s_nop 0"] + [dmaX(j) for j in range(4, 7)])
        a.e([m0W(2 * st + 1), "s_add_u32 s%d, s%d, 128" % (sXoff, sXoff), dmaW(0), dmaW(1), "s_add_u32 s%d, s%d, 262144" % (sWoff, sWoff)])
        if st == 0:
            a.e(["s_cmp_eq_u32 s%d, 0" % sRH, "s_cselect_b32 s%d, s6, s8" % sKV, "s_cselect_b32 s%d, s7, s9" % (sKV + 1),
                 "s_lshl_b32 s%d, s%d, 5" % (sT, sB), "s_add_u32 s%d, s%d, s%d" % (sT, sT, sH), "s_lshl_b32 s%d, s%d, 1" % (sT, sT),
                 "s_add_u32 s%d, s%d, s%d" % (sT, sT, sKH), "s_lshl_b32 s%d, s%d, 17" % (sT, sT),
                 "s_add_u32 s%d, s%d, s%d" % (sKV, sKV, sT), "s_addc_u32 s%d, s%d, 0" % (sKV + 1, sKV + 1),
                 "s_mov_b32 s%d, 131072" % (sKV + 2), "s_mov_b32 s%d, 0x20000" % (sKV + 3), "s_mov_b32 s%d, 0" % sK0,
                 "v_bfe_u32 v%d, v%d, 2, 2" % (vT, vL), "v_lshrrev_b32 v%d, 4, v%d" % (vT2, vL), "v_lshlrev_b32 v%d, 6, v%d" % (vT2, vT2),
                 "v_xor_b32 v%d, s%d, v%d" % (vT2, sFlip, vT2), "v_lshl_add_u32 v%d, v%d, 8, v%d" % (vT2, vT, vT2),
                 "v_and_b32 v%d, 3, v%d" % (vT, vL), "v_lshl_add_u32 v%d, v%d, 4, v%d" % (vKV, vT, vT2),
                 kvw_m0, "s_nop 0", dmaKV(0), kvw_inc])
    big = 0 if O.pf_xw else 0x40000000
    a.e(["s_mul_i32 s%d, s%d, 14336" % (sT, sH), "s_lshl_b32 s%d, s%d, 12" % (sG, sWv), "s_add_u32 s%d, s%d, s%d" % (sT, sT, sG),
         "v_and_b32 v%d, 31, v%d" % (vT3, vL), "v_lshlrev_b32 v%d, 7, v%d" % (vT3, vT3)] + (["v_add_u32 v%d, 0x%x, v%d" % (vT3, big, vT3)] if big else []) + [
         "buffer_load_dword v253, v%d, s[%d:%d], s%d offen" % (vT3, sX, sX + 3, sT),
         "s_lshl_b32 s%d, s%d, 2" % (sT, sB), "s_add_u32 s%d, s%d, s%d" % (sT, sT, sWv), "s_lshl_b32 s%d, s%d, 18" % (sT, sT),
         "v_lshrrev_b32 v%d, 1, v%d" % (vT3, vL), "v_lshlrev_b32 v%d, 13, v%d" % (vT3, vT3),
         "v_and_b32 v%d, 1, v%d" % (vT2, vL), "v_lshl_add_u32 v%d, v%d, 7, v%d" % (vT3, vT2, vT3)] + (["v_add_u32 v%d, 0x%x, v%d" % (vT3, big, vT3)] if big else []) + [
         "buffer_load_dword v253, v%d, s[%d:%d], s%d offen" % (vT3, sW, sW + 3, sT)])
    for i in range(1, 4): a.e("v_xor_b32 v%d, %d, v%d" % (vKV + i, ((-i) & 3) * 16, vKV))
    a.e(["v_mov_b32 v%d, 0" % i for i in range(12, 16)])
    a.e(["v_lshlrev_b32 v%d, 4, v%d" % (vL16, vL),
         "v_and_b32 v%d, 15, v%d" % (vT, vL), "v_lshrrev_b32 v%d, 4, v%d" % (vT2, vL),
         "v_and_b32 v%d, 6, v%d" % (vT3, vT), "v_xor_b32 v%d, v%d, v%d" % (vT3, vT3, vT2), "v_lshlrev_b32 v%d, 4, v%d" % (vT3, vT3),
         "v_lshl_add_u32 v%d, v%d, 7, v%d" % (vT3, vT, vT3),
         "s_lshl_b32 s%d, s%d, 15" % (sT, sRH), "s_add_u32 s%d, s%d, 16384" % (sT, sT),
         "v_add_u32 v%d, s%d, v%d" % (vXr, sT, vT3), "v_xor_b32 v%d, 64, v%d" % (vXr + 1, vXr),
         "v_add_u32 v%d, 0x10000, v%d" % (vXr + 2, vXr), "v_add_u32 v%d, 0x10000, v%d" % (vXr + 3, vXr + 1)])
    for i in range(7): a.e(zero16(vr(ACC + 16 * i, 16)))
    a.e(["v_bfe_u32 v%d, v%d, 2, 2" % (vT, vL), "v_lshl_add_u32 v%d, v%d, 3, v%d" % (vT, vT2, vT),
         "v_and_b32 v%d, 2, v%d" % (vT3, vT), "v_lshlrev_b32 v%d, 1, v%d" % (vT3, vT3),
         "v_and_b32 v%d, 3, v%d" % (vT2, vL), "v_xor_b32 v%d, v%d, v%d" % (vT3, vT3, vT2), "v_lshlrev_b32 v%d, 4, v%d" % (vT3, vT3),
         "v_lshl_add_u32 v%d, v%d, 7, v%d" % (vT3, vT, vT3),
         "s_lshl_b32 s%d, s%d, 12" % (sT, sKH), "s_add_u32 s%d, s%d, 131072" % (sT, sT),
         "v_add_u32 v%d, s%d, v%d" % (vWr, sT, vT3), "v_xor_b32 v%d, 64, v%d" % (vWr + 1, vWr)])
    for i in range(7): a.e(zero16(vr(OK + 16 * i, 16)))
    for i in range(7): a.e(zero16(ar(aO + 16 * i, 16)))
    a.e(["s_mul_i32 s%d, s%d, 14" % (sT, sB), "s_mul_i32 s%d, s%d, 7" % (sG, sRH), "s_add_u32 s%d, s%d, s%d" % (sT, sT, sG),
         "s_lshl_b32 s%d, s%d, 7" % (sT, sT), "s_lshl_b32 s%d, s%d, 2" % (sG, sH), "s_add_u32 s%d, s%d, s%d" % (sT, sT, sG),
         "s_lshl_b32 s%d, s%d, 1" % (sG, sKH), "s_add_u32 s%d, s%d, s%d" % (sT, sT, sG), "s_lshl_b32 s%d, s%d, 10" % (sT, sT),
         "s_add_u32 s%d, s14, s%d" % (sO, sT), "s_addc_u32 s%d, s15, 0" % (sO + 1),
         "s_mov_b32 s%d, %d" % (sO + 2, 6 * 131072 + 2048), "s_mov_b32 s%d, 0x20000" % (sO + 3),
         "s_mov_b32 s%d, 0x%x" % (sC, CSCALE), "s_mov_b32 s%d, 0x%x" % (sC + 1, CSCALE)])

    a.e(["v_and_b32 v%d, 31, v%d" % (vT, vL), "v_lshrrev_b32 v%d, 5, v%d" % (vT2, vL), "v_lshlrev_b32 v%d, 13, v%d" % (vT2, vT2),
         "v_lshl_add_u32 v%d, v%d, 7, v%d" % (vT2, vT, vT2), "v_cmp_gt_u32 vcc, %d, v%d" % (8 * O.kvpf, vL if O.pf_every else vT), "v_mov_b32 v%d, 0x40000000" % vT3,
         "s_lshl_b32 s%d, s%d, 12" % (sP, sRH), "v_cndmask_b32 v%d, v%d, v%d, vcc" % (vPF, vT3, vT2), "s_add_u32 s%d, s%d, 16384" % (sP, sP),
         "v_mov_b32 v%d, v%d" % (vKw, vKV)])

    def rdW(k):
        out = []
        for dt in range(4):
            dp, t = dt >> 1, dt & 1
            for sec in range(2):
                b = aWF + 16 * (k & 1) + 4 * dt + 2 * sec
                out.append("ds_read_b64_tr_b16 %s, v%d offset:%d" % (ar(b, 2), vWr + dp, (k & 3) * 8192 + sec * 512 + t * 8))
        return out
    def rdX(s):
        out = []
        for kk in range(2):
            for rt in range(7):
                b = aXF + 56 * (s & 1) + 28 * kk + 4 * rt
                out.append("ds_read_b128 %s, v%d offset:%d" % (ar(b, 4), vXr + 2 * (s & 1) + kk, rt * 2048))
        return out
    a.e(["s_waitcnt vmcnt(16)", "s_barrier"])
    stamp()
    if O.ts: a.e(["s_mov_b32 s80, 0", "v_mov_b32 v255, 0", "v_mov_b32 v0, 0"])
    a.e(rdW(0) + rdX(0))
    a.e(["s_mov_b32 s%d, 7" % sCnt, "s_waitcnt vmcnt(14) lgkmcnt(0)", "s_barrier"])

    def p1_kstep(km, mode, extra=0, ctl=False):
        sp, kk = km >> 1, km & 1
        mf = []
        for rt in range(7):
            for dt in range(4):
                c = vr(ACC + 16 * rt + 4 * dt, 4)
                mf.append(mfma(c, ar(aWF + 16 * (km & 1) + 4 * dt, 4), ar(aXF + 56 * sp + 28 * kk + 4 * rt, 4), c))
        gaps = [[] for _ in range(28)]
        rd = []
        if mode != 31: rd += rdW(km + 1)
        if kk == 1 and mode != 31: rd += rdX(sp + 1)
        dm = []
        nxe = O.nxe
        if mode == "loop":
            def xs(js):
                r = []
                for j in js:
                    if j == 4 and j != js[0]: r += [m0X(sp, 1), "|"]
                    r.append(dmaX(j))
                return r
            if kk == 0:
                dm += [m0W(km), "|", dmaW(0), dmaW(1), m0X(sp, 0), "|"] + xs(list(range(nxe))) + ["s_add_u32 s%d, s%d, 262144" % (sWoff, sWoff)]
            else:
                if nxe < 7: dm += [m0X(sp, 1 if nxe >= 4 else 0), "|"] + xs(list(range(nxe, 7)))
                dm += [m0W(km), "|", dmaW(0), dmaW(1), "s_add_u32 s%d, s%d, 128" % (sXoff, sXoff), "s_add_u32 s%d, s%d, 262144" % (sWoff, sWoff)]
                dm += [kvw_m0, "v_xor_b32 v%d, %d, v%d" % (vKw, 48 if km == 1 else 16, vKw), kvw, kvw_inc]
                if km == 3 or O.pf_every: dm += [kvpf, "s_add_u32 s%d, s%d, %d" % (sP, sP, 8192 if O.pf_every else 16384)]
            endw = "s_waitcnt vmcnt(%d) lgkmcnt(0)" % ((4 + nxe + (2 if km == 0 or O.pf_every else 1)) if kk == 0 else (15 if O.pf_every else 14))
        elif mode == 28:
            dm += [kvw_m0, "v_xor_b32 v%d, 48, v%d" % (vKw, vKw), kvw, kvw_inc]
            endw = "s_waitcnt vmcnt(5) lgkmcnt(0)"
        elif mode == 29: endw = "s_waitcnt vmcnt(3) lgkmcnt(0)"
        elif mode == 30:
            dm += [m0KV(2, 0), "|"] + [dmaKV(i) for i in range(4)]
            dm += [m0KV(2, 1), incK, "|"] + [dmaKV(i) for i in range(4, 8)] + [incK]
            endw = "s_waitcnt lgkmcnt(0)"
        else: endw = None
        g = 0
        for x in rd:
            gaps[g].append(x); g += 1
        nld = sum(1 for x in dm if x.startswith("buffer_load"))
        if nld:
            pos = [1 + (i * O.p1_span) // nld for i in range(nld)]
            li = 0; pend = []; prev = -1
            def place(items, lo, hi):
                g_ = lo
                for n_, y in enumerate(items):
                    while g_ < hi and len(gaps[g_]) >= 2: g_ += 1
                    gaps[g_].append(y)
            for x in dm:
                if x == "|": continue
                if x.startswith("buffer_load"):
                    place(pend, max(prev, 0), pos[li] - 1)
                    pend = []
                    gaps[pos[li]].insert(0, x); prev = pos[li]; li += 1
                else: pend.append(x)
            place(pend, prev, 25)
        if endw:
            gaps[26].append(endw); gaps[27].append("s_barrier")
        if O.ts and km in (0, 2) and mode != 30:
            gaps[22] += TS_A; gaps[27] = gaps[27] + ["s_mov_b32 m0, s80"] + [x.replace("s80", "m0") if "writelane" in x else x for x in TS_B]
        if ctl:
            gaps[25].append("s_sub_u32 s%d, s%d, 1" % (sCnt, sCnt)); gaps[26].append("s_cmp_lg_u32 s%d, 0" % sCnt)
        if O.p1_nodma and mode == "loop": gaps = [[x for x in m if not x.startswith("buffer_load")] for m in gaps]
        if O.p1_nobar: gaps = [[x for x in m if not x.startswith("s_barrier")] for m in gaps]
        if O.p1_nord: gaps = [[x for x in m if not x.startswith("ds_read")] for m in gaps]
        weave(a, mf, gaps)
    a.raw(".p2align 5")
    a.lab("L1_p1")
    for km in range(4): p1_kstep(km, "loop", ctl=(km == 3))
    a.e("s_cbranch_scc1 L1_p1")
    for km in range(4): p1_kstep(km, 28 + km)
    stamp()

    a.e(["s_lshl_b32 s%d, s%d, 13" % (sT, sWv), "s_add_u32 s%d, s%d, 131072" % (sT, sT), "v_add_u32 v%d, s%d, v%d" % (vX, sT, vL16),
         "s_add_u32 s%d, s%d, 24576" % (sT, sReg), "v_add_u32 v%d, s%d, v%d" % (vX + 1, sT, vL16),
         "s_lshl_b32 s%d, s%d, 13" % (sT, sRH), "s_add_u32 s%d, s%d, 131072" % (sT, sT), "v_add_u32 v%d, s%d, v%d" % (vX + 2, sT, vL16),
         "s_lshl_b32 s%d, s%d, 15" % (sT, sRH), "s_add_u32 s%d, s%d, 24576" % (sT, sT), "v_add_u32 v%d, s%d, v%d" % (vX + 3, sT, vL16),
         "v_add_u32 v%d, 0x10000, v%d" % (vX + 4, vX + 3)])
    for f in range(14):
        b = ACC + 8 * f
        for i in range(4): a.e("v_pk_mul_f32 %s, %s, s[%d:%d]" % (vr(b + 2 * i, 2), vr(b + 2 * i, 2), sC, sC + 1))
        for i in range(4): a.e("v_cvt_pk_bf16_f32 v%d, v%d, v%d" % (b + i, b + 2 * i, b + 2 * i + 1))
        if f < 8: a.e("ds_write_b128 v%d, %s offset:%d" % (vX, vr(b, 4), f * 1024))
        else: a.e("ds_write_b128 v%d, %s offset:%d" % (vX + 1, vr(b, 4), (f - 8) * 1024))
    a.e("s_waitcnt lgkmcnt(0)")
    a.e(["v_bfe_u32 v%d, v%d, 2, 2" % (vT, vL), "v_sub_u32 v%d, 0, v%d" % (vT2, vT), "v_lshrrev_b32 v%d, 4, v%d" % (vT3, vL),
         "v_xor_b32 v%d, v%d, v%d" % (vT2, vT2, vT3), "v_and_b32 v%d, 3, v%d" % (vT2, vT2), "v_lshlrev_b32 v%d, 4, v%d" % (vT2, vT2),
         "v_lshl_add_u32 v%d, v%d, 10, v%d" % (vT2, vT, vT2), "v_and_b32 v%d, 3, v%d" % (vTa, vL),
         "v_lshl_add_u32 v%d, v%d, 6, v%d" % (vTa, vTa, vT2),
         "s_lshl_b32 s%d, s%d, 16" % (sG, sKH), "v_add_u32 v%d, s%d, v%d" % (vKr, sG, vTa),
         "v_sub_u32 v%d, 0, v%d" % (vT2, vT3), "v_bfe_u32 v%d, v%d, 1, 1" % (vTb, vL), "v_xor_b32 v%d, v%d, v%d" % (vT2, vT2, vTb),
         "v_and_b32 v%d, 3, v%d" % (vT2, vT2), "v_lshlrev_b32 v%d, 4, v%d" % (vT2, vT2),
         "v_lshl_add_u32 v%d, v%d, 10, v%d" % (vT2, vT3, vT2), "v_lshl_add_u32 v%d, v%d, 6, v%d" % (vT2, vT, vT2),
         "v_and_b32 v%d, 1, v%d" % (vTb, vL), "v_lshl_add_u32 v%d, v%d, 3, v%d" % (vT2, vTb, vT2),
         "s_add_u32 s%d, s%d, 32768" % (sG, sG), "v_add_u32 v%d, s%d, v%d" % (vVr, sG, vT2), "v_xor_b32 v%d, 32, v%d" % (vVr + 1, vVr)])
    a.e(["s_waitcnt vmcnt(8)", "s_barrier"])
    for rt in range(7):
        for ks in range(4):
            dh, dp = ks >> 1, ks & 1
            f = rt * 2 + dp
            if f < 8: a.e("ds_read_b128 %s, v%d offset:%d" % (ar(aQ + 16 * rt + 4 * ks, 4), vX + 2, dh * 16384 + f * 1024))
            else: a.e("ds_read_b128 %s, v%d offset:%d" % (ar(aQ + 16 * rt + 4 * ks, 4), vX + 3 + dh, (f - 8) * 1024))
    for ks in range(4):
        a.e("ds_read_b128 %s, v%d offset:%d" % (vr(V + 4 * ks, 4), vTa, ks * 256))
    def rdK(i, slot):
        t, ks = i & 1, i >> 1
        return "ds_read_b128 %s, v%d offset:%d" % (ar(aK + 16 * t + 4 * ks, 4), vKr, slot * 8192 + t * 4096 + ks * 256)
    a.e(["s_waitcnt lgkmcnt(0)", "s_barrier"])
    NA = 2
    if O.pf_wo:
        a.e(["s_lshl_b32 s%d, s2, 2" % sT, "s_add_u32 s%d, s%d, s%d" % (sT, sT, sWv), "s_lshl_b32 s%d, s%d, 13" % (sT, sT),
             "v_lshlrev_b32 v%d, 7, v%d" % (vT, vL), "v_add_u32 v%d, s%d, v%d" % (vT, sT, vT),
             "global_load_dword v253, v%d, s[54:55]" % vT])
    a.e([m0KV(3, 0), "s_nop 0"] + [dmaKV(i) for i in range(NA)])
    for ks in range(4):
        for rt in range(7):
            d = vr(M + 4 * rt, 4)
            a.e(mfma(d, vr(V + 4 * ks, 4), ar(aQ + 16 * rt + 4 * ks, 4), "0" if ks == 0 else d))
    a.e("s_nop 1")
    def xlane(op, regs_, tmp):
        for sw in ("v_permlane32_swap_b32", "v_permlane16_swap_b32"):
            for r_, t_ in zip(regs_, tmp): a.e("v_mov_b32 v%d, v%d" % (t_, r_))
            a.e("s_nop 0")
            for r_, t_ in zip(regs_, tmp): a.e("%s v%d, v%d" % (sw, r_, t_))
            for r_, t_ in zip(regs_, tmp): a.e("%s v%d, v%d, v%d" % (op, r_, r_, t_))
    for rt in range(7):
        b = M + 4 * rt
        a.e("v_max3_f32 v%d, v%d, v%d, v%d" % (b, b, b + 1, b + 2))
    for rt in range(7):
        b = M + 4 * rt
        a.e("v_max_f32 v%d, v%d, v%d" % (b, b, b + 3))
    xlane("v_max_f32", [M + 4 * rt for rt in range(7)], [M + 4 * rt + 1 for rt in range(7)])
    a.lab("L1_setm")
    for rt in range(7):
        b = M + 4 * rt
        for i in (1, 2, 3, 0): a.e("v_sub_f32 v%d, 0, v%d" % (b + i, b))
    a.lab("L1_attn")
    a.e([rdK(i, 0) for i in range(8)])
    a.e(["v_mov_b32 v%d, 0" % i for i in range(L, L + 7)])
    a.e(["v_mov_b32 v%d, 0" % i for i in range(P, P + 8)])
    a.e([zero16(vr(V, 16)), zero16(vr(V + 16, 16))])
    a.e(["s_mov_b32 s%d, 4" % sCnt, "s_waitcnt lgkmcnt(0)"])
    def qk(rt, sb):
        out = []
        for i in range(8):
            t, ks = i & 1, i >> 1
            d = vr(S + 8 * sb + 4 * t, 4)
            out.append(mfma(d, ar(aK + 16 * t + 4 * ks, 4), ar(aQ + 16 * rt + 4 * ks, 4), vr(M + 4 * rt, 4) if ks == 0 else d))
        return out
    def oacc(rt, i): return vr(OK + 16 * rt + 4 * i, 4) if i < 4 else ar(aO + 16 * rt + 4 * (i - 4), 4)
    def pv(rt, pb):
        return [mfma(oacc(rt, i), vr(V + 4 * i, 4), vr(P + 4 * pb, 4), oacc(rt, i)) for i in range(8)]
    a.e(qk(0, 0))
    a.e(["s_nop 7", "s_nop 3"])
    stamp()

    def body(js):
        for r in range(7):
            u = 7 * js + r
            mf = qk((r + 1) % 7, (u + 1) & 1) + pv((r + 6) % 7, (u + 1) & 1)
            mem = [[] for _ in range(16)]
            val = [[] for _ in range(16)]
            for e in range(8):
                val[2 * e].append("v_exp_f32 v%d, v%d" % (E + e, S + 8 * (u & 1) + e))
                val[2 * e + 1].append("v_add_f32 v%d, v%d, v%d" % (L + r, L + r, E + e))
                if e & 1: val[2 * e + 1].append("v_cvt_pk_bf16_f32 v%d, v%d, v%d" % (P + 4 * (u & 1) + (e >> 1), E + e - 1, E + e))
            ps = (js + 3) & 3
            if r == 0:
                for i in range(8):
                    for sec in range(2):
                        mem[8 + i].append("ds_read_b64_tr_b16 %s, v%d offset:%d" % (vr(V + 4 * i + 2 * sec, 2), vVr + (i & 1), js * 8192 + (i >> 1) * 256 + sec * 4096))
                mem[1].append(dmaKV(2)); mem[5].append(dmaKV(3))
            if r == 1:
                mem[5].append("s_waitcnt lgkmcnt(0)")
                mem[1].append(m0KV(ps, 1)); mem[1].append(incK); mem[9].append(dmaKV(4))
            if r == 2: mem[1].append(dmaKV(5)); mem[9].append(dmaKV(6))
            if r == 3:
                mem[1].append(dmaKV(7))
                mem[5].append(incK)
            if r == 4:
                mem[9].append("s_waitcnt vmcnt(16)"); mem[13].append("s_barrier")
                mem[5].append(m0KV(js, 0))
            if r == 5:
                for i in range(8): mem[i].append(rdK(i, (js + 1) & 3))
                mem[9].append(dmaKV(0)); mem[13].append("s_waitcnt lgkmcnt(0)")
                if O.ts:
                    mem[11] += TS_A; mem[15] += ["s_mov_b32 s81, m0", "s_mov_b32 m0, s80"] + [x.replace("s80", "m0") if "writelane" in x else x for x in TS_B] + ["s_mov_b32 m0, s81"]
            if r == 6:
                mem[1].append(dmaKV(1))
                if js == 3: mem[5].append("s_sub_u32 s%d, s%d, 1" % (sCnt, sCnt)); mem[9].append("s_cmp_lg_u32 s%d, 0" % sCnt)
            if O.nodma: mem = [[x for x in m if not x.startswith("buffer_load")] for m in mem]
            if O.nobar: mem = [[x for x in m if not x.startswith("s_barrier")] for m in mem]
            if O.nords: mem = [[x for x in m if not x.startswith("ds_read")] for m in mem]
            weave(a, mf, [m + v for m, v in zip(mem, val)])
    a.raw(".p2align 5")
    a.lab("L1_loop")
    for js in range(4): body(js)
    a.e("s_cbranch_scc1 L1_loop")
    a.e("s_nop 0")
    a.e(pv(6, 1))
    stamp()

    xlane("v_add_f32", [L + i for i in range(7)], [E + i for i in range(7)])
    a.e(["v_max3_f32 v%d, v%d, v%d, v%d" % (vTa, L, L + 1, L + 2), "v_max3_f32 v%d, v%d, v%d, v%d" % (vTb, L + 3, L + 4, L + 5),
         "v_add_f32 v%d, v%d, v%d" % (vTc, L, L + 1)])
    for i in range(2, 7): a.e("v_add_f32 v%d, v%d, v%d" % (vTc, vTc, L + i))
    a.e(["s_mov_b32 s%d, 0x%x" % (sT, THR if not O.force_slow else 0), "s_mul_i32 s%d, s%d, 28672" % (sG, sWv),
         "v_cmp_ngt_f32 vcc, s%d, v%d" % (sT, vTc),
         "v_add_u32 v%d, s%d, v%d" % (vTa, sG, vL16),
         "s_xor_b32 s%d, s%d, 2" % (sT2, sWv), "s_mul_i32 s%d, s%d, 28672" % (sG, sT2),
         "s_cmp_lg_u64 vcc, 0", "s_cselect_b32 s%d, 1, 0" % sT,
         "v_add_u32 v%d, s%d, v%d" % (vTb, sG, vL16),
         "v_mov_b32 v%d, s%d" % (L + 7, sT),
         "s_lshl_b32 s%d, s%d, 11" % (sG, sWv), "s_add_u32 s%d, s%d, 114688" % (sG, sG), "v_add_u32 v%d, s%d, v%d" % (vTc, sG, vL16),
         "s_lshl_b32 s%d, s%d, 2" % (sG, sWv), "s_add_u32 s%d, s%d, 122880" % (sG, sG), "v_mov_b32 v%d, s%d" % (vT, sG),
         "v_mov_b32 v%d, 122880" % vT2,
         "v_xor_b32 v%d, 4096, v%d" % (vT3, vTc),
         "s_waitcnt vmcnt(0)", "s_barrier"])
    a.e(["ds_write_b128 v%d, %s" % (vTc, vr(L, 4)), "ds_write_b128 v%d, %s offset:1024" % (vTc, vr(L + 4, 4)), "ds_write_b32 v%d, v%d" % (vT, L + 7)])
    for i in range(28): a.e("ds_write_b128 v%d, %s offset:%d" % (vTa, ar(aO + 4 * i, 4), i * 1024))
    a.e(["s_waitcnt lgkmcnt(0)", "s_barrier"])
    PL = 208
    a.e(["ds_read_b128 %s, v%d" % (vr(216, 4), vT2), "ds_read_b128 %s, v%d" % (vr(PL, 4), vT3), "ds_read_b128 %s, v%d offset:1024" % (vr(PL + 4, 4), vT3)])
    def rdP(rt): return ["ds_read_b128 %s, v%d offset:%d" % (vr(128 + 16 * (rt % 5) + 4 * i, 4), vTb, (rt * 4 + i) * 1024) for i in range(4)]
    for rt in range(3): a.e(rdP(rt))
    a.e(["s_waitcnt lgkmcnt(12)", "v_or3_b32 v216, v216, v217, v218", "v_or_b32 v216, v216, v219", "s_nop 0",
         "v_readfirstlane_b32 s%d, v216" % sT, "s_nop 0", "s_andn2_b32 s%d, s%d, s%d" % (sT, sT, sPass), "s_cmp_lg_u32 s%d, 0" % sT, "s_cbranch_scc1 L1_slow"])
    for i in range(7): a.e("v_add_f32 v%d, v%d, v%d" % (L + i, L + i, PL + i))
    for i in range(7): a.e("v_rcp_f32 v%d, v%d" % (L + i, L + i))
    OF = (" " + O.o_store_flags) if O.o_store_flags else ""
    for rt in range(7):
        if rt + 3 < 7: a.e(rdP(rt + 3))
        a.e("s_waitcnt lgkmcnt(%d)" % (4 * min(3, 6 - rt)))
        pb = 128 + 16 * (rt % 5); ob = OK + 16 * rt
        for i in range(8): a.e("v_pk_add_f32 %s, %s, %s" % (vr(ob + 2 * i, 2), vr(ob + 2 * i, 2), vr(pb + 2 * i, 2)))
        lp = L + rt
        for i in range(8):
            if lp % 2 == 0: a.e("v_pk_mul_f32 %s, %s, %s op_sel_hi:[1,0]" % (vr(ob + 2 * i, 2), vr(ob + 2 * i, 2), vr(lp, 2)))
            else: a.e("v_pk_mul_f32 %s, %s, %s op_sel:[0,1]" % (vr(ob + 2 * i, 2), vr(ob + 2 * i, 2), vr(lp - 1, 2)))
        for i in range(8): a.e("v_cvt_pk_bf16_f32 v%d, v%d, v%d" % (ob + i, ob + 2 * i, ob + 2 * i + 1))
        a.e("s_mov_b32 s%d, %d" % (sT, rt * 131072))
        for p in range(2): a.e("buffer_store_dwordx4 %s, v%d, s[%d:%d], s%d offen offset:%d%s" % (vr(ob + 4 * p, 4), vL16, sO, sO + 3, sT, p * 1024, OF))
    stamp()
    if O.stamps:
        a.e(["s_waitcnt vmcnt(0)"]); stamp()
        a.e("s_memrealtime s[58:59]")
        a.e(["s_waitcnt lgkmcnt(0)", "s_lshl_b32 s%d, s2, 2" % sT, "s_add_u32 s%d, s%d, s%d" % (sT, sT, sWv), "s_lshl_b32 s%d, s%d, 6" % (sT, sT),
             "s_add_u32 s%d, s%d, 0x%x" % (sT, sT, STAMP_OFF),
             "s_add_u32 s%d, s14, s%d" % (sO, sT), "s_addc_u32 s%d, s15, 0" % (sO + 1), "s_mov_b32 s%d, 64" % (sO + 2), "v_mov_b32 v%d, 0" % vT])
        for i in range(nst[0]):
            a.e(["s_sub_u32 s%d, s%d, s%d" % (sT, sST + 2 * i, sST), "v_mov_b32 v%d, s%d" % (vT2, sT),
                 "buffer_store_dword v%d, v%d, s[%d:%d], 0 offen offset:%d" % (vT2, vT, sO, sO + 3, 4 * i)])
    if O.stamps:
        for i, r_ in enumerate((56, 58)):
            a.e(["v_mov_b32 v%d, s%d" % (vT2, r_), "buffer_store_dword v%d, v%d, s[%d:%d], 0 offen offset:%d" % (vT2, vT, sO, sO + 3, 56 + 4 * i)])
    if O.ts:
        a.e(["s_lshl_b32 s%d, s2, 9" % sT, "s_add_u32 s%d, s%d, 0x%x" % (sT, sT, STAMP_OFF + 0x200000),
             "s_add_u32 s%d, s14, s%d" % (sO, sT), "s_addc_u32 s%d, s15, 0" % (sO + 1), "s_mov_b32 s%d, 512" % (sO + 2),
             "v_lshlrev_b32 v%d, 2, v%d" % (vT, vL),
             "buffer_store_dword v255, v%d, s[%d:%d], 0 offen" % (vT, sO, sO + 3), "buffer_store_dword v0, v%d, s[%d:%d], 0 offen offset:256" % (vT, sO, sO + 3)])
    a.lab("L1_end")
    a.e("s_endpgm")

    a.lab("L1_slow")
    a.e(["s_waitcnt lgkmcnt(0)", "s_barrier", "s_mov_b32 s%d, 1" % sPass, "s_mov_b32 s%d, 16" % sCnt,
         "s_mov_b32 s%d, 0" % sK0, "s_mov_b32 s%d, 0x20000" % (sKV + 2)])
    for rt in range(7): a.e("v_mov_b32 v%d, 0xff800000" % (M + 4 * rt))
    a.lab("L1_slow_loop")
    a.e(kvtile(0))
    a.e(["s_waitcnt vmcnt(0)", "s_barrier"])
    a.e([rdK(i, 0) for i in range(8)])
    a.e(["s_waitcnt lgkmcnt(0)", "s_barrier"])
    for rt in range(7):
        for i in range(8):
            t, ks = i & 1, i >> 1
            d = vr(S + 4 * t, 4)
            a.e(mfma(d, ar(aK + 16 * t + 4 * ks, 4), ar(aQ + 16 * rt + 4 * ks, 4), "0" if ks == 0 else d))
        a.e("s_nop 7")
        m = M + 4 * rt
        for i in range(4): a.e("v_max3_f32 v%d, v%d, v%d, v%d" % (m, m, S + 2 * i, S + 2 * i + 1))
    a.e(["s_sub_u32 s%d, s%d, 1" % (sCnt, sCnt), "s_cmp_lg_u32 s%d, 0" % sCnt, "s_cbranch_scc1 L1_slow_loop"])
    xlane("v_max_f32", [M + 4 * rt for rt in range(7)], [M + 4 * rt + 1 for rt in range(7)])
    a.e(["s_lshl_b32 s%d, s%d, 13" % (sG, sWv), "s_add_u32 s%d, s%d, 131072" % (sG, sG), "v_add_u32 v%d, s%d, v%d" % (vTc, sG, vL16),
         "v_xor_b32 v%d, 16384, v%d" % (vT3, vTc)])
    for rt in range(7): a.e("ds_write_b32 v%d, v%d offset:%d" % (vTc, M + 4 * rt, rt * 1024))
    a.e(["s_waitcnt lgkmcnt(0)", "s_barrier"])
    for rt in range(7): a.e("ds_read_b32 v%d, v%d offset:%d" % (M + 4 * rt + 1, vT3, rt * 1024))
    a.e(["s_mov_b32 s%d, 0" % sK0])
    for tl in range(3): a.e(kvtile(tl))
    a.e([m0KV(3, 0), "s_nop 0"] + [dmaKV(i) for i in range(NA)])
    for i in range(7): a.e(zero16(vr(OK + 16 * i, 16)))
    for i in range(7): a.e(zero16(ar(aO + 16 * i, 16)))
    a.e("s_waitcnt lgkmcnt(0)")
    for rt in range(7): a.e("v_max_f32 v%d, v%d, v%d" % (M + 4 * rt, M + 4 * rt, M + 4 * rt + 1))
    a.e(["s_waitcnt vmcnt(%d)" % (8 + NA), "s_barrier", "s_branch L1_setm"])

def kernel2(a):
    sOs, sWs, sOut = 16, 20, 24
    sWv, sB, sRH, sCT, sT, sG, sOo, sWo, sCnt, sM = 32, 33, 34, 35, 36, 37, 38, 39, 40, 41
    sRt = 44
    vL, vT, vT2, vT3, vL16 = 1, 2, 3, 4, 5
    vD = 6
    vR = 16
    vS = 20
    WF = 32
    ACC = 64
    RD = 176
    aOF = 0
    OFl = (" " + O.k2_o_flags) if O.k2_o_flags else ""
    WFl = (" " + O.k2_w_flags) if O.k2_w_flags else ""
    a.lab(NAME + "_k2_kernel")
    a.e(["s_cmp_ge_u32 s2, 256", "s_cbranch_scc1 L2_end",
         "s_load_dwordx4 s[4:7], s[0:1], 32", "s_load_dwordx2 s[8:9], s[0:1], 56"])
    nst = [0]; sST = 60
    def stamp():
        if O.stamps:
            a.e("s_memtime s[%d:%d]" % (sST + 2 * nst[0], sST + 2 * nst[0] + 1)); nst[0] += 1
    stamp()
    if O.stamps: a.e("s_memrealtime s[56:57]")
    a.e([
         "v_and_b32 v%d, 63, v0" % vL, "v_lshrrev_b32 v%d, 6, v0" % vT,
         "s_and_b32 s%d, s2, 7" % sT, "s_lshr_b32 s%d, s2, 3" % sG,
         "v_readfirstlane_b32 s%d, v%d" % (sWv, vT),
         "s_lshr_b32 s%d, s%d, 1" % (sB, sT), "s_lshl_b32 s%d, s%d, 2" % (sB, sB), "s_and_b32 s%d, s%d, 3" % (sRH, sG), "s_add_u32 s%d, s%d, s%d" % (sB, sB, sRH),
         "s_and_b32 s%d, s%d, 1" % (sCT, sT), "s_lshl_b32 s%d, s%d, 3" % (sCT, sCT), "s_lshr_b32 s%d, s%d, 2" % (sG, sG), "s_add_u32 s%d, s%d, s%d" % (sCT, sCT, sG),
         "v_lshlrev_b32 v%d, 4, v%d" % (vL16, vL),
         "v_lshrrev_b32 v%d, 3, v%d" % (vT, vL), "v_and_b32 v%d, 7, v%d" % (vT2, vL), "v_and_b32 v%d, 6, v%d" % (vT3, vT),
         "v_xor_b32 v%d, v%d, v%d" % (vT3, vT3, vT2), "v_lshlrev_b32 v%d, 4, v%d" % (vT3, vT3),
         "v_lshl_add_u32 v%d, v%d, 11, v%d" % (vD, vT, vT3)])
    for j in range(1, 4): a.e("v_add_u32 v%d, %d, v%d" % (vD + j, j * (16384 - 1024), vD))
    a.e(["s_lshl_b32 s%d, s%d, 14" % (sM, sWv), "s_waitcnt lgkmcnt(0)",
         "s_mul_i32 s%d, s%d, %d" % (sT, sB, 7 * 131072), "s_lshl_b32 s%d, s%d, 15" % (sG, sWv), "s_add_u32 s%d, s%d, s%d" % (sT, sT, sG),
         "s_add_u32 s%d, s8, s%d" % (sOs, sT), "s_addc_u32 s%d, s9, 0" % (sOs + 1), "s_mov_b32 s%d, %d" % (sOs + 2, 6 * 131072 + 32768), "s_mov_b32 s%d, 0x20000" % (sOs + 3),
         "s_lshl_b32 s%d, s%d, 21" % (sT, sWv), "s_lshl_b32 s%d, s%d, 7" % (sG, sCT), "s_add_u32 s%d, s%d, s%d" % (sT, sT, sG),
         "s_add_u32 s%d, s4, s%d" % (sWs, sT), "s_addc_u32 s%d, s5, 0" % (sWs + 1), "s_sub_u32 s%d, 0x200000, s%d" % (sWs + 2, sG), "s_mov_b32 s%d, 0x20000" % (sWs + 3),
         "s_mov_b32 s%d, 0" % sWo])
    for rt in range(7): a.e("s_mov_b32 s%d, %d" % (sRt + rt, rt * 131072))
    def dmaW(j): return "buffer_load_dwordx4 v%d, s[%d:%d], s%d offen offset:%d%s lds" % (vD + j, sWs, sWs + 3, sWo, j * 1024, WFl)
    def m0W(slot): return "s_add_u32 m0, s%d, %d" % (sM, slot * 4096)
    def ldO(rt, km): return "buffer_load_dwordx4 %s, v%d, s[%d:%d], s%d offen offset:%d%s" % (ar(aOF + 28 * km + 4 * rt, 4), vS + 5, sOs, sOs + 3, sRt + rt, km * 1024, OFl)
    a.e("v_mov_b32 v%d, v%d" % (vS + 5, vL16))
    for km in range(4):
        a.e([m0W(km), "s_nop 0"] + [dmaW(j) for j in range(4)] + ["s_add_u32 s%d, s%d, 65536" % (sWo, sWo)] + [ldO(rt, km) for rt in range(7)])
    a.e("v_add_u32 v%d, 4096, v%d" % (vS + 5, vS + 5))
    a.e(["v_mov_b32 v%d, 0" % i for i in range(12, 16)])
    a.e(["v_lshrrev_b32 v%d, 2, v%d" % (vT, vL), "v_bfe_u32 v%d, v%d, 1, 2" % (vT2, vT), "v_xor_b32 v%d, s%d, v%d" % (vT2, sWv, vT2),
         "v_lshlrev_b32 v%d, 5, v%d" % (vT2, vT2), "v_lshl_add_u32 v%d, v%d, 7, v%d" % (vT2, vT, vT2),
         "v_and_b32 v%d, 3, v%d" % (vT3, vL), "v_lshl_add_u32 v%d, v%d, 3, v%d" % (vT2, vT3, vT2),
         "v_add_u32 v%d, s%d, v%d" % (vR, sM, vT2)])
    for i in range(1, 4): a.e("v_xor_b32 v%d, %d, v%d" % (vR + i, 32 * i, vR))
    for i in range(7): a.e(zero16(vr(ACC + 16 * i, 16)))
    for i in range(4):
        a.e(["s_xor_b32 s%d, s%d, %d" % (sT, sWv, i), "s_mul_i32 s%d, s%d, 21504" % (sT, sT),
             "s_add_u32 s%d, s%d, %d" % (sT, sT, 65536 + max(i - 1, 0) * 7168), "v_add_u32 v%d, s%d, v%d" % (vS + i, sT, vL16)])
    a.e(["s_mul_i32 s%d, s%d, %d" % (sT, sB, 112 * 2048), "s_add_u32 s%d, s6, s%d" % (sOut, sT), "s_addc_u32 s%d, s7, 0" % (sOut + 1),
         "s_mov_b32 s%d, %d" % (sOut + 2, 112 * 2048), "s_mov_b32 s%d, 0x20000" % (sOut + 3),
         "v_and_b32 v%d, 15, v%d" % (vT, vL), "v_lshrrev_b32 v%d, 4, v%d" % (vT2, vL), "v_lshlrev_b32 v%d, 3, v%d" % (vT2, vT2),
         "v_lshl_add_u32 v%d, v%d, 11, v%d" % (vT, vT, vT2),
         "s_lshl_b32 s%d, s%d, 7" % (sT, sCT), "s_lshl_b32 s%d, s%d, 5" % (sG, sWv), "s_add_u32 s%d, s%d, s%d" % (sT, sT, sG),
         "v_add_u32 v%d, s%d, v%d" % (vS + 4, sT, vT)])
    def rdW(k):
        out = []
        for i in range(4):
            for sec in range(2):
                out.append("ds_read_b64_tr_b16 %s, v%d offset:%d" % (vr(WF + 16 * (k & 1) + 4 * i + 2 * sec, 2), vR + i, (k & 3) * 4096 + sec * 2048))
        return out
    a.e(["s_waitcnt vmcnt(40)"] + rdW(0) + ["s_mov_b32 s%d, 7" % sCnt, "s_waitcnt vmcnt(29) lgkmcnt(0)"])
    def kstep(km, tail):
        mf = []; gaps = [[] for _ in range(28)]
        for rt in range(7):
            for i in range(4):
                c = vr(ACC + 16 * rt + 4 * i, 4)
                mf.append(mfma(c, vr(WF + 16 * (km & 1) + 4 * i, 4), ar(aOF + 28 * km + 4 * rt, 4), c))
        if not (tail and km == 3):
            for g, x in enumerate(rdW(km + 1)): gaps[g].append(x)
        if not tail:
            gaps[0].append(m0W(km))
            for j in range(4): gaps[1 + j // 2].append(dmaW(j))
            gaps[4].append("s_add_u32 s%d, s%d, 65536" % (sWo, sWo))
            for rt in range(7): gaps[4 * rt + 3].append(ldO(rt, km))
            if km == 3:
                gaps[27].append("v_add_u32 v%d, 4096, v%d" % (vS + 5, vS + 5))
                gaps[20].append("s_sub_u32 s%d, s%d, 1" % (sCnt, sCnt)); gaps[21].append("s_cmp_lg_u32 s%d, 0" % sCnt)
            gaps[27].append("s_waitcnt vmcnt(29) lgkmcnt(0)")
        else:
            n = (18, 7, 0, None)[km]
            if n is not None: gaps[27].append("s_waitcnt vmcnt(%d) lgkmcnt(0)" % n)
        weave(a, mf, gaps)
    stamp()
    a.raw(".p2align 5")
    a.lab("L2_loop")
    for km in range(4): kstep(km, False)
    a.e("s_cbranch_scc1 L2_loop")
    for km in range(4): kstep(km, True)
    stamp()
    a.e("s_nop 7")
    for rt in range(7):
        for i in range(1, 4): a.e("ds_write_b128 v%d, %s offset:%d" % (vS + i, vr(ACC + 16 * rt + 4 * i, 4), rt * 1024))
    a.e(["s_waitcnt lgkmcnt(0)", "s_barrier"])
    for rt in range(7):
        for i in range(1, 4): a.e("ds_read_b128 %s, v%d offset:%d" % (vr(ACC + 16 * rt + 4 * i, 4), vS, (i - 1) * 7168 + rt * 1024))
    for rt in range(7):
        a.e("s_waitcnt lgkmcnt(%d)" % min(15, 3 * (6 - rt)))
        b = ACC + 16 * rt
        for h in range(2):
            a.e("v_pk_add_f32 %s, %s, %s" % (vr(b + 2 * h, 2), vr(b + 2 * h, 2), vr(b + 4 + 2 * h, 2)))
            a.e("v_pk_add_f32 %s, %s, %s" % (vr(b + 8 + 2 * h, 2), vr(b + 8 + 2 * h, 2), vr(b + 12 + 2 * h, 2)))
        for h in range(2): a.e("v_pk_add_f32 %s, %s, %s" % (vr(b + 2 * h, 2), vr(b + 2 * h, 2), vr(b + 8 + 2 * h, 2)))
        a.e(["v_cvt_pk_bf16_f32 v%d, v%d, v%d" % (b, b, b + 1), "v_cvt_pk_bf16_f32 v%d, v%d, v%d" % (b + 1, b + 2, b + 3),
             "s_mov_b32 s%d, %d" % (sT, rt * 32768),
             "buffer_store_dwordx2 %s, v%d, s[%d:%d], s%d offen" % (vr(b, 2), vS + 4, sOut, sOut + 3, sT)])
    if O.stamps:
        stamp()
        a.e(["s_waitcnt vmcnt(0)"]); stamp()
        a.e("s_memrealtime s[58:59]")
        a.e(["s_waitcnt lgkmcnt(0)", "s_lshl_b32 s%d, s2, 2" % sT, "s_add_u32 s%d, s%d, s%d" % (sT, sT, sWv), "s_lshl_b32 s%d, s%d, 6" % (sT, sT),
             "s_add_u32 s%d, s%d, 0x%x" % (sT, sT, STAMP_OFF + 0x100000),
             "s_add_u32 s%d, s8, s%d" % (sOs, sT), "s_addc_u32 s%d, s9, 0" % (sOs + 1), "s_mov_b32 s%d, 64" % (sOs + 2), "v_mov_b32 v%d, 0" % vT])
        for i in range(nst[0]):
            a.e(["s_sub_u32 s%d, s%d, s%d" % (sT, sST + 2 * i, sST), "v_mov_b32 v%d, s%d" % (vT2, sT),
                 "buffer_store_dword v%d, v%d, s[%d:%d], 0 offen offset:%d" % (vT2, vT, sOs, sOs + 3, 4 * i)])
        for i, r_ in enumerate((56, 58)):
            a.e(["v_mov_b32 v%d, s%d" % (vT2, r_), "buffer_store_dword v%d, v%d, s[%d:%d], 0 offen offset:%d" % (vT2, vT, sOs, sOs + 3, 56 + 4 * i)])
    a.lab("L2_end")
    a.e("s_endpgm")
    a.lab("L_code_end")

def desc(name, nv, acc):
    return """.amdhsa_kernel %s
  .amdhsa_next_free_vgpr %d
  .amdhsa_next_free_sgpr 102
  .amdhsa_accum_offset %d
  .amdhsa_group_segment_fixed_size 0
  .amdhsa_kernarg_size 64
  .amdhsa_user_sgpr_count 2
  .amdhsa_user_sgpr_kernarg_segment_ptr 1
  .amdhsa_system_sgpr_workgroup_id_x 1
.end_amdhsa_kernel
""" % (name, nv, acc)

def build():
    hdr = open("cdna_kernels/%s.s.ref" % NAME).read().split("; Override launch")[0]
    a = Asm()
    k1, k2 = NAME + "_k1_kernel", NAME + "_k2_kernel"
    a.raw(".amdgcn_target \"amdgcn-amd-amdhsa--gfx950\"\n.text")
    a.raw(".globl %s\n.p2align 8\n.type %s,@function" % (k1, k1))
    kernel1(a)
    a.raw(".globl %s\n.p2align 8\n.type %s,@function" % (k2, k2))
    kernel2(a)
    errs = check(a.L)
    for e in errs: print(e, file=sys.stderr)
    t = hdr + "; @launch kernel=%s grid=(256,1,1) block=(256,1,1) lds=163840\n" % k1
    t += "; @launch kernel=%s grid=(256,1,1) block=(256,1,1) lds=151552\n" % k2
    t += a.text() + ".section .rodata,\"a\"\n.p2align 6\n" + desc(k1, 512, 256) + ".p2align 6\n" + desc(k2, 512, 256)
    return t

if __name__ == "__main__":
    out = sys.argv[1] if len(sys.argv) > 1 else "cdna_kernels/%s.s" % NAME
    for kv in sys.argv[2:]:
        k, v = kv.split("=")
        cur = getattr(O, k)
        setattr(O, k, (v == "1") if isinstance(cur, bool) else type(cur)(v))
    open(out, "w").write(build())
```

```python
import sys, math, struct
from asmlib import *

NAME = "standalone__mha_block_cached__near_ridge"
def f32(x): return struct.unpack("<I", struct.pack("<f", x))[0]
CSCALE = f32(128 ** -0.5 * math.log2(math.e))
THR = f32(2.0 ** 30)

class Opt:
    stamps = False
    ts = False
    kv_nt = True
    nxe = 5
    p1_span = 26
    force_slow = False
    pf_xw = True
    pf_wo = True
    pf_code = True
    kvpf = 0
    n25 = 25
    x1mask = 7
    x3mask = 7
    wsflag = True
    w_n = 2
    dbg3 = 0
    w_late = 4
    st_flags = "sc1"
    ld_flags = "sc1"
    w_early = True
    nopoll = False
O = Opt()
STAMP_OFF = 0x8000000
FLAG_OFF = 0x1000000

def zero16(d): return "v_mfma_f32_32x32x16_bf16 %s, v[12:15], v[12:15], 0" % d

def kernel(a):
    KVF = " nt" if O.kv_nt else ""
    pX, pK, pV, pWq, pWo, pOut, pDbg, pWs = 4, 6, 8, 10, 12, 14, 16, 18
    sX, sW, sKV, sO, sOs, sWs, sOut = 20, 24, 28, 32, 36, 40, 44
    (sWv, sB, sH, sRH, sKH, sXoff, sWoff, sCnt, sMX, sMW, sReg, sRegD, sP, sG, sFlip, sK0, sPass, sT, sT2, sRB, sCT, sWo, sM3) = range(48, 71)
    sXc, sWc, sOf1, sK3, sOf3 = 3, 81, 0, 1, 71
    sC = 72
    sRt = 74
    sST = 82
    vL, vT, vT2, vT3, vL16 = 1, 2, 3, 4, 5
    vKV, vW = 6, 10
    OK, ACC = 16, 128
    S, E, P, V, M, L = 128, 144, 152, 160, 192, 220
    vTa, vTb, vTc = 234, 235, 236
    vX, vXr, vWr = 240, 247, 251
    vKr, vVr, vK0 = 240, 241, 243
    vQw, vQr = 244, 247
    aQ, aO, aK = 0, 112, 224
    aXF, aWF = 0, 224
    nst = [0]
    def stamp():
        if O.stamps:
            assert nst[0] < 9
            a.e("s_memtime s[%d:%d]" % (sST + 2 * nst[0], sST + 2 * nst[0] + 1)); nst[0] += 1
    if O.ts: O.wsflag = False
    vFo, vFc = 254, 255
    def flagp(v):
        return ["s_lshl_b32 s%d, s%d, 2" % (sT, sB), "s_lshr_b32 s%d, s%d, 3" % (sG, sH), "s_add_u32 s%d, s%d, s%d" % (sT, sT, sG), "s_lshl_b32 s%d, s%d, 12" % (sT, sT),
                "s_and_b32 s%d, s%d, 7" % (sG, sH), "s_lshl_b32 s%d, s%d, 2" % (sG, sG), "s_add_u32 s%d, s%d, s%d" % (sT, sT, sG), "s_add_u32 s%d, s%d, 0x%x" % (sT, sT, FLAG_OFF),
                "v_and_b32 v%d, 31, v%d" % (v, vL), "v_lshlrev_b32 v%d, 7, v%d" % (v, v), "v_add_u32 v%d, s%d, v%d" % (v, sT, v)]
    def flagc(v):
        return ["s_lshr_b32 s%d, s%d, 1" % (sT, sRB), "s_lshl_b32 s%d, s%d, 2" % (sT, sT), "s_add_u32 s%d, s%d, s%d" % (sT, sT, sWv), "s_lshl_b32 s%d, s%d, 5" % (sT, sT),
                "s_and_b32 s%d, s%d, 1" % (sG, sRB), "s_lshl_b32 s%d, s%d, 4" % (sG, sG), "s_add_u32 s%d, s%d, s%d" % (sG, sG, sCT), "s_add_u32 s%d, s%d, s%d" % (sT, sT, sG),
                "s_lshl_b32 s%d, s%d, 7" % (sT, sT), "s_add_u32 s%d, s%d, 0x%x" % (sT, sT, FLAG_OFF),
                "v_and_b32 v%d, 7, v%d" % (v, vL), "v_lshlrev_b32 v%d, 2, v%d" % (v, v), "v_add_u32 v%d, s%d, v%d" % (v, sT, v)]

    a.lab(NAME + "_kernel")
    a.e(["s_cmp_ge_u32 s2, 256", "s_cbranch_scc1 L_end",
         "s_load_dwordx8 s[4:11], s[0:1], 0", "s_load_dwordx8 s[12:19], s[0:1], 32"])
    stamp()
    if O.stamps: a.e(["s_memrealtime s[%d:%d]" % (sC, sC + 1), "s_waitcnt lgkmcnt(0)", "s_mov_b32 s101, s%d" % sC])
    if O.pf_code:
        a.e(["s_getpc_b64 s[%d:%d]" % (sC, sC + 1)])
        a.lab("L_pc")
        a.e(["v_lshlrev_b32 v%d, 7, v0" % vT, "v_min_u32 v%d, L_code_end-L_pc-4, v%d" % (vT, vT),
             "v_mov_b32 v%d, s%d" % (vT2, sC + 1), "v_add_co_u32 v%d, vcc, s%d, v%d" % (vT, sC, vT), "s_nop 1",
             "v_addc_co_u32 v%d, vcc, 0, v%d, vcc" % (vT2, vT2), "global_load_dword v253, v[%d:%d], off" % (vT, vT2)])
    a.e(["v_and_b32 v%d, 63, v0" % vL, "v_lshrrev_b32 v%d, 6, v0" % vT,
         "s_and_b32 s%d, s2, 7" % sT, "s_lshr_b32 s%d, s2, 3" % sT2,
         "v_readfirstlane_b32 s%d, v%d" % (sWv, vT),
         "s_and_b32 s%d, s%d, 1" % (sB, sT), "s_lshl_b32 s%d, s%d, 2" % (sB, sB),
         "s_and_b32 s%d, s%d, 3" % (sG, sT2), "s_add_u32 s%d, s%d, s%d" % (sB, sB, sG),
         "s_lshr_b32 s%d, s%d, 1" % (sH, sT), "s_lshl_b32 s%d, s%d, 3" % (sH, sH),
         "s_lshr_b32 s%d, s%d, 2" % (sG, sT2), "s_add_u32 s%d, s%d, s%d" % (sH, sH, sG),
         "s_and_b32 s%d, s%d, 1" % (sRH, sWv), "s_lshr_b32 s%d, s%d, 1" % (sKH, sWv)])
    a.e(["v_lshrrev_b32 v%d, 3, v%d" % (vT, vL), "v_and_b32 v%d, 7, v%d" % (vT2, vL), "v_and_b32 v%d, 6, v%d" % (vT3, vT),
         "v_xor_b32 v%d, v%d, v%d" % (vT3, vT3, vT2), "v_lshlrev_b32 v%d, 4, v%d" % (vT3, vT3),
         "v_lshl_add_u32 v%d, v%d, 11, v%d" % (vX, vT, vT3),
         "s_mul_i32 s%d, s%d, %d" % (sT, sWv, 7 * 16384), "v_add_u32 v%d, s%d, v%d" % (vX, sT, vX)])
    for j in range(1, 7): a.e("v_add_u32 v%d, %d, v%d" % (vX + j, j * 16384 - (j & 3) * 1024, vX))
    a.e(["v_and_b32 v%d, 2, v%d" % (vT3, vT), "v_lshlrev_b32 v%d, 1, v%d" % (vT3, vT3),
         "v_xor_b32 v%d, v%d, v%d" % (vT3, vT3, vT2), "v_lshlrev_b32 v%d, 4, v%d" % (vT3, vT3),
         "v_lshl_add_u32 v%d, v%d, 13, v%d" % (vW, vT, vT3),
         "s_lshl_b32 s%d, s%d, 17" % (sT, sRH), "s_lshl_b32 s%d, s%d, 7" % (sG, sKH), "s_add_u32 s%d, s%d, s%d" % (sT, sT, sG),
         "v_add_u32 v%d, s%d, v%d" % (vW, sT, vW), "v_add_u32 v%d, %d, v%d" % (vW + 1, 8 * 8192 - 1024, vW)])
    a.e(["s_lshl_b32 s%d, s%d, 15" % (sMX, sKH), "s_mul_i32 s%d, s%d, 7168" % (sT, sRH),
         "s_add_u32 s%d, s%d, s%d" % (sMX, sMX, sT), "s_add_u32 s%d, s%d, 16384" % (sMX, sMX),
         "s_lshl_b32 s%d, s%d, 11" % (sMW, sWv), "s_add_u32 s%d, s%d, 131072" % (sMW, sMW),
         "s_lshl_b32 s%d, s%d, 15" % (sReg, sWv),
         "s_mov_b32 s%d, 458752" % (sX + 2), "s_mov_b32 s%d, 0x20000" % (sX + 3), "s_mov_b32 s%d, 0x20000" % (sW + 3),
         "s_mul_i32 s%d, s%d, 458752" % (sT, sB), "s_lshl_b32 s%d, s%d, 8" % (sG, sH), "s_sub_u32 s%d, 0x800000, s%d" % (sW + 2, sG),
         "s_waitcnt lgkmcnt(0)",
         "s_lshl_b32 s%d, s%d, 1" % (sOf1, sB), "s_xor_b32 s%d, s%d, s%d" % (sOf1, sOf1, sH), "s_and_b32 s%d, s%d, %d" % (sOf1, sOf1, O.x1mask),
         "s_lshl_b32 s%d, s%d, 7" % (sXoff, sOf1), "s_lshl_b32 s%d, s%d, 19" % (sWoff, sOf1), "s_mov_b32 s%d, 0" % sXc, "s_mov_b32 s%d, 0" % sWc,
         "s_lshl_b32 s%d, s%d, 1" % (sK3, sOf1),
         "s_add_u32 s%d, s%d, s%d" % (sW, pWq, sG), "s_addc_u32 s%d, s%d, 0" % (sW + 1, pWq + 1),
         "s_add_u32 s%d, s%d, s%d" % (sX, pX, sT), "s_addc_u32 s%d, s%d, 0" % (sX + 1, pX + 1)])

    TS_A = ["s_memrealtime s[6:7]", "s_memtime s[4:5]"]
    TS_B = ["s_mov_b32 s9, m0", "s_mov_b32 m0, s8", "v_writelane_b32 v255, s6, m0", "v_writelane_b32 v0, s4, m0", "s_add_u32 s8, s8, 1", "s_mov_b32 m0, s9"]
    def dmaX(j): return "buffer_load_dwordx4 v%d, s[%d:%d], s%d offen offset:%d lds" % (vX + j, sX, sX + 3, sXoff, (j & 3) * 1024)
    def m0X(buf, hi): return "s_add_u32 m0, s%d, %d" % (sMX, buf * 65536 + hi * 4096)
    def dmaW(j): return "buffer_load_dwordx4 v%d, s[%d:%d], s%d offen offset:%d lds" % (vW + j, sW, sW + 3, sWoff, j * 1024)
    def m0W(slot): return "s_add_u32 m0, s%d, %d" % (sMW, slot * 8192)
    def dmaKV(i): return "buffer_load_dwordx4 v%d, s[%d:%d], s%d offen offset:%d%s lds" % (vKV + (i & 3), sKV, sKV + 3, sK0, (i & 3) * 1024, KVF)
    def m0KV(slot, hi): return "s_add_u32 m0, s%d, %d" % (sRegD, slot * 8192 + hi * 4096)
    incK = "s_add_u32 s%d, s%d, 4096" % (sK0, sK0)
    def kvtile(slot): return [m0KV(slot, 0), "s_nop 0"] + [dmaKV(i) for i in range(4)] + [m0KV(slot, 1), incK] + [dmaKV(i) for i in range(4, 8)] + [incK]
    incW = ["s_add_u32 s%d, s%d, 1" % (sWc, sWc), "s_xor_b32 s%d, s%d, s%d" % (sWoff, sWc, sK3), "s_lshl_b32 s%d, s%d, 18" % (sWoff, sWoff)]
    incX = ["s_add_u32 s%d, s%d, 1" % (sXc, sXc), "s_xor_b32 s%d, s%d, s%d" % (sXoff, sXc, sOf1), "s_lshl_b32 s%d, s%d, 7" % (sXoff, sXoff)]
    vKw, vPF = vT2, vT3
    kvw_m0 = "s_add_u32 m0, s%d, s%d" % (sReg, sK0)
    kvw = "buffer_load_dwordx4 v%d, s[%d:%d], s%d offen%s lds" % (vKw, sKV, sKV + 3, sK0, KVF)
    kvw_inc = "s_add_u32 s%d, s%d, 1024" % (sK0, sK0)
    kvpf = "buffer_load_dword v253, v%d, s[%d:%d], s%d offen" % (vPF, sKV, sKV + 3, sP)

    for st in range(2):
        a.e([m0W(2 * st), "s_nop 0", dmaW(0), dmaW(1), m0X(st, 0), incW])
        a.e([dmaX(j) for j in range(4)] + [m0X(st, 1), "s_nop 0"] + [dmaX(j) for j in range(4, 7)])
        a.e([m0W(2 * st + 1), incX, dmaW(0), dmaW(1), incW])
        if st == 0:
            a.e(["s_and_b32 s%d, s%d, s%d" % (sFlip, sRH, sKH), "s_lshl_b32 s%d, s%d, 7" % (sFlip, sFlip),
                 "s_cmp_eq_u32 s%d, 0" % sRH, "s_cselect_b32 s%d, s%d, s%d" % (sKV, pK, pV), "s_cselect_b32 s%d, s%d, s%d" % (sKV + 1, pK + 1, pV + 1),
                 "s_lshl_b32 s%d, s%d, 5" % (sT, sB), "s_add_u32 s%d, s%d, s%d" % (sT, sT, sH), "s_lshl_b32 s%d, s%d, 1" % (sT, sT),
                 "s_add_u32 s%d, s%d, s%d" % (sT, sT, sKH), "s_lshl_b32 s%d, s%d, 17" % (sT, sT),
                 "s_add_u32 s%d, s%d, s%d" % (sKV, sKV, sT), "s_addc_u32 s%d, s%d, 0" % (sKV + 1, sKV + 1),
                 "s_mov_b32 s%d, 131072" % (sKV + 2), "s_mov_b32 s%d, 0x20000" % (sKV + 3), "s_mov_b32 s%d, 0" % sK0,
                 "v_bfe_u32 v%d, v%d, 2, 2" % (vT, vL), "v_lshrrev_b32 v%d, 4, v%d" % (vT2, vL), "v_lshlrev_b32 v%d, 6, v%d" % (vT2, vT2),
                 "v_xor_b32 v%d, s%d, v%d" % (vT2, sFlip, vT2), "v_lshl_add_u32 v%d, v%d, 8, v%d" % (vT2, vT, vT2),
                 "v_and_b32 v%d, 3, v%d" % (vT, vL), "v_lshl_add_u32 v%d, v%d, 4, v%d" % (vKV, vT, vT2),
                 kvw_m0, "s_nop 0", dmaKV(0), kvw_inc])
    big = ["v_add_u32 v%d, 0x40000000, v%d" % (vT3, vT3)] if not O.pf_xw else []
    a.e(["s_mul_i32 s%d, s%d, 14336" % (sT, sH), "s_lshl_b32 s%d, s%d, 12" % (sG, sWv), "s_add_u32 s%d, s%d, s%d" % (sT, sT, sG),
         "v_and_b32 v%d, 31, v%d" % (vT3, vL), "v_lshlrev_b32 v%d, 7, v%d" % (vT3, vT3)] + big + [
         "buffer_load_dword v253, v%d, s[%d:%d], s%d offen" % (vT3, sX, sX + 3, sT),
         "s_lshl_b32 s%d, s%d, 2" % (sT, sB), "s_add_u32 s%d, s%d, s%d" % (sT, sT, sWv), "s_lshl_b32 s%d, s%d, 18" % (sT, sT),
         "v_lshrrev_b32 v%d, 1, v%d" % (vT3, vL), "v_lshlrev_b32 v%d, 13, v%d" % (vT3, vT3),
         "v_and_b32 v%d, 1, v%d" % (vT2, vL), "v_lshl_add_u32 v%d, v%d, 7, v%d" % (vT3, vT2, vT3)] + big + [
         "buffer_load_dword v253, v%d, s[%d:%d], s%d offen" % (vT3, sW, sW + 3, sT)])
    for i in range(1, 4): a.e("v_xor_b32 v%d, %d, v%d" % (vKV + i, ((-i) & 3) * 16, vKV))
    a.e(["v_mov_b32 v%d, 0" % i for i in range(12, 16)])
    a.e(["v_lshlrev_b32 v%d, 4, v%d" % (vL16, vL),
         "v_and_b32 v%d, 15, v%d" % (vT, vL), "v_lshrrev_b32 v%d, 4, v%d" % (vT2, vL),
         "v_and_b32 v%d, 6, v%d" % (vT3, vT), "v_xor_b32 v%d, v%d, v%d" % (vT3, vT3, vT2), "v_lshlrev_b32 v%d, 4, v%d" % (vT3, vT3),
         "v_lshl_add_u32 v%d, v%d, 7, v%d" % (vT3, vT, vT3),
         "s_lshl_b32 s%d, s%d, 15" % (sT, sRH), "s_add_u32 s%d, s%d, 16384" % (sT, sT),
         "v_add_u32 v%d, s%d, v%d" % (vXr, sT, vT3), "v_xor_b32 v%d, 64, v%d" % (vXr + 1, vXr),
         "v_add_u32 v%d, 0x10000, v%d" % (vXr + 2, vXr), "v_add_u32 v%d, 0x10000, v%d" % (vXr + 3, vXr + 1)])
    for i in range(7): a.e(zero16(vr(ACC + 16 * i, 16)))
    a.e(["v_bfe_u32 v%d, v%d, 2, 2" % (vT, vL), "v_lshl_add_u32 v%d, v%d, 3, v%d" % (vT, vT2, vT),
         "v_and_b32 v%d, 2, v%d" % (vT3, vT), "v_lshlrev_b32 v%d, 1, v%d" % (vT3, vT3),
         "v_and_b32 v%d, 3, v%d" % (vT2, vL), "v_xor_b32 v%d, v%d, v%d" % (vT3, vT3, vT2), "v_lshlrev_b32 v%d, 4, v%d" % (vT3, vT3),
         "v_lshl_add_u32 v%d, v%d, 7, v%d" % (vT3, vT, vT3),
         "s_lshl_b32 s%d, s%d, 12" % (sT, sKH), "s_add_u32 s%d, s%d, 131072" % (sT, sT),
         "v_add_u32 v%d, s%d, v%d" % (vWr, sT, vT3), "v_xor_b32 v%d, 64, v%d" % (vWr + 1, vWr)])
    for i in range(7): a.e(zero16(vr(OK + 16 * i, 16)))
    for i in range(7): a.e(zero16(ar(aO + 16 * i, 16)))
    a.e(["s_mul_i32 s%d, s%d, 14" % (sT, sB), "s_mul_i32 s%d, s%d, 7" % (sG, sRH), "s_add_u32 s%d, s%d, s%d" % (sT, sT, sG),
         "s_lshl_b32 s%d, s%d, 7" % (sT, sT), "s_lshl_b32 s%d, s%d, 2" % (sG, sH), "s_add_u32 s%d, s%d, s%d" % (sT, sT, sG),
         "s_lshl_b32 s%d, s%d, 1" % (sG, sKH), "s_add_u32 s%d, s%d, s%d" % (sT, sT, sG), "s_lshl_b32 s%d, s%d, 10" % (sT, sT),
         "s_add_u32 s%d, s%d, s%d" % (sO, pWs, sT), "s_addc_u32 s%d, s%d, 0" % (sO + 1, pWs + 1),
         "s_mov_b32 s%d, %d" % (sO + 2, 6 * 131072 + 2048), "s_mov_b32 s%d, 0x20000" % (sO + 3),
         "s_mov_b32 s%d, 0x%x" % (sC, CSCALE), "s_mov_b32 s%d, 0x%x" % (sC + 1, CSCALE),
         "s_mov_b32 s%d, 0" % sPass, "s_mov_b32 s%d, s%d" % (sRegD, sReg),
         "s_and_b32 s%d, s2, 7" % sT, "s_lshr_b32 s%d, s2, 3" % sG,
         "s_lshr_b32 s%d, s%d, 1" % (sRB, sT), "s_lshl_b32 s%d, s%d, 2" % (sRB, sRB), "s_and_b32 s%d, s%d, 3" % (sT2, sG), "s_add_u32 s%d, s%d, s%d" % (sRB, sRB, sT2),
         "s_and_b32 s%d, s%d, 1" % (sCT, sT), "s_lshl_b32 s%d, s%d, 3" % (sCT, sCT), "s_lshr_b32 s%d, s%d, 2" % (sG, sG), "s_add_u32 s%d, s%d, s%d" % (sCT, sCT, sG),
         "s_mul_i32 s%d, s%d, %d" % (sT, sRB, 7 * 131072), "s_add_u32 s%d, s%d, s%d" % (sT, sT, sReg),
         "s_add_u32 s%d, s%d, s%d" % (sOs, pWs, sT), "s_addc_u32 s%d, s%d, 0" % (sOs + 1, pWs + 1),
         "s_mov_b32 s%d, %d" % (sOs + 2, 6 * 131072 + 32768), "s_mov_b32 s%d, 0x20000" % (sOs + 3),
         "s_lshl_b32 s%d, s%d, 21" % (sT, sWv), "s_lshl_b32 s%d, s%d, 7" % (sG, sCT), "s_add_u32 s%d, s%d, s%d" % (sT, sT, sG),
         "s_add_u32 s%d, s%d, s%d" % (sWs, pWo, sT), "s_addc_u32 s%d, s%d, 0" % (sWs + 1, pWo + 1),
         "s_sub_u32 s%d, 0x200000, s%d" % (sWs + 2, sG), "s_mov_b32 s%d, 0x20000" % (sWs + 3),
         "s_mul_i32 s%d, s%d, %d" % (sT, sRB, 112 * 2048), "s_add_u32 s%d, s%d, s%d" % (sOut, pOut, sT), "s_addc_u32 s%d, s%d, 0" % (sOut + 1, pOut + 1),
         "s_mov_b32 s%d, %d" % (sOut + 2, 112 * 2048), "s_mov_b32 s%d, 0x20000" % (sOut + 3)])
    for rt in range(7): a.e("s_mov_b32 s%d, %d" % (sRt + rt, rt * 131072))
    a.e(["v_and_b32 v%d, 31, v%d" % (vT, vL), "v_lshrrev_b32 v%d, 5, v%d" % (vT2, vL), "v_lshlrev_b32 v%d, 13, v%d" % (vT2, vT2),
         "v_lshl_add_u32 v%d, v%d, 7, v%d" % (vT2, vT, vT2), "v_cmp_gt_u32 vcc, %d, v%d" % (8 * O.kvpf, vT), "v_mov_b32 v%d, 0x40000000" % vT3,
         "s_lshl_b32 s%d, s%d, 12" % (sP, sRH), "v_cndmask_b32 v%d, v%d, v%d, vcc" % (vPF, vT3, vT2), "s_add_u32 s%d, s%d, 16384" % (sP, sP),
         "v_mov_b32 v%d, v%d" % (vKw, vKV)])

    NF = 0
    if O.wsflag:
        a.e(flagp(vT) + [
             "global_load_dword v%d, v%d, s[%d:%d] sc1" % (vFo, vT, pWs, pWs + 1)] + flagc(vT) + [
             "global_load_dword v%d, v%d, s[%d:%d] sc1" % (vFc, vT, pWs, pWs + 1)])
        NF = 2
    def rdW(k):
        out = []
        for dt in range(4):
            dp, t = dt >> 1, dt & 1
            for sec in range(2):
                out.append("ds_read_b64_tr_b16 %s, v%d offset:%d" % (ar(aWF + 16 * (k & 1) + 4 * dt + 2 * sec, 2), vWr + dp, (k & 3) * 8192 + sec * 512 + t * 8))
        return out
    def rdX(s):
        return ["ds_read_b128 %s, v%d offset:%d" % (ar(aXF + 56 * (s & 1) + 28 * kk + 4 * rt, 4), vXr + 2 * (s & 1) + kk, rt * 2048)
                for kk in range(2) for rt in range(7)]
    a.e(["s_waitcnt vmcnt(%d)" % (16 + NF), "s_barrier"])
    if O.ts: a.e(["s_mov_b32 s8, 0", "v_mov_b32 v255, 0", "v_mov_b32 v0, 0"])
    a.e(rdW(0) + rdX(0))
    a.e(["s_mov_b32 s%d, 7" % sCnt, "s_waitcnt vmcnt(%d) lgkmcnt(0)" % (14 + NF), "s_barrier"])

    addr2 = ["v_bfe_u32 v%d, v%d, 2, 2" % (vT, vL), "v_sub_u32 v%d, 0, v%d" % (vT2, vT), "v_lshrrev_b32 v%d, 4, v%d" % (vT3, vL),
             "v_xor_b32 v%d, v%d, v%d" % (vT2, vT2, vT3), "v_and_b32 v%d, 3, v%d" % (vT2, vT2), "v_lshlrev_b32 v%d, 4, v%d" % (vT2, vT2),
             "v_lshl_add_u32 v%d, v%d, 10, v%d" % (vT2, vT, vT2), "v_and_b32 v%d, 3, v%d" % (vK0, vL),
             "v_lshl_add_u32 v%d, v%d, 6, v%d" % (vK0, vK0, vT2),
             "s_lshl_b32 s%d, s%d, 16" % (sG, sKH), "v_add_u32 v%d, s%d, v%d" % (vKr, sG, vK0),
             "v_sub_u32 v%d, 0, v%d" % (vT2, vT3), "v_bfe_u32 v%d, v%d, 1, 1" % (vVr + 1, vL), "v_xor_b32 v%d, v%d, v%d" % (vT2, vT2, vVr + 1),
             "v_and_b32 v%d, 3, v%d" % (vT2, vT2), "v_lshlrev_b32 v%d, 4, v%d" % (vT2, vT2),
             "v_lshl_add_u32 v%d, v%d, 10, v%d" % (vT2, vT3, vT2), "v_lshl_add_u32 v%d, v%d, 6, v%d" % (vT2, vT, vT2),
             "v_and_b32 v%d, 1, v%d" % (vVr + 1, vL), "v_lshl_add_u32 v%d, v%d, 3, v%d" % (vT2, vVr + 1, vT2),
             "s_add_u32 s%d, s%d, 32768" % (sG, sG), "v_add_u32 v%d, s%d, v%d" % (vVr, sG, vT2), "v_xor_b32 v%d, 32, v%d" % (vVr + 1, vVr),
             "s_lshl_b32 s%d, s%d, 13" % (sT, sWv), "s_add_u32 s%d, s%d, 131072" % (sT, sT), "v_add_u32 v%d, s%d, v%d" % (vQw, sT, vL16),
             "s_add_u32 s%d, s%d, 24576" % (sT, sReg), "v_add_u32 v%d, s%d, v%d" % (vQw + 1, sT, vL16),
             "s_lshl_b32 s%d, s%d, 13" % (sT, sRH), "s_add_u32 s%d, s%d, 131072" % (sT, sT), "v_add_u32 v%d, s%d, v%d" % (vQr, sT, vL16),
             "s_lshl_b32 s%d, s%d, 15" % (sT, sRH), "s_add_u32 s%d, s%d, 24576" % (sT, sT), "v_add_u32 v%d, s%d, v%d" % (vQr + 1, sT, vL16),
             "v_add_u32 v%d, 0x10000, v%d" % (vQr + 2, vQr + 1),
             "s_lshl_b32 s%d, s2, 2" % sT, "s_add_u32 s%d, s%d, s%d" % (sT, sT, sWv), "s_lshl_b32 s%d, s%d, 13" % (sT, sT),
             "v_lshlrev_b32 v%d, 7, v%d" % (vT, vL), "v_add_u32 v%d, s%d, v%d" % (vT, sT, vT)]

    def p1_kstep(km, mode, ctl=False):
        sp, kk = km >> 1, km & 1
        mf = []
        for rt in range(7):
            for dt in range(4):
                c = vr(ACC + 16 * rt + 4 * dt, 4)
                mf.append(mfma(c, ar(aWF + 16 * (km & 1) + 4 * dt, 4), ar(aXF + 56 * sp + 28 * kk + 4 * rt, 4), c))
        gaps = [[] for _ in range(28)]
        rd = []
        if mode != 31: rd += rdW(km + 1)
        if kk == 1 and mode != 31: rd += rdX(sp + 1)
        dm = []; nxe = O.nxe
        if mode == "loop":
            def xs(js):
                r = []
                for j in js:
                    if j == 4 and j != js[0]: r += [m0X(sp, 1)]
                    r.append(dmaX(j))
                return r
            if kk == 0: dm += [m0W(km), dmaW(0), dmaW(1), m0X(sp, 0)] + xs(list(range(nxe))) + incW
            else:
                if nxe < 7: dm += [m0X(sp, 1 if nxe >= 4 else 0)] + xs(list(range(nxe, 7)))
                dm += incX + [m0W(km), dmaW(0), dmaW(1)] + incW
                dm += [kvw_m0, "v_xor_b32 v%d, %d, v%d" % (vKw, 48 if km == 1 else 16, vKw), kvw, kvw_inc]
                if km == 3: dm += [kvpf, "s_add_u32 s%d, s%d, 16384" % (sP, sP)]
            endw = "s_waitcnt vmcnt(%d) lgkmcnt(0)" % ((4 + nxe + (2 if km == 0 else 1)) if kk == 0 else 14)
        elif mode == 28:
            dm += [kvw_m0, "v_xor_b32 v%d, 48, v%d" % (vKw, vKw), kvw, kvw_inc]
            endw = "s_waitcnt vmcnt(5) lgkmcnt(0)"
        elif mode == 29: endw = "s_waitcnt vmcnt(3) lgkmcnt(0)"
        elif mode == 30:
            dm += [m0KV(2, 0)] + [dmaKV(i) for i in range(4)] + [m0KV(2, 1), incK] + [dmaKV(i) for i in range(4, 8)] + [incK]
            endw = "s_waitcnt lgkmcnt(0)"
        else: endw = None
        for g, x in enumerate(rd): gaps[g].append(x)
        def place(items, lo, hi):
            g_ = lo
            for y in items:
                while g_ < hi and len(gaps[g_]) >= 2: g_ += 1
                gaps[g_].append(y)
        nld = sum(1 for x in dm if x.startswith("buffer_load"))
        if nld:
            pos = [1 + (i * O.p1_span) // nld for i in range(nld)]
            li = 0; pend = []; prev = -1
            for x in dm:
                if x.startswith("buffer_load"):
                    place(pend, max(prev, 0), pos[li] - 1); pend = []
                    gaps[pos[li]].insert(0, x); prev = pos[li]; li += 1
                else: pend.append(x)
            place(pend, prev, 25)
        if mode == 31: place(addr2, 0, 27)
        if endw: gaps[26].append(endw); gaps[27].append("s_barrier")
        if O.ts and km in (0, 2) and mode != 30:
            gaps[22] += TS_A; gaps[27] += TS_B
        if ctl:
            gaps[25].append("s_sub_u32 s%d, s%d, 1" % (sCnt, sCnt)); gaps[26].append("s_cmp_lg_u32 s%d, 0" % sCnt)
        weave(a, mf, gaps)
    a.raw(".p2align 5")
    a.lab("L_p1")
    for km in range(4): p1_kstep(km, "loop", ctl=(km == 3))
    a.e("s_cbranch_scc1 L_p1")
    for km in range(4): p1_kstep(km, 28 + km)
    stamp()

    if O.pf_wo: a.e("global_load_dword v253, v%d, s[%d:%d]" % (vT, pWo, pWo + 1))
    for f in range(14):
        b = ACC + 8 * f
        for i in range(4): a.e("v_pk_mul_f32 %s, %s, s[%d:%d]" % (vr(b + 2 * i, 2), vr(b + 2 * i, 2), sC, sC + 1))
        for i in range(4): a.e("v_cvt_pk_bf16_f32 v%d, v%d, v%d" % (b + i, b + 2 * i, b + 2 * i + 1))
        if f < 8: a.e("ds_write_b128 v%d, %s offset:%d" % (vQw, vr(b, 4), f * 1024))
        else: a.e("ds_write_b128 v%d, %s offset:%d" % (vQw + 1, vr(b, 4), (f - 8) * 1024))
    a.e(["s_waitcnt vmcnt(%d) lgkmcnt(0)" % (9 if O.pf_wo else 8), "s_barrier"])
    for ks in range(4): a.e("ds_read_b128 %s, v%d offset:%d" % (vr(V + 4 * ks, 4), vK0, ks * 256))
    for ks in range(4):
        for rt in range(7):
            dh, dp = ks >> 1, ks & 1
            f = rt * 2 + dp
            if f < 8: a.e("ds_read_b128 %s, v%d offset:%d" % (ar(aQ + 16 * rt + 4 * ks, 4), vQr, dh * 16384 + f * 1024))
            else: a.e("ds_read_b128 %s, v%d offset:%d" % (ar(aQ + 16 * rt + 4 * ks, 4), vQr + 1 + dh, (f - 8) * 1024))
    def rdK(i, slot):
        t, ks = i & 1, i >> 1
        return "ds_read_b128 %s, v%d offset:%d" % (ar(aK + 16 * t + 4 * ks, 4), vKr, slot * 8192 + t * 4096 + ks * 256)
    NA = 2
    for ks in range(4):
        a.e("s_waitcnt lgkmcnt(%d)" % min(15, 7 * (3 - ks)))
        if ks == 3: a.e(["s_barrier", m0KV(3, 0)])
        for rt in range(7):
            d = vr(M + 4 * rt, 4)
            a.e(mfma(d, vr(V + 4 * ks, 4), ar(aQ + 16 * rt + 4 * ks, 4), "0" if ks == 0 else d))
            if ks == 3 and rt < NA: a.e(dmaKV(rt))
    a.e([rdK(i, 0) for i in range(8)])
    def xlane(op, regs_, tmp):
        out = []
        for sw in ("v_permlane32_swap_b32", "v_permlane16_swap_b32"):
            out += ["v_mov_b32 v%d, v%d" % (t_, r_) for r_, t_ in zip(regs_, tmp)]
            out += ["%s v%d, v%d" % (sw, r_, t_) for r_, t_ in zip(regs_, tmp)]
            out += ["%s v%d, v%d, v%d" % (op, r_, r_, t_) for r_, t_ in zip(regs_, tmp)]
        return out
    for rt in range(7): a.e("v_max3_f32 v%d, v%d, v%d, v%d" % (M + 4 * rt, M + 4 * rt, M + 4 * rt + 1, M + 4 * rt + 2))
    for rt in range(7): a.e("v_max_f32 v%d, v%d, v%d" % (M + 4 * rt, M + 4 * rt, M + 4 * rt + 3))
    a.e(xlane("v_max_f32", [M + 4 * rt for rt in range(7)], [M + 4 * rt + 1 for rt in range(7)]))
    a.lab("L_setm")
    a.e([zero16(vr(V, 16)), zero16(vr(V + 16, 16))])
    for i in (1, 2, 3, 0): a.e("v_sub_f32 v%d, 0, v%d" % (M + i, M))
    a.e(["s_mov_b32 s%d, 4" % sCnt, "s_waitcnt lgkmcnt(0)"])
    def qk(rt, sb):
        out = []
        for i in range(8):
            t, ks = i & 1, i >> 1
            d = vr(S + 8 * sb + 4 * t, 4)
            out.append(mfma(d, ar(aK + 16 * t + 4 * ks, 4), ar(aQ + 16 * rt + 4 * ks, 4), vr(M + 4 * rt, 4) if ks == 0 else d))
        return out
    def oacc(rt, i): return vr(OK + 16 * rt + 4 * i, 4) if i < 4 else ar(aO + 16 * rt + 4 * (i - 4), 4)
    def pv(rt, pb): return [mfma(oacc(rt, i), vr(V + 4 * i, 4), vr(P + 4 * pb, 4), oacc(rt, i)) for i in range(8)]
    rest = ["v_sub_f32 v%d, 0, v%d" % (M + 4 * rt + i, M + 4 * rt) for rt in range(1, 7) for i in (1, 2, 3, 0)]
    rest += ["v_mov_b32 v%d, 0" % i for i in range(L, L + 7)] + ["v_mov_b32 v%d, 0" % i for i in range(P + 4, P + 8)]
    weave(a, qk(0, 0), [rest[2 * i:2 * i + 2] for i in range(7)] + [rest[14:]])
    stamp()

    def body(js):
        for r in range(7):
            u = 7 * js + r
            mf = qk((r + 1) % 7, (u + 1) & 1) + pv((r + 6) % 7, (u + 1) & 1)
            mem = [[] for _ in range(16)]; val = [[] for _ in range(16)]
            for e in range(8):
                val[2 * e].append("v_exp_f32 v%d, v%d" % (E + e, S + 8 * (u & 1) + e))
                val[2 * e + 1].append("v_add_f32 v%d, v%d, v%d" % (L + r, L + r, E + e))
                if e & 1: val[2 * e + 1].append("v_cvt_pk_bf16_f32 v%d, v%d, v%d" % (P + 4 * (u & 1) + (e >> 1), E + e - 1, E + e))
            ps = (js + 3) & 3
            if r == 0:
                for i in range(8):
                    for sec in range(2):
                        mem[8 + i].append("ds_read_b64_tr_b16 %s, v%d offset:%d" % (vr(V + 4 * i + 2 * sec, 2), vVr + (i & 1), js * 8192 + (i >> 1) * 256 + sec * 4096))
                mem[1].append(dmaKV(2)); mem[5].append(dmaKV(3))
            if r == 1:
                mem[1].append(m0KV(ps, 1)); mem[5].append("s_waitcnt lgkmcnt(0)"); mem[9].append(incK); mem[13].append(dmaKV(4))
            if r == 2: mem[1].append(dmaKV(5)); mem[9].append(dmaKV(6))
            if r == 3:
                mem[1].append(dmaKV(7)); mem[5].append(incK)
                if js == 0: mem[9].append("s_cmp_eq_u32 s%d, 1" % sCnt); mem[13].append("s_cselect_b32 s%d, 0x20000, s%d" % (sRegD, sReg))
            if r == 4:
                mem[5].append(m0KV(js, 0)); mem[9].append("s_waitcnt vmcnt(16)"); mem[13].append("s_barrier")
            if r == 5:
                for i in range(8): mem[i].append(rdK(i, (js + 1) & 3))
                mem[9].append(dmaKV(0)); mem[13].append("s_waitcnt lgkmcnt(0)")
                if O.ts: mem[11] += TS_A; mem[15] += TS_B
            if r == 6:
                mem[1].append(dmaKV(1))
                if js == 3: mem[5].append("s_sub_u32 s%d, s%d, 1" % (sCnt, sCnt)); mem[9].append("s_cmp_lg_u32 s%d, 0" % sCnt)
            weave(a, mf, [m + v for m, v in zip(mem, val)])
    a.raw(".p2align 5")
    a.lab("L_loop")
    for js in range(4): body(js)
    a.e("s_cbranch_scc1 L_loop")
    stamp()

    vD, vR, vS = 244, 248, 228
    a.e(["s_xor_b32 s%d, s%d, 0x10000" % (sG, sReg), "v_add_u32 v%d, s%d, v%d" % (vTa, sG, vL16)])
    wr = ["ds_write_b128 v%d, %s offset:%d" % (vTa, ar(aO + 4 * i, 4), i * 1024) for i in range(28)]
    weave(a, pv(6, 1), [[wr[i]] for i in range(8)])
    misc = ["v_add_f32 v%d, v%d, v%d" % (vTc, L, L + 1)] + ["v_add_f32 v%d, v%d, v%d" % (vTc, vTc, L + i) for i in range(2, 7)]
    misc += ["s_mov_b32 s%d, 0x%x" % (sT, THR if not O.force_slow else 0), "v_add_u32 v%d, s%d, v%d" % (vTb, sReg, vL16),
             "v_cmp_ngt_f32 vcc, s%d, v%d" % (sT, vTc),
             "s_lshl_b32 s%d, s%d, 2" % (sG, sWv), "s_add_u32 s%d, s%d, 30720" % (sG, sG), "v_mov_b32 v%d, s%d" % (vT, sG),
             "s_cmp_lg_u64 vcc, 0", "s_cselect_b32 s%d, 1, 0" % sT, "v_mov_b32 v%d, 30720" % vT2, "v_mov_b32 v%d, s%d" % (L + 7, sT)]
    misc += xlane("v_add_f32", [L + i for i in range(7)], [E + i for i in range(7)])
    misc += ["v_lshrrev_b32 v%d, 3, v%d" % (vD + 1, vL), "v_and_b32 v%d, 7, v%d" % (vD + 2, vL), "v_and_b32 v%d, 6, v%d" % (vD + 3, vD + 1),
             "v_xor_b32 v%d, v%d, v%d" % (vD + 3, vD + 3, vD + 2), "v_lshlrev_b32 v%d, 4, v%d" % (vD + 3, vD + 3),
             "v_lshl_add_u32 v%d, v%d, 11, v%d" % (vD, vD + 1, vD + 3)]
    misc += ["v_add_u32 v%d, %d, v%d" % (vD + j, j * (16384 - 1024), vD) for j in range(1, 4)] + [
             "s_lshl_b32 s%d, s%d, 1" % (sOf3, sRB), "s_xor_b32 s%d, s%d, s%d" % (sOf3, sOf3, sCT), "s_and_b32 s%d, s%d, %d" % (sOf3, sOf3, O.x3mask),
             "s_lshl_b32 s%d, s%d, 16" % (sWo, sOf3), "s_mov_b32 s%d, 0" % sWc]
    per = (len(misc) + 19) // 20
    for i in range(20):
        a.e(wr[8 + i]); a.e(misc[per * i:per * (i + 1)])
    a.e(["ds_write_b128 v%d, %s offset:28672" % (vTa, vr(L, 4)), "ds_write_b128 v%d, %s offset:29696" % (vTa, vr(L + 4, 4)),
         "ds_write_b32 v%d, v%d" % (vT, L + 7), "s_waitcnt lgkmcnt(0)", "s_barrier"])
    PL = 208
    a.e(["ds_read_b128 %s, v%d" % (vr(216, 4), vT2), "ds_read_b128 %s, v%d offset:28672" % (vr(PL, 4), vTb), "ds_read_b128 %s, v%d offset:29696" % (vr(PL + 4, 4), vTb)])
    def rdP(rt): return ["ds_read_b128 %s, v%d offset:%d" % (vr(128 + 16 * (rt % 5) + 4 * i, 4), vTb, (rt * 4 + i) * 1024) for i in range(4)]
    for rt in range(3): a.e(rdP(rt))
    a.e(["s_waitcnt lgkmcnt(12)", "v_or3_b32 v216, v216, v217, v218", "v_or_b32 v216, v216, v219"])
    for i in range(7): a.e("v_add_f32 v%d, v%d, v%d" % (L + i, L + i, PL + i))
    a.e(["v_readfirstlane_b32 s%d, v216" % sT])
    for i in range(7): a.e("v_rcp_f32 v%d, v%d" % (L + i, L + i))
    a.e(["s_andn2_b32 s%d, s%d, s%d" % (sT, sT, sPass), "s_cbranch_scc1 L_slow"])
    def dma3(j): return "buffer_load_dwordx4 v%d, s[%d:%d], s%d offen offset:%d lds" % (vD + j, sWs, sWs + 3, sWo, j * 1024)
    inc3 = ["s_add_u32 s%d, s%d, 1" % (sWc, sWc), "s_xor_b32 s%d, s%d, s%d" % (sWo, sWc, sOf3), "s_lshl_b32 s%d, s%d, 16" % (sWo, sWo)]
    incO = ["s_add_u32 s%d, s%d, 1" % (sXc, sXc), "s_xor_b32 s%d, s%d, s%d" % (sT2, sXc, sOf3), "s_lshl_b32 s%d, s%d, 10" % (sT2, sT2),
            "v_add_u32 v%d, s%d, v%d" % (vS + 5, sT2, vL16)]
    if O.dbg3 & 1: inc3[1] = "s_and_b32 s%d, s%d, 3" % (sWo, sWc)
    if O.dbg3 & 2: incO[1] = "s_and_b32 s%d, s%d, 3" % (sT2, sXc)
    wq_ = []
    for sl in range(7):
        for j in range(4): wq_.append((sl, (["s_add_u32 m0, s%d, %d" % (sReg, sl * 4096), "s_nop 0"] if j == 0 else []) + [dma3(j)] + (inc3 if j == 3 else [])))
    wi = 0
    for rt in range(7):
        if rt + 3 < 7: a.e(rdP(rt + 3))
        a.e("s_waitcnt lgkmcnt(%d)" % (4 * min(3, 6 - rt)))
        pb = 128 + 16 * (rt % 5); ob = OK + 16 * rt; lp = L + rt
        def wnext(k_):
            nonlocal wi
            if k_ < O.w_n and wi < 28 and wq_[wi][0] <= rt: a.e(wq_[wi][1]); wi += 1
        wnext(0)
        for i in range(8): a.e("v_pk_add_f32 %s, %s, %s" % (vr(ob + 2 * i, 2), vr(ob + 2 * i, 2), vr(pb + 2 * i, 2)))
        wnext(2)
        for i in range(8):
            if lp % 2 == 0: a.e("v_pk_mul_f32 %s, %s, %s op_sel_hi:[1,0]" % (vr(ob + 2 * i, 2), vr(ob + 2 * i, 2), vr(lp, 2)))
            else: a.e("v_pk_mul_f32 %s, %s, %s op_sel:[0,1]" % (vr(ob + 2 * i, 2), vr(ob + 2 * i, 2), vr(lp - 1, 2)))
        wnext(1)
        for i in range(8): a.e("v_cvt_pk_bf16_f32 v%d, v%d, v%d" % (ob + i, ob + 2 * i, ob + 2 * i + 1))
        wnext(3)
        for p in range(2): a.e("buffer_store_dwordx4 %s, v%d, s[%d:%d], s%d offen offset:%d %s" % (vr(ob + 4 * p, 4), vL16, sO, sO + 3, sRt + rt, p * 1024, O.st_flags))
    stamp()
    WF, ACC3, aOF = 16, 64, 0
    nlate = min(O.w_late, 28 - wi)
    for _ in range(nlate): a.e(wq_[wi][1]); wi += 1
    a.e(["v_lshrrev_b32 v%d, 2, v%d" % (vT, vL), "v_bfe_u32 v%d, v%d, 1, 2" % (vT2, vT), "v_xor_b32 v%d, s%d, v%d" % (vT2, sWv, vT2),
         "v_lshlrev_b32 v%d, 5, v%d" % (vT2, vT2), "v_lshl_add_u32 v%d, v%d, 7, v%d" % (vT2, vT, vT2),
         "v_and_b32 v%d, 3, v%d" % (vT3, vL), "v_lshl_add_u32 v%d, v%d, 3, v%d" % (vT2, vT3, vT2),
         "v_add_u32 v%d, s%d, v%d" % (vR, sReg, vT2)])
    for i in range(1, 4): a.e("v_xor_b32 v%d, %d, v%d" % (vR + i, 32 * i, vR))
    a.e(["s_lshl_b32 s%d, s%d, 5" % (sT, sB), "s_add_u32 s%d, s%d, s%d" % (sT, sT, sH), "v_mov_b32 v%d, s%d" % (vTa, sT), "v_mov_b32 v%d, 1" % vTb,
         "s_lshr_b32 s%d, s%d, 1" % (sT, sRB), "s_lshl_b32 s%d, s%d, 5" % (sT, sT), "s_lshl_b32 s%d, s%d, 3" % (sG, sWv), "s_add_u32 s%d, s%d, s%d" % (sT, sT, sG),
         "v_mov_b32 v%d, s%d" % (vTc, sT)])
    if O.wsflag: a.e(flagp(vT) + ["v_add_u32 v%d, 1, v%d" % (vFo, vFo)])
    a.e(["s_waitcnt vmcnt(%d)" % nlate, "s_barrier"])
    stamp()
    if O.stamps: a.e("s_memrealtime s[6:7]")
    a.e(["s_cmp_lg_u32 s%d, 0" % sWv, "s_cbranch_scc1 L_noflag"])
    if O.wsflag: a.e(["s_mov_b64 exec, 0xffffffff", "global_store_dword v%d, v%d, s[%d:%d] sc1" % (vT, vFo, pWs, pWs + 1)])
    a.e(["s_mov_b64 exec, 1", "global_store_byte v%d, v%d, s[%d:%d] sc1" % (vTa, vTb, pDbg, pDbg + 1), "s_mov_b64 exec, -1"])
    a.lab("L_noflag")
    while wi < 28: a.e(wq_[wi][1]); wi += 1
    a.e(["s_add_u32 m0, s%d, %d" % (sReg, 7 * 4096), "s_nop 0"] + [dma3(j) for j in range(4)] + inc3)
    for i in range(7): a.e(zero16(vr(ACC3 + 16 * i, 16)))
    for i in range(4):
        a.e(["s_xor_b32 s%d, s%d, %d" % (sT, sReg, i << 15), "s_add_u32 s%d, s%d, %d" % (sT, sT, max(i - 1, 0) * 7168), "v_add_u32 v%d, s%d, v%d" % (vS + i, sT, vL16)])
    a.e(["v_and_b32 v%d, 15, v%d" % (vT, vL), "v_lshrrev_b32 v%d, 4, v%d" % (vT2, vL), "v_lshlrev_b32 v%d, 3, v%d" % (vT2, vT2),
         "v_lshl_add_u32 v%d, v%d, 11, v%d" % (vT, vT, vT2),
         "s_lshl_b32 s%d, s%d, 7" % (sT, sCT), "s_lshl_b32 s%d, s%d, 5" % (sG, sWv), "s_add_u32 s%d, s%d, s%d" % (sT, sT, sG),
         "v_add_u32 v%d, s%d, v%d" % (vS + 4, sT, vT),
         "s_mov_b32 s%d, -1" % sXc] + incO + [
         "s_mov_b32 s%d, s%d" % (sM3, sReg), "s_mov_b32 s%d, 0x%x" % (sCnt, 0 if O.nopoll else 0x40000)])
    def rd3(k):
        return ["ds_read_b64_tr_b16 %s, v%d offset:%d" % (vr(WF + 16 * (k & 1) + 4 * i + 2 * sec, 2), vR + i, (k & 3) * 4096 + sec * 2048)
                for i in range(4) for sec in range(2)]
    if O.wsflag: a.e(flagc(vT3))
    a.lab("L_poll")
    if O.wsflag:
        a.e(["global_load_dword v%d, v%d, s[%d:%d] sc1" % (vT, vT3, pWs, pWs + 1), "s_sub_u32 s%d, s%d, 1" % (sCnt, sCnt), "s_cbranch_scc1 L_go",
             "s_waitcnt vmcnt(0)", "v_cmp_eq_u32 vcc, v%d, v%d" % (vT, vFc), "s_nop 0", "s_cbranch_vccz L_go",
             "s_and_b32 s%d, s%d, 15" % (sT, sCnt), "s_cbranch_scc1 L_poll"])
    else: a.e(["s_sub_u32 s%d, s%d, 1" % (sCnt, sCnt), "s_cbranch_scc1 L_go"])
    a.e(["global_load_dwordx2 v[%d:%d], v%d, s[%d:%d] sc1" % (vTa, vTa + 1, vTc, pDbg, pDbg + 1), "s_waitcnt vmcnt(0)",
         "v_and_b32 v%d, v%d, v%d" % (vTa, vTa, vTa + 1), "s_nop 0", "v_readfirstlane_b32 s%d, v%d" % (sT, vTa),
         "s_nop 0", "s_cmp_eq_u32 s%d, 0x01010101" % sT, "s_cbranch_scc0 L_poll"])
    a.lab("L_go")
    stamp()
    if O.stamps: a.e(["s_memrealtime s[4:5]", "s_mov_b32 s10, s%d" % sCnt])
    def ldO(rt, km): return "buffer_load_dwordx4 %s, v%d, s[%d:%d], s%d offen %s" % (ar(aOF + 28 * km + 4 * rt, 4), vS + 5, sOs, sOs + 3, sRt + rt, O.ld_flags)
    a.e("s_waitcnt vmcnt(0)")
    for km in range(4): a.e([ldO(rt, km) for rt in range(7)] + incO)
    a.e(rd3(0))
    a.e(["s_mov_b32 s%d, 6" % sCnt, "s_waitcnt vmcnt(21) lgkmcnt(0)"])
    tog = ["v_xor_b32 v%d, 0x4000, v%d" % (vR + i, vR + i) for i in range(4)]
    def kstep(km, mode):
        mf = []; gaps = [[] for _ in range(28)]
        for rt in range(7):
            for i in range(4):
                c = vr(ACC3 + 16 * rt + 4 * i, 4)
                mf.append(mfma(c, vr(WF + 16 * (km & 1) + 4 * i, 4), ar(aOF + 28 * km + 4 * rt, 4), c))
        if not (mode == 2 and km == 3):
            for g, x in enumerate(rd3(km + 1)): gaps[g].append(x)
        if km == 2 and mode != 2:
            for i in range(4): gaps[10 + i].append(tog[i])
        if mode == 0:
            gaps[0].append("s_add_u32 m0, s%d, %d" % (sM3, km * 4096))
            for j in range(4): gaps[1 + 4 * j].insert(0, dma3(j))
            gaps[14] += inc3[:2]; gaps[15].append(inc3[2])
        if mode < 2:
            for rt in range(7): gaps[4 * rt + 3].insert(0, ldO(rt, km))
            gaps[17] += incO[:2]; gaps[18].append(incO[2]); gaps[27].append(incO[3])
        if mode == 0 and km == 3:
            gaps[16].append("s_xor_b32 s%d, s%d, 0x4000" % (sM3, sM3))
            gaps[20].append("s_sub_u32 s%d, s%d, 1" % (sCnt, sCnt)); gaps[21].append("s_cmp_lg_u32 s%d, 0" % sCnt)
        if mode == 0: n = O.n25
        elif mode == 1: n = 21
        else: n = (14, 7, 0, None)[km]
        if n is not None: gaps[27].append("s_waitcnt vmcnt(%d) lgkmcnt(0)" % n)
        if mode == 2 and km == 2: gaps[27].append("s_barrier")
        if mode == 2 and km == 3:
            for rt in range(5):
                for i in range(1, 4): gaps[4 * rt + 8 + i].append("ds_write_b128 v%d, %s offset:%d" % (vS + i, vr(ACC3 + 16 * rt + 4 * i, 4), rt * 1024))
        if O.dbg3 & 4: gaps = [[x for x in g if not x.endswith(" lds")] for g in gaps]
        if O.dbg3 & 8: gaps = [[x for x in g if not (x.startswith("buffer_load") and not x.endswith(" lds"))] for g in gaps]
        weave(a, mf, gaps)
    a.raw(".p2align 5")
    a.lab("L_p3")
    for km in range(4): kstep(km, 0)
    a.e("s_cbranch_scc1 L_p3")
    for km in range(4): kstep(km, 1)
    for km in range(4): kstep(km, 2)
    stamp()
    a.e("s_nop 1")
    for rt in range(5, 7):
        if rt == 6: a.e("s_nop 1")
        for i in range(1, 4): a.e("ds_write_b128 v%d, %s offset:%d" % (vS + i, vr(ACC3 + 16 * rt + 4 * i, 4), rt * 1024))
    a.e(["s_waitcnt lgkmcnt(0)", "s_barrier"])
    for rt in range(7):
        for i in range(1, 4): a.e("ds_read_b128 %s, v%d offset:%d" % (vr(ACC3 + 16 * rt + 4 * i, 4), vS, (i - 1) * 7168 + rt * 1024))
    for rt in range(7):
        a.e("s_waitcnt lgkmcnt(%d)" % min(15, 3 * (6 - rt)))
        b = ACC3 + 16 * rt
        for h in range(2):
            a.e("v_pk_add_f32 %s, %s, %s" % (vr(b + 2 * h, 2), vr(b + 2 * h, 2), vr(b + 4 + 2 * h, 2)))
            a.e("v_pk_add_f32 %s, %s, %s" % (vr(b + 8 + 2 * h, 2), vr(b + 8 + 2 * h, 2), vr(b + 12 + 2 * h, 2)))
        for h in range(2): a.e("v_pk_add_f32 %s, %s, %s" % (vr(b + 2 * h, 2), vr(b + 2 * h, 2), vr(b + 8 + 2 * h, 2)))
        a.e(["v_cvt_pk_bf16_f32 v%d, v%d, v%d" % (b, b, b + 1), "v_cvt_pk_bf16_f32 v%d, v%d, v%d" % (b + 1, b + 2, b + 3),
             "s_mov_b32 s%d, %d" % (sT, rt * 32768),
             "buffer_store_dwordx2 %s, v%d, s[%d:%d], s%d offen" % (vr(b, 2), vS + 4, sOut, sOut + 3, sT)])
    if O.stamps:
        a.e(["s_waitcnt vmcnt(0)"]); stamp()
        a.e(["s_memrealtime s[78:79]", "s_waitcnt lgkmcnt(0)", "s_lshl_b32 s%d, s2, 2" % sT, "s_add_u32 s%d, s%d, s%d" % (sT, sT, sWv), "s_lshl_b32 s%d, s%d, 6" % (sT, sT),
             "s_add_u32 s%d, s%d, 0x%x" % (sT, sT, STAMP_OFF),
             "s_add_u32 s%d, s%d, s%d" % (sO, pWs, sT), "s_addc_u32 s%d, s%d, 0" % (sO + 1, pWs + 1), "s_mov_b32 s%d, 64" % (sO + 2), "v_mov_b32 v%d, 0" % vT])
        for i in range(nst[0]):
            a.e(["s_sub_u32 s%d, s%d, s%d" % (sT, sST + 2 * i, sST), "v_mov_b32 v%d, s%d" % (vT2, sT),
                 "buffer_store_dword v%d, v%d, s[%d:%d], 0 offen offset:%d" % (vT2, vT, sO, sO + 3, 4 * i)])
        for i, r_ in enumerate((10, 6, 4, 101, 78)):
            a.e(["v_mov_b32 v%d, s%d" % (vT2, r_), "buffer_store_dword v%d, v%d, s[%d:%d], 0 offen offset:%d" % (vT2, vT, sO, sO + 3, 44 + 4 * i)])
    if O.ts:
        a.e(["s_lshl_b32 s%d, s2, 9" % sT, "s_add_u32 s%d, s%d, 0x%x" % (sT, sT, STAMP_OFF + 0x200000),
             "s_add_u32 s%d, s%d, s%d" % (sO, pWs, sT), "s_addc_u32 s%d, s%d, 0" % (sO + 1, pWs + 1), "s_mov_b32 s%d, 512" % (sO + 2),
             "v_lshlrev_b32 v%d, 2, v%d" % (vT, vL),
             "buffer_store_dword v255, v%d, s[%d:%d], 0 offen" % (vT, sO, sO + 3), "buffer_store_dword v0, v%d, s[%d:%d], 0 offen offset:256" % (vT, sO, sO + 3)])
    a.lab("L_end")
    a.e("s_endpgm")

    a.lab("L_slow")
    a.e(["s_waitcnt vmcnt(0) lgkmcnt(0)", "s_barrier", "s_mov_b32 s%d, 1" % sPass, "s_mov_b32 s%d, 16" % sCnt,
         "s_mov_b32 s%d, 0" % sK0, "s_mov_b32 s%d, s%d" % (sRegD, sReg)])
    for rt in range(7): a.e("v_mov_b32 v%d, 0xff800000" % (M + 4 * rt))
    a.lab("L_slow_loop")
    a.e(kvtile(0))
    a.e(["s_waitcnt vmcnt(0)", "s_barrier"])
    a.e([rdK(i, 0) for i in range(8)])
    a.e(["s_waitcnt lgkmcnt(0)", "s_barrier"])
    for rt in range(7):
        for i in range(8):
            t, ks = i & 1, i >> 1
            d = vr(S + 4 * t, 4)
            a.e(mfma(d, ar(aK + 16 * t + 4 * ks, 4), ar(aQ + 16 * rt + 4 * ks, 4), "0" if ks == 0 else d))
        a.e("s_nop 7")
        for i in range(4): a.e("v_max3_f32 v%d, v%d, v%d, v%d" % (M + 4 * rt, M + 4 * rt, S + 2 * i, S + 2 * i + 1))
    a.e(["s_sub_u32 s%d, s%d, 1" % (sCnt, sCnt), "s_cmp_lg_u32 s%d, 0" % sCnt, "s_cbranch_scc1 L_slow_loop"])
    a.e(xlane("v_max_f32", [M + 4 * rt for rt in range(7)], [M + 4 * rt + 1 for rt in range(7)]))
    a.e(["s_lshl_b32 s%d, s%d, 13" % (sG, sWv), "s_add_u32 s%d, s%d, 131072" % (sG, sG), "v_add_u32 v%d, s%d, v%d" % (vTc, sG, vL16),
         "v_xor_b32 v%d, 16384, v%d" % (vT3, vTc)])
    for rt in range(7): a.e("ds_write_b32 v%d, v%d offset:%d" % (vTc, M + 4 * rt, rt * 1024))
    a.e(["s_waitcnt lgkmcnt(0)", "s_barrier"])
    for rt in range(7): a.e("ds_read_b32 v%d, v%d offset:%d" % (M + 4 * rt + 1, vT3, rt * 1024))
    a.e(["s_mov_b32 s%d, 0" % sK0])
    for tl in range(3): a.e(kvtile(tl))
    a.e([m0KV(3, 0), "s_nop 0"] + [dmaKV(i) for i in range(NA)])
    for i in range(7): a.e(zero16(vr(OK + 16 * i, 16)))
    for i in range(7): a.e(zero16(ar(aO + 16 * i, 16)))
    a.e("s_waitcnt lgkmcnt(0)")
    for rt in range(7): a.e("v_max_f32 v%d, v%d, v%d" % (M + 4 * rt, M + 4 * rt, M + 4 * rt + 1))
    a.e(["s_waitcnt vmcnt(%d)" % (8 + NA), "s_barrier"])
    a.e([rdK(i, 0) for i in range(8)])
    a.e("s_branch L_setm")
    a.lab("L_code_end")

def build():
    ref = open("cdna_kernels/%s.s.ref" % NAME).read()
    hdr = ref.split("; Override launch")[0]
    a = Asm()
    k = NAME + "_kernel"
    a.raw(".amdgcn_target \"amdgcn-amd-amdhsa--gfx950\"\n.text")
    a.raw(".globl %s\n.p2align 8\n.type %s,@function" % (k, k))
    kernel(a)
    for e in check(a.L): print(e, file=sys.stderr)
    t = hdr + "; @launch grid=(256,1,1) block=(256,1,1) lds=163840\n" + a.text()
    t += """.section .rodata,"a"
.p2align 6
.amdhsa_kernel %s
  .amdhsa_next_free_vgpr 512
  .amdhsa_next_free_sgpr 102
  .amdhsa_accum_offset 256
  .amdhsa_group_segment_fixed_size 0
  .amdhsa_kernarg_size 64
  .amdhsa_user_sgpr_count 2
  .amdhsa_user_sgpr_kernarg_segment_ptr 1
  .amdhsa_system_sgpr_workgroup_id_x 1
.end_amdhsa_kernel
""" % k
    return t

if __name__ == "__main__":
    out = sys.argv[1] if len(sys.argv) > 1 else "cdna_kernels/%s.s" % NAME
    for kv in sys.argv[2:]:
        k, v = kv.split("=")
        cur = getattr(O, k)
        setattr(O, k, (v == "1") if isinstance(cur, bool) else type(cur)(v))
    open(out, "w").write(build())
```

```python
import sys, math, struct
from asmlib import *

NAME = "standalone__mha_block_cached__near_ridge"
def f32(x): return struct.unpack("<I", struct.pack("<f", x))[0]
CSCALE = f32(128 ** -0.5 * math.log2(math.e))
THR = f32(2.0 ** 30)

class Opt:
    stamps = False
    ts = False
    kv_nt = True
    nxe = 5
    p1_span = 26
    force_slow = False
    pf_xw = True
    pf_wo = True
    pf_code = True
    w_n = 4
    w_late = 4
    wl2 = 2
    wpf = 0
O = Opt()
STAMP_OFF = 0x8000000
FLAG_OFF = 0x1000000

def zero16(d): return "v_mfma_f32_32x32x16_bf16 %s, v[12:15], v[12:15], 0" % d

class VM:
    def __init__(self, init): self.ops = list(init)
    def issue(self, tag): self.ops.append(tag)
    def n(self, tag):
        idx = max(i for i, t in enumerate(self.ops) if t == tag)
        return min(63, len(self.ops) - 1 - idx)

def kernel(a):
    KVF = " nt" if O.kv_nt else ""
    pX, pK, pV, pWq, pWo, pOut, pDbg, pWs = 4, 6, 8, 10, 12, 14, 16, 18
    sX, sW, sKV, sO, sOs, sWs, sOut = 20, 24, 28, 32, 36, 40, 44
    (sWv, sB, sH, sRH, sKH, sXoff, sWoff, sCnt, sMX, sMW, sReg, sRing, sSp, sG, sFlip, sK0, sPass, sT, sT2, sRB, sCT, sWo, sD1, sD2) = range(48, 72)
    sC = 72; sRt = 74; sPC = 82; sST = 84
    vL, vT, vT2, vT3, vL16 = 1, 2, 3, 4, 5
    vKV, vW = 6, 10
    OK, ACC = 16, 128
    S, E, P, V, M, L = 128, 144, 152, 160, 192, 220
    vTa, vTb, vTc = 234, 235, 236
    vX, vXr, vWr = 240, 247, 251
    vKr, vVr, vK0 = 240, 241, 243
    vD, vR = 244, 248
    vQw, vQr = 10, 2
    vFo, vFc, vDum = 254, 255, 253
    aQ, aO, aK = 0, 112, 224
    aXF, aWF = 0, 224
    nst = [0]
    def stamp():
        if O.stamps:
            assert nst[0] < 9
            a.e("s_memrealtime s[%d:%d]" % (sST + 2 * nst[0], sST + 2 * nst[0] + 1)); nst[0] += 1
    def flagp(v):
        return ["s_lshl_b32 s%d, s%d, 2" % (sT, sB), "s_lshr_b32 s%d, s%d, 3" % (sG, sH), "s_add_u32 s%d, s%d, s%d" % (sT, sT, sG), "s_lshl_b32 s%d, s%d, 12" % (sT, sT),
                "s_and_b32 s%d, s%d, 7" % (sG, sH), "s_lshl_b32 s%d, s%d, 2" % (sG, sG), "s_add_u32 s%d, s%d, s%d" % (sT, sT, sG), "s_add_u32 s%d, s%d, 0x%x" % (sT, sT, FLAG_OFF),
                "v_and_b32 v%d, 31, v%d" % (v, vL), "v_lshlrev_b32 v%d, 7, v%d" % (v, v), "v_add_u32 v%d, s%d, v%d" % (v, sT, v)]
    def flagc(v):
        return ["s_lshr_b32 s%d, s%d, 1" % (sT, sRB), "s_lshl_b32 s%d, s%d, 2" % (sT, sT), "s_add_u32 s%d, s%d, s%d" % (sT, sT, sWv), "s_lshl_b32 s%d, s%d, 5" % (sT, sT),
                "s_and_b32 s%d, s%d, 1" % (sG, sRB), "s_lshl_b32 s%d, s%d, 4" % (sG, sG), "s_add_u32 s%d, s%d, s%d" % (sG, sG, sCT), "s_add_u32 s%d, s%d, s%d" % (sT, sT, sG),
                "s_lshl_b32 s%d, s%d, 7" % (sT, sT), "s_add_u32 s%d, s%d, 0x%x" % (sT, sT, FLAG_OFF),
                "v_and_b32 v%d, 7, v%d" % (v, vL), "v_lshlrev_b32 v%d, 2, v%d" % (v, v), "v_add_u32 v%d, s%d, v%d" % (v, sT, v)]
    def codepf(lo, hi, t0):
        return ["v_lshlrev_b32 v%d, 7, v0" % t0, "v_min_u32 v%d, %s-%s-4, v%d" % (t0, hi, lo, t0), "v_add_u32 v%d, %s-L_pc, v%d" % (t0, lo, t0),
                "v_mov_b32 v%d, s%d" % (t0 + 1, sPC + 1), "v_add_co_u32 v%d, vcc, s%d, v%d" % (t0, sPC, t0), "s_nop 1",
                "v_addc_co_u32 v%d, vcc, 0, v%d, vcc" % (t0 + 1, t0 + 1), "global_load_dword v%d, v[%d:%d], off" % (vDum, t0, t0 + 1)]

    a.lab(NAME + "_kernel")
    a.e(["s_cmp_ge_u32 s2, 256", "s_cbranch_scc1 L_end",
         "s_load_dwordx8 s[4:11], s[0:1], 0", "s_load_dwordx8 s[12:19], s[0:1], 32"])
    stamp()
    a.e(["s_getpc_b64 s[%d:%d]" % (sPC, sPC + 1)])
    a.lab("L_pc")
    if O.pf_code: a.e(codepf("L_pc", "L_end", vT))
    a.e(["s_mov_b32 s%d, 0" % sPass,
         "v_and_b32 v%d, 63, v0" % vL, "v_lshrrev_b32 v%d, 6, v0" % vT,
         "s_and_b32 s%d, s2, 7" % sT, "s_lshr_b32 s%d, s2, 3" % sT2,
         "v_readfirstlane_b32 s%d, v%d" % (sWv, vT),
         "s_and_b32 s%d, s%d, 1" % (sB, sT), "s_lshl_b32 s%d, s%d, 3" % (sCT, sB), "s_lshl_b32 s%d, s%d, 2" % (sB, sB),
         "s_and_b32 s%d, s%d, 3" % (sG, sT2), "s_add_u32 s%d, s%d, s%d" % (sB, sB, sG),
         "s_lshr_b32 s%d, s%d, 1" % (sH, sT), "s_lshl_b32 s%d, s%d, 2" % (sRB, sH), "s_add_u32 s%d, s%d, s%d" % (sRB, sRB, sG), "s_lshl_b32 s%d, s%d, 3" % (sH, sH),
         "s_lshr_b32 s%d, s%d, 2" % (sG, sT2), "s_add_u32 s%d, s%d, s%d" % (sH, sH, sG), "s_add_u32 s%d, s%d, s%d" % (sCT, sCT, sG),
         "s_and_b32 s%d, s%d, 1" % (sRH, sWv), "s_lshr_b32 s%d, s%d, 1" % (sKH, sWv)])
    a.e(flagp(vFo) + flagc(vFc))
    a.e(["s_lshl_b32 s%d, s%d, 15" % (sMX, sKH), "s_mul_i32 s%d, s%d, 7168" % (sT, sRH),
         "s_add_u32 s%d, s%d, s%d" % (sMX, sMX, sT), "s_add_u32 s%d, s%d, 16384" % (sMX, sMX),
         "s_lshl_b32 s%d, s%d, 11" % (sMW, sWv), "s_add_u32 s%d, s%d, 131072" % (sMW, sMW),
         "s_lshl_b32 s%d, s%d, 15" % (sReg, sWv),
         "s_mov_b32 s%d, 458752" % (sX + 2), "s_mov_b32 s%d, 0x20000" % (sX + 3), "s_mov_b32 s%d, 0x20000" % (sW + 3),
         "s_mul_i32 s%d, s%d, 458752" % (sD1, sB), "s_lshl_b32 s%d, s%d, 8" % (sD2, sH), "s_sub_u32 s%d, 0x800000, s%d" % (sW + 2, sD2)])
    def lane_setup():
        o = ["v_lshrrev_b32 v%d, 3, v%d" % (vT, vL), "v_and_b32 v%d, 7, v%d" % (vT2, vL), "v_and_b32 v%d, 6, v%d" % (vT3, vT),
             "v_xor_b32 v%d, v%d, v%d" % (vT3, vT3, vT2), "v_lshlrev_b32 v%d, 4, v%d" % (vT3, vT3),
             "v_lshl_add_u32 v%d, v%d, 11, v%d" % (vX, vT, vT3),
             "s_mul_i32 s%d, s%d, %d" % (sT, sWv, 7 * 16384), "v_add_u32 v%d, s%d, v%d" % (vX, sT, vX)]
        o += ["v_add_u32 v%d, %d, v%d" % (vX + j, j * 16384 - (j & 3) * 1024, vX) for j in range(1, 7)]
        o += ["v_and_b32 v%d, 2, v%d" % (vT3, vT), "v_lshlrev_b32 v%d, 1, v%d" % (vT3, vT3),
              "v_xor_b32 v%d, v%d, v%d" % (vT3, vT3, vT2), "v_lshlrev_b32 v%d, 4, v%d" % (vT3, vT3),
              "v_lshl_add_u32 v%d, v%d, 13, v%d" % (vW, vT, vT3),
              "s_lshl_b32 s%d, s%d, 17" % (sT, sRH), "s_lshl_b32 s%d, s%d, 7" % (sG, sKH), "s_add_u32 s%d, s%d, s%d" % (sT, sT, sG),
              "v_add_u32 v%d, s%d, v%d" % (vW, sT, vW), "v_add_u32 v%d, %d, v%d" % (vW + 1, 8 * 8192 - 1024, vW)]
        return o
    a.e(lane_setup())
    a.e(["s_waitcnt lgkmcnt(0)",
         "s_add_u32 s%d, s%d, s%d" % (sW, pWq, sD2), "s_addc_u32 s%d, s%d, 0" % (sW + 1, pWq + 1),
         "s_add_u32 s%d, s%d, s%d" % (sX, pX, sD1), "s_addc_u32 s%d, s%d, 0" % (sX + 1, pX + 1),
         "global_load_dword v%d, v%d, s[%d:%d] sc1" % (vFo, vFo, pWs, pWs + 1), "global_load_dword v%d, v%d, s[%d:%d] sc1" % (vFc, vFc, pWs, pWs + 1)])
    a.lab("L_restart")

    TS_A = ["s_memrealtime s[100:101]"]
    TS_B = ["s_mov_b32 s3, m0", "s_mov_b32 m0, s81", "v_writelane_b32 v252, s100, m0", "s_add_u32 s81, s81, 1", "s_mov_b32 m0, s3"]
    def dmaX(j): return "buffer_load_dwordx4 v%d, s[%d:%d], s%d offen offset:%d lds" % (vX + j, sX, sX + 3, sXoff, (j & 3) * 1024)
    def m0X(buf, hi): return "s_add_u32 m0, s%d, %d" % (sMX, buf * 65536 + hi * 4096)
    def dmaW(j): return "buffer_load_dwordx4 v%d, s[%d:%d], s%d offen offset:%d lds" % (vW + j, sW, sW + 3, sWoff, j * 1024)
    def m0W(slot): return "s_add_u32 m0, s%d, %d" % (sMW, slot * 8192)
    def dmaKV(i): return "buffer_load_dwordx4 v%d, s[%d:%d], s%d offen offset:%d%s lds" % (vKV + (i & 3), sKV, sKV + 3, sK0, (i & 3) * 1024, KVF)
    def m0KV(slot, hi): return "s_add_u32 m0, s%d, %d" % (sReg, slot * 8192 + hi * 4096)
    incK = "s_add_u32 s%d, s%d, 4096" % (sK0, sK0)
    def kvtile(slot): return [m0KV(slot, 0), "s_nop 0"] + [dmaKV(i) for i in range(4)] + [m0KV(slot, 1), incK] + [dmaKV(i) for i in range(4, 8)] + [incK]
    incW = "s_add_u32 s%d, s%d, 262144" % (sWoff, sWoff)
    incX = "s_add_u32 s%d, s%d, 128" % (sXoff, sXoff)
    vKw = vT2
    kvw_m0 = "s_add_u32 m0, s%d, s%d" % (sReg, sK0)
    kvw = "buffer_load_dwordx4 v%d, s[%d:%d], s%d offen%s lds" % (vKw, sKV, sKV + 3, sK0, KVF)
    kvw_inc = "s_add_u32 s%d, s%d, 1024" % (sK0, sK0)

    a.e(["s_mov_b32 s%d, 0" % sXoff, "s_mov_b32 s%d, 0" % sWoff])
    for st in range(2):
        a.e([m0W(2 * st), "s_nop 0", dmaW(0), dmaW(1), m0X(st, 0), incW])
        a.e([dmaX(j) for j in range(4)] + [m0X(st, 1), "s_nop 0"] + [dmaX(j) for j in range(4, 7)])
        a.e([m0W(2 * st + 1), incX, dmaW(0), dmaW(1), incW])
        if st == 0:
            a.e(["s_and_b32 s%d, s%d, s%d" % (sFlip, sRH, sKH), "s_lshl_b32 s%d, s%d, 7" % (sFlip, sFlip),
                 "s_cmp_eq_u32 s%d, 0" % sRH, "s_cselect_b32 s%d, s%d, s%d" % (sKV, pK, pV), "s_cselect_b32 s%d, s%d, s%d" % (sKV + 1, pK + 1, pV + 1),
                 "s_lshl_b32 s%d, s%d, 5" % (sT, sB), "s_add_u32 s%d, s%d, s%d" % (sT, sT, sH), "s_lshl_b32 s%d, s%d, 1" % (sT, sT),
                 "s_add_u32 s%d, s%d, s%d" % (sT, sT, sKH), "s_lshl_b32 s%d, s%d, 17" % (sT, sT),
                 "s_add_u32 s%d, s%d, s%d" % (sKV, sKV, sT), "s_addc_u32 s%d, s%d, 0" % (sKV + 1, sKV + 1),
                 "s_mov_b32 s%d, 131072" % (sKV + 2), "s_mov_b32 s%d, 0x20000" % (sKV + 3), "s_mov_b32 s%d, 0" % sK0,
                 "v_bfe_u32 v%d, v%d, 2, 2" % (vT, vL), "v_lshrrev_b32 v%d, 4, v%d" % (vT2, vL), "v_lshlrev_b32 v%d, 6, v%d" % (vT2, vT2),
                 "v_xor_b32 v%d, s%d, v%d" % (vT2, sFlip, vT2), "v_lshl_add_u32 v%d, v%d, 8, v%d" % (vT2, vT, vT2),
                 "v_and_b32 v%d, 3, v%d" % (vT, vL), "v_lshl_add_u32 v%d, v%d, 4, v%d" % (vKV, vT, vT2),
                 kvw_m0, "s_nop 0", dmaKV(0), kvw_inc])
    big = ["v_add_u32 v%d, 0x40000000, v%d" % (vT3, vT3)] if not O.pf_xw else []
    a.e(["s_mul_i32 s%d, s%d, 14336" % (sT, sH), "s_lshl_b32 s%d, s%d, 12" % (sG, sWv), "s_add_u32 s%d, s%d, s%d" % (sT, sT, sG),
         "v_and_b32 v%d, 31, v%d" % (vT3, vL), "v_lshlrev_b32 v%d, 7, v%d" % (vT3, vT3)] + big + [
         "buffer_load_dword v%d, v%d, s[%d:%d], s%d offen" % (vDum, vT3, sX, sX + 3, sT),
         "s_lshl_b32 s%d, s%d, 2" % (sT, sB), "s_add_u32 s%d, s%d, s%d" % (sT, sT, sWv), "s_lshl_b32 s%d, s%d, 18" % (sT, sT),
         "v_lshrrev_b32 v%d, 1, v%d" % (vT3, vL), "v_lshlrev_b32 v%d, 13, v%d" % (vT3, vT3),
         "v_and_b32 v%d, 1, v%d" % (vT2, vL), "v_lshl_add_u32 v%d, v%d, 7, v%d" % (vT3, vT2, vT3)] + big + [
         "buffer_load_dword v%d, v%d, s[%d:%d], s%d offen" % (vDum, vT3, sW, sW + 3, sT)])
    for i in range(1, 4): a.e("v_xor_b32 v%d, %d, v%d" % (vKV + i, ((-i) & 3) * 16, vKV))
    a.e(["v_mov_b32 v%d, 0" % i for i in range(12, 16)])
    a.e(["v_lshlrev_b32 v%d, 4, v%d" % (vL16, vL),
         "v_and_b32 v%d, 15, v%d" % (vT, vL), "v_lshrrev_b32 v%d, 4, v%d" % (vT2, vL),
         "v_and_b32 v%d, 6, v%d" % (vT3, vT), "v_xor_b32 v%d, v%d, v%d" % (vT3, vT3, vT2), "v_lshlrev_b32 v%d, 4, v%d" % (vT3, vT3),
         "v_lshl_add_u32 v%d, v%d, 7, v%d" % (vT3, vT, vT3),
         "s_lshl_b32 s%d, s%d, 15" % (sT, sRH), "s_add_u32 s%d, s%d, 16384" % (sT, sT),
         "v_add_u32 v%d, s%d, v%d" % (vXr, sT, vT3), "v_xor_b32 v%d, 64, v%d" % (vXr + 1, vXr),
         "v_add_u32 v%d, 0x10000, v%d" % (vXr + 2, vXr), "v_add_u32 v%d, 0x10000, v%d" % (vXr + 3, vXr + 1)])
    for i in range(7): a.e(zero16(vr(ACC + 16 * i, 16)))
    a.e(["v_bfe_u32 v%d, v%d, 2, 2" % (vT, vL), "v_lshl_add_u32 v%d, v%d, 3, v%d" % (vT, vT2, vT),
         "v_and_b32 v%d, 2, v%d" % (vT3, vT), "v_lshlrev_b32 v%d, 1, v%d" % (vT3, vT3),
         "v_and_b32 v%d, 3, v%d" % (vT2, vL), "v_xor_b32 v%d, v%d, v%d" % (vT3, vT3, vT2), "v_lshlrev_b32 v%d, 4, v%d" % (vT3, vT3),
         "v_lshl_add_u32 v%d, v%d, 7, v%d" % (vT3, vT, vT3),
         "s_lshl_b32 s%d, s%d, 12" % (sT, sKH), "s_add_u32 s%d, s%d, 131072" % (sT, sT),
         "v_add_u32 v%d, s%d, v%d" % (vWr, sT, vT3), "v_xor_b32 v%d, 64, v%d" % (vWr + 1, vWr)])
    for i in range(7): a.e(zero16(vr(OK + 16 * i, 16)))
    for i in range(7): a.e(zero16(ar(aO + 16 * i, 16)))
    a.e(["s_mul_i32 s%d, s%d, 14" % (sT, sB), "s_mul_i32 s%d, s%d, 7" % (sG, sRH), "s_add_u32 s%d, s%d, s%d" % (sT, sT, sG),
         "s_lshl_b32 s%d, s%d, 7" % (sT, sT), "s_lshl_b32 s%d, s%d, 2" % (sG, sH), "s_add_u32 s%d, s%d, s%d" % (sT, sT, sG),
         "s_lshl_b32 s%d, s%d, 1" % (sG, sKH), "s_add_u32 s%d, s%d, s%d" % (sT, sT, sG), "s_lshl_b32 s%d, s%d, 10" % (sT, sT),
         "s_add_u32 s%d, s%d, s%d" % (sO, pWs, sT), "s_addc_u32 s%d, s%d, 0" % (sO + 1, pWs + 1),
         "s_mov_b32 s%d, %d" % (sO + 2, 6 * 131072 + 2048), "s_mov_b32 s%d, 0x20000" % (sO + 3),
         "s_mov_b32 s%d, 0x%x" % (sC, CSCALE), "s_mov_b32 s%d, 0x%x" % (sC + 1, CSCALE),
         "s_mul_i32 s%d, s%d, %d" % (sT, sRB, 7 * 131072), "s_add_u32 s%d, s%d, s%d" % (sT, sT, sReg),
         "s_add_u32 s%d, s%d, s%d" % (sOs, pWs, sT), "s_addc_u32 s%d, s%d, 0" % (sOs + 1, pWs + 1),
         "s_mov_b32 s%d, %d" % (sOs + 2, 6 * 131072 + 32768), "s_mov_b32 s%d, 0x20000" % (sOs + 3),
         "s_lshl_b32 s%d, s%d, 21" % (sT, sWv), "s_lshl_b32 s%d, s%d, 7" % (sG, sCT), "s_add_u32 s%d, s%d, s%d" % (sT, sT, sG),
         "s_add_u32 s%d, s%d, s%d" % (sWs, pWo, sT), "s_addc_u32 s%d, s%d, 0" % (sWs + 1, pWo + 1),
         "s_sub_u32 s%d, 0x200000, s%d" % (sWs + 2, sG), "s_mov_b32 s%d, 0x20000" % (sWs + 3),
         "s_mul_i32 s%d, s%d, %d" % (sT, sRB, 112 * 2048), "s_add_u32 s%d, s%d, s%d" % (sOut, pOut, sT), "s_addc_u32 s%d, s%d, 0" % (sOut + 1, pOut + 1),
         "s_mov_b32 s%d, %d" % (sOut + 2, 112 * 2048), "s_mov_b32 s%d, 0x20000" % (sOut + 3),
         "s_xor_b32 s%d, s%d, 0x10000" % (sRing, sReg),
         "s_lshl_b32 s%d, s%d, 13" % (sSp, sWv), "s_add_u32 s%d, s%d, 131072" % (sSp, sSp),
         "s_sub_u32 s%d, s%d, s%d" % (sD1, sSp, sReg), "s_sub_u32 s%d, s%d, s%d" % (sD2, sRing, sSp)])
    for rt in range(7): a.e("s_mov_b32 s%d, %d" % (sRt + rt, rt * 131072))
    a.e("v_mov_b32 v%d, v%d" % (vKw, vKV))

    def rdW(k):
        out = []
        for dt in range(4):
            dp, t = dt >> 1, dt & 1
            for sec in range(2):
                out.append("ds_read_b64_tr_b16 %s, v%d offset:%d" % (ar(aWF + 16 * (k & 1) + 4 * dt + 2 * sec, 2), vWr + dp, (k & 3) * 8192 + sec * 512 + t * 8))
        return out
    def rdX(s):
        return ["ds_read_b128 %s, v%d offset:%d" % (ar(aXF + 56 * (s & 1) + 28 * kk + 4 * rt, 4), vXr + 2 * (s & 1) + kk, rt * 2048)
                for kk in range(2) for rt in range(7)]
    a.e(["s_waitcnt vmcnt(16)", "s_barrier"])
    stamp()
    a.e(rdW(0) + rdX(0))
    a.e(["s_mov_b32 s%d, 7" % sCnt, "s_waitcnt vmcnt(14) lgkmcnt(0)", "s_barrier"])

    addr29 = ["v_bfe_u32 v%d, v%d, 2, 2" % (vT, vL), "v_sub_u32 v%d, 0, v%d" % (vT2, vT), "v_lshrrev_b32 v%d, 4, v%d" % (vT3, vL),
              "v_xor_b32 v%d, v%d, v%d" % (vT2, vT2, vT3), "v_and_b32 v%d, 3, v%d" % (vT2, vT2), "v_lshlrev_b32 v%d, 4, v%d" % (vT2, vT2),
              "v_lshl_add_u32 v%d, v%d, 10, v%d" % (vT2, vT, vT2), "v_and_b32 v%d, 3, v%d" % (vK0, vL),
              "v_lshl_add_u32 v%d, v%d, 6, v%d" % (vK0, vK0, vT2),
              "s_lshl_b32 s%d, s%d, 16" % (sG, sKH), "v_add_u32 v%d, s%d, v%d" % (vKr, sG, vK0),
              "v_sub_u32 v%d, 0, v%d" % (vT2, vT3), "v_bfe_u32 v%d, v%d, 1, 1" % (vVr + 1, vL), "v_xor_b32 v%d, v%d, v%d" % (vT2, vT2, vVr + 1),
              "v_and_b32 v%d, 3, v%d" % (vT2, vT2), "v_lshlrev_b32 v%d, 4, v%d" % (vT2, vT2),
              "v_lshl_add_u32 v%d, v%d, 10, v%d" % (vT2, vT3, vT2), "v_lshl_add_u32 v%d, v%d, 6, v%d" % (vT2, vT, vT2),
              "v_and_b32 v%d, 1, v%d" % (vVr + 1, vL), "v_lshl_add_u32 v%d, v%d, 3, v%d" % (vT2, vVr + 1, vT2),
              "s_add_u32 s%d, s%d, 32768" % (sG, sG), "v_add_u32 v%d, s%d, v%d" % (vVr, sG, vT2), "v_xor_b32 v%d, 32, v%d" % (vVr + 1, vVr)]
    addr30 = ["v_lshrrev_b32 v%d, 3, v%d" % (vT, vL), "v_and_b32 v%d, 7, v%d" % (vT2, vL), "v_and_b32 v%d, 6, v%d" % (vT3, vT),
              "v_xor_b32 v%d, v%d, v%d" % (vT3, vT3, vT2), "v_lshlrev_b32 v%d, 4, v%d" % (vT3, vT3),
              "v_lshl_add_u32 v%d, v%d, 11, v%d" % (vD, vT, vT3)]
    addr30 += ["v_add_u32 v%d, %d, v%d" % (vD + j, j * (16384 - 1024), vD) for j in range(1, 4)]
    addr30 += ["v_lshrrev_b32 v%d, 2, v%d" % (vT, vL), "v_bfe_u32 v%d, v%d, 1, 2" % (vT2, vT), "v_xor_b32 v%d, s%d, v%d" % (vT2, sWv, vT2),
               "v_lshlrev_b32 v%d, 5, v%d" % (vT2, vT2), "v_lshl_add_u32 v%d, v%d, 7, v%d" % (vT2, vT, vT2),
               "v_and_b32 v%d, 3, v%d" % (vT3, vL), "v_lshl_add_u32 v%d, v%d, 3, v%d" % (vT2, vT3, vT2),
               "v_add_u32 v%d, s%d, v%d" % (vR, sReg, vT2)]
    addr31 = ["v_xor_b32 v%d, %d, v%d" % (vR + i, 32 * i, vR) for i in range(1, 4)]
    npf = 0
    if O.pf_code: addr31 += codepf("L_setm", "L_epi", vT); npf += 1
    if O.pf_wo:
        addr31 += ["s_lshl_b32 s%d, s2, 2" % sT, "s_add_u32 s%d, s%d, s%d" % (sT, sT, sWv), "s_lshl_b32 s%d, s%d, 13" % (sT, sT),
                   "v_lshlrev_b32 v%d, 7, v%d" % (vT, vL), "v_add_u32 v%d, s%d, v%d" % (vT, sT, vT),
                   "global_load_dword v%d, v%d, s[%d:%d]" % (vDum, vT, pWo, pWo + 1)]; npf += 1
    addr31 += ["v_add_u32 v%d, s%d, v%d" % (vQw, sSp, vL16),
               "s_add_u32 s%d, s%d, 24576" % (sT, sReg), "v_add_u32 v%d, s%d, v%d" % (vQw + 1, sT, vL16),
               "s_lshl_b32 s%d, s%d, 13" % (sT, sRH), "s_add_u32 s%d, s%d, 131072" % (sT, sT), "v_add_u32 v%d, s%d, v%d" % (vQr, sT, vL16),
               "s_lshl_b32 s%d, s%d, 15" % (sT, sRH), "s_add_u32 s%d, s%d, 24576" % (sT, sT), "v_add_u32 v%d, s%d, v%d" % (vQr + 1, sT, vL16),
               "v_add_u32 v%d, 0x10000, v%d" % (vQr + 2, vQr + 1)]

    def p1_kstep(km, mode, ctl=False):
        sp, kk = km >> 1, km & 1
        mf = []
        for rt in range(7):
            for dt in range(4):
                c = vr(ACC + 16 * rt + 4 * dt, 4)
                mf.append(mfma(c, ar(aWF + 16 * (km & 1) + 4 * dt, 4), ar(aXF + 56 * sp + 28 * kk + 4 * rt, 4), c))
        gaps = [[] for _ in range(28)]
        rd = []
        if mode != 31: rd += rdW(km + 1)
        if kk == 1 and mode != 31: rd += rdX(sp + 1)
        dm = []; nxe = O.nxe
        if mode == "loop":
            def xs(js):
                r = []
                for j in js:
                    if j == 4 and j != js[0]: r += [m0X(sp, 1)]
                    r.append(dmaX(j))
                return r
            if kk == 0: dm += [m0W(km), dmaW(0), dmaW(1), m0X(sp, 0), incW] + xs(list(range(nxe)))
            else:
                if nxe < 7: dm += ([m0X(sp, 1)] if nxe == 4 else []) + xs(list(range(nxe, 7)))
                dm += [m0W(km), incX, dmaW(0), "v_xor_b32 v%d, %d, v%d" % (vKw, 48 if km == 1 else 16, vKw), dmaW(1), kvw_m0, incW, kvw, kvw_inc]
            endw = "s_waitcnt vmcnt(%d) lgkmcnt(0)" % ((5 + nxe) if kk == 0 else 13)
        elif mode == 28:
            dm += [kvw_m0, "v_xor_b32 v%d, 48, v%d" % (vKw, vKw), kvw, kvw_inc]
            endw = "s_waitcnt vmcnt(4) lgkmcnt(0)"
        elif mode == 29: endw = "s_waitcnt vmcnt(2) lgkmcnt(0)"
        elif mode == 30:
            dm += [m0KV(2, 0)] + [dmaKV(i) for i in range(4)] + [m0KV(2, 1), incK] + [dmaKV(i) for i in range(4, 8)] + [incK]
            endw = "s_waitcnt lgkmcnt(0)"
        else: endw = None
        for g, x in enumerate(rd): gaps[g].append(x)
        def place(items, lo, hi):
            g_ = lo
            for y in items:
                if y.startswith("global_load"): g_ = min(g_ + 1, hi); gaps[g_].insert(0, y); continue
                while g_ < hi and len(gaps[g_]) >= 2: g_ += 1
                gaps[g_].append(y)
        nld = sum(1 for x in dm if x.startswith("buffer_load"))
        if nld:
            pos = [1 + (i * O.p1_span) // nld for i in range(nld)]
            li = 0; pend = []; prev = -1
            for x in dm:
                if x.startswith("buffer_load"):
                    place(pend, max(prev, 0), pos[li] - 1); pend = []
                    gaps[pos[li]].insert(0, x); prev = pos[li]; li += 1
                else: pend.append(x)
            place(pend, prev, 25)
        if mode == 29: place(addr29, 0, 25)
        if mode == 30: place(addr30, 8, 25)
        if mode == 31: place(addr31, 0, 27)
        if endw: gaps[26].append(endw); gaps[27].append("s_barrier")
        if ctl:
            gaps[25].append("s_sub_u32 s%d, s%d, 1" % (sCnt, sCnt)); gaps[26].append("s_cmp_lg_u32 s%d, 0" % sCnt)
        weave(a, mf, gaps)
    a.raw(".p2align 5")
    a.lab("L_p1")
    for km in range(4): p1_kstep(km, "loop", ctl=(km == 3))
    a.e("s_cbranch_scc1 L_p1")
    for km in range(4): p1_kstep(km, 28 + km)
    stamp()

    for f in range(14):
        b = ACC + 8 * f
        for i in range(4): a.e("v_pk_mul_f32 %s, %s, s[%d:%d]" % (vr(b + 2 * i, 2), vr(b + 2 * i, 2), sC, sC + 1))
        for i in range(4): a.e("v_cvt_pk_bf16_f32 v%d, v%d, v%d" % (b + i, b + 2 * i, b + 2 * i + 1))
        if f < 8: a.e("ds_write_b128 v%d, %s offset:%d" % (vQw, vr(b, 4), f * 1024))
        else: a.e("ds_write_b128 v%d, %s offset:%d" % (vQw + 1, vr(b, 4), (f - 8) * 1024))
    a.e(["s_waitcnt vmcnt(%d) lgkmcnt(0)" % (8 + npf), "s_barrier"])
    for ks in range(4): a.e("ds_read_b128 %s, v%d offset:%d" % (vr(V + 4 * ks, 4), vK0, ks * 256))
    for ks in range(4):
        for rt in range(7):
            dh, dp = ks >> 1, ks & 1
            f = rt * 2 + dp
            if f < 8: a.e("ds_read_b128 %s, v%d offset:%d" % (ar(aQ + 16 * rt + 4 * ks, 4), vQr, dh * 16384 + f * 1024))
            else: a.e("ds_read_b128 %s, v%d offset:%d" % (ar(aQ + 16 * rt + 4 * ks, 4), vQr + 1 + dh, (f - 8) * 1024))
    a.e(["s_cmp_lg_u32 s%d, 0" % sPass, "s_cbranch_scc1 L_maxpass"])
    def rdK(i, slot):
        t, ks = i & 1, i >> 1
        return "ds_read_b128 %s, v%d offset:%d" % (ar(aK + 16 * t + 4 * ks, 4), vKr, slot * 8192 + t * 4096 + ks * 256)
    NA = 2
    for ks in range(4):
        a.e("s_waitcnt lgkmcnt(%d)" % min(15, 7 * (3 - ks)))
        if ks == 3: a.e(["s_barrier", m0KV(3, 0)])
        for rt in range(7):
            d = vr(M + 4 * rt, 4)
            a.e(mfma(d, vr(V + 4 * ks, 4), ar(aQ + 16 * rt + 4 * ks, 4), "0" if ks == 0 else d))
            if ks == 3 and rt < NA: a.e(dmaKV(rt))
    a.e([rdK(i, 0) for i in range(8)])
    def xlane(op, regs_, tmp):
        out = []
        for sw in ("v_permlane32_swap_b32", "v_permlane16_swap_b32"):
            out += ["v_mov_b32 v%d, v%d" % (t_, r_) for r_, t_ in zip(regs_, tmp)]
            out += ["%s v%d, v%d" % (sw, r_, t_) for r_, t_ in zip(regs_, tmp)]
            out += ["%s v%d, v%d, v%d" % (op, r_, r_, t_) for r_, t_ in zip(regs_, tmp)]
        return out
    for rt in range(7): a.e("v_max3_f32 v%d, v%d, v%d, v%d" % (M + 4 * rt, M + 4 * rt, M + 4 * rt + 1, M + 4 * rt + 2))
    for rt in range(7): a.e("v_max_f32 v%d, v%d, v%d" % (M + 4 * rt, M + 4 * rt, M + 4 * rt + 3))
    a.e(xlane("v_max_f32", [M + 4 * rt for rt in range(7)], [M + 4 * rt + 1 for rt in range(7)]))
    a.lab("L_setm")
    a.e([zero16(vr(V, 16)), zero16(vr(V + 16, 16))])
    for i in (1, 2, 3, 0): a.e("v_sub_f32 v%d, 0, v%d" % (M + i, M))
    a.e(["s_mov_b32 s%d, 3" % sCnt, "s_waitcnt lgkmcnt(0)"])
    def qk(rt, sb):
        out = []
        for i in range(8):
            t, ks = i & 1, i >> 1
            d = vr(S + 8 * sb + 4 * t, 4)
            out.append(mfma(d, ar(aK + 16 * t + 4 * ks, 4), ar(aQ + 16 * rt + 4 * ks, 4), vr(M + 4 * rt, 4) if ks == 0 else d))
        return out
    def oacc(rt, i): return vr(OK + 16 * rt + 4 * i, 4) if i < 4 else ar(aO + 16 * rt + 4 * (i - 4), 4)
    def pv(rt, pb): return [mfma(oacc(rt, i), vr(V + 4 * i, 4), vr(P + 4 * pb, 4), oacc(rt, i)) for i in range(8)]
    rest = ["v_sub_f32 v%d, 0, v%d" % (M + 4 * rt + i, M + 4 * rt) for rt in range(1, 7) for i in (1, 2, 3, 0)]
    rest += ["v_mov_b32 v%d, 0" % i for i in range(L, L + 7)] + ["v_mov_b32 v%d, 0" % i for i in range(P + 4, P + 8)]
    rest += ["v_add_u32 v%d, s%d, v%d" % (vTa, sReg, vL16), "v_add_u32 v%d, s%d, v%d" % (vTb, sRing, vL16), "s_mov_b32 s%d, 0" % sWo]
    if O.ts: rest += ["s_mov_b32 s81, 0", "v_mov_b32 v252, 0"]
    weave(a, qk(0, 0), [rest[2 * i:2 * i + 2] for i in range(7)] + [rest[14:]])
    stamp()

    def dma3(j): return "buffer_load_dwordx4 v%d, s[%d:%d], s%d offen offset:%d lds" % (vD + j, sWs, sWs + 3, sWo, j * 1024)
    def wset(n):
        n &= 15
        return 16 * n if n < 7 else (224 if n == 7 else (112 + 16 * (n - 8) if n < 15 else 240))
    def rd3(k, off):
        return ["ds_read_b64_tr_b16 %s, v%d offset:%d" % (ar(wset(k) + 4 * i + 2 * sec, 2), vR + i, off + sec * 2048) for i in range(4) for sec in range(2)]
    def xw(rt): return ["ds_write_b128 v%d, %s offset:%d" % (vTa, ar(aO + 16 * rt + 4 * i, 4), rt * 4096 + i * 1024) for i in range(4)]
    vm = VM(["t13"] * 8 + ["t14"] * 8 + ["t15"] * 2)

    def body(js, last=False):
        for r in range(7):
            u = 7 * js + r
            fin = last and js == 3
            mf = ([] if (fin and r == 6) else qk((r + 1) % 7, (u + 1) & 1)) + pv((r + 6) % 7, (u + 1) & 1)
            mem = [[] for _ in range(16)]; val = [[] for _ in range(16)]
            for e in range(8):
                val[2 * e].append("v_exp_f32 v%d, v%d" % (E + e, S + 8 * (u & 1) + e))
                val[2 * e + 1].append("v_add_f32 v%d, v%d, v%d" % (L + r, L + r, E + e))
                if e & 1: val[2 * e + 1].append("v_cvt_pk_bf16_f32 v%d, v%d, v%d" % (P + 4 * (u & 1) + (e >> 1), E + e - 1, E + e))
            ps = (js + 3) & 3
            kvB = (not last) or js == 0
            if r == 0:
                for i in range(8):
                    for sec in range(2):
                        mem[8 + i].append("ds_read_b64_tr_b16 %s, v%d offset:%d" % (vr(V + 4 * i + 2 * sec, 2), vVr + (i & 1), js * 8192 + (i >> 1) * 256 + sec * 4096))
            if r == 1: mem[5].append("s_waitcnt lgkmcnt(%d)" % (5 if fin else 0))
            if kvB:
                if r == 0: mem[1].append(dmaKV(2)); mem[5].append(dmaKV(3))
                if r == 1: mem[1].append(m0KV(ps, 1)); mem[9].append(incK); mem[13].append(dmaKV(4))
                if r == 2: mem[1].append(dmaKV(5)); mem[9].append(dmaKV(6))
                if r == 3: mem[1].append(dmaKV(7)); mem[5].append(incK)
            if not last:
                if r == 4: mem[5].append(m0KV(js, 0)); mem[9].append("s_waitcnt vmcnt(16)"); mem[13].append("s_barrier")
                if r == 5: mem[9].append(dmaKV(0))
                if r == 6:
                    mem[1].append(dmaKV(1))
                    if js == 3: mem[5].append("s_sub_u32 s%d, s%d, 1" % (sCnt, sCnt)); mem[9].append("s_cmp_lg_u32 s%d, 0" % sCnt)
            else:
                sched = {(0, 6): 0, (1, 1): 1, (1, 2): 6, (1, 3): 7, (1, 6): 2, (2, 1): 3, (2, 5): 4, (2, 6): 5}
                if (js, r) in sched:
                    k = sched[(js, r)]
                    base, off = (sReg, k * 4096) if k < 6 else (sSp, (k - 6) * 4096)
                    g0 = (9, 11, 13, 15) if r == 5 else (1, 5, 9, 13)
                    mem[g0[0] - 1] += ["s_add_u32 m0, s%d, %d" % (base, off), "s_mov_b32 s%d, %d" % (sWo, k * 65536)]
                    for j in range(4): mem[g0[j]].append(("w%d" % k, dma3(j)))
                if r == 4:
                    if js < 3: mem[9].append(("wait", "t%d" % (13 + js)))
                    mem[13].append("s_barrier")
                if js == 0 and r == 5 and O.wl2:
                    val[9] += ["v_lshlrev_b32 v%d, 11, v%d" % (vT3, vL), "s_and_b32 s%d, s%d, 3" % (sT2, sRB)]
                    val[13] += ["s_lshl_b32 s%d, s%d, 17" % (sT2, sT2)]
                l2s = {(1, 0): 0, (2, 0): 1, (2, 3): 2}
                if (js, r) in l2s and l2s[(js, r)] < O.wl2:
                    mem[1].append("s_add_u32 s%d, s%d, %d" % (sT, sT2, (1 + l2s[(js, r)]) * 8 * 65536))
                    mem[5].append(("pf", "buffer_load_dword v%d, v%d, s[%d:%d], s%d offen" % (vDum, vT3, sWs, sWs + 3, sT)))
                if js == 2 and r == 2 and O.pf_code:
                    pf = codepf("L_epi", "L_end", vT)
                    for i_, x in enumerate(pf[:-1]): val[1 + 2 * i_].append(x)
                    mem[15].append(("pf", pf[-1]))
                if fin:
                    ks_ = [r] if r < 6 else [6, 7]
                    gl = list(range(0, 8)) if r < 6 else list(range(8, 16))
                    if r == 6: val[gl[0]] = val[gl[0]]
                    for n_, k in enumerate(ks_):
                        rds = rd3(k, k * 4096 if k < 6 else (k - 6) * 4096)
                        mem[gl[0]].append(("wait", "w%d" % k))
                        for i_, x in enumerate(rds): mem[gl[i_]].append(x)
                    if r == 5:
                        for i in range(4): val[9 + 2 * (i // 2) * 2].append("v_add_u32 v%d, s%d, v%d" % (vR + i, sD1, vR + i))
                    if r >= 2:
                        for i_, x in enumerate(xw(r - 2)): mem[9 + 2 * i_].append(x)
            if r == 5 and not fin:
                for i in range(8): mem[i].append(rdK(i, (js + 1) & 3))
                mem[13].insert(0, "s_waitcnt lgkmcnt(0)")
                if O.ts: mem[11] += TS_A; mem[15] += TS_B
            if fin and r == 6:
                mem = [mem[8 + i] for i in range(8)]
                val = [val[2 * i] + val[2 * i + 1] for i in range(8)]
                val = [[v_[0], "s_nop 0"] + v_[1:] for v_ in val]
                a.e("s_nop 1")
            for m_, g_, v_ in zip(mf, mem, val):
                a.e(m_)
                for x in g_:
                    if isinstance(x, tuple):
                        if x[0] == "wait": a.e("s_waitcnt vmcnt(%d)" % vm.n(x[1]))
                        else: vm.issue(x[0]); a.e(x[1])
                    else:
                        if last and x.startswith("buffer_load"): vm.issue("t15")
                        a.e(x)
                a.e(v_)
    a.raw(".p2align 5")
    a.lab("L_loop")
    for js in range(4): body(js)
    a.e("s_cbranch_scc1 L_loop")
    a.lab("L_last")
    for js in range(4): body(js, True)
    stamp()

    a.lab("L_epi")
    misc = ["v_add_f32 v%d, v%d, v%d" % (vTc, L, L + 1)] + ["v_add_f32 v%d, v%d, v%d" % (vTc, vTc, L + i) for i in range(2, 7)]
    misc += ["s_mov_b32 s%d, 0x%x" % (sT, THR if not O.force_slow else 0), "s_lshl_b32 s%d, s%d, 2" % (sG, sWv),
             "v_cmp_ngt_f32 vcc, s%d, v%d" % (sT, vTc),
             "s_add_u32 s%d, s%d, 30720" % (sG, sG), "v_mov_b32 v%d, s%d" % (vT, sG),
             "s_cmp_lg_u64 vcc, 0", "s_cselect_b32 s%d, 1, 0" % sT, "v_mov_b32 v%d, 30720" % vT2, "v_mov_b32 v%d, s%d" % (L + 7, sT)]
    a.e("s_nop 1")
    weave(a, pv(6, 1), [misc[2 * i:2 * i + 2] for i in range(7)] + [misc[14:]])
    xl = xlane("v_add_f32", [L + i for i in range(7)], [E + i for i in range(7)])
    w56 = xw(5) + xw(6)
    for i in range(8):
        a.e(w56[i]); a.e(xl[5 * i:5 * i + 5] if i < 7 else xl[35:])
    a.e(["v_add_u32 v%d, s%d, v%d" % (vR + i, sD2, vR + i) for i in range(4)])
    a.e(["ds_write_b128 v%d, %s offset:28672" % (vTa, vr(L, 4)), "ds_write_b128 v%d, %s offset:29696" % (vTa, vr(L + 4, 4)),
         "ds_write_b32 v%d, v%d" % (vT, L + 7), "s_waitcnt lgkmcnt(0)", "s_barrier"])
    PL = 208
    a.e(["ds_read_b128 %s, v%d" % (vr(216, 4), vT2), "ds_read_b128 %s, v%d offset:28672" % (vr(PL, 4), vTb), "ds_read_b128 %s, v%d offset:29696" % (vr(PL + 4, 4), vTb)])
    def rdP(rt): return ["ds_read_b128 %s, v%d offset:%d" % (vr(128 + 16 * (rt % 5) + 4 * i, 4), vTb, (rt * 4 + i) * 1024) for i in range(4)]
    for rt in range(3): a.e(rdP(rt))
    a.e(["s_waitcnt lgkmcnt(12)", "v_or3_b32 v216, v216, v217, v218", "v_or_b32 v216, v216, v219"])
    for i in range(7): a.e("v_add_f32 v%d, v%d, v%d" % (L + i, L + i, PL + i))
    a.e(["v_readfirstlane_b32 s%d, v216" % sT])
    for i in range(7): a.e("v_rcp_f32 v%d, v%d" % (L + i, L + i))
    a.e(["s_andn2_b32 s%d, s%d, s%d" % (sT, sT, sPass), "s_cbranch_scc1 L_slow"])
    def wload(k, j):
        if j == 0: a.e(["s_add_u32 m0, s%d, %d" % (sRing, (k & 7) * 4096), "s_mov_b32 s%d, %d" % (sWo, k * 65536)])
        vm.issue("w%d" % k); a.e(dma3(j))
    wi = 0
    for rt in range(7):
        if rt + 3 < 7: a.e(rdP(rt + 3))
        a.e("s_waitcnt lgkmcnt(%d)" % (4 * min(3, 6 - rt)))
        pb = 128 + 16 * (rt % 5); ob = OK + 16 * rt; lp = L + rt
        def wnext(k_):
            nonlocal wi
            if k_ < O.w_n and wi < 28 and wi // 4 <= rt: wload(8 + wi // 4, wi % 4); wi += 1
        wnext(0)
        for i in range(8): a.e("v_pk_add_f32 %s, %s, %s" % (vr(ob + 2 * i, 2), vr(ob + 2 * i, 2), vr(pb + 2 * i, 2)))
        wnext(2)
        for i in range(8):
            if lp % 2 == 0: a.e("v_pk_mul_f32 %s, %s, %s op_sel_hi:[1,0]" % (vr(ob + 2 * i, 2), vr(ob + 2 * i, 2), vr(lp, 2)))
            else: a.e("v_pk_mul_f32 %s, %s, %s op_sel:[0,1]" % (vr(ob + 2 * i, 2), vr(ob + 2 * i, 2), vr(lp - 1, 2)))
        wnext(1)
        for i in range(8): a.e("v_cvt_pk_bf16_f32 v%d, v%d, v%d" % (ob + i, ob + 2 * i, ob + 2 * i + 1))
        wnext(3)
        for p in range(2):
            vm.issue("st"); a.e("buffer_store_dwordx4 %s, v%d, s[%d:%d], s%d offen offset:%d sc1" % (vr(ob + 4 * p, 4), vL16, sO, sO + 3, sRt + rt, p * 1024))
    stamp()
    ACC3, OF = 16, 128
    vS, vOo, vOut = 6, 10, 11
    for _ in range(min(O.w_late, 28 - wi)): wload(8 + wi // 4, wi % 4); wi += 1
    a.e(["s_lshl_b32 s%d, s%d, 5" % (sT, sB), "s_add_u32 s%d, s%d, s%d" % (sT, sT, sH), "v_mov_b32 v%d, s%d" % (vT2, sT), "v_mov_b32 v%d, 1" % vT3])
    a.e(flagp(vT) + ["v_add_u32 v%d, 1, v%d" % (vFo, vFo)])
    a.e(["s_waitcnt vmcnt(%d)" % vm.n("st"), "s_barrier"])
    if O.stamps: a.e("s_memrealtime s[6:7]")
    a.e(["s_cmp_lg_u32 s%d, 0" % sWv, "s_cbranch_scc1 L_noflag",
         "global_store_dword v%d, v%d, s[%d:%d] sc1" % (vT, vFo, pWs, pWs + 1),
         "s_mov_b64 exec, 1", "global_store_byte v%d, v%d, s[%d:%d] sc1" % (vT2, vT3, pDbg, pDbg + 1), "s_mov_b64 exec, -1"])
    a.lab("L_noflag")
    while wi < 32: wload(8 + wi // 4, wi % 4); wi += 1
    for i in range(7): a.e(zero16(vr(ACC3 + 16 * i, 16)))
    a.e(["v_add_u32 v%d, s%d, v%d" % (vS, sRing, vL16)])
    for i in range(1, 4): a.e(["v_xor_b32 v%d, 0x%x, v%d" % (vS + i, i << 15, vS)])
    a.e(["v_and_b32 v%d, 15, v%d" % (vT, vL), "v_lshrrev_b32 v%d, 4, v%d" % (vT2, vL), "v_lshlrev_b32 v%d, 3, v%d" % (vT2, vT2),
         "v_lshl_add_u32 v%d, v%d, 11, v%d" % (vT, vT, vT2),
         "s_lshl_b32 s%d, s%d, 7" % (sT, sCT), "s_lshl_b32 s%d, s%d, 5" % (sG, sWv), "s_add_u32 s%d, s%d, s%d" % (sT, sT, sG),
         "v_add_u32 v%d, s%d, v%d" % (vOut, sT, vT), "v_mov_b32 v%d, v%d" % (vOo, vL16),
         "s_lshr_b32 s%d, s%d, 1" % (sT, sRB), "s_lshl_b32 s%d, s%d, 5" % (sT, sT), "s_lshl_b32 s%d, s%d, 3" % (sG, sWv), "s_add_u32 s%d, s%d, s%d" % (sT, sT, sG),
         "v_mov_b32 v240, s%d" % sT, "s_mov_b32 s%d, 0x40000" % sCnt])
    a.e(flagc(vT3))
    for i in range(8):
        a.e("s_waitcnt vmcnt(%d)" % vm.n("w%d" % (8 + i)))
        a.e(rd3(8 + i, i * 4096))
        if i > 0:
            a.e("s_waitcnt lgkmcnt(8)")
            for j in range(4): wload(16 + i - 1, j)
    a.e("s_waitcnt lgkmcnt(0)")
    for j in range(4): wload(23, j)
    a.lab("L_poll")
    a.e(["global_load_dword v%d, v%d, s[%d:%d] sc1" % (vT, vT3, pWs, pWs + 1), "s_sub_u32 s%d, s%d, 1" % (sCnt, sCnt), "s_cbranch_scc1 L_go",
         "s_waitcnt vmcnt(0)", "v_cmp_eq_u32 vcc, v%d, v%d" % (vT, vFc), "s_nop 0", "s_cbranch_vccz L_go",
         "s_and_b32 s%d, s%d, 15" % (sT, sCnt), "s_cbranch_scc1 L_poll",
         "global_load_dwordx2 v[242:243], v240, s[%d:%d] sc1" % (pDbg, pDbg + 1), "s_waitcnt vmcnt(0)",
         "v_and_b32 v242, v242, v243", "s_nop 0", "v_readfirstlane_b32 s%d, v242" % sT,
         "s_nop 0", "s_cmp_eq_u32 s%d, 0x01010101" % sT, "s_cbranch_scc0 L_poll"])
    a.lab("L_go")
    stamp()
    if O.stamps: a.e(["s_memrealtime s[4:5]", "s_mov_b32 s10, s%d" % sCnt])
    def ldO(rt, k): return "buffer_load_dwordx4 %s, v%d, s[%d:%d], s%d offen offset:%d sc1" % (vr(OF + 28 * (k & 3) + 4 * rt, 4), vOo, sOs, sOs + 3, sRt + rt, (k & 3) * 1024)
    incO = "v_add_u32 v%d, 4096, v%d" % (vOo, vOo)
    for k in range(4):
        for rt in range(7): vm.issue("o%d" % k); a.e(ldO(rt, k))
    a.e([incO, "s_waitcnt vmcnt(%d)" % vm.n("o0")])
    for k in range(32):
        mf = []; gaps = [[] for _ in range(28)]
        for rt in range(7):
            for i in range(4):
                c = vr(ACC3 + 16 * rt + 4 * i, 4)
                mf.append(mfma(c, ar(wset(k) + 4 * i, 4), vr(OF + 28 * (k & 3) + 4 * rt, 4), c))
        if 1 <= k <= 16:
            for g, x in enumerate(rd3(k + 15, ((k + 15) & 7) * 4096)): gaps[g].append(x)
        if 2 <= k <= 9:
            gaps[0] += ["s_add_u32 m0, s%d, %d" % (sRing, ((k + 22) & 7) * 4096), "s_mov_b32 s%d, %d" % (sWo, (k + 22) * 65536)]
            for j in range(4): gaps[1 + 4 * j].insert(0, ("w%d" % (k + 22), dma3(j)))
        if k + 4 < 32:
            for rt in range(7): gaps[4 * rt + 3].insert(0, ("o%d" % (k + 4), ldO(rt, k)))
            if k & 3 == 3: gaps[27].append(incO)
        if k < 31: gaps[27].append(("wait", "o%d" % (k + 1), 1 <= k <= 16))
        if k == 31:
            for rt in range(5):
                for i in range(1, 4): gaps[4 * rt + 8 + i].append("ds_write_b128 v%d, %s offset:%d" % (vS, vr(ACC3 + 16 * rt + 4 * i, 4), (i - 1) * 7168 + rt * 1024))
        for m_, g_ in zip(mf, gaps):
            a.e(m_)
            for x in g_:
                if isinstance(x, tuple):
                    if x[0] == "wait": a.e("s_waitcnt vmcnt(%d)%s" % (vm.n(x[1]), " lgkmcnt(0)" if x[2] else ""))
                    else: vm.issue(x[0]); a.e(x[1])
                else: a.e(x)
    stamp()
    a.e("s_nop 1")
    for rt in range(5, 7):
        if rt == 6: a.e("s_nop 1")
        for i in range(1, 4): a.e("ds_write_b128 v%d, %s offset:%d" % (vS, vr(ACC3 + 16 * rt + 4 * i, 4), (i - 1) * 7168 + rt * 1024))
    a.e(["s_waitcnt lgkmcnt(0)", "s_barrier"])
    for rt in range(7):
        for i in range(1, 4): a.e("ds_read_b128 %s, v%d offset:%d" % (vr(ACC3 + 16 * rt + 4 * i, 4), vS + i, (i - 1) * 7168 + rt * 1024))
    for rt in range(7):
        a.e("s_waitcnt lgkmcnt(%d)" % min(15, 3 * (6 - rt)))
        b = ACC3 + 16 * rt
        for h in range(2):
            a.e("v_pk_add_f32 %s, %s, %s" % (vr(b + 2 * h, 2), vr(b + 2 * h, 2), vr(b + 4 + 2 * h, 2)))
            a.e("v_pk_add_f32 %s, %s, %s" % (vr(b + 8 + 2 * h, 2), vr(b + 8 + 2 * h, 2), vr(b + 12 + 2 * h, 2)))
        for h in range(2): a.e("v_pk_add_f32 %s, %s, %s" % (vr(b + 2 * h, 2), vr(b + 2 * h, 2), vr(b + 8 + 2 * h, 2)))
        a.e(["v_cvt_pk_bf16_f32 v%d, v%d, v%d" % (b, b, b + 1), "v_cvt_pk_bf16_f32 v%d, v%d, v%d" % (b + 1, b + 2, b + 3),
             "s_mov_b32 s%d, %d" % (sT, rt * 32768),
             "buffer_store_dwordx2 %s, v%d, s[%d:%d], s%d offen" % (vr(b, 2), vOut, sOut, sOut + 3, sT)])
    if O.stamps:
        a.e(["s_waitcnt vmcnt(0)"])
        if not O.ts: stamp()
        a.e(["s_memrealtime s[78:79]", "s_waitcnt lgkmcnt(0)", "s_lshl_b32 s%d, s2, 2" % sT, "s_add_u32 s%d, s%d, s%d" % (sT, sT, sWv), "s_lshl_b32 s%d, s%d, 6" % (sT, sT),
             "s_add_u32 s%d, s%d, 0x%x" % (sT, sT, STAMP_OFF),
             "s_add_u32 s%d, s%d, s%d" % (sO, pWs, sT), "s_addc_u32 s%d, s%d, 0" % (sO + 1, pWs + 1), "s_mov_b32 s%d, 64" % (sO + 2), "v_mov_b32 v%d, 0" % vT])
        for i in range(nst[0]):
            a.e(["s_sub_u32 s%d, s%d, s%d" % (sT, sST + 2 * i, sST), "v_mov_b32 v%d, s%d" % (vT2, sT),
                 "buffer_store_dword v%d, v%d, s[%d:%d], 0 offen offset:%d" % (vT2, vT, sO, sO + 3, 4 * i)])
        for i, r_ in enumerate((10, 6, 4, sST, 78)):
            a.e(["v_mov_b32 v%d, s%d" % (vT2, r_), "buffer_store_dword v%d, v%d, s[%d:%d], 0 offen offset:%d" % (vT2, vT, sO, sO + 3, 44 + 4 * i)])
    if O.ts:
        a.e(["s_lshl_b32 s%d, s2, 9" % sT, "s_add_u32 s%d, s%d, 0x%x" % (sT, sT, STAMP_OFF + 0x200000),
             "s_add_u32 s%d, s%d, s%d" % (sO, pWs, sT), "s_addc_u32 s%d, s%d, 0" % (sO + 1, pWs + 1), "s_mov_b32 s%d, 512" % (sO + 2),
             "v_lshlrev_b32 v%d, 2, v%d" % (vT, vL), "buffer_store_dword v252, v%d, s[%d:%d], 0 offen" % (vT, sO, sO + 3)])
    a.lab("L_end")
    a.e("s_endpgm")

    a.lab("L_slow")
    a.e(["s_waitcnt vmcnt(0) lgkmcnt(0)", "s_barrier", "s_mov_b32 s%d, 1" % sPass] + lane_setup() + ["s_branch L_restart"])
    a.lab("L_maxpass")
    a.e(["s_waitcnt vmcnt(0) lgkmcnt(0)", "s_barrier", "s_mov_b32 s%d, 16" % sCnt, "s_mov_b32 s%d, 0" % sK0])
    for rt in range(7): a.e("v_mov_b32 v%d, 0xff800000" % (M + 4 * rt))
    a.lab("L_slow_loop")
    a.e(kvtile(0))
    a.e(["s_waitcnt vmcnt(0)", "s_barrier"])
    a.e([rdK(i, 0) for i in range(8)])
    a.e(["s_waitcnt lgkmcnt(0)", "s_barrier"])
    for rt in range(7):
        for i in range(8):
            t, ks = i & 1, i >> 1
            d = vr(S + 4 * t, 4)
            a.e(mfma(d, ar(aK + 16 * t + 4 * ks, 4), ar(aQ + 16 * rt + 4 * ks, 4), "0" if ks == 0 else d))
        a.e("s_nop 7")
        for i in range(4): a.e("v_max3_f32 v%d, v%d, v%d, v%d" % (M + 4 * rt, M + 4 * rt, S + 2 * i, S + 2 * i + 1))
    a.e(["s_sub_u32 s%d, s%d, 1" % (sCnt, sCnt), "s_cmp_lg_u32 s%d, 0" % sCnt, "s_cbranch_scc1 L_slow_loop"])
    a.e(xlane("v_max_f32", [M + 4 * rt for rt in range(7)], [M + 4 * rt + 1 for rt in range(7)]))
    a.e(["v_add_u32 v%d, s%d, v%d" % (vTc, sSp, vL16), "v_xor_b32 v%d, 16384, v%d" % (vT3, vTc)])
    for rt in range(7): a.e("ds_write_b32 v%d, v%d offset:%d" % (vTc, M + 4 * rt, rt * 1024))
    a.e(["s_waitcnt lgkmcnt(0)", "s_barrier"])
    for rt in range(7): a.e("ds_read_b32 v%d, v%d offset:%d" % (M + 4 * rt + 1, vT3, rt * 1024))
    a.e(["s_mov_b32 s%d, 0" % sK0])
    for tl in range(3): a.e(kvtile(tl))
    a.e([m0KV(3, 0), "s_nop 0"] + [dmaKV(i) for i in range(NA)])
    a.e("s_waitcnt lgkmcnt(0)")
    for rt in range(7): a.e("v_max_f32 v%d, v%d, v%d" % (M + 4 * rt, M + 4 * rt, M + 4 * rt + 1))
    a.e(["s_waitcnt vmcnt(%d)" % (8 + NA), "s_barrier"])
    a.e([rdK(i, 0) for i in range(8)])
    a.e("s_branch L_setm")

def build():
    ref = open("cdna_kernels/%s.s.ref" % NAME).read()
    hdr = ref.split("; Override launch")[0]
    a = Asm()
    k = NAME + "_kernel"
    a.raw(".amdgcn_target \"amdgcn-amd-amdhsa--gfx950\"\n.text")
    a.raw(".globl %s\n.p2align 8\n.type %s,@function" % (k, k))
    kernel(a)
    for e in check(a.L): print(e, file=sys.stderr)
    t = hdr + "; @launch grid=(256,1,1) block=(256,1,1) lds=163840\n" + a.text()
    t += """.section .rodata,"a"
.p2align 6
.amdhsa_kernel %s
  .amdhsa_next_free_vgpr 512
  .amdhsa_next_free_sgpr 102
  .amdhsa_accum_offset 256
  .amdhsa_group_segment_fixed_size 0
  .amdhsa_kernarg_size 64
  .amdhsa_user_sgpr_count 2
  .amdhsa_user_sgpr_kernarg_segment_ptr 1
  .amdhsa_system_sgpr_workgroup_id_x 1
.end_amdhsa_kernel
""" % k
    return t

if __name__ == "__main__":
    out = sys.argv[1] if len(sys.argv) > 1 else "cdna_kernels/%s.s" % NAME
    for kv in sys.argv[2:]:
        k, v = kv.split("=")
        cur = getattr(O, k)
        setattr(O, k, (v == "1") if isinstance(cur, bool) else type(cur)(v))
    open(out, "w").write(build())
```

```python
import sys, math, struct
from asmlib import *

NAME = "standalone__mha_block_cached__near_ridge"
def f32(x): return struct.unpack("<I", struct.pack("<f", x))[0]
CSCALE = f32(128 ** -0.5 * math.log2(math.e))
THR = f32(2.0 ** 30)

class Opt:
    stamps = False
    ts = False
    kv_nt = True
    nxe = 5
    p1_span = 26
    force_slow = False
    pf_xw = True
    pf_wo = True
    pf_code = True
    w_n = 0
    w_late = 8
    wl2 = 2
    out_flags = ""
    pfl = 0
    dynw = True
    wggo = False
    olook = 3
    sset = 1
    nost = False
    st_flags = "sc1"
    x3mask = 7
    burn = 0
    tsched = 1
    pf_flags = ""
    wpf = 0
O = Opt()
STAMP_OFF = 0x8000000
FLAG_OFF = 0x1000000
PART_OFF = 0x2000000

def zero16(d): return "v_mfma_f32_32x32x16_bf16 %s, v[12:15], v[12:15], 0" % d

class VM:
    def __init__(self, init): self.ops = list(init)
    def issue(self, tag, opt=False): self.ops.append(tag + "?" if opt else tag)
    def n(self, tag):
        idx = max(i for i, t in enumerate(self.ops) if t.rstrip("?") == tag)
        if self.ops[idx].endswith("?"): return min(63, len(self.ops) - 1 - idx)
        return min(63, sum(1 for t in self.ops[idx + 1:] if not t.endswith("?")))

def kernel(a):
    KVF = " nt" if O.kv_nt else ""
    pX, pK, pV, pWq, pWo, pOut, pDbg, pWs = 4, 6, 8, 10, 12, 14, 16, 18
    sX, sW, sKV, sO, sOs, sWs, sOut = 20, 24, 28, 32, 36, 40, 44
    (sWv, sB, sH, sRH, sKH, sXoff, sWoff, sCnt, sMX, sMW, sReg, sRing, sSp, sG, sFlip, sK0, sPass, sT, sT2, sRB, sCT, sWo, sD1, sD2) = range(48, 72)
    sP = 3 if not O.ts else 81
    sOf = 1; sPm = 0
    sC = 72; sRt = 74; sPC = 82; sST = 84
    vL, vT, vT2, vT3, vL16 = 1, 2, 3, 4, 5
    vKV, vW = 6, 10
    OK, ACC = 16, 128
    M, S, E, P, V, L = 128, 156, 172, 180, 188, 220
    vTa, vTb, vTc = 234, 235, 236
    vX, vXr, vWr = 240, 247, 251
    vKr, vVr, vK0 = 240, 241, 243
    vD, vR = 244, 10
    vQw, vQr = 2, 3
    PK = 16
    vFo, vFc, vDum = 254, 255, 253
    vCp = 0
    aQ, aO, aK = 0, 112, 224
    aXF, aWF = 0, 224
    nst = [0]
    def stamp(m=3):
        if O.stamps and (m & O.sset):
            assert nst[0] < 9
            a.e("s_memrealtime s[%d:%d]" % (sST + 2 * nst[0], sST + 2 * nst[0] + 1)); nst[0] += 1
    def flagp(v, t):
        return ["s_and_b32 s%d, s%d, 1" % (sT, sB), "s_lshl_b32 s%d, s%d, 6" % (sT, sT), "s_lshr_b32 s%d, s%d, 1" % (sG, sB), "s_lshl_b32 s%d, s%d, 3" % (sG, sG),
                "s_add_u32 s%d, s%d, s%d" % (sT, sT, sG), "s_lshr_b32 s%d, s%d, 2" % (sG, sH), "s_add_u32 s%d, s%d, s%d" % (sT, sT, sG), "s_lshl_b32 s%d, s%d, 7" % (sT, sT),
                "s_and_b32 s%d, s%d, 3" % (sG, sH), "s_lshl_b32 s%d, s%d, 2" % (sG, sG), "s_add_u32 s%d, s%d, s%d" % (sT, sT, sG), "s_add_u32 s%d, s%d, 0x%x" % (sT, sT, FLAG_OFF),
                "v_lshrrev_b32 v%d, 1, v%d" % (v, vL), "v_lshlrev_b32 v%d, 14, v%d" % (v, v), "v_and_b32 v%d, 1, v%d" % (t, vL),
                "v_lshl_add_u32 v%d, v%d, 12, v%d" % (v, t, v), "v_add_u32 v%d, s%d, v%d" % (v, sT, v),
                "s_xor_b32 s%d, s2, 1" % sT, "s_lshl_b32 s%d, s%d, 9" % (sT, sT), "s_add_u32 s%d, s%d, 0x%x" % (sT, sT, FLAG_OFF + 16),
                "v_and_b32 v%d, 3, v%d" % (t, vL), "v_lshlrev_b32 v%d, 7, v%d" % (t, t), "v_cmp_gt_u32 vcc, 16, v%d" % vL, "v_add_u32 v%d, s%d, v%d" % (t, sT, t),
                "s_nop 0", "v_cndmask_b32 v%d, v%d, v%d, vcc" % (v, t, v)]
    def flagc(v):
        return ["s_lshl_b32 s%d, s2, 2" % sT, "s_add_u32 s%d, s%d, s%d" % (sT, sT, sWv), "s_lshl_b32 s%d, s%d, 7" % (sT, sT), "s_add_u32 s%d, s%d, 0x%x" % (sT, sT, FLAG_OFF),
                "v_min_u32 v%d, 5, v%d" % (v, vL), "v_lshlrev_b32 v%d, 2, v%d" % (v, v), "v_add_u32 v%d, s%d, v%d" % (v, sT, v),
                "s_mov_b64 exec, 64", "v_xor_b32 v%d, 0x200, v%d" % (v, v), "s_mov_b64 exec, -1"]
    def boxaddr(v):
        return ["s_lshl_b32 s%d, s2, 2" % sT, "s_add_u32 s%d, s%d, s%d" % (sT, sT, sWv), "s_lshl_b32 s%d, s%d, 13" % (sT, sT),
                "s_add_u32 s%d, s%d, 0x%x" % (sT, sT, PART_OFF + 3072), "v_add_u32 v%d, s%d, v%d" % (v, sT, vL16)]
    def codepf(lo, hi, t0):
        return ["v_min_u32 v%d, %s-%s-4, v%d" % (t0, hi, lo, vCp), "v_add_u32 v%d, %s-L_pc, v%d" % (t0, lo, t0),
                "v_mov_b32 v%d, s%d" % (t0 + 1, sPC + 1), "v_add_co_u32 v%d, vcc, s%d, v%d" % (t0, sPC, t0), "s_nop 1",
                "v_addc_co_u32 v%d, vcc, 0, v%d, vcc" % (t0 + 1, t0 + 1), "global_load_dword v%d, v[%d:%d], off" % (vDum, t0, t0 + 1)]

    a.lab(NAME + "_kernel")
    a.e(["s_cmp_ge_u32 s2, 256", "s_cbranch_scc1 L_end",
         "s_load_dwordx8 s[4:11], s[0:1], 0", "s_load_dwordx8 s[12:19], s[0:1], 32"])
    stamp()
    a.e(["s_getpc_b64 s[%d:%d]" % (sPC, sPC + 1)])
    a.lab("L_pc")
    a.e(["v_and_b32 v%d, 63, v0" % vL, "v_lshrrev_b32 v%d, 6, v0" % vT,
         "s_and_b32 s%d, s2, 7" % sT, "s_lshr_b32 s%d, s2, 3" % sT2,
         "v_readfirstlane_b32 s%d, v%d" % (sWv, vT),
         "v_min_u32 v%d, 2, v%d" % (vCp, vL), "v_lshl_add_u32 v%d, v%d, 2, v%d" % (vCp, vCp, vT), "v_lshlrev_b32 v%d, 5, v%d" % (vCp, vCp),
         "v_add_lshl_u32 v%d, v%d, s%d, 7" % (vCp, vCp, sT2)])
    if O.pf_code: a.e(codepf("L_pc", "L_end", vT))
    a.e(["s_mov_b32 s%d, 0" % sPass,
         "s_and_b32 s%d, s%d, 1" % (sB, sT), "s_lshl_b32 s%d, s%d, 2" % (sB, sB),
         "s_and_b32 s%d, s%d, 3" % (sG, sT2), "s_add_u32 s%d, s%d, s%d" % (sB, sB, sG),
         "s_lshr_b32 s%d, s%d, 1" % (sH, sT), "s_lshl_b32 s%d, s%d, 2" % (sRB, sH), "s_add_u32 s%d, s%d, s%d" % (sRB, sRB, sG), "s_lshl_b32 s%d, s%d, 3" % (sH, sH),
         "s_lshr_b32 s%d, s%d, 2" % (sCT, sT2), "s_add_u32 s%d, s%d, s%d" % (sH, sH, sCT),
         "s_and_b32 s%d, s%d, 1" % (sRH, sWv), "s_lshr_b32 s%d, s%d, 1" % (sKH, sWv)])
    a.e(["s_lshl_b32 s%d, s%d, 15" % (sMX, sKH), "s_mul_i32 s%d, s%d, 7168" % (sT, sRH),
         "s_add_u32 s%d, s%d, s%d" % (sMX, sMX, sT), "s_add_u32 s%d, s%d, 16384" % (sMX, sMX),
         "s_lshl_b32 s%d, s%d, 11" % (sMW, sWv), "s_add_u32 s%d, s%d, 131072" % (sMW, sMW),
         "s_lshl_b32 s%d, s%d, 15" % (sReg, sWv),
         "s_mov_b32 s%d, 458752" % (sX + 2), "s_mov_b32 s%d, 0x20000" % (sX + 3), "s_mov_b32 s%d, 0x20000" % (sW + 3),
         "s_mul_i32 s%d, s%d, 458752" % (sD1, sB), "s_lshl_b32 s%d, s%d, 8" % (sD2, sH), "s_sub_u32 s%d, 0x800000, s%d" % (sW + 2, sD2)])
    def lane_setup():
        o = ["v_lshrrev_b32 v%d, 3, v%d" % (vT, vL), "v_and_b32 v%d, 7, v%d" % (vT2, vL), "v_and_b32 v%d, 6, v%d" % (vT3, vT),
             "v_xor_b32 v%d, v%d, v%d" % (vT3, vT3, vT2), "v_lshlrev_b32 v%d, 4, v%d" % (vT3, vT3),
             "v_lshl_add_u32 v%d, v%d, 11, v%d" % (vX, vT, vT3),
             "s_mul_i32 s%d, s%d, %d" % (sT, sWv, 7 * 16384), "v_add_u32 v%d, s%d, v%d" % (vX, sT, vX)]
        o += ["v_add_u32 v%d, %d, v%d" % (vX + j, j * 16384 - (j & 3) * 1024, vX) for j in range(1, 7)]
        o += ["v_and_b32 v%d, 2, v%d" % (vT3, vT), "v_lshlrev_b32 v%d, 1, v%d" % (vT3, vT3),
              "v_xor_b32 v%d, v%d, v%d" % (vT3, vT3, vT2), "v_lshlrev_b32 v%d, 4, v%d" % (vT3, vT3),
              "v_lshl_add_u32 v%d, v%d, 13, v%d" % (vW, vT, vT3),
              "s_lshl_b32 s%d, s%d, 17" % (sT, sRH), "s_lshl_b32 s%d, s%d, 7" % (sG, sKH), "s_add_u32 s%d, s%d, s%d" % (sT, sT, sG),
              "v_add_u32 v%d, s%d, v%d" % (vW, sT, vW), "v_add_u32 v%d, %d, v%d" % (vW + 1, 8 * 8192 - 1024, vW)]
        return o
    a.e(lane_setup())
    a.e(["s_waitcnt lgkmcnt(0)",
         "s_add_u32 s%d, s%d, s%d" % (sW, pWq, sD2), "s_addc_u32 s%d, s%d, 0" % (sW + 1, pWq + 1),
         "s_add_u32 s%d, s%d, s%d" % (sX, pX, sD1), "s_addc_u32 s%d, s%d, 0" % (sX + 1, pX + 1)])
    a.lab("L_restart")

    TS_A = ["s_memrealtime s[100:101]"]
    TS_B = ["s_mov_b32 s3, m0", "s_mov_b32 m0, s81", "v_writelane_b32 v252, s100, m0", "s_add_u32 s81, s81, 1", "s_mov_b32 m0, s3"]
    def dmaX(j): return "buffer_load_dwordx4 v%d, s[%d:%d], s%d offen offset:%d lds" % (vX + j, sX, sX + 3, sXoff, (j & 3) * 1024)
    def m0X(buf, hi): return "s_add_u32 m0, s%d, %d" % (sMX, buf * 65536 + hi * 4096)
    def dmaW(j): return "buffer_load_dwordx4 v%d, s[%d:%d], s%d offen offset:%d lds" % (vW + j, sW, sW + 3, sWoff, j * 1024)
    def m0W(slot): return "s_add_u32 m0, s%d, %d" % (sMW, slot * 8192)
    def dmaKV(i): return "buffer_load_dwordx4 v%d, s[%d:%d], s%d offen offset:%d%s lds" % (vKV + (i & 3), sKV, sKV + 3, sK0, (i & 3) * 1024, KVF)
    def m0KV(slot, hi): return "s_add_u32 m0, s%d, %d" % (sReg, slot * 8192 + hi * 4096)
    incK = "s_add_u32 s%d, s%d, 4096" % (sK0, sK0)
    def kvtile(slot): return [m0KV(slot, 0), "s_nop 0"] + [dmaKV(i) for i in range(4)] + [m0KV(slot, 1), incK] + [dmaKV(i) for i in range(4, 8)] + [incK]
    incW = "s_add_u32 s%d, s%d, 262144" % (sWoff, sWoff)
    incX = "s_add_u32 s%d, s%d, 128" % (sXoff, sXoff)
    vKw = vT2
    kvw_m0 = "s_add_u32 m0, s%d, s%d" % (sReg, sK0)
    kvw = "buffer_load_dwordx4 v%d, s[%d:%d], s%d offen%s lds" % (vKw, sKV, sKV + 3, sK0, KVF)
    kvw_inc = "s_add_u32 s%d, s%d, 1024" % (sK0, sK0)

    a.e(["s_mov_b32 s%d, 0" % sXoff, "s_mov_b32 s%d, 0" % sWoff])
    for st in range(2):
        a.e([m0W(2 * st), "s_nop 0", dmaW(0), dmaW(1), m0X(st, 0), incW])
        a.e([dmaX(j) for j in range(4)] + [m0X(st, 1), "s_nop 0"] + [dmaX(j) for j in range(4, 7)])
        a.e([m0W(2 * st + 1), incX, dmaW(0), dmaW(1), incW])
        if st == 1:
            a.e(["s_and_b32 s%d, s%d, s%d" % (sFlip, sRH, sKH), "s_lshl_b32 s%d, s%d, 7" % (sFlip, sFlip),
                 "s_cmp_eq_u32 s%d, 0" % sRH, "s_cselect_b32 s%d, s%d, s%d" % (sKV, pK, pV), "s_cselect_b32 s%d, s%d, s%d" % (sKV + 1, pK + 1, pV + 1),
                 "s_lshl_b32 s%d, s%d, 5" % (sT, sB), "s_add_u32 s%d, s%d, s%d" % (sT, sT, sH), "s_lshl_b32 s%d, s%d, 1" % (sT, sT),
                 "s_add_u32 s%d, s%d, s%d" % (sT, sT, sKH), "s_lshl_b32 s%d, s%d, 17" % (sT, sT),
                 "s_add_u32 s%d, s%d, s%d" % (sKV, sKV, sT), "s_addc_u32 s%d, s%d, 0" % (sKV + 1, sKV + 1),
                 "s_mov_b32 s%d, 131072" % (sKV + 2), "s_mov_b32 s%d, 0x20000" % (sKV + 3), "s_mov_b32 s%d, 0" % sK0,
                 "v_bfe_u32 v%d, v%d, 2, 2" % (vT, vL), "v_lshrrev_b32 v%d, 4, v%d" % (vT2, vL), "v_lshlrev_b32 v%d, 6, v%d" % (vT2, vT2),
                 "v_xor_b32 v%d, s%d, v%d" % (vT2, sFlip, vT2), "v_lshl_add_u32 v%d, v%d, 8, v%d" % (vT2, vT, vT2),
                 "v_and_b32 v%d, 3, v%d" % (vT, vL), "v_lshl_add_u32 v%d, v%d, 4, v%d" % (vKV, vT, vT2),
                 kvw_m0, "s_nop 0", dmaKV(0), kvw_inc])
    a.e(["s_mul_i32 s%d, s%d, 14336" % (sT, sH), "s_lshl_b32 s%d, s%d, 12" % (sG, sWv), "s_add_u32 s%d, s%d, s%d" % (sT, sT, sG),
         "v_and_b32 v%d, 31, v%d" % (vT3, vL), "v_lshlrev_b32 v%d, 7, v%d" % (vT3, vT3),
         "buffer_load_dword v%d, v%d, s[%d:%d], s%d offen" % (vDum, vT3, sX, sX + 3, sT),
         "s_lshl_b32 s%d, s%d, 2" % (sT, sB), "s_add_u32 s%d, s%d, s%d" % (sT, sT, sWv), "s_lshl_b32 s%d, s%d, 18" % (sT, sT),
         "v_lshrrev_b32 v%d, 1, v%d" % (vT3, vL), "v_lshlrev_b32 v%d, 13, v%d" % (vT3, vT3),
         "v_and_b32 v%d, 1, v%d" % (vT2, vL), "v_lshl_add_u32 v%d, v%d, 7, v%d" % (vT3, vT2, vT3),
         "buffer_load_dword v%d, v%d, s[%d:%d], s%d offen" % (vDum, vT3, sW, sW + 3, sT)])
    for i in range(1, 4): a.e("v_xor_b32 v%d, %d, v%d" % (vKV + i, ((-i) & 3) * 16, vKV))
    a.e(["v_mov_b32 v%d, 0" % i for i in range(12, 16)])
    a.e(["v_lshlrev_b32 v%d, 4, v%d" % (vL16, vL),
         "v_and_b32 v%d, 15, v%d" % (vT, vL), "v_lshrrev_b32 v%d, 4, v%d" % (vT2, vL),
         "v_and_b32 v%d, 6, v%d" % (vT3, vT), "v_xor_b32 v%d, v%d, v%d" % (vT3, vT3, vT2), "v_lshlrev_b32 v%d, 4, v%d" % (vT3, vT3),
         "v_lshl_add_u32 v%d, v%d, 7, v%d" % (vT3, vT, vT3),
         "s_lshl_b32 s%d, s%d, 15" % (sT, sRH), "s_add_u32 s%d, s%d, 16384" % (sT, sT),
         "v_add_u32 v%d, s%d, v%d" % (vXr, sT, vT3), "v_xor_b32 v%d, 64, v%d" % (vXr + 1, vXr),
         "v_add_u32 v%d, 0x10000, v%d" % (vXr + 2, vXr), "v_add_u32 v%d, 0x10000, v%d" % (vXr + 3, vXr + 1)])
    for i in range(7): a.e(zero16(vr(ACC + 16 * i, 16)))
    a.e(["v_bfe_u32 v%d, v%d, 2, 2" % (vT, vL), "v_lshl_add_u32 v%d, v%d, 3, v%d" % (vT, vT2, vT),
         "v_and_b32 v%d, 2, v%d" % (vT3, vT), "v_lshlrev_b32 v%d, 1, v%d" % (vT3, vT3),
         "v_and_b32 v%d, 3, v%d" % (vT2, vL), "v_xor_b32 v%d, v%d, v%d" % (vT3, vT3, vT2), "v_lshlrev_b32 v%d, 4, v%d" % (vT3, vT3),
         "v_lshl_add_u32 v%d, v%d, 7, v%d" % (vT3, vT, vT3),
         "s_lshl_b32 s%d, s%d, 12" % (sT, sKH), "s_add_u32 s%d, s%d, 131072" % (sT, sT),
         "v_add_u32 v%d, s%d, v%d" % (vWr, sT, vT3), "v_xor_b32 v%d, 64, v%d" % (vWr + 1, vWr)])
    for i in range(2, 7): a.e(zero16(vr(OK + 16 * i, 16)))
    for i in range(4): a.e(zero16(ar(aO + 16 * i, 16)))
    a.e(["s_mul_i32 s%d, s%d, 14" % (sT, sB), "s_mul_i32 s%d, s%d, 7" % (sG, sRH), "s_add_u32 s%d, s%d, s%d" % (sT, sT, sG),
         "s_lshl_b32 s%d, s%d, 7" % (sT, sT), "s_lshl_b32 s%d, s%d, 2" % (sG, sH), "s_add_u32 s%d, s%d, s%d" % (sT, sT, sG),
         "s_lshl_b32 s%d, s%d, 1" % (sG, sKH), "s_add_u32 s%d, s%d, s%d" % (sT, sT, sG), "s_lshl_b32 s%d, s%d, 10" % (sT, sT),
         "s_add_u32 s%d, s%d, s%d" % (sO, pWs, sT), "s_addc_u32 s%d, s%d, 0" % (sO + 1, pWs + 1),
         "s_mov_b32 s%d, %d" % (sO + 2, 6 * 131072 + 2048), "s_mov_b32 s%d, 0x20000" % (sO + 3),
         "s_mov_b32 s%d, 0x%x" % (sC, CSCALE), "s_mov_b32 s%d, 0x%x" % (sC + 1, CSCALE),
         "s_and_b32 s%d, s%d, 4" % (sPm, sB), "s_add_u32 s%d, s%d, s%d" % (sPm, sPm, sWv),
         "s_mul_i32 s%d, s%d, %d" % (sT, sRB, 7 * 131072), "s_lshl_b32 s%d, s%d, 14" % (sG, sPm), "s_add_u32 s%d, s%d, s%d" % (sT, sT, sG),
         "s_add_u32 s%d, s%d, s%d" % (sOs, pWs, sT), "s_addc_u32 s%d, s%d, 0" % (sOs + 1, pWs + 1),
         "s_mov_b32 s%d, %d" % (sOs + 2, 6 * 131072 + 16384), "s_mov_b32 s%d, 0x20000" % (sOs + 3),
         "s_lshl_b32 s%d, s%d, 20" % (sT, sPm), "s_lshl_b32 s%d, s%d, 8" % (sG, sCT), "s_add_u32 s%d, s%d, s%d" % (sT, sT, sG),
         "s_add_u32 s%d, s%d, s%d" % (sWs, pWo, sT), "s_addc_u32 s%d, s%d, 0" % (sWs + 1, pWo + 1),
         "s_sub_u32 s%d, 0x100000, s%d" % (sWs + 2, sG), "s_mov_b32 s%d, 0x20000" % (sWs + 3),
         "s_mul_i32 s%d, s%d, %d" % (sT, sRB, 112 * 2048), "s_add_u32 s%d, s%d, s%d" % (sOut, pOut, sT), "s_addc_u32 s%d, s%d, 0" % (sOut + 1, pOut + 1),
         "s_mov_b32 s%d, %d" % (sOut + 2, 112 * 2048), "s_mov_b32 s%d, 0x20000" % (sOut + 3),
         "s_xor_b32 s%d, s%d, 0x10000" % (sRing, sReg),
         "s_lshl_b32 s%d, s%d, 13" % (sSp, sWv), "s_add_u32 s%d, s%d, 131072" % (sSp, sSp),
         "s_sub_u32 s%d, s%d, s%d" % (sD1, sSp, sReg), "s_sub_u32 s%d, s%d, s%d" % (sD2, sRing, sSp)])
    for rt in range(7): a.e("s_mov_b32 s%d, %d" % (sRt + rt, rt * 131072))
    pKr, pVr, pK0, pD, pR, pQ, pFp, pFc, pWoP, pCp = PK, PK + 1, PK + 3, PK + 4, PK + 8, PK + 10, PK + 12, PK + 13, PK + 14, PK + 16
    a.e(flagp(pFp, vT2) + flagc(pFc))
    a.e(["v_bfe_u32 v%d, v%d, 2, 2" % (vT, vL), "v_sub_u32 v%d, 0, v%d" % (vT2, vT), "v_lshrrev_b32 v%d, 4, v%d" % (vT3, vL),
         "v_xor_b32 v%d, v%d, v%d" % (vT2, vT2, vT3), "v_and_b32 v%d, 3, v%d" % (vT2, vT2), "v_lshlrev_b32 v%d, 4, v%d" % (vT2, vT2),
         "v_lshl_add_u32 v%d, v%d, 10, v%d" % (vT2, vT, vT2), "v_and_b32 v%d, 3, v%d" % (pK0, vL), "v_lshlrev_b32 v%d, 6, v%d" % (pK0, pK0),
         "s_lshl_b32 s%d, s%d, 16" % (sG, sKH), "v_add3_u32 v%d, v%d, v%d, s%d" % (pKr, pK0, vT2, sG),
         "v_lshl_add_u32 v%d, v%d, 4, v%d" % (pK0, vT3, pK0),
         "v_sub_u32 v%d, 0, v%d" % (vT2, vT3), "v_bfe_u32 v%d, v%d, 1, 1" % (pVr + 1, vL), "v_xor_b32 v%d, v%d, v%d" % (vT2, vT2, pVr + 1),
         "v_and_b32 v%d, 3, v%d" % (vT2, vT2), "v_lshlrev_b32 v%d, 4, v%d" % (vT2, vT2),
         "v_lshl_add_u32 v%d, v%d, 10, v%d" % (vT2, vT3, vT2), "v_lshl_add_u32 v%d, v%d, 6, v%d" % (vT2, vT, vT2),
         "v_and_b32 v%d, 1, v%d" % (pVr + 1, vL), "v_lshl_add_u32 v%d, v%d, 3, v%d" % (vT2, pVr + 1, vT2),
         "s_add_u32 s%d, s%d, 32768" % (sG, sG), "v_add_u32 v%d, s%d, v%d" % (pVr, sG, vT2), "v_xor_b32 v%d, 32, v%d" % (pVr + 1, pVr),
         "v_add_u32 v%d, s%d, v%d" % (pR, sReg, vT2), "v_xor_b32 v%d, 32, v%d" % (pR + 1, pR),
         "v_lshlrev_b32 v%d, 6, v%d" % (vT2, vT3), "v_lshl_add_u32 v%d, v%d, 11, v%d" % (vT2, vT, vT2), "v_and_b32 v%d, 3, v%d" % (vT, vL),
         "v_lshl_add_u32 v%d, v%d, 4, v%d" % (vT2, vT, vT2), "s_lshl_b32 s%d, s%d, 5" % (sT, sPm), "v_xor_b32 v%d, s%d, v%d" % (pD, sT, vT2)])
    for j in range(1, 4): a.e(["v_xor_b32 v%d, %d, v%d" % (pD + j, ((-j) & 3) * 16, pD), "v_add_u32 v%d, %d, v%d" % (pD + j, j * (8192 - 1024), pD + j)])
    a.e(["v_add_u32 v%d, s%d, v%d" % (pQ, sMW, vL16), "s_lshl_b32 s%d, s%d, 11" % (sT, sRH), "s_add_u32 s%d, s%d, 131072" % (sT, sT), "v_add_u32 v%d, s%d, v%d" % (pQ + 1, sT, vL16),
         "s_lshl_b32 s%d, s2, 2" % sT, "s_add_u32 s%d, s%d, s%d" % (sT, sT, sWv), "s_lshl_b32 s%d, s%d, 13" % (sT, sT),
         "v_lshlrev_b32 v%d, 7, v%d" % (pWoP, vL), "v_add_u32 v%d, s%d, v%d" % (pWoP, sT, pWoP),
         "s_lshl_b32 s%d, s%d, 1" % (sOf, sRB), "s_xor_b32 s%d, s%d, s%d" % (sOf, sOf, sCT), "s_and_b32 s%d, s%d, %d" % (sOf, sOf, O.x3mask), "s_lshl_b32 s%d, s%d, 16" % (sOf, sOf)])
    cp2 = codepf("L_tr", "L_epi", pCp)
    a.e(cp2[:-1])
    a.e(["v_mov_b32 v%d, v%d" % (vT2, vKV + 3), "v_mov_b32 v%d, v%d" % (vT, vKV), "s_sub_u32 s%d, s%d, 2048" % (sK0, sK0),
         "v_min_u32 v%d, %d, v%d" % (vT3, max(O.pfl, 1) - 1, vL), "v_lshlrev_b32 v%d, 7, v%d" % (vT3, vT3), "s_mov_b32 s%d, %d" % (sP, (16384 if O.pfl else 0x1000000) - O.pfl * 128)])
    def kvb(v, off): return "buffer_load_dwordx4 v%d, s[%d:%d], s%d offen offset:%d%s lds" % (v, sKV, sKV + 3, sK0, off, KVF)
    kvpf = "buffer_load_dword v%d, v%d, s[%d:%d], s%d offen %s" % (vDum, vT3, sKV, sKV + 3, sP, O.pf_flags)

    def wreg(k): return {30: 192, 31: 208}.get(k, aWF + 16 * (k & 1))
    def xreg(k, rt): return 16 * rt + 4 * (k & 3)
    def rdW(k):
        out = []
        for dt in range(4):
            dp, t = dt >> 1, dt & 1
            for sec in range(2):
                out.append("ds_read_b64_tr_b16 %s, v%d offset:%d" % (ar(wreg(k) + 4 * dt + 2 * sec, 2), vWr + dp, (k & 3) * 8192 + sec * 512 + t * 8))
        return out
    def rdX1(s, kk, rt): return "ds_read_b128 %s, v%d offset:%d" % (ar(xreg(2 * s + kk, rt), 4), vXr + 2 * (s & 1) + kk, rt * 2048)
    def rdX(s): return [rdX1(s, kk, rt) for kk in range(2) for rt in range(7)]
    def A(rt, k): return [mfma(vr(ACC + 16 * rt + 4 * dt, 4), ar(wreg(k) + 4 * dt, 4), ar(xreg(k, rt), 4), vr(ACC + 16 * rt + 4 * dt, 4)) for dt in range(4)]
    a.e(["s_waitcnt vmcnt(16)", "s_barrier"])
    stamp(1)
    a.e(rdW(0) + rdX(0))
    a.e(["s_mov_b32 s%d, 7" % sCnt, "s_waitcnt vmcnt(14) lgkmcnt(0)", "s_barrier"])

    addr28 = ["v_mov_b32 v%d, v%d" % (240 + i, PK + i) for i in range(8)] + ["v_mov_b32 v%d, v%d" % (vR + i, pR + i) for i in range(2)]
    addr28 += ["v_mov_b32 v%d, v%d" % (vQw + i, pQ + i) for i in range(2)]

    def p1_kstep(km, mode, ctl=False):
        sp, kk = km >> 1, km & 1
        mf = [m_ for rt in range(7) for m_ in A(rt, km)]
        gaps = [[] for _ in range(28)]
        rd = rdW(km + 1)
        if kk == 1: rd += rdX(sp + 1)
        dm = []; nxe = O.nxe; tailops = []
        if mode == "loop":
            def xs(js):
                r = []
                for j in js:
                    if j == 4 and j != js[0]: r += [m0X(sp, 1)]
                    r.append(dmaX(j))
                return r
            if kk == 0: dm += [m0W(km), dmaW(0), dmaW(1), m0X(sp, 0), incW] + xs(list(range(nxe)))
            else:
                if nxe < 7: dm += ([m0X(sp, 1)] if nxe == 4 else []) + xs(list(range(nxe, 7)))
                dm += [m0W(km), incX, dmaW(0), dmaW(1), incW]
                if km == 3:
                    dm += [kvw_m0]; tailops = [kvb(vT2, 0), kvb(vT, 1024), kvpf]
                else: dm += ["v_xor_b32 v%d, 32, v%d" % (vT2, vT2), "v_xor_b32 v%d, 32, v%d" % (vT, vT), "s_add_u32 s%d, s%d, 2048" % (sK0, sK0), "s_add_u32 s%d, s%d, %d" % (sP, sP, O.pfl * 128)]
            endw = "s_waitcnt vmcnt(%d) lgkmcnt(0)" % ((4 + nxe + (3 if km == 0 else 0)) if kk == 0 else 14)
        elif mode == 28:
            dm += ["s_add_u32 s%d, s%d, 2048" % (sK0, sK0), kvw_m0, kvb(vKV + 3, 0), kvw_inc]
            endw = "s_waitcnt vmcnt(4) lgkmcnt(0)"
        for g, x in enumerate(rd): gaps[g].append(x)
        def place(items, lo, hi):
            g_ = lo
            for y in items:
                if y.startswith("global_load"): g_ = min(g_ + 1, hi); gaps[g_].insert(0, y); continue
                while g_ < hi and len(gaps[g_]) >= 2: g_ += 1
                gaps[g_].append(y)
        nld = sum(1 for x in dm if x.startswith("buffer_load"))
        if nld:
            pos = [1 + (i * O.p1_span) // nld for i in range(nld)]
            li = 0; pend = []; prev = -1
            for x in dm:
                if x.startswith("buffer_load"):
                    place(pend, max(prev, 0), pos[li] - 1); pend = []
                    gaps[pos[li]].insert(0, x); prev = pos[li]; li += 1
                else: pend.append(x)
            place(pend, prev, 25)
        for i_, x in enumerate(tailops): gaps[23 + i_].insert(0, x)
        if mode == 28: place(addr28, 4, 25)
        if endw: gaps[26].append(endw); gaps[27].append("s_barrier")
        if ctl:
            gaps[25].append("s_sub_u32 s%d, s%d, 1" % (sCnt, sCnt)); gaps[26].append("s_cmp_lg_u32 s%d, 0" % sCnt)
        weave(a, mf, gaps)
    a.raw(".p2align 5")
    a.lab("L_p1")
    for km in range(4): p1_kstep(km, "loop", ctl=(km == 3))
    a.e("s_cbranch_scc1 L_p1")
    p1_kstep(0, 28)
    a.lab("L_tr")
    a.e(["s_cmp_lg_u32 s%d, 0" % sPass, "s_cbranch_scc1 L_nofl",
         "global_load_dword v%d, v%d, s[%d:%d] sc1" % (vFc, pFc, pWs, pWs + 1),
         "s_cmp_lg_u32 s%d, 0" % sWv, "s_cbranch_scc1 L_nofl",
         "global_load_dword v%d, v%d, s[%d:%d] sc1" % (vFo, pFp, pWs, pWs + 1)])
    a.lab("L_nofl")
    def ismem(x): return x.startswith(("ds_", "buffer_", "global_", "s_barrier"))
    def spread(mf, side, lo=0, hi=None):
        n = len(mf); hi = n - 1 if hi is None else hi
        gaps = [[] for _ in range(n)]
        g = lo
        for i_, x in enumerate(side):
            g = max(g, lo + (i_ * (hi - lo + 1)) // len(side))
            if ismem(x) and any(y.startswith("v_") for y in gaps[g]) and g < hi: g += 1
            gaps[g].append(x)
        weave(a, mf, gaps)
    def rdK(i, slot):
        t, ks = i & 1, i >> 1
        return "ds_read_b128 %s, v%d offset:%d" % (ar(aK + 16 * t + 4 * ks, 4), vKr, slot * 8192 + t * 4096 + ks * 256)
    def xlane(op, regs_, tmp):
        out = []
        for sw in ("v_permlane32_swap_b32", "v_permlane16_swap_b32"):
            out += ["v_mov_b32 v%d, v%d" % (t_, r_) for r_, t_ in zip(regs_, tmp)]
            out += ["%s v%d, v%d" % (sw, r_, t_) for r_, t_ in zip(regs_, tmp)]
            out += ["%s v%d, v%d, v%d" % (op, r_, r_, t_) for r_, t_ in zip(regs_, tmp)]
        return out
    def qk(rt, sb):
        out = []
        for i in range(8):
            t, ks = i & 1, i >> 1
            d = vr(S + 8 * sb + 4 * t, 4)
            out.append(mfma(d, ar(aK + 16 * t + 4 * ks, 4), ar(aQ + 16 * rt + 4 * ks, 4), vr(M + 4 * rt, 4) if ks == 0 else d))
        return out
    def oacc(rt, i): return vr(OK + 16 * rt + 4 * i, 4) if i < 4 else ar(aO + 16 * rt + 4 * (i - 4), 4)
    def pv(rt, pb): return [mfma(oacc(rt, i), vr(V + 4 * i, 4), vr(P + 4 * pb, 4), oacc(rt, i)) for i in range(8)]
    aK0 = 176
    def Bq(rt):
        o = []
        for dp in range(2):
            b = ACC + 16 * rt + 8 * dp
            for i in range(4): o += ["v_mul_f32 v%d, s%d, v%d" % (b + 2 * i, sC, b + 2 * i), "v_mul_f32 v%d, s%d, v%d" % (b + 2 * i + 1, sC, b + 2 * i + 1),
                                     "v_cvt_pk_bf16_f32 v%d, v%d, v%d" % (b + i, b + 2 * i, b + 2 * i + 1)]
            if dp == 0: o.append("s_waitcnt lgkmcnt(0)")
            o.append("ds_write_b128 v%d, %s offset:%d" % (vQw, vr(b, 4), (rt & 3) * 8192 + dp * 1024))
        return o
    def Cq(rt): return ["ds_read_b128 %s, v%d offset:%d" % (ar(aQ + 16 * rt + 4 * ks, 4), vQr, (rt & 3) * 8192 + (ks >> 1) * 4096 + (ks & 1) * 1024) for ks in range(4)]
    def PP(rt): return [mfma(vr(M + 4 * rt, 4), ar(aK0 + 4 * ks, 4), ar(aQ + 16 * rt + 4 * ks, 4), "0" if ks == 0 else vr(M + 4 * rt, 4)) for ks in range(4)]
    def Dq(rt):
        b = M + 4 * rt
        return ["v_max3_f32 v%d, v%d, v%d, v%d" % (b, b, b + 1, b + 2), "v_max_f32 v%d, v%d, v%d" % (b, b, b + 3)] + ["v_sub_f32 v%d, 0, v%d" % (b + i, b) for i in (1, 2, 3, 0)]
    sync = ["s_waitcnt lgkmcnt(0)", "s_barrier"]
    kvs = []
    for sl in (2, 3):
        kvs += [[m0KV(sl, 0), "s_nop 0", dmaKV(0), dmaKV(1)], [dmaKV(2), dmaKV(3), incK], [m0KV(sl, 1), "s_nop 0", dmaKV(4), dmaKV(5)], [dmaKV(6), dmaKV(7), incK]]
    pfs = ([cp2[-1]] if O.pf_code else []) + (["global_load_dword v%d, v%d, s[%d:%d]" % (vDum, pWoP, pWo, pWo + 1)] if O.pf_wo else [])
    t1 = rdW(30) + [rdX1(15, 0, 0)] + rdW(31) + [rdX1(15, 1, 0)] + [rdX1(15, kk, rt) for rt in range(1, 7) for kk in range(2)]
    spread([m_ for rt in range(5) for m_ in A(rt, 29)], t1 + pfs + sync, 0, 19)
    stamp(1)
    for i in range(8):
        mf = (A(i, 30) + A(i, 31) if i < 7 else qk(0, 0)) + (A(5 + i, 29) if i < 2 else PP(i - 2))
        side = []
        if i == 0: mf += [zero16(vr(OK, 16)), zero16(vr(OK + 16, 16))]
        if i == 1: side += ["s_waitcnt vmcnt(%d)" % (2 + len(pfs)), "s_barrier"] + ["ds_read_b128 %s, v%d offset:%d" % (ar(aK0 + 4 * ks, 4), vK0, ks * 256) for ks in range(4)]
        if i >= 2: side += sync + Cq(i - 2)
        if i in (3, 4): side += [rdK(j, 0) for j in range(4 * (i - 3), 4 * (i - 2))]
        if i >= 1: side += Bq(i - 1)
        if i >= 3: side += Dq(i - 3)
        if i == 7: side += ["v_mov_b32 v%d, 0" % j for j in range(L, L + 4)] + ["s_mov_b32 s%d, 3" % sCnt]
        side += kvs[i]
        spread(mf, side)
    if O.ts: a.e(["s_mov_b32 s81, 0", "v_mov_b32 v252, 0"])
    a.e(["s_cmp_lg_u32 s%d, 0" % sPass, "s_cbranch_scc1 L_maxpass"])
    stamp(1)
    NA = 2

    def dma3(j): return "buffer_load_dwordx4 v%d, s[%d:%d], s%d offen offset:%d lds" % (vD + j, sWs, sWs + 3, sWo, j * 1024)
    def setWo(u): return "s_xor_b32 s%d, s%d, 0x%x" % (sWo, sOf, u * 32768)
    def wset(n): return (0, 32, 64, 224)[n & 3]
    def rd3(k, off, dts=range(8)):
        return ["ds_read_b64_tr_b16 %s, v%d offset:%d" % (ar(wset(k) + 4 * dt + 2 * sec, 2), vR + (dt & 1), off + (dt >> 1) * 256 + sec * 4096) for dt in dts for sec in range(2)]
    def xw(rt): return ["ds_write_b128 v%d, %s offset:%d" % (vTa, ar(aO + 16 * rt + 4 * i, 4), rt * 4096 + i * 1024) for i in range(4)]
    vm = VM(["t13"] * 8 + ["t14"] * 8 + ["t15"] * 2)

    def body(js, last=False, first=False):
        for r in range(7):
            u = 7 * js + r
            fin = last and js == 3
            mf = ([] if (fin and r == 6) else qk((r + 1) % 7, (u + 1) & 1)) + pv((r + 6) % 7, (u + 1) & 1)
            mem = [[] for _ in range(16)]; val = [[] for _ in range(16)]
            for e in range(8):
                val[2 * e].append("v_exp_f32 v%d, v%d" % (E + e, S + 8 * (u & 1) + e))
                val[2 * e + 1].append("v_add_f32 v%d, v%d, v%d" % (L + r, L + r, E + e))
                if e & 1: val[2 * e + 1].append("v_cvt_pk_bf16_f32 v%d, v%d, v%d" % (P + 4 * (u & 1) + (e >> 1), E + e - 1, E + e))
            ps = (js + 3) & 3
            kvB = ((not last) or js == 0) and not first
            if first and r == 0:
                mf = mf[:8] + PP(6) + [zero16(ar(192, 16)), zero16(ar(208, 16))]
                mem[0] += sync + Cq(6)[:2]; mem[1] += Cq(6)[2:]; mem[7].append("s_waitcnt lgkmcnt(0)")
                for i_, x in enumerate(Dq(5)): val[3 + 2 * i_].append(x)
            if first and r == 1:
                for i_, x in enumerate(Dq(6) + ["v_mov_b32 v%d, 0" % j for j in range(L + 4, L + 7)]): val[1 + 4 * (i_ % 4)].append(x) if i_ >= 6 else val[1 + 2 * i_].append(x)
            if first and r == 2: mem[9].append(zero16(ar(176, 16)))
            if r == 0:
                for i in range(8):
                    for sec in range(2):
                        mem[8 + i].append("ds_read_b64_tr_b16 %s, v%d offset:%d" % (vr(V + 4 * i + 2 * sec, 2), vVr + (i & 1), js * 8192 + (i >> 1) * 256 + sec * 4096))
            if r == 1: mem[5].append("s_waitcnt lgkmcnt(%d)" % (5 if fin else 0))
            if kvB:
                if r == 0: mem[1].append(dmaKV(2)); mem[5].append(dmaKV(3))
                if r == 1: mem[1].append(m0KV(ps, 1)); mem[9].append(incK); mem[13].append(dmaKV(4))
                if r == 2: mem[1].append(dmaKV(5)); mem[9].append(dmaKV(6))
                if r == 3: mem[1].append(dmaKV(7)); mem[5].append(incK)
            if not last:
                if r == 4:
                    mem[5].append(m0KV(js, 0)); mem[13].append("s_barrier")
                    if not first: mem[9].append("s_waitcnt vmcnt(16)")
                if r == 5: mem[9].append(dmaKV(0))
                if r == 6:
                    mem[1].append(dmaKV(1))
                    if js == 3: mem[5].append("s_sub_u32 s%d, s%d, 1" % (sCnt, sCnt)); mem[9].append("s_cmp_lg_u32 s%d, 0" % sCnt)
            else:
                sched = [{(0, 6): 0, (1, 1): 1, (1, 2): 6, (1, 3): 7, (1, 6): 2, (2, 1): 3, (2, 5): 4, (2, 6): 5},
                         {(0, 6): 0, (1, 1): 6, (1, 3): 1, (1, 5): 7, (2, 0): 2, (2, 2): 3, (2, 5): 4, (3, 0): 5},
                         {(1, 1): 0, (1, 3): 1, (1, 5): 2, (1, 6): 3, (2, 5): 4, (2, 6): 5, (3, 1): 6, (3, 2): 7}][O.tsched]
                if (js, r) in sched:
                    k = sched[(js, r)]
                    base, off = (sReg, k * 4096) if k < 6 else (sSp, (k - 6) * 4096)
                    g0 = (9, 11, 13, 15) if r == 5 else ((1, 3, 5, 7) if r == 0 else (1, 5, 9, 13))
                    mem[g0[0] - 1] += ["s_add_u32 m0, s%d, %d" % (base, off), setWo(k)]
                    for j in range(4): mem[g0[j]].append(("w%d" % k, dma3(j)))
                if r == 4:
                    if js < 3: mem[9].append(("wait", "t%d" % (13 + js)))
                    mem[13].append("s_barrier")
                if js == 0 and r == 5 and O.wl2:
                    val[9] += ["v_lshrrev_b32 v%d, 1, v%d" % (vT3, vL), "v_lshlrev_b32 v%d, 11, v%d" % (vT3, vT3)]
                    val[11] += ["v_and_b32 v%d, 1, v%d" % (vT, vL), "s_and_b32 s%d, s%d, 3" % (sT2, sRB)]
                    val[13] += ["v_lshl_add_u32 v%d, v%d, 7, v%d" % (vT3, vT, vT3), "s_lshl_b32 s%d, s%d, 17" % (sT2, sT2)]
                l2s = {(3, 2): 0, (3, 5): 1}
                if (js, r) in l2s and l2s[(js, r)] < O.wl2:
                    mem[1].append("s_add_u32 s%d, s%d, %d" % (sT, sT2, (8 + l2s[(js, r)]) * 65536))
                    mem[5].append(("pf", "buffer_load_dword v%d, v%d, s[%d:%d], s%d offen" % (vDum, vT3, sWs, sWs + 3, sT)))
                if js == 2 and r == 3 and O.pf_code:
                    pf = codepf("L_epi", "L_end", vT)
                    for i_, x in enumerate(pf[:-1]): val[1 + 2 * i_].append(x)
                    mem[15].append(("pf", pf[-1]))
                if fin:
                    if r < 6:
                        if r % 2 == 0: mem[0] += [("wait", "w%d" % r), ("wait", "w%d" % (r + 1))]
                        for i_, x in enumerate(rd3(r >> 1, (r >> 1) * 8192, range(4 * (r & 1), 4 * (r & 1) + 4))): mem[i_].append(x)
                    else:
                        mem[8] += [("wait", "w6"), ("wait", "w7")]
                        for i_, x in enumerate(rd3(3, 0)): mem[8 + i_ // 2].append(x)
                    if r == 5:
                        for i in range(2): val[9 + 4 * i].append("v_add_u32 v%d, s%d, v%d" % (vR + i, sD1, vR + i))
                    if r >= 2:
                        for i_, x in enumerate(xw(r - 2)): mem[9 + 2 * i_].append(x)
            if r == 5 and not fin:
                for i in range(8): mem[i].append(rdK(i, (js + 1) & 3))
                mem[13].insert(0, "s_waitcnt lgkmcnt(0)")
                if O.ts: mem[11] += TS_A; mem[15] += TS_B
            if fin and r == 6:
                mem = [mem[8 + i] for i in range(8)]
                val = [val[2 * i] + val[2 * i + 1] for i in range(8)]
                val = [[v_[0], "s_nop 0"] + v_[1:] for v_ in val]
                a.e("s_nop 1")
            if first and r == 0:
                mem = mem[:12] + [mem[12] + mem[13], mem[14] + mem[15]]
                val = val[:12] + [val[12] + ["s_nop 0"] + val[13], val[14] + ["s_nop 0"] + val[15]]
            if last and js == 0 and r == 4:
                val[1] += ["v_add_u32 v%d, s%d, v%d" % (vTa, sReg, vL16)]; val[5] += ["v_add_u32 v%d, s%d, v%d" % (vTb, sRing, vL16)]
            for m_, g_, v_ in zip(mf, mem, val):
                a.e(m_)
                for x in g_:
                    if isinstance(x, tuple):
                        if x[0] == "wait": a.e("s_waitcnt vmcnt(%d)" % vm.n(x[1]))
                        else: vm.issue(x[0]); a.e(x[1])
                    else:
                        if last and x.startswith("buffer_load"): vm.issue("t15")
                        a.e(x)
                a.e(v_)
    body(0, first=True)
    a.e("s_branch L_b1")
    a.raw(".p2align 5")
    a.lab("L_loop")
    for js in range(4):
        if js == 1: a.lab("L_b1")
        body(js)
    a.e("s_cbranch_scc1 L_loop")
    a.lab("L_last")
    for js in range(4): body(js, True)
    stamp()

    a.lab("L_epi")
    misc = ["v_add_f32 v%d, v%d, v%d" % (vTc, L, L + 1)] + ["v_add_f32 v%d, v%d, v%d" % (vTc, vTc, L + i) for i in range(2, 7)]
    misc += ["s_mov_b32 s%d, 0x%x" % (sT, THR if not O.force_slow else 0), "s_lshl_b32 s%d, s%d, 2" % (sG, sWv),
             "v_cmp_ngt_f32 vcc, s%d, v%d" % (sT, vTc),
             "s_add_u32 s%d, s%d, 30720" % (sG, sG), "v_mov_b32 v%d, s%d" % (vT, sG),
             "s_cmp_lg_u64 vcc, 0", "s_cselect_b32 s%d, 1, 0" % sT, "v_mov_b32 v%d, 30720" % vT2, "v_mov_b32 v%d, s%d" % (L + 7, sT)]
    a.e("s_nop 1")
    weave(a, pv(6, 1), [misc[2 * i:2 * i + 2] for i in range(7)] + [misc[14:]])
    xl = xlane("v_add_f32", [L + i for i in range(7)], [E + i for i in range(7)])
    w56 = xw(5) + xw(6)
    for i in range(8):
        a.e(w56[i]); a.e(xl[5 * i:5 * i + 5] if i < 7 else xl[35:])
    a.e(["v_add_u32 v%d, s%d, v%d" % (vR + i, sD2, vR + i) for i in range(2)])
    a.e(["ds_write_b128 v%d, %s offset:28672" % (vTa, vr(L, 4)), "ds_write_b128 v%d, %s offset:29696" % (vTa, vr(L + 4, 4)),
         "ds_write_b32 v%d, v%d" % (vT, L + 7), "s_waitcnt lgkmcnt(0)", "s_barrier"])
    stamp(2)
    PL = 208
    a.e(["ds_read_b128 %s, v%d" % (vr(216, 4), vT2), "ds_read_b128 %s, v%d offset:28672" % (vr(PL, 4), vTb), "ds_read_b128 %s, v%d offset:29696" % (vr(PL + 4, 4), vTb)])
    def rdP(rt): return ["ds_read_b128 %s, v%d offset:%d" % (vr(128 + 16 * (rt % 5) + 4 * i, 4), vTb, (rt * 4 + i) * 1024) for i in range(4)]
    for rt in range(3): a.e(rdP(rt))
    a.e(["s_waitcnt lgkmcnt(12)", "v_or3_b32 v216, v216, v217, v218", "v_or_b32 v216, v216, v219"])
    for i in range(7): a.e("v_add_f32 v%d, v%d, v%d" % (L + i, L + i, PL + i))
    a.e(["v_readfirstlane_b32 s%d, v216" % sT])
    for i in range(7): a.e("v_rcp_f32 v%d, v%d" % (L + i, L + i))
    a.e(["s_andn2_b32 s%d, s%d, s%d" % (sT, sT, sPass), "s_cbranch_scc1 L_slow"])
    def wload(k, j):
        if j == 0: a.e(["s_add_u32 m0, s%d, %d" % (sRing, (k & 7) * 4096), setWo(k)])
        vm.issue("w%d" % k); a.e(dma3(j))
    wi = 0
    for rt in range(7):
        if rt + 3 < 7: a.e(rdP(rt + 3))
        a.e("s_waitcnt lgkmcnt(%d)" % (4 * min(3, 6 - rt)))
        pb = 128 + 16 * (rt % 5); ob = OK + 16 * rt; lp = L + rt
        def wnext(k_):
            nonlocal wi
            if k_ < O.w_n and wi < 28 and wi // 4 <= rt: wload(8 + wi // 4, wi % 4); wi += 1
        wnext(0)
        for i in range(8): a.e("v_pk_add_f32 %s, %s, %s" % (vr(ob + 2 * i, 2), vr(ob + 2 * i, 2), vr(pb + 2 * i, 2)))
        wnext(2)
        for i in range(8):
            if lp % 2 == 0: a.e("v_pk_mul_f32 %s, %s, %s op_sel_hi:[1,0]" % (vr(ob + 2 * i, 2), vr(ob + 2 * i, 2), vr(lp, 2)))
            else: a.e("v_pk_mul_f32 %s, %s, %s op_sel:[0,1]" % (vr(ob + 2 * i, 2), vr(ob + 2 * i, 2), vr(lp - 1, 2)))
        wnext(1)
        for i in range(8): a.e("v_cvt_pk_bf16_f32 v%d, v%d, v%d" % (ob + i, ob + 2 * i, ob + 2 * i + 1))
        wnext(3)
        for p in range(2):
            if O.nost and not (rt == 6 and p == 1): continue
            vm.issue("st"); a.e("buffer_store_dwordx4 %s, v%d, s[%d:%d], s%d offen offset:%d %s" % (vr(ob + 4 * p, 4), vL16, sO, sO + 3, sRt + rt, p * 1024, O.st_flags))
    stamp()
    ACC3, OF = 16, 128
    vS, vOo, vOut, vPs = 6, 248, 249, 250
    def acc3(rt, sl):
        hb, wv = sl >> 2, sl & 3
        return vr(ACC3 + 16 * rt + 4 * (2 * hb + wv), 4) if wv < 2 else ar(112 + 16 * rt + 4 * (2 * hb + wv - 2), 4)
    for _ in range(min(O.w_late, 28 - wi)): wload(8 + wi // 4, wi % 4); wi += 1
    a.e(flagp(vT, vT2) + ["v_add_u32 v%d, 1, v%d" % (vFo, vFo)])
    a.e(["s_lshl_b32 s%d, s%d, 5" % (sT, sB), "s_add_u32 s%d, s%d, s%d" % (sT, sT, sH), "v_mov_b32 v%d, s%d" % (vT2, sT), "v_mov_b32 v%d, 1" % vT3,
         "v_xor_b32 v243, 0x80, v%d" % vT2])
    for i in range(7): a.e(zero16(ar(112 + 16 * i, 16)))
    a.e(flagc(241) + ["s_lshr_b32 s%d, s%d, 6" % (sT, sOf), "v_add_u32 v%d, s%d, v%d" % (vOo, sT, vL16),
         "s_lshr_b32 s%d, s%d, 1" % (sT, sRB), "s_lshl_b32 s%d, s%d, 5" % (sT, sT), "s_lshl_b32 s%d, s%d, 2" % (sG, sPm), "s_add_u32 s%d, s%d, s%d" % (sT, sT, sG),
         "v_mov_b32 v242, s%d" % sT, "s_mov_b32 s%d, 0x40000" % sCnt])
    for i in range(7): a.e(zero16(vr(ACC3 + 16 * i, 16)))
    a.e(["s_waitcnt vmcnt(%d)" % vm.n("st"), "s_barrier"])
    stamp(2)
    if O.stamps: a.e("s_memrealtime s[6:7]")
    a.e(["s_cmp_lg_u32 s%d, 0" % sWv, "s_cbranch_scc1 L_noflag",
         "s_mov_b64 exec, 0xfffff", "global_store_dword v%d, v%d, s[%d:%d] sc1" % (vT, vFo, pWs, pWs + 1),
         "s_mov_b64 exec, 1", "global_store_byte v%d, v%d, s[%d:%d] sc1" % (vT2, vT3, pDbg, pDbg + 1), "s_mov_b64 exec, -1"])
    a.lab("L_noflag")
    stamp(2)
    def wpieces(lo, hi):
        out = []
        for p_ in range(lo, hi):
            u, j = 8 + p_ // 4, p_ % 4
            out.append((["s_add_u32 m0, s%d, %d" % (sRing, (u & 7) * 4096), setWo(u)] if j == 0 else [], ("w%d" % u, dma3(j))))
        return out
    if O.dynw:
        a.e(["s_mov_b64 exec, 31", "global_load_dword v%d, v241, s[%d:%d] sc1" % (vT, pWs, pWs + 1), "s_waitcnt vmcnt(0)", "v_cmp_eq_u32 vcc, v%d, v%d" % (vT, vFc), "s_nop 0", "s_cbranch_vccz L_go", "s_mov_b64 exec, -1"])
        for pre, op in wpieces(wi, 32): a.e(pre + [op[1]])
    a.e("s_mov_b64 exec, 31")
    a.lab("L_poll")
    a.e(["global_load_dword v%d, v241, s[%d:%d] sc1" % (vT, pWs, pWs + 1), "s_sub_u32 s%d, s%d, 1" % (sCnt, sCnt), "s_cbranch_scc1 L_go",
         "s_waitcnt vmcnt(0)", "v_cmp_eq_u32 s[%d:%d], v%d, v%d" % (sC, sC + 1, vT, vFc), "s_nop 0", "s_cmp_eq_u64 s[%d:%d], 0" % (sC, sC + 1), "s_cbranch_scc1 L_go",
         "s_and_b32 s%d, s%d, 15" % (sT, sCnt), "s_cbranch_scc1 L_poll",
         "global_load_dword v%d, v242, s[%d:%d] sc1" % (vT, pDbg, pDbg + 1), "global_load_ubyte v%d, v243, s[%d:%d] sc1" % (vT2, pDbg, pDbg + 1), "s_waitcnt vmcnt(0)",
         "v_add_u32 v%d, v%d, v%d" % (vT, vT, vT2), "s_nop 0", "v_readfirstlane_b32 s%d, v%d" % (sT, vT),
         "s_nop 0", "s_cmp_eq_u32 s%d, 0x01010102" % sT, "s_cbranch_scc0 L_poll"])
    a.lab("L_go")
    a.e("s_mov_b64 exec, -1")
    if O.wggo: a.e("s_barrier")
    stamp()
    if O.stamps: a.e(["s_memrealtime s[4:5]", "s_mov_b32 s10, s%d" % sCnt])
    def ldO(rt, k): return "buffer_load_dwordx4 %s, v%d, s[%d:%d], s%d offen sc1" % (vr(OF + 28 * (k & 3) + 4 * rt, 4), vOo, sOs, sOs + 3, sRt + rt)
    def incO(k): return "v_xor_b32 v%d, 0x%x, v%d" % (vOo, (k ^ (k + 1)) << 10, vOo)
    for k in range(2):
        for rt in range(7): vm.issue("o%d" % k); a.e(ldO(rt, k))
        a.e(incO(k))
    a.e(["v_add_u32 v%d, s%d, v%d" % (vS, sRing, vL16)])
    for i in range(1, 4): a.e(["v_xor_b32 v%d, 0x%x, v%d" % (vS + i, i << 15, vS)])
    a.e(["v_and_b32 v%d, 15, v%d" % (vT, vL), "v_lshrrev_b32 v%d, 4, v%d" % (vT2, vL), "v_lshlrev_b32 v%d, 3, v%d" % (vT2, vT2),
         "v_lshl_add_u32 v%d, v%d, 11, v%d" % (vT, vT, vT2),
         "s_lshl_b32 s%d, s%d, 8" % (sT, sCT), "s_lshl_b32 s%d, s%d, 5" % (sG, sPm), "s_add_u32 s%d, s%d, s%d" % (sT, sT, sG),
         "v_add_u32 v%d, s%d, v%d" % (vOut, sT, vT)] + boxaddr(vPs) + ["v_xor_b32 v%d, 0x8000, v%d" % (vPs + 1, vPs)])
    a.e(["s_waitcnt vmcnt(%d)" % vm.n("o0")])
    def redw(rt, hb, wv): return "ds_write_b128 v%d, %s offset:%d" % (vS, acc3(rt, 4 * hb + wv), (wv - 1) * 7168 + rt * 1024)
    def redr(rt, wv, d): return "ds_read_b128 %s, v%d offset:%d" % (vr(d, 4), vS + wv, (wv - 1) * 7168 + rt * 1024)
    def mf3(rt, sl, k): return mfma(acc3(rt, sl), ar(wset(k) + 4 * sl, 4), vr(OF + 28 * (k & 3) + 4 * rt, 4), acc3(rt, sl))
    def emit(mf, gaps):
        for m_, g_ in zip(mf, gaps):
            a.e(m_)
            for x in g_:
                if isinstance(x, tuple):
                    if x[0] == "wait": a.e("s_waitcnt vmcnt(%d)%s" % (min(vm.n(t_) for t_ in x[1]), " lgkmcnt(0)" if x[2] else ""))
                    elif O.dynw and x[0][0] == "w" and int(x[0][1:]) < 16:
                        nsk[0] += 1
                        vm.issue(x[0], True); a.e(["s_cbranch_vccnz L_sk%d" % nsk[0], x[1]]); a.lab("L_sk%d" % nsk[0])
                    else: vm.issue(x[0]); a.e(x[1])
                else: a.e(x)
    nsk = [0]
    left = 32 - wi
    for k in range(13):
        mf = [mf3(rt, sl, k) for rt in range(7) for sl in range(8)]
        gaps = [[] for _ in range(56)]
        if k >= 2:
            for g, x in enumerate(rd3(k + 2, ((k + 2) & 3) * 8192)): gaps[g].append(x)
        if k == 12:
            for g, x in enumerate(rd3(15, 3 * 8192)): gaps[16 + g].append(x)
        if k < 3: wl = wpieces(wi + (left * k) // 3, wi + (left * (k + 1)) // 3)
        elif k <= 10: wl = wpieces(8 * (k + 1), 8 * (k + 2))
        else: wl = []
        ol = [([], ("o%d" % kk_, ldO(rt, kk_))) + ((incO(kk_),) if rt == 6 else ()) for kk_ in ([2, 3] if k == 0 else [k + 3]) for rt in range(7)]
        ld = sorted([((i_ + 0.5) / len(wl), x) for i_, x in enumerate(wl)] + [((i_ + 0.25) / len(ol), x) for i_, x in enumerate(ol)], key=lambda t_: t_[0])
        for i_, (_, x) in enumerate(ld):
            g = 1 + (i_ * 53) // len(ld)
            gaps[g - 1] += x[0]; gaps[g].insert(0, x[1])
            if len(x) > 2: gaps[g].append(x[2])
        need_ = ["o%d" % (k + 1)] + (["w%d" % (2 * (k + 3) + 1)] if 1 <= k <= 11 else []) + (["w31"] if k == 11 else [])
        gaps[55].append(("wait", need_, k >= 2))
        emit(mf, gaps)
    mf = [mf3(rt, 4 * hb + wv, k) for hb in (1, 0) for k in (13, 14, 15) for rt in range(7) for wv in range(4)]
    gaps = [[] for _ in range(168)]
    gaps[27].append(("wait", ["o14"], False)); gaps[55].append(("wait", ["o15"], False))
    g = 0
    for rt in range(7):
        for wv in range(1, 4):
            g = max(g + 2, 56 + 4 * rt + wv + 9); gaps[g].append(redw(rt, 1, wv))
    g += 3; gaps[g].append("s_waitcnt lgkmcnt(0)"); gaps[g + 1].append("s_barrier"); g += 2
    assert g >= 84 + 28 - 2, g
    g = max(g, 84 + 28)
    def tmp1(rt, wv): return (ACC3 + 16 * rt + 12, OF + 4 * rt, OF + 28 + 4 * rt)[wv - 1]
    for rt in range(7):
        for wv in range(1, 4): gaps[g + (3 * rt + wv - 1) // 2].append(redr(rt, wv, tmp1(rt, wv)))
    g += 11
    gaps[g + 2].append("s_waitcnt lgkmcnt(0)"); gaps[g + 3].append("s_barrier")
    g += 4
    ads = []
    for rt in range(7):
        b = ACC3 + 16 * rt + 8
        ads += ["v_add_f32 v%d, v%d, v%d" % (b + i, b + i, tmp1(rt, 1) + i) for i in range(4)]
        ads += ["v_add_f32 v%d, v%d, v%d" % (tmp1(rt, 2) + i, tmp1(rt, 2) + i, tmp1(rt, 3) + i) for i in range(4)]
        ads += ["v_add_f32 v%d, v%d, v%d" % (b + i, b + i, tmp1(rt, 2) + i) for i in range(4)]
        ads += [("ps", "global_store_dwordx4 v%d, %s, s[%d:%d] offset:%d sc1" % (vPs + 1, vr(b, 4), pWs, pWs + 1, rt * 1024 - 3072))]
    n_ = 0
    for x in ads:
        if isinstance(x, tuple): g += 1; n_ = 0; gaps[g].insert(0, x); continue
        gaps[g].append(x); n_ += 1
        if n_ == 3: g += 1; n_ = 0
    assert g < 168, g
    lastw = []
    for rt in range(7):
        for wv in range(1, 4):
            g2 = 140 + 4 * rt + wv + 8
            if g2 < 168: gaps[g2].insert(0, redw(rt, 0, wv))
            else: lastw.append(redw(rt, 0, wv))
    emit(mf, gaps)
    stamp()
    PB = OF + 84
    ldP = ["global_load_dwordx4 %s, v%d, s[%d:%d] offset:%d sc1" % (vr(PB + 4 * rt, 4), vPs, pWs, pWs + 1, rt * 1024 - 3072) for rt in range(7)]
    a.e(["s_nop 1"] + lastw[:3] + ["s_nop 1"] + lastw[3:] + ["v_add_u32 v%d, 1, v%d" % (vT, vFc), "s_mov_b32 s%d, 0x40000" % sCnt, "s_waitcnt vmcnt(0)", "s_mov_b64 exec, 64",
         "global_store_dword v241, v%d, s[%d:%d] sc1" % (vT, pWs, pWs + 1), "s_mov_b64 exec, -1", "s_waitcnt lgkmcnt(0)", "s_barrier"])
    for rt in range(7):
        for wv in range(1, 4): a.e(redr(rt, wv, OF + 12 * rt + 4 * (wv - 1)))
    for rt in range(7):
        a.e("s_waitcnt lgkmcnt(%d)" % min(15, 3 * (6 - rt)))
        b = ACC3 + 16 * rt; t = OF + 12 * rt
        for h in range(2):
            a.e("v_pk_add_f32 %s, %s, %s" % (vr(b + 2 * h, 2), vr(b + 2 * h, 2), vr(t + 2 * h, 2)))
            a.e("v_pk_add_f32 %s, %s, %s" % (vr(t + 4 + 2 * h, 2), vr(t + 4 + 2 * h, 2), vr(t + 8 + 2 * h, 2)))
        for h in range(2): a.e("v_pk_add_f32 %s, %s, %s" % (vr(b + 2 * h, 2), vr(b + 2 * h, 2), vr(t + 4 + 2 * h, 2)))
    a.e("s_mov_b64 exec, 32")
    a.lab("L_poll2")
    a.e(["global_load_dword v%d, v241, s[%d:%d] sc1" % (vT, pWs, pWs + 1), "s_sub_u32 s%d, s%d, 1" % (sCnt, sCnt), "s_cbranch_scc1 L_go2",
         "s_waitcnt vmcnt(0)", "v_cmp_eq_u32 vcc, v%d, v%d" % (vT, vFc), "s_nop 0", "s_cbranch_vccnz L_poll2"])
    a.lab("L_go2")
    a.e(["s_mov_b64 exec, -1"] + ldP)
    for rt in range(7):
        b = ACC3 + 16 * rt; t = PB + 4 * rt
        a.e(["s_waitcnt vmcnt(6)"] + ["v_pk_add_f32 %s, %s, %s" % (vr(b + 2 * h, 2), vr(b + 2 * h, 2), vr(t + 2 * h, 2)) for h in range(2)])
        a.e(["v_cvt_pk_bf16_f32 v%d, v%d, v%d" % (b, b, b + 1), "v_cvt_pk_bf16_f32 v%d, v%d, v%d" % (b + 1, b + 2, b + 3),
             "s_mov_b32 s%d, %d" % (sT, rt * 32768),
             "buffer_store_dwordx2 %s, v%d, s[%d:%d], s%d offen %s" % (vr(b, 2), vOut, sOut, sOut + 3, sT, O.out_flags)])
    if O.stamps:
        a.e(["s_waitcnt vmcnt(0)"])
        if not O.ts: stamp()
        a.e(["s_memrealtime s[78:79]", "s_waitcnt lgkmcnt(0)", "s_lshl_b32 s%d, s2, 2" % sT, "s_add_u32 s%d, s%d, s%d" % (sT, sT, sWv), "s_lshl_b32 s%d, s%d, 6" % (sT, sT),
             "s_add_u32 s%d, s%d, 0x%x" % (sT, sT, STAMP_OFF),
             "s_add_u32 s%d, s%d, s%d" % (sO, pWs, sT), "s_addc_u32 s%d, s%d, 0" % (sO + 1, pWs + 1), "s_mov_b32 s%d, 64" % (sO + 2), "v_mov_b32 v%d, 0" % vT])
        for i in range(nst[0]):
            a.e(["s_sub_u32 s%d, s%d, s%d" % (sT, sST + 2 * i, sST), "v_mov_b32 v%d, s%d" % (vT2, sT),
                 "buffer_store_dword v%d, v%d, s[%d:%d], 0 offen offset:%d" % (vT2, vT, sO, sO + 3, 4 * i)])
        for i, r_ in enumerate((10, 6, 4, sST, 78)):
            a.e(["v_mov_b32 v%d, s%d" % (vT2, r_), "buffer_store_dword v%d, v%d, s[%d:%d], 0 offen offset:%d" % (vT2, vT, sO, sO + 3, 44 + 4 * i)])
    if O.ts:
        a.e(["s_lshl_b32 s%d, s2, 9" % sT, "s_add_u32 s%d, s%d, 0x%x" % (sT, sT, STAMP_OFF + 0x200000),
             "s_add_u32 s%d, s%d, s%d" % (sO, pWs, sT), "s_addc_u32 s%d, s%d, 0" % (sO + 1, pWs + 1), "s_mov_b32 s%d, 512" % (sO + 2),
             "v_lshlrev_b32 v%d, 2, v%d" % (vT, vL), "buffer_store_dword v252, v%d, s[%d:%d], 0 offen" % (vT, sO, sO + 3)])
    a.lab("L_end")
    a.e("s_endpgm")

    a.lab("L_slow")
    a.e(["s_waitcnt vmcnt(0) lgkmcnt(0)", "s_barrier", "s_mov_b32 s%d, 1" % sPass] + lane_setup() + ["s_branch L_restart"])
    a.lab("L_maxpass")
    a.e(["s_waitcnt vmcnt(0) lgkmcnt(0)", "s_barrier"] + Cq(6) + ["s_mov_b32 s%d, 16" % sCnt, "s_mov_b32 s%d, 0" % sK0])
    a.e([zero16(ar(176 + 16 * i, 16)) for i in range(3)] + ["s_nop 7"])
    for rt in range(7): a.e("v_mov_b32 v%d, 0xff800000" % (M + 4 * rt))
    a.lab("L_slow_loop")
    a.e(kvtile(0))
    a.e(["s_waitcnt vmcnt(0)", "s_barrier"])
    a.e([rdK(i, 0) for i in range(8)])
    a.e(["s_waitcnt lgkmcnt(0)", "s_barrier"])
    for rt in range(7):
        for i in range(8):
            t, ks = i & 1, i >> 1
            d = vr(S + 4 * t, 4)
            a.e(mfma(d, ar(aK + 16 * t + 4 * ks, 4), ar(aQ + 16 * rt + 4 * ks, 4), "0" if ks == 0 else d))
        a.e("s_nop 7")
        for i in range(4): a.e("v_max3_f32 v%d, v%d, v%d, v%d" % (M + 4 * rt, M + 4 * rt, S + 2 * i, S + 2 * i + 1))
    a.e(["s_sub_u32 s%d, s%d, 1" % (sCnt, sCnt), "s_cmp_lg_u32 s%d, 0" % sCnt, "s_cbranch_scc1 L_slow_loop"])
    a.e(xlane("v_max_f32", [M + 4 * rt for rt in range(7)], [M + 4 * rt + 1 for rt in range(7)]))
    a.e(["v_add_u32 v%d, s%d, v%d" % (vTc, sSp, vL16), "v_xor_b32 v%d, 16384, v%d" % (vT3, vTc)])
    for rt in range(7): a.e("ds_write_b32 v%d, v%d offset:%d" % (vTc, M + 4 * rt, rt * 1024))
    a.e(["s_waitcnt lgkmcnt(0)", "s_barrier"])
    for rt in range(7): a.e("ds_read_b32 v%d, v%d offset:%d" % (M + 4 * rt + 1, vT3, rt * 1024))
    a.e(["s_mov_b32 s%d, 0" % sK0])
    for tl in range(3): a.e(kvtile(tl))
    a.e([m0KV(3, 0), "s_nop 0"] + [dmaKV(i) for i in range(NA)])
    a.e("s_waitcnt lgkmcnt(0)")
    for rt in range(7): a.e("v_max_f32 v%d, v%d, v%d" % (M + 4 * rt, M + 4 * rt, M + 4 * rt + 1))
    a.e(["s_waitcnt vmcnt(%d)" % (8 + NA), "s_barrier"])
    a.e([rdK(i, 0) for i in range(8)])
    a.e([zero16(vr(V, 16)), zero16(vr(V + 16, 16))])
    a.e(["v_sub_f32 v%d, 0, v%d" % (M + 4 * rt + i, M + 4 * rt) for rt in range(7) for i in (1, 2, 3, 0)])
    a.e(["v_mov_b32 v%d, 0" % i for i in range(L, L + 7)] + ["v_mov_b32 v%d, 0" % i for i in range(P + 4, P + 8)])
    a.e(["s_mov_b32 s%d, 3" % sCnt, "s_waitcnt lgkmcnt(0)"] + qk(0, 0) + ["s_nop 7", "s_branch L_loop"])

def build():
    ref = open("cdna_kernels/%s.s.ref" % NAME).read()
    hdr = ref.split("; Override launch")[0]
    a = Asm()
    k = NAME + "_kernel"
    a.raw(".amdgcn_target \"amdgcn-amd-amdhsa--gfx950\"\n.text")
    a.raw(".globl %s\n.p2align 8\n.type %s,@function" % (k, k))
    kernel(a)
    for e in check(a.L): print(e, file=sys.stderr)
    t = hdr + "; @launch grid=(256,1,1) block=(256,1,1) lds=163840\n" + a.text()
    t += """.section .rodata,"a"
.p2align 6
.amdhsa_kernel %s
  .amdhsa_next_free_vgpr 512
  .amdhsa_next_free_sgpr 102
  .amdhsa_accum_offset 256
  .amdhsa_group_segment_fixed_size 0
  .amdhsa_kernarg_size 64
  .amdhsa_user_sgpr_count 2
  .amdhsa_user_sgpr_kernarg_segment_ptr 1
  .amdhsa_system_sgpr_workgroup_id_x 1
.end_amdhsa_kernel
""" % k
    return t

if __name__ == "__main__":
    out = sys.argv[1] if len(sys.argv) > 1 else "cdna_kernels/%s.s" % NAME
    for kv in sys.argv[2:]:
        k, v = kv.split("=")
        cur = getattr(O, k)
        setattr(O, k, (v == "1") if isinstance(cur, bool) else type(cur)(v))
    open(out, "w").write(build())
```

```python
import re
class Asm:
    def __init__(self): self.L = []
    def e(self, x):
        if isinstance(x, (list, tuple)):
            for y in x: self.e(y)
        else: self.L.append("  " + x)
    def lab(self, x): self.L.append(x + ":")
    def raw(self, x): self.L.append(x)
    def text(self): return "\n".join(self.L) + "\n"

def vr(b, n=1): return "v%d" % b if n == 1 else "v[%d:%d]" % (b, b + n - 1)
def ar(b, n=1): return "a%d" % b if n == 1 else "a[%d:%d]" % (b, b + n - 1)
def sr(b, n=1): return "s%d" % b if n == 1 else "s[%d:%d]" % (b, b + n - 1)
def mfma(d, a, b, c): return "v_mfma_f32_16x16x32_bf16 %s, %s, %s, %s" % (d, a, b, c)

def weave(asm, mf, gaps):
    assert len(gaps) == len(mf)
    for m, g in zip(mf, gaps):
        asm.e(m)
        for x in g: asm.e(x)

_REG = re.compile(r"\b([vas])(\d+)\b|\b([vas])\[(\d+):(\d+)\]")
def regs(op):
    out = set()
    for m in _REG.finditer(op):
        if m.group(1): out.add((m.group(1), int(m.group(2))))
        else:
            for i in range(int(m.group(4)), int(m.group(5)) + 1): out.add((m.group(3), i))
    if re.search(r"\bvcc\b", op): out.add(("s", "vcc"))
    if re.search(r"\bm0\b", op): out.add(("s", "m0"))
    if re.search(r"\bexec\b", op): out.add(("s", "exec"))
    return out
TRANS = ("v_exp_f32", "v_rcp_f32", "v_log_f32", "v_rsq_f32", "v_sqrt_f32")
def parse(line):
    line = line.split(";")[0].strip()
    if not line or line.endswith(":") or line.startswith("."): return None
    p = line.split(None, 1)
    op = p[0]; ops = [o.strip() for o in p[1].split(",")] if len(p) > 1 else []
    d = dict(op=op, w=set(), r=set(), kind="other", line=line, ws=1)
    if op == "s_nop": d["ws"] = int(ops[0]) + 1; return d
    if op.startswith("v_mfma"):
        d["kind"] = "mfma"; d["w"] = regs(ops[0]); d["a"] = regs(ops[1]) | regs(ops[2]); d["c"] = regs(ops[3]); d["r"] = d["a"] | d["c"]
    elif op.startswith("v_"):
        d["kind"] = "valu"
        d["w"] = regs(ops[0]); d["r"] = set().union(*[regs(o) for o in ops[1:]]) if len(ops) > 1 else set()
        if op.startswith("v_permlane"): d["r"] |= d["w"]; d["w"] = d["r"]
        if op.startswith(("v_fmac", "v_mac")): d["r"] |= d["w"]
        if op.startswith("v_cndmask") and len(ops) == 3: d["r"].add(("s", "vcc"))
        d["trans"] = op.replace("_e32", "").replace("_e64", "") in TRANS
    elif op.startswith("ds_read"):
        d["kind"] = "ds"; d["w"] = regs(ops[0]); d["r"] = regs(ops[1].split()[0])
    elif op.startswith("ds_write"):
        d["kind"] = "ds"; d["r"] = set().union(*[regs(o.split()[0]) for o in ops])
    elif op.startswith(("buffer_load", "global_load")):
        d["kind"] = "vmem"
        if line.endswith(" lds") or op.startswith("global_load_lds"): d["r"] = set().union(*[regs(o.split()[0]) for o in ops]) | {("s", "m0")}; d["dma"] = True
        else: d["w"] = regs(ops[0]); d["r"] = set().union(*[regs(o.split()[0]) for o in ops[1:]])
    elif op.startswith(("buffer_store", "global_store", "buffer_atomic", "global_atomic")):
        d["kind"] = "vmem"; d["r"] = set().union(*[regs(o.split()[0]) for o in ops]); d["store"] = True
        d["data"] = regs(ops[0]) if op.startswith("buffer") else regs(ops[1])
        d["wide"] = op.endswith(("x4", "x3"))
    elif op.startswith("s_"):
        d["kind"] = "salu"
        if op.startswith(("s_cmp", "s_cbranch", "s_branch", "s_waitcnt", "s_barrier", "s_endpgm", "s_setprio", "s_sleep", "s_bitcmp")):
            d["r"] = set().union(*[regs(o) for o in ops]) if ops else set()
        else:
            d["w"] = regs(ops[0]); d["r"] = set().union(*[regs(o) for o in ops[1:]]) if len(ops) > 1 else set()
    return d

def need(p, c):
    n = 0
    if p["kind"] == "mfma":
        x = 4 if "32x32" in p["op"] else 0
        if c["kind"] == "mfma":
            if p["w"] & c["a"]: n = max(n, 8 + x)
            if p["w"] & c["c"] and p["w"] != c["c"]: n = max(n, 6 + x)
            if p["w"] & c["w"] and p["w"] != c["w"]: n = max(n, 6 + x)
        elif c["kind"] in ("valu", "ds", "vmem"):
            if p["w"] & (c["r"] | c["w"]): n = max(n, 8 + x)
            if c["kind"] == "valu" and p["c"] & c["w"]: n = max(n, 3 + x)
    elif p["kind"] == "valu":
        vw = {x for x in p["w"] if x[0] in "va"}; sw = {x for x in p["w"] if x[0] == "s"}
        if c["kind"] == "mfma" and vw & c["r"]: n = max(n, 2)
        if c["kind"] == "mfma" and ("s", "exec") in sw: n = max(n, 4)
        if c["kind"] == "valu":
            if p.get("trans") and not c.get("trans") and vw & c["r"]: n = max(n, 1)
            if c["op"].startswith("v_permlane") and vw & c["r"]: n = max(n, 2)
            if c["op"].startswith(("v_readfirstlane", "v_readlane")) and vw & c["r"]: n = max(n, 1)
            if sw & c["r"]: n = max(n, 2)
            if "dpp" in c["line"] and vw & c["r"]: n = max(n, 2)
        if c["kind"] == "vmem" and sw & c["r"]: n = max(n, 5)
        if c["kind"] == "salu" and sw & c["r"]: n = max(n, 1)
    elif p["kind"] == "salu":
        if ("s", "m0") in p["w"] and c.get("dma"): n = max(n, 1)
    elif p["kind"] == "vmem" and p.get("store") and p.get("wide"):
        if p["data"] & c["w"]: n = max(n, 2 if c["kind"] == "valu" else 1)
    return n

def check(lines, window=14):
    ins = []; labels = {}
    for ln in lines:
        s = ln.split(";")[0].strip()
        if s.endswith(":") and not s.startswith("."): labels[s[:-1]] = len(ins); continue
        d = parse(ln)
        if d: ins.append(d)
    errs = []
    def scan(seq, first_consumer=0):
        for j in range(first_consumer, len(seq)):
            c = seq[j]; dist = 0
            for i in range(j - 1, max(-1, j - 1 - window), -1):
                p = seq[i]
                if p["op"] in ("s_branch", "s_endpgm") and first_consumer == 0: break
                n = need(p, c)
                if n > dist: errs.append("HAZARD need %d have %d: [%s] -> [%s]" % (n, dist, p["line"], c["line"]))
                dist += p["ws"]
                if dist >= 13: break
    scan(ins)
    NOSCC = ("s_mov", "s_cselect", "s_mul", "s_waitcnt", "s_barrier", "s_nop", "s_cbranch", "s_branch", "s_load", "s_mem", "s_getpc", "s_getreg", "s_endpgm", "s_sleep", "s_setprio")
    last = None
    for d in ins:
        op = d["op"]
        if op.startswith(("s_cselect", "s_cbranch_scc", "s_addc")):
            ok = last is not None and (last["op"].startswith("s_cmp") or (op.startswith("s_addc") and last["op"] == "s_add_u32" and "m0" not in last["line"])
                                       or (op.startswith("s_cbranch") and last["op"] in ("s_sub_u32", "s_and_b32", "s_andn2_b32") and "m0" not in last["line"]))
            if not ok: errs.append("SCC? [%s] -> [%s]" % (last and last["line"], d["line"]))
        if op.startswith("s_") and not op.startswith(NOSCC): last = d
    for k, d in enumerate(ins):
        if d["op"].startswith(("s_cbranch", "s_branch")):
            t = d["line"].split()[-1]
            if t in labels:
                pre = ins[max(0, k - window):k + 1]
                seq = pre + ins[labels[t]:labels[t] + window]
                scan(seq, len(pre))
    return sorted(set(errs))
```

```python
import sys, math, struct
from asmlib import *

NAME = "standalone__mha_block_cached__near_ridge"
def f32(x): return struct.unpack("<I", struct.pack("<f", x))[0]
CSCALE = f32(128 ** -0.5 * math.log2(math.e))
THR = f32(2.0 ** 30)

class Opt:
    stamps = False
    ts = False
    kv_nt = True
    nxe = 5
    p1_span = 26
    force_slow = False
    pf_xw = True
    pf_wo = True
    pf_code = True
    w_n = 0
    w_late = 8
    wl2 = 0
    out_flags = ""
    pfl = 0
    burst = 3
    x1mask = 3
    rd_first = False
    wqc = False
    tb4 = False
    wo_r = 3
    bstep = 2
    t3late = False
    wo_at = 1
    dynw = True
    wggo = False
    olook = 3
    sset = 1
    nost = False
    st_flags = "sc1"
    x3mask = 7
    burn = 0
    tsched = 1
    pf_flags = ""
    wpf = 0
O = Opt()
STAMP_OFF = 0x8000000
FLAG_OFF = 0x1000000
PART_OFF = 0x2000000

def zero16(d): return "v_mfma_f32_32x32x16_bf16 %s, v[12:15], v[12:15], 0" % d

class VM:
    def __init__(self, init): self.ops = list(init)
    def issue(self, tag, opt=False): self.ops.append(tag + "?" if opt else tag)
    def n(self, tag):
        idx = max(i for i, t in enumerate(self.ops) if t.rstrip("?") == tag)
        if self.ops[idx].endswith("?"): return min(63, len(self.ops) - 1 - idx)
        return min(63, sum(1 for t in self.ops[idx + 1:] if not t.endswith("?")))

def kernel(a):
    KVF = " nt" if O.kv_nt else ""
    pX, pK, pV, pWq, pWo, pOut, pDbg, pWs = 4, 6, 8, 10, 12, 14, 16, 18
    sX, sW, sKV, sO, sOs, sWs, sOut = 20, 24, 28, 32, 36, 40, 44
    (sWv, sB, sH, sRH, sKH, sXoff, sWoff, sCnt, sMX, sMW, sReg, sRing, sSp, sG, sFlip, sK0, sPass, sT, sT2, sRB, sCT, sWo, sD1, sD2) = range(48, 72)
    sP = 3 if not O.ts else 81
    sOf = 1; sPm = 0
    sC = 72; sRt = 74; sPC = 82; sST = 84
    vL, vT, vT2, vT3, vL16 = 1, 2, 3, 4, 5
    vKV, vW = 6, 10
    OK, ACC = 16, 128
    M, S, E, P, V, L = 128, 156, 172, 180, 188, 220
    vTa, vTb, vTc = 234, 235, 236
    vX, vXr, vWr = 240, 247, 251
    vKr, vVr, vK0 = 240, 241, 243
    vD, vR = 244, 10
    vQw, vQr = 2, 3
    PK = 16
    vFo, vFc, vDum = 254, 255, 253
    vCp = 0
    aQ, aO, aK = 0, 112, 224
    aXF, aWF = 0, 224
    nst = [0]
    def stamp(m=3):
        if O.stamps and (m & O.sset):
            assert nst[0] < 9
            a.e("s_memrealtime s[%d:%d]" % (sST + 2 * nst[0], sST + 2 * nst[0] + 1)); nst[0] += 1
    def flagp(v, t):
        return ["s_and_b32 s%d, s%d, 1" % (sT, sB), "s_lshl_b32 s%d, s%d, 6" % (sT, sT), "s_lshr_b32 s%d, s%d, 1" % (sG, sB), "s_lshl_b32 s%d, s%d, 3" % (sG, sG),
                "s_add_u32 s%d, s%d, s%d" % (sT, sT, sG), "s_lshr_b32 s%d, s%d, 2" % (sG, sH), "s_add_u32 s%d, s%d, s%d" % (sT, sT, sG), "s_lshl_b32 s%d, s%d, 7" % (sT, sT),
                "s_and_b32 s%d, s%d, 3" % (sG, sH), "s_lshl_b32 s%d, s%d, 2" % (sG, sG), "s_add_u32 s%d, s%d, s%d" % (sT, sT, sG), "s_add_u32 s%d, s%d, 0x%x" % (sT, sT, FLAG_OFF),
                "v_lshrrev_b32 v%d, 1, v%d" % (v, vL), "v_lshlrev_b32 v%d, 14, v%d" % (v, v), "v_and_b32 v%d, 1, v%d" % (t, vL),
                "v_lshl_add_u32 v%d, v%d, 12, v%d" % (v, t, v), "v_add_u32 v%d, s%d, v%d" % (v, sT, v),
                "s_xor_b32 s%d, s2, 1" % sT, "s_lshl_b32 s%d, s%d, 9" % (sT, sT), "s_add_u32 s%d, s%d, 0x%x" % (sT, sT, FLAG_OFF + 16),
                "v_and_b32 v%d, 3, v%d" % (t, vL), "v_lshlrev_b32 v%d, 7, v%d" % (t, t), "v_cmp_gt_u32 vcc, 16, v%d" % vL, "v_add_u32 v%d, s%d, v%d" % (t, sT, t),
                "s_nop 0", "v_cndmask_b32 v%d, v%d, v%d, vcc" % (v, t, v)]
    def flagc(v):
        return ["s_lshl_b32 s%d, s2, 2" % sT, "s_add_u32 s%d, s%d, s%d" % (sT, sT, sWv), "s_lshl_b32 s%d, s%d, 7" % (sT, sT), "s_add_u32 s%d, s%d, 0x%x" % (sT, sT, FLAG_OFF),
                "v_min_u32 v%d, 5, v%d" % (v, vL), "v_lshlrev_b32 v%d, 2, v%d" % (v, v), "v_add_u32 v%d, s%d, v%d" % (v, sT, v),
                "s_mov_b64 exec, 64", "v_xor_b32 v%d, 0x200, v%d" % (v, v), "s_mov_b64 exec, -1"]
    def boxaddr(v):
        return ["s_lshl_b32 s%d, s2, 2" % sT, "s_add_u32 s%d, s%d, s%d" % (sT, sT, sWv), "s_lshl_b32 s%d, s%d, 13" % (sT, sT),
                "s_add_u32 s%d, s%d, 0x%x" % (sT, sT, PART_OFF + 3072), "v_add_u32 v%d, s%d, v%d" % (v, sT, vL16)]
    def codepf(lo, hi, t0):
        return ["v_min_u32 v%d, %s-%s-4, v%d" % (t0, hi, lo, vCp), "v_add_u32 v%d, %s-L_pc, v%d" % (t0, lo, t0),
                "v_mov_b32 v%d, s%d" % (t0 + 1, sPC + 1), "v_add_co_u32 v%d, vcc, s%d, v%d" % (t0, sPC, t0), "s_nop 1",
                "v_addc_co_u32 v%d, vcc, 0, v%d, vcc" % (t0 + 1, t0 + 1), "global_load_dword v%d, v[%d:%d], off" % (vDum, t0, t0 + 1)]

    a.lab(NAME + "_kernel")
    a.e(["s_cmp_ge_u32 s2, 256", "s_cbranch_scc1 L_end",
         "s_load_dwordx8 s[4:11], s[0:1], 0", "s_load_dwordx8 s[12:19], s[0:1], 32"])
    stamp(7)
    a.e(["s_getpc_b64 s[%d:%d]" % (sPC, sPC + 1)])
    a.lab("L_pc")
    a.e(["v_and_b32 v%d, 63, v0" % vL, "v_lshrrev_b32 v%d, 6, v0" % vT,
         "s_and_b32 s%d, s2, 7" % sT, "s_lshr_b32 s%d, s2, 3" % sT2,
         "v_readfirstlane_b32 s%d, v%d" % (sWv, vT),
         "v_min_u32 v%d, 2, v%d" % (vCp, vL), "v_lshl_add_u32 v%d, v%d, 2, v%d" % (vCp, vCp, vT), "v_lshlrev_b32 v%d, 5, v%d" % (vCp, vCp),
         "v_add_lshl_u32 v%d, v%d, s%d, 7" % (vCp, vCp, sT2)])
    if O.pf_code: a.e(codepf("L_pc", "L_end", vT))
    a.e(["s_mov_b32 s%d, 0" % sPass,
         "s_and_b32 s%d, s%d, 1" % (sB, sT), "s_lshl_b32 s%d, s%d, 2" % (sB, sB),
         "s_and_b32 s%d, s%d, 3" % (sG, sT2), "s_add_u32 s%d, s%d, s%d" % (sB, sB, sG),
         "s_lshr_b32 s%d, s%d, 1" % (sH, sT), "s_lshl_b32 s%d, s%d, 2" % (sRB, sH), "s_add_u32 s%d, s%d, s%d" % (sRB, sRB, sG), "s_lshl_b32 s%d, s%d, 3" % (sH, sH),
         "s_lshr_b32 s%d, s%d, 2" % (sCT, sT2), "s_add_u32 s%d, s%d, s%d" % (sH, sH, sCT),
         "s_and_b32 s%d, s%d, 1" % (sRH, sWv), "s_lshr_b32 s%d, s%d, 1" % (sKH, sWv)])
    a.e(["s_lshl_b32 s%d, s%d, 15" % (sMX, sKH), "s_mul_i32 s%d, s%d, 7168" % (sT, sRH),
         "s_add_u32 s%d, s%d, s%d" % (sMX, sMX, sT), "s_add_u32 s%d, s%d, 16384" % (sMX, sMX),
         "s_lshl_b32 s%d, s%d, 11" % (sMW, sWv), "s_add_u32 s%d, s%d, 131072" % (sMW, sMW),
         "s_lshl_b32 s%d, s%d, 15" % (sReg, sWv),
         "s_mov_b32 s%d, 458752" % (sX + 2), "s_mov_b32 s%d, 0x20000" % (sX + 3), "s_mov_b32 s%d, 0x20000" % (sW + 3),
         "s_mul_i32 s%d, s%d, 458752" % (sD1, sB), "s_lshl_b32 s%d, s%d, 8" % (sD2, sH), "s_sub_u32 s%d, 0x800000, s%d" % (sW + 2, sD2)])
    def lane_setup():
        o = ["v_lshrrev_b32 v%d, 3, v%d" % (vT, vL), "v_and_b32 v%d, 7, v%d" % (vT2, vL), "v_and_b32 v%d, 6, v%d" % (vT3, vT),
             "v_xor_b32 v%d, v%d, v%d" % (vT3, vT3, vT2), "v_lshlrev_b32 v%d, 4, v%d" % (vT3, vT3),
             "v_lshl_add_u32 v%d, v%d, 11, v%d" % (vX, vT, vT3),
             "s_mul_i32 s%d, s%d, %d" % (sT, sWv, 7 * 16384), "v_add_u32 v%d, s%d, v%d" % (vX, sT, vX)]
        o += ["v_add_u32 v%d, %d, v%d" % (vX + j, j * 16384 - (j & 3) * 1024, vX) for j in range(1, 7)]
        o += ["v_and_b32 v%d, 2, v%d" % (vT3, vT), "v_lshlrev_b32 v%d, 1, v%d" % (vT3, vT3),
              "v_xor_b32 v%d, v%d, v%d" % (vT3, vT3, vT2), "v_lshlrev_b32 v%d, 4, v%d" % (vT3, vT3),
              "v_lshl_add_u32 v%d, v%d, 13, v%d" % (vW, vT, vT3),
              "s_lshl_b32 s%d, s%d, 17" % (sT, sRH), "s_lshl_b32 s%d, s%d, 7" % (sG, sKH), "s_add_u32 s%d, s%d, s%d" % (sT, sT, sG),
              "v_add_u32 v%d, s%d, v%d" % (vW, sT, vW), "v_add_u32 v%d, %d, v%d" % (vW + 1, 8 * 8192 - 1024, vW)]
        return o
    a.e(lane_setup())
    a.e(["s_waitcnt lgkmcnt(0)",
         "s_add_u32 s%d, s%d, s%d" % (sW, pWq, sD2), "s_addc_u32 s%d, s%d, 0" % (sW + 1, pWq + 1),
         "s_add_u32 s%d, s%d, s%d" % (sX, pX, sD1), "s_addc_u32 s%d, s%d, 0" % (sX + 1, pX + 1)])
    stamp(4)
    a.lab("L_restart")

    TS_A = ["s_memrealtime s[100:101]"]
    TS_B = ["s_mov_b32 s3, m0", "s_mov_b32 m0, s81", "v_writelane_b32 v252, s100, m0", "s_add_u32 s81, s81, 1", "s_mov_b32 m0, s3"]
    def dmaX(j): return "buffer_load_dwordx4 v%d, s[%d:%d], s%d offen offset:%d lds" % (vX + j, sX, sX + 3, sXoff, (j & 3) * 1024)
    def m0X(buf, hi): return "s_add_u32 m0, s%d, %d" % (sMX, buf * 65536 + hi * 4096)
    def dmaW(j): return "buffer_load_dwordx4 v%d, s[%d:%d], s%d offen offset:%d lds" % (vW + j, sW, sW + 3, sWoff, j * 1024)
    def m0W(slot): return "s_add_u32 m0, s%d, %d" % (sMW, slot * 8192)
    def dmaKV(i): return "buffer_load_dwordx4 v%d, s[%d:%d], s%d offen offset:%d%s lds" % (vKV + (i & 3), sKV, sKV + 3, sK0, (i & 3) * 1024, KVF)
    def m0KV(slot, hi): return "s_add_u32 m0, s%d, %d" % (sReg, slot * 8192 + hi * 4096)
    incK = "s_add_u32 s%d, s%d, 4096" % (sK0, sK0)
    def kvtile(slot): return [m0KV(slot, 0), "s_nop 0"] + [dmaKV(i) for i in range(4)] + [m0KV(slot, 1), incK] + [dmaKV(i) for i in range(4, 8)] + [incK]
    sXl, sWl, sOx, sOw = 10, 11, sWo, sK0
    incW = ["s_add_u32 s%d, s%d, 262144" % (sWl, sWl), "s_xor_b32 s%d, s%d, s%d" % (sWoff, sWl, sOw)]
    incX = ["s_add_u32 s%d, s%d, 128" % (sXl, sXl), "s_xor_b32 s%d, s%d, s%d" % (sXoff, sXl, sOx)]
    vKw = vT2
    kvw_m0 = "s_add_u32 m0, s%d, s%d" % (sReg, sK0)
    kvw = "buffer_load_dwordx4 v%d, s[%d:%d], s%d offen%s lds" % (vKw, sKV, sKV + 3, sK0, KVF)
    kvw_inc = "s_add_u32 s%d, s%d, 1024" % (sK0, sK0)

    a.e(["s_mov_b32 s%d, 0" % sXl, "s_mov_b32 s%d, 0" % sWl, "s_xor_b32 s%d, s%d, s%d" % (sT, sB, sH), "s_and_b32 s%d, s%d, %d" % (sT, sT, O.x1mask),
         "s_lshl_b32 s%d, s%d, 19" % (sOw, sT), "s_lshl_b32 s%d, s%d, 7" % (sOx, sT), "s_mov_b32 s%d, s%d" % (sWoff, sOw), "s_mov_b32 s%d, s%d" % (sXoff, sOx)])
    def stage_loads(st):
        return ([m0W(2 * st), "s_nop 0", dmaW(0), dmaW(1), m0X(st, 0)] + incW + [dmaX(j) for j in range(4)] + [m0X(st, 1), "s_nop 0"] + [dmaX(j) for j in range(4, 7)]
                + [m0W(2 * st + 1)] + incX + [dmaW(0), dmaW(1)] + incW)
    a.e(stage_loads(0))
    stamp(4)
    a.e(["v_mov_b32 v%d, 0" % i for i in range(12, 16)])
    su0 = len(a.L)
    a.e(["s_and_b32 s%d, s%d, s%d" % (sFlip, sRH, sKH), "s_lshl_b32 s%d, s%d, 7" % (sFlip, sFlip),
         "s_cmp_eq_u32 s%d, 0" % sRH, "s_cselect_b32 s%d, s%d, s%d" % (sKV, pK, pV), "s_cselect_b32 s%d, s%d, s%d" % (sKV + 1, pK + 1, pV + 1),
         "s_lshl_b32 s%d, s%d, 5" % (sT, sB), "s_add_u32 s%d, s%d, s%d" % (sT, sT, sH), "s_lshl_b32 s%d, s%d, 1" % (sT, sT),
         "s_add_u32 s%d, s%d, s%d" % (sT, sT, sKH), "s_lshl_b32 s%d, s%d, 17" % (sT, sT),
         "s_add_u32 s%d, s%d, s%d" % (sKV, sKV, sT), "s_addc_u32 s%d, s%d, 0" % (sKV + 1, sKV + 1),
         "s_mov_b32 s%d, 131072" % (sKV + 2), "s_mov_b32 s%d, 0x20000" % (sKV + 3),
         "v_bfe_u32 v%d, v%d, 2, 2" % (vT, vL), "v_lshrrev_b32 v%d, 4, v%d" % (vT2, vL), "v_lshlrev_b32 v%d, 6, v%d" % (vT2, vT2),
         "v_xor_b32 v%d, s%d, v%d" % (vT2, sFlip, vT2), "v_lshl_add_u32 v%d, v%d, 8, v%d" % (vT2, vT, vT2),
         "v_and_b32 v%d, 3, v%d" % (vT, vL), "v_lshl_add_u32 v%d, v%d, 4, v%d" % (vKV, vT, vT2)])
    pPx, pPw = PK + 20, PK + 21
    a.e(["s_mul_i32 s%d, s%d, 14336" % (sT, sH), "s_lshl_b32 s%d, s%d, 12" % (sG, sWv), "s_add_u32 s%d, s%d, s%d" % (sT, sT, sG),
         "v_and_b32 v%d, 31, v%d" % (pPx, vL), "v_lshlrev_b32 v%d, 7, v%d" % (pPx, pPx), "v_add_u32 v%d, s%d, v%d" % (pPx, sT, pPx),
         "s_lshl_b32 s%d, s%d, 2" % (sT, sB), "s_add_u32 s%d, s%d, s%d" % (sT, sT, sWv), "s_lshl_b32 s%d, s%d, 18" % (sT, sT),
         "v_lshrrev_b32 v%d, 1, v%d" % (pPw, vL), "v_lshlrev_b32 v%d, 13, v%d" % (pPw, pPw),
         "v_and_b32 v%d, 1, v%d" % (vT2, vL), "v_lshl_add_u32 v%d, v%d, 7, v%d" % (pPw, vT2, pPw), "v_add_u32 v%d, s%d, v%d" % (pPw, sT, pPw)])
    for i in range(1, 4): a.e("v_xor_b32 v%d, %d, v%d" % (vKV + i, ((-i) & 3) * 16, vKV))
    a.e(["v_lshlrev_b32 v%d, 4, v%d" % (vL16, vL),
         "v_and_b32 v%d, 15, v%d" % (vT, vL), "v_lshrrev_b32 v%d, 4, v%d" % (vT2, vL),
         "v_and_b32 v%d, 6, v%d" % (vT3, vT), "v_xor_b32 v%d, v%d, v%d" % (vT3, vT3, vT2), "v_lshlrev_b32 v%d, 4, v%d" % (vT3, vT3),
         "v_lshl_add_u32 v%d, v%d, 7, v%d" % (vT3, vT, vT3),
         "s_lshl_b32 s%d, s%d, 15" % (sT, sRH), "s_add_u32 s%d, s%d, 16384" % (sT, sT),
         "v_add_u32 v%d, s%d, v%d" % (vXr, sT, vT3), "v_xor_b32 v%d, 64, v%d" % (vXr + 1, vXr),
         "v_add_u32 v%d, 0x10000, v%d" % (vXr + 2, vXr), "v_add_u32 v%d, 0x10000, v%d" % (vXr + 3, vXr + 1)])
    a.e(["v_bfe_u32 v%d, v%d, 2, 2" % (vT, vL), "v_lshl_add_u32 v%d, v%d, 3, v%d" % (vT, vT2, vT),
         "v_and_b32 v%d, 2, v%d" % (vT3, vT), "v_lshlrev_b32 v%d, 1, v%d" % (vT3, vT3),
         "v_and_b32 v%d, 3, v%d" % (vT2, vL), "v_xor_b32 v%d, v%d, v%d" % (vT3, vT3, vT2), "v_lshlrev_b32 v%d, 4, v%d" % (vT3, vT3),
         "v_lshl_add_u32 v%d, v%d, 7, v%d" % (vT3, vT, vT3),
         "s_lshl_b32 s%d, s%d, 12" % (sT, sKH), "s_add_u32 s%d, s%d, 131072" % (sT, sT),
         "v_add_u32 v%d, s%d, v%d" % (vWr, sT, vT3), "v_xor_b32 v%d, 64, v%d" % (vWr + 1, vWr)])
    a.e(["s_mul_i32 s%d, s%d, 14" % (sT, sB), "s_mul_i32 s%d, s%d, 7" % (sG, sRH), "s_add_u32 s%d, s%d, s%d" % (sT, sT, sG),
         "s_lshl_b32 s%d, s%d, 7" % (sT, sT), "s_lshl_b32 s%d, s%d, 2" % (sG, sH), "s_add_u32 s%d, s%d, s%d" % (sT, sT, sG),
         "s_lshl_b32 s%d, s%d, 1" % (sG, sKH), "s_add_u32 s%d, s%d, s%d" % (sT, sT, sG), "s_lshl_b32 s%d, s%d, 10" % (sT, sT),
         "s_add_u32 s%d, s%d, s%d" % (sO, pWs, sT), "s_addc_u32 s%d, s%d, 0" % (sO + 1, pWs + 1),
         "s_mov_b32 s%d, %d" % (sO + 2, 6 * 131072 + 2048), "s_mov_b32 s%d, 0x20000" % (sO + 3),
         "s_mov_b32 s%d, 0x%x" % (sC, CSCALE), "s_mov_b32 s%d, 0x%x" % (sC + 1, CSCALE),
         "s_and_b32 s%d, s%d, 4" % (sPm, sB), "s_add_u32 s%d, s%d, s%d" % (sPm, sPm, sWv),
         "s_mul_i32 s%d, s%d, %d" % (sT, sRB, 7 * 131072), "s_lshl_b32 s%d, s%d, 14" % (sG, sPm), "s_add_u32 s%d, s%d, s%d" % (sT, sT, sG),
         "s_add_u32 s%d, s%d, s%d" % (sOs, pWs, sT), "s_addc_u32 s%d, s%d, 0" % (sOs + 1, pWs + 1),
         "s_mov_b32 s%d, %d" % (sOs + 2, 6 * 131072 + 16384), "s_mov_b32 s%d, 0x20000" % (sOs + 3),
         "s_lshl_b32 s%d, s%d, 20" % (sT, sPm), "s_lshl_b32 s%d, s%d, 8" % (sG, sCT), "s_add_u32 s%d, s%d, s%d" % (sT, sT, sG),
         "s_add_u32 s%d, s%d, s%d" % (sWs, pWo, sT), "s_addc_u32 s%d, s%d, 0" % (sWs + 1, pWo + 1),
         "s_sub_u32 s%d, 0x100000, s%d" % (sWs + 2, sG), "s_mov_b32 s%d, 0x20000" % (sWs + 3),
         "s_mul_i32 s%d, s%d, %d" % (sT, sRB, 112 * 2048), "s_add_u32 s%d, s%d, s%d" % (sOut, pOut, sT), "s_addc_u32 s%d, s%d, 0" % (sOut + 1, pOut + 1),
         "s_mov_b32 s%d, %d" % (sOut + 2, 112 * 2048), "s_mov_b32 s%d, 0x20000" % (sOut + 3),
         "s_xor_b32 s%d, s%d, 0x10000" % (sRing, sReg),
         "s_lshl_b32 s%d, s%d, 13" % (sSp, sWv), "s_add_u32 s%d, s%d, 131072" % (sSp, sSp),
         "s_sub_u32 s%d, s%d, s%d" % (sD1, sSp, sReg), "s_sub_u32 s%d, s%d, s%d" % (sD2, sRing, sSp)])
    for rt in range(7): a.e("s_mov_b32 s%d, %d" % (sRt + rt, rt * 131072))
    pKr, pVr, pK0, pD, pR, pQ, pFp, pFc, pWoP, pCp = PK, PK + 1, PK + 3, PK + 4, PK + 8, PK + 10, PK + 12, PK + 13, PK + 14, PK + 16
    a.e(flagp(pFp, vT2) + flagc(pFc))
    a.e(["v_bfe_u32 v%d, v%d, 2, 2" % (vT, vL), "v_sub_u32 v%d, 0, v%d" % (vT2, vT), "v_lshrrev_b32 v%d, 4, v%d" % (vT3, vL),
         "v_xor_b32 v%d, v%d, v%d" % (vT2, vT2, vT3), "v_and_b32 v%d, 3, v%d" % (vT2, vT2), "v_lshlrev_b32 v%d, 4, v%d" % (vT2, vT2),
         "v_lshl_add_u32 v%d, v%d, 10, v%d" % (vT2, vT, vT2), "v_and_b32 v%d, 3, v%d" % (pK0, vL), "v_lshlrev_b32 v%d, 6, v%d" % (pK0, pK0),
         "s_lshl_b32 s%d, s%d, 16" % (sG, sKH), "v_add3_u32 v%d, v%d, v%d, s%d" % (pKr, pK0, vT2, sG),
         "v_lshl_add_u32 v%d, v%d, 4, v%d" % (pK0, vT3, pK0),
         "v_sub_u32 v%d, 0, v%d" % (vT2, vT3), "v_bfe_u32 v%d, v%d, 1, 1" % (pVr + 1, vL), "v_xor_b32 v%d, v%d, v%d" % (vT2, vT2, pVr + 1),
         "v_and_b32 v%d, 3, v%d" % (vT2, vT2), "v_lshlrev_b32 v%d, 4, v%d" % (vT2, vT2),
         "v_lshl_add_u32 v%d, v%d, 10, v%d" % (vT2, vT3, vT2), "v_lshl_add_u32 v%d, v%d, 6, v%d" % (vT2, vT, vT2),
         "v_and_b32 v%d, 1, v%d" % (pVr + 1, vL), "v_lshl_add_u32 v%d, v%d, 3, v%d" % (vT2, pVr + 1, vT2),
         "s_add_u32 s%d, s%d, 32768" % (sG, sG), "v_add_u32 v%d, s%d, v%d" % (pVr, sG, vT2), "v_xor_b32 v%d, 32, v%d" % (pVr + 1, pVr),
         "v_add_u32 v%d, s%d, v%d" % (pR, sReg, vT2), "v_xor_b32 v%d, 32, v%d" % (pR + 1, pR),
         "v_lshlrev_b32 v%d, 6, v%d" % (vT2, vT3), "v_lshl_add_u32 v%d, v%d, 11, v%d" % (vT2, vT, vT2), "v_and_b32 v%d, 3, v%d" % (vT, vL),
         "v_lshl_add_u32 v%d, v%d, 4, v%d" % (vT2, vT, vT2), "s_lshl_b32 s%d, s%d, 5" % (sT, sPm), "v_xor_b32 v%d, s%d, v%d" % (pD, sT, vT2)])
    for j in range(1, 4): a.e(["v_xor_b32 v%d, %d, v%d" % (pD + j, ((-j) & 3) * 16, pD), "v_add_u32 v%d, %d, v%d" % (pD + j, j * (8192 - 1024), pD + j)])
    a.e(["v_add_u32 v%d, s%d, v%d" % (pQ, sMW, vL16), "s_lshl_b32 s%d, s%d, 11" % (sT, sRH), "s_add_u32 s%d, s%d, 131072" % (sT, sT), "v_add_u32 v%d, s%d, v%d" % (pQ + 1, sT, vL16),
         "s_lshl_b32 s%d, s2, 2" % sT, "s_add_u32 s%d, s%d, s%d" % (sT, sT, sWv), "s_lshl_b32 s%d, s%d, 13" % (sT, sT),
         "v_lshlrev_b32 v%d, 7, v%d" % (pWoP, vL), "v_add_u32 v%d, s%d, v%d" % (pWoP, sT, pWoP),
         "s_lshl_b32 s%d, s%d, 1" % (sOf, sRB), "s_xor_b32 s%d, s%d, s%d" % (sOf, sOf, sCT), "s_and_b32 s%d, s%d, %d" % (sOf, sOf, O.x3mask), "s_lshl_b32 s%d, s%d, 16" % (sOf, sOf)])
    if O.wo_at == 0: a.e("global_load_dword v%d, v%d, s[%d:%d]" % (vDum, pWoP, pWo, pWo + 1))
    cp2 = codepf("L_tr", "L_epi", pCp)
    a.e(cp2[:-1])
    pB = PK + 18
    a.e(["s_lshl_b32 s%d, s%d, 5" % (sT, sB), "s_add_u32 s%d, s%d, s%d" % (sT, sT, sH), "s_lshl_b32 s%d, s%d, 18" % (sT, sT),
         "s_lshl_b32 s%d, s%d, 11" % (sG, sWv), "s_add_u32 s%d, s%d, s%d" % (sT, sT, sG),
         "v_xor_b32 v%d, s%d, v%d" % (pB, sFlip, vKV), "s_lshl_b32 s%d, s%d, 5" % (sG, sRH), "v_xor_b32 v%d, s%d, v%d" % (pB, sG, pB),
         "v_add_u32 v%d, s%d, v%d" % (pB, sT, pB), "v_xor_b32 v%d, 48, v%d" % (pB + 1, pB),
         "s_lshl_b32 s%d, s2, 15" % sT, "s_lshl_b32 s%d, s%d, 10" % (sG, sWv), "s_add_u32 s%d, s%d, s%d" % (sT, sT, sG),
         "v_and_b32 v%d, 7, v%d" % (vT3, vL), "v_lshlrev_b32 v%d, 7, v%d" % (vT3, vT3), "v_add_u32 v%d, s%d, v%d" % (vT3, sT, vT3), "s_mov_b32 s%d, 0" % sP])
    kvpf = "global_load_dword v%d, v%d, s[%d:%d]" % (vDum, vT3, pWo, pWo + 1)
    zs = [zero16(vr(ACC + 16 * i, 16)) for i in range(7)] + [zero16(vr(OK + 16 * i, 16)) for i in range(2, 7)] + [zero16(ar(aO + 16 * i, 16)) for i in range(4)]
    seg = a.L[su0:]; del a.L[su0:]
    for i_, ln in enumerate(seg):
        if i_ % 7 == 3 and zs: a.e(zs.pop(0))
        a.L.append(ln)
    assert not zs and not any("exec" in ln for ln in seg[:120])
    late = stage_loads(1) + ["buffer_load_dword v%d, v%d, s[%d:%d], 0 offen" % (vDum, pPx, sX, sX + 3), "buffer_load_dword v%d, v%d, s[%d:%d], 0 offen" % (vDum, pPw, sW, sW + 3), kvpf]
    def kvb(v, off): return "global_load_lds_dwordx4 v%d, s[4:5] offset:%d%s" % (v, off, KVF)
    kvq = ["s_cmp_lt_u32 s%d, 4" % sP, "s_cselect_b32 s4, s%d, s%d" % (pK, pV), "s_cselect_b32 s5, s%d, s%d" % (pK + 1, pV + 1),
           "s_and_b32 s%d, s%d, 1" % (sT, sP), "s_and_b32 s%d, s%d, 2" % (sG, sP), "s_lshl_b32 s%d, s%d, 12" % (sG, sG),
           "s_lshl_b32 s%d, s%d, 16" % (sT2, sT), "s_add_u32 s%d, s%d, s%d" % (sT2, sT2, sG), "s_lshl_b32 s%d, s%d, 17" % (sT, sT), "s_add_u32 s%d, s%d, s%d" % (sT, sT, sG),
           "v_add_u32 v%d, s%d, v%d" % (vT, sT, pB), "v_add_u32 v%d, s%d, v%d" % (vT2, sT, pB + 1),
           "s_and_b32 s%d, s%d, 4" % (sG, sP), "s_lshl_b32 s%d, s%d, 13" % (sG, sG), "s_add_u32 s%d, s%d, s%d" % (sT2, sT2, sG),
           "s_and_b32 s%d, s%d, 5" % (sT, sP), "s_cmp_eq_u32 s%d, 5" % sT, "s_cselect_b32 s%d, 128, 0" % sT,
           "v_xor_b32 v%d, s%d, v%d" % (vT, sT, vT), "v_xor_b32 v%d, s%d, v%d" % (vT2, sT, vT2),
           "s_add_u32 s%d, s%d, s%d" % (sT2, sT2, sMW), "s_add_u32 s%d, s%d, 1" % (sP, sP)]
    kvq_m0 = "s_sub_u32 m0, s%d, 0x20000" % sT2

    def wreg(k): return {30: 192, 31: 208}.get(k, aWF + 16 * (k & 1))
    def xreg(k, rt): return 16 * rt + 4 * (k & 3)
    def rdW(k):
        out = []
        for dt in range(4):
            dp, t = dt >> 1, dt & 1
            for sec in range(2):
                out.append("ds_read_b64_tr_b16 %s, v%d offset:%d" % (ar(wreg(k) + 4 * dt + 2 * sec, 2), vWr + dp, (k & 3) * 8192 + sec * 512 + t * 8))
        return out
    def rdX1(s, kk, rt): return "ds_read_b128 %s, v%d offset:%d" % (ar(xreg(2 * s + kk, rt), 4), vXr + 2 * (s & 1) + kk, rt * 2048)
    def rdX(s): return [rdX1(s, kk, rt) for kk in range(2) for rt in range(7)]
    def A(rt, k): return [mfma(vr(ACC + 16 * rt + 4 * dt, 4), ar(wreg(k) + 4 * dt, 4), ar(xreg(k, rt), 4), vr(ACC + 16 * rt + 4 * dt, 4)) for dt in range(4)]
    stamp(4)
    if not O.rd_first: a.e(late)
    a.e(["s_waitcnt vmcnt(%d)" % (2 if O.rd_first else 16), "s_barrier"])
    stamp(5)
    a.e(rdW(0) + rdX(0))
    if O.rd_first: a.e(late)
    a.e(["s_mov_b32 s%d, 7" % sCnt, "s_waitcnt vmcnt(14) lgkmcnt(0)", "s_barrier"])

    wopf = "global_load_dword v%d, v%d, s[%d:%d]" % (vDum, pWoP, pWo, pWo + 1)
    addr28 = ["v_mov_b32 v%d, v%d" % (240 + i, PK + i) for i in range(8)] + ["v_mov_b32 v%d, v%d" % (vR + i, pR + i) for i in range(2)]
    addr28 += ["v_mov_b32 v%d, v%d" % (vQw + i, pQ + i) for i in range(2)] + ["s_mov_b32 s%d, 16384" % sK0]

    def p1_kstep(km, mode, ctl=False):
        sp, kk = km >> 1, km & 1
        mf = [m_ for rt in range(7) for m_ in A(rt, km)]
        gaps = [[] for _ in range(28)]
        rd = rdW(km + 1)
        if kk == 1: rd += rdX(sp + 1)
        dm = []; nxe = O.nxe; tailops = []
        if mode == "loop":
            def xs(js):
                r = []
                for j in js:
                    if j == 4 and j != js[0]: r += [m0X(sp, 1)]
                    r.append(dmaX(j))
                return r
            if kk == 0: dm += [m0W(km), dmaW(0), dmaW(1), m0X(sp, 0)] + incW + xs(list(range(nxe)))
            else:
                if nxe < 7: dm += ([m0X(sp, 1)] if nxe == 4 else []) + xs(list(range(nxe, 7)))
                dm += [m0W(km)] + incX + [dmaW(0), dmaW(1)] + incW
                if km == 3:
                    dm += [kvq_m0]; tailops = [kvb(vT, 0), kvb(vT2, 1024), kvpf]
            endw = "s_waitcnt vmcnt(%d) lgkmcnt(0)" % ((4 + nxe + (3 if km == 0 else 0)) if kk == 0 else 14)
        elif mode == 28:
            endw = "s_waitcnt vmcnt(5) lgkmcnt(0)"
        for g, x in enumerate(rd): gaps[g].append(x)
        def place(items, lo, hi):
            g_ = lo
            for y in items:
                if y.startswith("global_load"): g_ = min(g_ + 1, hi); gaps[g_].insert(0, y); continue
                while g_ < hi and len(gaps[g_]) >= 2: g_ += 1
                gaps[g_].append(y)
        nld = sum(1 for x in dm if x.startswith("buffer_load"))
        if nld:
            pos = [1 + (i * O.p1_span) // nld for i in range(nld)]
            li = 0; pend = []; prev = -1
            for x in dm:
                if x.startswith("buffer_load"):
                    place(pend, max(prev, 0), pos[li] - 1); pend = []
                    gaps[pos[li]].insert(0, x); prev = pos[li]; li += 1
                else: pend.append(x)
            place(pend, prev, 25)
        for i_, x in enumerate(tailops): gaps[23 + i_].insert(0, x)
        if mode == "loop" and km == 2: place(kvq + ["v_add_u32 v%d, 4096, v%d" % (vT3, vT3)], 8, 25)
        if mode == 28:
            place(kvq + [kvq_m0], 0, 15); gaps[16].insert(0, kvb(vT, 0)); gaps[17].insert(0, kvb(vT2, 1024)); place(addr28, 18, 25)
        if endw: gaps[26].append(endw); gaps[27].append("s_barrier")
        if ctl:
            gaps[25].append("s_sub_u32 s%d, s%d, 1" % (sCnt, sCnt)); gaps[26].append("s_cmp_lg_u32 s%d, 0" % sCnt)
        weave(a, mf, gaps)
    stamp(4)
    a.raw(".p2align 5")
    a.lab("L_p1")
    for km in range(4): p1_kstep(km, "loop", ctl=(km == 3))
    a.e("s_cbranch_scc1 L_p1")
    p1_kstep(0, 28)
    stamp(4)
    a.lab("L_tr")
    a.e(["s_cmp_lg_u32 s%d, 0" % sPass, "s_cbranch_scc1 L_nofl",
         "global_load_dword v%d, v%d, s[%d:%d] sc1" % (vFc, pFc, pWs, pWs + 1),
         "s_cmp_lg_u32 s%d, 0" % sWv, "s_cbranch_scc1 L_nofl",
         "global_load_dword v%d, v%d, s[%d:%d] sc1" % (vFo, pFp, pWs, pWs + 1)])
    a.lab("L_nofl")
    def ismem(x): return x.startswith(("ds_", "buffer_", "global_", "s_barrier"))
    def spread(mf, side, lo=0, hi=None):
        n = len(mf); hi = n - 1 if hi is None else hi
        gaps = [[] for _ in range(n)]
        g = lo
        for i_, x in enumerate(side):
            g = max(g, lo + (i_ * (hi - lo + 1)) // len(side))
            if ismem(x) and any(y.startswith("v_") for y in gaps[g]) and g < hi: g += 1
            gaps[g].append(x)
        weave(a, mf, gaps)
    def rdK(i, slot):
        t, ks = i & 1, i >> 1
        return "ds_read_b128 %s, v%d offset:%d" % (ar(aK + 16 * t + 4 * ks, 4), vKr, slot * 8192 + t * 4096 + ks * 256)
    def xlane(op, regs_, tmp):
        out = []
        for sw in ("v_permlane32_swap_b32", "v_permlane16_swap_b32"):
            out += ["v_mov_b32 v%d, v%d" % (t_, r_) for r_, t_ in zip(regs_, tmp)]
            out += ["%s v%d, v%d" % (sw, r_, t_) for r_, t_ in zip(regs_, tmp)]
            out += ["%s v%d, v%d, v%d" % (op, r_, r_, t_) for r_, t_ in zip(regs_, tmp)]
        return out
    def qk(rt, sb):
        out = []
        for i in range(8):
            t, ks = i & 1, i >> 1
            d = vr(S + 8 * sb + 4 * t, 4)
            out.append(mfma(d, ar(aK + 16 * t + 4 * ks, 4), ar(aQ + 16 * rt + 4 * ks, 4), vr(M + 4 * rt, 4) if ks == 0 else d))
        return out
    def oacc(rt, i): return vr(OK + 16 * rt + 4 * i, 4) if i < 4 else ar(aO + 16 * rt + 4 * (i - 4), 4)
    def pv(rt, pb): return [mfma(oacc(rt, i), vr(V + 4 * i, 4), vr(P + 4 * pb, 4), oacc(rt, i)) for i in range(8)]
    aK0 = 176
    def Bq(rt):
        o = []
        for dp in range(2):
            b = ACC + 16 * rt + 8 * dp
            for i in range(4): o += ["v_mul_f32 v%d, s%d, v%d" % (b + 2 * i, sC, b + 2 * i), "v_mul_f32 v%d, s%d, v%d" % (b + 2 * i + 1, sC, b + 2 * i + 1),
                                     "v_cvt_pk_bf16_f32 v%d, v%d, v%d" % (b + i, b + 2 * i, b + 2 * i + 1)]
            if dp == 0: o.append("s_waitcnt lgkmcnt(0)")
            o.append("ds_write_b128 v%d, %s offset:%d" % (vQw, vr(b, 4), (rt & 3) * 8192 + dp * 1024))
        return o
    def Cq(rt): return ["ds_read_b128 %s, v%d offset:%d" % (ar(aQ + 16 * rt + 4 * ks, 4), vQr, (rt & 3) * 8192 + (ks >> 1) * 4096 + (ks & 1) * 1024) for ks in range(4)]
    def PP(rt): return [mfma(vr(M + 4 * rt, 4), ar(aK0 + 4 * ks, 4), ar(aQ + 16 * rt + 4 * ks, 4), "0" if ks == 0 else vr(M + 4 * rt, 4)) for ks in range(4)]
    def Dq(rt):
        b = M + 4 * rt
        return ["v_max3_f32 v%d, v%d, v%d, v%d" % (b, b, b + 1, b + 2), "v_max_f32 v%d, v%d, v%d" % (b, b, b + 3)] + ["v_sub_f32 v%d, 0, v%d" % (b + i, b) for i in (1, 2, 3, 0)]
    sync = ["s_waitcnt lgkmcnt(0)", "s_barrier"]
    kvs = []
    for sl in (2, 3):
        kvs += [[m0KV(sl, 0), "s_nop 0", dmaKV(0), dmaKV(1)], [dmaKV(2), dmaKV(3), incK], [m0KV(sl, 1), "s_nop 0", dmaKV(4), dmaKV(5)], [dmaKV(6), dmaKV(7), incK]]
    if O.t3late:
        kvs = [[m0KV(2, 0), "s_nop 0", dmaKV(0), dmaKV(1)], [dmaKV(2)], [dmaKV(3), incK], [m0KV(2, 1), "s_nop 0", dmaKV(4)], [dmaKV(5)], [dmaKV(6)],
               [dmaKV(7), incK], [m0KV(3, 0), "s_nop 0", dmaKV(0), dmaKV(1)]]
    if O.t3late and O.burst:
        kvs = [[m0KV(2, 0), "s_nop 0"] + [dmaKV(i) for i in range(2)], [dmaKV(2), dmaKV(3), incK], [m0KV(2, 1), "s_nop 0"] + [dmaKV(i) for i in range(4, 8)] + [incK], [], [], [], [],
               ([m0KV(3, 0), "s_nop 0"] + [dmaKV(i) for i in range(4)]) if O.burst == 1 else []]
    if O.tb4:
        kvs = []
        for sl in (2, 3):
            kvs += [[m0KV(sl, 0), "s_nop 0"] + [dmaKV(i) for i in range(4)] + [incK], [m0KV(sl, 1), "s_nop 0"] + [dmaKV(i) for i in range(4, 8)] + [incK], [], []]
    pfs = ([cp2[-1]] if O.pf_code else []) + ([wopf] if O.wo_at == 29 else [])
    t1 = rdW(30) + [rdX1(15, 0, 0)] + rdW(31) + [rdX1(15, 1, 0)] + [rdX1(15, kk, rt) for rt in range(1, 7) for kk in range(2)]
    spread([m_ for rt in range(5) for m_ in A(rt, 29)], t1 + pfs + sync, 0, 19)
    stamp(1)
    for i in range(8):
        mf = (A(i, 30) + A(i, 31) if i < 7 else qk(0, 0)) + (A(5 + i, 29) if i < 2 else PP(i - 2))
        side = []
        if i == 0: mf += [zero16(vr(OK, 16)), zero16(vr(OK + 16, 16))]
        if i == 1: side += ["s_waitcnt vmcnt(%d)" % (2 + len(pfs) + (2 if O.tb4 else 0)), "s_barrier"] + ["ds_read_b128 %s, v%d offset:%d" % (ar(aK0 + 4 * ks, 4), vK0, ks * 256) for ks in range(4)]
        if i >= 2: side += sync + Cq(i - 2)
        if i in (3, 4): side += [rdK(j, 0) for j in range(4 * (i - 3), 4 * (i - 2))]
        if i >= 1: side += Bq(i - 1)
        if i >= 3: side += Dq(i - 3)
        if i == 7: side += ["v_mov_b32 v%d, 0" % j for j in range(L, L + 4)] + ["s_mov_b32 s%d, 3" % sCnt]
        side += kvs[i]
        spread(mf, side)
    if O.ts: a.e(["s_mov_b32 s81, 0", "v_mov_b32 v252, 0"])
    a.e(["s_cmp_lg_u32 s%d, 0" % sPass, "s_cbranch_scc1 L_maxpass"])
    stamp(1)
    NA = (2, 4, 0, 0)[O.burst]

    def dma3(j): return "buffer_load_dwordx4 v%d, s[%d:%d], s%d offen offset:%d lds" % (vD + j, sWs, sWs + 3, sWo, j * 1024)
    def setWo(u): return "s_xor_b32 s%d, s%d, 0x%x" % (sWo, sOf, u * 32768)
    def wset(n): return (0, 32, 64, 224)[n & 3]
    def rd3(k, off, dts=range(8)):
        return ["ds_read_b64_tr_b16 %s, v%d offset:%d" % (ar(wset(k) + 4 * dt + 2 * sec, 2), vR + (dt & 1), off + (dt >> 1) * 256 + sec * 4096) for dt in dts for sec in range(2)]
    def xw(rt): return ["ds_write_b128 v%d, %s offset:%d" % (vTa, ar(aO + 16 * rt + 4 * i, 4), rt * 4096 + i * 1024) for i in range(4)]
    vm = VM(["t13"] * 8 + ["t14"] * 8 + ["t15"] * NA)

    def body(js, last=False, first=False):
        for r in range(7):
            u = 7 * js + r
            fin = last and js == 3
            mf = ([] if (fin and r == 6) else qk((r + 1) % 7, (u + 1) & 1)) + pv((r + 6) % 7, (u + 1) & 1)
            mem = [[] for _ in range(16)]; val = [[] for _ in range(16)]
            for e in range(8):
                val[2 * e].append("v_exp_f32 v%d, v%d" % (E + e, S + 8 * (u & 1) + e))
                val[2 * e + 1].append("v_add_f32 v%d, v%d, v%d" % (L + r, L + r, E + e))
                if e & 1: val[2 * e + 1].append("v_cvt_pk_bf16_f32 v%d, v%d, v%d" % (P + 4 * (u & 1) + (e >> 1), E + e - 1, E + e))
            ps = (js + 3) & 3
            kvB = ((not last) or js == 0) and (O.t3late or not first)
            if first and r == 0:
                mf = mf[:8] + PP(6) + [zero16(ar(192, 16)), zero16(ar(208, 16))]
                mem[0] += sync + Cq(6)[:2]; mem[1] += Cq(6)[2:]; mem[7].append("s_waitcnt lgkmcnt(0)")
                for i_, x in enumerate(Dq(5)): val[3 + 2 * i_].append(x)
            if first and r == 1:
                for i_, x in enumerate(Dq(6) + ["v_mov_b32 v%d, 0" % j for j in range(L + 4, L + 7)]): val[1 + 4 * (i_ % 4)].append(x) if i_ >= 6 else val[1 + 2 * i_].append(x)
            if first and r == 2: mem[9].append(zero16(ar(176, 16)))
            if r == 0:
                for i in range(8):
                    for sec in range(2):
                        mem[8 + i].append("ds_read_b64_tr_b16 %s, v%d offset:%d" % (vr(V + 4 * i + 2 * sec, 2), vVr + (i & 1), js * 8192 + (i >> 1) * 256 + sec * 4096))
            if r == 1: mem[5].append("s_waitcnt lgkmcnt(%d)" % (5 if fin else 0))
            def burst4(h):
                mem[1] += [dmaKV(4 * h), dmaKV(4 * h + 1)]; mem[3] += [dmaKV(4 * h + 2), dmaKV(4 * h + 3)]
                val[5] = val[1] + val[5]; val[9] = val[3][:1] + val[9]; val[13] = val[3][1:] + val[13]; val[1] = []; val[3] = []
            if O.burst == 0:
                if kvB:
                    if r == 0: mem[1].append(dmaKV(2)); mem[5].append(dmaKV(3))
                    if r == 1: mem[1].append(m0KV(ps, 1)); mem[9].append(incK); mem[13].append(dmaKV(4))
                    if r == 2: mem[1].append(dmaKV(5)); mem[9].append(dmaKV(6))
                    if r == 3: mem[1].append(dmaKV(7)); mem[5].append(incK)
            elif O.burst == 1:
                if kvB:
                    if r == 1: mem[1].append(m0KV(ps, 1)); mem[9].append(incK)
                    if r == 2: burst4(1)
                    if r == 3: mem[1].append(incK)
            elif O.burst == 2:
                if kvB:
                    if r == 1: mem[1].append(m0KV(ps, 0))
                    if r == 2: burst4(0); mem[15] += [m0KV(ps, 1), incK]
                    if r == 3: burst4(1)
                    if r == 4: mem[1].append(incK)
            elif O.burst == 3:
                if kvB:
                    if r == O.bstep - 1: mem[13].append(m0KV(ps, 0))
                    if r == O.bstep:
                        mem[1] += [dmaKV(0), dmaKV(1)]; mem[2] += [dmaKV(2), dmaKV(3)]; mem[3] += [m0KV(ps, 1), incK]
                        mem[4] += [dmaKV(4), dmaKV(5)]; mem[5] += [dmaKV(6), dmaKV(7)]
                        val[9] = val[1] + val[9]; val[13] = val[5] + val[13]; val[1] = []; val[5] = []
                    if r == O.bstep + 1: mem[1].append(incK)
            if not last:
                if r == 4:
                    if O.burst < 2: mem[5].append(m0KV(js, 0))
                    mem[13].append("s_barrier")
                    if not first: mem[9].append("s_waitcnt vmcnt(16)")
                if O.wo_at >= 100 and not first and js == (O.wo_at - 100) % 4 and r == O.wo_r:
                    mem[5].append("s_cmp_eq_u32 s%d, %d" % (sCnt, 3 - (O.wo_at - 100) // 4)); mem[9] += ["s_cbranch_scc1 L_wopf", "L_wopf_ret:"]
                if r == 5 and O.burst == 0: mem[9].append(dmaKV(0))
                if r == 6:
                    if O.burst == 0: mem[1].append(dmaKV(1))
                    if O.burst == 1: burst4(0)
                    if js == 3:
                        mem[7 if O.burst == 1 else 5].append("s_sub_u32 s%d, s%d, 1" % (sCnt, sCnt)); mem[11 if O.burst == 1 else 9].append("s_cmp_lg_u32 s%d, 0" % sCnt)
            else:
                sched = [{(0, 6): 0, (1, 1): 1, (1, 2): 6, (1, 3): 7, (1, 6): 2, (2, 1): 3, (2, 5): 4, (2, 6): 5},
                         {(0, 6): 0, (1, 1): 6, (1, 3): 1, (1, 5): 7, (2, 0): 2, (2, 2): 3, (2, 5): 4, (3, 0): 5},
                         {(1, 1): 0, (1, 3): 1, (1, 5): 2, (1, 6): 3, (2, 5): 4, (2, 6): 5, (3, 1): 6, (3, 2): 7}][O.tsched]
                if (js, r) in sched:
                    k = sched[(js, r)]
                    base, off = (sReg, k * 4096) if k < 6 else (sSp, (k - 6) * 4096)
                    g0 = (9, 11, 13, 15) if r == 5 else ((1, 3, 5, 7) if r == 0 else (1, 5, 9, 13))
                    mem[g0[0] - 1] += ["s_add_u32 m0, s%d, %d" % (base, off), setWo(k)]
                    for j in range(4): mem[g0[j]].append(("w%d" % k, dma3(j)))
                if r == 4:
                    if js < 3: mem[9].append(("wait", "t%d" % (13 + js)))
                    mem[13].append("s_barrier")
                if js == 0 and r == 5 and O.wl2:
                    val[9] += ["v_lshrrev_b32 v%d, 1, v%d" % (vT3, vL), "v_lshlrev_b32 v%d, 11, v%d" % (vT3, vT3)]
                    val[11] += ["v_and_b32 v%d, 1, v%d" % (vT, vL), "s_and_b32 s%d, s%d, 3" % (sT2, sRB)]
                    val[13] += ["v_lshl_add_u32 v%d, v%d, 7, v%d" % (vT3, vT, vT3), "s_lshl_b32 s%d, s%d, 17" % (sT2, sT2)]
                l2s = {(3, 2): 0, (3, 5): 1}
                if (js, r) in l2s and l2s[(js, r)] < O.wl2:
                    mem[1].append("s_add_u32 s%d, s%d, %d" % (sT, sT2, (8 + l2s[(js, r)]) * 65536))
                    mem[5].append(("pf", "buffer_load_dword v%d, v%d, s[%d:%d], s%d offen" % (vDum, vT3, sWs, sWs + 3, sT)))
                if js == 0 and r == 1 and O.wo_at == 99:
                    val[13] += ["s_lshl_b32 s%d, s2, 2" % sT, "s_add_u32 s%d, s%d, s%d" % (sT, sT, sWv), "s_lshl_b32 s%d, s%d, 13" % (sT, sT)]
                    val[15] += ["v_lshlrev_b32 v%d, 7, v%d" % (vT, vL), "v_add_u32 v%d, s%d, v%d" % (vT, sT, vT)]
                if js == 0 and r == 4 and O.wo_at == 99: mem[3].append(("pf", "global_load_dword v%d, v%d, s[%d:%d]" % (vDum, vT, pWo, pWo + 1)))
                if js == 2 and r == 3 and O.pf_code:
                    pf = codepf("L_epi", "L_end", vT)
                    for i_, x in enumerate(pf[:-1]): val[1 + 2 * i_].append(x)
                    mem[15].append(("pf", pf[-1]))
                if fin:
                    if r < 6:
                        if r % 2 == 0: mem[0] += [("wait", "w%d" % r), ("wait", "w%d" % (r + 1))]
                        for i_, x in enumerate(rd3(r >> 1, (r >> 1) * 8192, range(4 * (r & 1), 4 * (r & 1) + 4))): mem[i_].append(x)
                    else:
                        mem[8] += [("wait", "w6"), ("wait", "w7")]
                        for i_, x in enumerate(rd3(3, 0)): mem[8 + i_ // 2].append(x)
                    if r == 5:
                        for i in range(2): val[9 + 4 * i].append("v_add_u32 v%d, s%d, v%d" % (vR + i, sD1, vR + i))
                    if r >= 2:
                        for i_, x in enumerate(xw(r - 2)): mem[9 + 2 * i_].append(x)
            if r == 5 and not fin:
                for i in range(8): mem[i].append(rdK(i, (js + 1) & 3))
                mem[13].insert(0, "s_waitcnt lgkmcnt(0)")
                if O.ts: mem[11] += TS_A; mem[15] += TS_B
            if fin and r == 6:
                mem = [mem[8 + i] for i in range(8)]
                val = [val[2 * i] + val[2 * i + 1] for i in range(8)]
                val = [[v_[0], "s_nop 0"] + v_[1:] for v_ in val]
                a.e("s_nop 1")
            if first and r == 0:
                mem = mem[:12] + [mem[12] + mem[13], mem[14] + mem[15]]
                val = val[:12] + [val[12] + ["s_nop 0"] + val[13], val[14] + ["s_nop 0"] + val[15]]
            if last and js == 0 and r == 4:
                val[1] += ["v_add_u32 v%d, s%d, v%d" % (vTa, sReg, vL16)]; val[5] += ["v_add_u32 v%d, s%d, v%d" % (vTb, sRing, vL16)]
            for m_, g_, v_ in zip(mf, mem, val):
                a.e(m_)
                for x in g_:
                    if isinstance(x, tuple):
                        if x[0] == "wait": a.e("s_waitcnt vmcnt(%d)" % vm.n(x[1]))
                        else: vm.issue(x[0]); a.e(x[1])
                    else:
                        if last and x.startswith("buffer_load"): vm.issue("t15")
                        a.e(x)
                a.e(v_)
    body(0, first=True)
    a.e("s_branch L_b1")
    a.raw(".p2align 5")
    a.lab("L_loop")
    for js in range(4):
        if js == 1: a.lab("L_b1")
        body(js)
    a.e("s_cbranch_scc1 L_loop")
    a.lab("L_last")
    for js in range(4): body(js, True)
    stamp()

    a.lab("L_epi")
    misc = ["v_add_f32 v%d, v%d, v%d" % (vTc, L, L + 1)] + ["v_add_f32 v%d, v%d, v%d" % (vTc, vTc, L + i) for i in range(2, 7)]
    misc += ["s_mov_b32 s%d, 0x%x" % (sT, THR if not O.force_slow else 0), "s_lshl_b32 s%d, s%d, 2" % (sG, sWv),
             "v_cmp_ngt_f32 vcc, s%d, v%d" % (sT, vTc),
             "s_add_u32 s%d, s%d, 30720" % (sG, sG), "v_mov_b32 v%d, s%d" % (vT, sG),
             "s_cmp_lg_u64 vcc, 0", "s_cselect_b32 s%d, 1, 0" % sT, "v_mov_b32 v%d, 30720" % vT2, "v_mov_b32 v%d, s%d" % (L + 7, sT)]
    a.e("s_nop 1")
    weave(a, pv(6, 1), [misc[2 * i:2 * i + 2] for i in range(7)] + [misc[14:]])
    xl = xlane("v_add_f32", [L + i for i in range(7)], [E + i for i in range(7)])
    w56 = xw(5) + xw(6)
    for i in range(8):
        a.e(w56[i]); a.e(xl[5 * i:5 * i + 5] if i < 7 else xl[35:])
    a.e(["v_add_u32 v%d, s%d, v%d" % (vR + i, sD2, vR + i) for i in range(2)])
    a.e(["ds_write_b128 v%d, %s offset:28672" % (vTa, vr(L, 4)), "ds_write_b128 v%d, %s offset:29696" % (vTa, vr(L + 4, 4)),
         "ds_write_b32 v%d, v%d" % (vT, L + 7), "s_waitcnt lgkmcnt(0)", "s_barrier"])
    stamp(2)
    PL = 208
    a.e(["ds_read_b128 %s, v%d" % (vr(216, 4), vT2), "ds_read_b128 %s, v%d offset:28672" % (vr(PL, 4), vTb), "ds_read_b128 %s, v%d offset:29696" % (vr(PL + 4, 4), vTb)])
    def rdP(rt): return ["ds_read_b128 %s, v%d offset:%d" % (vr(128 + 16 * (rt % 5) + 4 * i, 4), vTb, (rt * 4 + i) * 1024) for i in range(4)]
    for rt in range(3): a.e(rdP(rt))
    a.e(["s_waitcnt lgkmcnt(12)", "v_or3_b32 v216, v216, v217, v218", "v_or_b32 v216, v216, v219"])
    for i in range(7): a.e("v_add_f32 v%d, v%d, v%d" % (L + i, L + i, PL + i))
    a.e(["v_readfirstlane_b32 s%d, v216" % sT])
    for i in range(7): a.e("v_rcp_f32 v%d, v%d" % (L + i, L + i))
    a.e(["s_andn2_b32 s%d, s%d, s%d" % (sT, sT, sPass), "s_cbranch_scc1 L_slow"])
    def wload(k, j):
        if j == 0: a.e(["s_add_u32 m0, s%d, %d" % (sRing, (k & 7) * 4096), setWo(k)])
        vm.issue("w%d" % k); a.e(dma3(j))
    wi = 0
    for rt in range(7):
        if rt + 3 < 7: a.e(rdP(rt + 3))
        a.e("s_waitcnt lgkmcnt(%d)" % (4 * min(3, 6 - rt)))
        pb = 128 + 16 * (rt % 5); ob = OK + 16 * rt; lp = L + rt
        def wnext(k_):
            nonlocal wi
            if k_ < O.w_n and wi < 28 and wi // 4 <= rt: wload(8 + wi // 4, wi % 4); wi += 1
        wnext(0)
        for i in range(8): a.e("v_pk_add_f32 %s, %s, %s" % (vr(ob + 2 * i, 2), vr(ob + 2 * i, 2), vr(pb + 2 * i, 2)))
        wnext(2)
        for i in range(8):
            if lp % 2 == 0: a.e("v_pk_mul_f32 %s, %s, %s op_sel_hi:[1,0]" % (vr(ob + 2 * i, 2), vr(ob + 2 * i, 2), vr(lp, 2)))
            else: a.e("v_pk_mul_f32 %s, %s, %s op_sel:[0,1]" % (vr(ob + 2 * i, 2), vr(ob + 2 * i, 2), vr(lp - 1, 2)))
        wnext(1)
        for i in range(8): a.e("v_cvt_pk_bf16_f32 v%d, v%d, v%d" % (ob + i, ob + 2 * i, ob + 2 * i + 1))
        wnext(3)
        for p in range(2):
            if O.nost and not (rt == 6 and p == 1): continue
            vm.issue("st"); a.e("buffer_store_dwordx4 %s, v%d, s[%d:%d], s%d offen offset:%d %s" % (vr(ob + 4 * p, 4), vL16, sO, sO + 3, sRt + rt, p * 1024, O.st_flags))
    stamp()
    ACC3, OF = 16, 128
    vS, vOo, vOut, vPs = 6, 248, 249, 250
    def acc3(rt, sl):
        hb, wv = sl >> 2, sl & 3
        return vr(ACC3 + 16 * rt + 4 * (2 * hb + wv), 4) if wv < 2 else ar(112 + 16 * rt + 4 * (2 * hb + wv - 2), 4)
    for _ in range(min(O.w_late, 28 - wi)): wload(8 + wi // 4, wi % 4); wi += 1
    a.e(flagp(vT, vT2) + ["v_add_u32 v%d, 1, v%d" % (vFo, vFo)])
    a.e(["s_lshl_b32 s%d, s%d, 5" % (sT, sB), "s_add_u32 s%d, s%d, s%d" % (sT, sT, sH), "v_mov_b32 v%d, s%d" % (vT2, sT), "v_mov_b32 v%d, 1" % vT3,
         "v_xor_b32 v243, 0x80, v%d" % vT2])
    for i in range(7): a.e(zero16(ar(112 + 16 * i, 16)))
    a.e(flagc(241) + ["s_lshr_b32 s%d, s%d, 6" % (sT, sOf), "v_add_u32 v%d, s%d, v%d" % (vOo, sT, vL16),
         "s_lshr_b32 s%d, s%d, 1" % (sT, sRB), "s_lshl_b32 s%d, s%d, 5" % (sT, sT), "s_lshl_b32 s%d, s%d, 2" % (sG, sPm), "s_add_u32 s%d, s%d, s%d" % (sT, sT, sG),
         "v_mov_b32 v242, s%d" % sT, "s_mov_b32 s%d, 0x40000" % sCnt])
    for i in range(7): a.e(zero16(vr(ACC3 + 16 * i, 16)))
    a.e(["s_waitcnt vmcnt(%d)" % vm.n("st"), "s_barrier"])
    stamp(2)
    if O.stamps: a.e("s_memrealtime s[6:7]")
    a.e(["s_cmp_lg_u32 s%d, 0" % sWv, "s_cbranch_scc1 L_noflag",
         "s_mov_b64 exec, 0xfffff", "global_store_dword v%d, v%d, s[%d:%d] sc1" % (vT, vFo, pWs, pWs + 1),
         "s_mov_b64 exec, 1", "global_store_byte v%d, v%d, s[%d:%d] sc1" % (vT2, vT3, pDbg, pDbg + 1), "s_mov_b64 exec, -1"])
    a.lab("L_noflag")
    stamp(2)
    def wpieces(lo, hi):
        out = []
        for p_ in range(lo, hi):
            u, j = 8 + p_ // 4, p_ % 4
            out.append((["s_add_u32 m0, s%d, %d" % (sRing, (u & 7) * 4096), setWo(u)] if j == 0 else [], ("w%d" % u, dma3(j))))
        return out
    if O.dynw:
        a.e(["s_mov_b64 exec, 31", "global_load_dword v%d, v241, s[%d:%d] sc1" % (vT, pWs, pWs + 1), "s_waitcnt vmcnt(0)", "v_cmp_eq_u32 vcc, v%d, v%d" % (vT, vFc), "s_nop 0", "s_cbranch_vccz L_go", "s_mov_b64 exec, -1"])
        for pre, op in wpieces(wi, 32): a.e(pre + [op[1]])
    a.e("s_mov_b64 exec, 31")
    a.lab("L_poll")
    a.e(["global_load_dword v%d, v241, s[%d:%d] sc1" % (vT, pWs, pWs + 1), "s_sub_u32 s%d, s%d, 1" % (sCnt, sCnt), "s_cbranch_scc1 L_go",
         "s_waitcnt vmcnt(0)", "v_cmp_eq_u32 s[%d:%d], v%d, v%d" % (sC, sC + 1, vT, vFc), "s_nop 0", "s_cmp_eq_u64 s[%d:%d], 0" % (sC, sC + 1), "s_cbranch_scc1 L_go",
         "s_and_b32 s%d, s%d, 15" % (sT, sCnt), "s_cbranch_scc1 L_poll",
         "global_load_dword v%d, v242, s[%d:%d] sc1" % (vT, pDbg, pDbg + 1), "global_load_ubyte v%d, v243, s[%d:%d] sc1" % (vT2, pDbg, pDbg + 1), "s_waitcnt vmcnt(0)",
         "v_add_u32 v%d, v%d, v%d" % (vT, vT, vT2), "s_nop 0", "v_readfirstlane_b32 s%d, v%d" % (sT, vT),
         "s_nop 0", "s_cmp_eq_u32 s%d, 0x01010102" % sT, "s_cbranch_scc0 L_poll"])
    a.lab("L_go")
    a.e("s_mov_b64 exec, -1")
    if O.wggo: a.e("s_barrier")
    stamp()
    if O.stamps: a.e(["s_memrealtime s[4:5]", "s_mov_b32 s10, s%d" % sCnt])
    def ldO(rt, k): return "buffer_load_dwordx4 %s, v%d, s[%d:%d], s%d offen sc1" % (vr(OF + 28 * (k & 3) + 4 * rt, 4), vOo, sOs, sOs + 3, sRt + rt)
    def incO(k): return "v_xor_b32 v%d, 0x%x, v%d" % (vOo, (k ^ (k + 1)) << 10, vOo)
    for k in range(2):
        for rt in range(7): vm.issue("o%d" % k); a.e(ldO(rt, k))
        a.e(incO(k))
    a.e(["v_add_u32 v%d, s%d, v%d" % (vS, sRing, vL16)])
    for i in range(1, 4): a.e(["v_xor_b32 v%d, 0x%x, v%d" % (vS + i, i << 15, vS)])
    a.e(["v_and_b32 v%d, 15, v%d" % (vT, vL), "v_lshrrev_b32 v%d, 4, v%d" % (vT2, vL), "v_lshlrev_b32 v%d, 3, v%d" % (vT2, vT2),
         "v_lshl_add_u32 v%d, v%d, 11, v%d" % (vT, vT, vT2),
         "s_lshl_b32 s%d, s%d, 8" % (sT, sCT), "s_lshl_b32 s%d, s%d, 5" % (sG, sPm), "s_add_u32 s%d, s%d, s%d" % (sT, sT, sG),
         "v_add_u32 v%d, s%d, v%d" % (vOut, sT, vT)] + boxaddr(vPs) + ["v_xor_b32 v%d, 0x8000, v%d" % (vPs + 1, vPs)])
    a.e(["s_waitcnt vmcnt(%d)" % vm.n("o0")])
    def redw(rt, hb, wv): return "ds_write_b128 v%d, %s offset:%d" % (vS, acc3(rt, 4 * hb + wv), (wv - 1) * 7168 + rt * 1024)
    def redr(rt, wv, d): return "ds_read_b128 %s, v%d offset:%d" % (vr(d, 4), vS + wv, (wv - 1) * 7168 + rt * 1024)
    def mf3(rt, sl, k): return mfma(acc3(rt, sl), ar(wset(k) + 4 * sl, 4), vr(OF + 28 * (k & 3) + 4 * rt, 4), acc3(rt, sl))
    def emit(mf, gaps):
        for m_, g_ in zip(mf, gaps):
            a.e(m_)
            for x in g_:
                if isinstance(x, tuple):
                    if x[0] == "wait": a.e("s_waitcnt vmcnt(%d)%s" % (min(vm.n(t_) for t_ in x[1]), " lgkmcnt(0)" if x[2] else ""))
                    elif O.dynw and x[0][0] == "w" and int(x[0][1:]) < 16:
                        nsk[0] += 1
                        vm.issue(x[0], True); a.e(["s_cbranch_vccnz L_sk%d" % nsk[0], x[1]]); a.lab("L_sk%d" % nsk[0])
                    else: vm.issue(x[0]); a.e(x[1])
                else: a.e(x)
    nsk = [0]
    left = 32 - wi
    for k in range(13):
        mf = [mf3(rt, sl, k) for rt in range(7) for sl in range(8)]
        gaps = [[] for _ in range(56)]
        if k >= 2:
            for g, x in enumerate(rd3(k + 2, ((k + 2) & 3) * 8192)): gaps[g].append(x)
        if k == 12:
            for g, x in enumerate(rd3(15, 3 * 8192)): gaps[16 + g].append(x)
        if k < 3: wl = wpieces(wi + (left * k) // 3, wi + (left * (k + 1)) // 3)
        elif k <= 10: wl = wpieces(8 * (k + 1), 8 * (k + 2))
        else: wl = []
        ol = [([], ("o%d" % kk_, ldO(rt, kk_))) + ((incO(kk_),) if rt == 6 else ()) for kk_ in ([2, 3] if k == 0 else [k + 3]) for rt in range(7)]
        ld = sorted([((i_ + 0.5) / len(wl), x) for i_, x in enumerate(wl)] + [((i_ + 0.25) / len(ol), x) for i_, x in enumerate(ol)], key=lambda t_: t_[0])
        for i_, (_, x) in enumerate(ld):
            g = 1 + (i_ * 53) // len(ld)
            gaps[g - 1] += x[0]; gaps[g].insert(0, x[1])
            if len(x) > 2: gaps[g].append(x[2])
        need_ = ["o%d" % (k + 1)] + (["w%d" % (2 * (k + 3) + 1)] if 1 <= k <= 11 else []) + (["w31"] if k == 11 else [])
        gaps[55].append(("wait", need_, k >= 2))
        emit(mf, gaps)
    mf = [mf3(rt, 4 * hb + wv, k) for hb in (1, 0) for k in (13, 14, 15) for rt in range(7) for wv in range(4)]
    gaps = [[] for _ in range(168)]
    gaps[27].append(("wait", ["o14"], False)); gaps[55].append(("wait", ["o15"], False))
    g = 0
    for rt in range(7):
        for wv in range(1, 4):
            g = max(g + 2, 56 + 4 * rt + wv + 9); gaps[g].append(redw(rt, 1, wv))
    g += 3; gaps[g].append("s_waitcnt lgkmcnt(0)"); gaps[g + 1].append("s_barrier"); g += 2
    assert g >= 84 + 28 - 2, g
    g = max(g, 84 + 28)
    def tmp1(rt, wv): return (ACC3 + 16 * rt + 12, OF + 4 * rt, OF + 28 + 4 * rt)[wv - 1]
    for rt in range(7):
        for wv in range(1, 4): gaps[g + (3 * rt + wv - 1) // 2].append(redr(rt, wv, tmp1(rt, wv)))
    g += 11
    gaps[g + 2].append("s_waitcnt lgkmcnt(0)"); gaps[g + 3].append("s_barrier")
    g += 4
    ads = []
    for rt in range(7):
        b = ACC3 + 16 * rt + 8
        ads += ["v_add_f32 v%d, v%d, v%d" % (b + i, b + i, tmp1(rt, 1) + i) for i in range(4)]
        ads += ["v_add_f32 v%d, v%d, v%d" % (tmp1(rt, 2) + i, tmp1(rt, 2) + i, tmp1(rt, 3) + i) for i in range(4)]
        ads += ["v_add_f32 v%d, v%d, v%d" % (b + i, b + i, tmp1(rt, 2) + i) for i in range(4)]
        ads += [("ps", "global_store_dwordx4 v%d, %s, s[%d:%d] offset:%d sc1" % (vPs + 1, vr(b, 4), pWs, pWs + 1, rt * 1024 - 3072))]
    n_ = 0
    for x in ads:
        if isinstance(x, tuple): g += 1; n_ = 0; gaps[g].insert(0, x); continue
        gaps[g].append(x); n_ += 1
        if n_ == 3: g += 1; n_ = 0
    assert g < 168, g
    lastw = []
    for rt in range(7):
        for wv in range(1, 4):
            g2 = 140 + 4 * rt + wv + 8
            if g2 < 168: gaps[g2].insert(0, redw(rt, 0, wv))
            else: lastw.append(redw(rt, 0, wv))
    emit(mf, gaps)
    stamp()
    PB = OF + 84
    ldP = ["global_load_dwordx4 %s, v%d, s[%d:%d] offset:%d sc1" % (vr(PB + 4 * rt, 4), vPs, pWs, pWs + 1, rt * 1024 - 3072) for rt in range(7)]
    a.e(["s_nop 1"] + lastw[:3] + ["s_nop 1"] + lastw[3:] + ["v_add_u32 v%d, 1, v%d" % (vT, vFc), "s_mov_b32 s%d, 0x40000" % sCnt, "s_waitcnt vmcnt(0)", "s_mov_b64 exec, 64",
         "global_store_dword v241, v%d, s[%d:%d] sc1" % (vT, pWs, pWs + 1), "s_mov_b64 exec, -1", "s_waitcnt lgkmcnt(0)", "s_barrier"])
    for rt in range(7):
        for wv in range(1, 4): a.e(redr(rt, wv, OF + 12 * rt + 4 * (wv - 1)))
    for rt in range(7):
        a.e("s_waitcnt lgkmcnt(%d)" % min(15, 3 * (6 - rt)))
        b = ACC3 + 16 * rt; t = OF + 12 * rt
        for h in range(2):
            a.e("v_pk_add_f32 %s, %s, %s" % (vr(b + 2 * h, 2), vr(b + 2 * h, 2), vr(t + 2 * h, 2)))
            a.e("v_pk_add_f32 %s, %s, %s" % (vr(t + 4 + 2 * h, 2), vr(t + 4 + 2 * h, 2), vr(t + 8 + 2 * h, 2)))
        for h in range(2): a.e("v_pk_add_f32 %s, %s, %s" % (vr(b + 2 * h, 2), vr(b + 2 * h, 2), vr(t + 4 + 2 * h, 2)))
    a.e("s_mov_b64 exec, 32")
    a.lab("L_poll2")
    a.e(["global_load_dword v%d, v241, s[%d:%d] sc1" % (vT, pWs, pWs + 1), "s_sub_u32 s%d, s%d, 1" % (sCnt, sCnt), "s_cbranch_scc1 L_go2",
         "s_waitcnt vmcnt(0)", "v_cmp_eq_u32 vcc, v%d, v%d" % (vT, vFc), "s_nop 0", "s_cbranch_vccnz L_poll2"])
    a.lab("L_go2")
    a.e(["s_mov_b64 exec, -1"] + ldP)
    for rt in range(7):
        b = ACC3 + 16 * rt; t = PB + 4 * rt
        a.e(["s_waitcnt vmcnt(6)"] + ["v_pk_add_f32 %s, %s, %s" % (vr(b + 2 * h, 2), vr(b + 2 * h, 2), vr(t + 2 * h, 2)) for h in range(2)])
        a.e(["v_cvt_pk_bf16_f32 v%d, v%d, v%d" % (b, b, b + 1), "v_cvt_pk_bf16_f32 v%d, v%d, v%d" % (b + 1, b + 2, b + 3),
             "s_mov_b32 s%d, %d" % (sT, rt * 32768),
             "buffer_store_dwordx2 %s, v%d, s[%d:%d], s%d offen %s" % (vr(b, 2), vOut, sOut, sOut + 3, sT, O.out_flags)])
    if O.stamps:
        a.e(["s_waitcnt vmcnt(0)"])
        if not O.ts: stamp()
        a.e(["s_memrealtime s[78:79]", "s_waitcnt lgkmcnt(0)", "s_lshl_b32 s%d, s2, 2" % sT, "s_add_u32 s%d, s%d, s%d" % (sT, sT, sWv), "s_lshl_b32 s%d, s%d, 6" % (sT, sT),
             "s_add_u32 s%d, s%d, 0x%x" % (sT, sT, STAMP_OFF),
             "s_add_u32 s%d, s%d, s%d" % (sO, pWs, sT), "s_addc_u32 s%d, s%d, 0" % (sO + 1, pWs + 1), "s_mov_b32 s%d, 64" % (sO + 2), "v_mov_b32 v%d, 0" % vT])
        for i in range(nst[0]):
            a.e(["s_sub_u32 s%d, s%d, s%d" % (sT, sST + 2 * i, sST), "v_mov_b32 v%d, s%d" % (vT2, sT),
                 "buffer_store_dword v%d, v%d, s[%d:%d], 0 offen offset:%d" % (vT2, vT, sO, sO + 3, 4 * i)])
        for i, r_ in enumerate((10, 6, 4, sST, 78)):
            a.e(["v_mov_b32 v%d, s%d" % (vT2, r_), "buffer_store_dword v%d, v%d, s[%d:%d], 0 offen offset:%d" % (vT2, vT, sO, sO + 3, 44 + 4 * i)])
    if O.ts:
        a.e(["s_lshl_b32 s%d, s2, 9" % sT, "s_add_u32 s%d, s%d, 0x%x" % (sT, sT, STAMP_OFF + 0x200000),
             "s_add_u32 s%d, s%d, s%d" % (sO, pWs, sT), "s_addc_u32 s%d, s%d, 0" % (sO + 1, pWs + 1), "s_mov_b32 s%d, 512" % (sO + 2),
             "v_lshlrev_b32 v%d, 2, v%d" % (vT, vL), "buffer_store_dword v252, v%d, s[%d:%d], 0 offen" % (vT, sO, sO + 3)])
    a.lab("L_end")
    a.e("s_endpgm")

    if O.wo_at >= 100:
        a.lab("L_wopf")
        a.e(["s_lshl_b32 s%d, s2, 2" % sT, "s_add_u32 s%d, s%d, s%d" % (sT, sT, sWv), "s_lshl_b32 s%d, s%d, 13" % (sT, sT),
             "v_lshlrev_b32 v%d, 7, v%d" % (vT, vL), "v_add_u32 v%d, s%d, v%d" % (vT, sT, vT),
             "global_load_dword v%d, v%d, s[%d:%d]" % (vDum, vT, pWo, pWo + 1), "s_branch L_wopf_ret"])
    a.lab("L_slow")
    a.e(["s_waitcnt vmcnt(0) lgkmcnt(0)", "s_barrier", "s_mov_b32 s%d, 1" % sPass] + lane_setup() + ["s_branch L_restart"])
    a.lab("L_maxpass")
    a.e(["s_waitcnt vmcnt(0) lgkmcnt(0)", "s_barrier"] + Cq(6) + ["s_mov_b32 s%d, 16" % sCnt, "s_mov_b32 s%d, 0" % sK0])
    a.e([zero16(ar(176 + 16 * i, 16)) for i in range(3)] + ["s_nop 7"])
    for rt in range(7): a.e("v_mov_b32 v%d, 0xff800000" % (M + 4 * rt))
    a.lab("L_slow_loop")
    a.e(kvtile(0))
    a.e(["s_waitcnt vmcnt(0)", "s_barrier"])
    a.e([rdK(i, 0) for i in range(8)])
    a.e(["s_waitcnt lgkmcnt(0)", "s_barrier"])
    for rt in range(7):
        for i in range(8):
            t, ks = i & 1, i >> 1
            d = vr(S + 4 * t, 4)
            a.e(mfma(d, ar(aK + 16 * t + 4 * ks, 4), ar(aQ + 16 * rt + 4 * ks, 4), "0" if ks == 0 else d))
        a.e("s_nop 7")
        for i in range(4): a.e("v_max3_f32 v%d, v%d, v%d, v%d" % (M + 4 * rt, M + 4 * rt, S + 2 * i, S + 2 * i + 1))
    a.e(["s_sub_u32 s%d, s%d, 1" % (sCnt, sCnt), "s_cmp_lg_u32 s%d, 0" % sCnt, "s_cbranch_scc1 L_slow_loop"])
    a.e(xlane("v_max_f32", [M + 4 * rt for rt in range(7)], [M + 4 * rt + 1 for rt in range(7)]))
    a.e(["v_add_u32 v%d, s%d, v%d" % (vTc, sSp, vL16), "v_xor_b32 v%d, 16384, v%d" % (vT3, vTc)])
    for rt in range(7): a.e("ds_write_b32 v%d, v%d offset:%d" % (vTc, M + 4 * rt, rt * 1024))
    a.e(["s_waitcnt lgkmcnt(0)", "s_barrier"])
    for rt in range(7): a.e("ds_read_b32 v%d, v%d offset:%d" % (M + 4 * rt + 1, vT3, rt * 1024))
    a.e(["s_mov_b32 s%d, 0" % sK0])
    for tl in range(3): a.e(kvtile(tl))
    a.e([m0KV(3, 0), "s_nop 0"] + [dmaKV(i) for i in range(NA)])
    a.e("s_waitcnt lgkmcnt(0)")
    for rt in range(7): a.e("v_max_f32 v%d, v%d, v%d" % (M + 4 * rt, M + 4 * rt, M + 4 * rt + 1))
    a.e(["s_waitcnt vmcnt(%d)" % (8 + NA), "s_barrier"])
    a.e([rdK(i, 0) for i in range(8)])
    a.e([zero16(vr(V, 16)), zero16(vr(V + 16, 16))])
    a.e(["v_sub_f32 v%d, 0, v%d" % (M + 4 * rt + i, M + 4 * rt) for rt in range(7) for i in (1, 2, 3, 0)])
    a.e(["v_mov_b32 v%d, 0" % i for i in range(L, L + 7)] + ["v_mov_b32 v%d, 0" % i for i in range(P + 4, P + 8)])
    a.e(["s_mov_b32 s%d, 3" % sCnt, "s_waitcnt lgkmcnt(0)"] + qk(0, 0) + ["s_nop 7", "s_branch L_loop"])

def build():
    ref = open("cdna_kernels/%s.s.ref" % NAME).read()
    hdr = ref.split("; Override launch")[0]
    a = Asm()
    k = NAME + "_kernel"
    a.raw(".amdgcn_target \"amdgcn-amd-amdhsa--gfx950\"\n.text")
    a.raw(".globl %s\n.p2align 8\n.type %s,@function" % (k, k))
    kernel(a)
    for e in check(a.L): print(e, file=sys.stderr)
    t = hdr + "; @launch grid=(256,1,1) block=(256,1,1) lds=163840\n" + a.text()
    t += """.section .rodata,"a"
.p2align 6
.amdhsa_kernel %s
  .amdhsa_next_free_vgpr 512
  .amdhsa_next_free_sgpr 102
  .amdhsa_accum_offset 256
  .amdhsa_group_segment_fixed_size 0
  .amdhsa_kernarg_size 64
  .amdhsa_user_sgpr_count 2
  .amdhsa_user_sgpr_kernarg_segment_ptr 1
  .amdhsa_system_sgpr_workgroup_id_x 1
.end_amdhsa_kernel
""" % k
    return t

if __name__ == "__main__":
    out = sys.argv[1] if len(sys.argv) > 1 else "cdna_kernels/%s.s" % NAME
    for kv in sys.argv[2:]:
        k, v = kv.split("=")
        cur = getattr(O, k)
        setattr(O, k, (v == "1") if isinstance(cur, bool) else type(cur)(v))
    open(out, "w").write(build())
```

```python
import sys, math, struct
from asmlib import *

NAME = "standalone__mha_block_cached__near_ridge"
def f32(x): return struct.unpack("<I", struct.pack("<f", x))[0]
CSCALE = f32(128 ** -0.5 * math.log2(math.e))
THR = f32(2.0 ** 30)

class Opt:
    stamps = False
    ts = False
    kv_nt = True
    nxe = 5
    p1_span = 26
    force_slow = False
    pf_xw = True
    pf_wo = True
    pf_code = True
    w_n = 0
    w_late = 8
    wl2 = 0
    out_flags = ""
    pfl = 0
    burst = 4
    lag = 0
    ilv = True
    pts = "2.1,2.5,3.5,3.9"
    pack = True
    verbose = False
    x1mask = 0
    rd_first = False
    wqc = False
    tb4 = False
    wo_r = 3
    bstep = 2
    t3late = False
    wo_at = 99
    dynw = True
    wggo = False
    olook = 3
    sset = 1
    nost = False
    st_flags = "sc1"
    x3mask = 7
    burn = 0
    tsched = 2
    pf_flags = ""
    wpf = 0
O = Opt()
STAMP_OFF = 0x8000000
FLAG_OFF = 0x1000000
PART_OFF = 0x2000000

def zero16(d): return "v_mfma_f32_32x32x16_bf16 %s, v[12:15], v[12:15], 0" % d

class VM:
    def __init__(self, init): self.ops = list(init)
    def issue(self, tag, opt=False): self.ops.append(tag + "?" if opt else tag)
    def n(self, tag):
        idx = max(i for i, t in enumerate(self.ops) if t.rstrip("?") == tag)
        if self.ops[idx].endswith("?"): return min(63, len(self.ops) - 1 - idx)
        return min(63, sum(1 for t in self.ops[idx + 1:] if not t.endswith("?")))

def kernel(a):
    KVF = " nt" if O.kv_nt else ""
    pX, pK, pV, pWq, pWo, pOut, pDbg, pWs = 4, 6, 8, 10, 12, 14, 16, 18
    sX, sW, sKV, sO, sOs, sWs, sOut = 20, 24, 28, 32, 36, 40, 44
    (sWv, sB, sH, sRH, sKH, sXoff, sWoff, sCnt, sMX, sMW, sReg, sRing, sSp, sG, sFlip, sK0, sPass, sT, sT2, sRB, sCT, sWo, sD1, sD2) = range(48, 72)
    sP = 3 if not O.ts else 81
    sOf = 1; sPm = 0
    sC = 72; sRt = 74; sPC = 82; sVV = 84; sST = 88; sK1 = sFlip
    KH, TS_ = (8192, 16384) if O.ilv else (131072, 8192)
    vL, vT, vT2, vT3, vL16 = 1, 2, 3, 4, 5
    vKV, vW = 6, 10
    OK, ACC = 16, 128
    M, S, E, P, V, L = 128, 156, 172, 180, 188, 220
    vTa, vTb, vTc = 237, 238, 236
    E2 = 228
    vX, vXr, vWr = 240, 247, 251
    vKr, vVr, vK0 = 240, 241, 243
    vD, vR = 244, 10
    vQw, vQr = 2, 3
    PK = 16
    vFo, vFc, vDum = 254, 255, 253
    vCp = 0
    aQ, aO, aK = 0, 112, 224
    aXF, aWF = 0, 224
    nst = [0]
    def stamp(m=3):
        if O.stamps and (m & O.sset):
            assert nst[0] < 7
            a.e("s_memrealtime s[%d:%d]" % (sST + 2 * nst[0], sST + 2 * nst[0] + 1)); nst[0] += 1
    def flagp(v, t):
        return ["s_and_b32 s%d, s%d, 1" % (sT, sB), "s_lshl_b32 s%d, s%d, 6" % (sT, sT), "s_lshr_b32 s%d, s%d, 1" % (sG, sB), "s_lshl_b32 s%d, s%d, 3" % (sG, sG),
                "s_add_u32 s%d, s%d, s%d" % (sT, sT, sG), "s_lshr_b32 s%d, s%d, 2" % (sG, sH), "s_add_u32 s%d, s%d, s%d" % (sT, sT, sG), "s_lshl_b32 s%d, s%d, 7" % (sT, sT),
                "s_and_b32 s%d, s%d, 3" % (sG, sH), "s_lshl_b32 s%d, s%d, 2" % (sG, sG), "s_add_u32 s%d, s%d, s%d" % (sT, sT, sG), "s_add_u32 s%d, s%d, 0x%x" % (sT, sT, FLAG_OFF),
                "v_lshrrev_b32 v%d, 1, v%d" % (v, vL), "v_lshlrev_b32 v%d, 14, v%d" % (v, v), "v_and_b32 v%d, 1, v%d" % (t, vL),
                "v_lshl_add_u32 v%d, v%d, 12, v%d" % (v, t, v), "v_add_u32 v%d, s%d, v%d" % (v, sT, v),
                "s_xor_b32 s%d, s2, 1" % sT, "s_lshl_b32 s%d, s%d, 9" % (sT, sT), "s_add_u32 s%d, s%d, 0x%x" % (sT, sT, FLAG_OFF + 16),
                "v_and_b32 v%d, 3, v%d" % (t, vL), "v_lshlrev_b32 v%d, 7, v%d" % (t, t), "v_cmp_gt_u32 vcc, 16, v%d" % vL, "v_add_u32 v%d, s%d, v%d" % (t, sT, t),
                "s_nop 0", "v_cndmask_b32 v%d, v%d, v%d, vcc" % (v, t, v)]
    def flagc(v):
        return ["s_lshl_b32 s%d, s2, 2" % sT, "s_add_u32 s%d, s%d, s%d" % (sT, sT, sWv), "s_lshl_b32 s%d, s%d, 7" % (sT, sT), "s_add_u32 s%d, s%d, 0x%x" % (sT, sT, FLAG_OFF),
                "v_min_u32 v%d, 5, v%d" % (v, vL), "v_lshlrev_b32 v%d, 2, v%d" % (v, v), "v_add_u32 v%d, s%d, v%d" % (v, sT, v),
                "s_mov_b64 exec, 64", "v_xor_b32 v%d, 0x200, v%d" % (v, v), "s_mov_b64 exec, -1"]
    def boxaddr(v):
        return ["s_lshl_b32 s%d, s2, 2" % sT, "s_add_u32 s%d, s%d, s%d" % (sT, sT, sWv), "s_lshl_b32 s%d, s%d, 13" % (sT, sT),
                "s_add_u32 s%d, s%d, 0x%x" % (sT, sT, PART_OFF + 3072), "v_add_u32 v%d, s%d, v%d" % (v, sT, vL16)]
    def codepf(lo, hi, t0):
        return ["v_min_u32 v%d, %s-%s-4, v%d" % (t0, hi, lo, vCp), "v_add_u32 v%d, %s-L_pc, v%d" % (t0, lo, t0),
                "v_mov_b32 v%d, s%d" % (t0 + 1, sPC + 1), "v_add_co_u32 v%d, vcc, s%d, v%d" % (t0, sPC, t0), "s_nop 1",
                "v_addc_co_u32 v%d, vcc, 0, v%d, vcc" % (t0 + 1, t0 + 1), "global_load_dword v%d, v[%d:%d], off" % (vDum, t0, t0 + 1)]

    a.lab(NAME + "_kernel")
    a.e(["s_cmp_ge_u32 s2, 256", "s_cbranch_scc1 L_end",
         "s_load_dwordx8 s[4:11], s[0:1], 0", "s_load_dwordx8 s[12:19], s[0:1], 32"])
    stamp(7)
    a.e(["s_getpc_b64 s[%d:%d]" % (sPC, sPC + 1)])
    a.lab("L_pc")
    a.e(["v_and_b32 v%d, 63, v0" % vL, "v_lshrrev_b32 v%d, 6, v0" % vT,
         "s_and_b32 s%d, s2, 7" % sT, "s_lshr_b32 s%d, s2, 3" % sT2,
         "v_readfirstlane_b32 s%d, v%d" % (sWv, vT),
         "v_min_u32 v%d, 2, v%d" % (vCp, vL), "v_lshl_add_u32 v%d, v%d, 2, v%d" % (vCp, vCp, vT), "v_lshlrev_b32 v%d, 5, v%d" % (vCp, vCp),
         "v_add_lshl_u32 v%d, v%d, s%d, 7" % (vCp, vCp, sT2)])
    if O.pf_code: a.e(codepf("L_pc", "L_end", vT))
    a.e(["s_mov_b32 s%d, 0" % sPass,
         "s_and_b32 s%d, s%d, 1" % (sB, sT), "s_lshl_b32 s%d, s%d, 2" % (sB, sB),
         "s_and_b32 s%d, s%d, 3" % (sG, sT2), "s_add_u32 s%d, s%d, s%d" % (sB, sB, sG),
         "s_lshr_b32 s%d, s%d, 1" % (sH, sT), "s_lshl_b32 s%d, s%d, 2" % (sRB, sH), "s_add_u32 s%d, s%d, s%d" % (sRB, sRB, sG), "s_lshl_b32 s%d, s%d, 3" % (sH, sH),
         "s_lshr_b32 s%d, s%d, 2" % (sCT, sT2), "s_add_u32 s%d, s%d, s%d" % (sH, sH, sCT),
         "s_and_b32 s%d, s%d, 1" % (sRH, sWv), "s_lshr_b32 s%d, s%d, 1" % (sKH, sWv)])
    a.e(["s_lshl_b32 s%d, s%d, 15" % (sMX, sKH), "s_mul_i32 s%d, s%d, 7168" % (sT, sRH),
         "s_add_u32 s%d, s%d, s%d" % (sMX, sMX, sT), "s_add_u32 s%d, s%d, 16384" % (sMX, sMX),
         "s_lshl_b32 s%d, s%d, 11" % (sMW, sWv), "s_add_u32 s%d, s%d, 131072" % (sMW, sMW),
         "s_lshl_b32 s%d, s%d, 15" % (sReg, sWv),
         "s_mov_b32 s%d, 458752" % (sX + 2), "s_mov_b32 s%d, 0x20000" % (sX + 3), "s_mov_b32 s%d, 0x20000" % (sW + 3),
         "s_mul_i32 s%d, s%d, 458752" % (sD1, sB), "s_lshl_b32 s%d, s%d, 8" % (sD2, sH), "s_sub_u32 s%d, 0x800000, s%d" % (sW + 2, sD2)])
    def lane_setup():
        o = ["v_lshrrev_b32 v%d, 3, v%d" % (vT, vL), "v_and_b32 v%d, 7, v%d" % (vT2, vL), "v_and_b32 v%d, 6, v%d" % (vT3, vT),
             "v_xor_b32 v%d, v%d, v%d" % (vT3, vT3, vT2), "v_lshlrev_b32 v%d, 4, v%d" % (vT3, vT3),
             "v_lshl_add_u32 v%d, v%d, 11, v%d" % (vX, vT, vT3),
             "s_mul_i32 s%d, s%d, %d" % (sT, sWv, 7 * 16384), "v_add_u32 v%d, s%d, v%d" % (vX, sT, vX)]
        o += ["v_add_u32 v%d, %d, v%d" % (vX + j, j * 16384 - (j & 3) * 1024, vX) for j in range(1, 7)]
        o += ["v_and_b32 v%d, 2, v%d" % (vT3, vT), "v_lshlrev_b32 v%d, 1, v%d" % (vT3, vT3),
              "v_xor_b32 v%d, v%d, v%d" % (vT3, vT3, vT2), "v_lshlrev_b32 v%d, 4, v%d" % (vT3, vT3),
              "v_lshl_add_u32 v%d, v%d, 13, v%d" % (vW, vT, vT3),
              "s_lshl_b32 s%d, s%d, 17" % (sT, sRH), "s_lshl_b32 s%d, s%d, 7" % (sG, sKH), "s_add_u32 s%d, s%d, s%d" % (sT, sT, sG),
              "v_add_u32 v%d, s%d, v%d" % (vW, sT, vW), "v_add_u32 v%d, %d, v%d" % (vW + 1, 8 * 8192 - 1024, vW)]
        return o
    a.e(lane_setup())
    a.e(["s_waitcnt lgkmcnt(0)",
         "s_add_u32 s%d, s%d, s%d" % (sW, pWq, sD2), "s_addc_u32 s%d, s%d, 0" % (sW + 1, pWq + 1),
         "s_add_u32 s%d, s%d, s%d" % (sX, pX, sD1), "s_addc_u32 s%d, s%d, 0" % (sX + 1, pX + 1)])
    stamp(4)
    a.lab("L_restart")

    TS_A = ["s_memrealtime s[100:101]"]
    TS_B = ["s_mov_b32 s3, m0", "s_mov_b32 m0, s81", "v_writelane_b32 v252, s100, m0", "s_add_u32 s81, s81, 1", "s_mov_b32 m0, s3"]
    def dmaX(j): return "buffer_load_dwordx4 v%d, s[%d:%d], s%d offen offset:%d lds" % (vX + j, sX, sX + 3, sXoff, (j & 3) * 1024)
    def m0X(buf, hi): return "s_add_u32 m0, s%d, %d" % (sMX, buf * 65536 + hi * 4096)
    def dmaW(j): return "buffer_load_dwordx4 v%d, s[%d:%d], s%d offen offset:%d lds" % (vW + j, sW, sW + 3, sWoff, j * 1024)
    def m0W(slot): return "s_add_u32 m0, s%d, %d" % (sMW, slot * 8192)
    def ptm0(reg, slot): return "s_add_u32 m0, s%d, %d" % (sMW, (reg * 32768 + slot * 8192 - 131072) & 0xffffffff)
    def ptld(reg): return ["buffer_load_dwordx4 v%d, s[%d:%d], s%d offen offset:%d%s lds" % (vKV + (2 if reg == 3 else 0) + j, sVV if reg & 1 else sKV, (sVV if reg & 1 else sKV) + 3,
                           sK1 if reg >> 1 else sK0, j * 1024, KVF) for j in range(2)]
    incK = ["s_add_u32 s%d, s%d, %d" % (sK0, sK0, TS_), "s_add_u32 s%d, s%d, %d" % (sK1, sK1, TS_)]
    def setK(tile): return ["s_mov_b32 s%d, %d" % (sK0, tile * TS_), "s_mov_b32 s%d, %d" % (sK1, tile * TS_ + KH)]
    PORD = (0, 2, 1, 3)
    def kvtile(slot): return [x for reg in PORD for x in [ptm0(reg, slot), "s_nop 0"] + ptld(reg)] + incK
    sXl, sWl, sOx, sOw = 10, 11, sWo, sK0
    incW = ["s_add_u32 s%d, s%d, 262144" % (sWl, sWl), "s_xor_b32 s%d, s%d, s%d" % (sWoff, sWl, sOw)]
    incX = ["s_add_u32 s%d, s%d, 128" % (sXl, sXl), "s_xor_b32 s%d, s%d, s%d" % (sXoff, sXl, sOx)]

    a.e(["s_mov_b32 s%d, 0" % sXl, "s_mov_b32 s%d, 0" % sWl, "s_xor_b32 s%d, s%d, s%d" % (sT, sB, sH), "s_and_b32 s%d, s%d, %d" % (sT, sT, O.x1mask),
         "s_lshl_b32 s%d, s%d, 19" % (sOw, sT), "s_lshl_b32 s%d, s%d, 7" % (sOx, sT), "s_mov_b32 s%d, s%d" % (sWoff, sOw), "s_mov_b32 s%d, s%d" % (sXoff, sOx)])
    def stage_loads(st):
        return ([m0W(2 * st), "s_nop 0", dmaW(0), dmaW(1), m0X(st, 0)] + incW + [dmaX(j) for j in range(4)] + [m0X(st, 1), "s_nop 0"] + [dmaX(j) for j in range(4, 7)]
                + [m0W(2 * st + 1)] + incX + [dmaW(0), dmaW(1)] + incW)
    a.e(stage_loads(0))
    stamp(4)
    a.e(["v_mov_b32 v%d, 0" % i for i in range(12, 16)])
    su0 = len(a.L)
    a.e(["s_lshl_b32 s%d, s%d, 5" % (sT, sB), "s_add_u32 s%d, s%d, s%d" % (sT, sT, sH), "s_lshl_b32 s%d, s%d, 18" % (sT, sT),
         "s_add_u32 s%d, s%d, s%d" % (sKV, pK, sT), "s_addc_u32 s%d, s%d, 0" % (sKV + 1, pK + 1),
         "s_mov_b32 s%d, 0x40000" % (sKV + 2), "s_mov_b32 s%d, 0x20000" % (sKV + 3),
         "s_add_u32 s%d, s%d, s%d" % (sVV, pV, sT), "s_addc_u32 s%d, s%d, 0" % (sVV + 1, pV + 1),
         "s_mov_b32 s%d, 0x40000" % (sVV + 2), "s_mov_b32 s%d, 0x20000" % (sVV + 3),
         "v_bfe_u32 v%d, v%d, 2, 2" % (vT, vL), "v_lshrrev_b32 v%d, 4, v%d" % (vT2, vL), "v_lshlrev_b32 v%d, 6, v%d" % (vT2, vT2),
         "v_lshl_add_u32 v%d, v%d, 8, v%d" % (vT2, vT, vT2), "v_and_b32 v%d, 3, v%d" % (vT, vL), "v_lshl_add_u32 v%d, v%d, 4, v%d" % (vT2, vT, vT2),
         "s_lshl_b32 s%d, s%d, 5" % (sG, sRH), "v_xor_b32 v%d, s%d, v%d" % (vT2, sG, vT2), "s_lshl_b32 s%d, s%d, 11" % (sG, sWv),
         "v_add_u32 v%d, s%d, v%d" % (vKV, sG, vT2), "v_xor_b32 v%d, 48, v%d" % (vKV + 1, vKV),
         "v_xor_b32 v%d, 0x80, v%d" % (vKV + 2, vKV), "v_xor_b32 v%d, 0x80, v%d" % (vKV + 3, vKV + 1)])
    pPx, pPw = PK + 20, PK + 21
    a.e(["s_mul_i32 s%d, s%d, 14336" % (sT, sH), "s_lshl_b32 s%d, s%d, 12" % (sG, sWv), "s_add_u32 s%d, s%d, s%d" % (sT, sT, sG),
         "v_and_b32 v%d, 31, v%d" % (pPx, vL), "v_lshlrev_b32 v%d, 7, v%d" % (pPx, pPx), "v_add_u32 v%d, s%d, v%d" % (pPx, sT, pPx),
         "s_lshl_b32 s%d, s%d, 2" % (sT, sB), "s_add_u32 s%d, s%d, s%d" % (sT, sT, sWv), "s_lshl_b32 s%d, s%d, 18" % (sT, sT),
         "v_lshrrev_b32 v%d, 1, v%d" % (pPw, vL), "v_lshlrev_b32 v%d, 13, v%d" % (pPw, pPw),
         "v_and_b32 v%d, 1, v%d" % (vT2, vL), "v_lshl_add_u32 v%d, v%d, 7, v%d" % (pPw, vT2, pPw), "v_add_u32 v%d, s%d, v%d" % (pPw, sT, pPw)])
    a.e(["v_lshlrev_b32 v%d, 4, v%d" % (vL16, vL),
         "v_and_b32 v%d, 15, v%d" % (vT, vL), "v_lshrrev_b32 v%d, 4, v%d" % (vT2, vL),
         "v_and_b32 v%d, 6, v%d" % (vT3, vT), "v_xor_b32 v%d, v%d, v%d" % (vT3, vT3, vT2), "v_lshlrev_b32 v%d, 4, v%d" % (vT3, vT3),
         "v_lshl_add_u32 v%d, v%d, 7, v%d" % (vT3, vT, vT3),
         "s_lshl_b32 s%d, s%d, 15" % (sT, sRH), "s_add_u32 s%d, s%d, 16384" % (sT, sT),
         "v_add_u32 v%d, s%d, v%d" % (vXr, sT, vT3), "v_xor_b32 v%d, 64, v%d" % (vXr + 1, vXr),
         "v_add_u32 v%d, 0x10000, v%d" % (vXr + 2, vXr), "v_add_u32 v%d, 0x10000, v%d" % (vXr + 3, vXr + 1)])
    a.e(["v_bfe_u32 v%d, v%d, 2, 2" % (vT, vL), "v_lshl_add_u32 v%d, v%d, 3, v%d" % (vT, vT2, vT),
         "v_and_b32 v%d, 2, v%d" % (vT3, vT), "v_lshlrev_b32 v%d, 1, v%d" % (vT3, vT3),
         "v_and_b32 v%d, 3, v%d" % (vT2, vL), "v_xor_b32 v%d, v%d, v%d" % (vT3, vT3, vT2), "v_lshlrev_b32 v%d, 4, v%d" % (vT3, vT3),
         "v_lshl_add_u32 v%d, v%d, 7, v%d" % (vT3, vT, vT3),
         "s_lshl_b32 s%d, s%d, 12" % (sT, sKH), "s_add_u32 s%d, s%d, 131072" % (sT, sT),
         "v_add_u32 v%d, s%d, v%d" % (vWr, sT, vT3), "v_xor_b32 v%d, 64, v%d" % (vWr + 1, vWr)])
    a.e(["s_mul_i32 s%d, s%d, 14" % (sT, sB), "s_mul_i32 s%d, s%d, 7" % (sG, sRH), "s_add_u32 s%d, s%d, s%d" % (sT, sT, sG),
         "s_lshl_b32 s%d, s%d, 7" % (sT, sT), "s_lshl_b32 s%d, s%d, 2" % (sG, sH), "s_add_u32 s%d, s%d, s%d" % (sT, sT, sG),
         "s_lshl_b32 s%d, s%d, 1" % (sG, sKH), "s_add_u32 s%d, s%d, s%d" % (sT, sT, sG), "s_lshl_b32 s%d, s%d, 10" % (sT, sT),
         "s_add_u32 s%d, s%d, s%d" % (sO, pWs, sT), "s_addc_u32 s%d, s%d, 0" % (sO + 1, pWs + 1),
         "s_mov_b32 s%d, %d" % (sO + 2, 6 * 131072 + 2048), "s_mov_b32 s%d, 0x20000" % (sO + 3),
         "s_mov_b32 s%d, 0x%x" % (sC, CSCALE), "s_mov_b32 s%d, 0x%x" % (sC + 1, CSCALE),
         "s_and_b32 s%d, s%d, 4" % (sPm, sB), "s_add_u32 s%d, s%d, s%d" % (sPm, sPm, sWv),
         "s_mul_i32 s%d, s%d, %d" % (sT, sRB, 7 * 131072), "s_lshl_b32 s%d, s%d, 14" % (sG, sPm), "s_add_u32 s%d, s%d, s%d" % (sT, sT, sG),
         "s_add_u32 s%d, s%d, s%d" % (sOs, pWs, sT), "s_addc_u32 s%d, s%d, 0" % (sOs + 1, pWs + 1),
         "s_mov_b32 s%d, %d" % (sOs + 2, 6 * 131072 + 16384), "s_mov_b32 s%d, 0x20000" % (sOs + 3),
         "s_lshl_b32 s%d, s%d, 20" % (sT, sPm), "s_lshl_b32 s%d, s%d, 8" % (sG, sCT), "s_add_u32 s%d, s%d, s%d" % (sT, sT, sG),
         "s_add_u32 s%d, s%d, s%d" % (sWs, pWo, sT), "s_addc_u32 s%d, s%d, 0" % (sWs + 1, pWo + 1),
         "s_sub_u32 s%d, 0x100000, s%d" % (sWs + 2, sG), "s_mov_b32 s%d, 0x20000" % (sWs + 3),
         "s_mul_i32 s%d, s%d, %d" % (sT, sRB, 112 * 2048), "s_add_u32 s%d, s%d, s%d" % (sOut, pOut, sT), "s_addc_u32 s%d, s%d, 0" % (sOut + 1, pOut + 1),
         "s_mov_b32 s%d, %d" % (sOut + 2, 112 * 2048), "s_mov_b32 s%d, 0x20000" % (sOut + 3),
         "s_xor_b32 s%d, s%d, 0x10000" % (sRing, sReg),
         "s_lshl_b32 s%d, s%d, 13" % (sSp, sWv), "s_add_u32 s%d, s%d, 131072" % (sSp, sSp),
         "s_sub_u32 s%d, s%d, s%d" % (sD1, sSp, sReg), "s_sub_u32 s%d, s%d, s%d" % (sD2, sRing, sSp)])
    for rt in range(7): a.e("s_mov_b32 s%d, %d" % (sRt + rt, rt * 131072))
    pKr, pVr, pK0, pD, pR, pQ, pFp, pFc, pWoP, pCp = PK, PK + 1, PK + 3, PK + 4, PK + 8, PK + 10, PK + 12, PK + 13, PK + 14, PK + 16
    a.e(flagp(pFp, vT2) + flagc(pFc))
    a.e(["v_bfe_u32 v%d, v%d, 2, 2" % (vT, vL), "v_sub_u32 v%d, 0, v%d" % (vT2, vT), "v_lshrrev_b32 v%d, 4, v%d" % (vT3, vL),
         "v_xor_b32 v%d, v%d, v%d" % (vT2, vT2, vT3), "v_and_b32 v%d, 3, v%d" % (vT2, vT2), "v_lshlrev_b32 v%d, 4, v%d" % (vT2, vT2),
         "v_lshl_add_u32 v%d, v%d, 10, v%d" % (vT2, vT, vT2), "v_and_b32 v%d, 3, v%d" % (pK0, vL), "v_lshlrev_b32 v%d, 6, v%d" % (pK0, pK0),
         "s_lshl_b32 s%d, s%d, 16" % (sG, sKH), "v_add3_u32 v%d, v%d, v%d, s%d" % (pKr, pK0, vT2, sG),
         "v_lshl_add_u32 v%d, v%d, 4, v%d" % (pK0, vT3, pK0),
         "v_sub_u32 v%d, 0, v%d" % (vT2, vT3), "v_bfe_u32 v%d, v%d, 1, 1" % (pVr + 1, vL), "v_xor_b32 v%d, v%d, v%d" % (vT2, vT2, pVr + 1),
         "v_and_b32 v%d, 3, v%d" % (vT2, vT2), "v_lshlrev_b32 v%d, 4, v%d" % (vT2, vT2),
         "v_lshl_add_u32 v%d, v%d, 10, v%d" % (vT2, vT3, vT2), "v_lshl_add_u32 v%d, v%d, 6, v%d" % (vT2, vT, vT2),
         "v_and_b32 v%d, 1, v%d" % (pVr + 1, vL), "v_lshl_add_u32 v%d, v%d, 3, v%d" % (vT2, pVr + 1, vT2),
         "s_add_u32 s%d, s%d, 32768" % (sG, sG), "v_add_u32 v%d, s%d, v%d" % (pVr, sG, vT2), "v_xor_b32 v%d, 32, v%d" % (pVr + 1, pVr),
         "v_add_u32 v%d, s%d, v%d" % (pR, sReg, vT2), "v_xor_b32 v%d, 32, v%d" % (pR + 1, pR),
         "v_lshlrev_b32 v%d, 6, v%d" % (vT2, vT3), "v_lshl_add_u32 v%d, v%d, 11, v%d" % (vT2, vT, vT2), "v_and_b32 v%d, 3, v%d" % (vT, vL),
         "v_lshl_add_u32 v%d, v%d, 4, v%d" % (vT2, vT, vT2), "s_lshl_b32 s%d, s%d, 5" % (sT, sPm), "v_xor_b32 v%d, s%d, v%d" % (pD, sT, vT2)])
    for j in range(1, 4): a.e(["v_xor_b32 v%d, %d, v%d" % (pD + j, ((-j) & 3) * 16, pD), "v_add_u32 v%d, %d, v%d" % (pD + j, j * (8192 - 1024), pD + j)])
    a.e(["v_add_u32 v%d, s%d, v%d" % (pQ, sMW, vL16), "s_lshl_b32 s%d, s%d, 11" % (sT, sRH), "s_add_u32 s%d, s%d, 131072" % (sT, sT), "v_add_u32 v%d, s%d, v%d" % (pQ + 1, sT, vL16),
         "s_lshl_b32 s%d, s2, 2" % sT, "s_add_u32 s%d, s%d, s%d" % (sT, sT, sWv), "s_lshl_b32 s%d, s%d, 13" % (sT, sT),
         "v_lshlrev_b32 v%d, 7, v%d" % (pWoP, vL), "v_add_u32 v%d, s%d, v%d" % (pWoP, sT, pWoP),
         "s_lshl_b32 s%d, s%d, 1" % (sOf, sRB), "s_xor_b32 s%d, s%d, s%d" % (sOf, sOf, sCT), "s_and_b32 s%d, s%d, %d" % (sOf, sOf, O.x3mask), "s_lshl_b32 s%d, s%d, 16" % (sOf, sOf)])
    cp2 = codepf("L_tr", "L_epi", pCp)
    a.e(cp2[:-1])
    a.e([
         "s_lshl_b32 s%d, s2, 15" % sT, "s_lshl_b32 s%d, s%d, 10" % (sG, sWv), "s_add_u32 s%d, s%d, s%d" % (sT, sT, sG),
         "v_and_b32 v%d, 7, v%d" % (vT3, vL), "v_lshlrev_b32 v%d, 7, v%d" % (vT3, vT3), "v_add_u32 v%d, s%d, v%d" % (vT3, sT, vT3), "s_mov_b32 s%d, 0" % sP])
    kvpf = "global_load_dword v%d, v%d, s[%d:%d]" % (vDum, vT3, pWo, pWo + 1)
    zs = [zero16(vr(ACC + 16 * i, 16)) for i in range(7)] + [zero16(vr(OK + 16 * i, 16)) for i in range(2, 7)] + [zero16(ar(aO + 16 * i, 16)) for i in range(4)]
    seg = a.L[su0:]; del a.L[su0:]
    for i_, ln in enumerate(seg):
        if i_ % 7 == 3 and zs: a.e(zs.pop(0))
        a.L.append(ln)
    assert not zs and not any("exec" in ln for ln in seg[:120])
    late = stage_loads(1) + ["buffer_load_dword v%d, v%d, s[%d:%d], 0 offen" % (vDum, pPx, sX, sX + 3), "buffer_load_dword v%d, v%d, s[%d:%d], 0 offen" % (vDum, pPw, sW, sW + 3),
                              kvpf if O.wo_at != 0 else "global_load_dword v%d, v%d, s[%d:%d]" % (vDum, pWoP, pWo, pWo + 1)]
    def kvb(v, off): return "global_load_lds_dwordx4 v%d, s[4:5] offset:%d%s" % (v, off, KVF)
    kvq = ["s_cmp_lt_u32 s%d, 4" % sP, "s_cselect_b32 s4, s%d, s%d" % (sKV, sVV), "s_cselect_b32 s5, s%d, s%d" % (sKV + 1, sVV + 1),
           "s_and_b32 s%d, s%d, 1" % (sT, sP), "s_and_b32 s%d, s%d, 2" % (sG, sP), "s_lshl_b32 s%d, s%d, 12" % (sG, sG),
           "s_lshl_b32 s%d, s%d, 16" % (sT2, sT), "s_add_u32 s%d, s%d, s%d" % (sT2, sT2, sG), "s_mul_i32 s%d, s%d, %d" % (sT, sT, KH),
           "s_mul_i32 s%d, s%d, %d" % (sG, sG, TS_ // 8192), "s_add_u32 s%d, s%d, s%d" % (sT, sT, sG),
           "v_add_u32 v%d, s%d, v%d" % (vT, sT, vKV), "v_add_u32 v%d, s%d, v%d" % (vT2, sT, vKV + 1),
           "s_and_b32 s%d, s%d, 4" % (sG, sP), "s_lshl_b32 s%d, s%d, 13" % (sG, sG), "s_add_u32 s%d, s%d, s%d" % (sT2, sT2, sG),
           "s_and_b32 s%d, s%d, 5" % (sT, sP), "s_cmp_eq_u32 s%d, 5" % sT, "s_cselect_b32 s%d, 128, 0" % sT,
           "v_xor_b32 v%d, s%d, v%d" % (vT, sT, vT), "v_xor_b32 v%d, s%d, v%d" % (vT2, sT, vT2),
           "s_add_u32 s%d, s%d, s%d" % (sT2, sT2, sMW), "s_add_u32 s%d, s%d, 1" % (sP, sP)]
    kvq_m0 = "s_sub_u32 m0, s%d, 0x20000" % sT2

    def wreg(k): return {30: 192, 31: 208}.get(k, aWF + 16 * (k & 1))
    def xreg(k, rt): return 16 * rt + 4 * (k & 3)
    def rdW(k):
        out = []
        for dt in range(4):
            dp, t = dt >> 1, dt & 1
            for sec in range(2):
                out.append("ds_read_b64_tr_b16 %s, v%d offset:%d" % (ar(wreg(k) + 4 * dt + 2 * sec, 2), vWr + dp, (k & 3) * 8192 + sec * 512 + t * 8))
        return out
    def rdX1(s, kk, rt): return "ds_read_b128 %s, v%d offset:%d" % (ar(xreg(2 * s + kk, rt), 4), vXr + 2 * (s & 1) + kk, rt * 2048)
    def rdX(s): return [rdX1(s, kk, rt) for kk in range(2) for rt in range(7)]
    def A(rt, k): return [mfma(vr(ACC + 16 * rt + 4 * dt, 4), ar(wreg(k) + 4 * dt, 4), ar(xreg(k, rt), 4), vr(ACC + 16 * rt + 4 * dt, 4)) for dt in range(4)]
    stamp(4)
    if not O.rd_first: a.e(late)
    a.e(["s_waitcnt vmcnt(%d)" % (2 if O.rd_first else 16), "s_barrier"])
    stamp(4)
    a.e(rdW(0) + rdX(0))
    if O.rd_first: a.e(late)
    a.e(["s_mov_b32 s%d, 7" % sCnt, "s_waitcnt vmcnt(14) lgkmcnt(0)", "s_barrier"])

    wopf = "global_load_dword v%d, v%d, s[%d:%d]" % (vDum, pWoP, pWo, pWo + 1)
    addr28 = ["v_mov_b32 v%d, v%d" % (240 + i, PK + i) for i in range(8)] + ["v_mov_b32 v%d, v%d" % (vR + i, pR + i) for i in range(2)]
    addr28 += ["v_mov_b32 v%d, v%d" % (vQw + i, pQ + i) for i in range(2)] + setK(2)

    def p1_kstep(km, mode, ctl=False):
        sp, kk = km >> 1, km & 1
        mf = [m_ for rt in range(7) for m_ in A(rt, km)]
        gaps = [[] for _ in range(28)]
        rd = rdW(km + 1)
        if kk == 1: rd += rdX(sp + 1)
        dm = []; nxe = O.nxe; tailops = []
        if mode == "loop":
            def xs(js):
                r = []
                for j in js:
                    if j == 4 and j != js[0]: r += [m0X(sp, 1)]
                    r.append(dmaX(j))
                return r
            if kk == 0: dm += [m0W(km), dmaW(0), dmaW(1), m0X(sp, 0)] + incW + xs(list(range(nxe)))
            else:
                if nxe < 7: dm += ([m0X(sp, 1)] if nxe == 4 else []) + xs(list(range(nxe, 7)))
                dm += [m0W(km)] + incX + [dmaW(0), dmaW(1)] + incW
                if km == 3:
                    dm += [kvq_m0]; tailops = [kvb(vT, 0), kvb(vT2, 1024), kvpf]
            endw = "s_waitcnt vmcnt(%d) lgkmcnt(0)" % ((4 + nxe + (3 if km == 0 else 0)) if kk == 0 else 14)
        elif mode == 28:
            endw = "s_waitcnt vmcnt(5) lgkmcnt(0)"
        for g, x in enumerate(rd): gaps[g].append(x)
        def place(items, lo, hi):
            g_ = lo
            for y in items:
                if y.startswith("global_load"): g_ = min(g_ + 1, hi); gaps[g_].insert(0, y); continue
                while g_ < hi and len(gaps[g_]) >= 2: g_ += 1
                gaps[g_].append(y)
        nld = sum(1 for x in dm if x.startswith("buffer_load"))
        if nld:
            pos = [1 + (i * O.p1_span) // nld for i in range(nld)]
            li = 0; pend = []; prev = -1
            for x in dm:
                if x.startswith("buffer_load"):
                    place(pend, max(prev, 0), pos[li] - 1); pend = []
                    gaps[pos[li]].insert(0, x); prev = pos[li]; li += 1
                else: pend.append(x)
            place(pend, prev, 25)
        for i_, x in enumerate(tailops): gaps[23 + i_].insert(0, x)
        if mode == "loop" and km == 2: place(kvq + (["v_add_u32 v%d, 4096, v%d" % (vT3, vT3)] if O.wo_at == 1 else []), 8, 25)
        if mode == 28:
            place(kvq + [kvq_m0], 0, 15); gaps[16].insert(0, kvb(vT, 0)); gaps[17].insert(0, kvb(vT2, 1024)); place(addr28, 18, 25)
        if endw: gaps[26].append(endw); gaps[27].append("s_barrier")
        if ctl:
            gaps[25].append("s_sub_u32 s%d, s%d, 1" % (sCnt, sCnt)); gaps[26].append("s_cmp_lg_u32 s%d, 0" % sCnt)
        weave(a, mf, gaps)
    stamp(4)
    a.raw(".p2align 5")
    a.lab("L_p1")
    for km in range(4): p1_kstep(km, "loop", ctl=(km == 3))
    a.e("s_cbranch_scc1 L_p1")
    p1_kstep(0, 28)
    stamp(4)
    a.lab("L_tr")
    a.e(["s_cmp_lg_u32 s%d, 0" % sPass, "s_cbranch_scc1 L_nofl",
         "global_load_dword v%d, v%d, s[%d:%d] sc1" % (vFc, pFc, pWs, pWs + 1),
         "s_cmp_lg_u32 s%d, 0" % sWv, "s_cbranch_scc1 L_nofl",
         "global_load_dword v%d, v%d, s[%d:%d] sc1" % (vFo, pFp, pWs, pWs + 1)])
    a.lab("L_nofl")
    def ismem(x): return x.startswith(("ds_", "buffer_", "global_", "s_barrier"))
    def spread(mf, side, lo=0, hi=None):
        n = len(mf); hi = n - 1 if hi is None else hi
        gaps = [[] for _ in range(n)]
        g = lo
        for i_, x in enumerate(side):
            g = max(g, lo + (i_ * (hi - lo + 1)) // len(side))
            if ismem(x) and any(y.startswith("v_") for y in gaps[g]) and g < hi: g += 1
            gaps[g].append(x)
        weave(a, mf, gaps)
    def rdK(i, slot):
        t, ks = i & 1, i >> 1
        return "ds_read_b128 %s, v%d offset:%d" % (ar(aK + 16 * t + 4 * ks, 4), vKr, slot * 8192 + t * 4096 + ks * 256)
    def xlane(op, regs_, tmp):
        out = []
        for sw in ("v_permlane32_swap_b32", "v_permlane16_swap_b32"):
            out += ["v_mov_b32 v%d, v%d" % (t_, r_) for r_, t_ in zip(regs_, tmp)]
            out += ["%s v%d, v%d" % (sw, r_, t_) for r_, t_ in zip(regs_, tmp)]
            out += ["%s v%d, v%d, v%d" % (op, r_, r_, t_) for r_, t_ in zip(regs_, tmp)]
        return out
    def qk(rt, sb):
        out = []
        for i in range(8):
            t, ks = i & 1, i >> 1
            d = vr(S + 8 * sb + 4 * t, 4)
            out.append(mfma(d, ar(aK + 16 * t + 4 * ks, 4), ar(aQ + 16 * rt + 4 * ks, 4), vr(M + 4 * rt, 4) if ks == 0 else d))
        return out
    def oacc(rt, i): return vr(OK + 16 * rt + 4 * i, 4) if i < 4 else ar(aO + 16 * rt + 4 * (i - 4), 4)
    def pv(rt, pb): return [mfma(oacc(rt, i), vr(V + 4 * i, 4), vr(P + 4 * pb, 4), oacc(rt, i)) for i in range(8)]
    aK0 = 176
    def Bq(rt):
        o = []
        for dp in range(2):
            b = ACC + 16 * rt + 8 * dp
            for i in range(4): o += ["v_mul_f32 v%d, s%d, v%d" % (b + 2 * i, sC, b + 2 * i), "v_mul_f32 v%d, s%d, v%d" % (b + 2 * i + 1, sC, b + 2 * i + 1),
                                     "v_cvt_pk_bf16_f32 v%d, v%d, v%d" % (b + i, b + 2 * i, b + 2 * i + 1)]
            if dp == 0: o.append("s_waitcnt lgkmcnt(0)")
            o.append("ds_write_b128 v%d, %s offset:%d" % (vQw, vr(b, 4), (rt & 3) * 8192 + dp * 1024))
        return o
    def Cq(rt): return ["ds_read_b128 %s, v%d offset:%d" % (ar(aQ + 16 * rt + 4 * ks, 4), vQr, (rt & 3) * 8192 + (ks >> 1) * 4096 + (ks & 1) * 1024) for ks in range(4)]
    def PP(rt): return [mfma(vr(M + 4 * rt, 4), ar(aK0 + 4 * ks, 4), ar(aQ + 16 * rt + 4 * ks, 4), "0" if ks == 0 else vr(M + 4 * rt, 4)) for ks in range(4)]
    def Dq(rt):
        b = M + 4 * rt
        return ["v_max3_f32 v%d, v%d, v%d, v%d" % (b, b, b + 1, b + 2), "v_max_f32 v%d, v%d, v%d" % (b, b, b + 3)] + ["v_sub_f32 v%d, 0, v%d" % (b + i, b) for i in (1, 2, 3, 0)]
    sync = ["s_waitcnt lgkmcnt(0)", "s_barrier"]
    kvs = [[ptm0(reg, sl), "s_nop 0"] + ptld(reg) + (incK if reg == 3 else []) for sl in (2, 3) for reg in PORD]
    if O.t3late: kvs = [kvs[0], [], kvs[1], [], kvs[2], [], kvs[3], []]
    pfs = ([cp2[-1]] if O.pf_code else []) + ([wopf] if O.wo_at == 29 else [])
    t1 = rdW(30) + [rdX1(15, 0, 0)] + rdW(31) + [rdX1(15, 1, 0)] + [rdX1(15, kk, rt) for rt in range(1, 7) for kk in range(2)]
    spread([m_ for rt in range(5) for m_ in A(rt, 29)], t1 + pfs + sync, 0, 19)
    stamp(1)
    for i in range(8):
        mf = (A(i, 30) + A(i, 31) if i < 7 else qk(0, 0)) + (A(5 + i, 29) if i < 2 else PP(i - 2))
        side = []
        if i == 0: mf += [zero16(vr(OK, 16)), zero16(vr(OK + 16, 16))]
        if i == 1: side += ["s_waitcnt vmcnt(%d)" % (2 + len(pfs)), "s_barrier"] + ["ds_read_b128 %s, v%d offset:%d" % (ar(aK0 + 4 * ks, 4), vK0, ks * 256) for ks in range(4)]
        if i >= 2: side += sync + Cq(i - 2)
        if i in (3, 4): side += [rdK(j, 0) for j in range(4 * (i - 3), 4 * (i - 2))]
        if i >= 1: side += Bq(i - 1)
        if i >= 3: side += Dq(i - 3)
        if i == 7: side += ["v_mov_b32 v%d, 0" % j for j in range(L, L + 4)] + ["s_mov_b32 s%d, 3" % sCnt]
        side += kvs[i]
        spread(mf, side)
    if O.ts: a.e(["s_mov_b32 s81, 0", "v_mov_b32 v252, 0"])
    a.e(["s_cmp_lg_u32 s%d, 0" % sPass, "s_cbranch_scc1 L_maxpass"])
    stamp(1)
    NA = 0

    def dma3(j): return "buffer_load_dwordx4 v%d, s[%d:%d], s%d offen offset:%d lds" % (vD + j, sWs, sWs + 3, sWo, j * 1024)
    def setWo(u): return "s_xor_b32 s%d, s%d, 0x%x" % (sWo, sOf, u * 32768)
    def wset(n): return (0, 32, 64, 224)[n & 3]
    def rd3(k, off, dts=range(8)):
        return ["ds_read_b64_tr_b16 %s, v%d offset:%d" % (ar(wset(k) + 4 * dt + 2 * sec, 2), vR + (dt & 1), off + (dt >> 1) * 256 + sec * 4096) for dt in dts for sec in range(2)]
    def xw(rt): return ["ds_write_b128 v%d, %s offset:%d" % (vTa, ar(aO + 16 * rt + 4 * i, 4), rt * 4096 + i * 1024) for i in range(4)]
    vm = VM(["t13"] * 8 + (["t14"] * 8 if not O.lag else []))

    def body(js, last=False, first=False, quiet=False):
        pend = []; cost = 0
        for r in range(7):
            u = 7 * js + r
            fin = last and js == 3
            mf = ([] if (fin and r == 6) else qk((r + 1) % 7, (u + 1) & 1)) + pv((r + 6) % 7, (u + 1) & 1)
            mem = [[] for _ in range(16)]; val = [[] for _ in range(16)]
            pk = O.pack and not fin and not (first and r == 0)
            Eb = E2 if (pk and r & 1) else E
            for e in range(8):
                val[2 * e].append("v_exp_f32 v%d, v%d" % (Eb + e, S + 8 * (u & 1) + e))
                if not pk: val[2 * e + 1].append("v_add_f32 v%d, v%d, v%d" % (L + r, L + r, Eb + e))
                if e & 1: val[2 * e + 1].append("v_cvt_pk_bf16_f32 v%d, v%d, v%d" % (P + 4 * (u & 1) + (e >> 1), Eb + e - 1, Eb + e))
            ps = (js + 3 - O.lag) & 3
            kvB = ((not last) or js <= O.lag) and (O.t3late or not first) and not quiet
            if first and r == 0:
                mf = mf[:8] + PP(6) + [zero16(ar(192, 16)), zero16(ar(208, 16))]
                mem[0] += sync + Cq(6)[:2]; mem[1] += Cq(6)[2:]; mem[7].append("s_waitcnt lgkmcnt(0)")
                for i_, x in enumerate(Dq(5)): val[3 + 2 * i_].append(x)
            if first and r == 1:
                for i_, x in enumerate(Dq(6) + ["v_mov_b32 v%d, 0" % j for j in range(L + 4, L + 7)]): val[1 + 4 * (i_ % 4)].append(x) if i_ >= 6 else val[1 + 2 * i_].append(x)
            if first and r == 2: mem[9].append(zero16(ar(176, 16)))
            vrd = ["ds_read_b64_tr_b16 %s, v%d offset:%d" % (vr(V + 4 * i + 2 * sec, 2), vVr + (i & 1), js * 8192 + (i >> 1) * 256 + sec * 4096) for i in range(8) for sec in range(2)]
            if O.pack and not fin and not first:
                if r == 0: mem[9] += vrd[0:3]; mem[11] += vrd[3:5]; mem[13] += vrd[5:8]; mem[15] += vrd[8:10]
                if r == 1:
                    mem[1] += vrd[10:12]; mem[3] += vrd[12:14]; mem[5] += vrd[14:16]
                    mem[7].append("s_waitcnt lgkmcnt(4)"); mem[13].append("s_waitcnt lgkmcnt(0)")
            else:
                if r == 0:
                    for i in range(16): mem[8 + i // 2].append(vrd[i])
                if r == 1: mem[5].append("s_waitcnt lgkmcnt(%d)" % (5 if fin else 0))
            if kvB:
                pts = [tuple(int(y) for y in x.split(".")) for x in O.pts.split(",")]
                for n_, (pr_, pg_) in enumerate(pts):
                    if r == pr_: mem[pg_] += ptld(PORD[n_])
                    if n_ == 0:
                        if r == 0: mem[1].append(ptm0(PORD[0], ps))
                    else:
                        qr_, qg_ = pts[n_ - 1]
                        qg_ += 2 if (pr_, pg_) != (qr_, qg_ + 2) else 0
                        if r == qr_ + qg_ // 16: mem[qg_ % 16].append(ptm0(PORD[n_], ps))
                if r == 6: mem[9].append(incK[0]); mem[13].append(incK[1])
            if not last:
                if r == 4:
                    mem[13].append("s_barrier")
                    if not first: mem[9].append("s_waitcnt vmcnt(%d)" % (16 - 8 * O.lag))
                if r == 6 and js == 3:
                    mem[5].append("s_sub_u32 s%d, s%d, 1" % (sCnt, sCnt)); mem[15].append("s_cmp_lg_u32 s%d, 0" % sCnt)
            else:
                sched = [{(0, 6): 0, (1, 1): 1, (1, 2): 6, (1, 3): 7, (1, 6): 2, (2, 1): 3, (2, 5): 4, (2, 6): 5},
                         {(0, 6): 0, (1, 1): 6, (1, 3): 1, (1, 5): 7, (2, 0): 2, (2, 2): 3, (2, 5): 4, (3, 0): 5},
                         {(1, 1): 0, (1, 3): 1, (1, 5): 2, (1, 6): 3, (2, 5): 4, (2, 6): 5, (3, 1): 6, (3, 2): 7},
                         {(0, 5): 0, (0, 6): 1, (1, 5): 2, (1, 6): 3, (2, 1): 6, (2, 2): 7, (2, 5): 4, (2, 6): 5}][O.tsched]
                if (js, r) in sched:
                    k = sched[(js, r)]
                    base, off = (sReg, k * 4096) if k < 6 else (sSp, (k - 6) * 4096)
                    g0 = (9, 11, 13, 15) if r == 5 else ((1, 3, 5, 7) if r == 0 else (1, 5, 9, 13))
                    mem[g0[0] - 1] += ["s_add_u32 m0, s%d, %d" % (base, off), setWo(k)]
                    for j in range(4): mem[g0[j]].append(("w%d" % k, dma3(j)))
                if r == 4:
                    if js < 3: mem[9].append(("wait", "t%d" % (13 + js)))
                    mem[13].append("s_barrier")
                if js == 0 and r == 5 and O.wl2:
                    val[9] += ["v_lshrrev_b32 v%d, 1, v%d" % (vT3, vL), "v_lshlrev_b32 v%d, 11, v%d" % (vT3, vT3)]
                    val[11] += ["v_and_b32 v%d, 1, v%d" % (vT, vL), "s_and_b32 s%d, s%d, 3" % (sT2, sRB)]
                    val[13] += ["v_lshl_add_u32 v%d, v%d, 7, v%d" % (vT3, vT, vT3), "s_lshl_b32 s%d, s%d, 17" % (sT2, sT2)]
                l2s = {(3, 2): 0, (3, 5): 1}
                if (js, r) in l2s and l2s[(js, r)] < O.wl2:
                    mem[1].append("s_add_u32 s%d, s%d, %d" % (sT, sT2, (8 + l2s[(js, r)]) * 65536))
                    mem[5].append(("pf", "buffer_load_dword v%d, v%d, s[%d:%d], s%d offen" % (vDum, vT3, sWs, sWs + 3, sT)))
                if js == 0 and r == 1 and O.wo_at == 99:
                    val[13] += ["s_lshl_b32 s%d, s2, 2" % sT, "s_add_u32 s%d, s%d, s%d" % (sT, sT, sWv), "s_lshl_b32 s%d, s%d, 13" % (sT, sT)]
                    val[15] += ["v_lshlrev_b32 v%d, 7, v%d" % (vT, vL), "v_add_u32 v%d, s%d, v%d" % (vT, sT, vT)]
                if js == 0 and r == 4 and O.wo_at == 99: mem[3].append(("pf", "global_load_dword v%d, v%d, s[%d:%d]" % (vDum, vT, pWo, pWo + 1)))
                if js == 2 and r == 3 and O.pf_code:
                    pf = codepf("L_epi", "L_end", vT)
                    for i_, x in enumerate(pf[:-1]): val[1 + 2 * i_].append(x)
                    mem[15].append(("pf", pf[-1]))
                if fin:
                    if r < 6:
                        if r % 2 == 0: mem[0] += [("wait", "w%d" % r), ("wait", "w%d" % (r + 1))]
                        for i_, x in enumerate(rd3(r >> 1, (r >> 1) * 8192, range(4 * (r & 1), 4 * (r & 1) + 4))): mem[i_].append(x)
                    else:
                        mem[8] += [("wait", "w6"), ("wait", "w7")]
                        for i_, x in enumerate(rd3(3, 0)): mem[8 + i_ // 2].append(x)
                    if r == 5:
                        for i in range(2): val[9 + 4 * i].append("v_add_u32 v%d, s%d, v%d" % (vR + i, sD1, vR + i))
                    if r >= 2:
                        for i_, x in enumerate(xw(r - 2)): mem[9 + 2 * i_].append(x)
            if r == 5 and not fin:
                for i in range(8): mem[(1, 1, 3, 5, 5, 7, 9, 9)[i] if pk else i].insert(0 if False else len(mem[0]) * 0 + 99, rdK(i, (js + 1) & 3))
                mem[15 if pk else 13].insert(0, "s_waitcnt lgkmcnt(0)")
                if O.ts: mem[11] += TS_A; mem[15] += TS_B
            if fin and r == 6:
                mem = [mem[8 + i] for i in range(8)]
                val = [val[2 * i] + val[2 * i + 1] for i in range(8)]
                val = [[v_[0], "s_nop 0"] + v_[1:] for v_ in val]
                a.e("s_nop 1")
            if first and r == 0:
                mem = mem[:12] + [mem[12] + mem[13], mem[14] + mem[15]]
                val = val[:12] + [val[12] + ["s_nop 0"] + val[13], val[14] + ["s_nop 0"] + val[15]]
            if last and js == 0 and r == 4:
                val[1] += ["v_add_u32 v%d, s%d, v%d" % (vTa, sReg, vL16)]; val[5] += ["v_add_u32 v%d, s%d, v%d" % (vTb, sRing, vL16)]
            if pk:
                old_ = len(pend)
                for g in range(1, 16, 2):
                    pend.append("v_add_f32 v%d, v%d, v%d" % (L + r, L + r, Eb + g // 2))
                    n_ = max(0, 2 - len(mem[g]) - len(val[g]))
                    if g == 15: n_ = max(n_, len(pend) if r == 6 else old_)
                    n_ = min(n_, len(pend))
                    val[g] += pend[:n_]; del pend[:n_]; old_ = max(0, old_ - n_)
            for g_, v_ in zip(mem, val): cost += max(16, 8 + sum(8 if (isinstance(x, str) and "v_exp" in x) else 4 for x in g_ + v_))
            if r == 6 and O.verbose: print("body", js, last, first, "model cycles", cost, file=sys.stderr)
            for m_, g_, v_ in zip(mf, mem, val):
                a.e(m_)
                for x in g_:
                    if isinstance(x, tuple):
                        if x[0] == "wait": a.e("s_waitcnt vmcnt(%d)" % vm.n(x[1]))
                        else: vm.issue(x[0]); a.e(x[1])
                    else:
                        if last and x.startswith("buffer_load"): vm.issue("t%d" % (15 - O.lag + js))
                        a.e(x)
                a.e(v_)
    body(0, first=True)
    if O.lag: body(1, quiet=True)
    a.e("s_branch L_b1")
    a.raw(".p2align 5")
    a.lab("L_loop")
    for js in range(4):
        if js == 1 + O.lag: a.lab("L_b1")
        body(js)
    a.e("s_cbranch_scc1 L_loop")
    a.lab("L_last")
    for js in range(4): body(js, True)
    stamp()

    a.lab("L_epi")
    misc = ["v_add_f32 v%d, v%d, v%d" % (vTc, L, L + 1)] + ["v_add_f32 v%d, v%d, v%d" % (vTc, vTc, L + i) for i in range(2, 7)]
    misc += ["s_mov_b32 s%d, 0x%x" % (sT, THR if not O.force_slow else 0), "s_lshl_b32 s%d, s%d, 2" % (sG, sWv),
             "v_cmp_ngt_f32 vcc, s%d, v%d" % (sT, vTc),
             "s_add_u32 s%d, s%d, 30720" % (sG, sG), "v_mov_b32 v%d, s%d" % (vT, sG),
             "s_cmp_lg_u64 vcc, 0", "s_cselect_b32 s%d, 1, 0" % sT, "v_mov_b32 v%d, 30720" % vT2, "v_mov_b32 v%d, s%d" % (L + 7, sT)]
    a.e("s_nop 1")
    weave(a, pv(6, 1), [misc[2 * i:2 * i + 2] for i in range(7)] + [misc[14:]])
    xl = xlane("v_add_f32", [L + i for i in range(7)], [E + i for i in range(7)])
    w56 = xw(5) + xw(6)
    for i in range(8):
        a.e(w56[i]); a.e(xl[5 * i:5 * i + 5] if i < 7 else xl[35:])
    a.e(["v_add_u32 v%d, s%d, v%d" % (vR + i, sD2, vR + i) for i in range(2)])
    a.e(["ds_write_b128 v%d, %s offset:28672" % (vTa, vr(L, 4)), "ds_write_b128 v%d, %s offset:29696" % (vTa, vr(L + 4, 4)),
         "ds_write_b32 v%d, v%d" % (vT, L + 7), "s_waitcnt lgkmcnt(0)", "s_barrier"])
    stamp(2)
    PL = 208
    a.e(["ds_read_b128 %s, v%d" % (vr(216, 4), vT2), "ds_read_b128 %s, v%d offset:28672" % (vr(PL, 4), vTb), "ds_read_b128 %s, v%d offset:29696" % (vr(PL + 4, 4), vTb)])
    def rdP(rt): return ["ds_read_b128 %s, v%d offset:%d" % (vr(128 + 16 * (rt % 5) + 4 * i, 4), vTb, (rt * 4 + i) * 1024) for i in range(4)]
    for rt in range(3): a.e(rdP(rt))
    a.e(["s_waitcnt lgkmcnt(12)", "v_or3_b32 v216, v216, v217, v218", "v_or_b32 v216, v216, v219"])
    for i in range(7): a.e("v_add_f32 v%d, v%d, v%d" % (L + i, L + i, PL + i))
    a.e(["v_readfirstlane_b32 s%d, v216" % sT])
    for i in range(7): a.e("v_rcp_f32 v%d, v%d" % (L + i, L + i))
    a.e(["s_andn2_b32 s%d, s%d, s%d" % (sT, sT, sPass), "s_cbranch_scc1 L_slow"])
    def wload(k, j):
        if j == 0: a.e(["s_add_u32 m0, s%d, %d" % (sRing, (k & 7) * 4096), setWo(k)])
        vm.issue("w%d" % k); a.e(dma3(j))
    wi = 0
    for rt in range(7):
        if rt + 3 < 7: a.e(rdP(rt + 3))
        a.e("s_waitcnt lgkmcnt(%d)" % (4 * min(3, 6 - rt)))
        pb = 128 + 16 * (rt % 5); ob = OK + 16 * rt; lp = L + rt
        def wnext(k_):
            nonlocal wi
            if k_ < O.w_n and wi < 28 and wi // 4 <= rt: wload(8 + wi // 4, wi % 4); wi += 1
        wnext(0)
        for i in range(8): a.e("v_pk_add_f32 %s, %s, %s" % (vr(ob + 2 * i, 2), vr(ob + 2 * i, 2), vr(pb + 2 * i, 2)))
        wnext(2)
        for i in range(8):
            if lp % 2 == 0: a.e("v_pk_mul_f32 %s, %s, %s op_sel_hi:[1,0]" % (vr(ob + 2 * i, 2), vr(ob + 2 * i, 2), vr(lp, 2)))
            else: a.e("v_pk_mul_f32 %s, %s, %s op_sel:[0,1]" % (vr(ob + 2 * i, 2), vr(ob + 2 * i, 2), vr(lp - 1, 2)))
        wnext(1)
        for i in range(8): a.e("v_cvt_pk_bf16_f32 v%d, v%d, v%d" % (ob + i, ob + 2 * i, ob + 2 * i + 1))
        wnext(3)
        for p in range(2):
            if O.nost and not (rt == 6 and p == 1): continue
            vm.issue("st"); a.e("buffer_store_dwordx4 %s, v%d, s[%d:%d], s%d offen offset:%d %s" % (vr(ob + 4 * p, 4), vL16, sO, sO + 3, sRt + rt, p * 1024, O.st_flags))
    stamp(2)
    ACC3, OF = 16, 128
    vS, vOo, vOut, vPs = 6, 248, 249, 250
    def acc3(rt, sl):
        hb, wv = sl >> 2, sl & 3
        return vr(ACC3 + 16 * rt + 4 * (2 * hb + wv), 4) if wv < 2 else ar(112 + 16 * rt + 4 * (2 * hb + wv - 2), 4)
    for _ in range(min(O.w_late, 28 - wi)): wload(8 + wi // 4, wi % 4); wi += 1
    a.e(flagp(vT, vT2) + ["v_add_u32 v%d, 1, v%d" % (vFo, vFo)])
    a.e(["s_lshl_b32 s%d, s%d, 5" % (sT, sB), "s_add_u32 s%d, s%d, s%d" % (sT, sT, sH), "v_mov_b32 v%d, s%d" % (vT2, sT), "v_mov_b32 v%d, 1" % vT3,
         "v_xor_b32 v243, 0x80, v%d" % vT2])
    for i in range(7): a.e(zero16(ar(112 + 16 * i, 16)))
    a.e(flagc(241) + ["s_lshr_b32 s%d, s%d, 6" % (sT, sOf), "v_add_u32 v%d, s%d, v%d" % (vOo, sT, vL16),
         "s_lshr_b32 s%d, s%d, 1" % (sT, sRB), "s_lshl_b32 s%d, s%d, 5" % (sT, sT), "s_lshl_b32 s%d, s%d, 2" % (sG, sPm), "s_add_u32 s%d, s%d, s%d" % (sT, sT, sG),
         "v_mov_b32 v242, s%d" % sT, "s_mov_b32 s%d, 0x40000" % sCnt])
    for i in range(7): a.e(zero16(vr(ACC3 + 16 * i, 16)))
    a.e(["s_waitcnt vmcnt(%d)" % vm.n("st"), "s_barrier"])
    stamp(2)
    if O.stamps: a.e("s_memrealtime s[6:7]")
    a.e(["s_cmp_lg_u32 s%d, 0" % sWv, "s_cbranch_scc1 L_noflag",
         "s_mov_b64 exec, 0xfffff", "global_store_dword v%d, v%d, s[%d:%d] sc1" % (vT, vFo, pWs, pWs + 1),
         "s_mov_b64 exec, 1", "global_store_byte v%d, v%d, s[%d:%d] sc1" % (vT2, vT3, pDbg, pDbg + 1), "s_mov_b64 exec, -1"])
    a.lab("L_noflag")
    stamp(2)
    def wpieces(lo, hi):
        out = []
        for p_ in range(lo, hi):
            u, j = 8 + p_ // 4, p_ % 4
            out.append((["s_add_u32 m0, s%d, %d" % (sRing, (u & 7) * 4096), setWo(u)] if j == 0 else [], ("w%d" % u, dma3(j))))
        return out
    if O.dynw:
        a.e(["s_mov_b64 exec, 31", "global_load_dword v%d, v241, s[%d:%d] sc1" % (vT, pWs, pWs + 1), "s_waitcnt vmcnt(0)", "v_cmp_eq_u32 vcc, v%d, v%d" % (vT, vFc), "s_nop 0", "s_cbranch_vccz L_go", "s_mov_b64 exec, -1"])
        for pre, op in wpieces(wi, 32): a.e(pre + [op[1]])
    a.e("s_mov_b64 exec, 31")
    a.lab("L_poll")
    a.e(["global_load_dword v%d, v241, s[%d:%d] sc1" % (vT, pWs, pWs + 1), "s_sub_u32 s%d, s%d, 1" % (sCnt, sCnt), "s_cbranch_scc1 L_go",
         "s_waitcnt vmcnt(0)", "v_cmp_eq_u32 s[%d:%d], v%d, v%d" % (sC, sC + 1, vT, vFc), "s_nop 0", "s_cmp_eq_u64 s[%d:%d], 0" % (sC, sC + 1), "s_cbranch_scc1 L_go",
         "s_and_b32 s%d, s%d, 15" % (sT, sCnt), "s_cbranch_scc1 L_poll",
         "global_load_dword v%d, v242, s[%d:%d] sc1" % (vT, pDbg, pDbg + 1), "global_load_ubyte v%d, v243, s[%d:%d] sc1" % (vT2, pDbg, pDbg + 1), "s_waitcnt vmcnt(0)",
         "v_add_u32 v%d, v%d, v%d" % (vT, vT, vT2), "s_nop 0", "v_readfirstlane_b32 s%d, v%d" % (sT, vT),
         "s_nop 0", "s_cmp_eq_u32 s%d, 0x01010102" % sT, "s_cbranch_scc0 L_poll"])
    a.lab("L_go")
    a.e("s_mov_b64 exec, -1")
    if O.wggo: a.e("s_barrier")
    stamp()
    if O.stamps: a.e(["s_memrealtime s[4:5]", "s_mov_b32 s10, s%d" % sCnt])
    def ldO(rt, k): return "buffer_load_dwordx4 %s, v%d, s[%d:%d], s%d offen sc1" % (vr(OF + 28 * (k & 3) + 4 * rt, 4), vOo, sOs, sOs + 3, sRt + rt)
    def incO(k): return "v_xor_b32 v%d, 0x%x, v%d" % (vOo, (k ^ (k + 1)) << 10, vOo)
    for k in range(2):
        for rt in range(7): vm.issue("o%d" % k); a.e(ldO(rt, k))
        a.e(incO(k))
    a.e(["v_add_u32 v%d, s%d, v%d" % (vS, sRing, vL16)])
    for i in range(1, 4): a.e(["v_xor_b32 v%d, 0x%x, v%d" % (vS + i, i << 15, vS)])
    a.e(["v_and_b32 v%d, 15, v%d" % (vT, vL), "v_lshrrev_b32 v%d, 4, v%d" % (vT2, vL), "v_lshlrev_b32 v%d, 3, v%d" % (vT2, vT2),
         "v_lshl_add_u32 v%d, v%d, 11, v%d" % (vT, vT, vT2),
         "s_lshl_b32 s%d, s%d, 8" % (sT, sCT), "s_lshl_b32 s%d, s%d, 5" % (sG, sPm), "s_add_u32 s%d, s%d, s%d" % (sT, sT, sG),
         "v_add_u32 v%d, s%d, v%d" % (vOut, sT, vT)] + boxaddr(vPs) + ["v_xor_b32 v%d, 0x8000, v%d" % (vPs + 1, vPs)])
    a.e(["s_waitcnt vmcnt(%d)" % vm.n("o0")])
    def redw(rt, hb, wv): return "ds_write_b128 v%d, %s offset:%d" % (vS, acc3(rt, 4 * hb + wv), (wv - 1) * 7168 + rt * 1024)
    def redr(rt, wv, d): return "ds_read_b128 %s, v%d offset:%d" % (vr(d, 4), vS + wv, (wv - 1) * 7168 + rt * 1024)
    def mf3(rt, sl, k): return mfma(acc3(rt, sl), ar(wset(k) + 4 * sl, 4), vr(OF + 28 * (k & 3) + 4 * rt, 4), acc3(rt, sl))
    def emit(mf, gaps):
        for m_, g_ in zip(mf, gaps):
            a.e(m_)
            for x in g_:
                if isinstance(x, tuple):
                    if x[0] == "wait": a.e("s_waitcnt vmcnt(%d)%s" % (min(vm.n(t_) for t_ in x[1]), " lgkmcnt(0)" if x[2] else ""))
                    elif O.dynw and x[0][0] == "w" and int(x[0][1:]) < 16:
                        nsk[0] += 1
                        vm.issue(x[0], True); a.e(["s_cbranch_vccnz L_sk%d" % nsk[0], x[1]]); a.lab("L_sk%d" % nsk[0])
                    else: vm.issue(x[0]); a.e(x[1])
                else: a.e(x)
    nsk = [0]
    left = 32 - wi
    for k in range(13):
        mf = [mf3(rt, sl, k) for rt in range(7) for sl in range(8)]
        gaps = [[] for _ in range(56)]
        if k >= 2:
            for g, x in enumerate(rd3(k + 2, ((k + 2) & 3) * 8192)): gaps[g].append(x)
        if k == 12:
            for g, x in enumerate(rd3(15, 3 * 8192)): gaps[16 + g].append(x)
        if k < 3: wl = wpieces(wi + (left * k) // 3, wi + (left * (k + 1)) // 3)
        elif k <= 10: wl = wpieces(8 * (k + 1), 8 * (k + 2))
        else: wl = []
        ol = [([], ("o%d" % kk_, ldO(rt, kk_))) + ((incO(kk_),) if rt == 6 else ()) for kk_ in ([2, 3] if k == 0 else [k + 3]) for rt in range(7)]
        ld = sorted([((i_ + 0.5) / len(wl), x) for i_, x in enumerate(wl)] + [((i_ + 0.25) / len(ol), x) for i_, x in enumerate(ol)], key=lambda t_: t_[0])
        for i_, (_, x) in enumerate(ld):
            g = 1 + (i_ * 53) // len(ld)
            gaps[g - 1] += x[0]; gaps[g].insert(0, x[1])
            if len(x) > 2: gaps[g].append(x[2])
        need_ = ["o%d" % (k + 1)] + (["w%d" % (2 * (k + 3) + 1)] if 1 <= k <= 11 else []) + (["w31"] if k == 11 else [])
        gaps[55].append(("wait", need_, k >= 2))
        emit(mf, gaps)
    mf = [mf3(rt, 4 * hb + wv, k) for hb in (1, 0) for k in (13, 14, 15) for rt in range(7) for wv in range(4)]
    gaps = [[] for _ in range(168)]
    gaps[27].append(("wait", ["o14"], False)); gaps[55].append(("wait", ["o15"], False))
    g = 0
    for rt in range(7):
        for wv in range(1, 4):
            g = max(g + 2, 56 + 4 * rt + wv + 9); gaps[g].append(redw(rt, 1, wv))
    g += 3; gaps[g].append("s_waitcnt lgkmcnt(0)"); gaps[g + 1].append("s_barrier"); g += 2
    assert g >= 84 + 28 - 2, g
    g = max(g, 84 + 28)
    def tmp1(rt, wv): return (ACC3 + 16 * rt + 12, OF + 4 * rt, OF + 28 + 4 * rt)[wv - 1]
    for rt in range(7):
        for wv in range(1, 4): gaps[g + (3 * rt + wv - 1) // 2].append(redr(rt, wv, tmp1(rt, wv)))
    g += 11
    gaps[g + 2].append("s_waitcnt lgkmcnt(0)"); gaps[g + 3].append("s_barrier")
    g += 4
    ads = []
    for rt in range(7):
        b = ACC3 + 16 * rt + 8
        ads += ["v_add_f32 v%d, v%d, v%d" % (b + i, b + i, tmp1(rt, 1) + i) for i in range(4)]
        ads += ["v_add_f32 v%d, v%d, v%d" % (tmp1(rt, 2) + i, tmp1(rt, 2) + i, tmp1(rt, 3) + i) for i in range(4)]
        ads += ["v_add_f32 v%d, v%d, v%d" % (b + i, b + i, tmp1(rt, 2) + i) for i in range(4)]
        ads += [("ps", "global_store_dwordx4 v%d, %s, s[%d:%d] offset:%d sc1" % (vPs + 1, vr(b, 4), pWs, pWs + 1, rt * 1024 - 3072))]
    n_ = 0
    for x in ads:
        if isinstance(x, tuple): g += 1; n_ = 0; gaps[g].insert(0, x); continue
        gaps[g].append(x); n_ += 1
        if n_ == 3: g += 1; n_ = 0
    assert g < 168, g
    lastw = []
    for rt in range(7):
        for wv in range(1, 4):
            g2 = 140 + 4 * rt + wv + 8
            if g2 < 168: gaps[g2].insert(0, redw(rt, 0, wv))
            else: lastw.append(redw(rt, 0, wv))
    emit(mf, gaps)
    stamp()
    PB = OF + 84
    ldP = ["global_load_dwordx4 %s, v%d, s[%d:%d] offset:%d sc1" % (vr(PB + 4 * rt, 4), vPs, pWs, pWs + 1, rt * 1024 - 3072) for rt in range(7)]
    a.e(["s_nop 1"] + lastw[:3] + ["s_nop 1"] + lastw[3:] + ["v_add_u32 v%d, 1, v%d" % (vT, vFc), "s_mov_b32 s%d, 0x40000" % sCnt, "s_waitcnt vmcnt(0)", "s_mov_b64 exec, 64",
         "global_store_dword v241, v%d, s[%d:%d] sc1" % (vT, pWs, pWs + 1), "s_mov_b64 exec, -1", "s_waitcnt lgkmcnt(0)", "s_barrier"])
    for rt in range(7):
        for wv in range(1, 4): a.e(redr(rt, wv, OF + 12 * rt + 4 * (wv - 1)))
    for rt in range(7):
        a.e("s_waitcnt lgkmcnt(%d)" % min(15, 3 * (6 - rt)))
        b = ACC3 + 16 * rt; t = OF + 12 * rt
        for h in range(2):
            a.e("v_pk_add_f32 %s, %s, %s" % (vr(b + 2 * h, 2), vr(b + 2 * h, 2), vr(t + 2 * h, 2)))
            a.e("v_pk_add_f32 %s, %s, %s" % (vr(t + 4 + 2 * h, 2), vr(t + 4 + 2 * h, 2), vr(t + 8 + 2 * h, 2)))
        for h in range(2): a.e("v_pk_add_f32 %s, %s, %s" % (vr(b + 2 * h, 2), vr(b + 2 * h, 2), vr(t + 4 + 2 * h, 2)))
    a.e("s_mov_b64 exec, 32")
    a.lab("L_poll2")
    a.e(["global_load_dword v%d, v241, s[%d:%d] sc1" % (vT, pWs, pWs + 1), "s_sub_u32 s%d, s%d, 1" % (sCnt, sCnt), "s_cbranch_scc1 L_go2",
         "s_waitcnt vmcnt(0)", "v_cmp_eq_u32 vcc, v%d, v%d" % (vT, vFc), "s_nop 0", "s_cbranch_vccnz L_poll2"])
    a.lab("L_go2")
    a.e(["s_mov_b64 exec, -1"] + ldP)
    for rt in range(7):
        b = ACC3 + 16 * rt; t = PB + 4 * rt
        a.e(["s_waitcnt vmcnt(6)"] + ["v_pk_add_f32 %s, %s, %s" % (vr(b + 2 * h, 2), vr(b + 2 * h, 2), vr(t + 2 * h, 2)) for h in range(2)])
        a.e(["v_cvt_pk_bf16_f32 v%d, v%d, v%d" % (b, b, b + 1), "v_cvt_pk_bf16_f32 v%d, v%d, v%d" % (b + 1, b + 2, b + 3),
             "s_mov_b32 s%d, %d" % (sT, rt * 32768),
             "buffer_store_dwordx2 %s, v%d, s[%d:%d], s%d offen %s" % (vr(b, 2), vOut, sOut, sOut + 3, sT, O.out_flags)])
    if O.stamps:
        a.e(["s_waitcnt vmcnt(0)"])
        if not O.ts: stamp()
        a.e(["s_memrealtime s[78:79]", "s_waitcnt lgkmcnt(0)", "s_lshl_b32 s%d, s2, 2" % sT, "s_add_u32 s%d, s%d, s%d" % (sT, sT, sWv), "s_lshl_b32 s%d, s%d, 6" % (sT, sT),
             "s_add_u32 s%d, s%d, 0x%x" % (sT, sT, STAMP_OFF),
             "s_add_u32 s%d, s%d, s%d" % (sO, pWs, sT), "s_addc_u32 s%d, s%d, 0" % (sO + 1, pWs + 1), "s_mov_b32 s%d, 64" % (sO + 2), "v_mov_b32 v%d, 0" % vT])
        for i in range(nst[0]):
            a.e(["s_sub_u32 s%d, s%d, s%d" % (sT, sST + 2 * i, sST), "v_mov_b32 v%d, s%d" % (vT2, sT),
                 "buffer_store_dword v%d, v%d, s[%d:%d], 0 offen offset:%d" % (vT2, vT, sO, sO + 3, 4 * i)])
        for i, r_ in enumerate((10, 6, 4, sST, 78)):
            a.e(["v_mov_b32 v%d, s%d" % (vT2, r_), "buffer_store_dword v%d, v%d, s[%d:%d], 0 offen offset:%d" % (vT2, vT, sO, sO + 3, 44 + 4 * i)])
    if O.ts:
        a.e(["s_lshl_b32 s%d, s2, 9" % sT, "s_add_u32 s%d, s%d, 0x%x" % (sT, sT, STAMP_OFF + 0x200000),
             "s_add_u32 s%d, s%d, s%d" % (sO, pWs, sT), "s_addc_u32 s%d, s%d, 0" % (sO + 1, pWs + 1), "s_mov_b32 s%d, 512" % (sO + 2),
             "v_lshlrev_b32 v%d, 2, v%d" % (vT, vL), "buffer_store_dword v252, v%d, s[%d:%d], 0 offen" % (vT, sO, sO + 3)])
    a.lab("L_end")
    a.e("s_endpgm")

    if O.wo_at >= 100:
        a.lab("L_wopf")
        a.e(["s_lshl_b32 s%d, s2, 2" % sT, "s_add_u32 s%d, s%d, s%d" % (sT, sT, sWv), "s_lshl_b32 s%d, s%d, 13" % (sT, sT),
             "v_lshlrev_b32 v%d, 7, v%d" % (vT, vL), "v_add_u32 v%d, s%d, v%d" % (vT, sT, vT),
             "global_load_dword v%d, v%d, s[%d:%d]" % (vDum, vT, pWo, pWo + 1), "s_branch L_wopf_ret"])
    a.lab("L_slow")
    a.e(["s_waitcnt vmcnt(0) lgkmcnt(0)", "s_barrier", "s_mov_b32 s%d, 1" % sPass] + lane_setup() + ["s_branch L_restart"])
    a.lab("L_maxpass")
    a.e(["s_waitcnt vmcnt(0) lgkmcnt(0)", "s_barrier"] + Cq(6) + ["s_mov_b32 s%d, 16" % sCnt] + setK(0))
    a.e([zero16(ar(176 + 16 * i, 16)) for i in range(3)] + ["s_nop 7"])
    for rt in range(7): a.e("v_mov_b32 v%d, 0xff800000" % (M + 4 * rt))
    a.lab("L_slow_loop")
    a.e(kvtile(0))
    a.e(["s_waitcnt vmcnt(0)", "s_barrier"])
    a.e([rdK(i, 0) for i in range(8)])
    a.e(["s_waitcnt lgkmcnt(0)", "s_barrier"])
    for rt in range(7):
        for i in range(8):
            t, ks = i & 1, i >> 1
            d = vr(S + 4 * t, 4)
            a.e(mfma(d, ar(aK + 16 * t + 4 * ks, 4), ar(aQ + 16 * rt + 4 * ks, 4), "0" if ks == 0 else d))
        a.e("s_nop 7")
        for i in range(4): a.e("v_max3_f32 v%d, v%d, v%d, v%d" % (M + 4 * rt, M + 4 * rt, S + 2 * i, S + 2 * i + 1))
    a.e(["s_sub_u32 s%d, s%d, 1" % (sCnt, sCnt), "s_cmp_lg_u32 s%d, 0" % sCnt, "s_cbranch_scc1 L_slow_loop"])
    a.e(xlane("v_max_f32", [M + 4 * rt for rt in range(7)], [M + 4 * rt + 1 for rt in range(7)]))
    a.e(["v_add_u32 v%d, s%d, v%d" % (vTc, sSp, vL16), "v_xor_b32 v%d, 16384, v%d" % (vT3, vTc)])
    for rt in range(7): a.e("ds_write_b32 v%d, v%d offset:%d" % (vTc, M + 4 * rt, rt * 1024))
    a.e(["s_waitcnt lgkmcnt(0)", "s_barrier"])
    for rt in range(7): a.e("ds_read_b32 v%d, v%d offset:%d" % (M + 4 * rt + 1, vT3, rt * 1024))
    a.e(setK(0))
    for tl in range(3 - O.lag): a.e(kvtile(tl))
    a.e("s_waitcnt lgkmcnt(0)")
    for rt in range(7): a.e("v_max_f32 v%d, v%d, v%d" % (M + 4 * rt, M + 4 * rt, M + 4 * rt + 1))
    a.e(["s_waitcnt vmcnt(%d)" % (8 - 8 * O.lag), "s_barrier"])
    a.e([rdK(i, 0) for i in range(8)])
    a.e([zero16(vr(V, 16)), zero16(vr(V + 16, 16))])
    a.e(["v_sub_f32 v%d, 0, v%d" % (M + 4 * rt + i, M + 4 * rt) for rt in range(7) for i in (1, 2, 3, 0)])
    a.e(["v_mov_b32 v%d, 0" % i for i in range(L, L + 7)] + ["v_mov_b32 v%d, 0" % i for i in range(P + 4, P + 8)])
    a.e(["s_mov_b32 s%d, 3" % sCnt, "s_waitcnt lgkmcnt(0)"] + qk(0, 0) + ["s_nop 7", "s_branch L_loop"])

def build():
    ref = open("cdna_kernels/%s.s.ref" % NAME).read()
    hdr = ref.split("; Override launch")[0]
    a = Asm()
    k = NAME + "_kernel"
    a.raw(".amdgcn_target \"amdgcn-amd-amdhsa--gfx950\"\n.text")
    a.raw(".globl %s\n.p2align 8\n.type %s,@function" % (k, k))
    kernel(a)
    for e in check(a.L): print(e, file=sys.stderr)
    t = hdr + "; @launch grid=(256,1,1) block=(256,1,1) lds=163840\n" + a.text()
    t += """.section .rodata,"a"
.p2align 6
.amdhsa_kernel %s
  .amdhsa_next_free_vgpr 512
  .amdhsa_next_free_sgpr 102
  .amdhsa_accum_offset 256
  .amdhsa_group_segment_fixed_size 0
  .amdhsa_kernarg_size 64
  .amdhsa_user_sgpr_count 2
  .amdhsa_user_sgpr_kernarg_segment_ptr 1
  .amdhsa_system_sgpr_workgroup_id_x 1
.end_amdhsa_kernel
""" % k
    return t

if __name__ == "__main__":
    out = sys.argv[1] if len(sys.argv) > 1 else "cdna_kernels/%s.s" % NAME
    for kv in sys.argv[2:]:
        k, v = kv.split("=")
        cur = getattr(O, k)
        setattr(O, k, (v == "1") if isinstance(cur, bool) else type(cur)(v))
    open(out, "w").write(build())
```

```python
import sys, math, struct
from asmlib import *

NAME = "standalone__mha_block_cached__near_ridge"
def f32(x): return struct.unpack("<I", struct.pack("<f", x))[0]
CSCALE = f32(128 ** -0.5 * math.log2(math.e))
THR = f32(2.0 ** 30)

class Opt:
    stamps = False
    ts = False
    kv_nt = True
    nxe = 5
    p1_span = 26
    force_slow = False
    pf_xw = True
    pf_wo = True
    pf_code = True
    w_n = 0
    w_late = 8
    wl2 = 0
    out_flags = ""
    pfl = 0
    burst = 4
    ws1 = 12
    dbg3 = 0
    f2gap = 156
    wo2 = "0.3,2.2"
    lag = 0
    ilv = True
    pts = "2.1,2.5,3.5,3.9"
    pack = True
    verbose = False
    x1mask = 0
    rd_first = False
    wqc = False
    tb4 = False
    wo_r = 3
    bstep = 2
    t3late = False
    wo_at = 1
    dynw = True
    wggo = False
    olook = 3
    sset = 1
    nost = False
    st_flags = "sc1"
    x3mask = 7
    burn = 0
    tsched = 1
    pf_flags = ""
    wpf = 0
O = Opt()
STAMP_OFF = 0x8000000
FLAG_OFF = 0x1000000
PART_OFF = 0x2000000

def zero16(d): return "v_mfma_f32_32x32x16_bf16 %s, v[12:15], v[12:15], 0" % d

class VM:
    def __init__(self, init): self.ops = list(init)
    def issue(self, tag, opt=False): self.ops.append(tag + "?" if opt else tag)
    def n(self, tag):
        idx = max(i for i, t in enumerate(self.ops) if t.rstrip("?") == tag)
        if self.ops[idx].endswith("?"): return min(63, len(self.ops) - 1 - idx)
        return min(63, sum(1 for t in self.ops[idx + 1:] if not t.endswith("?")))

def kernel(a):
    KVF = " nt" if O.kv_nt else ""
    pX, pK, pV, pWq, pWo, pOut, pDbg, pWs = 4, 6, 8, 10, 12, 14, 16, 18
    sX, sW, sKV, sO, sOs, sWs, sOut = 20, 24, 28, 32, 36, 40, 44
    (sWv, sB, sH, sRH, sKH, sXoff, sWoff, sCnt, sMX, sMW, sReg, sRing, sSp, sG, sFlip, sK0, sPass, sT, sT2, sRB, sCT, sWo, sD1, sD2) = range(48, 72)
    sP = 3 if not O.ts else 81
    sOf = 1; sPm = 0
    sC = 72; sRt = 74; sPC = 82; sVV = 84; sST = 88; sK1 = sFlip
    KH, TS_ = (8192, 16384) if O.ilv else (131072, 8192)
    vL, vT, vT2, vT3, vL16 = 1, 2, 3, 4, 5
    vKV, vW = 6, 10
    OK, ACC = 16, 128
    M, S, E, P, V, L = 128, 156, 172, 180, 188, 220
    vTa, vTb, vTc = 237, 238, 236
    E2 = 228
    vX, vXr, vWr = 240, 247, 251
    vKr, vVr, vK0 = 240, 241, 243
    vD, vR = 244, 10
    vQw, vQr = 2, 3
    PK = 16
    vFo, vFc, vDum = 254, 255, 253
    vCp = 0
    aQ, aO, aK = 0, 112, 224
    aXF, aWF = 0, 224
    nst = [0]
    def stamp(m=3):
        if O.stamps and (m & O.sset):
            assert nst[0] < 7
            a.e("s_memrealtime s[%d:%d]" % (sST + 2 * nst[0], sST + 2 * nst[0] + 1)); nst[0] += 1
    def flagp(v, t):
        return ["s_and_b32 s%d, s%d, 1" % (sT, sB), "s_lshl_b32 s%d, s%d, 6" % (sT, sT), "s_lshr_b32 s%d, s%d, 1" % (sG, sB), "s_lshl_b32 s%d, s%d, 3" % (sG, sG),
                "s_add_u32 s%d, s%d, s%d" % (sT, sT, sG), "s_lshr_b32 s%d, s%d, 2" % (sG, sH), "s_add_u32 s%d, s%d, s%d" % (sT, sT, sG), "s_lshl_b32 s%d, s%d, 7" % (sT, sT),
                "s_and_b32 s%d, s%d, 3" % (sG, sH), "s_lshl_b32 s%d, s%d, 2" % (sG, sG), "s_add_u32 s%d, s%d, s%d" % (sT, sT, sG), "s_add_u32 s%d, s%d, 0x%x" % (sT, sT, FLAG_OFF),
                "v_lshrrev_b32 v%d, 1, v%d" % (v, vL), "v_lshlrev_b32 v%d, 14, v%d" % (v, v), "v_and_b32 v%d, 1, v%d" % (t, vL),
                "v_lshl_add_u32 v%d, v%d, 12, v%d" % (v, t, v), "v_add_u32 v%d, s%d, v%d" % (v, sT, v),
                "s_xor_b32 s%d, s2, 1" % sT, "s_lshl_b32 s%d, s%d, 9" % (sT, sT), "s_add_u32 s%d, s%d, 0x%x" % (sT, sT, FLAG_OFF + 16),
                "v_and_b32 v%d, 3, v%d" % (t, vL), "v_lshlrev_b32 v%d, 7, v%d" % (t, t), "v_cmp_gt_u32 vcc, 16, v%d" % vL, "v_add_u32 v%d, s%d, v%d" % (t, sT, t),
                "s_nop 0", "v_cndmask_b32 v%d, v%d, v%d, vcc" % (v, t, v)]
    def flagc(v):
        return ["s_lshl_b32 s%d, s2, 2" % sT, "s_add_u32 s%d, s%d, s%d" % (sT, sT, sWv), "s_lshl_b32 s%d, s%d, 7" % (sT, sT), "s_add_u32 s%d, s%d, 0x%x" % (sT, sT, FLAG_OFF),
                "v_min_u32 v%d, 5, v%d" % (v, vL), "v_lshlrev_b32 v%d, 2, v%d" % (v, v), "v_add_u32 v%d, s%d, v%d" % (v, sT, v),
                "s_mov_b64 exec, 64", "v_xor_b32 v%d, 0x200, v%d" % (v, v), "s_mov_b64 exec, -1"]
    def boxaddr(v):
        return ["s_lshl_b32 s%d, s2, 2" % sT, "s_add_u32 s%d, s%d, s%d" % (sT, sT, sWv), "s_lshl_b32 s%d, s%d, 13" % (sT, sT),
                "s_add_u32 s%d, s%d, 0x%x" % (sT, sT, PART_OFF + 3072), "v_add_u32 v%d, s%d, v%d" % (v, sT, vL16)]
    def codepf(lo, hi, t0):
        return ["v_min_u32 v%d, %s-%s-4, v%d" % (t0, hi, lo, vCp), "v_add_u32 v%d, %s-L_pc, v%d" % (t0, lo, t0),
                "v_mov_b32 v%d, s%d" % (t0 + 1, sPC + 1), "v_add_co_u32 v%d, vcc, s%d, v%d" % (t0, sPC, t0), "s_nop 1",
                "v_addc_co_u32 v%d, vcc, 0, v%d, vcc" % (t0 + 1, t0 + 1), "global_load_dword v%d, v[%d:%d], off" % (vDum, t0, t0 + 1)]

    a.lab(NAME + "_kernel")
    a.e(["s_cmp_ge_u32 s2, 256", "s_cbranch_scc1 L_end",
         "s_load_dwordx8 s[4:11], s[0:1], 0", "s_load_dwordx8 s[12:19], s[0:1], 32"])
    stamp(7)
    a.e(["s_getpc_b64 s[%d:%d]" % (sPC, sPC + 1)])
    a.lab("L_pc")
    a.e(["v_and_b32 v%d, 63, v0" % vL, "v_lshrrev_b32 v%d, 6, v0" % vT,
         "s_and_b32 s%d, s2, 7" % sT, "s_lshr_b32 s%d, s2, 3" % sT2,
         "v_readfirstlane_b32 s%d, v%d" % (sWv, vT),
         "v_min_u32 v%d, 2, v%d" % (vCp, vL), "v_lshl_add_u32 v%d, v%d, 2, v%d" % (vCp, vCp, vT), "v_lshlrev_b32 v%d, 5, v%d" % (vCp, vCp),
         "v_add_lshl_u32 v%d, v%d, s%d, 7" % (vCp, vCp, sT2)])
    if O.pf_code: a.e(codepf("L_pc", "L_end", vT))
    a.e(["s_mov_b32 s%d, 0" % sPass,
         "s_and_b32 s%d, s%d, 1" % (sB, sT), "s_lshl_b32 s%d, s%d, 2" % (sB, sB),
         "s_and_b32 s%d, s%d, 3" % (sG, sT2), "s_add_u32 s%d, s%d, s%d" % (sB, sB, sG),
         "s_lshr_b32 s%d, s%d, 1" % (sH, sT), "s_lshl_b32 s%d, s%d, 2" % (sRB, sH), "s_add_u32 s%d, s%d, s%d" % (sRB, sRB, sG), "s_lshl_b32 s%d, s%d, 3" % (sH, sH),
         "s_lshr_b32 s%d, s%d, 2" % (sCT, sT2), "s_add_u32 s%d, s%d, s%d" % (sH, sH, sCT),
         "s_and_b32 s%d, s%d, 1" % (sRH, sWv), "s_lshr_b32 s%d, s%d, 1" % (sKH, sWv)])
    a.e(["s_lshl_b32 s%d, s%d, 15" % (sMX, sKH), "s_mul_i32 s%d, s%d, 7168" % (sT, sRH),
         "s_add_u32 s%d, s%d, s%d" % (sMX, sMX, sT), "s_add_u32 s%d, s%d, 16384" % (sMX, sMX),
         "s_lshl_b32 s%d, s%d, 11" % (sMW, sWv), "s_add_u32 s%d, s%d, 131072" % (sMW, sMW),
         "s_lshl_b32 s%d, s%d, 15" % (sReg, sWv),
         "s_mov_b32 s%d, 458752" % (sX + 2), "s_mov_b32 s%d, 0x20000" % (sX + 3), "s_mov_b32 s%d, 0x20000" % (sW + 3),
         "s_mul_i32 s%d, s%d, 458752" % (sD1, sB), "s_lshl_b32 s%d, s%d, 8" % (sD2, sH), "s_sub_u32 s%d, 0x800000, s%d" % (sW + 2, sD2)])
    def lane_setup():
        o = ["v_lshrrev_b32 v%d, 3, v%d" % (vT, vL), "v_and_b32 v%d, 7, v%d" % (vT2, vL), "v_and_b32 v%d, 6, v%d" % (vT3, vT),
             "v_xor_b32 v%d, v%d, v%d" % (vT3, vT3, vT2), "v_lshlrev_b32 v%d, 4, v%d" % (vT3, vT3),
             "v_lshl_add_u32 v%d, v%d, 11, v%d" % (vX, vT, vT3),
             "s_mul_i32 s%d, s%d, %d" % (sT, sWv, 7 * 16384), "v_add_u32 v%d, s%d, v%d" % (vX, sT, vX)]
        o += ["v_add_u32 v%d, %d, v%d" % (vX + j, j * 16384 - (j & 3) * 1024, vX) for j in range(1, 7)]
        o += ["v_and_b32 v%d, 2, v%d" % (vT3, vT), "v_lshlrev_b32 v%d, 1, v%d" % (vT3, vT3),
              "v_xor_b32 v%d, v%d, v%d" % (vT3, vT3, vT2), "v_lshlrev_b32 v%d, 4, v%d" % (vT3, vT3),
              "v_lshl_add_u32 v%d, v%d, 13, v%d" % (vW, vT, vT3),
              "s_lshl_b32 s%d, s%d, 17" % (sT, sRH), "s_lshl_b32 s%d, s%d, 7" % (sG, sKH), "s_add_u32 s%d, s%d, s%d" % (sT, sT, sG),
              "v_add_u32 v%d, s%d, v%d" % (vW, sT, vW), "v_add_u32 v%d, %d, v%d" % (vW + 1, 8 * 8192 - 1024, vW)]
        return o
    a.e(lane_setup())
    a.e(["s_waitcnt lgkmcnt(0)",
         "s_add_u32 s%d, s%d, s%d" % (sW, pWq, sD2), "s_addc_u32 s%d, s%d, 0" % (sW + 1, pWq + 1),
         "s_add_u32 s%d, s%d, s%d" % (sX, pX, sD1), "s_addc_u32 s%d, s%d, 0" % (sX + 1, pX + 1)])
    stamp(4)
    a.lab("L_restart")

    TS_A = ["s_memrealtime s[100:101]"]
    TS_B = ["s_mov_b32 s3, m0", "s_mov_b32 m0, s81", "v_writelane_b32 v252, s100, m0", "s_add_u32 s81, s81, 1", "s_mov_b32 m0, s3"]
    def dmaX(j): return "buffer_load_dwordx4 v%d, s[%d:%d], s%d offen offset:%d lds" % (vX + j, sX, sX + 3, sXoff, (j & 3) * 1024)
    def m0X(buf, hi): return "s_add_u32 m0, s%d, %d" % (sMX, buf * 65536 + hi * 4096)
    def dmaW(j): return "buffer_load_dwordx4 v%d, s[%d:%d], s%d offen offset:%d lds" % (vW + j, sW, sW + 3, sWoff, j * 1024)
    def m0W(slot): return "s_add_u32 m0, s%d, %d" % (sMW, slot * 8192)
    def ptm0(reg, slot): return "s_add_u32 m0, s%d, %d" % (sMW, (reg * 32768 + slot * 8192 - 131072) & 0xffffffff)
    def ptld(reg): return ["buffer_load_dwordx4 v%d, s[%d:%d], s%d offen offset:%d%s lds" % (vKV + (2 if reg == 3 else 0) + j, sVV if reg & 1 else sKV, (sVV if reg & 1 else sKV) + 3,
                           sK1 if reg >> 1 else sK0, j * 1024, KVF) for j in range(2)]
    incK = ["s_add_u32 s%d, s%d, %d" % (sK0, sK0, TS_), "s_add_u32 s%d, s%d, %d" % (sK1, sK1, TS_)]
    def setK(tile): return ["s_mov_b32 s%d, %d" % (sK0, tile * TS_), "s_mov_b32 s%d, %d" % (sK1, tile * TS_ + KH)]
    PORD = (0, 2, 1, 3)
    def kvtile(slot): return [x for reg in PORD for x in [ptm0(reg, slot), "s_nop 0"] + ptld(reg)] + incK
    sXl, sWl, sOx, sOw = 10, 11, sWo, sK0
    incW = ["s_add_u32 s%d, s%d, 262144" % (sWl, sWl), "s_xor_b32 s%d, s%d, s%d" % (sWoff, sWl, sOw)]
    incX = ["s_add_u32 s%d, s%d, 128" % (sXl, sXl), "s_xor_b32 s%d, s%d, s%d" % (sXoff, sXl, sOx)]

    a.e(["s_mov_b32 s%d, 0" % sXl, "s_mov_b32 s%d, 0" % sWl, "s_xor_b32 s%d, s%d, s%d" % (sT, sB, sH), "s_and_b32 s%d, s%d, %d" % (sT, sT, O.x1mask),
         "s_lshl_b32 s%d, s%d, 19" % (sOw, sT), "s_lshl_b32 s%d, s%d, 7" % (sOx, sT), "s_mov_b32 s%d, s%d" % (sWoff, sOw), "s_mov_b32 s%d, s%d" % (sXoff, sOx)])
    def stage_loads(st):
        return ([m0W(2 * st), "s_nop 0", dmaW(0), dmaW(1), m0X(st, 0)] + incW + [dmaX(j) for j in range(4)] + [m0X(st, 1), "s_nop 0"] + [dmaX(j) for j in range(4, 7)]
                + [m0W(2 * st + 1)] + incX + [dmaW(0), dmaW(1)] + incW)
    a.e(stage_loads(0))
    stamp(4)
    a.e(["v_mov_b32 v%d, 0" % i for i in range(12, 16)])
    su0 = len(a.L)
    a.e(["s_lshl_b32 s%d, s%d, 5" % (sT, sB), "s_add_u32 s%d, s%d, s%d" % (sT, sT, sH), "s_lshl_b32 s%d, s%d, 18" % (sT, sT),
         "s_add_u32 s%d, s%d, s%d" % (sKV, pK, sT), "s_addc_u32 s%d, s%d, 0" % (sKV + 1, pK + 1),
         "s_mov_b32 s%d, 0x40000" % (sKV + 2), "s_mov_b32 s%d, 0x20000" % (sKV + 3),
         "s_add_u32 s%d, s%d, s%d" % (sVV, pV, sT), "s_addc_u32 s%d, s%d, 0" % (sVV + 1, pV + 1),
         "s_mov_b32 s%d, 0x40000" % (sVV + 2), "s_mov_b32 s%d, 0x20000" % (sVV + 3),
         "v_bfe_u32 v%d, v%d, 2, 2" % (vT, vL), "v_lshrrev_b32 v%d, 4, v%d" % (vT2, vL), "v_lshlrev_b32 v%d, 6, v%d" % (vT2, vT2),
         "v_lshl_add_u32 v%d, v%d, 8, v%d" % (vT2, vT, vT2), "v_and_b32 v%d, 3, v%d" % (vT, vL), "v_lshl_add_u32 v%d, v%d, 4, v%d" % (vT2, vT, vT2),
         "s_lshl_b32 s%d, s%d, 5" % (sG, sRH), "v_xor_b32 v%d, s%d, v%d" % (vT2, sG, vT2), "s_lshl_b32 s%d, s%d, 11" % (sG, sWv),
         "v_add_u32 v%d, s%d, v%d" % (vKV, sG, vT2), "v_xor_b32 v%d, 48, v%d" % (vKV + 1, vKV),
         "v_xor_b32 v%d, 0x80, v%d" % (vKV + 2, vKV), "v_xor_b32 v%d, 0x80, v%d" % (vKV + 3, vKV + 1)])
    pPx, pPw = PK + 20, PK + 21
    a.e(["s_mul_i32 s%d, s%d, 14336" % (sT, sH), "s_lshl_b32 s%d, s%d, 12" % (sG, sWv), "s_add_u32 s%d, s%d, s%d" % (sT, sT, sG),
         "v_and_b32 v%d, 31, v%d" % (pPx, vL), "v_lshlrev_b32 v%d, 7, v%d" % (pPx, pPx), "v_add_u32 v%d, s%d, v%d" % (pPx, sT, pPx),
         "s_lshl_b32 s%d, s%d, 2" % (sT, sB), "s_add_u32 s%d, s%d, s%d" % (sT, sT, sWv), "s_lshl_b32 s%d, s%d, 18" % (sT, sT),
         "v_lshrrev_b32 v%d, 1, v%d" % (pPw, vL), "v_lshlrev_b32 v%d, 13, v%d" % (pPw, pPw),
         "v_and_b32 v%d, 1, v%d" % (vT2, vL), "v_lshl_add_u32 v%d, v%d, 7, v%d" % (pPw, vT2, pPw), "v_add_u32 v%d, s%d, v%d" % (pPw, sT, pPw)])
    a.e(["v_lshlrev_b32 v%d, 4, v%d" % (vL16, vL),
         "v_and_b32 v%d, 15, v%d" % (vT, vL), "v_lshrrev_b32 v%d, 4, v%d" % (vT2, vL),
         "v_and_b32 v%d, 6, v%d" % (vT3, vT), "v_xor_b32 v%d, v%d, v%d" % (vT3, vT3, vT2), "v_lshlrev_b32 v%d, 4, v%d" % (vT3, vT3),
         "v_lshl_add_u32 v%d, v%d, 7, v%d" % (vT3, vT, vT3),
         "s_lshl_b32 s%d, s%d, 15" % (sT, sRH), "s_add_u32 s%d, s%d, 16384" % (sT, sT),
         "v_add_u32 v%d, s%d, v%d" % (vXr, sT, vT3), "v_xor_b32 v%d, 64, v%d" % (vXr + 1, vXr),
         "v_add_u32 v%d, 0x10000, v%d" % (vXr + 2, vXr), "v_add_u32 v%d, 0x10000, v%d" % (vXr + 3, vXr + 1)])
    a.e(["v_bfe_u32 v%d, v%d, 2, 2" % (vT, vL), "v_lshl_add_u32 v%d, v%d, 3, v%d" % (vT, vT2, vT),
         "v_and_b32 v%d, 2, v%d" % (vT3, vT), "v_lshlrev_b32 v%d, 1, v%d" % (vT3, vT3),
         "v_and_b32 v%d, 3, v%d" % (vT2, vL), "v_xor_b32 v%d, v%d, v%d" % (vT3, vT3, vT2), "v_lshlrev_b32 v%d, 4, v%d" % (vT3, vT3),
         "v_lshl_add_u32 v%d, v%d, 7, v%d" % (vT3, vT, vT3),
         "s_lshl_b32 s%d, s%d, 12" % (sT, sKH), "s_add_u32 s%d, s%d, 131072" % (sT, sT),
         "v_add_u32 v%d, s%d, v%d" % (vWr, sT, vT3), "v_xor_b32 v%d, 64, v%d" % (vWr + 1, vWr)])
    a.e(["s_mul_i32 s%d, s%d, 14" % (sT, sB), "s_mul_i32 s%d, s%d, 7" % (sG, sRH), "s_add_u32 s%d, s%d, s%d" % (sT, sT, sG),
         "s_lshl_b32 s%d, s%d, 7" % (sT, sT), "s_lshl_b32 s%d, s%d, 2" % (sG, sH), "s_add_u32 s%d, s%d, s%d" % (sT, sT, sG),
         "s_lshl_b32 s%d, s%d, 1" % (sG, sKH), "s_add_u32 s%d, s%d, s%d" % (sT, sT, sG), "s_lshl_b32 s%d, s%d, 10" % (sT, sT),
         "s_add_u32 s%d, s%d, s%d" % (sO, pWs, sT), "s_addc_u32 s%d, s%d, 0" % (sO + 1, pWs + 1),
         "s_mov_b32 s%d, %d" % (sO + 2, 6 * 131072 + 2048), "s_mov_b32 s%d, 0x20000" % (sO + 3),
         "s_mov_b32 s%d, 0x%x" % (sC, CSCALE), "s_mov_b32 s%d, 0x%x" % (sC + 1, CSCALE),
         "s_and_b32 s%d, s%d, 4" % (sPm, sB), "s_add_u32 s%d, s%d, s%d" % (sPm, sPm, sWv),
         "s_mul_i32 s%d, s%d, %d" % (sT, sRB, 7 * 131072), "s_lshl_b32 s%d, s%d, 14" % (sG, sPm), "s_add_u32 s%d, s%d, s%d" % (sT, sT, sG),
         "s_add_u32 s%d, s%d, s%d" % (sOs, pWs, sT), "s_addc_u32 s%d, s%d, 0" % (sOs + 1, pWs + 1),
         "s_mov_b32 s%d, %d" % (sOs + 2, 6 * 131072 + 16384), "s_mov_b32 s%d, 0x20000" % (sOs + 3),
         "s_lshl_b32 s%d, s%d, 20" % (sT, sPm), "s_lshl_b32 s%d, s%d, 8" % (sG, sCT), "s_add_u32 s%d, s%d, s%d" % (sT, sT, sG),
         "s_add_u32 s%d, s%d, s%d" % (sWs, pWo, sT), "s_addc_u32 s%d, s%d, 0" % (sWs + 1, pWo + 1),
         "s_sub_u32 s%d, 0x100000, s%d" % (sWs + 2, sG), "s_mov_b32 s%d, 0x20000" % (sWs + 3),
         "s_mul_i32 s%d, s%d, %d" % (sT, sRB, 112 * 2048), "s_add_u32 s%d, s%d, s%d" % (sOut, pOut, sT), "s_addc_u32 s%d, s%d, 0" % (sOut + 1, pOut + 1),
         "s_mov_b32 s%d, %d" % (sOut + 2, 112 * 2048), "s_mov_b32 s%d, 0x20000" % (sOut + 3),
         "s_xor_b32 s%d, s%d, 0x10000" % (sRing, sReg),
         "s_lshl_b32 s%d, s%d, 13" % (sSp, sWv), "s_add_u32 s%d, s%d, 131072" % (sSp, sSp),
         "s_sub_u32 s%d, s%d, s%d" % (sD1, sSp, sReg), "s_sub_u32 s%d, s%d, s%d" % (sD2, sRing, sSp)])
    for rt in range(7): a.e("s_mov_b32 s%d, %d" % (sRt + rt, rt * 131072))
    pKr, pVr, pK0, pD, pR, pQ, pFp, pFc, pWoP, pCp = PK, PK + 1, PK + 3, PK + 4, PK + 8, PK + 10, PK + 12, PK + 13, PK + 14, PK + 16
    a.e(flagp(pFp, vT2) + flagc(pFc))
    a.e(["v_bfe_u32 v%d, v%d, 2, 2" % (vT, vL), "v_sub_u32 v%d, 0, v%d" % (vT2, vT), "v_lshrrev_b32 v%d, 4, v%d" % (vT3, vL),
         "v_xor_b32 v%d, v%d, v%d" % (vT2, vT2, vT3), "v_and_b32 v%d, 3, v%d" % (vT2, vT2), "v_lshlrev_b32 v%d, 4, v%d" % (vT2, vT2),
         "v_lshl_add_u32 v%d, v%d, 10, v%d" % (vT2, vT, vT2), "v_and_b32 v%d, 3, v%d" % (pK0, vL), "v_lshlrev_b32 v%d, 6, v%d" % (pK0, pK0),
         "s_lshl_b32 s%d, s%d, 16" % (sG, sKH), "v_add3_u32 v%d, v%d, v%d, s%d" % (pKr, pK0, vT2, sG),
         "v_lshl_add_u32 v%d, v%d, 4, v%d" % (pK0, vT3, pK0),
         "v_sub_u32 v%d, 0, v%d" % (vT2, vT3), "v_bfe_u32 v%d, v%d, 1, 1" % (pVr + 1, vL), "v_xor_b32 v%d, v%d, v%d" % (vT2, vT2, pVr + 1),
         "v_and_b32 v%d, 3, v%d" % (vT2, vT2), "v_lshlrev_b32 v%d, 4, v%d" % (vT2, vT2),
         "v_lshl_add_u32 v%d, v%d, 10, v%d" % (vT2, vT3, vT2), "v_lshl_add_u32 v%d, v%d, 6, v%d" % (vT2, vT, vT2),
         "v_and_b32 v%d, 1, v%d" % (pVr + 1, vL), "v_lshl_add_u32 v%d, v%d, 3, v%d" % (vT2, pVr + 1, vT2),
         "s_add_u32 s%d, s%d, 32768" % (sG, sG), "v_add_u32 v%d, s%d, v%d" % (pVr, sG, vT2), "v_xor_b32 v%d, 32, v%d" % (pVr + 1, pVr),
         "v_add_u32 v%d, s%d, v%d" % (pR, sReg, vT2), "v_xor_b32 v%d, 32, v%d" % (pR + 1, pR),
         "v_lshlrev_b32 v%d, 6, v%d" % (vT2, vT3), "v_lshl_add_u32 v%d, v%d, 11, v%d" % (vT2, vT, vT2), "v_and_b32 v%d, 3, v%d" % (vT, vL),
         "v_lshl_add_u32 v%d, v%d, 4, v%d" % (vT2, vT, vT2), "s_lshl_b32 s%d, s%d, 5" % (sT, sPm), "v_xor_b32 v%d, s%d, v%d" % (pD, sT, vT2)])
    for j in range(1, 4): a.e(["v_xor_b32 v%d, %d, v%d" % (pD + j, ((-j) & 3) * 16, pD), "v_add_u32 v%d, %d, v%d" % (pD + j, j * (8192 - 1024), pD + j)])
    a.e(["v_add_u32 v%d, s%d, v%d" % (pQ, sMW, vL16), "s_lshl_b32 s%d, s%d, 11" % (sT, sRH), "s_add_u32 s%d, s%d, 131072" % (sT, sT), "v_add_u32 v%d, s%d, v%d" % (pQ + 1, sT, vL16),
         "s_lshl_b32 s%d, s2, 2" % sT, "s_add_u32 s%d, s%d, s%d" % (sT, sT, sWv), "s_lshl_b32 s%d, s%d, 13" % (sT, sT),
         "v_lshlrev_b32 v%d, 7, v%d" % (pWoP, vL), "v_add_u32 v%d, s%d, v%d" % (pWoP, sT, pWoP),
         "s_lshl_b32 s%d, s%d, 1" % (sOf, sRB), "s_xor_b32 s%d, s%d, s%d" % (sOf, sOf, sCT), "s_and_b32 s%d, s%d, %d" % (sOf, sOf, O.x3mask), "s_lshl_b32 s%d, s%d, 16" % (sOf, sOf)])
    cp2 = codepf("L_tr", "L_epi", pCp)
    a.e(cp2[:-1])
    a.e([
         "s_lshl_b32 s%d, s2, 15" % sT, "s_lshl_b32 s%d, s%d, 10" % (sG, sWv), "s_add_u32 s%d, s%d, s%d" % (sT, sT, sG),
         "v_and_b32 v%d, 7, v%d" % (vT3, vL), "v_lshlrev_b32 v%d, 7, v%d" % (vT3, vT3), "v_add_u32 v%d, s%d, v%d" % (vT3, sT, vT3), "s_mov_b32 s%d, 0" % sP])
    kvpf = "global_load_dword v%d, v%d, s[%d:%d]" % (vDum, vT3, pWo, pWo + 1)
    zs = [zero16(vr(ACC + 16 * i, 16)) for i in range(7)] + [zero16(vr(OK + 16 * i, 16)) for i in range(2, 7)] + [zero16(ar(aO + 16 * i, 16)) for i in range(4)]
    seg = a.L[su0:]; del a.L[su0:]
    for i_, ln in enumerate(seg):
        if i_ % 7 == 3 and zs: a.e(zs.pop(0))
        a.L.append(ln)
    assert not zs and not any("exec" in ln for ln in seg[:120])
    late = stage_loads(1) + ["buffer_load_dword v%d, v%d, s[%d:%d], 0 offen" % (vDum, pPx, sX, sX + 3), "buffer_load_dword v%d, v%d, s[%d:%d], 0 offen" % (vDum, pPw, sW, sW + 3),
                              kvpf if O.wo_at != 0 else "global_load_dword v%d, v%d, s[%d:%d]" % (vDum, pWoP, pWo, pWo + 1)]
    def kvb(v, off): return "global_load_lds_dwordx4 v%d, s[4:5] offset:%d%s" % (v, off, KVF)
    kvq = ["s_cmp_lt_u32 s%d, 4" % sP, "s_cselect_b32 s4, s%d, s%d" % (sKV, sVV), "s_cselect_b32 s5, s%d, s%d" % (sKV + 1, sVV + 1),
           "s_and_b32 s%d, s%d, 1" % (sT, sP), "s_and_b32 s%d, s%d, 2" % (sG, sP), "s_lshl_b32 s%d, s%d, 12" % (sG, sG),
           "s_lshl_b32 s%d, s%d, 16" % (sT2, sT), "s_add_u32 s%d, s%d, s%d" % (sT2, sT2, sG), "s_mul_i32 s%d, s%d, %d" % (sT, sT, KH),
           "s_mul_i32 s%d, s%d, %d" % (sG, sG, TS_ // 8192), "s_add_u32 s%d, s%d, s%d" % (sT, sT, sG),
           "v_add_u32 v%d, s%d, v%d" % (vT, sT, vKV), "v_add_u32 v%d, s%d, v%d" % (vT2, sT, vKV + 1),
           "s_and_b32 s%d, s%d, 4" % (sG, sP), "s_lshl_b32 s%d, s%d, 13" % (sG, sG), "s_add_u32 s%d, s%d, s%d" % (sT2, sT2, sG),
           "s_and_b32 s%d, s%d, 5" % (sT, sP), "s_cmp_eq_u32 s%d, 5" % sT, "s_cselect_b32 s%d, 128, 0" % sT,
           "v_xor_b32 v%d, s%d, v%d" % (vT, sT, vT), "v_xor_b32 v%d, s%d, v%d" % (vT2, sT, vT2),
           "s_add_u32 s%d, s%d, s%d" % (sT2, sT2, sMW), "s_add_u32 s%d, s%d, 1" % (sP, sP)]
    kvq_m0 = "s_sub_u32 m0, s%d, 0x20000" % sT2

    def wreg(k): return {30: 192, 31: 208}.get(k, aWF + 16 * (k & 1))
    def xreg(k, rt): return 16 * rt + 4 * (k & 3)
    def rdW(k):
        out = []
        for dt in range(4):
            dp, t = dt >> 1, dt & 1
            for sec in range(2):
                out.append("ds_read_b64_tr_b16 %s, v%d offset:%d" % (ar(wreg(k) + 4 * dt + 2 * sec, 2), vWr + dp, (k & 3) * 8192 + sec * 512 + t * 8))
        return out
    def rdX1(s, kk, rt): return "ds_read_b128 %s, v%d offset:%d" % (ar(xreg(2 * s + kk, rt), 4), vXr + 2 * (s & 1) + kk, rt * 2048)
    def rdX(s): return [rdX1(s, kk, rt) for kk in range(2) for rt in range(7)]
    def A(rt, k): return [mfma(vr(ACC + 16 * rt + 4 * dt, 4), ar(wreg(k) + 4 * dt, 4), ar(xreg(k, rt), 4), vr(ACC + 16 * rt + 4 * dt, 4)) for dt in range(4)]
    stamp(4)
    if not O.rd_first: a.e(late)
    a.e(["s_waitcnt vmcnt(%d)" % (2 if O.rd_first else 16), "s_barrier"])
    stamp(4)
    a.e(rdW(0) + rdX(0))
    if O.rd_first: a.e(late)
    a.e(["s_mov_b32 s%d, 7" % sCnt, "s_waitcnt vmcnt(14) lgkmcnt(0)", "s_barrier"])

    wopf = "global_load_dword v%d, v%d, s[%d:%d]" % (vDum, pWoP, pWo, pWo + 1)
    addr28 = ["v_mov_b32 v%d, v%d" % (240 + i, PK + i) for i in range(8)] + ["v_mov_b32 v%d, v%d" % (vR + i, pR + i) for i in range(2)]
    addr28 += ["v_mov_b32 v%d, v%d" % (vQw + i, pQ + i) for i in range(2)] + setK(2)

    def p1_kstep(km, mode, ctl=False):
        sp, kk = km >> 1, km & 1
        mf = [m_ for rt in range(7) for m_ in A(rt, km)]
        gaps = [[] for _ in range(28)]
        rd = rdW(km + 1)
        if kk == 1: rd += rdX(sp + 1)
        dm = []; nxe = O.nxe; tailops = []
        if mode == "loop":
            def xs(js):
                r = []
                for j in js:
                    if j == 4 and j != js[0]: r += [m0X(sp, 1)]
                    r.append(dmaX(j))
                return r
            if kk == 0: dm += [m0W(km), dmaW(0), dmaW(1), m0X(sp, 0)] + incW + xs(list(range(nxe)))
            else:
                if nxe < 7: dm += ([m0X(sp, 1)] if nxe == 4 else []) + xs(list(range(nxe, 7)))
                dm += [m0W(km)] + incX + [dmaW(0), dmaW(1)] + incW
                if km == 3:
                    dm += [kvq_m0]; tailops = [kvb(vT, 0), kvb(vT2, 1024), kvpf]
            endw = "s_waitcnt vmcnt(%d) lgkmcnt(0)" % ((4 + nxe + (3 if km == 0 else 0)) if kk == 0 else 14)
        elif mode == 28:
            endw = "s_waitcnt vmcnt(5) lgkmcnt(0)"
        for g, x in enumerate(rd): gaps[g].append(x)
        def place(items, lo, hi):
            g_ = lo
            for y in items:
                if y.startswith("global_load"): g_ = min(g_ + 1, hi); gaps[g_].insert(0, y); continue
                while g_ < hi and len(gaps[g_]) >= 2: g_ += 1
                gaps[g_].append(y)
        nld = sum(1 for x in dm if x.startswith("buffer_load"))
        if nld:
            pos = [1 + (i * O.p1_span) // nld for i in range(nld)]
            li = 0; pend = []; prev = -1
            for x in dm:
                if x.startswith("buffer_load"):
                    place(pend, max(prev, 0), pos[li] - 1); pend = []
                    gaps[pos[li]].insert(0, x); prev = pos[li]; li += 1
                else: pend.append(x)
            place(pend, prev, 25)
        for i_, x in enumerate(tailops): gaps[23 + i_].insert(0, x)
        if mode == "loop" and km == 2: place(kvq + (["v_add_u32 v%d, 4096, v%d" % (vT3, vT3)] if O.wo_at == 1 else []), 8, 25)
        if mode == 28:
            place(kvq + [kvq_m0], 0, 15); gaps[16].insert(0, kvb(vT, 0)); gaps[17].insert(0, kvb(vT2, 1024)); place(addr28, 18, 25)
        if endw: gaps[26].append(endw); gaps[27].append("s_barrier")
        if ctl:
            gaps[25].append("s_sub_u32 s%d, s%d, 1" % (sCnt, sCnt)); gaps[26].append("s_cmp_lg_u32 s%d, 0" % sCnt)
        weave(a, mf, gaps)
    stamp(4)
    a.raw(".p2align 5")
    a.lab("L_p1")
    for km in range(4): p1_kstep(km, "loop", ctl=(km == 3))
    a.e("s_cbranch_scc1 L_p1")
    p1_kstep(0, 28)
    stamp(4)
    a.lab("L_tr")
    a.e(["s_cmp_lg_u32 s%d, 0" % sPass, "s_cbranch_scc1 L_nofl",
         "global_load_dword v%d, v%d, s[%d:%d] sc1" % (vFc, pFc, pWs, pWs + 1),
         "s_cmp_lg_u32 s%d, 0" % sWv, "s_cbranch_scc1 L_nofl",
         "global_load_dword v%d, v%d, s[%d:%d] sc1" % (vFo, pFp, pWs, pWs + 1)])
    a.lab("L_nofl")
    def ismem(x): return x.startswith(("ds_", "buffer_", "global_", "s_barrier"))
    def spread(mf, side, lo=0, hi=None):
        n = len(mf); hi = n - 1 if hi is None else hi
        gaps = [[] for _ in range(n)]
        g = lo
        for i_, x in enumerate(side):
            g = max(g, lo + (i_ * (hi - lo + 1)) // len(side))
            if ismem(x) and any(y.startswith("v_") for y in gaps[g]) and g < hi: g += 1
            gaps[g].append(x)
        weave(a, mf, gaps)
    def rdK(i, slot):
        t, ks = i & 1, i >> 1
        return "ds_read_b128 %s, v%d offset:%d" % (ar(aK + 16 * t + 4 * ks, 4), vKr, slot * 8192 + t * 4096 + ks * 256)
    def xlane(op, regs_, tmp):
        out = []
        for sw in ("v_permlane32_swap_b32", "v_permlane16_swap_b32"):
            out += ["v_mov_b32 v%d, v%d" % (t_, r_) for r_, t_ in zip(regs_, tmp)]
            out += ["%s v%d, v%d" % (sw, r_, t_) for r_, t_ in zip(regs_, tmp)]
            out += ["%s v%d, v%d, v%d" % (op, r_, r_, t_) for r_, t_ in zip(regs_, tmp)]
        return out
    def qk(rt, sb):
        out = []
        for i in range(8):
            t, ks = i & 1, i >> 1
            d = vr(S + 8 * sb + 4 * t, 4)
            out.append(mfma(d, ar(aK + 16 * t + 4 * ks, 4), ar(aQ + 16 * rt + 4 * ks, 4), vr(M + 4 * rt, 4) if ks == 0 else d))
        return out
    def oacc(rt, i): return vr(OK + 16 * rt + 4 * i, 4) if i < 4 else ar(aO + 16 * rt + 4 * (i - 4), 4)
    def pv(rt, pb): return [mfma(oacc(rt, i), vr(V + 4 * i, 4), vr(P + 4 * pb, 4), oacc(rt, i)) for i in range(8)]
    aK0 = 176
    def Bq(rt):
        o = []
        for dp in range(2):
            b = ACC + 16 * rt + 8 * dp
            for i in range(4): o += ["v_mul_f32 v%d, s%d, v%d" % (b + 2 * i, sC, b + 2 * i), "v_mul_f32 v%d, s%d, v%d" % (b + 2 * i + 1, sC, b + 2 * i + 1),
                                     "v_cvt_pk_bf16_f32 v%d, v%d, v%d" % (b + i, b + 2 * i, b + 2 * i + 1)]
            if dp == 0: o.append("s_waitcnt lgkmcnt(0)")
            o.append("ds_write_b128 v%d, %s offset:%d" % (vQw, vr(b, 4), (rt & 3) * 8192 + dp * 1024))
        return o
    def Cq(rt): return ["ds_read_b128 %s, v%d offset:%d" % (ar(aQ + 16 * rt + 4 * ks, 4), vQr, (rt & 3) * 8192 + (ks >> 1) * 4096 + (ks & 1) * 1024) for ks in range(4)]
    def PP(rt): return [mfma(vr(M + 4 * rt, 4), ar(aK0 + 4 * ks, 4), ar(aQ + 16 * rt + 4 * ks, 4), "0" if ks == 0 else vr(M + 4 * rt, 4)) for ks in range(4)]
    def Dq(rt):
        b = M + 4 * rt
        return ["v_max3_f32 v%d, v%d, v%d, v%d" % (b, b, b + 1, b + 2), "v_max_f32 v%d, v%d, v%d" % (b, b, b + 3)] + ["v_sub_f32 v%d, 0, v%d" % (b + i, b) for i in (1, 2, 3, 0)]
    sync = ["s_waitcnt lgkmcnt(0)", "s_barrier"]
    kvs = [[ptm0(reg, sl), "s_nop 0"] + ptld(reg) + (incK if reg == 3 else []) for sl in (2, 3) for reg in PORD]
    if O.t3late: kvs = [kvs[0], [], kvs[1], [], kvs[2], [], kvs[3], []]
    pfs = ([cp2[-1]] if O.pf_code else []) + ([wopf] if O.wo_at == 29 else [])
    t1 = rdW(30) + [rdX1(15, 0, 0)] + rdW(31) + [rdX1(15, 1, 0)] + [rdX1(15, kk, rt) for rt in range(1, 7) for kk in range(2)]
    spread([m_ for rt in range(5) for m_ in A(rt, 29)], t1 + pfs + sync, 0, 19)
    stamp(1)
    for i in range(8):
        mf = (A(i, 30) + A(i, 31) if i < 7 else qk(0, 0)) + (A(5 + i, 29) if i < 2 else PP(i - 2))
        side = []
        if i == 0: mf += [zero16(vr(OK, 16)), zero16(vr(OK + 16, 16))]
        if i == 1: side += ["s_waitcnt vmcnt(%d)" % (2 + len(pfs)), "s_barrier"] + ["ds_read_b128 %s, v%d offset:%d" % (ar(aK0 + 4 * ks, 4), vK0, ks * 256) for ks in range(4)]
        if i >= 2: side += sync + Cq(i - 2)
        if i in (3, 4): side += [rdK(j, 0) for j in range(4 * (i - 3), 4 * (i - 2))]
        if i >= 1: side += Bq(i - 1)
        if i >= 3: side += Dq(i - 3)
        if i == 7: side += ["v_mov_b32 v%d, 0" % j for j in range(L, L + 4)] + ["s_mov_b32 s%d, 3" % sCnt]
        side += kvs[i]
        spread(mf, side)
    if O.ts: a.e(["s_mov_b32 s81, 0", "v_mov_b32 v252, 0"])
    a.e(["s_cmp_lg_u32 s%d, 0" % sPass, "s_cbranch_scc1 L_maxpass"])
    stamp(1)
    NA = 0

    def dma3(j): return "buffer_load_dwordx4 v%d, s[%d:%d], s%d offen offset:%d lds" % (vD + j, sWs, sWs + 3, sWo, j * 1024)
    def setWo(u): return "s_xor_b32 s%d, s%d, 0x%x" % (sWo, sOf, u * 32768)
    def wset(n): return (0, 32, 64, 224)[n & 3]
    def rd3(k, off, dts=range(8)):
        return ["ds_read_b64_tr_b16 %s, v%d offset:%d" % (ar(wset(k) + 4 * dt + 2 * sec, 2), vR + (dt & 1), off + (dt >> 1) * 256 + sec * 4096) for dt in dts for sec in range(2)]
    def xw(rt): return ["ds_write_b128 v%d, %s offset:%d" % (vTa, ar(aO + 16 * rt + 4 * i, 4), rt * 4096 + i * 1024) for i in range(4)]
    vm = VM(["t13"] * 8 + (["t14"] * 8 if not O.lag else []))

    def body(js, last=False, first=False, quiet=False):
        pend = []; cost = 0
        for r in range(7):
            u = 7 * js + r
            fin = last and js == 3
            mf = ([] if (fin and r == 6) else qk((r + 1) % 7, (u + 1) & 1)) + pv((r + 6) % 7, (u + 1) & 1)
            mem = [[] for _ in range(16)]; val = [[] for _ in range(16)]
            pk = O.pack and not fin and not (first and r == 0)
            Eb = E2 if (pk and r & 1) else E
            for e in range(8):
                val[2 * e].append("v_exp_f32 v%d, v%d" % (Eb + e, S + 8 * (u & 1) + e))
                if not pk: val[2 * e + 1].append("v_add_f32 v%d, v%d, v%d" % (L + r, L + r, Eb + e))
                if e & 1: val[2 * e + 1].append("v_cvt_pk_bf16_f32 v%d, v%d, v%d" % (P + 4 * (u & 1) + (e >> 1), Eb + e - 1, Eb + e))
            ps = (js + 3 - O.lag) & 3
            kvB = ((not last) or js <= O.lag) and (O.t3late or not first) and not quiet
            if first and r == 0:
                mf = mf[:8] + PP(6) + [zero16(ar(192, 16)), zero16(ar(208, 16))]
                mem[0] += sync + Cq(6)[:2]; mem[1] += Cq(6)[2:]; mem[7].append("s_waitcnt lgkmcnt(0)")
                for i_, x in enumerate(Dq(5)): val[3 + 2 * i_].append(x)
            if first and r == 1:
                for i_, x in enumerate(Dq(6) + ["v_mov_b32 v%d, 0" % j for j in range(L + 4, L + 7)]): val[1 + 4 * (i_ % 4)].append(x) if i_ >= 6 else val[1 + 2 * i_].append(x)
            if first and r == 2: mem[9].append(zero16(ar(176, 16)))
            vrd = ["ds_read_b64_tr_b16 %s, v%d offset:%d" % (vr(V + 4 * i + 2 * sec, 2), vVr + (i & 1), js * 8192 + (i >> 1) * 256 + sec * 4096) for i in range(8) for sec in range(2)]
            if O.pack and not fin and not first:
                if r == 0: mem[9] += vrd[0:3]; mem[11] += vrd[3:5]; mem[13] += vrd[5:8]; mem[15] += vrd[8:10]
                if r == 1:
                    mem[1] += vrd[10:12]; mem[3] += vrd[12:14]; mem[5] += vrd[14:16]
                    mem[7].append("s_waitcnt lgkmcnt(4)"); mem[13].append("s_waitcnt lgkmcnt(0)")
            else:
                if r == 0:
                    for i in range(16): mem[8 + i // 2].append(vrd[i])
                if r == 1: mem[5].append("s_waitcnt lgkmcnt(%d)" % (5 if fin else 0))
            if kvB:
                pts = [tuple(int(y) for y in x.split(".")) for x in O.pts.split(",")]
                for n_, (pr_, pg_) in enumerate(pts):
                    if r == pr_: mem[pg_] += ptld(PORD[n_])
                    if n_ == 0:
                        if r == 0: mem[1].append(ptm0(PORD[0], ps))
                    else:
                        qr_, qg_ = pts[n_ - 1]
                        qg_ += 2 if (pr_, pg_) != (qr_, qg_ + 2) else 0
                        if r == qr_ + qg_ // 16: mem[qg_ % 16].append(ptm0(PORD[n_], ps))
                if r == 6: mem[9].append(incK[0]); mem[13].append(incK[1])
            if not last:
                if r == 4:
                    mem[13].append("s_barrier")
                    if not first: mem[9].append("s_waitcnt vmcnt(%d)" % (16 - 8 * O.lag))
                if r == 6 and js == 3:
                    mem[5].append("s_sub_u32 s%d, s%d, 1" % (sCnt, sCnt)); mem[15].append("s_cmp_lg_u32 s%d, 0" % sCnt)
            else:
                sched = [{(0, 6): 0, (1, 1): 1, (1, 2): 6, (1, 3): 7, (1, 6): 2, (2, 1): 3, (2, 5): 4, (2, 6): 5},
                         {(0, 6): 0, (1, 1): 6, (1, 3): 1, (1, 5): 7, (2, 0): 2, (2, 2): 3, (2, 5): 4, (3, 0): 5},
                         {(1, 1): 0, (1, 3): 1, (1, 5): 2, (1, 6): 3, (2, 5): 4, (2, 6): 5, (3, 1): 6, (3, 2): 7},
                         {(0, 5): 0, (0, 6): 1, (1, 5): 2, (1, 6): 3, (2, 1): 6, (2, 2): 7, (2, 5): 4, (2, 6): 5}][O.tsched]
                if (js, r) in sched:
                    k = sched[(js, r)]
                    base, off = (sReg, k * 4096) if k < 6 else (sSp, (k - 6) * 4096)
                    g0 = (9, 11, 13, 15) if r == 5 else ((1, 3, 5, 7) if r == 0 else (1, 5, 9, 13))
                    mem[g0[0] - 1] += ["s_add_u32 m0, s%d, %d" % (base, off), setWo(k)]
                    for j in range(4): mem[g0[j]].append(("w%d" % k, dma3(j)))
                if r == 4:
                    if js < 3: mem[9].append(("wait", "t%d" % (13 + js)))
                    mem[13].append("s_barrier")
                if js == 0 and r == 5 and O.wl2:
                    val[9] += ["v_lshrrev_b32 v%d, 1, v%d" % (vT3, vL), "v_lshlrev_b32 v%d, 11, v%d" % (vT3, vT3)]
                    val[11] += ["v_and_b32 v%d, 1, v%d" % (vT, vL), "s_and_b32 s%d, s%d, 3" % (sT2, sRB)]
                    val[13] += ["v_lshl_add_u32 v%d, v%d, 7, v%d" % (vT3, vT, vT3), "s_lshl_b32 s%d, s%d, 17" % (sT2, sT2)]
                l2s = {(3, 2): 0, (3, 5): 1}
                if (js, r) in l2s and l2s[(js, r)] < O.wl2:
                    mem[1].append("s_add_u32 s%d, s%d, %d" % (sT, sT2, (8 + l2s[(js, r)]) * 65536))
                    mem[5].append(("pf", "buffer_load_dword v%d, v%d, s[%d:%d], s%d offen" % (vDum, vT3, sWs, sWs + 3, sT)))
                if js == 0 and r == 1 and O.wo_at == 99:
                    val[13] += ["s_lshl_b32 s%d, s2, 2" % sT, "s_add_u32 s%d, s%d, s%d" % (sT, sT, sWv), "s_lshl_b32 s%d, s%d, 13" % (sT, sT)]
                    val[15] += ["v_lshlrev_b32 v%d, 7, v%d" % (vT, vL), "v_add_u32 v%d, s%d, v%d" % (vT, sT, vT)]
                if js == 0 and r == 4 and O.wo_at == 99: mem[3].append(("pf", "global_load_dword v%d, v%d, s[%d:%d]" % (vDum, vT, pWo, pWo + 1)))
                if O.wo_at == 98:
                    if js == 0 and r == 0:
                        val[1] += ["s_lshl_b32 s%d, s2, 2" % sT, "s_add_u32 s%d, s%d, s%d" % (sT, sT, sWv)]
                        val[3] += ["s_lshr_b32 s%d, s%d, 7" % (sG, sT), "s_and_b32 s%d, s%d, 127" % (sT, sT), "s_lshl_b32 s%d, s%d, 20" % (sG, sG)]
                        val[5] += ["s_lshl_b32 s%d, s%d, 12" % (sT, sT), "s_add_u32 s%d, s%d, s%d" % (sT, sT, sG), "v_and_b32 v%d, 31, v%d" % (vT3, vL)]
                        val[7] += ["v_lshlrev_b32 v%d, 7, v%d" % (vT3, vT3), "v_add_u32 v%d, s%d, v%d" % (vT3, sT, vT3)]
                    w1, w2 = [tuple(int(y) for y in x.split(".")) for x in O.wo2.split(",")]
                    if (js, r) in (w1, w2): mem[11].append(("pf", "global_load_dword v%d, v%d, s[%d:%d]" % (vDum, vT3, pWo, pWo + 1)))
                    if (js, r) == w1: val[13].append("v_add_u32 v%d, 0x80000, v%d" % (vT3, vT3))
                if js == 2 and r == 3 and O.pf_code:
                    pf = codepf("L_epi", "L_end", vT)
                    for i_, x in enumerate(pf[:-1]): val[1 + 2 * i_].append(x)
                    mem[15].append(("pf", pf[-1]))
                if fin:
                    if r < 6:
                        if r % 2 == 0: mem[0] += [("wait", "w%d" % r), ("wait", "w%d" % (r + 1))]
                        for i_, x in enumerate(rd3(r >> 1, (r >> 1) * 8192, range(4 * (r & 1), 4 * (r & 1) + 4))): mem[i_].append(x)
                    else:
                        mem[8] += [("wait", "w6"), ("wait", "w7")]
                        for i_, x in enumerate(rd3(3, 0)): mem[8 + i_ // 2].append(x)
                    if r == 5:
                        for i in range(2): val[9 + 4 * i].append("v_add_u32 v%d, s%d, v%d" % (vR + i, sD1, vR + i))
                    if r >= 2:
                        for i_, x in enumerate(xw(r - 2)): mem[9 + 2 * i_].append(x)
            if r == 5 and not fin:
                for i in range(8): mem[(1, 1, 3, 5, 5, 7, 9, 9)[i] if pk else i].insert(0 if False else len(mem[0]) * 0 + 99, rdK(i, (js + 1) & 3))
                mem[15 if pk else 13].insert(0, "s_waitcnt lgkmcnt(0)")
                if O.ts: mem[11] += TS_A; mem[15] += TS_B
            if fin and r == 6:
                mem = [mem[8 + i] for i in range(8)]
                val = [val[2 * i] + val[2 * i + 1] for i in range(8)]
                val = [[v_[0], "s_nop 0"] + v_[1:] for v_ in val]
                a.e("s_nop 1")
            if first and r == 0:
                mem = mem[:12] + [mem[12] + mem[13], mem[14] + mem[15]]
                val = val[:12] + [val[12] + ["s_nop 0"] + val[13], val[14] + ["s_nop 0"] + val[15]]
            if last and js == 0 and r == 4:
                val[1] += ["v_add_u32 v%d, s%d, v%d" % (vTa, sReg, vL16)]; val[5] += ["v_add_u32 v%d, s%d, v%d" % (vTb, sRing, vL16)]
            if pk:
                old_ = len(pend)
                for g in range(1, 16, 2):
                    pend.append("v_add_f32 v%d, v%d, v%d" % (L + r, L + r, Eb + g // 2))
                    n_ = max(0, 2 - len(mem[g]) - len(val[g]))
                    if g == 15: n_ = max(n_, len(pend) if r == 6 else old_)
                    n_ = min(n_, len(pend))
                    val[g] += pend[:n_]; del pend[:n_]; old_ = max(0, old_ - n_)
            for g_, v_ in zip(mem, val): cost += max(16, 8 + sum(8 if (isinstance(x, str) and "v_exp" in x) else 4 for x in g_ + v_))
            if r == 6 and O.verbose: print("body", js, last, first, "model cycles", cost, file=sys.stderr)
            for m_, g_, v_ in zip(mf, mem, val):
                a.e(m_)
                for x in g_:
                    if isinstance(x, tuple):
                        if x[0] == "wait": a.e("s_waitcnt vmcnt(%d)" % vm.n(x[1]))
                        else: vm.issue(x[0]); a.e(x[1])
                    else:
                        if last and x.startswith("buffer_load"): vm.issue("t%d" % (15 - O.lag + js))
                        a.e(x)
                a.e(v_)
    body(0, first=True)
    if O.lag: body(1, quiet=True)
    a.e("s_branch L_b1")
    a.raw(".p2align 5")
    a.lab("L_loop")
    for js in range(4):
        if js == 1 + O.lag: a.lab("L_b1")
        body(js)
    a.e("s_cbranch_scc1 L_loop")
    a.lab("L_last")
    for js in range(4): body(js, True)
    stamp()

    a.lab("L_epi")
    misc = ["v_add_f32 v%d, v%d, v%d" % (vTc, L, L + 1)] + ["v_add_f32 v%d, v%d, v%d" % (vTc, vTc, L + i) for i in range(2, 7)]
    misc += ["s_mov_b32 s%d, 0x%x" % (sT, THR if not O.force_slow else 0), "s_lshl_b32 s%d, s%d, 2" % (sG, sWv),
             "v_cmp_ngt_f32 vcc, s%d, v%d" % (sT, vTc),
             "s_add_u32 s%d, s%d, 30720" % (sG, sG), "v_mov_b32 v%d, s%d" % (vT, sG),
             "s_cmp_lg_u64 vcc, 0", "s_cselect_b32 s%d, 1, 0" % sT, "v_mov_b32 v%d, 30720" % vT2, "v_mov_b32 v%d, s%d" % (L + 7, sT)]
    a.e("s_nop 1")
    weave(a, pv(6, 1), [misc[2 * i:2 * i + 2] for i in range(7)] + [misc[14:]])
    xl = xlane("v_add_f32", [L + i for i in range(7)], [E + i for i in range(7)])
    w56 = xw(5) + xw(6)
    for i in range(8):
        a.e(w56[i]); a.e(xl[5 * i:5 * i + 5] if i < 7 else xl[35:])
    a.e(["v_add_u32 v%d, s%d, v%d" % (vR + i, sD2, vR + i) for i in range(2)])
    a.e(["ds_write_b128 v%d, %s offset:28672" % (vTa, vr(L, 4)), "ds_write_b128 v%d, %s offset:29696" % (vTa, vr(L + 4, 4)),
         "ds_write_b32 v%d, v%d" % (vT, L + 7), "s_waitcnt lgkmcnt(0)", "s_barrier"])
    stamp(2)
    PL = 208
    a.e(["ds_read_b128 %s, v%d" % (vr(216, 4), vT2), "ds_read_b128 %s, v%d offset:28672" % (vr(PL, 4), vTb), "ds_read_b128 %s, v%d offset:29696" % (vr(PL + 4, 4), vTb)])
    def rdP(rt): return ["ds_read_b128 %s, v%d offset:%d" % (vr(128 + 16 * (rt % 5) + 4 * i, 4), vTb, (rt * 4 + i) * 1024) for i in range(4)]
    for rt in range(3): a.e(rdP(rt))
    a.e(["s_waitcnt lgkmcnt(12)", "v_or3_b32 v216, v216, v217, v218", "v_or_b32 v216, v216, v219"])
    for i in range(7): a.e("v_add_f32 v%d, v%d, v%d" % (L + i, L + i, PL + i))
    a.e(["v_readfirstlane_b32 s%d, v216" % sT])
    for i in range(7): a.e("v_rcp_f32 v%d, v%d" % (L + i, L + i))
    a.e(["s_andn2_b32 s%d, s%d, s%d" % (sT, sT, sPass), "s_cbranch_scc1 L_slow"])
    def wload(k, j):
        if j == 0: a.e(["s_add_u32 m0, s%d, %d" % (sRing, (k & 7) * 4096), setWo(k)])
        vm.issue("w%d" % k); a.e(dma3(j))
    wi = 0
    for rt in range(7):
        if rt + 3 < 7: a.e(rdP(rt + 3))
        a.e("s_waitcnt lgkmcnt(%d)" % (4 * min(3, 6 - rt)))
        pb = 128 + 16 * (rt % 5); ob = OK + 16 * rt; lp = L + rt
        def wnext(k_):
            nonlocal wi
            if k_ < O.w_n and wi < 28 and wi // 4 <= rt: wload(8 + wi // 4, wi % 4); wi += 1
        wnext(0)
        for i in range(8): a.e("v_pk_add_f32 %s, %s, %s" % (vr(ob + 2 * i, 2), vr(ob + 2 * i, 2), vr(pb + 2 * i, 2)))
        wnext(2)
        for i in range(8):
            if lp % 2 == 0: a.e("v_pk_mul_f32 %s, %s, %s op_sel_hi:[1,0]" % (vr(ob + 2 * i, 2), vr(ob + 2 * i, 2), vr(lp, 2)))
            else: a.e("v_pk_mul_f32 %s, %s, %s op_sel:[0,1]" % (vr(ob + 2 * i, 2), vr(ob + 2 * i, 2), vr(lp - 1, 2)))
        wnext(1)
        for i in range(8): a.e("v_cvt_pk_bf16_f32 v%d, v%d, v%d" % (ob + i, ob + 2 * i, ob + 2 * i + 1))
        wnext(3)
        for p in range(2):
            if O.nost and not (rt == 6 and p == 1): continue
            vm.issue("st"); a.e("buffer_store_dwordx4 %s, v%d, s[%d:%d], s%d offen offset:%d %s" % (vr(ob + 4 * p, 4), vL16, sO, sO + 3, sRt + rt, p * 1024, O.st_flags))
    stamp(2)
    ACC3, OF = 16, 128
    vS, vOo, vOut, vPs = 6, 248, 249, 250
    def acc3(rt, sl):
        hb, wv = sl >> 2, sl & 3
        return vr(ACC3 + 16 * rt + 4 * (2 * hb + wv), 4) if wv < 2 else ar(112 + 16 * rt + 4 * (2 * hb + wv - 2), 4)
    for _ in range(min(O.w_late, 28 - wi)): wload(8 + wi // 4, wi % 4); wi += 1
    a.e(flagp(vT, vT2) + ["v_add_u32 v%d, 1, v%d" % (vFo, vFo)])
    a.e(["s_lshl_b32 s%d, s%d, 5" % (sT, sB), "s_add_u32 s%d, s%d, s%d" % (sT, sT, sH), "v_mov_b32 v%d, s%d" % (vT2, sT), "v_mov_b32 v%d, 1" % vT3,
         "v_xor_b32 v243, 0x80, v%d" % vT2])
    for i in range(7): a.e(zero16(ar(112 + 16 * i, 16)))
    a.e(flagc(241) + ["s_lshr_b32 s%d, s%d, 6" % (sT, sOf), "v_add_u32 v%d, s%d, v%d" % (vOo, sT, vL16),
         "s_lshr_b32 s%d, s%d, 1" % (sT, sRB), "s_lshl_b32 s%d, s%d, 5" % (sT, sT), "s_lshl_b32 s%d, s%d, 2" % (sG, sPm), "s_add_u32 s%d, s%d, s%d" % (sT, sT, sG),
         "v_mov_b32 v242, s%d" % sT, "s_mov_b32 s%d, 0x40000" % sCnt])
    for i in range(7): a.e(zero16(vr(ACC3 + 16 * i, 16)))
    a.e(["s_waitcnt vmcnt(%d)" % vm.n("st"), "s_barrier"])
    stamp(2)
    if O.stamps: a.e("s_memrealtime s[6:7]")
    a.e(["s_cmp_lg_u32 s%d, 0" % sWv, "s_cbranch_scc1 L_noflag",
         "s_mov_b64 exec, 0xfffff", "global_store_dword v%d, v%d, s[%d:%d] sc1" % (vT, vFo, pWs, pWs + 1),
         "s_mov_b64 exec, 1", "global_store_byte v%d, v%d, s[%d:%d] sc1" % (vT2, vT3, pDbg, pDbg + 1), "s_mov_b64 exec, -1"])
    a.lab("L_noflag")
    stamp(2)
    def wpieces(lo, hi):
        out = []
        for p_ in range(lo, hi):
            u, j = 8 + p_ // 4, p_ % 4
            out.append((["s_add_u32 m0, s%d, %d" % (sRing, (u & 7) * 4096), setWo(u)] if j == 0 else [], ("w%d" % u, dma3(j))))
        return out
    if O.dynw:
        a.e(["s_mov_b64 exec, 31", "global_load_dword v%d, v241, s[%d:%d] sc1" % (vT, pWs, pWs + 1), "s_waitcnt vmcnt(0)", "v_cmp_eq_u32 vcc, v%d, v%d" % (vT, vFc), "s_nop 0", "s_cbranch_vccz L_go", "s_mov_b64 exec, -1"])
        for pre, op in wpieces(wi, 32): a.e(pre + [op[1]])
    a.e("s_mov_b64 exec, 31")
    a.lab("L_poll")
    a.e(["global_load_dword v%d, v241, s[%d:%d] sc1" % (vT, pWs, pWs + 1), "s_sub_u32 s%d, s%d, 1" % (sCnt, sCnt), "s_cbranch_scc1 L_go",
         "s_waitcnt vmcnt(0)", "v_cmp_eq_u32 s[%d:%d], v%d, v%d" % (sC, sC + 1, vT, vFc), "s_nop 0", "s_cmp_eq_u64 s[%d:%d], 0" % (sC, sC + 1), "s_cbranch_scc1 L_go",
         "s_and_b32 s%d, s%d, 15" % (sT, sCnt), "s_cbranch_scc1 L_poll",
         "global_load_dword v%d, v242, s[%d:%d] sc1" % (vT, pDbg, pDbg + 1), "global_load_ubyte v%d, v243, s[%d:%d] sc1" % (vT2, pDbg, pDbg + 1), "s_waitcnt vmcnt(0)",
         "v_add_u32 v%d, v%d, v%d" % (vT, vT, vT2), "s_nop 0", "v_readfirstlane_b32 s%d, v%d" % (sT, vT),
         "s_nop 0", "s_cmp_eq_u32 s%d, 0x01010102" % sT, "s_cbranch_scc0 L_poll"])
    a.lab("L_go")
    a.e("s_mov_b64 exec, -1")
    if O.wggo: a.e("s_barrier")
    stamp()
    if O.stamps: a.e(["s_memrealtime s[4:5]", "s_mov_b32 s10, s%d" % sCnt])
    def ldO(rt, k): return "buffer_load_dwordx4 %s, v%d, s[%d:%d], s%d offen sc1" % (vr(OF + 28 * (k & 3) + 4 * rt, 4), vOo, sOs, sOs + 3, sRt + rt)
    def incO(k): return "v_xor_b32 v%d, 0x%x, v%d" % (vOo, (k ^ (k + 1)) << 10, vOo)
    for k in range(2):
        for rt in range(7): vm.issue("o%d" % k); a.e(ldO(rt, k))
        a.e(incO(k))
    a.e(["v_add_u32 v%d, s%d, v%d" % (vS, sRing, vL16)])
    for i in range(1, 4): a.e(["v_xor_b32 v%d, 0x%x, v%d" % (vS + i, i << 15, vS)])
    a.e(["v_and_b32 v%d, 15, v%d" % (vT, vL), "v_lshrrev_b32 v%d, 4, v%d" % (vT2, vL), "v_lshlrev_b32 v%d, 3, v%d" % (vT2, vT2),
         "v_lshl_add_u32 v%d, v%d, 11, v%d" % (vT, vT, vT2),
         "s_lshl_b32 s%d, s%d, 8" % (sT, sCT), "s_lshl_b32 s%d, s%d, 5" % (sG, sPm), "s_add_u32 s%d, s%d, s%d" % (sT, sT, sG),
         "v_add_u32 v%d, s%d, v%d" % (vOut, sT, vT)] + boxaddr(vPs) + ["v_xor_b32 v%d, 0x8000, v%d" % (vPs + 1, vPs)])
    a.e(["s_waitcnt vmcnt(%d)" % (vm.n("o0") + 6)])
    def redw(rt, hb, wv): return "ds_write_b128 v%d, %s offset:%d" % (vS, acc3(rt, 4 * hb + wv), (wv - 1) * 7168 + rt * 1024)
    def redr(rt, wv, d): return "ds_read_b128 %s, v%d offset:%d" % (vr(d, 4), vS + wv, (wv - 1) * 7168 + rt * 1024)
    def mf3(rt, sl, k): return mfma(acc3(rt, sl), ar(wset(k) + 4 * sl, 4), vr(OF + 28 * (k & 3) + 4 * rt, 4), acc3(rt, sl))
    def emit(mf, gaps):
        for m_, g_ in zip(mf, gaps):
            a.e(m_)
            for x in g_:
                if isinstance(x, tuple):
                    if x[0] == "wait": a.e("s_waitcnt vmcnt(%d)%s" % (min(vm.n(t_) for t_ in x[1]), " lgkmcnt(0)" if x[2] else ""))
                    elif x[0] == "wait0": a.e("s_waitcnt vmcnt(%d)" % (vm.n("o0") + x[1]))
                    elif isinstance(x[1], list):
                        nsk[0] += 1
                        for _ in range(4): vm.issue(x[0], True)
                        a.e(["s_cbranch_vccnz L_sk%d" % nsk[0]] + x[1]); a.lab("L_sk%d" % nsk[0])
                    elif (O.dbg3 & 1 and x[0][0] == "w") or (O.dbg3 & 2 and x[0][0] == "o" and int(x[0][1:]) > 3): vm.issue(x[0])
                    else: vm.issue(x[0]); a.e(x[1])
                elif O.dbg3 & 4 and x.startswith("ds_read_b64"): pass
                else: a.e(x)
    nsk = [0]
    ws0, ws1 = 2, O.ws1
    pstep = [ws0 + (p_ * (ws1 - ws0)) // 64 for p_ in range(64)]
    rstep = {m_: m_ - 3 for m_ in range(4, 8)}
    for m_ in range(8, 16):
        rstep[m_] = max(m_ - 3, pstep[8 * (m_ - 8) + 7] + 2)
        assert pstep[8 * (m_ - 8)] > rstep[m_ - 4] and rstep[m_] <= min(m_ - 1, 13) and (m_ == 15 or rstep[m_] <= 12), m_
    for k in range(13):
        mf = [mf3(rt, sl, k) for rt in range(7) for sl in range(8)]
        gaps = [[] for _ in range(56)]
        rds = [m_ for m_ in rstep if rstep[m_] == k]
        for g, x in enumerate([y for m_ in rds for y in rd3(m_, (m_ & 3) * 8192)]): gaps[g].append(x)
        wl = []
        if k < 3:
            assert wi % 4 == 0 and wi >= 8 and O.dynw
            us = list(range(wi // 4, 8)); us = us[(len(us) * k) // 3:(len(us) * (k + 1)) // 3]
            wl = [([], ("w%d" % (8 + u_), [y for pre, op in wpieces(4 * u_, 4 * u_ + 4) for y in pre + [op[1]]])) for u_ in us]
        ps_ = [p_ for p_ in range(64) if pstep[p_] == k]
        if ps_: wl += wpieces(32 + ps_[0], 32 + ps_[-1] + 1)
        ol = [([], ("o%d" % kk_, ldO(rt, kk_))) + ((incO(kk_),) if rt == 6 else ()) for kk_ in ([2, 3] if k == 0 else [k + 3]) for rt in range(7)]
        ld = sorted([((i_ + 0.5) / len(wl), x) for i_, x in enumerate(wl)] + [((i_ + 0.25) / len(ol), x) for i_, x in enumerate(ol)], key=lambda t_: t_[0])
        for i_, (_, x) in enumerate(ld):
            g = 1 + (i_ * 53) // len(ld)
            gaps[g - 1] += x[0]; gaps[g].insert(0, x[1])
            if len(x) > 2: gaps[g].append(x[2])
        if k == 0:
            for rt in range(1, 7): gaps[8 * rt - 1].append(("wait0", 6 - rt))
        need_ = ["o%d" % (k + 1)] + ["w%d" % (2 * m_ + 1) for m_ in rstep if rstep[m_] == k + 1]
        gaps[55].append(("wait", need_, bool(rds)))
        emit(mf, gaps)
    mf = [mf3(rt, 4 * hb + wv, k) for hb in (1, 0) for k in (13, 14, 15) for rt in range(7) for wv in range(4)]
    gaps = [[] for _ in range(168)]
    if rstep[15] == 13:
        for g, x in enumerate(rd3(15, 3 * 8192)): gaps[g].append(x)
    gaps[27].append(("wait", ["o14"], False)); gaps[55].append(("wait", ["o15"], True))
    for rt in range(7):
        for wv in range(1, 4): gaps[56 + 4 * rt + wv + 8].append(redw(rt, 1, wv))
    gaps[94].append("s_waitcnt lgkmcnt(0)"); gaps[95].append("s_barrier")
    def tmp1(rt, wv): return (ACC3 + 16 * rt + 12, OF + 4 * rt, OF + 28 + 4 * rt)[wv - 1]
    for rt in range(7):
        g = 96 + 4 * rt
        gaps[g] += [redr(rt, 1, tmp1(rt, 1)), redr(rt, 2, tmp1(rt, 2))]; gaps[g + 1].append(redr(rt, 3, tmp1(rt, 3)))
    for rt in range(7):
        g = 96 + 4 * rt + 6; b = ACC3 + 16 * rt + 8
        gaps[g - 1].append("s_waitcnt lgkmcnt(%d)" % (3 if rt < 6 else 0))
        ads = ["v_add_f32 v%d, v%d, v%d" % (b + i, b + i, tmp1(rt, 1) + i) for i in range(4)]
        ads += ["v_add_f32 v%d, v%d, v%d" % (tmp1(rt, 2) + i, tmp1(rt, 2) + i, tmp1(rt, 3) + i) for i in range(4)]
        ads += ["v_add_f32 v%d, v%d, v%d" % (b + i, b + i, tmp1(rt, 2) + i) for i in range(4)]
        gaps[g] += ads[0:4]; gaps[g + 1] += ads[4:8]; gaps[g + 2] += ads[8:10]; gaps[g + 3] += ads[10:12]
        gaps[g + 4].insert(0, ("ps", "global_store_dwordx4 v%d, %s, s[%d:%d] offset:%d sc1" % (vPs + 1, vr(b, 4), pWs, pWs + 1, rt * 1024 - 3072)))
    gaps[132].append("s_barrier")
    gaps[134].append("v_add_u32 v%d, 1, v%d" % (vT2, vFc))
    gaps[O.f2gap] += ["s_waitcnt vmcnt(0)", "s_mov_b64 exec, 64", "global_store_dword v241, v%d, s[%d:%d] sc1" % (vT2, pWs, pWs + 1), "s_mov_b64 exec, -1"]
    lastw = []
    for rt in range(7):
        for wv in range(1, 4):
            g2 = 140 + 4 * rt + wv + 8
            if g2 < 168: gaps[g2].insert(0, redw(rt, 0, wv))
            else: lastw.append(redw(rt, 0, wv))
    emit(mf, gaps)
    stamp()
    PB = OF + 84
    ldP = ["global_load_dwordx4 %s, v%d, s[%d:%d] offset:%d sc1" % (vr(PB + 4 * rt, 4), vPs, pWs, pWs + 1, rt * 1024 - 3072) for rt in range(7)]
    pl2 = "global_load_dword v%d, v241, s[%d:%d] sc1" % (vT, pWs, pWs + 1)
    a.e(["s_mov_b64 exec, 32", pl2, "s_mov_b64 exec, -1"] + lastw[:3] + ["s_nop 1"] + lastw[3:] + ["s_mov_b32 s%d, 0x40000" % sCnt, "s_waitcnt lgkmcnt(0)", "s_barrier"])
    for rt in range(7):
        for wv in range(1, 4): a.e(redr(rt, wv, OF + 12 * rt + 4 * (wv - 1)))
    a.e("s_mov_b64 exec, 32")
    a.lab("L_poll2")
    a.e(["s_waitcnt vmcnt(0)", "v_cmp_eq_u32 vcc, v%d, v%d" % (vT, vFc), "s_sub_u32 s%d, s%d, 1" % (sCnt, sCnt), "s_cbranch_vccz L_go2", "s_cbranch_scc1 L_go2", pl2, "s_branch L_poll2"])
    a.lab("L_go2")
    a.e(["s_mov_b64 exec, -1"] + ldP)
    for rt in range(7):
        a.e("s_waitcnt lgkmcnt(%d)" % min(15, 3 * (6 - rt)))
        b = ACC3 + 16 * rt; t = OF + 12 * rt
        for h in range(2):
            a.e("v_pk_add_f32 %s, %s, %s" % (vr(b + 2 * h, 2), vr(b + 2 * h, 2), vr(t + 2 * h, 2)))
            a.e("v_pk_add_f32 %s, %s, %s" % (vr(t + 4 + 2 * h, 2), vr(t + 4 + 2 * h, 2), vr(t + 8 + 2 * h, 2)))
        for h in range(2): a.e("v_pk_add_f32 %s, %s, %s" % (vr(b + 2 * h, 2), vr(b + 2 * h, 2), vr(t + 4 + 2 * h, 2)))
    for rt in range(7):
        b = ACC3 + 16 * rt; t = PB + 4 * rt
        a.e(["s_waitcnt vmcnt(6)"] + ["v_pk_add_f32 %s, %s, %s" % (vr(b + 2 * h, 2), vr(b + 2 * h, 2), vr(t + 2 * h, 2)) for h in range(2)])
        a.e(["v_cvt_pk_bf16_f32 v%d, v%d, v%d" % (b, b, b + 1), "v_cvt_pk_bf16_f32 v%d, v%d, v%d" % (b + 1, b + 2, b + 3),
             "s_mov_b32 s%d, %d" % (sT, rt * 32768),
             "buffer_store_dwordx2 %s, v%d, s[%d:%d], s%d offen %s" % (vr(b, 2), vOut, sOut, sOut + 3, sT, O.out_flags)])
    if O.stamps:
        a.e(["s_waitcnt vmcnt(0)"])
        if not O.ts: stamp()
        a.e(["s_memrealtime s[78:79]", "s_waitcnt lgkmcnt(0)", "s_lshl_b32 s%d, s2, 2" % sT, "s_add_u32 s%d, s%d, s%d" % (sT, sT, sWv), "s_lshl_b32 s%d, s%d, 6" % (sT, sT),
             "s_add_u32 s%d, s%d, 0x%x" % (sT, sT, STAMP_OFF),
             "s_add_u32 s%d, s%d, s%d" % (sO, pWs, sT), "s_addc_u32 s%d, s%d, 0" % (sO + 1, pWs + 1), "s_mov_b32 s%d, 64" % (sO + 2), "v_mov_b32 v%d, 0" % vT])
        for i in range(nst[0]):
            a.e(["s_sub_u32 s%d, s%d, s%d" % (sT, sST + 2 * i, sST), "v_mov_b32 v%d, s%d" % (vT2, sT),
                 "buffer_store_dword v%d, v%d, s[%d:%d], 0 offen offset:%d" % (vT2, vT, sO, sO + 3, 4 * i)])
        for i, r_ in enumerate((10, 6, 4, sST, 78)):
            a.e(["v_mov_b32 v%d, s%d" % (vT2, r_), "buffer_store_dword v%d, v%d, s[%d:%d], 0 offen offset:%d" % (vT2, vT, sO, sO + 3, 44 + 4 * i)])
    if O.ts:
        a.e(["s_lshl_b32 s%d, s2, 9" % sT, "s_add_u32 s%d, s%d, 0x%x" % (sT, sT, STAMP_OFF + 0x200000),
             "s_add_u32 s%d, s%d, s%d" % (sO, pWs, sT), "s_addc_u32 s%d, s%d, 0" % (sO + 1, pWs + 1), "s_mov_b32 s%d, 512" % (sO + 2),
             "v_lshlrev_b32 v%d, 2, v%d" % (vT, vL), "buffer_store_dword v252, v%d, s[%d:%d], 0 offen" % (vT, sO, sO + 3)])
    a.lab("L_end")
    a.e("s_endpgm")

    if O.wo_at >= 100:
        a.lab("L_wopf")
        a.e(["s_lshl_b32 s%d, s2, 2" % sT, "s_add_u32 s%d, s%d, s%d" % (sT, sT, sWv), "s_lshl_b32 s%d, s%d, 13" % (sT, sT),
             "v_lshlrev_b32 v%d, 7, v%d" % (vT, vL), "v_add_u32 v%d, s%d, v%d" % (vT, sT, vT),
             "global_load_dword v%d, v%d, s[%d:%d]" % (vDum, vT, pWo, pWo + 1), "s_branch L_wopf_ret"])
    a.lab("L_slow")
    a.e(["s_waitcnt vmcnt(0) lgkmcnt(0)", "s_barrier", "s_mov_b32 s%d, 1" % sPass] + lane_setup() + ["s_branch L_restart"])
    a.lab("L_maxpass")
    a.e(["s_waitcnt vmcnt(0) lgkmcnt(0)", "s_barrier"] + Cq(6) + ["s_mov_b32 s%d, 16" % sCnt] + setK(0))
    a.e([zero16(ar(176 + 16 * i, 16)) for i in range(3)] + ["s_nop 7"])
    for rt in range(7): a.e("v_mov_b32 v%d, 0xff800000" % (M + 4 * rt))
    a.lab("L_slow_loop")
    a.e(kvtile(0))
    a.e(["s_waitcnt vmcnt(0)", "s_barrier"])
    a.e([rdK(i, 0) for i in range(8)])
    a.e(["s_waitcnt lgkmcnt(0)", "s_barrier"])
    for rt in range(7):
        for i in range(8):
            t, ks = i & 1, i >> 1
            d = vr(S + 4 * t, 4)
            a.e(mfma(d, ar(aK + 16 * t + 4 * ks, 4), ar(aQ + 16 * rt + 4 * ks, 4), "0" if ks == 0 else d))
        a.e("s_nop 7")
        for i in range(4): a.e("v_max3_f32 v%d, v%d, v%d, v%d" % (M + 4 * rt, M + 4 * rt, S + 2 * i, S + 2 * i + 1))
    a.e(["s_sub_u32 s%d, s%d, 1" % (sCnt, sCnt), "s_cmp_lg_u32 s%d, 0" % sCnt, "s_cbranch_scc1 L_slow_loop"])
    a.e(xlane("v_max_f32", [M + 4 * rt for rt in range(7)], [M + 4 * rt + 1 for rt in range(7)]))
    a.e(["v_add_u32 v%d, s%d, v%d" % (vTc, sSp, vL16), "v_xor_b32 v%d, 16384, v%d" % (vT3, vTc)])
    for rt in range(7): a.e("ds_write_b32 v%d, v%d offset:%d" % (vTc, M + 4 * rt, rt * 1024))
    a.e(["s_waitcnt lgkmcnt(0)", "s_barrier"])
    for rt in range(7): a.e("ds_read_b32 v%d, v%d offset:%d" % (M + 4 * rt + 1, vT3, rt * 1024))
    a.e(setK(0))
    for tl in range(3 - O.lag): a.e(kvtile(tl))
    a.e("s_waitcnt lgkmcnt(0)")
    for rt in range(7): a.e("v_max_f32 v%d, v%d, v%d" % (M + 4 * rt, M + 4 * rt, M + 4 * rt + 1))
    a.e(["s_waitcnt vmcnt(%d)" % (8 - 8 * O.lag), "s_barrier"])
    a.e([rdK(i, 0) for i in range(8)])
    a.e([zero16(vr(V, 16)), zero16(vr(V + 16, 16))])
    a.e(["v_sub_f32 v%d, 0, v%d" % (M + 4 * rt + i, M + 4 * rt) for rt in range(7) for i in (1, 2, 3, 0)])
    a.e(["v_mov_b32 v%d, 0" % i for i in range(L, L + 7)] + ["v_mov_b32 v%d, 0" % i for i in range(P + 4, P + 8)])
    a.e(["s_mov_b32 s%d, 3" % sCnt, "s_waitcnt lgkmcnt(0)"] + qk(0, 0) + ["s_nop 7", "s_branch L_loop"])

def build():
    ref = open("cdna_kernels/%s.s.ref" % NAME).read()
    hdr = ref.split("; Override launch")[0]
    a = Asm()
    k = NAME + "_kernel"
    a.raw(".amdgcn_target \"amdgcn-amd-amdhsa--gfx950\"\n.text")
    a.raw(".globl %s\n.p2align 8\n.type %s,@function" % (k, k))
    kernel(a)
    for e in check(a.L): print(e, file=sys.stderr)
    t = hdr + "; @launch grid=(256,1,1) block=(256,1,1) lds=163840\n" + a.text()
    t += """.section .rodata,"a"
.p2align 6
.amdhsa_kernel %s
  .amdhsa_next_free_vgpr 512
  .amdhsa_next_free_sgpr 102
  .amdhsa_accum_offset 256
  .amdhsa_group_segment_fixed_size 0
  .amdhsa_kernarg_size 64
  .amdhsa_user_sgpr_count 2
  .amdhsa_user_sgpr_kernarg_segment_ptr 1
  .amdhsa_system_sgpr_workgroup_id_x 1
.end_amdhsa_kernel
""" % k
    return t

if __name__ == "__main__":
    out = sys.argv[1] if len(sys.argv) > 1 else "cdna_kernels/%s.s" % NAME
    for kv in sys.argv[2:]:
        k, v = kv.split("=")
        cur = getattr(O, k)
        setattr(O, k, (v == "1") if isinstance(cur, bool) else type(cur)(v))
    open(out, "w").write(build())
```

```python
import sys, math, struct
from asmlib import *

NAME = "standalone__mha_block_cached__near_ridge"
def f32(x): return struct.unpack("<I", struct.pack("<f", x))[0]
CSCALE = f32(128 ** -0.5 * math.log2(math.e))
THR = f32(2.0 ** 30)

class Opt:
    stamps = False
    ts = False
    kv_nt = True
    nxe = 5
    p1_span = 26
    force_slow = False
    pf_xw = True
    pf_wo = True
    pf_code = True
    w_n = 0
    w_late = 8
    wl2 = 0
    out_flags = ""
    pfl = 0
    burst = 4
    ws1 = 12
    dbg3 = 0
    f2gap = 156
    wo2 = "0.3,2.2"
    lag = 0
    ilv = True
    pts = "5.13,6.3,6.9,6.13"
    th = 5
    dmax = 1
    force_skip = 0
    pack = True
    verbose = False
    x1mask = 0
    rd_first = False
    wqc = False
    tb4 = False
    wo_r = 3
    bstep = 2
    t3late = False
    wo_at = 1
    dynw = True
    wggo = False
    olook = 3
    sset = 1
    nost = False
    st_flags = "sc1"
    x3mask = 7
    burn = 0
    tsched = 1
    pf_flags = ""
    wpf = 0
O = Opt()
STAMP_OFF = 0x8000000
FLAG_OFF = 0x1000000
PART_OFF = 0x2000000

def zero16(d): return "v_mfma_f32_32x32x16_bf16 %s, v[12:15], v[12:15], 0" % d

class VM:
    def __init__(self, init): self.ops = list(init)
    def issue(self, tag, opt=False): self.ops.append(tag + "?" if opt else tag)
    def n(self, tag):
        idx = max(i for i, t in enumerate(self.ops) if t.rstrip("?") == tag)
        if self.ops[idx].endswith("?"): return min(63, len(self.ops) - 1 - idx)
        return min(63, sum(1 for t in self.ops[idx + 1:] if not t.endswith("?")))

def kernel(a):
    KVF = " nt" if O.kv_nt else ""
    pX, pK, pV, pWq, pWo, pOut, pDbg, pWs = 4, 6, 8, 10, 12, 14, 16, 18
    sX, sW, sKV, sO, sOs, sWs, sOut = 20, 24, 28, 32, 36, 40, 44
    (sWv, sB, sH, sRH, sKH, sXoff, sWoff, sCnt, sMX, sMW, sReg, sRing, sSp, sG, sFlip, sK0, sPass, sT, sT2, sRB, sCT, sWo, sD1, sD2) = range(48, 72)
    sP = 3 if not O.ts else 81
    sOf = 1; sPm = 0
    sC = 72; sRt = 74; sPC = 82; sVV = 84; sST = 88; sK1 = sFlip
    KH, TS_ = (8192, 16384) if O.ilv else (131072, 8192)
    vL, vT, vT2, vT3, vL16 = 1, 2, 3, 4, 5
    vKV, vW = 6, 10
    OK, ACC = 16, 128
    M, S, E, P, V, L = 128, 156, 172, 180, 188, 220
    vTa, vTb, vTc = 237, 238, 236
    E2 = 228
    vX, vXr, vWr = 240, 247, 251
    vKr, vVr, vK0 = 240, 241, 243
    vD, vR = 244, 10
    vQw, vQr = 2, 3
    PK = 16
    vFo, vFc, vDum = 254, 255, 253
    vCp = 0
    aQ, aO, aK = 0, 112, 224
    aXF, aWF = 0, 224
    nst = [0]
    def stamp(m=3):
        if O.stamps and (m & O.sset):
            assert nst[0] < 7
            a.e("s_memrealtime s[%d:%d]" % (sST + 2 * nst[0], sST + 2 * nst[0] + 1)); nst[0] += 1
    def flagp(v, t):
        return ["s_and_b32 s%d, s%d, 1" % (sT, sB), "s_lshl_b32 s%d, s%d, 6" % (sT, sT), "s_lshr_b32 s%d, s%d, 1" % (sG, sB), "s_lshl_b32 s%d, s%d, 3" % (sG, sG),
                "s_add_u32 s%d, s%d, s%d" % (sT, sT, sG), "s_lshr_b32 s%d, s%d, 2" % (sG, sH), "s_add_u32 s%d, s%d, s%d" % (sT, sT, sG), "s_lshl_b32 s%d, s%d, 7" % (sT, sT),
                "s_and_b32 s%d, s%d, 3" % (sG, sH), "s_lshl_b32 s%d, s%d, 2" % (sG, sG), "s_add_u32 s%d, s%d, s%d" % (sT, sT, sG), "s_add_u32 s%d, s%d, 0x%x" % (sT, sT, FLAG_OFF),
                "v_lshrrev_b32 v%d, 1, v%d" % (v, vL), "v_lshlrev_b32 v%d, 14, v%d" % (v, v), "v_and_b32 v%d, 1, v%d" % (t, vL),
                "v_lshl_add_u32 v%d, v%d, 12, v%d" % (v, t, v), "v_add_u32 v%d, s%d, v%d" % (v, sT, v),
                "s_xor_b32 s%d, s2, 1" % sT, "s_lshl_b32 s%d, s%d, 9" % (sT, sT), "s_add_u32 s%d, s%d, 0x%x" % (sT, sT, FLAG_OFF + 16),
                "v_and_b32 v%d, 3, v%d" % (t, vL), "v_lshlrev_b32 v%d, 7, v%d" % (t, t), "v_cmp_gt_u32 vcc, 16, v%d" % vL, "v_add_u32 v%d, s%d, v%d" % (t, sT, t),
                "s_nop 0", "v_cndmask_b32 v%d, v%d, v%d, vcc" % (v, t, v)]
    def flagc(v):
        return ["s_lshl_b32 s%d, s2, 2" % sT, "s_add_u32 s%d, s%d, s%d" % (sT, sT, sWv), "s_lshl_b32 s%d, s%d, 7" % (sT, sT), "s_add_u32 s%d, s%d, 0x%x" % (sT, sT, FLAG_OFF),
                "v_min_u32 v%d, 5, v%d" % (v, vL), "v_lshlrev_b32 v%d, 2, v%d" % (v, v), "v_add_u32 v%d, s%d, v%d" % (v, sT, v),
                "s_mov_b64 exec, 64", "v_xor_b32 v%d, 0x200, v%d" % (v, v), "s_mov_b64 exec, -1"]
    def boxaddr(v):
        return ["s_lshl_b32 s%d, s2, 2" % sT, "s_add_u32 s%d, s%d, s%d" % (sT, sT, sWv), "s_lshl_b32 s%d, s%d, 13" % (sT, sT),
                "s_add_u32 s%d, s%d, 0x%x" % (sT, sT, PART_OFF + 3072), "v_add_u32 v%d, s%d, v%d" % (v, sT, vL16)]
    def codepf(lo, hi, t0):
        return ["v_min_u32 v%d, %s-%s-4, v%d" % (t0, hi, lo, vCp), "v_add_u32 v%d, %s-L_pc, v%d" % (t0, lo, t0),
                "v_mov_b32 v%d, s%d" % (t0 + 1, sPC + 1), "v_add_co_u32 v%d, vcc, s%d, v%d" % (t0, sPC, t0), "s_nop 1",
                "v_addc_co_u32 v%d, vcc, 0, v%d, vcc" % (t0 + 1, t0 + 1), "global_load_dword v%d, v[%d:%d], off" % (vDum, t0, t0 + 1)]

    a.lab(NAME + "_kernel")
    a.e(["s_cmp_ge_u32 s2, 256", "s_cbranch_scc1 L_end",
         "s_load_dwordx8 s[4:11], s[0:1], 0", "s_load_dwordx8 s[12:19], s[0:1], 32"])
    stamp(7)
    a.e(["s_getpc_b64 s[%d:%d]" % (sPC, sPC + 1)])
    a.lab("L_pc")
    a.e(["v_and_b32 v%d, 63, v0" % vL, "v_lshrrev_b32 v%d, 6, v0" % vT,
         "s_and_b32 s%d, s2, 7" % sT, "s_lshr_b32 s%d, s2, 3" % sT2,
         "v_readfirstlane_b32 s%d, v%d" % (sWv, vT),
         "v_min_u32 v%d, 2, v%d" % (vCp, vL), "v_lshl_add_u32 v%d, v%d, 2, v%d" % (vCp, vCp, vT), "v_lshlrev_b32 v%d, 5, v%d" % (vCp, vCp),
         "v_add_lshl_u32 v%d, v%d, s%d, 7" % (vCp, vCp, sT2)])
    if O.pf_code: a.e(codepf("L_pc", "L_end", vT))
    a.e(["s_mov_b32 s%d, 0" % sPass,
         "s_and_b32 s%d, s%d, 1" % (sB, sT), "s_lshl_b32 s%d, s%d, 2" % (sB, sB),
         "s_and_b32 s%d, s%d, 3" % (sG, sT2), "s_add_u32 s%d, s%d, s%d" % (sB, sB, sG),
         "s_lshr_b32 s%d, s%d, 1" % (sH, sT), "s_lshl_b32 s%d, s%d, 2" % (sRB, sH), "s_add_u32 s%d, s%d, s%d" % (sRB, sRB, sG), "s_lshl_b32 s%d, s%d, 3" % (sH, sH),
         "s_lshr_b32 s%d, s%d, 2" % (sCT, sT2), "s_add_u32 s%d, s%d, s%d" % (sH, sH, sCT),
         "s_and_b32 s%d, s%d, 1" % (sRH, sWv), "s_lshr_b32 s%d, s%d, 1" % (sKH, sWv)])
    a.e(["s_lshl_b32 s%d, s%d, 15" % (sMX, sKH), "s_mul_i32 s%d, s%d, 7168" % (sT, sRH),
         "s_add_u32 s%d, s%d, s%d" % (sMX, sMX, sT), "s_add_u32 s%d, s%d, 16384" % (sMX, sMX),
         "s_lshl_b32 s%d, s%d, 11" % (sMW, sWv), "s_add_u32 s%d, s%d, 131072" % (sMW, sMW),
         "s_lshl_b32 s%d, s%d, 15" % (sReg, sWv),
         "s_mov_b32 s%d, 458752" % (sX + 2), "s_mov_b32 s%d, 0x20000" % (sX + 3), "s_mov_b32 s%d, 0x20000" % (sW + 3),
         "s_mul_i32 s%d, s%d, 458752" % (sD1, sB), "s_lshl_b32 s%d, s%d, 8" % (sD2, sH), "s_sub_u32 s%d, 0x800000, s%d" % (sW + 2, sD2)])
    def lane_setup():
        o = ["v_lshrrev_b32 v%d, 3, v%d" % (vT, vL), "v_and_b32 v%d, 7, v%d" % (vT2, vL), "v_and_b32 v%d, 6, v%d" % (vT3, vT),
             "v_xor_b32 v%d, v%d, v%d" % (vT3, vT3, vT2), "v_lshlrev_b32 v%d, 4, v%d" % (vT3, vT3),
             "v_lshl_add_u32 v%d, v%d, 11, v%d" % (vX, vT, vT3),
             "s_mul_i32 s%d, s%d, %d" % (sT, sWv, 7 * 16384), "v_add_u32 v%d, s%d, v%d" % (vX, sT, vX)]
        o += ["v_add_u32 v%d, %d, v%d" % (vX + j, j * 16384 - (j & 3) * 1024, vX) for j in range(1, 7)]
        o += ["v_and_b32 v%d, 2, v%d" % (vT3, vT), "v_lshlrev_b32 v%d, 1, v%d" % (vT3, vT3),
              "v_xor_b32 v%d, v%d, v%d" % (vT3, vT3, vT2), "v_lshlrev_b32 v%d, 4, v%d" % (vT3, vT3),
              "v_lshl_add_u32 v%d, v%d, 13, v%d" % (vW, vT, vT3),
              "s_lshl_b32 s%d, s%d, 17" % (sT, sRH), "s_lshl_b32 s%d, s%d, 7" % (sG, sKH), "s_add_u32 s%d, s%d, s%d" % (sT, sT, sG),
              "v_add_u32 v%d, s%d, v%d" % (vW, sT, vW), "v_add_u32 v%d, %d, v%d" % (vW + 1, 8 * 8192 - 1024, vW)]
        return o
    a.e(lane_setup())
    a.e(["s_waitcnt lgkmcnt(0)",
         "s_add_u32 s%d, s%d, s%d" % (sW, pWq, sD2), "s_addc_u32 s%d, s%d, 0" % (sW + 1, pWq + 1),
         "s_add_u32 s%d, s%d, s%d" % (sX, pX, sD1), "s_addc_u32 s%d, s%d, 0" % (sX + 1, pX + 1)])
    stamp(4)
    a.lab("L_restart")

    TS_A = ["s_memrealtime s[100:101]"]
    TS_B = ["s_mov_b32 s3, m0", "s_mov_b32 m0, s81", "v_writelane_b32 v252, s100, m0", "s_add_u32 s81, s81, 1", "s_mov_b32 m0, s3"]
    def dmaX(j): return "buffer_load_dwordx4 v%d, s[%d:%d], s%d offen offset:%d lds" % (vX + j, sX, sX + 3, sXoff, (j & 3) * 1024)
    def m0X(buf, hi): return "s_add_u32 m0, s%d, %d" % (sMX, buf * 65536 + hi * 4096)
    def dmaW(j): return "buffer_load_dwordx4 v%d, s[%d:%d], s%d offen offset:%d lds" % (vW + j, sW, sW + 3, sWoff, j * 1024)
    def m0W(slot): return "s_add_u32 m0, s%d, %d" % (sMW, slot * 8192)
    def ptm0(reg, slot): return "s_add_u32 m0, s%d, %d" % (sMW, (reg * 32768 + slot * 8192 - 131072) & 0xffffffff)
    def ptld(reg): return ["buffer_load_dwordx4 v%d, s[%d:%d], s%d offen offset:%d%s lds" % (vKV + (2 if reg == 3 else 0) + j, sVV if reg & 1 else sKV, (sVV if reg & 1 else sKV) + 3,
                           sK1 if reg >> 1 else sK0, j * 1024, KVF) for j in range(2)]
    incK = ["s_add_u32 s%d, s%d, %d" % (sK0, sK0, TS_), "s_add_u32 s%d, s%d, %d" % (sK1, sK1, TS_)]
    def setK(tile): return ["s_mov_b32 s%d, %d" % (sK0, tile * TS_), "s_mov_b32 s%d, %d" % (sK1, tile * TS_ + KH)]
    PORD = (0, 2, 1, 3)
    def kvtile(slot): return [x for reg in PORD for x in [ptm0(reg, slot), "s_nop 0"] + ptld(reg)] + incK
    sXl, sWl, sOx, sOw = 10, 11, sWo, sK0
    incW = ["s_add_u32 s%d, s%d, 262144" % (sWl, sWl), "s_xor_b32 s%d, s%d, s%d" % (sWoff, sWl, sOw)]
    incX = ["s_add_u32 s%d, s%d, 128" % (sXl, sXl), "s_xor_b32 s%d, s%d, s%d" % (sXoff, sXl, sOx)]

    a.e(["s_mov_b32 s%d, 0" % sXl, "s_mov_b32 s%d, 0" % sWl, "s_xor_b32 s%d, s%d, s%d" % (sT, sB, sH), "s_and_b32 s%d, s%d, %d" % (sT, sT, O.x1mask),
         "s_lshl_b32 s%d, s%d, 19" % (sOw, sT), "s_lshl_b32 s%d, s%d, 7" % (sOx, sT), "s_mov_b32 s%d, s%d" % (sWoff, sOw), "s_mov_b32 s%d, s%d" % (sXoff, sOx)])
    def stage_loads(st):
        return ([m0W(2 * st), "s_nop 0", dmaW(0), dmaW(1), m0X(st, 0)] + incW + [dmaX(j) for j in range(4)] + [m0X(st, 1), "s_nop 0"] + [dmaX(j) for j in range(4, 7)]
                + [m0W(2 * st + 1)] + incX + [dmaW(0), dmaW(1)] + incW)
    a.e(stage_loads(0))
    stamp(4)
    a.e(["v_mov_b32 v%d, 0" % i for i in range(12, 16)])
    su0 = len(a.L)
    a.e(["s_lshl_b32 s%d, s%d, 5" % (sT, sB), "s_add_u32 s%d, s%d, s%d" % (sT, sT, sH), "s_lshl_b32 s%d, s%d, 18" % (sT, sT),
         "s_add_u32 s%d, s%d, s%d" % (sKV, pK, sT), "s_addc_u32 s%d, s%d, 0" % (sKV + 1, pK + 1),
         "s_mov_b32 s%d, 0x40000" % (sKV + 2), "s_mov_b32 s%d, 0x20000" % (sKV + 3),
         "s_add_u32 s%d, s%d, s%d" % (sVV, pV, sT), "s_addc_u32 s%d, s%d, 0" % (sVV + 1, pV + 1),
         "s_mov_b32 s%d, 0x40000" % (sVV + 2), "s_mov_b32 s%d, 0x20000" % (sVV + 3),
         "v_bfe_u32 v%d, v%d, 2, 2" % (vT, vL), "v_lshrrev_b32 v%d, 4, v%d" % (vT2, vL), "v_lshlrev_b32 v%d, 6, v%d" % (vT2, vT2),
         "v_lshl_add_u32 v%d, v%d, 8, v%d" % (vT2, vT, vT2), "v_and_b32 v%d, 3, v%d" % (vT, vL), "v_lshl_add_u32 v%d, v%d, 4, v%d" % (vT2, vT, vT2),
         "s_lshl_b32 s%d, s%d, 5" % (sG, sRH), "v_xor_b32 v%d, s%d, v%d" % (vT2, sG, vT2), "s_lshl_b32 s%d, s%d, 11" % (sG, sWv),
         "v_add_u32 v%d, s%d, v%d" % (vKV, sG, vT2), "v_xor_b32 v%d, 48, v%d" % (vKV + 1, vKV),
         "v_xor_b32 v%d, 0x80, v%d" % (vKV + 2, vKV), "v_xor_b32 v%d, 0x80, v%d" % (vKV + 3, vKV + 1)])
    pPx, pPw = PK + 20, PK + 21
    a.e(["s_mul_i32 s%d, s%d, 14336" % (sT, sH), "s_lshl_b32 s%d, s%d, 12" % (sG, sWv), "s_add_u32 s%d, s%d, s%d" % (sT, sT, sG),
         "v_and_b32 v%d, 31, v%d" % (pPx, vL), "v_lshlrev_b32 v%d, 7, v%d" % (pPx, pPx), "v_add_u32 v%d, s%d, v%d" % (pPx, sT, pPx),
         "s_lshl_b32 s%d, s%d, 2" % (sT, sB), "s_add_u32 s%d, s%d, s%d" % (sT, sT, sWv), "s_lshl_b32 s%d, s%d, 18" % (sT, sT),
         "v_lshrrev_b32 v%d, 1, v%d" % (pPw, vL), "v_lshlrev_b32 v%d, 13, v%d" % (pPw, pPw),
         "v_and_b32 v%d, 1, v%d" % (vT2, vL), "v_lshl_add_u32 v%d, v%d, 7, v%d" % (pPw, vT2, pPw), "v_add_u32 v%d, s%d, v%d" % (pPw, sT, pPw)])
    a.e(["v_lshlrev_b32 v%d, 4, v%d" % (vL16, vL),
         "v_and_b32 v%d, 15, v%d" % (vT, vL), "v_lshrrev_b32 v%d, 4, v%d" % (vT2, vL),
         "v_and_b32 v%d, 6, v%d" % (vT3, vT), "v_xor_b32 v%d, v%d, v%d" % (vT3, vT3, vT2), "v_lshlrev_b32 v%d, 4, v%d" % (vT3, vT3),
         "v_lshl_add_u32 v%d, v%d, 7, v%d" % (vT3, vT, vT3),
         "s_lshl_b32 s%d, s%d, 15" % (sT, sRH), "s_add_u32 s%d, s%d, 16384" % (sT, sT),
         "v_add_u32 v%d, s%d, v%d" % (vXr, sT, vT3), "v_xor_b32 v%d, 64, v%d" % (vXr + 1, vXr),
         "v_add_u32 v%d, 0x10000, v%d" % (vXr + 2, vXr), "v_add_u32 v%d, 0x10000, v%d" % (vXr + 3, vXr + 1)])
    a.e(["v_bfe_u32 v%d, v%d, 2, 2" % (vT, vL), "v_lshl_add_u32 v%d, v%d, 3, v%d" % (vT, vT2, vT),
         "v_and_b32 v%d, 2, v%d" % (vT3, vT), "v_lshlrev_b32 v%d, 1, v%d" % (vT3, vT3),
         "v_and_b32 v%d, 3, v%d" % (vT2, vL), "v_xor_b32 v%d, v%d, v%d" % (vT3, vT3, vT2), "v_lshlrev_b32 v%d, 4, v%d" % (vT3, vT3),
         "v_lshl_add_u32 v%d, v%d, 7, v%d" % (vT3, vT, vT3),
         "s_lshl_b32 s%d, s%d, 12" % (sT, sKH), "s_add_u32 s%d, s%d, 131072" % (sT, sT),
         "v_add_u32 v%d, s%d, v%d" % (vWr, sT, vT3), "v_xor_b32 v%d, 64, v%d" % (vWr + 1, vWr)])
    a.e(["s_mul_i32 s%d, s%d, 14" % (sT, sB), "s_mul_i32 s%d, s%d, 7" % (sG, sRH), "s_add_u32 s%d, s%d, s%d" % (sT, sT, sG),
         "s_lshl_b32 s%d, s%d, 7" % (sT, sT), "s_lshl_b32 s%d, s%d, 2" % (sG, sH), "s_add_u32 s%d, s%d, s%d" % (sT, sT, sG),
         "s_lshl_b32 s%d, s%d, 1" % (sG, sKH), "s_add_u32 s%d, s%d, s%d" % (sT, sT, sG), "s_lshl_b32 s%d, s%d, 10" % (sT, sT),
         "s_add_u32 s%d, s%d, s%d" % (sO, pWs, sT), "s_addc_u32 s%d, s%d, 0" % (sO + 1, pWs + 1),
         "s_mov_b32 s%d, %d" % (sO + 2, 6 * 131072 + 2048), "s_mov_b32 s%d, 0x20000" % (sO + 3),
         "s_mov_b32 s%d, 0x%x" % (sC, CSCALE), "s_mov_b32 s%d, 0x%x" % (sC + 1, CSCALE),
         "s_and_b32 s%d, s%d, 4" % (sPm, sB), "s_add_u32 s%d, s%d, s%d" % (sPm, sPm, sWv),
         "s_mul_i32 s%d, s%d, %d" % (sT, sRB, 7 * 131072), "s_lshl_b32 s%d, s%d, 14" % (sG, sPm), "s_add_u32 s%d, s%d, s%d" % (sT, sT, sG),
         "s_add_u32 s%d, s%d, s%d" % (sOs, pWs, sT), "s_addc_u32 s%d, s%d, 0" % (sOs + 1, pWs + 1),
         "s_mov_b32 s%d, %d" % (sOs + 2, 6 * 131072 + 16384), "s_mov_b32 s%d, 0x20000" % (sOs + 3),
         "s_lshl_b32 s%d, s%d, 20" % (sT, sPm), "s_lshl_b32 s%d, s%d, 8" % (sG, sCT), "s_add_u32 s%d, s%d, s%d" % (sT, sT, sG),
         "s_add_u32 s%d, s%d, s%d" % (sWs, pWo, sT), "s_addc_u32 s%d, s%d, 0" % (sWs + 1, pWo + 1),
         "s_sub_u32 s%d, 0x100000, s%d" % (sWs + 2, sG), "s_mov_b32 s%d, 0x20000" % (sWs + 3),
         "s_mul_i32 s%d, s%d, %d" % (sT, sRB, 112 * 2048), "s_add_u32 s%d, s%d, s%d" % (sOut, pOut, sT), "s_addc_u32 s%d, s%d, 0" % (sOut + 1, pOut + 1),
         "s_mov_b32 s%d, %d" % (sOut + 2, 112 * 2048), "s_mov_b32 s%d, 0x20000" % (sOut + 3),
         "s_xor_b32 s%d, s%d, 0x10000" % (sRing, sReg),
         "s_lshl_b32 s%d, s%d, 13" % (sSp, sWv), "s_add_u32 s%d, s%d, 131072" % (sSp, sSp),
         "s_sub_u32 s%d, s%d, s%d" % (sD1, sSp, sReg), "s_sub_u32 s%d, s%d, s%d" % (sD2, sRing, sSp)])
    for rt in range(7): a.e("s_mov_b32 s%d, %d" % (sRt + rt, rt * 131072))
    pKr, pVr, pK0, pD, pR, pQ, pFp, pFc, pWoP, pCp = PK, PK + 1, PK + 3, PK + 4, PK + 8, PK + 10, PK + 12, PK + 13, PK + 14, PK + 16
    a.e(flagp(pFp, vT2) + flagc(pFc))
    a.e(["v_bfe_u32 v%d, v%d, 2, 2" % (vT, vL), "v_sub_u32 v%d, 0, v%d" % (vT2, vT), "v_lshrrev_b32 v%d, 4, v%d" % (vT3, vL),
         "v_xor_b32 v%d, v%d, v%d" % (vT2, vT2, vT3), "v_and_b32 v%d, 3, v%d" % (vT2, vT2), "v_lshlrev_b32 v%d, 4, v%d" % (vT2, vT2),
         "v_lshl_add_u32 v%d, v%d, 10, v%d" % (vT2, vT, vT2), "v_and_b32 v%d, 3, v%d" % (pK0, vL), "v_lshlrev_b32 v%d, 6, v%d" % (pK0, pK0),
         "s_lshl_b32 s%d, s%d, 16" % (sG, sKH), "v_add3_u32 v%d, v%d, v%d, s%d" % (pKr, pK0, vT2, sG),
         "v_lshl_add_u32 v%d, v%d, 4, v%d" % (pK0, vT3, pK0),
         "v_sub_u32 v%d, 0, v%d" % (vT2, vT3), "v_bfe_u32 v%d, v%d, 1, 1" % (pVr + 1, vL), "v_xor_b32 v%d, v%d, v%d" % (vT2, vT2, pVr + 1),
         "v_and_b32 v%d, 3, v%d" % (vT2, vT2), "v_lshlrev_b32 v%d, 4, v%d" % (vT2, vT2),
         "v_lshl_add_u32 v%d, v%d, 10, v%d" % (vT2, vT3, vT2), "v_lshl_add_u32 v%d, v%d, 6, v%d" % (vT2, vT, vT2),
         "v_and_b32 v%d, 1, v%d" % (pVr + 1, vL), "v_lshl_add_u32 v%d, v%d, 3, v%d" % (vT2, pVr + 1, vT2),
         "s_add_u32 s%d, s%d, 32768" % (sG, sG), "v_add_u32 v%d, s%d, v%d" % (pVr, sG, vT2), "v_xor_b32 v%d, 32, v%d" % (pVr + 1, pVr),
         "v_add_u32 v%d, s%d, v%d" % (pR, sReg, vT2), "v_xor_b32 v%d, 32, v%d" % (pR + 1, pR),
         "v_lshlrev_b32 v%d, 6, v%d" % (vT2, vT3), "v_lshl_add_u32 v%d, v%d, 11, v%d" % (vT2, vT, vT2), "v_and_b32 v%d, 3, v%d" % (vT, vL),
         "v_lshl_add_u32 v%d, v%d, 4, v%d" % (vT2, vT, vT2), "s_lshl_b32 s%d, s%d, 5" % (sT, sPm), "v_xor_b32 v%d, s%d, v%d" % (pD, sT, vT2)])
    for j in range(1, 4): a.e(["v_xor_b32 v%d, %d, v%d" % (pD + j, ((-j) & 3) * 16, pD), "v_add_u32 v%d, %d, v%d" % (pD + j, j * (8192 - 1024), pD + j)])
    a.e(["v_add_u32 v%d, s%d, v%d" % (pQ, sMW, vL16), "s_lshl_b32 s%d, s%d, 11" % (sT, sRH), "s_add_u32 s%d, s%d, 131072" % (sT, sT), "v_add_u32 v%d, s%d, v%d" % (pQ + 1, sT, vL16),
         "s_lshl_b32 s%d, s2, 2" % sT, "s_add_u32 s%d, s%d, s%d" % (sT, sT, sWv), "s_lshl_b32 s%d, s%d, 13" % (sT, sT),
         "v_lshlrev_b32 v%d, 7, v%d" % (pWoP, vL), "v_add_u32 v%d, s%d, v%d" % (pWoP, sT, pWoP),
         "s_lshl_b32 s%d, s%d, 1" % (sOf, sRB), "s_xor_b32 s%d, s%d, s%d" % (sOf, sOf, sCT), "s_and_b32 s%d, s%d, %d" % (sOf, sOf, O.x3mask), "s_lshl_b32 s%d, s%d, 16" % (sOf, sOf)])
    cp2 = codepf("L_tr", "L_epi", pCp)
    a.e(cp2[:-1])
    a.e([
         "s_lshl_b32 s%d, s2, 15" % sT, "s_lshl_b32 s%d, s%d, 10" % (sG, sWv), "s_add_u32 s%d, s%d, s%d" % (sT, sT, sG),
         "v_and_b32 v%d, 7, v%d" % (vT3, vL), "v_lshlrev_b32 v%d, 7, v%d" % (vT3, vT3), "v_add_u32 v%d, s%d, v%d" % (vT3, sT, vT3), "s_mov_b32 s%d, 0" % sP])
    kvpf = "global_load_dword v%d, v%d, s[%d:%d]" % (vDum, vT3, pWo, pWo + 1)
    zs = [zero16(vr(ACC + 16 * i, 16)) for i in range(7)] + [zero16(vr(OK + 16 * i, 16)) for i in range(2, 7)] + [zero16(ar(aO + 16 * i, 16)) for i in range(4)]
    seg = a.L[su0:]; del a.L[su0:]
    for i_, ln in enumerate(seg):
        if i_ % 7 == 3 and zs: a.e(zs.pop(0))
        a.L.append(ln)
    assert not zs and not any("exec" in ln for ln in seg[:120])
    late = stage_loads(1) + ["buffer_load_dword v%d, v%d, s[%d:%d], 0 offen" % (vDum, pPx, sX, sX + 3), "buffer_load_dword v%d, v%d, s[%d:%d], 0 offen" % (vDum, pPw, sW, sW + 3),
                              kvpf if O.wo_at != 0 else "global_load_dword v%d, v%d, s[%d:%d]" % (vDum, pWoP, pWo, pWo + 1)]
    def kvb(v, off): return "global_load_lds_dwordx4 v%d, s[4:5] offset:%d%s" % (v, off, KVF)
    kvq = ["s_cmp_lt_u32 s%d, 4" % sP, "s_cselect_b32 s4, s%d, s%d" % (sKV, sVV), "s_cselect_b32 s5, s%d, s%d" % (sKV + 1, sVV + 1),
           "s_and_b32 s%d, s%d, 1" % (sT, sP), "s_and_b32 s%d, s%d, 2" % (sG, sP), "s_lshl_b32 s%d, s%d, 12" % (sG, sG),
           "s_lshl_b32 s%d, s%d, 16" % (sT2, sT), "s_add_u32 s%d, s%d, s%d" % (sT2, sT2, sG), "s_mul_i32 s%d, s%d, %d" % (sT, sT, KH),
           "s_mul_i32 s%d, s%d, %d" % (sG, sG, TS_ // 8192), "s_add_u32 s%d, s%d, s%d" % (sT, sT, sG),
           "v_add_u32 v%d, s%d, v%d" % (vT, sT, vKV), "v_add_u32 v%d, s%d, v%d" % (vT2, sT, vKV + 1),
           "s_and_b32 s%d, s%d, 4" % (sG, sP), "s_lshl_b32 s%d, s%d, 13" % (sG, sG), "s_add_u32 s%d, s%d, s%d" % (sT2, sT2, sG),
           "s_and_b32 s%d, s%d, 5" % (sT, sP), "s_cmp_eq_u32 s%d, 5" % sT, "s_cselect_b32 s%d, 128, 0" % sT,
           "v_xor_b32 v%d, s%d, v%d" % (vT, sT, vT), "v_xor_b32 v%d, s%d, v%d" % (vT2, sT, vT2),
           "s_add_u32 s%d, s%d, s%d" % (sT2, sT2, sMW), "s_add_u32 s%d, s%d, 1" % (sP, sP)]
    kvq_m0 = "s_sub_u32 m0, s%d, 0x20000" % sT2

    def wreg(k): return {30: 192, 31: 208}.get(k, aWF + 16 * (k & 1))
    def xreg(k, rt): return 16 * rt + 4 * (k & 3)
    def rdW(k):
        out = []
        for dt in range(4):
            dp, t = dt >> 1, dt & 1
            for sec in range(2):
                out.append("ds_read_b64_tr_b16 %s, v%d offset:%d" % (ar(wreg(k) + 4 * dt + 2 * sec, 2), vWr + dp, (k & 3) * 8192 + sec * 512 + t * 8))
        return out
    def rdX1(s, kk, rt): return "ds_read_b128 %s, v%d offset:%d" % (ar(xreg(2 * s + kk, rt), 4), vXr + 2 * (s & 1) + kk, rt * 2048)
    def rdX(s): return [rdX1(s, kk, rt) for kk in range(2) for rt in range(7)]
    def A(rt, k): return [mfma(vr(ACC + 16 * rt + 4 * dt, 4), ar(wreg(k) + 4 * dt, 4), ar(xreg(k, rt), 4), vr(ACC + 16 * rt + 4 * dt, 4)) for dt in range(4)]
    stamp(4)
    if not O.rd_first: a.e(late)
    a.e(["s_waitcnt vmcnt(%d)" % (2 if O.rd_first else 16), "s_barrier"])
    stamp(4)
    a.e(rdW(0) + rdX(0))
    if O.rd_first: a.e(late)
    a.e(["s_mov_b32 s%d, 7" % sCnt, "s_waitcnt vmcnt(14) lgkmcnt(0)", "s_barrier"])

    wopf = "global_load_dword v%d, v%d, s[%d:%d]" % (vDum, pWoP, pWo, pWo + 1)
    addr28 = ["v_mov_b32 v%d, v%d" % (240 + i, PK + i) for i in range(8)] + ["v_mov_b32 v%d, v%d" % (vR + i, pR + i) for i in range(2)]
    addr28 += ["v_mov_b32 v%d, v%d" % (vQw + i, pQ + i) for i in range(2)] + setK(2)

    def p1_kstep(km, mode, ctl=False):
        sp, kk = km >> 1, km & 1
        mf = [m_ for rt in range(7) for m_ in A(rt, km)]
        gaps = [[] for _ in range(28)]
        rd = rdW(km + 1)
        if kk == 1: rd += rdX(sp + 1)
        dm = []; nxe = O.nxe; tailops = []
        if mode == "loop":
            def xs(js):
                r = []
                for j in js:
                    if j == 4 and j != js[0]: r += [m0X(sp, 1)]
                    r.append(dmaX(j))
                return r
            if kk == 0: dm += [m0W(km), dmaW(0), dmaW(1), m0X(sp, 0)] + incW + xs(list(range(nxe)))
            else:
                if nxe < 7: dm += ([m0X(sp, 1)] if nxe == 4 else []) + xs(list(range(nxe, 7)))
                dm += [m0W(km)] + incX + [dmaW(0), dmaW(1)] + incW
                if km == 3:
                    dm += [kvq_m0]; tailops = [kvb(vT, 0), kvb(vT2, 1024), kvpf]
            endw = "s_waitcnt vmcnt(%d) lgkmcnt(0)" % ((4 + nxe + (3 if km == 0 else 0)) if kk == 0 else 14)
        elif mode == 28:
            endw = "s_waitcnt vmcnt(5) lgkmcnt(0)"
        for g, x in enumerate(rd): gaps[g].append(x)
        def place(items, lo, hi):
            g_ = lo
            for y in items:
                if y.startswith("global_load"): g_ = min(g_ + 1, hi); gaps[g_].insert(0, y); continue
                while g_ < hi and len(gaps[g_]) >= 2: g_ += 1
                gaps[g_].append(y)
        nld = sum(1 for x in dm if x.startswith("buffer_load"))
        if nld:
            pos = [1 + (i * O.p1_span) // nld for i in range(nld)]
            li = 0; pend = []; prev = -1
            for x in dm:
                if x.startswith("buffer_load"):
                    place(pend, max(prev, 0), pos[li] - 1); pend = []
                    gaps[pos[li]].insert(0, x); prev = pos[li]; li += 1
                else: pend.append(x)
            place(pend, prev, 25)
        for i_, x in enumerate(tailops): gaps[23 + i_].insert(0, x)
        if mode == "loop" and km == 2: place(kvq + (["v_add_u32 v%d, 4096, v%d" % (vT3, vT3)] if O.wo_at == 1 else []), 8, 25)
        if mode == 28:
            place(kvq + [kvq_m0], 0, 15); gaps[16].insert(0, kvb(vT, 0)); gaps[17].insert(0, kvb(vT2, 1024)); place(addr28, 18, 25)
        if endw: gaps[26].append(endw); gaps[27].append("s_barrier")
        if ctl:
            gaps[25].append("s_sub_u32 s%d, s%d, 1" % (sCnt, sCnt)); gaps[26].append("s_cmp_lg_u32 s%d, 0" % sCnt)
        weave(a, mf, gaps)
    stamp(4)
    a.raw(".p2align 5")
    a.lab("L_p1")
    for km in range(4): p1_kstep(km, "loop", ctl=(km == 3))
    a.e("s_cbranch_scc1 L_p1")
    p1_kstep(0, 28)
    stamp(4)
    a.lab("L_tr")
    a.e(["s_cmp_lg_u32 s%d, 0" % sPass, "s_cbranch_scc1 L_nofl",
         "global_load_dword v%d, v%d, s[%d:%d] sc1" % (vFc, pFc, pWs, pWs + 1),
         "s_cmp_lg_u32 s%d, 0" % sWv, "s_cbranch_scc1 L_nofl",
         "global_load_dword v%d, v%d, s[%d:%d] sc1" % (vFo, pFp, pWs, pWs + 1)])
    a.lab("L_nofl")
    def ismem(x): return x.startswith(("ds_", "buffer_", "global_", "s_barrier"))
    def spread(mf, side, lo=0, hi=None):
        n = len(mf); hi = n - 1 if hi is None else hi
        gaps = [[] for _ in range(n)]
        g = lo
        for i_, x in enumerate(side):
            g = max(g, lo + (i_ * (hi - lo + 1)) // len(side))
            if ismem(x) and any(y.startswith("v_") for y in gaps[g]) and g < hi: g += 1
            gaps[g].append(x)
        weave(a, mf, gaps)
    def rdK(i, slot):
        t, ks = i & 1, i >> 1
        return "ds_read_b128 %s, v%d offset:%d" % (ar(aK + 16 * t + 4 * ks, 4), vKr, slot * 8192 + t * 4096 + ks * 256)
    def xlane(op, regs_, tmp):
        out = []
        for sw in ("v_permlane32_swap_b32", "v_permlane16_swap_b32"):
            out += ["v_mov_b32 v%d, v%d" % (t_, r_) for r_, t_ in zip(regs_, tmp)]
            out += ["%s v%d, v%d" % (sw, r_, t_) for r_, t_ in zip(regs_, tmp)]
            out += ["%s v%d, v%d, v%d" % (op, r_, r_, t_) for r_, t_ in zip(regs_, tmp)]
        return out
    def qk(rt, sb):
        out = []
        for i in range(8):
            t, ks = i & 1, i >> 1
            d = vr(S + 8 * sb + 4 * t, 4)
            out.append(mfma(d, ar(aK + 16 * t + 4 * ks, 4), ar(aQ + 16 * rt + 4 * ks, 4), vr(M + 4 * rt, 4) if ks == 0 else d))
        return out
    def oacc(rt, i): return vr(OK + 16 * rt + 4 * i, 4) if i < 4 else ar(aO + 16 * rt + 4 * (i - 4), 4)
    def pv(rt, pb): return [mfma(oacc(rt, i), vr(V + 4 * i, 4), vr(P + 4 * pb, 4), oacc(rt, i)) for i in range(8)]
    aK0 = 176
    def Bq(rt):
        o = []
        for dp in range(2):
            b = ACC + 16 * rt + 8 * dp
            for i in range(4): o += ["v_mul_f32 v%d, s%d, v%d" % (b + 2 * i, sC, b + 2 * i), "v_mul_f32 v%d, s%d, v%d" % (b + 2 * i + 1, sC, b + 2 * i + 1),
                                     "v_cvt_pk_bf16_f32 v%d, v%d, v%d" % (b + i, b + 2 * i, b + 2 * i + 1)]
            if dp == 0: o.append("s_waitcnt lgkmcnt(0)")
            o.append("ds_write_b128 v%d, %s offset:%d" % (vQw, vr(b, 4), (rt & 3) * 8192 + dp * 1024))
        return o
    def Cq(rt): return ["ds_read_b128 %s, v%d offset:%d" % (ar(aQ + 16 * rt + 4 * ks, 4), vQr, (rt & 3) * 8192 + (ks >> 1) * 4096 + (ks & 1) * 1024) for ks in range(4)]
    def PP(rt): return [mfma(vr(M + 4 * rt, 4), ar(aK0 + 4 * ks, 4), ar(aQ + 16 * rt + 4 * ks, 4), "0" if ks == 0 else vr(M + 4 * rt, 4)) for ks in range(4)]
    def Dq(rt):
        b = M + 4 * rt
        return ["v_max3_f32 v%d, v%d, v%d, v%d" % (b, b, b + 1, b + 2), "v_max_f32 v%d, v%d, v%d" % (b, b, b + 3)] + ["v_sub_f32 v%d, 0, v%d" % (b + i, b) for i in (1, 2, 3, 0)]
    sync = ["s_waitcnt lgkmcnt(0)", "s_barrier"]
    kvs = [[ptm0(reg, sl), "s_nop 0"] + ptld(reg) + (incK if reg == 3 else []) for sl in (2, 3) for reg in PORD]
    if O.t3late: kvs = [kvs[0], [], kvs[1], [], kvs[2], [], kvs[3], []]
    pfs = ([cp2[-1]] if O.pf_code else []) + ([wopf] if O.wo_at == 29 else [])
    t1 = rdW(30) + [rdX1(15, 0, 0)] + rdW(31) + [rdX1(15, 1, 0)] + [rdX1(15, kk, rt) for rt in range(1, 7) for kk in range(2)]
    spread([m_ for rt in range(5) for m_ in A(rt, 29)], t1 + pfs + sync, 0, 19)
    stamp(1)
    for i in range(8):
        mf = (A(i, 30) + A(i, 31) if i < 7 else qk(0, 0)) + (A(5 + i, 29) if i < 2 else PP(i - 2))
        side = []
        if i == 0: mf += [zero16(vr(OK, 16)), zero16(vr(OK + 16, 16))]
        if i == 1: side += ["s_waitcnt vmcnt(%d)" % (2 + len(pfs)), "s_barrier"] + ["ds_read_b128 %s, v%d offset:%d" % (ar(aK0 + 4 * ks, 4), vK0, ks * 256) for ks in range(4)]
        if i >= 2: side += sync + Cq(i - 2)
        if i in (3, 4): side += [rdK(j, 0) for j in range(4 * (i - 3), 4 * (i - 2))]
        if i >= 1: side += Bq(i - 1)
        if i >= 3: side += Dq(i - 3)
        if i == 7: side += ["v_mov_b32 v%d, 0" % j for j in range(L, L + 4)] + ["s_mov_b32 s%d, 3" % sCnt]
        side += kvs[i]
        spread(mf, side)
    if O.ts: a.e(["s_mov_b32 s81, 0", "v_mov_b32 v252, 0"])
    a.e(["s_cmp_lg_u32 s%d, 0" % sPass, "s_cbranch_scc1 L_maxpass"])
    stamp(1)
    NA = 0

    def dma3(j): return "buffer_load_dwordx4 v%d, s[%d:%d], s%d offen offset:%d lds" % (vD + j, sWs, sWs + 3, sWo, j * 1024)
    def setWo(u): return "s_xor_b32 s%d, s%d, 0x%x" % (sWo, sOf, u * 32768)
    def wset(n): return (0, 32, 64, 224)[n & 3]
    def rd3(k, off, dts=range(8)):
        return ["ds_read_b64_tr_b16 %s, v%d offset:%d" % (ar(wset(k) + 4 * dt + 2 * sec, 2), vR + (dt & 1), off + (dt >> 1) * 256 + sec * 4096) for dt in dts for sec in range(2)]
    def xw(rt): return ["ds_write_b128 v%d, %s offset:%d" % (vTa, ar(aO + 16 * rt + 4 * i, 4), rt * 4096 + i * 1024) for i in range(4)]
    vm = VM(["kv"])
    sDyn, sDd = 10, 11
    KV = " ;kv"
    def dm0(reg): return "s_add_u32 m0, s%d, %d" % (sDyn, reg * 32768)
    incD = incK + ["s_add_u32 s%d, s%d, 8192" % (sDyn, sDyn), "s_and_b32 s%d, s%d, 0x7fff" % (sDyn, sDyn)]
    initD = ["s_sub_u32 s%d, s%d, 0x20000" % (sDyn, sMW), "s_mov_b32 s%d, 0" % sDd]
    pend = []; cost = [0]
    def step(js, r, last=False, first=False, kv=False, ctl=False):
        u = 7 * js + r
        fin = last and js == 3
        mf = ([] if (fin and r == 6) else qk((r + 1) % 7, (u + 1) & 1)) + pv((r + 6) % 7, (u + 1) & 1)
        mem = [[] for _ in range(16)]; val = [[] for _ in range(16)]
        pk = not fin and not (first and r == 0)
        Eb = E2 if (pk and u & 1) else E
        for e in range(8):
            val[2 * e].append("v_exp_f32 v%d, v%d" % (Eb + e, S + 8 * (u & 1) + e))
            if not pk: val[2 * e + 1].append("v_add_f32 v%d, v%d, v%d" % (L + r, L + r, Eb + e))
            if e & 1: val[2 * e + 1].append("v_cvt_pk_bf16_f32 v%d, v%d, v%d" % (P + 4 * (u & 1) + (e >> 1), Eb + e - 1, Eb + e))
        if first and r == 0:
            mf = mf[:8] + PP(6) + [zero16(ar(192, 16)), zero16(ar(208, 16))]
            mem[0] += sync + Cq(6)[:2]; mem[1] += Cq(6)[2:]; mem[7].append("s_waitcnt lgkmcnt(0)")
            for i_, x in enumerate(Dq(5)): val[3 + 2 * i_].append(x)
        if first and r == 1:
            for i_, x in enumerate(Dq(6) + ["v_mov_b32 v%d, 0" % j for j in range(L + 4, L + 7)]): val[1 + 4 * (i_ % 4)].append(x) if i_ >= 6 else val[1 + 2 * i_].append(x)
        if first and r == 2: mem[9].append(zero16(ar(176, 16)))
        if first and r == 3: mem[1].append(initD[0]); mem[5].append(initD[1])
        vrd = ["ds_read_b64_tr_b16 %s, v%d offset:%d" % (vr(V + 4 * i + 2 * sec, 2), vVr + (i & 1), js * 8192 + (i >> 1) * 256 + sec * 4096) for i in range(8) for sec in range(2)]
        if not fin and not first:
            if r == 0: mem[9] += vrd[0:3]; mem[11] += vrd[3:5]; mem[13] += vrd[5:8]; mem[15] += vrd[8:10]
            if r == 1:
                mem[1] += vrd[10:12]; mem[3] += vrd[12:14]; mem[5] += vrd[14:16]
                mem[7].append("s_waitcnt lgkmcnt(4)"); mem[13].append("s_waitcnt lgkmcnt(0)")
        else:
            if r == 0:
                for i in range(16): mem[8 + i // 2].append(vrd[i])
            if r == 1: mem[5].append("s_waitcnt lgkmcnt(%d)" % (5 if fin else 0))
        if r == 5 and not fin: mem[0].append("s_barrier")
        if r == 4 and fin: mem[13].append("s_barrier")
        if r == 4 and not last: mem[13].append("s_getreg_b32 s%d, hwreg(HW_REG_IB_STS)" % sT2)
        if r == 4 and ctl: mem[9].append("s_sub_u32 s%d, s%d, 1" % (sCnt, sCnt)); mem[11].append("s_cmp_lg_u32 s%d, 0" % sCnt)
        if kv:
            pts = [tuple(int(y) for y in x.split(".")) for x in O.pts.split(",")]
            pos = [((pr_ - 5) % 7) * 16 + pg_ for pr_, pg_ in pts]
            here = ((r - 5) % 7) * 16
            def put(p_, xs):
                if here <= p_ < here + 16: mem[p_ - here] += [x + KV for x in xs]
            for n_ in range(4):
                put(pos[n_] - 2, [dm0(PORD[n_])]); put(pos[n_], ptld(PORD[n_]))
            put(pos[3] + 2, incD[0:2]); put(pos[3] + 4, incD[2:4])
        if last:
            sched = {(0, 6): 0, (1, 1): 6, (1, 3): 1, (1, 6): 7, (2, 0): 2, (2, 2): 3, (2, 5): 4, (3, 0): 5}
            if (js, r) in sched:
                k = sched[(js, r)]
                base, off = (sReg, k * 4096) if k < 6 else (sSp, (k - 6) * 4096)
                g0 = (9, 11, 13, 15) if r == 5 else ((1, 3, 5, 7) if r == 0 else (1, 5, 9, 13))
                mem[g0[0] - 1] += ["s_add_u32 m0, s%d, %d" % (base, off), setWo(k)]
                for j in range(4): mem[g0[j]].append(("w%d" % k, dma3(j)))
            if r == 4 and js < 3: mem[13].append(("wait", "kv"))
            if r == 5 and js < 2:
                mem[11].append("s_cmp_ge_u32 s%d, %d" % (sK0, 16 * TS_))
                mem[13].append(("kv", ["s_cbranch_scc1 L_ok%d" % js] + [x for reg in PORD for x in [dm0(reg), "s_nop 0"] + ptld(reg)] + incD + ["L_ok%d:" % js]))
            if js == 2 and r == 3 and O.pf_code:
                pf = codepf("L_epi", "L_end", vT)
                for i_, x in enumerate(pf[:-1]): val[1 + 2 * i_].append(x)
                mem[15].append(("pf", pf[-1]))
            if js == 1 and r == 2:
                val[1] += ["v_add_u32 v%d, s%d, v%d" % (vTa, sReg, vL16)]; val[5] += ["v_add_u32 v%d, s%d, v%d" % (vTb, sRing, vL16)]
            if fin:
                if r < 6:
                    if r % 2 == 0: mem[0] += [("wait", "w%d" % r), ("wait", "w%d" % (r + 1))]
                    for i_, x in enumerate(rd3(r >> 1, (r >> 1) * 8192, range(4 * (r & 1), 4 * (r & 1) + 4))): mem[i_].append(x)
                else:
                    mem[8] += [("wait", "w6"), ("wait", "w7")]
                    for i_, x in enumerate(rd3(3, 0)): mem[8 + i_ // 2].append(x)
                if r == 5:
                    for i in range(2): val[9 + 4 * i].append("v_add_u32 v%d, s%d, v%d" % (vR + i, sD1, vR + i))
                if r >= 2:
                    for i_, x in enumerate(xw(r - 2)): mem[9 + 2 * i_].append(x)
        if r == 5 and not fin:
            for i in range(8): mem[(1, 1, 3, 5, 5, 7, 9, 9)[i]].append(rdK(i, (js + 1) & 3))
            mem[15].insert(0, "s_waitcnt lgkmcnt(0)")
            if O.ts: mem[11] += TS_A; mem[15] += TS_B
        if fin and r == 6:
            mem = [mem[8 + i] for i in range(8)]
            val = [val[2 * i] + val[2 * i + 1] for i in range(8)]
            val = [[v_[0], "s_nop 0"] + v_[1:] for v_ in val]
            a.e("s_nop 1")
        if first and r == 0:
            mem = mem[:12] + [mem[12] + mem[13], mem[14] + mem[15]]
            val = val[:12] + [val[12] + ["s_nop 0"] + val[13], val[14] + ["s_nop 0"] + val[15]]
        if pk:
            flush = r == 4 or (last and js == 2 and r == 6)
            old_ = len(pend)
            for g in range(1, 16, 2):
                pend.append("v_add_f32 v%d, v%d, v%d" % (L + r, L + r, Eb + g // 2))
                n_ = max(0, 2 - len(mem[g]) - len(val[g]))
                if g == 15: n_ = max(n_, len(pend) if flush else old_)
                n_ = min(n_, len(pend))
                val[g] += pend[:n_]; del pend[:n_]; old_ = max(0, old_ - n_)
        else: assert not pend
        for g_, v_ in zip(mem, val): cost[0] += max(16, 8 + sum(8 if (isinstance(x, str) and "v_exp" in x) else 4 for x in g_ + v_))
        if r == 4:
            if O.verbose: print("unit ending", js, last, first, "model cycles", cost[0], file=sys.stderr)
            cost[0] = 0
        for m_, g_, v_ in zip(mf, mem, val):
            a.e(m_)
            for x in g_:
                if isinstance(x, tuple):
                    if x[0] == "wait": a.e("s_waitcnt vmcnt(%d)" % vm.n(x[1]))
                    elif x[0] == "kv": vm.issue("kv", True); a.e(x[1])
                    else: vm.issue(x[0]); a.e(x[1])
                else: a.e(x)
            a.e(v_)
    for r in range(5): step(0, r, first=True)
    quiet = []
    a.raw(".p2align 5")
    a.lab("L_loop")
    for js in range(4):
        if O.force_skip & (1 << js): a.e("s_or_b32 s%d, s%d, 15" % (sT2, sT2))
        a.e(["s_and_b32 s%d, s%d, 0xc0000f" % (sT2, sT2), "s_cbranch_scc1 L_h%d" % js])
        a.lab("L_u%d" % js)
        q0 = len(a.L)
        for r in (5, 6): step(js, r, kv=True)
        step((js + 1) & 3, 0, kv=True)
        qe = max(i_ for i_ in range(q0, len(a.L)) if a.L[i_].endswith(KV)) + 1
        quiet.append([ln for ln in a.L[q0:qe] if not ln.endswith(KV)])
        a.L.insert(qe, "L_j%d:" % js)
        for r in range(1, 5): step((js + 1) & 3, r, ctl=(js == 3))
    a.e("s_cbranch_scc1 L_loop")
    a.lab("L_last")
    a.e(["s_cmp_lt_u32 s%d, 2" % sDd, "s_cbranch_scc1 L_d1", "s_waitcnt vmcnt(0)", "L_d1:", "s_waitcnt vmcnt(8)"])
    for r in (5, 6): step(0, r, last=True)
    for js in range(1, 4):
        for r in range(7): step(js, r, last=True)
    stamp()

    a.lab("L_epi")
    misc = ["v_add_f32 v%d, v%d, v%d" % (vTc, L, L + 1)] + ["v_add_f32 v%d, v%d, v%d" % (vTc, vTc, L + i) for i in range(2, 7)]
    misc += ["s_mov_b32 s%d, 0x%x" % (sT, THR if not O.force_slow else 0), "s_lshl_b32 s%d, s%d, 2" % (sG, sWv),
             "v_cmp_ngt_f32 vcc, s%d, v%d" % (sT, vTc),
             "s_add_u32 s%d, s%d, 30720" % (sG, sG), "v_mov_b32 v%d, s%d" % (vT, sG),
             "s_cmp_lg_u64 vcc, 0", "s_cselect_b32 s%d, 1, 0" % sT, "v_mov_b32 v%d, 30720" % vT2, "v_mov_b32 v%d, s%d" % (L + 7, sT)]
    a.e("s_nop 1")
    weave(a, pv(6, 1), [misc[2 * i:2 * i + 2] for i in range(7)] + [misc[14:]])
    xl = xlane("v_add_f32", [L + i for i in range(7)], [E + i for i in range(7)])
    w56 = xw(5) + xw(6)
    for i in range(8):
        a.e(w56[i]); a.e(xl[5 * i:5 * i + 5] if i < 7 else xl[35:])
    a.e(["v_add_u32 v%d, s%d, v%d" % (vR + i, sD2, vR + i) for i in range(2)])
    a.e(["ds_write_b128 v%d, %s offset:28672" % (vTa, vr(L, 4)), "ds_write_b128 v%d, %s offset:29696" % (vTa, vr(L + 4, 4)),
         "ds_write_b32 v%d, v%d" % (vT, L + 7), "s_waitcnt lgkmcnt(0)", "s_barrier"])
    stamp(2)
    PL = 208
    a.e(["ds_read_b128 %s, v%d" % (vr(216, 4), vT2), "ds_read_b128 %s, v%d offset:28672" % (vr(PL, 4), vTb), "ds_read_b128 %s, v%d offset:29696" % (vr(PL + 4, 4), vTb)])
    def rdP(rt): return ["ds_read_b128 %s, v%d offset:%d" % (vr(128 + 16 * (rt % 5) + 4 * i, 4), vTb, (rt * 4 + i) * 1024) for i in range(4)]
    for rt in range(3): a.e(rdP(rt))
    a.e(["s_waitcnt lgkmcnt(12)", "v_or3_b32 v216, v216, v217, v218", "v_or_b32 v216, v216, v219"])
    for i in range(7): a.e("v_add_f32 v%d, v%d, v%d" % (L + i, L + i, PL + i))
    a.e(["v_readfirstlane_b32 s%d, v216" % sT])
    for i in range(7): a.e("v_rcp_f32 v%d, v%d" % (L + i, L + i))
    a.e(["s_andn2_b32 s%d, s%d, s%d" % (sT, sT, sPass), "s_cbranch_scc1 L_slow"])
    def wload(k, j):
        if j == 0: a.e(["s_add_u32 m0, s%d, %d" % (sRing, (k & 7) * 4096), setWo(k)])
        vm.issue("w%d" % k); a.e(dma3(j))
    wi = 0
    for rt in range(7):
        if rt + 3 < 7: a.e(rdP(rt + 3))
        a.e("s_waitcnt lgkmcnt(%d)" % (4 * min(3, 6 - rt)))
        pb = 128 + 16 * (rt % 5); ob = OK + 16 * rt; lp = L + rt
        def wnext(k_):
            nonlocal wi
            if k_ < O.w_n and wi < 28 and wi // 4 <= rt: wload(8 + wi // 4, wi % 4); wi += 1
        wnext(0)
        for i in range(8): a.e("v_pk_add_f32 %s, %s, %s" % (vr(ob + 2 * i, 2), vr(ob + 2 * i, 2), vr(pb + 2 * i, 2)))
        wnext(2)
        for i in range(8):
            if lp % 2 == 0: a.e("v_pk_mul_f32 %s, %s, %s op_sel_hi:[1,0]" % (vr(ob + 2 * i, 2), vr(ob + 2 * i, 2), vr(lp, 2)))
            else: a.e("v_pk_mul_f32 %s, %s, %s op_sel:[0,1]" % (vr(ob + 2 * i, 2), vr(ob + 2 * i, 2), vr(lp - 1, 2)))
        wnext(1)
        for i in range(8): a.e("v_cvt_pk_bf16_f32 v%d, v%d, v%d" % (ob + i, ob + 2 * i, ob + 2 * i + 1))
        wnext(3)
        for p in range(2):
            if O.nost and not (rt == 6 and p == 1): continue
            vm.issue("st"); a.e("buffer_store_dwordx4 %s, v%d, s[%d:%d], s%d offen offset:%d %s" % (vr(ob + 4 * p, 4), vL16, sO, sO + 3, sRt + rt, p * 1024, O.st_flags))
    stamp(2)
    ACC3, OF = 16, 128
    vS, vOo, vOut, vPs = 6, 248, 249, 250
    def acc3(rt, sl):
        hb, wv = sl >> 2, sl & 3
        return vr(ACC3 + 16 * rt + 4 * (2 * hb + wv), 4) if wv < 2 else ar(112 + 16 * rt + 4 * (2 * hb + wv - 2), 4)
    for _ in range(min(O.w_late, 28 - wi)): wload(8 + wi // 4, wi % 4); wi += 1
    a.e(flagp(vT, vT2) + ["v_add_u32 v%d, 1, v%d" % (vFo, vFo)])
    a.e(["s_lshl_b32 s%d, s%d, 5" % (sT, sB), "s_add_u32 s%d, s%d, s%d" % (sT, sT, sH), "v_mov_b32 v%d, s%d" % (vT2, sT), "v_mov_b32 v%d, 1" % vT3,
         "v_xor_b32 v243, 0x80, v%d" % vT2])
    for i in range(7): a.e(zero16(ar(112 + 16 * i, 16)))
    a.e(flagc(241) + ["s_lshr_b32 s%d, s%d, 6" % (sT, sOf), "v_add_u32 v%d, s%d, v%d" % (vOo, sT, vL16),
         "s_lshr_b32 s%d, s%d, 1" % (sT, sRB), "s_lshl_b32 s%d, s%d, 5" % (sT, sT), "s_lshl_b32 s%d, s%d, 2" % (sG, sPm), "s_add_u32 s%d, s%d, s%d" % (sT, sT, sG),
         "v_mov_b32 v242, s%d" % sT, "s_mov_b32 s%d, 0x40000" % sCnt])
    for i in range(7): a.e(zero16(vr(ACC3 + 16 * i, 16)))
    a.e(["s_waitcnt vmcnt(%d)" % vm.n("st"), "s_barrier"])
    stamp(2)
    if O.stamps: a.e("s_memrealtime s[6:7]")
    a.e(["s_cmp_lg_u32 s%d, 0" % sWv, "s_cbranch_scc1 L_noflag",
         "s_mov_b64 exec, 0xfffff", "global_store_dword v%d, v%d, s[%d:%d] sc1" % (vT, vFo, pWs, pWs + 1),
         "s_mov_b64 exec, 1", "global_store_byte v%d, v%d, s[%d:%d] sc1" % (vT2, vT3, pDbg, pDbg + 1), "s_mov_b64 exec, -1"])
    a.lab("L_noflag")
    stamp(2)
    def wpieces(lo, hi):
        out = []
        for p_ in range(lo, hi):
            u, j = 8 + p_ // 4, p_ % 4
            out.append((["s_add_u32 m0, s%d, %d" % (sRing, (u & 7) * 4096), setWo(u)] if j == 0 else [], ("w%d" % u, dma3(j))))
        return out
    if O.dynw:
        a.e(["s_mov_b64 exec, 31", "global_load_dword v%d, v241, s[%d:%d] sc1" % (vT, pWs, pWs + 1), "s_waitcnt vmcnt(0)", "v_cmp_eq_u32 vcc, v%d, v%d" % (vT, vFc), "s_nop 0", "s_cbranch_vccz L_go", "s_mov_b64 exec, -1"])
        for pre, op in wpieces(wi, 32): a.e(pre + [op[1]])
    a.e("s_mov_b64 exec, 31")
    a.lab("L_poll")
    a.e(["global_load_dword v%d, v241, s[%d:%d] sc1" % (vT, pWs, pWs + 1), "s_sub_u32 s%d, s%d, 1" % (sCnt, sCnt), "s_cbranch_scc1 L_go",
         "s_waitcnt vmcnt(0)", "v_cmp_eq_u32 s[%d:%d], v%d, v%d" % (sC, sC + 1, vT, vFc), "s_nop 0", "s_cmp_eq_u64 s[%d:%d], 0" % (sC, sC + 1), "s_cbranch_scc1 L_go",
         "s_and_b32 s%d, s%d, 15" % (sT, sCnt), "s_cbranch_scc1 L_poll",
         "global_load_dword v%d, v242, s[%d:%d] sc1" % (vT, pDbg, pDbg + 1), "global_load_ubyte v%d, v243, s[%d:%d] sc1" % (vT2, pDbg, pDbg + 1), "s_waitcnt vmcnt(0)",
         "v_add_u32 v%d, v%d, v%d" % (vT, vT, vT2), "s_nop 0", "v_readfirstlane_b32 s%d, v%d" % (sT, vT),
         "s_nop 0", "s_cmp_eq_u32 s%d, 0x01010102" % sT, "s_cbranch_scc0 L_poll"])
    a.lab("L_go")
    a.e("s_mov_b64 exec, -1")
    if O.wggo: a.e("s_barrier")
    stamp()
    if O.stamps: a.e(["s_memrealtime s[4:5]", "s_sub_u32 s10, 0x40000, s11"])
    def ldO(rt, k): return "buffer_load_dwordx4 %s, v%d, s[%d:%d], s%d offen sc1" % (vr(OF + 28 * (k & 3) + 4 * rt, 4), vOo, sOs, sOs + 3, sRt + rt)
    def incO(k): return "v_xor_b32 v%d, 0x%x, v%d" % (vOo, (k ^ (k + 1)) << 10, vOo)
    for k in range(2):
        for rt in range(7): vm.issue("o%d" % k); a.e(ldO(rt, k))
        a.e(incO(k))
    a.e(["v_add_u32 v%d, s%d, v%d" % (vS, sRing, vL16)])
    for i in range(1, 4): a.e(["v_xor_b32 v%d, 0x%x, v%d" % (vS + i, i << 15, vS)])
    a.e(["v_and_b32 v%d, 15, v%d" % (vT, vL), "v_lshrrev_b32 v%d, 4, v%d" % (vT2, vL), "v_lshlrev_b32 v%d, 3, v%d" % (vT2, vT2),
         "v_lshl_add_u32 v%d, v%d, 11, v%d" % (vT, vT, vT2),
         "s_lshl_b32 s%d, s%d, 8" % (sT, sCT), "s_lshl_b32 s%d, s%d, 5" % (sG, sPm), "s_add_u32 s%d, s%d, s%d" % (sT, sT, sG),
         "v_add_u32 v%d, s%d, v%d" % (vOut, sT, vT)] + boxaddr(vPs) + ["v_xor_b32 v%d, 0x8000, v%d" % (vPs + 1, vPs)])
    a.e(["s_waitcnt vmcnt(%d)" % (vm.n("o0") + 6)])
    def redw(rt, hb, wv): return "ds_write_b128 v%d, %s offset:%d" % (vS, acc3(rt, 4 * hb + wv), (wv - 1) * 7168 + rt * 1024)
    def redr(rt, wv, d): return "ds_read_b128 %s, v%d offset:%d" % (vr(d, 4), vS + wv, (wv - 1) * 7168 + rt * 1024)
    def mf3(rt, sl, k): return mfma(acc3(rt, sl), ar(wset(k) + 4 * sl, 4), vr(OF + 28 * (k & 3) + 4 * rt, 4), acc3(rt, sl))
    def emit(mf, gaps):
        for m_, g_ in zip(mf, gaps):
            a.e(m_)
            for x in g_:
                if isinstance(x, tuple):
                    if x[0] == "wait": a.e("s_waitcnt vmcnt(%d)%s" % (min(vm.n(t_) for t_ in x[1]), " lgkmcnt(0)" if x[2] else ""))
                    elif x[0] == "wait0": a.e("s_waitcnt vmcnt(%d)" % (vm.n("o0") + x[1]))
                    elif isinstance(x[1], list):
                        nsk[0] += 1
                        for _ in range(4): vm.issue(x[0], True)
                        a.e(["s_cbranch_vccnz L_sk%d" % nsk[0]] + x[1]); a.lab("L_sk%d" % nsk[0])
                    elif (O.dbg3 & 1 and x[0][0] == "w") or (O.dbg3 & 2 and x[0][0] == "o" and int(x[0][1:]) > 3): vm.issue(x[0])
                    else: vm.issue(x[0]); a.e(x[1])
                elif O.dbg3 & 4 and x.startswith("ds_read_b64"): pass
                else: a.e(x)
    nsk = [0]
    ws0, ws1 = 2, O.ws1
    pstep = [ws0 + (p_ * (ws1 - ws0)) // 64 for p_ in range(64)]
    rstep = {m_: m_ - 3 for m_ in range(4, 8)}
    for m_ in range(8, 16):
        rstep[m_] = max(m_ - 3, pstep[8 * (m_ - 8) + 7] + 2)
        assert pstep[8 * (m_ - 8)] > rstep[m_ - 4] and rstep[m_] <= min(m_ - 1, 13) and (m_ == 15 or rstep[m_] <= 12), m_
    for k in range(13):
        mf = [mf3(rt, sl, k) for rt in range(7) for sl in range(8)]
        gaps = [[] for _ in range(56)]
        rds = [m_ for m_ in rstep if rstep[m_] == k]
        for g, x in enumerate([y for m_ in rds for y in rd3(m_, (m_ & 3) * 8192)]): gaps[g].append(x)
        wl = []
        if k < 3:
            assert wi % 4 == 0 and wi >= 8 and O.dynw
            us = list(range(wi // 4, 8)); us = us[(len(us) * k) // 3:(len(us) * (k + 1)) // 3]
            wl = [([], ("w%d" % (8 + u_), [y for pre, op in wpieces(4 * u_, 4 * u_ + 4) for y in pre + [op[1]]])) for u_ in us]
        ps_ = [p_ for p_ in range(64) if pstep[p_] == k]
        if ps_: wl += wpieces(32 + ps_[0], 32 + ps_[-1] + 1)
        ol = [([], ("o%d" % kk_, ldO(rt, kk_))) + ((incO(kk_),) if rt == 6 else ()) for kk_ in ([2, 3] if k == 0 else [k + 3]) for rt in range(7)]
        ld = sorted([((i_ + 0.5) / len(wl), x) for i_, x in enumerate(wl)] + [((i_ + 0.25) / len(ol), x) for i_, x in enumerate(ol)], key=lambda t_: t_[0])
        for i_, (_, x) in enumerate(ld):
            g = 1 + (i_ * 53) // len(ld)
            gaps[g - 1] += x[0]; gaps[g].insert(0, x[1])
            if len(x) > 2: gaps[g].append(x[2])
        if k == 0:
            for rt in range(1, 7): gaps[8 * rt - 1].append(("wait0", 6 - rt))
        need_ = ["o%d" % (k + 1)] + ["w%d" % (2 * m_ + 1) for m_ in rstep if rstep[m_] == k + 1]
        gaps[55].append(("wait", need_, bool(rds)))
        emit(mf, gaps)
    mf = [mf3(rt, 4 * hb + wv, k) for hb in (1, 0) for k in (13, 14, 15) for rt in range(7) for wv in range(4)]
    gaps = [[] for _ in range(168)]
    if rstep[15] == 13:
        for g, x in enumerate(rd3(15, 3 * 8192)): gaps[g].append(x)
    gaps[27].append(("wait", ["o14"], False)); gaps[55].append(("wait", ["o15"], True))
    for rt in range(7):
        for wv in range(1, 4): gaps[56 + 4 * rt + wv + 8].append(redw(rt, 1, wv))
    gaps[94].append("s_waitcnt lgkmcnt(0)"); gaps[95].append("s_barrier")
    def tmp1(rt, wv): return (ACC3 + 16 * rt + 12, OF + 4 * rt, OF + 28 + 4 * rt)[wv - 1]
    for rt in range(7):
        g = 96 + 4 * rt
        gaps[g] += [redr(rt, 1, tmp1(rt, 1)), redr(rt, 2, tmp1(rt, 2))]; gaps[g + 1].append(redr(rt, 3, tmp1(rt, 3)))
    for rt in range(7):
        g = 96 + 4 * rt + 6; b = ACC3 + 16 * rt + 8
        gaps[g - 1].append("s_waitcnt lgkmcnt(%d)" % (3 if rt < 6 else 0))
        ads = ["v_add_f32 v%d, v%d, v%d" % (b + i, b + i, tmp1(rt, 1) + i) for i in range(4)]
        ads += ["v_add_f32 v%d, v%d, v%d" % (tmp1(rt, 2) + i, tmp1(rt, 2) + i, tmp1(rt, 3) + i) for i in range(4)]
        ads += ["v_add_f32 v%d, v%d, v%d" % (b + i, b + i, tmp1(rt, 2) + i) for i in range(4)]
        gaps[g] += ads[0:4]; gaps[g + 1] += ads[4:8]; gaps[g + 2] += ads[8:10]; gaps[g + 3] += ads[10:12]
        gaps[g + 4].insert(0, ("ps", "global_store_dwordx4 v%d, %s, s[%d:%d] offset:%d sc1" % (vPs + 1, vr(b, 4), pWs, pWs + 1, rt * 1024 - 3072)))
    gaps[132].append("s_barrier")
    gaps[134].append("v_add_u32 v%d, 1, v%d" % (vT2, vFc))
    gaps[O.f2gap] += ["s_waitcnt vmcnt(0)", "s_mov_b64 exec, 64", "global_store_dword v241, v%d, s[%d:%d] sc1" % (vT2, pWs, pWs + 1), "s_mov_b64 exec, -1"]
    lastw = []
    for rt in range(7):
        for wv in range(1, 4):
            g2 = 140 + 4 * rt + wv + 8
            if g2 < 168: gaps[g2].insert(0, redw(rt, 0, wv))
            else: lastw.append(redw(rt, 0, wv))
    emit(mf, gaps)
    stamp()
    PB = OF + 84
    ldP = ["global_load_dwordx4 %s, v%d, s[%d:%d] offset:%d sc1" % (vr(PB + 4 * rt, 4), vPs, pWs, pWs + 1, rt * 1024 - 3072) for rt in range(7)]
    pl2 = "global_load_dword v%d, v241, s[%d:%d] sc1" % (vT, pWs, pWs + 1)
    a.e(["s_mov_b64 exec, 32", pl2, "s_mov_b64 exec, -1"] + lastw[:3] + ["s_nop 1"] + lastw[3:] + ["s_mov_b32 s%d, 0x40000" % sCnt, "s_waitcnt lgkmcnt(0)", "s_barrier"])
    for rt in range(7):
        for wv in range(1, 4): a.e(redr(rt, wv, OF + 12 * rt + 4 * (wv - 1)))
    a.e("s_mov_b64 exec, 32")
    a.lab("L_poll2")
    a.e(["s_waitcnt vmcnt(0)", "v_cmp_eq_u32 vcc, v%d, v%d" % (vT, vFc), "s_sub_u32 s%d, s%d, 1" % (sCnt, sCnt), "s_cbranch_vccz L_go2", "s_cbranch_scc1 L_go2", pl2, "s_branch L_poll2"])
    a.lab("L_go2")
    a.e(["s_mov_b64 exec, -1"] + ldP)
    for rt in range(7):
        a.e("s_waitcnt lgkmcnt(%d)" % min(15, 3 * (6 - rt)))
        b = ACC3 + 16 * rt; t = OF + 12 * rt
        for h in range(2):
            a.e("v_pk_add_f32 %s, %s, %s" % (vr(b + 2 * h, 2), vr(b + 2 * h, 2), vr(t + 2 * h, 2)))
            a.e("v_pk_add_f32 %s, %s, %s" % (vr(t + 4 + 2 * h, 2), vr(t + 4 + 2 * h, 2), vr(t + 8 + 2 * h, 2)))
        for h in range(2): a.e("v_pk_add_f32 %s, %s, %s" % (vr(b + 2 * h, 2), vr(b + 2 * h, 2), vr(t + 4 + 2 * h, 2)))
    for rt in range(7):
        b = ACC3 + 16 * rt; t = PB + 4 * rt
        a.e(["s_waitcnt vmcnt(6)"] + ["v_pk_add_f32 %s, %s, %s" % (vr(b + 2 * h, 2), vr(b + 2 * h, 2), vr(t + 2 * h, 2)) for h in range(2)])
        a.e(["v_cvt_pk_bf16_f32 v%d, v%d, v%d" % (b, b, b + 1), "v_cvt_pk_bf16_f32 v%d, v%d, v%d" % (b + 1, b + 2, b + 3),
             "s_mov_b32 s%d, %d" % (sT, rt * 32768),
             "buffer_store_dwordx2 %s, v%d, s[%d:%d], s%d offen %s" % (vr(b, 2), vOut, sOut, sOut + 3, sT, O.out_flags)])
    if O.stamps:
        a.e(["s_waitcnt vmcnt(0)"])
        if not O.ts: stamp()
        a.e(["s_memrealtime s[78:79]", "s_waitcnt lgkmcnt(0)", "s_lshl_b32 s%d, s2, 2" % sT, "s_add_u32 s%d, s%d, s%d" % (sT, sT, sWv), "s_lshl_b32 s%d, s%d, 6" % (sT, sT),
             "s_add_u32 s%d, s%d, 0x%x" % (sT, sT, STAMP_OFF),
             "s_add_u32 s%d, s%d, s%d" % (sO, pWs, sT), "s_addc_u32 s%d, s%d, 0" % (sO + 1, pWs + 1), "s_mov_b32 s%d, 64" % (sO + 2), "v_mov_b32 v%d, 0" % vT])
        for i in range(nst[0]):
            a.e(["s_sub_u32 s%d, s%d, s%d" % (sT, sST + 2 * i, sST), "v_mov_b32 v%d, s%d" % (vT2, sT),
                 "buffer_store_dword v%d, v%d, s[%d:%d], 0 offen offset:%d" % (vT2, vT, sO, sO + 3, 4 * i)])
        for i, r_ in enumerate((10, 6, 4, sST, 78)):
            a.e(["v_mov_b32 v%d, s%d" % (vT2, r_), "buffer_store_dword v%d, v%d, s[%d:%d], 0 offen offset:%d" % (vT2, vT, sO, sO + 3, 44 + 4 * i)])
    if O.ts:
        a.e(["s_lshl_b32 s%d, s2, 9" % sT, "s_add_u32 s%d, s%d, 0x%x" % (sT, sT, STAMP_OFF + 0x200000),
             "s_add_u32 s%d, s%d, s%d" % (sO, pWs, sT), "s_addc_u32 s%d, s%d, 0" % (sO + 1, pWs + 1), "s_mov_b32 s%d, 512" % (sO + 2),
             "v_lshlrev_b32 v%d, 2, v%d" % (vT, vL), "buffer_store_dword v252, v%d, s[%d:%d], 0 offen" % (vT, sO, sO + 3)])
    a.lab("L_end")
    a.e("s_endpgm")

    for js in range(4):
        a.lab("L_h%d" % js)
        a.e(["s_cmp_lt_u32 s%d, 2" % sDd, "s_cbranch_scc1 L_hs%d" % js, "s_waitcnt vmcnt(0)", "s_branch L_u%d" % js])
        a.lab("L_hs%d" % js)
        a.e(["s_waitcnt vmcnt(8)", "s_cmp_le_u32 s%d, %d" % (sT2, O.th), "s_cbranch_scc1 L_u%d" % js] + (
             ["s_cmp_ge_u32 s%d, %d" % (sDd, O.dmax), "s_cbranch_scc1 L_u%d" % js] if O.dmax < 2 else []) + [ "s_add_u32 s%d, s%d, 1" % (sDd, sDd)])
        a.L += quiet[js]
        a.e("s_branch L_j%d" % js)
    if O.wo_at >= 100:
        a.lab("L_wopf")
        a.e(["s_lshl_b32 s%d, s2, 2" % sT, "s_add_u32 s%d, s%d, s%d" % (sT, sT, sWv), "s_lshl_b32 s%d, s%d, 13" % (sT, sT),
             "v_lshlrev_b32 v%d, 7, v%d" % (vT, vL), "v_add_u32 v%d, s%d, v%d" % (vT, sT, vT),
             "global_load_dword v%d, v%d, s[%d:%d]" % (vDum, vT, pWo, pWo + 1), "s_branch L_wopf_ret"])
    a.lab("L_slow")
    a.e(["s_waitcnt vmcnt(0) lgkmcnt(0)", "s_barrier", "s_mov_b32 s%d, 1" % sPass] + lane_setup() + ["s_branch L_restart"])
    a.lab("L_maxpass")
    a.e(["s_waitcnt vmcnt(0) lgkmcnt(0)", "s_barrier"] + Cq(6) + ["s_mov_b32 s%d, 16" % sCnt] + setK(0))
    a.e([zero16(ar(176 + 16 * i, 16)) for i in range(3)] + ["s_nop 7"])
    for rt in range(7): a.e("v_mov_b32 v%d, 0xff800000" % (M + 4 * rt))
    a.lab("L_slow_loop")
    a.e(kvtile(0))
    a.e(["s_waitcnt vmcnt(0)", "s_barrier"])
    a.e([rdK(i, 0) for i in range(8)])
    a.e(["s_waitcnt lgkmcnt(0)", "s_barrier"])
    for rt in range(7):
        for i in range(8):
            t, ks = i & 1, i >> 1
            d = vr(S + 4 * t, 4)
            a.e(mfma(d, ar(aK + 16 * t + 4 * ks, 4), ar(aQ + 16 * rt + 4 * ks, 4), "0" if ks == 0 else d))
        a.e("s_nop 7")
        for i in range(4): a.e("v_max3_f32 v%d, v%d, v%d, v%d" % (M + 4 * rt, M + 4 * rt, S + 2 * i, S + 2 * i + 1))
    a.e(["s_sub_u32 s%d, s%d, 1" % (sCnt, sCnt), "s_cmp_lg_u32 s%d, 0" % sCnt, "s_cbranch_scc1 L_slow_loop"])
    a.e(xlane("v_max_f32", [M + 4 * rt for rt in range(7)], [M + 4 * rt + 1 for rt in range(7)]))
    a.e(["v_add_u32 v%d, s%d, v%d" % (vTc, sSp, vL16), "v_xor_b32 v%d, 16384, v%d" % (vT3, vTc)])
    for rt in range(7): a.e("ds_write_b32 v%d, v%d offset:%d" % (vTc, M + 4 * rt, rt * 1024))
    a.e(["s_waitcnt lgkmcnt(0)", "s_barrier"])
    for rt in range(7): a.e("ds_read_b32 v%d, v%d offset:%d" % (M + 4 * rt + 1, vT3, rt * 1024))
    a.e(setK(0))
    for tl in range(4): a.e(kvtile(tl))
    a.e("s_waitcnt lgkmcnt(0)")
    for rt in range(7): a.e("v_max_f32 v%d, v%d, v%d" % (M + 4 * rt, M + 4 * rt, M + 4 * rt + 1))
    a.e(["s_waitcnt vmcnt(16)", "s_barrier"])
    a.e([rdK(i, 0) for i in range(8)])
    a.e([zero16(vr(V, 16)), zero16(vr(V + 16, 16))])
    a.e(["v_sub_f32 v%d, 0, v%d" % (M + 4 * rt + i, M + 4 * rt) for rt in range(7) for i in (1, 2, 3, 0)])
    a.e(["v_mov_b32 v%d, 0" % i for i in range(L, L + 7)] + ["v_mov_b32 v%d, 0" % i for i in range(P + 4, P + 8)])
    a.e(["s_mov_b32 s%d, 3" % sCnt, "s_waitcnt lgkmcnt(0)"] + qk(0, 0) + initD + ["s_nop 5"])
    for r in range(5): step(0, r)
    a.e("s_branch L_loop")

def build():
    ref = open("cdna_kernels/%s.s.ref" % NAME).read()
    hdr = ref.split("; Override launch")[0]
    a = Asm()
    k = NAME + "_kernel"
    a.raw(".amdgcn_target \"amdgcn-amd-amdhsa--gfx950\"\n.text")
    a.raw(".globl %s\n.p2align 8\n.type %s,@function" % (k, k))
    kernel(a)
    for e in check(a.L): print(e, file=sys.stderr)
    t = hdr + "; @launch grid=(256,1,1) block=(256,1,1) lds=163840\n" + a.text()
    t += """.section .rodata,"a"
.p2align 6
.amdhsa_kernel %s
  .amdhsa_next_free_vgpr 512
  .amdhsa_next_free_sgpr 102
  .amdhsa_accum_offset 256
  .amdhsa_group_segment_fixed_size 0
  .amdhsa_kernarg_size 64
  .amdhsa_user_sgpr_count 2
  .amdhsa_user_sgpr_kernarg_segment_ptr 1
  .amdhsa_system_sgpr_workgroup_id_x 1
.end_amdhsa_kernel
""" % k
    return t

if __name__ == "__main__":
    out = sys.argv[1] if len(sys.argv) > 1 else "cdna_kernels/%s.s" % NAME
    for kv in sys.argv[2:]:
        k, v = kv.split("=")
        cur = getattr(O, k)
        setattr(O, k, (v == "1") if isinstance(cur, bool) else type(cur)(v))
    open(out, "w").write(build())
```

```python
import re
class Asm:
    def __init__(self): self.L = []
    def e(self, x):
        if isinstance(x, (list, tuple)):
            for y in x: self.e(y)
        else: self.L.append("  " + x)
    def lab(self, x): self.L.append(x + ":")
    def raw(self, x): self.L.append(x)
    def text(self): return "\n".join(self.L) + "\n"

def vr(b, n=1): return "v%d" % b if n == 1 else "v[%d:%d]" % (b, b + n - 1)
def ar(b, n=1): return "a%d" % b if n == 1 else "a[%d:%d]" % (b, b + n - 1)
def sr(b, n=1): return "s%d" % b if n == 1 else "s[%d:%d]" % (b, b + n - 1)
def mfma(d, a, b, c): return "v_mfma_f32_16x16x32_bf16 %s, %s, %s, %s" % (d, a, b, c)

def weave(asm, mf, gaps):
    assert len(gaps) == len(mf)
    for m, g in zip(mf, gaps):
        asm.e(m)
        for x in g: asm.e(x)

_REG = re.compile(r"\b([vas])(\d+)\b|\b([vas])\[(\d+):(\d+)\]")
def regs(op):
    out = set()
    for m in _REG.finditer(op):
        if m.group(1): out.add((m.group(1), int(m.group(2))))
        else:
            for i in range(int(m.group(4)), int(m.group(5)) + 1): out.add((m.group(3), i))
    if re.search(r"\bvcc\b", op): out.add(("s", "vcc"))
    if re.search(r"\bm0\b", op): out.add(("s", "m0"))
    if re.search(r"\bexec\b", op): out.add(("s", "exec"))
    return out
TRANS = ("v_exp_f32", "v_rcp_f32", "v_log_f32", "v_rsq_f32", "v_sqrt_f32")
def parse(line):
    line = line.split(";")[0].strip()
    if not line or line.endswith(":") or line.startswith("."): return None
    p = line.split(None, 1)
    op = p[0]; ops = [o.strip() for o in p[1].split(",")] if len(p) > 1 else []
    d = dict(op=op, w=set(), r=set(), kind="other", line=line, ws=1)
    if op == "s_nop": d["ws"] = int(ops[0]) + 1; return d
    if op.startswith("v_mfma"):
        d["kind"] = "mfma"; d["w"] = regs(ops[0]); d["a"] = regs(ops[1]) | regs(ops[2]); d["c"] = regs(ops[3]); d["r"] = d["a"] | d["c"]
    elif op.startswith("v_"):
        d["kind"] = "valu"
        d["w"] = regs(ops[0]); d["r"] = set().union(*[regs(o) for o in ops[1:]]) if len(ops) > 1 else set()
        if op.startswith("v_permlane"): d["r"] |= d["w"]; d["w"] = d["r"]
        if op.startswith(("v_fmac", "v_mac")): d["r"] |= d["w"]
        if op.startswith("v_cndmask") and len(ops) == 3: d["r"].add(("s", "vcc"))
        d["trans"] = op.replace("_e32", "").replace("_e64", "") in TRANS
    elif op.startswith("ds_read"):
        d["kind"] = "ds"; d["w"] = regs(ops[0]); d["r"] = regs(ops[1].split()[0])
    elif op.startswith("ds_write"):
        d["kind"] = "ds"; d["r"] = set().union(*[regs(o.split()[0]) for o in ops])
    elif op.startswith(("buffer_load", "global_load")):
        d["kind"] = "vmem"
        if line.endswith(" lds") or op.startswith("global_load_lds"): d["r"] = set().union(*[regs(o.split()[0]) for o in ops]) | {("s", "m0")}; d["dma"] = True
        else: d["w"] = regs(ops[0]); d["r"] = set().union(*[regs(o.split()[0]) for o in ops[1:]])
    elif op.startswith(("buffer_store", "global_store", "buffer_atomic", "global_atomic")):
        d["kind"] = "vmem"; d["r"] = set().union(*[regs(o.split()[0]) for o in ops]); d["store"] = True
        d["data"] = regs(ops[0]) if op.startswith("buffer") else regs(ops[1])
        d["wide"] = op.endswith(("x4", "x3"))
    elif op.startswith("s_"):
        d["kind"] = "salu"
        if op.startswith(("s_cmp", "s_cbranch", "s_branch", "s_waitcnt", "s_barrier", "s_endpgm", "s_setprio", "s_sleep", "s_bitcmp")):
            d["r"] = set().union(*[regs(o) for o in ops]) if ops else set()
        else:
            d["w"] = regs(ops[0]); d["r"] = set().union(*[regs(o) for o in ops[1:]]) if len(ops) > 1 else set()
    return d

def need(p, c):
    n = 0
    if p["kind"] == "mfma":
        x = 4 if "32x32" in p["op"] else 0
        if c["kind"] == "mfma":
            if p["w"] & c["a"]: n = max(n, 8 + x)
            if p["w"] & c["c"] and p["w"] != c["c"]: n = max(n, 6 + x)
            if p["w"] & c["w"] and p["w"] != c["w"]: n = max(n, 6 + x)
        elif c["kind"] in ("valu", "ds", "vmem"):
            if p["w"] & (c["r"] | c["w"]): n = max(n, 8 + x)
            if c["kind"] == "valu" and p["c"] & c["w"]: n = max(n, 3 + x)
    elif p["kind"] == "valu":
        vw = {x for x in p["w"] if x[0] in "va"}; sw = {x for x in p["w"] if x[0] == "s"}
        if c["kind"] == "mfma" and vw & c["r"]: n = max(n, 2)
        if c["kind"] == "mfma" and ("s", "exec") in sw: n = max(n, 4)
        if c["kind"] == "valu":
            if p.get("trans") and not c.get("trans") and vw & c["r"]: n = max(n, 1)
            if c["op"].startswith("v_permlane") and vw & c["r"]: n = max(n, 2)
            if c["op"].startswith(("v_readfirstlane", "v_readlane")) and vw & c["r"]: n = max(n, 1)
            if sw & c["r"]: n = max(n, 2)
            if "dpp" in c["line"] and vw & c["r"]: n = max(n, 2)
        if c["kind"] == "vmem" and sw & c["r"]: n = max(n, 5)
        if c["kind"] == "salu" and sw & c["r"]: n = max(n, 1)
    elif p["kind"] == "salu":
        if ("s", "m0") in p["w"] and c.get("dma"): n = max(n, 1)
    elif p["kind"] == "vmem" and p.get("store") and p.get("wide"):
        if p["data"] & c["w"]: n = max(n, 2 if c["kind"] == "valu" else 1)
    return n

def check(lines, window=14):
    ins = []; labels = {}
    for ln in lines:
        s = ln.split(";")[0].strip()
        if s.endswith(":") and not s.startswith("."): labels[s[:-1]] = len(ins); continue
        d = parse(ln)
        if d: ins.append(d)
    errs = []
    def scan(seq, first_consumer=0):
        for j in range(first_consumer, len(seq)):
            c = seq[j]; dist = 0
            for i in range(j - 1, max(-1, j - 1 - window), -1):
                p = seq[i]
                if p["op"] in ("s_branch", "s_endpgm") and first_consumer == 0: break
                n = need(p, c)
                if n > dist: errs.append("HAZARD need %d have %d: [%s] -> [%s]" % (n, dist, p["line"], c["line"]))
                dist += p["ws"]
                if dist >= 13: break
    scan(ins)
    skip_until = -1; pl = []; pv_ = []
    for k, d in enumerate(ins):
        op = d["op"]
        if op.startswith("s_cbranch"):
            t = labels.get(d["line"].split()[-1], -1)
            if k < t <= k + 60: skip_until = max(skip_until, t)
        if op in ("s_branch", "s_endpgm"): pl = []; pv_ = []
        if op == "s_waitcnt":
            for nm, q in (("lgkmcnt", pl), ("vmcnt", pv_)):
                m = re.search(nm + r"\((\d+)\)", d["line"])
                if m and k < skip_until and m.group(1) == "0": q[:] = [o for o in q if not o[1]]
                if m and k >= skip_until:
                    n = int(m.group(1)); keep = []; c = 0
                    for o in reversed(q):
                        if c >= n: break
                        keep.append(o)
                        if not o[1]: c += 1
                    q[:] = keep[::-1]
            continue
        use = {x for x in (d["r"] | d["w"]) if x[0] in "va" and x != ("v", 253)}
        for q in (pl, pv_):
            for o in q:
                if o[0]["w"] & use and not (o[0]["kind"] == d["kind"] and o[0]["w"] == d["w"] and not (o[0]["w"] & d["r"])):
                    errs.append("LOAD-USE before wait: [%s] -> [%s]" % (o[0]["line"], d["line"]))
        if d["kind"] == "ds": pl.append((d, k < skip_until))
        if d["kind"] == "vmem": pv_.append((d, k < skip_until))
    NOSCC = ("s_mov", "s_cselect", "s_mul", "s_waitcnt", "s_barrier", "s_nop", "s_cbranch", "s_branch", "s_load", "s_mem", "s_getpc", "s_getreg", "s_endpgm", "s_sleep", "s_setprio")
    last = None
    for d in ins:
        op = d["op"]
        if op.startswith(("s_cselect", "s_cbranch_scc", "s_addc")):
            ok = last is not None and (last["op"].startswith("s_cmp") or (op.startswith("s_addc") and last["op"] == "s_add_u32" and "m0" not in last["line"])
                                       or (op.startswith("s_cbranch") and last["op"] in ("s_sub_u32", "s_and_b32", "s_andn2_b32") and "m0" not in last["line"]))
            if not ok: errs.append("SCC? [%s] -> [%s]" % (last and last["line"], d["line"]))
        if op.startswith("s_") and not op.startswith(NOSCC): last = d
    for k, d in enumerate(ins):
        if d["op"].startswith(("s_cbranch", "s_branch")):
            t = d["line"].split()[-1]
            if t in labels:
                pre = ins[max(0, k - window):k + 1]
                seq = pre + ins[labels[t]:labels[t] + window]
                scan(seq, len(pre))
    return sorted(set(errs))
```

```python
import sys, math, struct
from asmlib import *

NAME = "standalone__mha_block_cached__near_ridge"
def f32(x): return struct.unpack("<I", struct.pack("<f", x))[0]
CSCALE = f32(128 ** -0.5 * math.log2(math.e))
THR = f32(2.0 ** 30)

class Opt:
    stamps = False
    ts = False
    kv_nt = True
    nxe = 5
    p1_span = 26
    force_slow = False
    pf_xw = True
    pf_wo = True
    pf_code = True
    w_n = 0
    w_late = 8
    wl2 = 0
    out_flags = ""
    pfl = 0
    burst = 4
    ws1 = 12
    dbg3 = 0
    f2gap = 156
    wo2 = "0.3,2.2"
    lag = 0
    ilv = True
    pts = "5.13,5.15,6.9,6.11"
    th = 5
    wfin = True
    nb = 0
    padn = 0
    kvf = "nt"
    dmax = 1
    force_skip = 0
    pack = True
    verbose = False
    x1mask = 0
    rd_first = False
    wqc = False
    tb4 = False
    wo_r = 3
    bstep = 2
    t3late = False
    wo_at = 1
    dynw = True
    wggo = False
    olook = 3
    sset = 1
    nost = False
    st_flags = "sc1"
    x3mask = 7
    burn = 0
    tsched = 1
    pf_flags = ""
    wpf = 0
O = Opt()
STAMP_OFF = 0x8000000
FLAG_OFF = 0x1000000
PART_OFF = 0x2000000

def zero16(d): return "v_mfma_f32_32x32x16_bf16 %s, v[12:15], v[12:15], 0" % d

class VM:
    def __init__(self, init): self.ops = list(init)
    def issue(self, tag, opt=False): self.ops.append(tag + "?" if opt else tag)
    def n(self, tag):
        idx = max(i for i, t in enumerate(self.ops) if t.rstrip("?") == tag)
        if self.ops[idx].endswith("?"): return min(63, len(self.ops) - 1 - idx)
        return min(63, sum(1 for t in self.ops[idx + 1:] if not t.endswith("?")))

def kernel(a):
    KVF = " " + O.kvf
    pX, pK, pV, pWq, pWo, pOut, pDbg, pWs = 4, 6, 8, 10, 12, 14, 16, 18
    sX, sW, sKV, sO, sOs, sWs, sOut = 20, 24, 28, 32, 36, 40, 44
    (sWv, sB, sH, sRH, sKH, sXoff, sWoff, sCnt, sMX, sMW, sReg, sRing, sSp, sG, sFlip, sK0, sPass, sT, sT2, sRB, sCT, sWo, sD1, sD2) = range(48, 72)
    sP = 3 if not O.ts else 81
    sOf = 1; sPm = 0
    sC = 72; sRt = 74; sPC = 82; sVV = 84; sST = 88; sK1 = sFlip
    KH, TS_ = (8192, 16384) if O.ilv else (131072, 8192)
    vL, vT, vT2, vT3, vL16 = 1, 2, 3, 4, 5
    vKV, vW = 6, 10
    OK, ACC = 16, 128
    M, S, E, P, V, L = 128, 156, 172, 180, 188, 220
    vTa, vTb, vTc = 237, 238, 236
    E2 = 228
    vX, vXr, vWr = 240, 247, 251
    vKr, vVr, vK0 = 240, 241, 243
    vD, vR = 244, 10
    vQw, vQr = 2, 3
    PK = 16
    vFo, vFc, vDum = 254, 255, 253
    vCp = 0
    aQ, aO, aK = 0, 112, 224
    aXF, aWF = 0, 224
    nst = [0]
    def stamp(m=3):
        if O.stamps and (m & O.sset):
            assert nst[0] < 7
            a.e("s_memrealtime s[%d:%d]" % (sST + 2 * nst[0], sST + 2 * nst[0] + 1)); nst[0] += 1
    def flagp(v, t):
        return ["s_and_b32 s%d, s%d, 1" % (sT, sB), "s_lshl_b32 s%d, s%d, 6" % (sT, sT), "s_lshr_b32 s%d, s%d, 1" % (sG, sB), "s_lshl_b32 s%d, s%d, 3" % (sG, sG),
                "s_add_u32 s%d, s%d, s%d" % (sT, sT, sG), "s_lshr_b32 s%d, s%d, 2" % (sG, sH), "s_add_u32 s%d, s%d, s%d" % (sT, sT, sG), "s_lshl_b32 s%d, s%d, 7" % (sT, sT),
                "s_and_b32 s%d, s%d, 3" % (sG, sH), "s_lshl_b32 s%d, s%d, 2" % (sG, sG), "s_add_u32 s%d, s%d, s%d" % (sT, sT, sG), "s_add_u32 s%d, s%d, 0x%x" % (sT, sT, FLAG_OFF),
                "v_lshrrev_b32 v%d, 1, v%d" % (v, vL), "v_lshlrev_b32 v%d, 14, v%d" % (v, v), "v_and_b32 v%d, 1, v%d" % (t, vL),
                "v_lshl_add_u32 v%d, v%d, 12, v%d" % (v, t, v), "v_add_u32 v%d, s%d, v%d" % (v, sT, v),
                "s_xor_b32 s%d, s2, 1" % sT, "s_lshl_b32 s%d, s%d, 9" % (sT, sT), "s_add_u32 s%d, s%d, 0x%x" % (sT, sT, FLAG_OFF + 16),
                "v_and_b32 v%d, 3, v%d" % (t, vL), "v_lshlrev_b32 v%d, 7, v%d" % (t, t), "v_cmp_gt_u32 vcc, 16, v%d" % vL, "v_add_u32 v%d, s%d, v%d" % (t, sT, t),
                "s_nop 0", "v_cndmask_b32 v%d, v%d, v%d, vcc" % (v, t, v)]
    def flagc(v):
        return ["s_lshl_b32 s%d, s2, 2" % sT, "s_add_u32 s%d, s%d, s%d" % (sT, sT, sWv), "s_lshl_b32 s%d, s%d, 7" % (sT, sT), "s_add_u32 s%d, s%d, 0x%x" % (sT, sT, FLAG_OFF),
                "v_min_u32 v%d, 5, v%d" % (v, vL), "v_lshlrev_b32 v%d, 2, v%d" % (v, v), "v_add_u32 v%d, s%d, v%d" % (v, sT, v),
                "s_mov_b64 exec, 64", "v_xor_b32 v%d, 0x200, v%d" % (v, v), "s_mov_b64 exec, -1"]
    def boxaddr(v):
        return ["s_lshl_b32 s%d, s2, 2" % sT, "s_add_u32 s%d, s%d, s%d" % (sT, sT, sWv), "s_lshl_b32 s%d, s%d, 13" % (sT, sT),
                "s_add_u32 s%d, s%d, 0x%x" % (sT, sT, PART_OFF + 3072), "v_add_u32 v%d, s%d, v%d" % (v, sT, vL16)]
    def codepf(lo, hi, t0):
        return ["v_min_u32 v%d, %s-%s-4, v%d" % (t0, hi, lo, vCp), "v_add_u32 v%d, %s-L_pc, v%d" % (t0, lo, t0),
                "v_mov_b32 v%d, s%d" % (t0 + 1, sPC + 1), "v_add_co_u32 v%d, vcc, s%d, v%d" % (t0, sPC, t0), "s_nop 1",
                "v_addc_co_u32 v%d, vcc, 0, v%d, vcc" % (t0 + 1, t0 + 1), "global_load_dword v%d, v[%d:%d], off" % (vDum, t0, t0 + 1)]

    a.lab(NAME + "_kernel")
    a.e(["s_cmp_ge_u32 s2, 256", "s_cbranch_scc1 L_end",
         "s_load_dwordx8 s[4:11], s[0:1], 0", "s_load_dwordx8 s[12:19], s[0:1], 32"])
    stamp(7)
    a.e(["s_getpc_b64 s[%d:%d]" % (sPC, sPC + 1)])
    a.lab("L_pc")
    a.e(["v_and_b32 v%d, 63, v0" % vL, "v_lshrrev_b32 v%d, 6, v0" % vT,
         "s_and_b32 s%d, s2, 7" % sT, "s_lshr_b32 s%d, s2, 3" % sT2,
         "v_readfirstlane_b32 s%d, v%d" % (sWv, vT),
         "v_min_u32 v%d, 2, v%d" % (vCp, vL), "v_lshl_add_u32 v%d, v%d, 2, v%d" % (vCp, vCp, vT), "v_lshlrev_b32 v%d, 5, v%d" % (vCp, vCp),
         "v_add_lshl_u32 v%d, v%d, s%d, 7" % (vCp, vCp, sT2)])
    if O.pf_code: a.e(codepf("L_pc", "L_end", vT))
    a.e(["s_mov_b32 s%d, 0" % sPass,
         "s_and_b32 s%d, s%d, 1" % (sB, sT), "s_lshl_b32 s%d, s%d, 2" % (sB, sB),
         "s_and_b32 s%d, s%d, 3" % (sG, sT2), "s_add_u32 s%d, s%d, s%d" % (sB, sB, sG),
         "s_lshr_b32 s%d, s%d, 1" % (sH, sT), "s_lshl_b32 s%d, s%d, 2" % (sRB, sH), "s_add_u32 s%d, s%d, s%d" % (sRB, sRB, sG), "s_lshl_b32 s%d, s%d, 3" % (sH, sH),
         "s_lshr_b32 s%d, s%d, 2" % (sCT, sT2), "s_add_u32 s%d, s%d, s%d" % (sH, sH, sCT),
         "s_and_b32 s%d, s%d, 1" % (sRH, sWv), "s_lshr_b32 s%d, s%d, 1" % (sKH, sWv)])
    a.e(["s_lshl_b32 s%d, s%d, 15" % (sMX, sKH), "s_mul_i32 s%d, s%d, 7168" % (sT, sRH),
         "s_add_u32 s%d, s%d, s%d" % (sMX, sMX, sT), "s_add_u32 s%d, s%d, 16384" % (sMX, sMX),
         "s_lshl_b32 s%d, s%d, 11" % (sMW, sWv), "s_add_u32 s%d, s%d, 131072" % (sMW, sMW),
         "s_lshl_b32 s%d, s%d, 15" % (sReg, sWv),
         "s_mov_b32 s%d, 458752" % (sX + 2), "s_mov_b32 s%d, 0x20000" % (sX + 3), "s_mov_b32 s%d, 0x20000" % (sW + 3),
         "s_mul_i32 s%d, s%d, 458752" % (sD1, sB), "s_lshl_b32 s%d, s%d, 8" % (sD2, sH), "s_sub_u32 s%d, 0x800000, s%d" % (sW + 2, sD2)])
    def lane_setup():
        o = ["v_lshrrev_b32 v%d, 3, v%d" % (vT, vL), "v_and_b32 v%d, 7, v%d" % (vT2, vL), "v_and_b32 v%d, 6, v%d" % (vT3, vT),
             "v_xor_b32 v%d, v%d, v%d" % (vT3, vT3, vT2), "v_lshlrev_b32 v%d, 4, v%d" % (vT3, vT3),
             "v_lshl_add_u32 v%d, v%d, 11, v%d" % (vX, vT, vT3),
             "s_mul_i32 s%d, s%d, %d" % (sT, sWv, 7 * 16384), "v_add_u32 v%d, s%d, v%d" % (vX, sT, vX)]
        o += ["v_add_u32 v%d, %d, v%d" % (vX + j, j * 16384 - (j & 3) * 1024, vX) for j in range(1, 7)]
        o += ["v_and_b32 v%d, 2, v%d" % (vT3, vT), "v_lshlrev_b32 v%d, 1, v%d" % (vT3, vT3),
              "v_xor_b32 v%d, v%d, v%d" % (vT3, vT3, vT2), "v_lshlrev_b32 v%d, 4, v%d" % (vT3, vT3),
              "v_lshl_add_u32 v%d, v%d, 13, v%d" % (vW, vT, vT3),
              "s_lshl_b32 s%d, s%d, 17" % (sT, sRH), "s_lshl_b32 s%d, s%d, 7" % (sG, sKH), "s_add_u32 s%d, s%d, s%d" % (sT, sT, sG),
              "v_add_u32 v%d, s%d, v%d" % (vW, sT, vW), "v_add_u32 v%d, %d, v%d" % (vW + 1, 8 * 8192 - 1024, vW)]
        return o
    a.e(lane_setup())
    a.e(["s_waitcnt lgkmcnt(0)",
         "s_add_u32 s%d, s%d, s%d" % (sW, pWq, sD2), "s_addc_u32 s%d, s%d, 0" % (sW + 1, pWq + 1),
         "s_add_u32 s%d, s%d, s%d" % (sX, pX, sD1), "s_addc_u32 s%d, s%d, 0" % (sX + 1, pX + 1)])
    stamp(4)
    a.lab("L_restart")

    TS_A = ["s_memrealtime s[100:101]"]
    TS_B = ["s_mov_b32 s3, m0", "s_mov_b32 m0, s81", "v_writelane_b32 v252, s100, m0", "s_add_u32 s81, s81, 1", "s_mov_b32 m0, s3"]
    def dmaX(j): return "buffer_load_dwordx4 v%d, s[%d:%d], s%d offen offset:%d lds" % (vX + j, sX, sX + 3, sXoff, (j & 3) * 1024)
    def m0X(buf, hi): return "s_add_u32 m0, s%d, %d" % (sMX, buf * 65536 + hi * 4096)
    def dmaW(j): return "buffer_load_dwordx4 v%d, s[%d:%d], s%d offen offset:%d lds" % (vW + j, sW, sW + 3, sWoff, j * 1024)
    def m0W(slot): return "s_add_u32 m0, s%d, %d" % (sMW, slot * 8192)
    def ptm0(reg, slot): return "s_add_u32 m0, s%d, %d" % (sMW, (reg * 32768 + slot * 8192 - 131072) & 0xffffffff)
    def ptld(reg): return ["buffer_load_dwordx4 v%d, s[%d:%d], s%d offen offset:%d%s lds" % (vKV + (2 if reg == 3 else 0) + j, sVV if reg & 1 else sKV, (sVV if reg & 1 else sKV) + 3,
                           sK1 if reg >> 1 else sK0, j * 1024, KVF) for j in range(2)]
    incK = ["s_add_u32 s%d, s%d, %d" % (sK0, sK0, TS_), "s_add_u32 s%d, s%d, %d" % (sK1, sK1, TS_)]
    def setK(tile): return ["s_mov_b32 s%d, %d" % (sK0, tile * TS_), "s_mov_b32 s%d, %d" % (sK1, tile * TS_ + KH)]
    PORD = (0, 2, 1, 3)
    def kvtile(slot): return [x for reg in PORD for x in [ptm0(reg, slot), "s_nop 0"] + ptld(reg)] + incK
    sXl, sWl, sOx, sOw = 10, 11, sWo, sK0
    incW = ["s_add_u32 s%d, s%d, 262144" % (sWl, sWl), "s_xor_b32 s%d, s%d, s%d" % (sWoff, sWl, sOw)]
    incX = ["s_add_u32 s%d, s%d, 128" % (sXl, sXl), "s_xor_b32 s%d, s%d, s%d" % (sXoff, sXl, sOx)]

    a.e(["s_mov_b32 s%d, 0" % sXl, "s_mov_b32 s%d, 0" % sWl, "s_xor_b32 s%d, s%d, s%d" % (sT, sB, sH), "s_and_b32 s%d, s%d, %d" % (sT, sT, O.x1mask),
         "s_lshl_b32 s%d, s%d, 19" % (sOw, sT), "s_lshl_b32 s%d, s%d, 7" % (sOx, sT), "s_mov_b32 s%d, s%d" % (sWoff, sOw), "s_mov_b32 s%d, s%d" % (sXoff, sOx)])
    def stage_loads(st):
        return ([m0W(2 * st), "s_nop 0", dmaW(0), dmaW(1), m0X(st, 0)] + incW + [dmaX(j) for j in range(4)] + [m0X(st, 1), "s_nop 0"] + [dmaX(j) for j in range(4, 7)]
                + [m0W(2 * st + 1)] + incX + [dmaW(0), dmaW(1)] + incW)
    a.e(stage_loads(0))
    stamp(4)
    a.e(["v_mov_b32 v%d, 0" % i for i in range(12, 16)])
    su0 = len(a.L)
    a.e(["s_lshl_b32 s%d, s%d, 5" % (sT, sB), "s_add_u32 s%d, s%d, s%d" % (sT, sT, sH), "s_lshl_b32 s%d, s%d, 18" % (sT, sT),
         "s_add_u32 s%d, s%d, s%d" % (sKV, pK, sT), "s_addc_u32 s%d, s%d, 0" % (sKV + 1, pK + 1),
         "s_mov_b32 s%d, 0x40000" % (sKV + 2), "s_mov_b32 s%d, 0x20000" % (sKV + 3),
         "s_add_u32 s%d, s%d, s%d" % (sVV, pV, sT), "s_addc_u32 s%d, s%d, 0" % (sVV + 1, pV + 1),
         "s_mov_b32 s%d, 0x40000" % (sVV + 2), "s_mov_b32 s%d, 0x20000" % (sVV + 3),
         "v_bfe_u32 v%d, v%d, 2, 2" % (vT, vL), "v_lshrrev_b32 v%d, 4, v%d" % (vT2, vL), "v_lshlrev_b32 v%d, 6, v%d" % (vT2, vT2),
         "v_lshl_add_u32 v%d, v%d, 8, v%d" % (vT2, vT, vT2), "v_and_b32 v%d, 3, v%d" % (vT, vL), "v_lshl_add_u32 v%d, v%d, 4, v%d" % (vT2, vT, vT2),
         "s_lshl_b32 s%d, s%d, 5" % (sG, sRH), "v_xor_b32 v%d, s%d, v%d" % (vT2, sG, vT2), "s_lshl_b32 s%d, s%d, 11" % (sG, sWv),
         "v_add_u32 v%d, s%d, v%d" % (vKV, sG, vT2), "v_xor_b32 v%d, 48, v%d" % (vKV + 1, vKV),
         "v_xor_b32 v%d, 0x80, v%d" % (vKV + 2, vKV), "v_xor_b32 v%d, 0x80, v%d" % (vKV + 3, vKV + 1)])
    pPx, pPw = PK + 20, PK + 21
    a.e(["s_mul_i32 s%d, s%d, 14336" % (sT, sH), "s_lshl_b32 s%d, s%d, 12" % (sG, sWv), "s_add_u32 s%d, s%d, s%d" % (sT, sT, sG),
         "v_and_b32 v%d, 31, v%d" % (pPx, vL), "v_lshlrev_b32 v%d, 7, v%d" % (pPx, pPx), "v_add_u32 v%d, s%d, v%d" % (pPx, sT, pPx),
         "s_lshl_b32 s%d, s%d, 2" % (sT, sB), "s_add_u32 s%d, s%d, s%d" % (sT, sT, sWv), "s_lshl_b32 s%d, s%d, 18" % (sT, sT),
         "v_lshrrev_b32 v%d, 1, v%d" % (pPw, vL), "v_lshlrev_b32 v%d, 13, v%d" % (pPw, pPw),
         "v_and_b32 v%d, 1, v%d" % (vT2, vL), "v_lshl_add_u32 v%d, v%d, 7, v%d" % (pPw, vT2, pPw), "v_add_u32 v%d, s%d, v%d" % (pPw, sT, pPw)])
    a.e(["v_lshlrev_b32 v%d, 4, v%d" % (vL16, vL),
         "v_and_b32 v%d, 15, v%d" % (vT, vL), "v_lshrrev_b32 v%d, 4, v%d" % (vT2, vL),
         "v_and_b32 v%d, 6, v%d" % (vT3, vT), "v_xor_b32 v%d, v%d, v%d" % (vT3, vT3, vT2), "v_lshlrev_b32 v%d, 4, v%d" % (vT3, vT3),
         "v_lshl_add_u32 v%d, v%d, 7, v%d" % (vT3, vT, vT3),
         "s_lshl_b32 s%d, s%d, 15" % (sT, sRH), "s_add_u32 s%d, s%d, 16384" % (sT, sT),
         "v_add_u32 v%d, s%d, v%d" % (vXr, sT, vT3), "v_xor_b32 v%d, 64, v%d" % (vXr + 1, vXr),
         "v_add_u32 v%d, 0x10000, v%d" % (vXr + 2, vXr), "v_add_u32 v%d, 0x10000, v%d" % (vXr + 3, vXr + 1)])
    a.e(["v_bfe_u32 v%d, v%d, 2, 2" % (vT, vL), "v_lshl_add_u32 v%d, v%d, 3, v%d" % (vT, vT2, vT),
         "v_and_b32 v%d, 2, v%d" % (vT3, vT), "v_lshlrev_b32 v%d, 1, v%d" % (vT3, vT3),
         "v_and_b32 v%d, 3, v%d" % (vT2, vL), "v_xor_b32 v%d, v%d, v%d" % (vT3, vT3, vT2), "v_lshlrev_b32 v%d, 4, v%d" % (vT3, vT3),
         "v_lshl_add_u32 v%d, v%d, 7, v%d" % (vT3, vT, vT3),
         "s_lshl_b32 s%d, s%d, 12" % (sT, sKH), "s_add_u32 s%d, s%d, 131072" % (sT, sT),
         "v_add_u32 v%d, s%d, v%d" % (vWr, sT, vT3), "v_xor_b32 v%d, 64, v%d" % (vWr + 1, vWr)])
    a.e(["s_mul_i32 s%d, s%d, 14" % (sT, sB), "s_mul_i32 s%d, s%d, 7" % (sG, sRH), "s_add_u32 s%d, s%d, s%d" % (sT, sT, sG),
         "s_lshl_b32 s%d, s%d, 7" % (sT, sT), "s_lshl_b32 s%d, s%d, 2" % (sG, sH), "s_add_u32 s%d, s%d, s%d" % (sT, sT, sG),
         "s_lshl_b32 s%d, s%d, 1" % (sG, sKH), "s_add_u32 s%d, s%d, s%d" % (sT, sT, sG), "s_lshl_b32 s%d, s%d, 10" % (sT, sT),
         "s_add_u32 s%d, s%d, s%d" % (sO, pWs, sT), "s_addc_u32 s%d, s%d, 0" % (sO + 1, pWs + 1),
         "s_mov_b32 s%d, %d" % (sO + 2, 6 * 131072 + 2048), "s_mov_b32 s%d, 0x20000" % (sO + 3),
         "s_mov_b32 s%d, 0x%x" % (sC, CSCALE), "s_mov_b32 s%d, 0x%x" % (sC + 1, CSCALE),
         "s_and_b32 s%d, s%d, 4" % (sPm, sB), "s_add_u32 s%d, s%d, s%d" % (sPm, sPm, sWv),
         "s_mul_i32 s%d, s%d, %d" % (sT, sRB, 7 * 131072), "s_lshl_b32 s%d, s%d, 14" % (sG, sPm), "s_add_u32 s%d, s%d, s%d" % (sT, sT, sG),
         "s_add_u32 s%d, s%d, s%d" % (sOs, pWs, sT), "s_addc_u32 s%d, s%d, 0" % (sOs + 1, pWs + 1),
         "s_mov_b32 s%d, %d" % (sOs + 2, 6 * 131072 + 16384), "s_mov_b32 s%d, 0x20000" % (sOs + 3),
         "s_lshl_b32 s%d, s%d, 20" % (sT, sPm), "s_lshl_b32 s%d, s%d, 8" % (sG, sCT), "s_add_u32 s%d, s%d, s%d" % (sT, sT, sG),
         "s_add_u32 s%d, s%d, s%d" % (sWs, pWo, sT), "s_addc_u32 s%d, s%d, 0" % (sWs + 1, pWo + 1),
         "s_sub_u32 s%d, 0x100000, s%d" % (sWs + 2, sG), "s_mov_b32 s%d, 0x20000" % (sWs + 3),
         "s_mul_i32 s%d, s%d, %d" % (sT, sRB, 112 * 2048), "s_add_u32 s%d, s%d, s%d" % (sOut, pOut, sT), "s_addc_u32 s%d, s%d, 0" % (sOut + 1, pOut + 1),
         "s_mov_b32 s%d, %d" % (sOut + 2, 112 * 2048), "s_mov_b32 s%d, 0x20000" % (sOut + 3),
         "s_xor_b32 s%d, s%d, 0x10000" % (sRing, sReg),
         "s_lshl_b32 s%d, s%d, 13" % (sSp, sWv), "s_add_u32 s%d, s%d, 131072" % (sSp, sSp),
         "s_sub_u32 s%d, s%d, s%d" % (sD1, sSp, sReg), "s_sub_u32 s%d, s%d, s%d" % (sD2, sRing, sSp)])
    for rt in range(7): a.e("s_mov_b32 s%d, %d" % (sRt + rt, rt * 131072))
    pKr, pVr, pK0, pD, pR, pQ, pFp, pFc, pWoP, pCp = PK, PK + 1, PK + 3, PK + 4, PK + 8, PK + 10, PK + 12, PK + 13, PK + 14, PK + 16
    a.e(flagp(pFp, vT2) + flagc(pFc))
    a.e(["v_bfe_u32 v%d, v%d, 2, 2" % (vT, vL), "v_sub_u32 v%d, 0, v%d" % (vT2, vT), "v_lshrrev_b32 v%d, 4, v%d" % (vT3, vL),
         "v_xor_b32 v%d, v%d, v%d" % (vT2, vT2, vT3), "v_and_b32 v%d, 3, v%d" % (vT2, vT2), "v_lshlrev_b32 v%d, 4, v%d" % (vT2, vT2),
         "v_lshl_add_u32 v%d, v%d, 10, v%d" % (vT2, vT, vT2), "v_and_b32 v%d, 3, v%d" % (pK0, vL), "v_lshlrev_b32 v%d, 6, v%d" % (pK0, pK0),
         "s_lshl_b32 s%d, s%d, 16" % (sG, sKH), "v_add3_u32 v%d, v%d, v%d, s%d" % (pKr, pK0, vT2, sG),
         "v_lshl_add_u32 v%d, v%d, 4, v%d" % (pK0, vT3, pK0),
         "v_sub_u32 v%d, 0, v%d" % (vT2, vT3), "v_bfe_u32 v%d, v%d, 1, 1" % (pVr + 1, vL), "v_xor_b32 v%d, v%d, v%d" % (vT2, vT2, pVr + 1),
         "v_and_b32 v%d, 3, v%d" % (vT2, vT2), "v_lshlrev_b32 v%d, 4, v%d" % (vT2, vT2),
         "v_lshl_add_u32 v%d, v%d, 10, v%d" % (vT2, vT3, vT2), "v_lshl_add_u32 v%d, v%d, 6, v%d" % (vT2, vT, vT2),
         "v_and_b32 v%d, 1, v%d" % (pVr + 1, vL), "v_lshl_add_u32 v%d, v%d, 3, v%d" % (vT2, pVr + 1, vT2),
         "s_add_u32 s%d, s%d, 32768" % (sG, sG), "v_add_u32 v%d, s%d, v%d" % (pVr, sG, vT2), "v_xor_b32 v%d, 32, v%d" % (pVr + 1, pVr),
         "v_add_u32 v%d, s%d, v%d" % (pR, sReg, vT2), "v_xor_b32 v%d, 32, v%d" % (pR + 1, pR),
         "v_lshlrev_b32 v%d, 6, v%d" % (vT2, vT3), "v_lshl_add_u32 v%d, v%d, 11, v%d" % (vT2, vT, vT2), "v_and_b32 v%d, 3, v%d" % (vT, vL),
         "v_lshl_add_u32 v%d, v%d, 4, v%d" % (vT2, vT, vT2), "s_lshl_b32 s%d, s%d, 5" % (sT, sPm), "v_xor_b32 v%d, s%d, v%d" % (pD, sT, vT2)])
    for j in range(1, 4): a.e(["v_xor_b32 v%d, %d, v%d" % (pD + j, ((-j) & 3) * 16, pD), "v_add_u32 v%d, %d, v%d" % (pD + j, j * (8192 - 1024), pD + j)])
    a.e(["v_add_u32 v%d, s%d, v%d" % (pQ, sMW, vL16), "s_lshl_b32 s%d, s%d, 11" % (sT, sRH), "s_add_u32 s%d, s%d, 131072" % (sT, sT), "v_add_u32 v%d, s%d, v%d" % (pQ + 1, sT, vL16),
         "s_lshl_b32 s%d, s2, 2" % sT, "s_add_u32 s%d, s%d, s%d" % (sT, sT, sWv), "s_lshl_b32 s%d, s%d, 13" % (sT, sT),
         "v_lshlrev_b32 v%d, 7, v%d" % (pWoP, vL), "v_add_u32 v%d, s%d, v%d" % (pWoP, sT, pWoP),
         "s_lshl_b32 s%d, s%d, 1" % (sOf, sRB), "s_xor_b32 s%d, s%d, s%d" % (sOf, sOf, sCT), "s_and_b32 s%d, s%d, %d" % (sOf, sOf, O.x3mask), "s_lshl_b32 s%d, s%d, 16" % (sOf, sOf)])
    cp2 = codepf("L_tr", "L_epi", pCp)
    a.e(cp2[:-1])
    a.e([
         "s_lshl_b32 s%d, s2, 15" % sT, "s_lshl_b32 s%d, s%d, 10" % (sG, sWv), "s_add_u32 s%d, s%d, s%d" % (sT, sT, sG),
         "v_and_b32 v%d, 7, v%d" % (vT3, vL), "v_lshlrev_b32 v%d, 7, v%d" % (vT3, vT3), "v_add_u32 v%d, s%d, v%d" % (vT3, sT, vT3), "s_mov_b32 s%d, 0" % sP])
    kvpf = "global_load_dword v%d, v%d, s[%d:%d]" % (vDum, vT3, pWo, pWo + 1)
    zs = [zero16(vr(ACC + 16 * i, 16)) for i in range(7)] + [zero16(vr(OK + 16 * i, 16)) for i in range(2, 7)] + [zero16(ar(aO + 16 * i, 16)) for i in range(4)]
    seg = a.L[su0:]; del a.L[su0:]
    for i_, ln in enumerate(seg):
        if i_ % 7 == 3 and zs: a.e(zs.pop(0))
        a.L.append(ln)
    assert not zs and not any("exec" in ln for ln in seg[:120])
    late = stage_loads(1) + ["buffer_load_dword v%d, v%d, s[%d:%d], 0 offen" % (vDum, pPx, sX, sX + 3), "buffer_load_dword v%d, v%d, s[%d:%d], 0 offen" % (vDum, pPw, sW, sW + 3),
                              kvpf if O.wo_at != 0 else "global_load_dword v%d, v%d, s[%d:%d]" % (vDum, pWoP, pWo, pWo + 1)]
    def kvb(v, off): return "global_load_lds_dwordx4 v%d, s[4:5] offset:%d%s" % (v, off, KVF)
    kvq = ["s_cmp_lt_u32 s%d, 4" % sP, "s_cselect_b32 s4, s%d, s%d" % (sKV, sVV), "s_cselect_b32 s5, s%d, s%d" % (sKV + 1, sVV + 1),
           "s_and_b32 s%d, s%d, 1" % (sT, sP), "s_and_b32 s%d, s%d, 2" % (sG, sP), "s_lshl_b32 s%d, s%d, 12" % (sG, sG),
           "s_lshl_b32 s%d, s%d, 16" % (sT2, sT), "s_add_u32 s%d, s%d, s%d" % (sT2, sT2, sG), "s_mul_i32 s%d, s%d, %d" % (sT, sT, KH),
           "s_mul_i32 s%d, s%d, %d" % (sG, sG, TS_ // 8192), "s_add_u32 s%d, s%d, s%d" % (sT, sT, sG),
           "v_add_u32 v%d, s%d, v%d" % (vT, sT, vKV), "v_add_u32 v%d, s%d, v%d" % (vT2, sT, vKV + 1),
           "s_and_b32 s%d, s%d, 4" % (sG, sP), "s_lshl_b32 s%d, s%d, 13" % (sG, sG), "s_add_u32 s%d, s%d, s%d" % (sT2, sT2, sG),
           "s_and_b32 s%d, s%d, 5" % (sT, sP), "s_cmp_eq_u32 s%d, 5" % sT, "s_cselect_b32 s%d, 128, 0" % sT,
           "v_xor_b32 v%d, s%d, v%d" % (vT, sT, vT), "v_xor_b32 v%d, s%d, v%d" % (vT2, sT, vT2),
           "s_add_u32 s%d, s%d, s%d" % (sT2, sT2, sMW), "s_add_u32 s%d, s%d, 1" % (sP, sP)]
    kvq_m0 = "s_sub_u32 m0, s%d, 0x20000" % sT2

    def wreg(k): return {30: 192, 31: 208}.get(k, aWF + 16 * (k & 1))
    def xreg(k, rt): return 16 * rt + 4 * (k & 3)
    def rdW(k):
        out = []
        for dt in range(4):
            dp, t = dt >> 1, dt & 1
            for sec in range(2):
                out.append("ds_read_b64_tr_b16 %s, v%d offset:%d" % (ar(wreg(k) + 4 * dt + 2 * sec, 2), vWr + dp, (k & 3) * 8192 + sec * 512 + t * 8))
        return out
    def rdX1(s, kk, rt): return "ds_read_b128 %s, v%d offset:%d" % (ar(xreg(2 * s + kk, rt), 4), vXr + 2 * (s & 1) + kk, rt * 2048)
    def rdX(s): return [rdX1(s, kk, rt) for kk in range(2) for rt in range(7)]
    def A(rt, k): return [mfma(vr(ACC + 16 * rt + 4 * dt, 4), ar(wreg(k) + 4 * dt, 4), ar(xreg(k, rt), 4), vr(ACC + 16 * rt + 4 * dt, 4)) for dt in range(4)]
    stamp(4)
    if not O.rd_first: a.e(late)
    a.e(["s_waitcnt vmcnt(%d)" % (2 if O.rd_first else 16), "s_barrier"])
    stamp(4)
    a.e(rdW(0) + rdX(0))
    if O.rd_first: a.e(late)
    a.e(["s_mov_b32 s%d, 7" % sCnt, "s_waitcnt vmcnt(14) lgkmcnt(0)", "s_barrier"])

    wopf = "global_load_dword v%d, v%d, s[%d:%d]" % (vDum, pWoP, pWo, pWo + 1)
    addr28 = ["v_mov_b32 v%d, v%d" % (240 + i, PK + i) for i in range(8)] + ["v_mov_b32 v%d, v%d" % (vR + i, pR + i) for i in range(2)]
    addr28 += ["v_mov_b32 v%d, v%d" % (vQw + i, pQ + i) for i in range(2)] + setK(2)

    def p1_kstep(km, mode, ctl=False):
        sp, kk = km >> 1, km & 1
        mf = [m_ for rt in range(7) for m_ in A(rt, km)]
        gaps = [[] for _ in range(28)]
        rd = rdW(km + 1)
        if kk == 1: rd += rdX(sp + 1)
        dm = []; nxe = O.nxe; tailops = []
        if mode == "loop":
            def xs(js):
                r = []
                for j in js:
                    if j == 4 and j != js[0]: r += [m0X(sp, 1)]
                    r.append(dmaX(j))
                return r
            if kk == 0: dm += [m0W(km), dmaW(0), dmaW(1), m0X(sp, 0)] + incW + xs(list(range(nxe)))
            else:
                if nxe < 7: dm += ([m0X(sp, 1)] if nxe == 4 else []) + xs(list(range(nxe, 7)))
                dm += [m0W(km)] + incX + [dmaW(0), dmaW(1)] + incW
                if km == 3:
                    dm += [kvq_m0]; tailops = [kvb(vT, 0), kvb(vT2, 1024), kvpf]
            endw = "s_waitcnt vmcnt(%d) lgkmcnt(0)" % ((4 + nxe + (3 if km == 0 else 0)) if kk == 0 else 14)
        elif mode == 28:
            endw = "s_waitcnt vmcnt(5) lgkmcnt(0)"
        for g, x in enumerate(rd): gaps[g].append(x)
        def place(items, lo, hi):
            g_ = lo
            for y in items:
                if y.startswith("global_load"): g_ = min(g_ + 1, hi); gaps[g_].insert(0, y); continue
                while g_ < hi and len(gaps[g_]) >= 2: g_ += 1
                gaps[g_].append(y)
        nld = sum(1 for x in dm if x.startswith("buffer_load"))
        if nld:
            pos = [1 + (i * O.p1_span) // nld for i in range(nld)]
            li = 0; pend = []; prev = -1
            for x in dm:
                if x.startswith("buffer_load"):
                    place(pend, max(prev, 0), pos[li] - 1); pend = []
                    gaps[pos[li]].insert(0, x); prev = pos[li]; li += 1
                else: pend.append(x)
            place(pend, prev, 25)
        for i_, x in enumerate(tailops): gaps[23 + i_].insert(0, x)
        if mode == "loop" and km == 2: place(kvq + (["v_add_u32 v%d, 4096, v%d" % (vT3, vT3)] if O.wo_at == 1 else []), 8, 25)
        if mode == 28:
            place(kvq + [kvq_m0], 0, 15); gaps[16].insert(0, kvb(vT, 0)); gaps[17].insert(0, kvb(vT2, 1024)); place(addr28, 18, 25)
        if endw: gaps[26].append(endw); gaps[27].append("s_barrier")
        if ctl:
            gaps[25].append("s_sub_u32 s%d, s%d, 1" % (sCnt, sCnt)); gaps[26].append("s_cmp_lg_u32 s%d, 0" % sCnt)
        weave(a, mf, gaps)
    stamp(4)
    a.raw(".p2align 5")
    a.lab("L_p1")
    for km in range(4): p1_kstep(km, "loop", ctl=(km == 3))
    a.e("s_cbranch_scc1 L_p1")
    p1_kstep(0, 28)
    stamp(4)
    a.lab("L_tr")
    a.e(["s_cmp_lg_u32 s%d, 0" % sPass, "s_cbranch_scc1 L_nofl",
         "global_load_dword v%d, v%d, s[%d:%d] sc1" % (vFc, pFc, pWs, pWs + 1),
         "s_cmp_lg_u32 s%d, 0" % sWv, "s_cbranch_scc1 L_nofl",
         "global_load_dword v%d, v%d, s[%d:%d] sc1" % (vFo, pFp, pWs, pWs + 1)])
    a.lab("L_nofl")
    def ismem(x): return x.startswith(("ds_", "buffer_", "global_", "s_barrier"))
    def spread(mf, side, lo=0, hi=None):
        n = len(mf); hi = n - 1 if hi is None else hi
        gaps = [[] for _ in range(n)]
        g = lo
        for i_, x in enumerate(side):
            g = max(g, lo + (i_ * (hi - lo + 1)) // len(side))
            if ismem(x) and any(y.startswith("v_") for y in gaps[g]) and g < hi: g += 1
            gaps[g].append(x)
        weave(a, mf, gaps)
    def rdK(i, slot):
        t, ks = i & 1, i >> 1
        return "ds_read_b128 %s, v%d offset:%d" % (ar(aK + 16 * t + 4 * ks, 4), vKr, slot * 8192 + t * 4096 + ks * 256)
    def xlane(op, regs_, tmp):
        out = []
        for sw in ("v_permlane32_swap_b32", "v_permlane16_swap_b32"):
            out += ["v_mov_b32 v%d, v%d" % (t_, r_) for r_, t_ in zip(regs_, tmp)]
            out += ["%s v%d, v%d" % (sw, r_, t_) for r_, t_ in zip(regs_, tmp)]
            out += ["%s v%d, v%d, v%d" % (op, r_, r_, t_) for r_, t_ in zip(regs_, tmp)]
        return out
    def qk(rt, sb):
        out = []
        for i in range(8):
            t, ks = i & 1, i >> 1
            d = vr(S + 8 * sb + 4 * t, 4)
            out.append(mfma(d, ar(aK + 16 * t + 4 * ks, 4), ar(aQ + 16 * rt + 4 * ks, 4), vr(M + 4 * rt, 4) if ks == 0 else d))
        return out
    def oacc(rt, i): return vr(OK + 16 * rt + 4 * i, 4) if i < 4 else ar(aO + 16 * rt + 4 * (i - 4), 4)
    def pv(rt, pb): return [mfma(oacc(rt, i), vr(V + 4 * i, 4), vr(P + 4 * pb, 4), oacc(rt, i)) for i in range(8)]
    aK0 = 176
    def Bq(rt):
        o = []
        for dp in range(2):
            b = ACC + 16 * rt + 8 * dp
            for i in range(4): o += ["v_mul_f32 v%d, s%d, v%d" % (b + 2 * i, sC, b + 2 * i), "v_mul_f32 v%d, s%d, v%d" % (b + 2 * i + 1, sC, b + 2 * i + 1),
                                     "v_cvt_pk_bf16_f32 v%d, v%d, v%d" % (b + i, b + 2 * i, b + 2 * i + 1)]
            if dp == 0: o.append("s_waitcnt lgkmcnt(0)")
            o.append("ds_write_b128 v%d, %s offset:%d" % (vQw, vr(b, 4), (rt & 3) * 8192 + dp * 1024))
        return o
    def Cq(rt): return ["ds_read_b128 %s, v%d offset:%d" % (ar(aQ + 16 * rt + 4 * ks, 4), vQr, (rt & 3) * 8192 + (ks >> 1) * 4096 + (ks & 1) * 1024) for ks in range(4)]
    def PP(rt): return [mfma(vr(M + 4 * rt, 4), ar(aK0 + 4 * ks, 4), ar(aQ + 16 * rt + 4 * ks, 4), "0" if ks == 0 else vr(M + 4 * rt, 4)) for ks in range(4)]
    def Dq(rt):
        b = M + 4 * rt
        return ["v_max3_f32 v%d, v%d, v%d, v%d" % (b, b, b + 1, b + 2), "v_max_f32 v%d, v%d, v%d" % (b, b, b + 3)] + ["v_sub_f32 v%d, 0, v%d" % (b + i, b) for i in (1, 2, 3, 0)]
    sync = ["s_waitcnt lgkmcnt(0)", "s_barrier"]
    kvs = [[ptm0(reg, sl), "s_nop 0"] + ptld(reg) + (incK if reg == 3 else []) for sl in (2, 3) for reg in PORD]
    if O.t3late: kvs = [kvs[0], [], kvs[1], [], kvs[2], [], kvs[3], []]
    pfs = ([cp2[-1]] if O.pf_code else []) + ([wopf] if O.wo_at == 29 else [])
    t1 = rdW(30) + [rdX1(15, 0, 0)] + rdW(31) + [rdX1(15, 1, 0)] + [rdX1(15, kk, rt) for rt in range(1, 7) for kk in range(2)]
    spread([m_ for rt in range(5) for m_ in A(rt, 29)], t1 + pfs + sync, 0, 19)
    stamp(1)
    for i in range(8):
        mf = (A(i, 30) + A(i, 31) if i < 7 else qk(0, 0)) + (A(5 + i, 29) if i < 2 else PP(i - 2))
        side = []
        if i == 0: mf += [zero16(vr(OK, 16)), zero16(vr(OK + 16, 16))]
        if i == 1: side += ["s_waitcnt vmcnt(%d)" % (2 + len(pfs)), "s_barrier"] + ["ds_read_b128 %s, v%d offset:%d" % (ar(aK0 + 4 * ks, 4), vK0, ks * 256) for ks in range(4)]
        bq = Bq(i - 1) if i >= 1 else []
        nb = O.nb if i >= 2 else 0
        if nb:
            bq = [x for x in bq if not x.startswith("s_waitcnt")]
            w0 = [x for x in bq if x.startswith("ds_write")][0]; bq.remove(w0)
            bq = bq[:18] + ["s_waitcnt lgkmcnt(0)", w0] + bq[18:]
        side += bq[:nb]
        if i >= 2: side += sync + Cq(i - 2)
        if i in (3, 4): side += [rdK(j, 0) for j in range(4 * (i - 3), 4 * (i - 2))]
        side += bq[nb:]
        if i >= 3: side += Dq(i - 3)
        if i == 7: side += ["v_mov_b32 v%d, 0" % j for j in range(L, L + 4)] + ["s_mov_b32 s%d, 3" % sCnt]
        side += kvs[i]
        spread(mf, side)
    if O.ts: a.e(["s_mov_b32 s81, 0", "v_mov_b32 v252, 0"])
    a.e(["s_cmp_lg_u32 s%d, 0" % sPass, "s_cbranch_scc1 L_maxpass"])
    stamp(1)
    NA = 0

    def dma3(j): return "buffer_load_dwordx4 v%d, s[%d:%d], s%d offen offset:%d lds" % (vD + j, sWs, sWs + 3, sWo, j * 1024)
    def setWo(u): return "s_xor_b32 s%d, s%d, 0x%x" % (sWo, sOf, u * 32768)
    def wset(n): return (0, 32, 64, 224)[n & 3]
    def rd3(k, off, dts=range(8)):
        return ["ds_read_b64_tr_b16 %s, v%d offset:%d" % (ar(wset(k) + 4 * dt + 2 * sec, 2), vR + (dt & 1), off + (dt >> 1) * 256 + sec * 4096) for dt in dts for sec in range(2)]
    def xw(rt): return ["ds_write_b128 v%d, %s offset:%d" % (vTa, ar(aO + 16 * rt + 4 * i, 4), rt * 4096 + i * 1024) for i in range(4)]
    vm = VM(["kv"])
    sDyn, sDd = 10, 11
    KV = " ;kv"
    def dm0(reg): return "s_add_u32 m0, s%d, %d" % (sDyn, reg * 32768)
    incD = incK + ["s_add_u32 s%d, s%d, 8192" % (sDyn, sDyn), "s_and_b32 s%d, s%d, 0x7fff" % (sDyn, sDyn)]
    initD = ["s_sub_u32 s%d, s%d, 0x20000" % (sDyn, sMW), "s_mov_b32 s%d, 0" % sDd]
    vFp, vFa = 239, 252
    def loff(rt): return 28672 + (rt & 3) * 4 + (rt >> 2) * 1024
    def lw(rt): return "ds_write_b32 v%d, v%d offset:%d" % (vTa, L + rt, loff(rt))
    def rdc(rt, pb): return ["ds_read_b32 v%d, v%d offset:%d" % (E2 + 2 + (rt & 1), vTb, loff(rt))] + ["ds_read_b128 %s, v%d offset:%d" % (vr(pb + 4 * i, 4), vTb, (rt * 4 + i) * 1024) for i in range(4)]
    def comb(rt, pb):
        ob = OK + 16 * rt; t = E2 + 2 + (rt & 1)
        return (["v_add_f32 v%d, v%d, v%d" % (t, t, L + rt), "v_rcp_f32 v%d, v%d" % (t, t)] + ["v_add_f32 v%d, v%d, v%d" % (ob + i, ob + i, pb + i) for i in range(16)]
                + [x for i in range(8) for x in ("v_mul_f32 v%d, v%d, v%d" % (ob + 2 * i, ob + 2 * i, t), "v_mul_f32 v%d, v%d, v%d" % (ob + 2 * i + 1, ob + 2 * i + 1, t),
                                                 "v_cvt_pk_bf16_f32 v%d, v%d, v%d" % (ob + i, ob + 2 * i, ob + 2 * i + 1))])
    def ost(rt): return ["buffer_store_dwordx4 %s, v%d, s[%d:%d], s%d offen offset:%d sc1" % (vr(OK + 16 * rt + 4 * p, 4), vL16, sO, sO + 3, sRt + rt, p * 1024) for p in range(2)]
    pend = []; cost = [0]
    def step(js, r, last=False, first=False, kv=False, ctl=False):
        u = 7 * js + r
        fin = last and js == 3
        mf = ([] if (fin and r == 6) else qk((r + 1) % 7, (u + 1) & 1)) + pv((r + 6) % 7, (u + 1) & 1)
        mem = [[] for _ in range(16)]; val = [[] for _ in range(16)]
        pk = not fin and not (first and r == 0)
        Eb = E2 if (pk and u & 1) else E
        for e in range(8):
            val[2 * e].append("v_exp_f32 v%d, v%d" % (Eb + e, S + 8 * (u & 1) + e))
            if not pk: val[2 * e + 1].append("v_add_f32 v%d, v%d, v%d" % (L + r, L + r, Eb + e))
            if e & 1: val[2 * e + 1].append("v_cvt_pk_bf16_f32 v%d, v%d, v%d" % (P + 4 * (u & 1) + (e >> 1), Eb + e - 1, Eb + e))
        if first and r == 0:
            mf = mf[:8] + PP(6) + [zero16(ar(192, 16)), zero16(ar(208, 16))]
            mem[0] += sync + Cq(6)[:2]; mem[1] += Cq(6)[2:]; mem[7].append("s_waitcnt lgkmcnt(0)")
            for i_, x in enumerate(Dq(5)): val[3 + 2 * i_].append(x)
        if first and r == 1:
            for i_, x in enumerate(Dq(6) + ["v_mov_b32 v%d, 0" % j for j in range(L + 4, L + 7)]): val[1 + 4 * (i_ % 4)].append(x) if i_ >= 6 else val[1 + 2 * i_].append(x)
        if first and r == 2: mem[9].append(zero16(ar(176, 16)))
        if first and r == 3: mem[1].append(initD[0]); mem[5].append(initD[1])
        vrd = ["ds_read_b64_tr_b16 %s, v%d offset:%d" % (vr(V + 4 * i + 2 * sec, 2), vVr + (i & 1), js * 8192 + (i >> 1) * 256 + sec * 4096) for i in range(8) for sec in range(2)]
        if not fin and not first:
            if r == 0: mem[9] += vrd[0:3]; mem[11] += vrd[3:5]; mem[13] += vrd[5:8]; mem[15] += vrd[8:10]
            if r == 1:
                mem[1] += vrd[10:12]; mem[3] += vrd[12:14]; mem[5] += vrd[14:16]
                mem[7].append("s_waitcnt lgkmcnt(4)"); mem[13].append("s_waitcnt lgkmcnt(0)")
        else:
            if r == 0:
                for i in range(16): mem[8 + i // 2].append(vrd[i])
            if r == 1: mem[5].append("s_waitcnt lgkmcnt(%d)" % (5 if fin else 0))
        if r == 5 and not fin: mem[0].append("s_barrier")
        if r == 4 and not last: mem[13].append("s_getreg_b32 s%d, hwreg(HW_REG_IB_STS)" % sT2)
        if r == 4 and ctl: mem[9].append("s_sub_u32 s%d, s%d, 1" % (sCnt, sCnt)); mem[11].append("s_cmp_lg_u32 s%d, 0" % sCnt)
        if kv:
            pts = [tuple(int(y) for y in x.split(".")) for x in O.pts.split(",")]
            pos = [((pr_ - 5) % 7) * 16 + pg_ for pr_, pg_ in pts]
            here = ((r - 5) % 7) * 16
            def put(p_, xs):
                if here <= p_ < here + 16: mem[p_ - here] += [x + KV for x in xs]
            for n_ in range(4):
                put(pos[n_] - 2, [dm0(PORD[n_])]); put(pos[n_], ptld(PORD[n_]))
            put(pos[3] + 2, incD[0:2]); put(pos[3] + 4, incD[2:4])
        if last:
            sched = {(0, 6): 0, (1, 1): 6, (1, 3): 1, (1, 6): 7, (2, 0): 2, (2, 2): 3, (2, 5): 4, (3, 0): 5}
            if (js, r) in sched:
                k = sched[(js, r)]
                base, off = (sReg, k * 4096) if k < 6 else (sSp, (k - 6) * 4096)
                g0 = (9, 11, 13, 15) if r == 5 else ((1, 3, 5, 7) if r == 0 else (1, 5, 9, 13))
                mem[g0[0] - 1] += ["s_add_u32 m0, s%d, %d" % (base, off), setWo(k)]
                for j in range(4): mem[g0[j]].append(("w%d" % k, dma3(j)))
            if r == 4 and js < 3: mem[13].append(("wait", "kv"))
            if r == 5 and js < 2:
                mem[11].append("s_cmp_ge_u32 s%d, %d" % (sK0, 16 * TS_))
                mem[13].append(("kv", ["s_cbranch_scc1 L_ok%d" % js] + [x for reg in PORD for x in [dm0(reg), "s_nop 0"] + ptld(reg)] + incD + ["L_ok%d:" % js]))
            if js == 2 and r == 3 and O.pf_code:
                pf = codepf("L_epi", "L_end", vT)
                for i_, x in enumerate(pf[:-1]): val[1 + 2 * i_].append(x)
                mem[15].append(("pf", pf[-1]))
            if js == 1 and r == 2:
                val[1] += ["v_add_u32 v%d, s%d, v%d" % (vTa, sReg, vL16)]; val[5] += ["v_add_u32 v%d, s%d, v%d" % (vTb, sRing, vL16)]
            if js == 1 and r == 4:
                for i_, x in enumerate(flagp(vFp, vT2)): val[1 + 2 * (i_ // 4)].append(x)
            if js == 2 and r == 1:
                for i_, x in enumerate(["s_lshr_b32 s%d, s%d, 6" % (sT, sOf), "v_add_u32 v248, s%d, v%d" % (sT, vL16), "v_add_u32 v%d, 1, v%d" % (vFo, vFo)]): val[9 + 2 * i_].append(x)
            if js == 2 and r == 4:
                fc = flagc(vFa)
                for i_, x in enumerate(fc[:-3]): val[1 + 2 * (i_ // 2)].append(x)
                val[11] += fc[-3:]
            if fin:
                h2 = 8 if 2 <= r < 6 else 0
                if r < 6:
                    if r % 2 == 0: mem[h2] += [("wait", "w%d" % r), ("wait", "w%d" % (r + 1))]
                if r == 1: mem[9].append("s_barrier")
                g1 = list(range(0, 8)) if r < 6 else [8, 8, 9, 9, 10, 10, 11, 11]
                g2 = list(range(8, 16)) if r < 6 else [12, 12, 13, 13, 14, 14, 15, 15]
                if r >= 3: mem[g1[0]].append("s_waitcnt lgkmcnt(0)")
                if r >= 2:
                    for i_, x in enumerate(xw(r - 2) + [lw(r - 2)]): mem[g1[1 + i_]].append(x)
                    mem[g2[0]] += sync
                    for i_, x in enumerate(rdc(r - 2, 128)): mem[g2[(i_ + 1) // 2]].append(x)
                if r < 6:
                    for i_, x in enumerate(rd3(r >> 1, (r >> 1) * 8192, range(4 * (r & 1), 4 * (r & 1) + 4))): mem[h2 + (i_ if h2 == 0 else 3 + i_ // 2)].append(x)
                else:
                    mem[8] += [("wait", "w6"), ("wait", "w7")]
                    for i_, x in enumerate(rd3(3, 0)): mem[8 + i_ // 2].append(x)
                vg = r < 6
                if r >= 3:
                    cb = comb(r - 3, 128)
                    for i_, x in enumerate(cb[:18]): val[(i_ * 8) // 18].append(x)
                    for i_, x in enumerate(cb[18:]): val[8 + (i_ * 6) // 24].append(x)
                    mem[15] += [("st", x) for x in ost(r - 3)]
                    if O.wfin and r >= 4:
                        u_ = 8 + r - 4
                        mem[g1[0]] += ["s_add_u32 m0, s%d, %d" % (sRing, (u_ & 7) * 4096), setWo(u_)]
                        for j in range(4): mem[g1[2 + j]].append(("w%d" % u_, dma3(j)))
                if r >= 1:
                    for i_, x in enumerate(xlane("v_add_f32", [L + r - 1], [E2])): val[3 + 2 * i_].append(x)
                if r == 5: val[15] += ["v_add_u32 v%d, s%d, v%d" % (vR + i, sD1, vR + i) for i in range(2)]
        if r == 5 and not fin:
            for i in range(8): mem[(1, 1, 3, 5, 5, 7, 9, 9)[i]].append(rdK(i, (js + 1) & 3))
            mem[15].insert(0, "s_waitcnt lgkmcnt(0)")
            if O.ts: mem[11] += TS_A; mem[15] += TS_B
        if fin and r == 6:
            mem = [mem[8 + i] for i in range(8)]
            val = [val[2 * i] + val[2 * i + 1] for i in range(8)]
            val = [[v_[0], "s_nop 0"] + v_[1:] for v_ in val]
            a.e("s_nop 1")
        if first and r == 0:
            mem = mem[:12] + [mem[12] + mem[13], mem[14] + mem[15]]
            val = val[:12] + [val[12] + ["s_nop 0"] + val[13], val[14] + ["s_nop 0"] + val[15]]
        if pk:
            flush = r == 4 or (last and js == 2 and r == 6)
            old_ = len(pend)
            for g in range(1, 16, 2):
                pend.append("v_add_f32 v%d, v%d, v%d" % (L + r, L + r, Eb + g // 2))
                n_ = max(0, 2 - len(mem[g]) - len(val[g]))
                if g == 15: n_ = max(n_, len(pend) if flush else old_)
                n_ = min(n_, len(pend))
                val[g] += pend[:n_]; del pend[:n_]; old_ = max(0, old_ - n_)
        else: assert not pend
        if O.padn and pk:
            for i_ in range(O.padn): val[2 * i_].append("s_nop 0")
        for g_, v_ in zip(mem, val): cost[0] += max(16, 8 + sum(8 if (isinstance(x, str) and "v_exp" in x) else 4 for x in g_ + v_))
        if r == 4:
            if O.verbose: print("unit ending", js, last, first, "model cycles", cost[0], file=sys.stderr)
            cost[0] = 0
        for m_, g_, v_ in zip(mf, mem, val):
            a.e(m_)
            for x in g_:
                if isinstance(x, tuple):
                    if x[0] == "wait": a.e("s_waitcnt vmcnt(%d)" % vm.n(x[1]))
                    elif x[0] == "kv": vm.issue("kv", True); a.e(x[1])
                    else: vm.issue(x[0]); a.e(x[1])
                else: a.e(x)
            a.e(v_)
    for r in range(5): step(0, r, first=True)
    quiet = []
    a.raw(".p2align 5")
    a.lab("L_loop")
    for js in range(4):
        if O.force_skip & (1 << js): a.e("s_or_b32 s%d, s%d, 15" % (sT2, sT2))
        a.e(["s_and_b32 s%d, s%d, 0xc0000f" % (sT2, sT2), "s_cbranch_scc1 L_h%d" % js])
        a.lab("L_u%d" % js)
        q0 = len(a.L)
        for r in (5, 6): step(js, r, kv=True)
        step((js + 1) & 3, 0, kv=True)
        qe = max(i_ for i_ in range(q0, len(a.L)) if a.L[i_].endswith(KV)) + 1
        quiet.append([ln for ln in a.L[q0:qe] if not ln.endswith(KV)])
        a.L.insert(qe, "L_j%d:" % js)
        for r in range(1, 5): step((js + 1) & 3, r, ctl=(js == 3))
    a.e("s_cbranch_scc1 L_loop")
    a.lab("L_last")
    a.e(["s_cmp_lt_u32 s%d, 2" % sDd, "s_cbranch_scc1 L_d1", "s_waitcnt vmcnt(0)", "L_d1:", "s_waitcnt vmcnt(8)"])
    for r in (5, 6): step(0, r, last=True)
    for js in range(1, 4):
        for r in range(7): step(js, r, last=True)
    stamp()

    a.lab("L_epi")
    misc = ["v_add_f32 v%d, v%d, v%d" % (vTc, L, L + 1)] + ["v_add_f32 v%d, v%d, v%d" % (vTc, vTc, L + i) for i in range(2, 7)]
    misc += ["s_mov_b32 s%d, 0x%x" % (sT, THR if not O.force_slow else 0), "s_lshl_b32 s%d, s%d, 2" % (sG, sWv),
             "v_cmp_ngt_f32 vcc, s%d, v%d" % (sT, vTc),
             "s_add_u32 s%d, s%d, 30720" % (sG, sG), "v_mov_b32 v%d, s%d" % (vT, sG),
             "s_cmp_lg_u64 vcc, 0", "s_cselect_b32 s%d, 1, 0" % sT, "v_mov_b32 v%d, 30720" % vT2, "v_mov_b32 v%d, s%d" % (L + 7, sT)]
    xl = xlane("v_add_f32", [L + 6], [E2])
    pvl = pv(6, 1); pvl = pvl[4:] + pvl[:4]
    gp = [[] for _ in range(8)]
    for i_, x in enumerate(xw(5) + [lw(5)]): gp[2 + i_].append(x)
    for i_, x in enumerate(misc): gp[(i_ * 8) // len(misc)].append(x)
    for i_, x in enumerate(xl): gp[2 + i_].append(x)
    a.e(["s_waitcnt lgkmcnt(0)", "s_nop 0"])
    weave(a, pvl, gp)
    a.e(xw(6) + [lw(6), "ds_write_b32 v%d, v%d" % (vT, L + 7)])
    def combp(rt, pb):
        ob = OK + 16 * rt; t = E2 + 2
        o = ["v_add_f32 v%d, v%d, v%d" % (t + (rt & 1), t + (rt & 1), L + rt), "v_rcp_f32 v%d, v%d" % (t + (rt & 1), t + (rt & 1))]
        o += ["v_pk_add_f32 %s, %s, %s" % (vr(ob + 2 * i, 2), vr(ob + 2 * i, 2), vr(pb + 2 * i, 2)) for i in range(8)]
        o += ["v_pk_mul_f32 %s, %s, %s %s" % (vr(ob + 2 * i, 2), vr(ob + 2 * i, 2), vr(t, 2), "op_sel:[0,1]" if rt & 1 else "op_sel_hi:[1,0]") for i in range(8)]
        return o + ["v_cvt_pk_bf16_f32 v%d, v%d, v%d" % (ob + i, ob + 2 * i, ob + 2 * i + 1) for i in range(8)]
    def stores(rt):
        for x in ost(rt): vm.issue("st"); a.e(x)
    c4 = combp(4, 128)
    a.e(c4[:18] + sync)
    stamp(2)
    a.e(["ds_read_b128 %s, v%d" % (vr(216, 4), vT2)] + rdc(5, 144) + rdc(6, 160) + c4[18:])
    stores(4)
    a.e(["v_add_u32 v%d, s%d, v%d" % (vR + i, sD2, vR + i) for i in range(2)])
    a.e(["s_waitcnt lgkmcnt(5)", "v_or3_b32 v216, v216, v217, v218", "v_or_b32 v216, v216, v219"] + combp(5, 144) + ["v_readfirstlane_b32 s%d, v216" % sT])
    stores(5)
    a.e(["s_waitcnt lgkmcnt(0)"] + combp(6, 160))
    stores(6)
    a.e(["s_andn2_b32 s%d, s%d, s%d" % (sT, sT, sPass), "s_cbranch_scc1 L_slow"])
    def wload(k, j):
        if j == 0: a.e(["s_add_u32 m0, s%d, %d" % (sRing, (k & 7) * 4096), setWo(k)])
        vm.issue("w%d" % k); a.e(dma3(j))
    wi = 12 if O.wfin else 0
    stamp(2)
    ACC3, OF = 16, 128
    vS, vOo, vOut, vPs = 6, 248, 249, 250
    def acc3(rt, sl):
        hb, wv = sl >> 2, sl & 3
        return vr(ACC3 + 16 * rt + 4 * (2 * hb + wv), 4) if wv < 2 else ar(112 + 16 * rt + 4 * (2 * hb + wv - 2), 4)
    for _ in range(min(O.w_late, 28 - wi)): wload(8 + wi // 4, wi % 4); wi += 1
    a.e(["s_lshl_b32 s%d, s%d, 5" % (sT, sB), "s_add_u32 s%d, s%d, s%d" % (sT, sT, sH), "v_mov_b32 v%d, s%d" % (vT2, sT), "v_mov_b32 v%d, 1" % vT3,
         "v_xor_b32 v243, 0x80, v%d" % vT2, "v_mov_b32 v241, v%d" % vFa,
         "s_lshr_b32 s%d, s%d, 1" % (sT, sRB), "s_lshl_b32 s%d, s%d, 5" % (sT, sT), "s_lshl_b32 s%d, s%d, 2" % (sG, sPm), "s_add_u32 s%d, s%d, s%d" % (sT, sT, sG),
         "v_mov_b32 v242, s%d" % sT, "s_mov_b32 s%d, 0x40000" % sCnt])
    a.e(["s_waitcnt vmcnt(%d)" % vm.n("st"), "s_barrier"])
    stamp(2)
    if O.stamps: a.e("s_memrealtime s[6:7]")
    a.e(["s_cmp_lg_u32 s%d, 0" % sWv, "s_cbranch_scc1 L_noflag",
         "s_mov_b64 exec, 0xfffff", "global_store_dword v%d, v%d, s[%d:%d] sc1" % (vFp, vFo, pWs, pWs + 1),
         "s_mov_b64 exec, 1", "global_store_byte v%d, v%d, s[%d:%d] sc1" % (vT2, vT3, pDbg, pDbg + 1), "s_mov_b64 exec, -1"])
    a.lab("L_noflag")
    stamp(2)
    def wpieces(lo, hi):
        out = []
        for p_ in range(lo, hi):
            u, j = 8 + p_ // 4, p_ % 4
            out.append((["s_add_u32 m0, s%d, %d" % (sRing, (u & 7) * 4096), setWo(u)] if j == 0 else [], ("w%d" % u, dma3(j))))
        return out
    if O.dynw:
        a.e(["s_mov_b64 exec, 31", "global_load_dword v%d, v241, s[%d:%d] sc1" % (vT, pWs, pWs + 1), "s_waitcnt vmcnt(0)", "v_cmp_eq_u32 vcc, v%d, v%d" % (vT, vFc), "s_nop 0", "s_cbranch_vccz L_go", "s_mov_b64 exec, -1"])
        for pre, op in wpieces(wi, 32): a.e(pre + [op[1]])
    a.e("s_mov_b64 exec, 31")
    a.lab("L_poll")
    a.e(["global_load_dword v%d, v241, s[%d:%d] sc1" % (vT, pWs, pWs + 1), "s_sub_u32 s%d, s%d, 1" % (sCnt, sCnt), "s_cbranch_scc1 L_go",
         "s_waitcnt vmcnt(0)", "v_cmp_eq_u32 s[%d:%d], v%d, v%d" % (sC, sC + 1, vT, vFc), "s_nop 0", "s_cmp_eq_u64 s[%d:%d], 0" % (sC, sC + 1), "s_cbranch_scc1 L_go",
         "s_and_b32 s%d, s%d, 15" % (sT, sCnt), "s_cbranch_scc1 L_poll",
         "global_load_dword v%d, v242, s[%d:%d] sc1" % (vT, pDbg, pDbg + 1), "global_load_ubyte v%d, v243, s[%d:%d] sc1" % (vT2, pDbg, pDbg + 1), "s_waitcnt vmcnt(0)",
         "v_add_u32 v%d, v%d, v%d" % (vT, vT, vT2), "s_nop 0", "v_readfirstlane_b32 s%d, v%d" % (sT, vT),
         "s_nop 0", "s_cmp_eq_u32 s%d, 0x01010102" % sT, "s_cbranch_scc0 L_poll"])
    a.lab("L_go")
    a.e("s_mov_b64 exec, -1")
    if O.wggo: a.e("s_barrier")
    stamp()
    if O.stamps: a.e(["s_memrealtime s[4:5]", "s_sub_u32 s10, 0x40000, s11"])
    def ldO(rt, k): return "buffer_load_dwordx4 %s, v%d, s[%d:%d], s%d offen sc1" % (vr(OF + 28 * (k & 3) + 4 * rt, 4), vOo, sOs, sOs + 3, sRt + rt)
    def incO(k): return "v_xor_b32 v%d, 0x%x, v%d" % (vOo, (k ^ (k + 1)) << 10, vOo)
    for k in range(2):
        for rt in range(7): vm.issue("o%d" % k); a.e(ldO(rt, k))
        a.e(incO(k))
    a.e(["v_add_u32 v%d, s%d, v%d" % (vS, sRing, vL16)])
    for i in range(1, 4): a.e(["v_xor_b32 v%d, 0x%x, v%d" % (vS + i, i << 15, vS)])
    a.e(["v_and_b32 v%d, 15, v%d" % (vT, vL), "v_lshrrev_b32 v%d, 4, v%d" % (vT2, vL), "v_lshlrev_b32 v%d, 3, v%d" % (vT2, vT2),
         "v_lshl_add_u32 v%d, v%d, 11, v%d" % (vT, vT, vT2),
         "s_lshl_b32 s%d, s%d, 8" % (sT, sCT), "s_lshl_b32 s%d, s%d, 5" % (sG, sPm), "s_add_u32 s%d, s%d, s%d" % (sT, sT, sG),
         "v_add_u32 v%d, s%d, v%d" % (vOut, sT, vT)] + boxaddr(vPs) + ["v_xor_b32 v%d, 0x8000, v%d" % (vPs + 1, vPs)])
    a.e(["s_waitcnt vmcnt(%d)" % (vm.n("o0") + 6)])
    def redw(rt, hb, wv): return "ds_write_b128 v%d, %s offset:%d" % (vS, acc3(rt, 4 * hb + wv), (wv - 1) * 7168 + rt * 1024)
    def redr(rt, wv, d): return "ds_read_b128 %s, v%d offset:%d" % (vr(d, 4), vS + wv, (wv - 1) * 7168 + rt * 1024)
    def mf3(rt, sl, k): return mfma(acc3(rt, sl), ar(wset(k) + 4 * sl, 4), vr(OF + 28 * (k & 3) + 4 * rt, 4), acc3(rt, sl) if k else "0")
    def emit(mf, gaps):
        for m_, g_ in zip(mf, gaps):
            a.e(m_)
            for x in g_:
                if isinstance(x, tuple):
                    if x[0] == "wait": a.e("s_waitcnt vmcnt(%d)%s" % (min(vm.n(t_) for t_ in x[1]), " lgkmcnt(0)" if x[2] else ""))
                    elif x[0] == "wait0": a.e("s_waitcnt vmcnt(%d)" % (vm.n("o0") + x[1]))
                    elif isinstance(x[1], list):
                        nsk[0] += 1
                        for _ in range(4): vm.issue(x[0], True)
                        a.e(["s_cbranch_vccnz L_sk%d" % nsk[0]] + x[1]); a.lab("L_sk%d" % nsk[0])
                    elif (O.dbg3 & 1 and x[0][0] == "w") or (O.dbg3 & 2 and x[0][0] == "o" and int(x[0][1:]) > 3): vm.issue(x[0])
                    else: vm.issue(x[0]); a.e(x[1])
                elif O.dbg3 & 4 and x.startswith("ds_read_b64"): pass
                else: a.e(x)
    nsk = [0]
    ws0, ws1 = 2, O.ws1
    pstep = [ws0 + (p_ * (ws1 - ws0)) // 64 for p_ in range(64)]
    rstep = {m_: m_ - 3 for m_ in range(4, 8)}
    for m_ in range(8, 16):
        rstep[m_] = max(m_ - 3, pstep[8 * (m_ - 8) + 7] + 2)
        assert pstep[8 * (m_ - 8)] > rstep[m_ - 4] and rstep[m_] <= min(m_ - 1, 13) and (m_ == 15 or rstep[m_] <= 12), m_
    for k in range(13):
        mf = [mf3(rt, sl, k) for rt in range(7) for sl in range(8)]
        gaps = [[] for _ in range(56)]
        rds = [m_ for m_ in rstep if rstep[m_] == k]
        for g, x in enumerate([y for m_ in rds for y in rd3(m_, (m_ & 3) * 8192)]): gaps[g].append(x)
        wl = []
        if k < 3:
            assert wi % 4 == 0 and wi >= 8 and O.dynw
            us = list(range(wi // 4, 8)); us = us[(len(us) * k) // 3:(len(us) * (k + 1)) // 3]
            wl = [([], ("w%d" % (8 + u_), [y for pre, op in wpieces(4 * u_, 4 * u_ + 4) for y in pre + [op[1]]])) for u_ in us]
        ps_ = [p_ for p_ in range(64) if pstep[p_] == k]
        if ps_: wl += wpieces(32 + ps_[0], 32 + ps_[-1] + 1)
        ol = [([], ("o%d" % kk_, ldO(rt, kk_))) + ((incO(kk_),) if rt == 6 else ()) for kk_ in ([2, 3] if k == 0 else [k + 3]) for rt in range(7)]
        ld = sorted([((i_ + 0.5) / len(wl), x) for i_, x in enumerate(wl)] + [((i_ + 0.25) / len(ol), x) for i_, x in enumerate(ol)], key=lambda t_: t_[0])
        for i_, (_, x) in enumerate(ld):
            g = 1 + (i_ * 53) // len(ld)
            gaps[g - 1] += x[0]; gaps[g].insert(0, x[1])
            if len(x) > 2: gaps[g].append(x[2])
        if k == 0:
            for rt in range(1, 7): gaps[8 * rt - 1].append(("wait0", 6 - rt))
        need_ = ["o%d" % (k + 1)] + ["w%d" % (2 * m_ + 1) for m_ in rstep if rstep[m_] == k + 1]
        gaps[55].append(("wait", need_, bool(rds)))
        emit(mf, gaps)
    mf = [mf3(rt, 4 * hb + wv, k) for hb in (1, 0) for k in (13, 14, 15) for rt in range(7) for wv in range(4)]
    gaps = [[] for _ in range(168)]
    if rstep[15] == 13:
        for g, x in enumerate(rd3(15, 3 * 8192)): gaps[g].append(x)
    gaps[27].append(("wait", ["o14"], False)); gaps[55].append(("wait", ["o15"], True))
    for rt in range(7):
        for wv in range(1, 4): gaps[56 + 4 * rt + wv + 8].append(redw(rt, 1, wv))
    gaps[94].append("s_waitcnt lgkmcnt(0)"); gaps[95].append("s_barrier")
    def tmp1(rt, wv): return (ACC3 + 16 * rt + 12, OF + 4 * rt, OF + 28 + 4 * rt)[wv - 1]
    for rt in range(7):
        g = 96 + 4 * rt
        gaps[g] += [redr(rt, 1, tmp1(rt, 1)), redr(rt, 2, tmp1(rt, 2))]; gaps[g + 1].append(redr(rt, 3, tmp1(rt, 3)))
    for rt in range(7):
        g = 96 + 4 * rt + 6; b = ACC3 + 16 * rt + 8
        gaps[g - 1].append("s_waitcnt lgkmcnt(%d)" % (3 if rt < 6 else 0))
        ads = ["v_add_f32 v%d, v%d, v%d" % (b + i, b + i, tmp1(rt, 1) + i) for i in range(4)]
        ads += ["v_add_f32 v%d, v%d, v%d" % (tmp1(rt, 2) + i, tmp1(rt, 2) + i, tmp1(rt, 3) + i) for i in range(4)]
        ads += ["v_add_f32 v%d, v%d, v%d" % (b + i, b + i, tmp1(rt, 2) + i) for i in range(4)]
        gaps[g] += ads[0:4]; gaps[g + 1] += ads[4:8]; gaps[g + 2] += ads[8:10]; gaps[g + 3] += ads[10:12]
        gaps[g + 4].insert(0, ("ps", "global_store_dwordx4 v%d, %s, s[%d:%d] offset:%d sc1" % (vPs + 1, vr(b, 4), pWs, pWs + 1, rt * 1024 - 3072)))
    gaps[132].append("s_barrier")
    gaps[134].append("v_add_u32 v%d, 1, v%d" % (vT2, vFc))
    gaps[O.f2gap] += ["s_waitcnt vmcnt(0)", "s_mov_b64 exec, 64", "global_store_dword v241, v%d, s[%d:%d] sc1" % (vT2, pWs, pWs + 1), "s_mov_b64 exec, -1"]
    lastw = []
    for rt in range(7):
        for wv in range(1, 4):
            g2 = 140 + 4 * rt + wv + 8
            if g2 < 168: gaps[g2].insert(0, redw(rt, 0, wv))
            else: lastw.append(redw(rt, 0, wv))
    emit(mf, gaps)
    stamp()
    PB = OF + 84
    ldP = ["global_load_dwordx4 %s, v%d, s[%d:%d] offset:%d sc1" % (vr(PB + 4 * rt, 4), vPs, pWs, pWs + 1, rt * 1024 - 3072) for rt in range(7)]
    pl2 = "global_load_dword v%d, v241, s[%d:%d] sc1" % (vT, pWs, pWs + 1)
    a.e(["s_mov_b64 exec, 32", pl2, "s_mov_b64 exec, -1"] + lastw[:3] + ["s_nop 1"] + lastw[3:] + ["s_mov_b32 s%d, 0x40000" % sCnt, "s_waitcnt lgkmcnt(0)", "s_barrier"])
    for rt in range(7):
        for wv in range(1, 4): a.e(redr(rt, wv, OF + 12 * rt + 4 * (wv - 1)))
    a.e("s_mov_b64 exec, 32")
    a.lab("L_poll2")
    a.e(["s_waitcnt vmcnt(0)", "v_cmp_eq_u32 vcc, v%d, v%d" % (vT, vFc), "s_sub_u32 s%d, s%d, 1" % (sCnt, sCnt), "s_cbranch_vccz L_go2", "s_cbranch_scc1 L_go2", pl2, "s_branch L_poll2"])
    a.lab("L_go2")
    a.e(["s_mov_b64 exec, -1"] + ldP)
    for rt in range(7):
        a.e("s_waitcnt lgkmcnt(%d)" % min(15, 3 * (6 - rt)))
        b = ACC3 + 16 * rt; t = OF + 12 * rt
        for h in range(2):
            a.e("v_pk_add_f32 %s, %s, %s" % (vr(b + 2 * h, 2), vr(b + 2 * h, 2), vr(t + 2 * h, 2)))
            a.e("v_pk_add_f32 %s, %s, %s" % (vr(t + 4 + 2 * h, 2), vr(t + 4 + 2 * h, 2), vr(t + 8 + 2 * h, 2)))
        for h in range(2): a.e("v_pk_add_f32 %s, %s, %s" % (vr(b + 2 * h, 2), vr(b + 2 * h, 2), vr(t + 4 + 2 * h, 2)))
    for rt in range(7):
        b = ACC3 + 16 * rt; t = PB + 4 * rt
        a.e(["s_waitcnt vmcnt(6)"] + ["v_pk_add_f32 %s, %s, %s" % (vr(b + 2 * h, 2), vr(b + 2 * h, 2), vr(t + 2 * h, 2)) for h in range(2)])
        a.e(["v_cvt_pk_bf16_f32 v%d, v%d, v%d" % (b, b, b + 1), "v_cvt_pk_bf16_f32 v%d, v%d, v%d" % (b + 1, b + 2, b + 3),
             "s_mov_b32 s%d, %d" % (sT, rt * 32768),
             "buffer_store_dwordx2 %s, v%d, s[%d:%d], s%d offen %s" % (vr(b, 2), vOut, sOut, sOut + 3, sT, O.out_flags)])
    if O.stamps:
        a.e(["s_waitcnt vmcnt(0)"])
        if not O.ts: stamp()
        a.e(["s_memrealtime s[78:79]", "s_waitcnt lgkmcnt(0)", "s_lshl_b32 s%d, s2, 2" % sT, "s_add_u32 s%d, s%d, s%d" % (sT, sT, sWv), "s_lshl_b32 s%d, s%d, 6" % (sT, sT),
             "s_add_u32 s%d, s%d, 0x%x" % (sT, sT, STAMP_OFF),
             "s_add_u32 s%d, s%d, s%d" % (sO, pWs, sT), "s_addc_u32 s%d, s%d, 0" % (sO + 1, pWs + 1), "s_mov_b32 s%d, 64" % (sO + 2), "v_mov_b32 v%d, 0" % vT])
        for i in range(nst[0]):
            a.e(["s_sub_u32 s%d, s%d, s%d" % (sT, sST + 2 * i, sST), "v_mov_b32 v%d, s%d" % (vT2, sT),
                 "buffer_store_dword v%d, v%d, s[%d:%d], 0 offen offset:%d" % (vT2, vT, sO, sO + 3, 4 * i)])
        for i, r_ in enumerate((10, 6, 4, sST, 78)):
            a.e(["v_mov_b32 v%d, s%d" % (vT2, r_), "buffer_store_dword v%d, v%d, s[%d:%d], 0 offen offset:%d" % (vT2, vT, sO, sO + 3, 44 + 4 * i)])
    if O.ts:
        a.e(["s_lshl_b32 s%d, s2, 9" % sT, "s_add_u32 s%d, s%d, 0x%x" % (sT, sT, STAMP_OFF + 0x200000),
             "s_add_u32 s%d, s%d, s%d" % (sO, pWs, sT), "s_addc_u32 s%d, s%d, 0" % (sO + 1, pWs + 1), "s_mov_b32 s%d, 512" % (sO + 2),
             "v_lshlrev_b32 v%d, 2, v%d" % (vT, vL), "buffer_store_dword v252, v%d, s[%d:%d], 0 offen" % (vT, sO, sO + 3)])
    a.lab("L_end")
    a.e("s_endpgm")

    for js in range(4):
        a.lab("L_h%d" % js)
        a.e(["s_cmp_lt_u32 s%d, 2" % sDd, "s_cbranch_scc1 L_hs%d" % js, "s_waitcnt vmcnt(0)", "s_branch L_u%d" % js])
        a.lab("L_hs%d" % js)
        a.e(["s_waitcnt vmcnt(8)", "s_cmp_le_u32 s%d, %d" % (sT2, O.th), "s_cbranch_scc1 L_u%d" % js] + (
             ["s_cmp_ge_u32 s%d, %d" % (sDd, O.dmax), "s_cbranch_scc1 L_u%d" % js] if O.dmax < 2 else []) + [ "s_add_u32 s%d, s%d, 1" % (sDd, sDd)])
        a.L += quiet[js]
        a.e("s_branch L_j%d" % js)
    if O.wo_at >= 100:
        a.lab("L_wopf")
        a.e(["s_lshl_b32 s%d, s2, 2" % sT, "s_add_u32 s%d, s%d, s%d" % (sT, sT, sWv), "s_lshl_b32 s%d, s%d, 13" % (sT, sT),
             "v_lshlrev_b32 v%d, 7, v%d" % (vT, vL), "v_add_u32 v%d, s%d, v%d" % (vT, sT, vT),
             "global_load_dword v%d, v%d, s[%d:%d]" % (vDum, vT, pWo, pWo + 1), "s_branch L_wopf_ret"])
    a.lab("L_slow")
    a.e(["s_waitcnt vmcnt(0) lgkmcnt(0)", "s_barrier", "s_mov_b32 s%d, 1" % sPass] + lane_setup() + ["s_branch L_restart"])
    a.lab("L_maxpass")
    a.e(["s_waitcnt vmcnt(0) lgkmcnt(0)", "s_barrier"] + Cq(6) + ["s_mov_b32 s%d, 16" % sCnt] + setK(0))
    a.e([zero16(ar(176 + 16 * i, 16)) for i in range(3)] + ["s_nop 7"])
    for rt in range(7): a.e("v_mov_b32 v%d, 0xff800000" % (M + 4 * rt))
    a.lab("L_slow_loop")
    a.e(kvtile(0))
    a.e(["s_waitcnt vmcnt(0)", "s_barrier"])
    a.e([rdK(i, 0) for i in range(8)])
    a.e(["s_waitcnt lgkmcnt(0)", "s_barrier"])
    for rt in range(7):
        for i in range(8):
            t, ks = i & 1, i >> 1
            d = vr(S + 4 * t, 4)
            a.e(mfma(d, ar(aK + 16 * t + 4 * ks, 4), ar(aQ + 16 * rt + 4 * ks, 4), "0" if ks == 0 else d))
        a.e("s_nop 7")
        for i in range(4): a.e("v_max3_f32 v%d, v%d, v%d, v%d" % (M + 4 * rt, M + 4 * rt, S + 2 * i, S + 2 * i + 1))
    a.e(["s_sub_u32 s%d, s%d, 1" % (sCnt, sCnt), "s_cmp_lg_u32 s%d, 0" % sCnt, "s_cbranch_scc1 L_slow_loop"])
    a.e(xlane("v_max_f32", [M + 4 * rt for rt in range(7)], [M + 4 * rt + 1 for rt in range(7)]))
    a.e(["v_add_u32 v%d, s%d, v%d" % (vTc, sSp, vL16), "v_xor_b32 v%d, 16384, v%d" % (vT3, vTc)])
    for rt in range(7): a.e("ds_write_b32 v%d, v%d offset:%d" % (vTc, M + 4 * rt, rt * 1024))
    a.e(["s_waitcnt lgkmcnt(0)", "s_barrier"])
    for rt in range(7): a.e("ds_read_b32 v%d, v%d offset:%d" % (M + 4 * rt + 1, vT3, rt * 1024))
    a.e(setK(0))
    for tl in range(4): a.e(kvtile(tl))
    a.e("s_waitcnt lgkmcnt(0)")
    for rt in range(7): a.e("v_max_f32 v%d, v%d, v%d" % (M + 4 * rt, M + 4 * rt, M + 4 * rt + 1))
    a.e(["s_waitcnt vmcnt(16)", "s_barrier"])
    a.e([rdK(i, 0) for i in range(8)])
    a.e([zero16(vr(V, 16)), zero16(vr(V + 16, 16))])
    a.e(["v_sub_f32 v%d, 0, v%d" % (M + 4 * rt + i, M + 4 * rt) for rt in range(7) for i in (1, 2, 3, 0)])
    a.e(["v_mov_b32 v%d, 0" % i for i in range(L, L + 7)] + ["v_mov_b32 v%d, 0" % i for i in range(P + 4, P + 8)])
    a.e(["s_mov_b32 s%d, 3" % sCnt, "s_waitcnt lgkmcnt(0)"] + qk(0, 0) + initD + ["s_nop 5"])
    for r in range(5): step(0, r)
    a.e("s_branch L_loop")

def build():
    ref = open("cdna_kernels/%s.s.ref" % NAME).read()
    hdr = ref.split("; Override launch")[0]
    a = Asm()
    k = NAME + "_kernel"
    a.raw(".amdgcn_target \"amdgcn-amd-amdhsa--gfx950\"\n.text")
    a.raw(".globl %s\n.p2align 8\n.type %s,@function" % (k, k))
    kernel(a)
    for e in check(a.L): print(e, file=sys.stderr)
    t = hdr + "; @launch grid=(256,1,1) block=(256,1,1) lds=163840\n" + a.text()
    t += """.section .rodata,"a"
.p2align 6
.amdhsa_kernel %s
  .amdhsa_next_free_vgpr 512
  .amdhsa_next_free_sgpr 102
  .amdhsa_accum_offset 256
  .amdhsa_group_segment_fixed_size 0
  .amdhsa_kernarg_size 64
  .amdhsa_user_sgpr_count 2
  .amdhsa_user_sgpr_kernarg_segment_ptr 1
  .amdhsa_system_sgpr_workgroup_id_x 1
.end_amdhsa_kernel
""" % k
    return t

if __name__ == "__main__":
    out = sys.argv[1] if len(sys.argv) > 1 else "cdna_kernels/%s.s" % NAME
    for kv in sys.argv[2:]:
        k, v = kv.split("=")
        cur = getattr(O, k)
        setattr(O, k, (v == "1") if isinstance(cur, bool) else type(cur)(v))
    open(out, "w").write(build())
```

```python
import sys, math, struct
from asmlib import *

NAME = "standalone__mha_block_cached__near_ridge"
def f32(x): return struct.unpack("<I", struct.pack("<f", x))[0]
CSCALE = f32(128 ** -0.5 * math.log2(math.e))
THR = f32(2.0 ** 30)

class Opt:
    stamps = False
    ts = False
    kv_nt = True
    nxe = 5
    p1_span = 26
    force_slow = False
    pf_xw = True
    pf_wo = True
    pf_code = True
    w_n = 0
    w_late = 8
    wl2 = 0
    out_flags = ""
    pfl = 0
    burst = 4
    ws1 = 12
    dbg3 = 0
    f2gap = 156
    wo2 = "0.3,2.2"
    lag = 0
    ilv = True
    pts = "5.13,5.15,6.9,6.11"
    th = 5
    denorm = 3
    wfin = True
    nb = 0
    padn = 0
    kvf = "nt"
    dmax = 1
    force_skip = 0
    pack = True
    verbose = False
    x1mask = 0
    rd_first = False
    wqc = False
    tb4 = False
    wo_r = 3
    bstep = 2
    t3late = False
    wo_at = 1
    dynw = True
    wggo = False
    olook = 3
    sset = 1
    nost = False
    st_flags = "sc1"
    x3mask = 7
    burn = 0
    tsched = 1
    pf_flags = ""
    wpf = 0
O = Opt()
STAMP_OFF = 0x8000000
FLAG_OFF = 0x1000000
PART_OFF = 0x2000000

def zero16(d): return "v_mfma_f32_32x32x16_bf16 %s, v[12:15], v[12:15], 0" % d

class VM:
    def __init__(self, init): self.ops = list(init)
    def issue(self, tag, opt=False): self.ops.append(tag + "?" if opt else tag)
    def n(self, tag):
        idx = max(i for i, t in enumerate(self.ops) if t.rstrip("?") == tag)
        if self.ops[idx].endswith("?"): return min(63, len(self.ops) - 1 - idx)
        return min(63, sum(1 for t in self.ops[idx + 1:] if not t.endswith("?")))

def kernel(a):
    KVF = " " + O.kvf
    pX, pK, pV, pWq, pWo, pOut, pDbg, pWs = 4, 6, 8, 10, 12, 14, 16, 18
    sX, sW, sKV, sO, sOs, sWs, sOut = 20, 24, 28, 32, 36, 40, 44
    (sWv, sB, sH, sRH, sKH, sXoff, sWoff, sCnt, sMX, sMW, sReg, sRing, sSp, sG, sFlip, sK0, sPass, sT, sT2, sRB, sCT, sWo, sD1, sD2) = range(48, 72)
    sP = 3 if not O.ts else 81
    sOf = 1; sPm = 0
    sC = 72; sRt = 74; sPC = 82; sVV = 84; sST = 88; sK1 = sFlip
    KH, TS_ = (8192, 16384) if O.ilv else (131072, 8192)
    vL, vT, vT2, vT3, vL16 = 1, 2, 3, 4, 5
    vKV, vW = 6, 10
    OK, ACC = 16, 128
    M, S, E, P, V, L = 128, 156, 172, 180, 188, 220
    vTa, vTb, vTc = 237, 238, 236
    E2 = 228
    vX, vXr, vWr = 240, 247, 251
    vKr, vVr, vK0 = 240, 241, 243
    vD, vR = 244, 10
    vQw, vQr = 2, 3
    PK = 16
    vFo, vFc, vDum = 254, 255, 253
    vCp = 0
    aQ, aO, aK = 0, 112, 224
    aXF, aWF = 0, 224
    nst = [0]
    def stamp(m=3):
        if O.stamps and (m & O.sset):
            assert nst[0] < 7
            a.e("s_memrealtime s[%d:%d]" % (sST + 2 * nst[0], sST + 2 * nst[0] + 1)); nst[0] += 1
    def flagp(v, t):
        return ["s_and_b32 s%d, s%d, 1" % (sT, sB), "s_lshl_b32 s%d, s%d, 6" % (sT, sT), "s_lshr_b32 s%d, s%d, 1" % (sG, sB), "s_lshl_b32 s%d, s%d, 3" % (sG, sG),
                "s_add_u32 s%d, s%d, s%d" % (sT, sT, sG), "s_lshr_b32 s%d, s%d, 2" % (sG, sH), "s_add_u32 s%d, s%d, s%d" % (sT, sT, sG), "s_lshl_b32 s%d, s%d, 7" % (sT, sT),
                "s_and_b32 s%d, s%d, 3" % (sG, sH), "s_lshl_b32 s%d, s%d, 2" % (sG, sG), "s_add_u32 s%d, s%d, s%d" % (sT, sT, sG), "s_add_u32 s%d, s%d, 0x%x" % (sT, sT, FLAG_OFF),
                "v_lshrrev_b32 v%d, 1, v%d" % (v, vL), "v_lshlrev_b32 v%d, 14, v%d" % (v, v), "v_and_b32 v%d, 1, v%d" % (t, vL),
                "v_lshl_add_u32 v%d, v%d, 12, v%d" % (v, t, v), "v_add_u32 v%d, s%d, v%d" % (v, sT, v),
                "s_xor_b32 s%d, s2, 1" % sT, "s_lshl_b32 s%d, s%d, 9" % (sT, sT), "s_add_u32 s%d, s%d, 0x%x" % (sT, sT, FLAG_OFF + 16),
                "v_and_b32 v%d, 3, v%d" % (t, vL), "v_lshlrev_b32 v%d, 7, v%d" % (t, t), "v_cmp_gt_u32 vcc, 16, v%d" % vL, "v_add_u32 v%d, s%d, v%d" % (t, sT, t),
                "s_nop 0", "v_cndmask_b32 v%d, v%d, v%d, vcc" % (v, t, v)]
    def flagc(v):
        return ["s_lshl_b32 s%d, s2, 2" % sT, "s_add_u32 s%d, s%d, s%d" % (sT, sT, sWv), "s_lshl_b32 s%d, s%d, 7" % (sT, sT), "s_add_u32 s%d, s%d, 0x%x" % (sT, sT, FLAG_OFF),
                "v_min_u32 v%d, 5, v%d" % (v, vL), "v_lshlrev_b32 v%d, 2, v%d" % (v, v), "v_add_u32 v%d, s%d, v%d" % (v, sT, v),
                "s_mov_b64 exec, 64", "v_xor_b32 v%d, 0x200, v%d" % (v, v), "s_mov_b64 exec, -1"]
    def boxaddr(v):
        return ["s_lshl_b32 s%d, s2, 2" % sT, "s_add_u32 s%d, s%d, s%d" % (sT, sT, sWv), "s_lshl_b32 s%d, s%d, 13" % (sT, sT),
                "s_add_u32 s%d, s%d, 0x%x" % (sT, sT, PART_OFF + 3072), "v_add_u32 v%d, s%d, v%d" % (v, sT, vL16)]
    def codepf(lo, hi, t0):
        return ["v_min_u32 v%d, %s-%s-4, v%d" % (t0, hi, lo, vCp), "v_add_u32 v%d, %s-L_pc, v%d" % (t0, lo, t0),
                "v_mov_b32 v%d, s%d" % (t0 + 1, sPC + 1), "v_add_co_u32 v%d, vcc, s%d, v%d" % (t0, sPC, t0), "s_nop 1",
                "v_addc_co_u32 v%d, vcc, 0, v%d, vcc" % (t0 + 1, t0 + 1), "global_load_dword v%d, v[%d:%d], off" % (vDum, t0, t0 + 1)]

    a.lab(NAME + "_kernel")
    a.e(["s_cmp_ge_u32 s2, 256", "s_cbranch_scc1 L_end",
         "s_load_dwordx8 s[4:11], s[0:1], 0", "s_load_dwordx8 s[12:19], s[0:1], 32"])
    stamp(7)
    a.e(["s_getpc_b64 s[%d:%d]" % (sPC, sPC + 1)])
    a.lab("L_pc")
    a.e(["v_and_b32 v%d, 63, v0" % vL, "v_lshrrev_b32 v%d, 6, v0" % vT,
         "s_and_b32 s%d, s2, 7" % sT, "s_lshr_b32 s%d, s2, 3" % sT2,
         "v_readfirstlane_b32 s%d, v%d" % (sWv, vT),
         "v_min_u32 v%d, 2, v%d" % (vCp, vL), "v_lshl_add_u32 v%d, v%d, 2, v%d" % (vCp, vCp, vT), "v_lshlrev_b32 v%d, 5, v%d" % (vCp, vCp),
         "v_add_lshl_u32 v%d, v%d, s%d, 7" % (vCp, vCp, sT2)])
    if O.pf_code: a.e(codepf("L_pc", "L_end", vT))
    a.e(["s_mov_b32 s%d, 0" % sPass,
         "s_and_b32 s%d, s%d, 1" % (sB, sT), "s_lshl_b32 s%d, s%d, 2" % (sB, sB),
         "s_and_b32 s%d, s%d, 3" % (sG, sT2), "s_add_u32 s%d, s%d, s%d" % (sB, sB, sG),
         "s_lshr_b32 s%d, s%d, 1" % (sH, sT), "s_lshl_b32 s%d, s%d, 2" % (sRB, sH), "s_add_u32 s%d, s%d, s%d" % (sRB, sRB, sG), "s_lshl_b32 s%d, s%d, 3" % (sH, sH),
         "s_lshr_b32 s%d, s%d, 2" % (sCT, sT2), "s_add_u32 s%d, s%d, s%d" % (sH, sH, sCT),
         "s_and_b32 s%d, s%d, 1" % (sRH, sWv), "s_lshr_b32 s%d, s%d, 1" % (sKH, sWv)])
    a.e(["s_lshl_b32 s%d, s%d, 15" % (sMX, sKH), "s_mul_i32 s%d, s%d, 7168" % (sT, sRH),
         "s_add_u32 s%d, s%d, s%d" % (sMX, sMX, sT), "s_add_u32 s%d, s%d, 16384" % (sMX, sMX),
         "s_lshl_b32 s%d, s%d, 11" % (sMW, sWv), "s_add_u32 s%d, s%d, 131072" % (sMW, sMW),
         "s_lshl_b32 s%d, s%d, 15" % (sReg, sWv),
         "s_mov_b32 s%d, 458752" % (sX + 2), "s_mov_b32 s%d, 0x20000" % (sX + 3), "s_mov_b32 s%d, 0x20000" % (sW + 3),
         "s_mul_i32 s%d, s%d, 458752" % (sD1, sB), "s_lshl_b32 s%d, s%d, 8" % (sD2, sH), "s_sub_u32 s%d, 0x800000, s%d" % (sW + 2, sD2)])
    def lane_setup():
        o = ["v_lshrrev_b32 v%d, 3, v%d" % (vT, vL), "v_and_b32 v%d, 7, v%d" % (vT2, vL), "v_and_b32 v%d, 6, v%d" % (vT3, vT),
             "v_xor_b32 v%d, v%d, v%d" % (vT3, vT3, vT2), "v_lshlrev_b32 v%d, 4, v%d" % (vT3, vT3),
             "v_lshl_add_u32 v%d, v%d, 11, v%d" % (vX, vT, vT3),
             "s_mul_i32 s%d, s%d, %d" % (sT, sWv, 7 * 16384), "v_add_u32 v%d, s%d, v%d" % (vX, sT, vX)]
        o += ["v_add_u32 v%d, %d, v%d" % (vX + j, j * 16384 - (j & 3) * 1024, vX) for j in range(1, 7)]
        o += ["v_and_b32 v%d, 2, v%d" % (vT3, vT), "v_lshlrev_b32 v%d, 1, v%d" % (vT3, vT3),
              "v_xor_b32 v%d, v%d, v%d" % (vT3, vT3, vT2), "v_lshlrev_b32 v%d, 4, v%d" % (vT3, vT3),
              "v_lshl_add_u32 v%d, v%d, 13, v%d" % (vW, vT, vT3),
              "s_lshl_b32 s%d, s%d, 17" % (sT, sRH), "s_lshl_b32 s%d, s%d, 7" % (sG, sKH), "s_add_u32 s%d, s%d, s%d" % (sT, sT, sG),
              "v_add_u32 v%d, s%d, v%d" % (vW, sT, vW), "v_add_u32 v%d, %d, v%d" % (vW + 1, 8 * 8192 - 1024, vW)]
        return o
    a.e(lane_setup())
    a.e(["s_waitcnt lgkmcnt(0)",
         "s_add_u32 s%d, s%d, s%d" % (sW, pWq, sD2), "s_addc_u32 s%d, s%d, 0" % (sW + 1, pWq + 1),
         "s_add_u32 s%d, s%d, s%d" % (sX, pX, sD1), "s_addc_u32 s%d, s%d, 0" % (sX + 1, pX + 1)])
    stamp(4)
    a.lab("L_restart")

    TS_A = ["s_memrealtime s[100:101]"]
    TS_B = ["s_mov_b32 s3, m0", "s_mov_b32 m0, s81", "v_writelane_b32 v252, s100, m0", "s_add_u32 s81, s81, 1", "s_mov_b32 m0, s3"]
    def dmaX(j): return "buffer_load_dwordx4 v%d, s[%d:%d], s%d offen offset:%d lds" % (vX + j, sX, sX + 3, sXoff, (j & 3) * 1024)
    def m0X(buf, hi): return "s_add_u32 m0, s%d, %d" % (sMX, buf * 65536 + hi * 4096)
    def dmaW(j): return "buffer_load_dwordx4 v%d, s[%d:%d], s%d offen offset:%d lds" % (vW + j, sW, sW + 3, sWoff, j * 1024)
    def m0W(slot): return "s_add_u32 m0, s%d, %d" % (sMW, slot * 8192)
    def ptm0(reg, slot): return "s_add_u32 m0, s%d, %d" % (sMW, (reg * 32768 + slot * 8192 - 131072) & 0xffffffff)
    def ptld(reg): return ["buffer_load_dwordx4 v%d, s[%d:%d], s%d offen offset:%d%s lds" % (vKV + (2 if reg == 3 else 0) + j, sVV if reg & 1 else sKV, (sVV if reg & 1 else sKV) + 3,
                           sK1 if reg >> 1 else sK0, j * 1024, KVF) for j in range(2)]
    incK = ["s_add_u32 s%d, s%d, %d" % (sK0, sK0, TS_), "s_add_u32 s%d, s%d, %d" % (sK1, sK1, TS_)]
    def setK(tile): return ["s_mov_b32 s%d, %d" % (sK0, tile * TS_), "s_mov_b32 s%d, %d" % (sK1, tile * TS_ + KH)]
    PORD = (0, 2, 1, 3)
    def kvtile(slot): return [x for reg in PORD for x in [ptm0(reg, slot), "s_nop 0"] + ptld(reg)] + incK
    sXl, sWl, sOx, sOw = 10, 11, sWo, sK0
    incW = ["s_add_u32 s%d, s%d, 262144" % (sWl, sWl), "s_xor_b32 s%d, s%d, s%d" % (sWoff, sWl, sOw)]
    incX = ["s_add_u32 s%d, s%d, 128" % (sXl, sXl), "s_xor_b32 s%d, s%d, s%d" % (sXoff, sXl, sOx)]

    a.e(["s_mov_b32 s%d, 0" % sXl, "s_mov_b32 s%d, 0" % sWl, "s_xor_b32 s%d, s%d, s%d" % (sT, sB, sH), "s_and_b32 s%d, s%d, %d" % (sT, sT, O.x1mask),
         "s_lshl_b32 s%d, s%d, 19" % (sOw, sT), "s_lshl_b32 s%d, s%d, 7" % (sOx, sT), "s_mov_b32 s%d, s%d" % (sWoff, sOw), "s_mov_b32 s%d, s%d" % (sXoff, sOx)])
    def stage_loads(st):
        return ([m0W(2 * st), "s_nop 0", dmaW(0), dmaW(1), m0X(st, 0)] + incW + [dmaX(j) for j in range(4)] + [m0X(st, 1), "s_nop 0"] + [dmaX(j) for j in range(4, 7)]
                + [m0W(2 * st + 1)] + incX + [dmaW(0), dmaW(1)] + incW)
    a.e(stage_loads(0))
    stamp(4)
    a.e(["v_mov_b32 v%d, 0" % i for i in range(12, 16)])
    su0 = len(a.L)
    a.e(["s_lshl_b32 s%d, s%d, 5" % (sT, sB), "s_add_u32 s%d, s%d, s%d" % (sT, sT, sH), "s_lshl_b32 s%d, s%d, 18" % (sT, sT),
         "s_add_u32 s%d, s%d, s%d" % (sKV, pK, sT), "s_addc_u32 s%d, s%d, 0" % (sKV + 1, pK + 1),
         "s_mov_b32 s%d, 0x40000" % (sKV + 2), "s_mov_b32 s%d, 0x20000" % (sKV + 3),
         "s_add_u32 s%d, s%d, s%d" % (sVV, pV, sT), "s_addc_u32 s%d, s%d, 0" % (sVV + 1, pV + 1),
         "s_mov_b32 s%d, 0x40000" % (sVV + 2), "s_mov_b32 s%d, 0x20000" % (sVV + 3),
         "v_bfe_u32 v%d, v%d, 2, 2" % (vT, vL), "v_lshrrev_b32 v%d, 4, v%d" % (vT2, vL), "v_lshlrev_b32 v%d, 6, v%d" % (vT2, vT2),
         "v_lshl_add_u32 v%d, v%d, 8, v%d" % (vT2, vT, vT2), "v_and_b32 v%d, 3, v%d" % (vT, vL), "v_lshl_add_u32 v%d, v%d, 4, v%d" % (vT2, vT, vT2),
         "s_lshl_b32 s%d, s%d, 5" % (sG, sRH), "v_xor_b32 v%d, s%d, v%d" % (vT2, sG, vT2), "s_lshl_b32 s%d, s%d, 11" % (sG, sWv),
         "v_add_u32 v%d, s%d, v%d" % (vKV, sG, vT2), "v_xor_b32 v%d, 48, v%d" % (vKV + 1, vKV),
         "v_xor_b32 v%d, 0x80, v%d" % (vKV + 2, vKV), "v_xor_b32 v%d, 0x80, v%d" % (vKV + 3, vKV + 1)])
    pPx, pPw = PK + 20, PK + 21
    a.e(["s_mul_i32 s%d, s%d, 14336" % (sT, sH), "s_lshl_b32 s%d, s%d, 12" % (sG, sWv), "s_add_u32 s%d, s%d, s%d" % (sT, sT, sG),
         "v_and_b32 v%d, 31, v%d" % (pPx, vL), "v_lshlrev_b32 v%d, 7, v%d" % (pPx, pPx), "v_add_u32 v%d, s%d, v%d" % (pPx, sT, pPx),
         "s_lshl_b32 s%d, s%d, 2" % (sT, sB), "s_add_u32 s%d, s%d, s%d" % (sT, sT, sWv), "s_lshl_b32 s%d, s%d, 18" % (sT, sT),
         "v_lshrrev_b32 v%d, 1, v%d" % (pPw, vL), "v_lshlrev_b32 v%d, 13, v%d" % (pPw, pPw),
         "v_and_b32 v%d, 1, v%d" % (vT2, vL), "v_lshl_add_u32 v%d, v%d, 7, v%d" % (pPw, vT2, pPw), "v_add_u32 v%d, s%d, v%d" % (pPw, sT, pPw)])
    a.e(["v_lshlrev_b32 v%d, 4, v%d" % (vL16, vL),
         "v_and_b32 v%d, 15, v%d" % (vT, vL), "v_lshrrev_b32 v%d, 4, v%d" % (vT2, vL),
         "v_and_b32 v%d, 6, v%d" % (vT3, vT), "v_xor_b32 v%d, v%d, v%d" % (vT3, vT3, vT2), "v_lshlrev_b32 v%d, 4, v%d" % (vT3, vT3),
         "v_lshl_add_u32 v%d, v%d, 7, v%d" % (vT3, vT, vT3),
         "s_lshl_b32 s%d, s%d, 15" % (sT, sRH), "s_add_u32 s%d, s%d, 16384" % (sT, sT),
         "v_add_u32 v%d, s%d, v%d" % (vXr, sT, vT3), "v_xor_b32 v%d, 64, v%d" % (vXr + 1, vXr),
         "v_add_u32 v%d, 0x10000, v%d" % (vXr + 2, vXr), "v_add_u32 v%d, 0x10000, v%d" % (vXr + 3, vXr + 1)])
    a.e(["v_bfe_u32 v%d, v%d, 2, 2" % (vT, vL), "v_lshl_add_u32 v%d, v%d, 3, v%d" % (vT, vT2, vT),
         "v_and_b32 v%d, 2, v%d" % (vT3, vT), "v_lshlrev_b32 v%d, 1, v%d" % (vT3, vT3),
         "v_and_b32 v%d, 3, v%d" % (vT2, vL), "v_xor_b32 v%d, v%d, v%d" % (vT3, vT3, vT2), "v_lshlrev_b32 v%d, 4, v%d" % (vT3, vT3),
         "v_lshl_add_u32 v%d, v%d, 7, v%d" % (vT3, vT, vT3),
         "s_lshl_b32 s%d, s%d, 12" % (sT, sKH), "s_add_u32 s%d, s%d, 131072" % (sT, sT),
         "v_add_u32 v%d, s%d, v%d" % (vWr, sT, vT3), "v_xor_b32 v%d, 64, v%d" % (vWr + 1, vWr)])
    a.e(["s_mul_i32 s%d, s%d, 14" % (sT, sB), "s_mul_i32 s%d, s%d, 7" % (sG, sRH), "s_add_u32 s%d, s%d, s%d" % (sT, sT, sG),
         "s_lshl_b32 s%d, s%d, 7" % (sT, sT), "s_lshl_b32 s%d, s%d, 2" % (sG, sH), "s_add_u32 s%d, s%d, s%d" % (sT, sT, sG),
         "s_lshl_b32 s%d, s%d, 1" % (sG, sKH), "s_add_u32 s%d, s%d, s%d" % (sT, sT, sG), "s_lshl_b32 s%d, s%d, 10" % (sT, sT),
         "s_add_u32 s%d, s%d, s%d" % (sO, pWs, sT), "s_addc_u32 s%d, s%d, 0" % (sO + 1, pWs + 1),
         "s_mov_b32 s%d, %d" % (sO + 2, 6 * 131072 + 2048), "s_mov_b32 s%d, 0x20000" % (sO + 3),
         "s_mov_b32 s%d, 0x%x" % (sC, CSCALE), "s_mov_b32 s%d, 0x%x" % (sC + 1, CSCALE),
         "s_and_b32 s%d, s%d, 4" % (sPm, sB), "s_add_u32 s%d, s%d, s%d" % (sPm, sPm, sWv),
         "s_mul_i32 s%d, s%d, %d" % (sT, sRB, 7 * 131072), "s_lshl_b32 s%d, s%d, 14" % (sG, sPm), "s_add_u32 s%d, s%d, s%d" % (sT, sT, sG),
         "s_add_u32 s%d, s%d, s%d" % (sOs, pWs, sT), "s_addc_u32 s%d, s%d, 0" % (sOs + 1, pWs + 1),
         "s_mov_b32 s%d, %d" % (sOs + 2, 6 * 131072 + 16384), "s_mov_b32 s%d, 0x20000" % (sOs + 3),
         "s_lshl_b32 s%d, s%d, 20" % (sT, sPm), "s_lshl_b32 s%d, s%d, 8" % (sG, sCT), "s_add_u32 s%d, s%d, s%d" % (sT, sT, sG),
         "s_add_u32 s%d, s%d, s%d" % (sWs, pWo, sT), "s_addc_u32 s%d, s%d, 0" % (sWs + 1, pWo + 1),
         "s_sub_u32 s%d, 0x100000, s%d" % (sWs + 2, sG), "s_mov_b32 s%d, 0x20000" % (sWs + 3),
         "s_mul_i32 s%d, s%d, %d" % (sT, sRB, 112 * 2048), "s_add_u32 s%d, s%d, s%d" % (sOut, pOut, sT), "s_addc_u32 s%d, s%d, 0" % (sOut + 1, pOut + 1),
         "s_mov_b32 s%d, %d" % (sOut + 2, 112 * 2048), "s_mov_b32 s%d, 0x20000" % (sOut + 3),
         "s_xor_b32 s%d, s%d, 0x10000" % (sRing, sReg),
         "s_lshl_b32 s%d, s%d, 13" % (sSp, sWv), "s_add_u32 s%d, s%d, 131072" % (sSp, sSp),
         "s_sub_u32 s%d, s%d, s%d" % (sD1, sSp, sReg), "s_sub_u32 s%d, s%d, s%d" % (sD2, sRing, sSp)])
    for rt in range(7): a.e("s_mov_b32 s%d, %d" % (sRt + rt, rt * 131072))
    pKr, pVr, pK0, pD, pR, pQ, pFp, pFc, pWoP, pCp = PK, PK + 1, PK + 3, PK + 4, PK + 8, PK + 10, PK + 12, PK + 13, PK + 14, PK + 16
    a.e(flagp(pFp, vT2) + flagc(pFc))
    a.e(["v_bfe_u32 v%d, v%d, 2, 2" % (vT, vL), "v_sub_u32 v%d, 0, v%d" % (vT2, vT), "v_lshrrev_b32 v%d, 4, v%d" % (vT3, vL),
         "v_xor_b32 v%d, v%d, v%d" % (vT2, vT2, vT3), "v_and_b32 v%d, 3, v%d" % (vT2, vT2), "v_lshlrev_b32 v%d, 4, v%d" % (vT2, vT2),
         "v_lshl_add_u32 v%d, v%d, 10, v%d" % (vT2, vT, vT2), "v_and_b32 v%d, 3, v%d" % (pK0, vL), "v_lshlrev_b32 v%d, 6, v%d" % (pK0, pK0),
         "s_lshl_b32 s%d, s%d, 16" % (sG, sKH), "v_add3_u32 v%d, v%d, v%d, s%d" % (pKr, pK0, vT2, sG),
         "v_lshl_add_u32 v%d, v%d, 4, v%d" % (pK0, vT3, pK0),
         "v_sub_u32 v%d, 0, v%d" % (vT2, vT3), "v_bfe_u32 v%d, v%d, 1, 1" % (pVr + 1, vL), "v_xor_b32 v%d, v%d, v%d" % (vT2, vT2, pVr + 1),
         "v_and_b32 v%d, 3, v%d" % (vT2, vT2), "v_lshlrev_b32 v%d, 4, v%d" % (vT2, vT2),
         "v_lshl_add_u32 v%d, v%d, 10, v%d" % (vT2, vT3, vT2), "v_lshl_add_u32 v%d, v%d, 6, v%d" % (vT2, vT, vT2),
         "v_and_b32 v%d, 1, v%d" % (pVr + 1, vL), "v_lshl_add_u32 v%d, v%d, 3, v%d" % (vT2, pVr + 1, vT2),
         "s_add_u32 s%d, s%d, 32768" % (sG, sG), "v_add_u32 v%d, s%d, v%d" % (pVr, sG, vT2), "v_xor_b32 v%d, 32, v%d" % (pVr + 1, pVr),
         "v_add_u32 v%d, s%d, v%d" % (pR, sReg, vT2), "v_xor_b32 v%d, 32, v%d" % (pR + 1, pR),
         "v_lshlrev_b32 v%d, 6, v%d" % (vT2, vT3), "v_lshl_add_u32 v%d, v%d, 11, v%d" % (vT2, vT, vT2), "v_and_b32 v%d, 3, v%d" % (vT, vL),
         "v_lshl_add_u32 v%d, v%d, 4, v%d" % (vT2, vT, vT2), "s_lshl_b32 s%d, s%d, 5" % (sT, sPm), "v_xor_b32 v%d, s%d, v%d" % (pD, sT, vT2)])
    for j in range(1, 4): a.e(["v_xor_b32 v%d, %d, v%d" % (pD + j, ((-j) & 3) * 16, pD), "v_add_u32 v%d, %d, v%d" % (pD + j, j * (8192 - 1024), pD + j)])
    a.e(["v_add_u32 v%d, s%d, v%d" % (pQ, sMW, vL16), "s_lshl_b32 s%d, s%d, 11" % (sT, sRH), "s_add_u32 s%d, s%d, 131072" % (sT, sT), "v_add_u32 v%d, s%d, v%d" % (pQ + 1, sT, vL16),
         "s_lshl_b32 s%d, s2, 2" % sT, "s_add_u32 s%d, s%d, s%d" % (sT, sT, sWv), "s_lshl_b32 s%d, s%d, 13" % (sT, sT),
         "v_lshlrev_b32 v%d, 7, v%d" % (pWoP, vL), "v_add_u32 v%d, s%d, v%d" % (pWoP, sT, pWoP),
         "s_lshl_b32 s%d, s%d, 1" % (sOf, sRB), "s_xor_b32 s%d, s%d, s%d" % (sOf, sOf, sCT), "s_and_b32 s%d, s%d, %d" % (sOf, sOf, O.x3mask), "s_lshl_b32 s%d, s%d, 16" % (sOf, sOf)])
    cp2 = codepf("L_tr", "L_epi", pCp)
    a.e(cp2[:-1])
    a.e([
         "s_lshl_b32 s%d, s2, 15" % sT, "s_lshl_b32 s%d, s%d, 10" % (sG, sWv), "s_add_u32 s%d, s%d, s%d" % (sT, sT, sG),
         "v_and_b32 v%d, 7, v%d" % (vT3, vL), "v_lshlrev_b32 v%d, 7, v%d" % (vT3, vT3), "v_add_u32 v%d, s%d, v%d" % (vT3, sT, vT3), "s_mov_b32 s%d, 0" % sP])
    kvpf = "global_load_dword v%d, v%d, s[%d:%d]" % (vDum, vT3, pWo, pWo + 1)
    zs = [zero16(vr(ACC + 16 * i, 16)) for i in range(7)] + [zero16(vr(OK + 16 * i, 16)) for i in range(2, 7)] + [zero16(ar(aO + 16 * i, 16)) for i in range(4)]
    seg = a.L[su0:]; del a.L[su0:]
    for i_, ln in enumerate(seg):
        if i_ % 7 == 3 and zs: a.e(zs.pop(0))
        a.L.append(ln)
    assert not zs and not any("exec" in ln for ln in seg[:120])
    late = stage_loads(1) + ["buffer_load_dword v%d, v%d, s[%d:%d], 0 offen" % (vDum, pPx, sX, sX + 3), "buffer_load_dword v%d, v%d, s[%d:%d], 0 offen" % (vDum, pPw, sW, sW + 3),
                              kvpf if O.wo_at != 0 else "global_load_dword v%d, v%d, s[%d:%d]" % (vDum, pWoP, pWo, pWo + 1)]
    def kvb(v, off): return "global_load_lds_dwordx4 v%d, s[4:5] offset:%d%s" % (v, off, KVF)
    kvq = ["s_cmp_lt_u32 s%d, 4" % sP, "s_cselect_b32 s4, s%d, s%d" % (sKV, sVV), "s_cselect_b32 s5, s%d, s%d" % (sKV + 1, sVV + 1),
           "s_and_b32 s%d, s%d, 1" % (sT, sP), "s_and_b32 s%d, s%d, 2" % (sG, sP), "s_lshl_b32 s%d, s%d, 12" % (sG, sG),
           "s_lshl_b32 s%d, s%d, 16" % (sT2, sT), "s_add_u32 s%d, s%d, s%d" % (sT2, sT2, sG), "s_mul_i32 s%d, s%d, %d" % (sT, sT, KH),
           "s_mul_i32 s%d, s%d, %d" % (sG, sG, TS_ // 8192), "s_add_u32 s%d, s%d, s%d" % (sT, sT, sG),
           "v_add_u32 v%d, s%d, v%d" % (vT, sT, vKV), "v_add_u32 v%d, s%d, v%d" % (vT2, sT, vKV + 1),
           "s_and_b32 s%d, s%d, 4" % (sG, sP), "s_lshl_b32 s%d, s%d, 13" % (sG, sG), "s_add_u32 s%d, s%d, s%d" % (sT2, sT2, sG),
           "s_and_b32 s%d, s%d, 5" % (sT, sP), "s_cmp_eq_u32 s%d, 5" % sT, "s_cselect_b32 s%d, 128, 0" % sT,
           "v_xor_b32 v%d, s%d, v%d" % (vT, sT, vT), "v_xor_b32 v%d, s%d, v%d" % (vT2, sT, vT2),
           "s_add_u32 s%d, s%d, s%d" % (sT2, sT2, sMW), "s_add_u32 s%d, s%d, 1" % (sP, sP)]
    kvq_m0 = "s_sub_u32 m0, s%d, 0x20000" % sT2

    def wreg(k): return {30: 192, 31: 208}.get(k, aWF + 16 * (k & 1))
    def xreg(k, rt): return 16 * rt + 4 * (k & 3)
    def rdW(k):
        out = []
        for dt in range(4):
            dp, t = dt >> 1, dt & 1
            for sec in range(2):
                out.append("ds_read_b64_tr_b16 %s, v%d offset:%d" % (ar(wreg(k) + 4 * dt + 2 * sec, 2), vWr + dp, (k & 3) * 8192 + sec * 512 + t * 8))
        return out
    def rdX1(s, kk, rt): return "ds_read_b128 %s, v%d offset:%d" % (ar(xreg(2 * s + kk, rt), 4), vXr + 2 * (s & 1) + kk, rt * 2048)
    def rdX(s): return [rdX1(s, kk, rt) for kk in range(2) for rt in range(7)]
    def A(rt, k): return [mfma(vr(ACC + 16 * rt + 4 * dt, 4), ar(wreg(k) + 4 * dt, 4), ar(xreg(k, rt), 4), vr(ACC + 16 * rt + 4 * dt, 4)) for dt in range(4)]
    stamp(4)
    if not O.rd_first: a.e(late)
    a.e(["s_waitcnt vmcnt(%d)" % (2 if O.rd_first else 16), "s_barrier"])
    stamp(4)
    a.e(rdW(0) + rdX(0))
    if O.rd_first: a.e(late)
    a.e(["s_mov_b32 s%d, 7" % sCnt, "s_waitcnt vmcnt(14) lgkmcnt(0)", "s_barrier"])

    wopf = "global_load_dword v%d, v%d, s[%d:%d]" % (vDum, pWoP, pWo, pWo + 1)
    addr28 = ["v_mov_b32 v%d, v%d" % (240 + i, PK + i) for i in range(8)] + ["v_mov_b32 v%d, v%d" % (vR + i, pR + i) for i in range(2)]
    addr28 += ["v_mov_b32 v%d, v%d" % (vQw + i, pQ + i) for i in range(2)] + setK(2)

    def p1_kstep(km, mode, ctl=False):
        sp, kk = km >> 1, km & 1
        mf = [m_ for rt in range(7) for m_ in A(rt, km)]
        gaps = [[] for _ in range(28)]
        rd = rdW(km + 1)
        if kk == 1: rd += rdX(sp + 1)
        dm = []; nxe = O.nxe; tailops = []
        if mode == "loop":
            def xs(js):
                r = []
                for j in js:
                    if j == 4 and j != js[0]: r += [m0X(sp, 1)]
                    r.append(dmaX(j))
                return r
            if kk == 0: dm += [m0W(km), dmaW(0), dmaW(1), m0X(sp, 0)] + incW + xs(list(range(nxe)))
            else:
                if nxe < 7: dm += ([m0X(sp, 1)] if nxe == 4 else []) + xs(list(range(nxe, 7)))
                dm += [m0W(km)] + incX + [dmaW(0), dmaW(1)] + incW
                if km == 3:
                    dm += [kvq_m0]; tailops = [kvb(vT, 0), kvb(vT2, 1024), kvpf]
            endw = "s_waitcnt vmcnt(%d) lgkmcnt(0)" % ((4 + nxe + (3 if km == 0 else 0)) if kk == 0 else 14)
        elif mode == 28:
            endw = "s_waitcnt vmcnt(5) lgkmcnt(0)"
        for g, x in enumerate(rd): gaps[g].append(x)
        def place(items, lo, hi):
            g_ = lo
            for y in items:
                if y.startswith("global_load"): g_ = min(g_ + 1, hi); gaps[g_].insert(0, y); continue
                while g_ < hi and len(gaps[g_]) >= 2: g_ += 1
                gaps[g_].append(y)
        nld = sum(1 for x in dm if x.startswith("buffer_load"))
        if nld:
            pos = [1 + (i * O.p1_span) // nld for i in range(nld)]
            li = 0; pend = []; prev = -1
            for x in dm:
                if x.startswith("buffer_load"):
                    place(pend, max(prev, 0), pos[li] - 1); pend = []
                    gaps[pos[li]].insert(0, x); prev = pos[li]; li += 1
                else: pend.append(x)
            place(pend, prev, 25)
        for i_, x in enumerate(tailops): gaps[23 + i_].insert(0, x)
        if mode == "loop" and km == 2: place(kvq + (["v_add_u32 v%d, 4096, v%d" % (vT3, vT3)] if O.wo_at == 1 else []), 8, 25)
        if mode == 28:
            place(kvq + [kvq_m0], 0, 15); gaps[16].insert(0, kvb(vT, 0)); gaps[17].insert(0, kvb(vT2, 1024)); place(addr28, 18, 25)
        if endw: gaps[26].append(endw); gaps[27].append("s_barrier")
        if ctl:
            gaps[25].append("s_sub_u32 s%d, s%d, 1" % (sCnt, sCnt)); gaps[26].append("s_cmp_lg_u32 s%d, 0" % sCnt)
        weave(a, mf, gaps)
    stamp(4)
    a.raw(".p2align 5")
    a.lab("L_p1")
    for km in range(4): p1_kstep(km, "loop", ctl=(km == 3))
    a.e("s_cbranch_scc1 L_p1")
    p1_kstep(0, 28)
    stamp(4)
    a.lab("L_tr")
    a.e(["s_cmp_lg_u32 s%d, 0" % sPass, "s_cbranch_scc1 L_nofl",
         "global_load_dword v%d, v%d, s[%d:%d] sc1" % (vFc, pFc, pWs, pWs + 1),
         "s_cmp_lg_u32 s%d, 0" % sWv, "s_cbranch_scc1 L_nofl",
         "global_load_dword v%d, v%d, s[%d:%d] sc1" % (vFo, pFp, pWs, pWs + 1)])
    a.lab("L_nofl")
    def ismem(x): return x.startswith(("ds_", "buffer_", "global_", "s_barrier"))
    def spread(mf, side, lo=0, hi=None):
        n = len(mf); hi = n - 1 if hi is None else hi
        gaps = [[] for _ in range(n)]
        g = lo
        for i_, x in enumerate(side):
            g = max(g, lo + (i_ * (hi - lo + 1)) // len(side))
            if ismem(x) and any(y.startswith("v_") for y in gaps[g]) and g < hi: g += 1
            gaps[g].append(x)
        weave(a, mf, gaps)
    def rdK(i, slot):
        t, ks = i & 1, i >> 1
        return "ds_read_b128 %s, v%d offset:%d" % (ar(aK + 16 * t + 4 * ks, 4), vKr, slot * 8192 + t * 4096 + ks * 256)
    def xlane(op, regs_, tmp):
        out = []
        for sw in ("v_permlane32_swap_b32", "v_permlane16_swap_b32"):
            out += ["v_mov_b32 v%d, v%d" % (t_, r_) for r_, t_ in zip(regs_, tmp)]
            out += ["%s v%d, v%d" % (sw, r_, t_) for r_, t_ in zip(regs_, tmp)]
            out += ["%s v%d, v%d, v%d" % (op, r_, r_, t_) for r_, t_ in zip(regs_, tmp)]
        return out
    def qk(rt, sb):
        out = []
        for i in range(8):
            t, ks = i & 1, i >> 1
            d = vr(S + 8 * sb + 4 * t, 4)
            out.append(mfma(d, ar(aK + 16 * t + 4 * ks, 4), ar(aQ + 16 * rt + 4 * ks, 4), vr(M + 4 * rt, 4) if ks == 0 else d))
        return out
    def oacc(rt, i): return vr(OK + 16 * rt + 4 * i, 4) if i < 4 else ar(aO + 16 * rt + 4 * (i - 4), 4)
    def pv(rt, pb): return [mfma(oacc(rt, i), vr(V + 4 * i, 4), vr(P + 4 * pb, 4), oacc(rt, i)) for i in range(8)]
    aK0 = 176
    def Bq(rt):
        o = []
        for dp in range(2):
            b = ACC + 16 * rt + 8 * dp
            for i in range(4): o += ["v_mul_f32 v%d, s%d, v%d" % (b + 2 * i, sC, b + 2 * i), "v_mul_f32 v%d, s%d, v%d" % (b + 2 * i + 1, sC, b + 2 * i + 1),
                                     "v_cvt_pk_bf16_f32 v%d, v%d, v%d" % (b + i, b + 2 * i, b + 2 * i + 1)]
            if dp == 0: o.append("s_waitcnt lgkmcnt(0)")
            o.append("ds_write_b128 v%d, %s offset:%d" % (vQw, vr(b, 4), (rt & 3) * 8192 + dp * 1024))
        return o
    def Cq(rt): return ["ds_read_b128 %s, v%d offset:%d" % (ar(aQ + 16 * rt + 4 * ks, 4), vQr, (rt & 3) * 8192 + (ks >> 1) * 4096 + (ks & 1) * 1024) for ks in range(4)]
    def PP(rt): return [mfma(vr(M + 4 * rt, 4), ar(aK0 + 4 * ks, 4), ar(aQ + 16 * rt + 4 * ks, 4), "0" if ks == 0 else vr(M + 4 * rt, 4)) for ks in range(4)]
    def Dq(rt):
        b = M + 4 * rt
        return ["v_max3_f32 v%d, v%d, v%d, v%d" % (b, b, b + 1, b + 2), "v_max_f32 v%d, v%d, v%d" % (b, b, b + 3)] + ["v_sub_f32 v%d, 0, v%d" % (b + i, b) for i in (1, 2, 3, 0)]
    sync = ["s_waitcnt lgkmcnt(0)", "s_barrier"]
    kvs = [[ptm0(reg, sl), "s_nop 0"] + ptld(reg) + (incK if reg == 3 else []) for sl in (2, 3) for reg in PORD]
    if O.t3late: kvs = [kvs[0], [], kvs[1], [], kvs[2], [], kvs[3], []]
    pfs = ([cp2[-1]] if O.pf_code else []) + ([wopf] if O.wo_at == 29 else [])
    t1 = rdW(30) + [rdX1(15, 0, 0)] + rdW(31) + [rdX1(15, 1, 0)] + [rdX1(15, kk, rt) for rt in range(1, 7) for kk in range(2)]
    spread([m_ for rt in range(5) for m_ in A(rt, 29)], t1 + pfs + sync, 0, 19)
    stamp(1)
    for i in range(8):
        mf = (A(i, 30) + A(i, 31) if i < 7 else qk(0, 0)) + (A(5 + i, 29) if i < 2 else PP(i - 2))
        side = []
        if i == 0: mf += [zero16(vr(OK, 16)), zero16(vr(OK + 16, 16))]
        if i == 1: side += ["s_waitcnt vmcnt(%d)" % (2 + len(pfs)), "s_barrier"] + ["ds_read_b128 %s, v%d offset:%d" % (ar(aK0 + 4 * ks, 4), vK0, ks * 256) for ks in range(4)]
        bq = Bq(i - 1) if i >= 1 else []
        nb = O.nb if i >= 2 else 0
        if nb:
            bq = [x for x in bq if not x.startswith("s_waitcnt")]
            w0 = [x for x in bq if x.startswith("ds_write")][0]; bq.remove(w0)
            bq = bq[:18] + ["s_waitcnt lgkmcnt(0)", w0] + bq[18:]
        side += bq[:nb]
        if i >= 2: side += sync + Cq(i - 2)
        if i in (3, 4): side += [rdK(j, 0) for j in range(4 * (i - 3), 4 * (i - 2))]
        side += bq[nb:]
        if i >= 3: side += Dq(i - 3)
        if i == 7: side += ["v_mov_b32 v%d, 0" % j for j in range(L, L + 4)] + ["s_mov_b32 s%d, 3" % sCnt]
        side += kvs[i]
        spread(mf, side)
    if O.ts: a.e(["s_mov_b32 s81, 0", "v_mov_b32 v252, 0"])
    a.e(["s_cmp_lg_u32 s%d, 0" % sPass, "s_cbranch_scc1 L_maxpass"])
    stamp(1)
    NA = 0

    def dma3(j): return "buffer_load_dwordx4 v%d, s[%d:%d], s%d offen offset:%d lds" % (vD + j, sWs, sWs + 3, sWo, j * 1024)
    def setWo(u): return "s_xor_b32 s%d, s%d, 0x%x" % (sWo, sOf, u * 32768)
    def wset(n): return (0, 32, 64, 224)[n & 3]
    def rd3(k, off, dts=range(8)):
        return ["ds_read_b64_tr_b16 %s, v%d offset:%d" % (ar(wset(k) + 4 * dt + 2 * sec, 2), vR + (dt & 1), off + (dt >> 1) * 256 + sec * 4096) for dt in dts for sec in range(2)]
    def xw(rt): return ["ds_write_b128 v%d, %s offset:%d" % (vTa, ar(aO + 16 * rt + 4 * i, 4), rt * 4096 + i * 1024) for i in range(4)]
    vm = VM(["kv"])
    sDyn, sDd = 10, 11
    KV = " ;kv"
    def dm0(reg): return "s_add_u32 m0, s%d, %d" % (sDyn, reg * 32768)
    incD = incK + ["s_add_u32 s%d, s%d, 8192" % (sDyn, sDyn), "s_and_b32 s%d, s%d, 0x7fff" % (sDyn, sDyn)]
    initD = ["s_sub_u32 s%d, s%d, 0x20000" % (sDyn, sMW), "s_mov_b32 s%d, 0" % sDd]
    vFp, vFa = 239, 252
    def loff(rt): return 28672 + (rt & 3) * 4 + (rt >> 2) * 1024
    def lw(rt): return "ds_write_b32 v%d, v%d offset:%d" % (vTa, L + rt, loff(rt))
    def rdc(rt, pb): return ["ds_read_b32 v%d, v%d offset:%d" % (E2 + 2 + (rt & 1), vTb, loff(rt))] + ["ds_read_b128 %s, v%d offset:%d" % (vr(pb + 4 * i, 4), vTb, (rt * 4 + i) * 1024) for i in range(4)]
    def comb(rt, pb):
        ob = OK + 16 * rt; t = E2 + 2 + (rt & 1)
        return (["v_add_f32 v%d, v%d, v%d" % (t, t, L + rt), "v_rcp_f32 v%d, v%d" % (t, t)] + ["v_add_f32 v%d, v%d, v%d" % (ob + i, ob + i, pb + i) for i in range(16)]
                + [x for i in range(8) for x in ("v_mul_f32 v%d, v%d, v%d" % (ob + 2 * i, ob + 2 * i, t), "v_mul_f32 v%d, v%d, v%d" % (ob + 2 * i + 1, ob + 2 * i + 1, t),
                                                 "v_cvt_pk_bf16_f32 v%d, v%d, v%d" % (ob + i, ob + 2 * i, ob + 2 * i + 1))])
    def ost(rt): return ["buffer_store_dwordx4 %s, v%d, s[%d:%d], s%d offen offset:%d sc1" % (vr(OK + 16 * rt + 4 * p, 4), vL16, sO, sO + 3, sRt + rt, p * 1024) for p in range(2)]
    pend = []; cost = [0]
    def step(js, r, last=False, first=False, kv=False, ctl=False):
        u = 7 * js + r
        fin = last and js == 3
        mf = ([] if (fin and r == 6) else qk((r + 1) % 7, (u + 1) & 1)) + pv((r + 6) % 7, (u + 1) & 1)
        mem = [[] for _ in range(16)]; val = [[] for _ in range(16)]
        pk = not fin and not (first and r == 0)
        Eb = E2 if (pk and u & 1) else E
        for e in range(8):
            val[2 * e].append("v_exp_f32 v%d, v%d" % (Eb + e, S + 8 * (u & 1) + e))
            if not pk: val[2 * e + 1].append("v_add_f32 v%d, v%d, v%d" % (L + r, L + r, Eb + e))
            if e & 1: val[2 * e + 1].append("v_cvt_pk_bf16_f32 v%d, v%d, v%d" % (P + 4 * (u & 1) + (e >> 1), Eb + e - 1, Eb + e))
        if first and r == 0:
            mf = mf[:8] + PP(6) + [zero16(ar(192, 16)), zero16(ar(208, 16))]
            mem[0] += sync + Cq(6)[:2]; mem[1] += Cq(6)[2:]; mem[7].append("s_waitcnt lgkmcnt(0)")
            for i_, x in enumerate(Dq(5)): val[3 + 2 * i_].append(x)
        if first and r == 1:
            for i_, x in enumerate(Dq(6) + ["v_mov_b32 v%d, 0" % j for j in range(L + 4, L + 7)]): val[1 + 4 * (i_ % 4)].append(x) if i_ >= 6 else val[1 + 2 * i_].append(x)
        if first and r == 2: mem[9].append(zero16(ar(176, 16)))
        if first and r == 3: mem[1].append(initD[0]); mem[5].append(initD[1])
        vrd = ["ds_read_b64_tr_b16 %s, v%d offset:%d" % (vr(V + 4 * i + 2 * sec, 2), vVr + (i & 1), js * 8192 + (i >> 1) * 256 + sec * 4096) for i in range(8) for sec in range(2)]
        if not fin and not first:
            if r == 0: mem[9] += vrd[0:3]; mem[11] += vrd[3:5]; mem[13] += vrd[5:8]; mem[15] += vrd[8:10]
            if r == 1:
                mem[1] += vrd[10:12]; mem[3] += vrd[12:14]; mem[5] += vrd[14:16]
                mem[7].append("s_waitcnt lgkmcnt(4)"); mem[13].append("s_waitcnt lgkmcnt(0)")
        else:
            if r == 0:
                for i in range(16): mem[8 + i // 2].append(vrd[i])
            if r == 1: mem[5].append("s_waitcnt lgkmcnt(%d)" % (5 if fin else 0))
        if r == 5 and not fin: mem[0].append("s_barrier")
        if r == 4 and not last: mem[13].append("s_getreg_b32 s%d, hwreg(HW_REG_IB_STS)" % sT2)
        if r == 4 and ctl: mem[9].append("s_sub_u32 s%d, s%d, 1" % (sCnt, sCnt)); mem[11].append("s_cmp_lg_u32 s%d, 0" % sCnt)
        if kv:
            pts = [tuple(int(y) for y in x.split(".")) for x in O.pts.split(",")]
            pos = [((pr_ - 5) % 7) * 16 + pg_ for pr_, pg_ in pts]
            here = ((r - 5) % 7) * 16
            def put(p_, xs):
                if here <= p_ < here + 16: mem[p_ - here] += [x + KV for x in xs]
            for n_ in range(4):
                put(pos[n_] - 2, [dm0(PORD[n_])]); put(pos[n_], ptld(PORD[n_]))
            put(pos[3] + 2, incD[0:2]); put(pos[3] + 4, incD[2:4])
        if last:
            sched = {(0, 6): 0, (1, 1): 6, (1, 3): 1, (1, 6): 7, (2, 0): 2, (2, 2): 3, (2, 5): 4, (3, 0): 5}
            if (js, r) in sched:
                k = sched[(js, r)]
                base, off = (sReg, k * 4096) if k < 6 else (sSp, (k - 6) * 4096)
                g0 = (9, 11, 13, 15) if r == 5 else ((1, 3, 5, 7) if r == 0 else (1, 5, 9, 13))
                mem[g0[0] - 1] += ["s_add_u32 m0, s%d, %d" % (base, off), setWo(k)]
                for j in range(4): mem[g0[j]].append(("w%d" % k, dma3(j)))
            if r == 4 and js < 3: mem[13].append(("wait", "kv"))
            if r == 5 and js < 2:
                mem[11].append("s_cmp_ge_u32 s%d, %d" % (sK0, 16 * TS_))
                mem[13].append(("kv", ["s_cbranch_scc1 L_ok%d" % js] + [x for reg in PORD for x in [dm0(reg), "s_nop 0"] + ptld(reg)] + incD + ["L_ok%d:" % js]))
            if js == 2 and r == 3 and O.pf_code:
                pf = codepf("L_epi", "L_end", vT)
                for i_, x in enumerate(pf[:-1]): val[1 + 2 * i_].append(x)
                mem[15].append(("pf", pf[-1]))
            if js == 1 and r == 2:
                val[1] += ["v_add_u32 v%d, s%d, v%d" % (vTa, sReg, vL16)]; val[5] += ["v_add_u32 v%d, s%d, v%d" % (vTb, sRing, vL16)]
            if js == 1 and r == 4:
                for i_, x in enumerate(flagp(vFp, vT2)): val[1 + 2 * (i_ // 4)].append(x)
            if js == 2 and r == 1:
                for i_, x in enumerate(["s_lshr_b32 s%d, s%d, 6" % (sT, sOf), "v_add_u32 v248, s%d, v%d" % (sT, vL16), "v_add_u32 v%d, 1, v%d" % (vFo, vFo)]): val[9 + 2 * i_].append(x)
            if js == 2 and r == 4:
                fc = flagc(vFa)
                for i_, x in enumerate(fc[:-3]): val[1 + 2 * (i_ // 2)].append(x)
                val[11] += fc[-3:]
            if fin:
                h2 = 8 if 2 <= r < 6 else 0
                if r < 6:
                    if r % 2 == 0: mem[h2] += [("wait", "w%d" % r), ("wait", "w%d" % (r + 1))]
                if r == 1: mem[9].append("s_barrier")
                g1 = list(range(0, 8)) if r < 6 else [8, 8, 9, 9, 10, 10, 11, 11]
                g2 = list(range(8, 16)) if r < 6 else [12, 12, 13, 13, 14, 14, 15, 15]
                if r >= 3: mem[g1[0]].append("s_waitcnt lgkmcnt(0)")
                if r >= 2:
                    for i_, x in enumerate(xw(r - 2) + [lw(r - 2)]): mem[g1[1 + i_]].append(x)
                    mem[g2[0]] += sync
                    for i_, x in enumerate(rdc(r - 2, 128)): mem[g2[(i_ + 1) // 2]].append(x)
                if r < 6:
                    for i_, x in enumerate(rd3(r >> 1, (r >> 1) * 8192, range(4 * (r & 1), 4 * (r & 1) + 4))): mem[h2 + (i_ if h2 == 0 else 3 + i_ // 2)].append(x)
                else:
                    mem[8] += [("wait", "w6"), ("wait", "w7")]
                    for i_, x in enumerate(rd3(3, 0)): mem[8 + i_ // 2].append(x)
                vg = r < 6
                if r >= 3:
                    cb = comb(r - 3, 128)
                    for i_, x in enumerate(cb[:18]): val[(i_ * 8) // 18].append(x)
                    for i_, x in enumerate(cb[18:]): val[8 + (i_ * 6) // 24].append(x)
                    mem[15] += [("st", x) for x in ost(r - 3)]
                    if O.wfin and r >= 4:
                        u_ = 8 + r - 4
                        mem[g1[0]] += ["s_add_u32 m0, s%d, %d" % (sRing, (u_ & 7) * 4096), setWo(u_)]
                        for j in range(4): mem[g1[2 + j]].append(("w%d" % u_, dma3(j)))
                if r >= 1:
                    for i_, x in enumerate(xlane("v_add_f32", [L + r - 1], [E2])): val[3 + 2 * i_].append(x)
                if r == 5: val[15] += ["v_add_u32 v%d, s%d, v%d" % (vR + i, sD1, vR + i) for i in range(2)]
        if r == 5 and not fin:
            for i in range(8): mem[(1, 1, 3, 5, 5, 7, 9, 9)[i]].append(rdK(i, (js + 1) & 3))
            mem[15].insert(0, "s_waitcnt lgkmcnt(0)")
            if O.ts: mem[11] += TS_A; mem[15] += TS_B
        if fin and r == 6:
            mem = [mem[8 + i] for i in range(8)]
            val = [val[2 * i] + val[2 * i + 1] for i in range(8)]
            val = [[v_[0], "s_nop 0"] + v_[1:] for v_ in val]
            a.e("s_nop 1")
        if first and r == 0:
            mem = mem[:12] + [mem[12] + mem[13], mem[14] + mem[15]]
            val = val[:12] + [val[12] + ["s_nop 0"] + val[13], val[14] + ["s_nop 0"] + val[15]]
        if pk:
            flush = r == 4 or (last and js == 2 and r == 6)
            old_ = len(pend)
            for g in range(1, 16, 2):
                pend.append("v_add_f32 v%d, v%d, v%d" % (L + r, L + r, Eb + g // 2))
                n_ = max(0, 2 - len(mem[g]) - len(val[g]))
                if g == 15: n_ = max(n_, len(pend) if flush else old_)
                n_ = min(n_, len(pend))
                val[g] += pend[:n_]; del pend[:n_]; old_ = max(0, old_ - n_)
        else: assert not pend
        if O.padn and pk:
            for i_ in range(O.padn): val[2 * i_].append("s_nop 0")
        for g_, v_ in zip(mem, val): cost[0] += max(16, 8 + sum(8 if (isinstance(x, str) and "v_exp" in x) else 4 for x in g_ + v_))
        if r == 4:
            if O.verbose: print("unit ending", js, last, first, "model cycles", cost[0], file=sys.stderr)
            cost[0] = 0
        for m_, g_, v_ in zip(mf, mem, val):
            a.e(m_)
            for x in g_:
                if isinstance(x, tuple):
                    if x[0] == "wait": a.e("s_waitcnt vmcnt(%d)" % vm.n(x[1]))
                    elif x[0] == "kv": vm.issue("kv", True); a.e(x[1])
                    else: vm.issue(x[0]); a.e(x[1])
                else: a.e(x)
            a.e(v_)
    for r in range(5): step(0, r, first=True)
    quiet = []
    a.raw(".p2align 5")
    a.lab("L_loop")
    for js in range(4):
        if O.force_skip & (1 << js): a.e("s_or_b32 s%d, s%d, 15" % (sT2, sT2))
        a.e(["s_and_b32 s%d, s%d, 0xc0000f" % (sT2, sT2), "s_cbranch_scc1 L_h%d" % js])
        a.lab("L_u%d" % js)
        q0 = len(a.L)
        for r in (5, 6): step(js, r, kv=True)
        step((js + 1) & 3, 0, kv=True)
        qe = max(i_ for i_ in range(q0, len(a.L)) if a.L[i_].endswith(KV)) + 1
        quiet.append([ln for ln in a.L[q0:qe] if not ln.endswith(KV)])
        a.L.insert(qe, "L_j%d:" % js)
        for r in range(1, 5): step((js + 1) & 3, r, ctl=(js == 3))
    a.e(["s_cbranch_scc1 L_loop", "s_branch L_last"])
    for js in range(4):
        a.lab("L_h%d" % js)
        a.e(["s_cmp_lt_u32 s%d, 2" % sDd, "s_cbranch_scc1 L_hs%d" % js, "s_waitcnt vmcnt(0)", "s_branch L_u%d" % js])
        a.lab("L_hs%d" % js)
        a.e(["s_waitcnt vmcnt(8)", "s_cmp_le_u32 s%d, %d" % (sT2, O.th), "s_cbranch_scc1 L_u%d" % js] + (
             ["s_cmp_ge_u32 s%d, %d" % (sDd, O.dmax), "s_cbranch_scc1 L_u%d" % js] if O.dmax < 2 else []) + [ "s_add_u32 s%d, s%d, 1" % (sDd, sDd)])
        a.L += quiet[js]
        a.e("s_branch L_j%d" % js)
    a.lab("L_last")
    a.e(["s_cmp_lt_u32 s%d, 2" % sDd, "s_cbranch_scc1 L_d1", "s_waitcnt vmcnt(0)", "L_d1:", "s_waitcnt vmcnt(8)"])
    for r in (5, 6): step(0, r, last=True)
    for js in range(1, 4):
        for r in range(7): step(js, r, last=True)
    stamp()

    a.lab("L_epi")
    misc = ["v_add_f32 v%d, v%d, v%d" % (vTc, L, L + 1)] + ["v_add_f32 v%d, v%d, v%d" % (vTc, vTc, L + i) for i in range(2, 7)]
    misc += ["s_mov_b32 s%d, 0x%x" % (sT, THR if not O.force_slow else 0), "s_lshl_b32 s%d, s%d, 2" % (sG, sWv),
             "v_cmp_ngt_f32 vcc, s%d, v%d" % (sT, vTc),
             "s_add_u32 s%d, s%d, 30720" % (sG, sG), "v_mov_b32 v%d, s%d" % (vT, sG),
             "s_cmp_lg_u64 vcc, 0", "s_cselect_b32 s%d, 1, 0" % sT, "v_mov_b32 v%d, 30720" % vT2, "v_mov_b32 v%d, s%d" % (L + 7, sT)]
    xl = xlane("v_add_f32", [L + 6], [E2])
    pvl = pv(6, 1); pvl = pvl[4:] + pvl[:4]
    gp = [[] for _ in range(8)]
    for i_, x in enumerate(xw(5) + [lw(5)]): gp[2 + i_].append(x)
    for i_, x in enumerate(misc): gp[(i_ * 8) // len(misc)].append(x)
    for i_, x in enumerate(xl): gp[2 + i_].append(x)
    a.e(["s_waitcnt lgkmcnt(0)", "s_nop 0"])
    weave(a, pvl, gp)
    a.e(xw(6) + [lw(6), "ds_write_b32 v%d, v%d" % (vT, L + 7)])
    def combp(rt, pb):
        ob = OK + 16 * rt; t = E2 + 2
        o = ["v_add_f32 v%d, v%d, v%d" % (t + (rt & 1), t + (rt & 1), L + rt), "v_rcp_f32 v%d, v%d" % (t + (rt & 1), t + (rt & 1))]
        o += ["v_pk_add_f32 %s, %s, %s" % (vr(ob + 2 * i, 2), vr(ob + 2 * i, 2), vr(pb + 2 * i, 2)) for i in range(8)]
        o += ["v_pk_mul_f32 %s, %s, %s %s" % (vr(ob + 2 * i, 2), vr(ob + 2 * i, 2), vr(t, 2), "op_sel:[0,1]" if rt & 1 else "op_sel_hi:[1,0]") for i in range(8)]
        return o + ["v_cvt_pk_bf16_f32 v%d, v%d, v%d" % (ob + i, ob + 2 * i, ob + 2 * i + 1) for i in range(8)]
    def stores(rt):
        for x in ost(rt): vm.issue("st"); a.e(x)
    c4 = combp(4, 128)
    a.e(c4[:18] + sync)
    stamp(2)
    a.e(["ds_read_b128 %s, v%d" % (vr(216, 4), vT2)] + rdc(5, 144) + rdc(6, 160) + c4[18:])
    stores(4)
    a.e(["v_add_u32 v%d, s%d, v%d" % (vR + i, sD2, vR + i) for i in range(2)])
    a.e(["s_waitcnt lgkmcnt(5)", "v_or3_b32 v216, v216, v217, v218", "v_or_b32 v216, v216, v219"] + combp(5, 144) + ["v_readfirstlane_b32 s%d, v216" % sT])
    stores(5)
    a.e(["s_waitcnt lgkmcnt(0)"] + combp(6, 160))
    stores(6)
    a.e(["s_andn2_b32 s%d, s%d, s%d" % (sT, sT, sPass), "s_cbranch_scc1 L_slow"])
    def wload(k, j):
        if j == 0: a.e(["s_add_u32 m0, s%d, %d" % (sRing, (k & 7) * 4096), setWo(k)])
        vm.issue("w%d" % k); a.e(dma3(j))
    wi = 12 if O.wfin else 0
    stamp(2)
    ACC3, OF = 16, 128
    vS, vOo, vOut, vPs = 6, 248, 249, 250
    def acc3(rt, sl):
        hb, wv = sl >> 2, sl & 3
        return vr(ACC3 + 16 * rt + 4 * (2 * hb + wv), 4) if wv < 2 else ar(112 + 16 * rt + 4 * (2 * hb + wv - 2), 4)
    for _ in range(min(O.w_late, 28 - wi)): wload(8 + wi // 4, wi % 4); wi += 1
    a.e(["s_lshl_b32 s%d, s%d, 5" % (sT, sB), "s_add_u32 s%d, s%d, s%d" % (sT, sT, sH), "v_mov_b32 v%d, s%d" % (vT2, sT), "v_mov_b32 v%d, 1" % vT3,
         "v_xor_b32 v243, 0x80, v%d" % vT2, "v_mov_b32 v241, v%d" % vFa,
         "s_lshr_b32 s%d, s%d, 1" % (sT, sRB), "s_lshl_b32 s%d, s%d, 5" % (sT, sT), "s_lshl_b32 s%d, s%d, 2" % (sG, sPm), "s_add_u32 s%d, s%d, s%d" % (sT, sT, sG),
         "v_mov_b32 v242, s%d" % sT, "s_mov_b32 s%d, 0x40000" % sCnt])
    a.e(["s_waitcnt vmcnt(%d)" % vm.n("st"), "s_barrier"])
    stamp(2)
    if O.stamps: a.e("s_memrealtime s[6:7]")
    a.e(["s_cmp_lg_u32 s%d, 0" % sWv, "s_cbranch_scc1 L_noflag",
         "s_mov_b64 exec, 0xfffff", "global_store_dword v%d, v%d, s[%d:%d] sc1" % (vFp, vFo, pWs, pWs + 1),
         "s_mov_b64 exec, 1", "global_store_byte v%d, v%d, s[%d:%d] sc1" % (vT2, vT3, pDbg, pDbg + 1), "s_mov_b64 exec, -1"])
    a.lab("L_noflag")
    stamp(2)
    def wpieces(lo, hi):
        out = []
        for p_ in range(lo, hi):
            u, j = 8 + p_ // 4, p_ % 4
            out.append((["s_add_u32 m0, s%d, %d" % (sRing, (u & 7) * 4096), setWo(u)] if j == 0 else [], ("w%d" % u, dma3(j))))
        return out
    if O.dynw:
        a.e(["s_mov_b64 exec, 31", "global_load_dword v%d, v241, s[%d:%d] sc1" % (vT, pWs, pWs + 1), "s_waitcnt vmcnt(0)", "v_cmp_eq_u32 vcc, v%d, v%d" % (vT, vFc), "s_nop 0", "s_cbranch_vccz L_go", "s_mov_b64 exec, -1"])
        for pre, op in wpieces(wi, 32): a.e(pre + [op[1]])
    a.e("s_mov_b64 exec, 31")
    a.lab("L_poll")
    a.e(["global_load_dword v%d, v241, s[%d:%d] sc1" % (vT, pWs, pWs + 1), "s_sub_u32 s%d, s%d, 1" % (sCnt, sCnt), "s_cbranch_scc1 L_go",
         "s_waitcnt vmcnt(0)", "v_cmp_eq_u32 s[%d:%d], v%d, v%d" % (sC, sC + 1, vT, vFc), "s_nop 0", "s_cmp_eq_u64 s[%d:%d], 0" % (sC, sC + 1), "s_cbranch_scc1 L_go",
         "s_and_b32 s%d, s%d, 15" % (sT, sCnt), "s_cbranch_scc1 L_poll",
         "global_load_dword v%d, v242, s[%d:%d] sc1" % (vT, pDbg, pDbg + 1), "global_load_ubyte v%d, v243, s[%d:%d] sc1" % (vT2, pDbg, pDbg + 1), "s_waitcnt vmcnt(0)",
         "v_add_u32 v%d, v%d, v%d" % (vT, vT, vT2), "s_nop 0", "v_readfirstlane_b32 s%d, v%d" % (sT, vT),
         "s_nop 0", "s_cmp_eq_u32 s%d, 0x01010102" % sT, "s_cbranch_scc0 L_poll"])
    a.lab("L_go")
    a.e("s_mov_b64 exec, -1")
    if O.wggo: a.e("s_barrier")
    stamp()
    if O.stamps: a.e(["s_memrealtime s[4:5]", "s_sub_u32 s10, 0x40000, s11"])
    def ldO(rt, k): return "buffer_load_dwordx4 %s, v%d, s[%d:%d], s%d offen sc1" % (vr(OF + 28 * (k & 3) + 4 * rt, 4), vOo, sOs, sOs + 3, sRt + rt)
    def incO(k): return "v_xor_b32 v%d, 0x%x, v%d" % (vOo, (k ^ (k + 1)) << 10, vOo)
    for k in range(2):
        for rt in range(7): vm.issue("o%d" % k); a.e(ldO(rt, k))
        a.e(incO(k))
    a.e(["v_add_u32 v%d, s%d, v%d" % (vS, sRing, vL16)])
    for i in range(1, 4): a.e(["v_xor_b32 v%d, 0x%x, v%d" % (vS + i, i << 15, vS)])
    a.e(["v_and_b32 v%d, 15, v%d" % (vT, vL), "v_lshrrev_b32 v%d, 4, v%d" % (vT2, vL), "v_lshlrev_b32 v%d, 3, v%d" % (vT2, vT2),
         "v_lshl_add_u32 v%d, v%d, 11, v%d" % (vT, vT, vT2),
         "s_lshl_b32 s%d, s%d, 8" % (sT, sCT), "s_lshl_b32 s%d, s%d, 5" % (sG, sPm), "s_add_u32 s%d, s%d, s%d" % (sT, sT, sG),
         "v_add_u32 v%d, s%d, v%d" % (vOut, sT, vT)] + boxaddr(vPs) + ["v_xor_b32 v%d, 0x8000, v%d" % (vPs + 1, vPs)])
    a.e(["s_waitcnt vmcnt(%d)" % (vm.n("o0") + 6)])
    def redw(rt, hb, wv): return "ds_write_b128 v%d, %s offset:%d" % (vS, acc3(rt, 4 * hb + wv), (wv - 1) * 7168 + rt * 1024)
    def redr(rt, wv, d): return "ds_read_b128 %s, v%d offset:%d" % (vr(d, 4), vS + wv, (wv - 1) * 7168 + rt * 1024)
    def mf3(rt, sl, k): return mfma(acc3(rt, sl), ar(wset(k) + 4 * sl, 4), vr(OF + 28 * (k & 3) + 4 * rt, 4), acc3(rt, sl) if k else "0")
    def emit(mf, gaps):
        for m_, g_ in zip(mf, gaps):
            a.e(m_)
            for x in g_:
                if isinstance(x, tuple):
                    if x[0] == "wait": a.e("s_waitcnt vmcnt(%d)%s" % (min(vm.n(t_) for t_ in x[1]), " lgkmcnt(0)" if x[2] else ""))
                    elif x[0] == "wait0": a.e("s_waitcnt vmcnt(%d)" % (vm.n("o0") + x[1]))
                    elif isinstance(x[1], list):
                        nsk[0] += 1
                        for _ in range(4): vm.issue(x[0], True)
                        a.e(["s_cbranch_vccnz L_sk%d" % nsk[0]] + x[1]); a.lab("L_sk%d" % nsk[0])
                    elif (O.dbg3 & 1 and x[0][0] == "w") or (O.dbg3 & 2 and x[0][0] == "o" and int(x[0][1:]) > 3): vm.issue(x[0])
                    else: vm.issue(x[0]); a.e(x[1])
                elif O.dbg3 & 4 and x.startswith("ds_read_b64"): pass
                else: a.e(x)
    nsk = [0]
    ws0, ws1 = 2, O.ws1
    pstep = [ws0 + (p_ * (ws1 - ws0)) // 64 for p_ in range(64)]
    rstep = {m_: m_ - 3 for m_ in range(4, 8)}
    for m_ in range(8, 16):
        rstep[m_] = max(m_ - 3, pstep[8 * (m_ - 8) + 7] + 2)
        assert pstep[8 * (m_ - 8)] > rstep[m_ - 4] and rstep[m_] <= min(m_ - 1, 13) and (m_ == 15 or rstep[m_] <= 12), m_
    for k in range(13):
        mf = [mf3(rt, sl, k) for rt in range(7) for sl in range(8)]
        gaps = [[] for _ in range(56)]
        rds = [m_ for m_ in rstep if rstep[m_] == k]
        for g, x in enumerate([y for m_ in rds for y in rd3(m_, (m_ & 3) * 8192)]): gaps[g].append(x)
        wl = []
        if k < 3:
            assert wi % 4 == 0 and wi >= 8 and O.dynw
            us = list(range(wi // 4, 8)); us = us[(len(us) * k) // 3:(len(us) * (k + 1)) // 3]
            wl = [([], ("w%d" % (8 + u_), [y for pre, op in wpieces(4 * u_, 4 * u_ + 4) for y in pre + [op[1]]])) for u_ in us]
        ps_ = [p_ for p_ in range(64) if pstep[p_] == k]
        if ps_: wl += wpieces(32 + ps_[0], 32 + ps_[-1] + 1)
        ol = [([], ("o%d" % kk_, ldO(rt, kk_))) + ((incO(kk_),) if rt == 6 else ()) for kk_ in ([2, 3] if k == 0 else [k + 3]) for rt in range(7)]
        ld = sorted([((i_ + 0.5) / len(wl), x) for i_, x in enumerate(wl)] + [((i_ + 0.25) / len(ol), x) for i_, x in enumerate(ol)], key=lambda t_: t_[0])
        for i_, (_, x) in enumerate(ld):
            g = 1 + (i_ * 53) // len(ld)
            gaps[g - 1] += x[0]; gaps[g].insert(0, x[1])
            if len(x) > 2: gaps[g].append(x[2])
        if k == 0:
            for rt in range(1, 7): gaps[8 * rt - 1].append(("wait0", 6 - rt))
        need_ = ["o%d" % (k + 1)] + ["w%d" % (2 * m_ + 1) for m_ in rstep if rstep[m_] == k + 1]
        gaps[55].append(("wait", need_, bool(rds)))
        emit(mf, gaps)
    mf = [mf3(rt, 4 * hb + wv, k) for hb in (1, 0) for k in (13, 14, 15) for rt in range(7) for wv in range(4)]
    gaps = [[] for _ in range(168)]
    if rstep[15] == 13:
        for g, x in enumerate(rd3(15, 3 * 8192)): gaps[g].append(x)
    gaps[27].append(("wait", ["o14"], False)); gaps[55].append(("wait", ["o15"], True))
    for rt in range(7):
        for wv in range(1, 4): gaps[56 + 4 * rt + wv + 8].append(redw(rt, 1, wv))
    gaps[94].append("s_waitcnt lgkmcnt(0)"); gaps[95].append("s_barrier")
    def tmp1(rt, wv): return (ACC3 + 16 * rt + 12, OF + 4 * rt, OF + 28 + 4 * rt)[wv - 1]
    for rt in range(7):
        g = 96 + 4 * rt
        gaps[g] += [redr(rt, 1, tmp1(rt, 1)), redr(rt, 2, tmp1(rt, 2))]; gaps[g + 1].append(redr(rt, 3, tmp1(rt, 3)))
    for rt in range(7):
        g = 96 + 4 * rt + 6; b = ACC3 + 16 * rt + 8
        gaps[g - 1].append("s_waitcnt lgkmcnt(%d)" % (3 if rt < 6 else 0))
        ads = ["v_add_f32 v%d, v%d, v%d" % (b + i, b + i, tmp1(rt, 1) + i) for i in range(4)]
        ads += ["v_add_f32 v%d, v%d, v%d" % (tmp1(rt, 2) + i, tmp1(rt, 2) + i, tmp1(rt, 3) + i) for i in range(4)]
        ads += ["v_add_f32 v%d, v%d, v%d" % (b + i, b + i, tmp1(rt, 2) + i) for i in range(4)]
        gaps[g] += ads[0:4]; gaps[g + 1] += ads[4:8]; gaps[g + 2] += ads[8:10]; gaps[g + 3] += ads[10:12]
        gaps[g + 4].insert(0, ("ps", "global_store_dwordx4 v%d, %s, s[%d:%d] offset:%d sc1" % (vPs + 1, vr(b, 4), pWs, pWs + 1, rt * 1024 - 3072)))
    gaps[132].append("s_barrier")
    gaps[134].append("v_add_u32 v%d, 1, v%d" % (vT2, vFc))
    gaps[O.f2gap] += ["s_waitcnt vmcnt(0)", "s_mov_b64 exec, 64", "global_store_dword v241, v%d, s[%d:%d] sc1" % (vT2, pWs, pWs + 1), "s_mov_b64 exec, -1"]
    lastw = []
    for rt in range(7):
        for wv in range(1, 4):
            g2 = 140 + 4 * rt + wv + 8
            if g2 < 168: gaps[g2].insert(0, redw(rt, 0, wv))
            else: lastw.append(redw(rt, 0, wv))
    emit(mf, gaps)
    stamp()
    PB = OF + 84
    ldP = ["global_load_dwordx4 %s, v%d, s[%d:%d] offset:%d sc1" % (vr(PB + 4 * rt, 4), vPs, pWs, pWs + 1, rt * 1024 - 3072) for rt in range(7)]
    pl2 = "global_load_dword v%d, v241, s[%d:%d] sc1" % (vT, pWs, pWs + 1)
    a.e(["s_mov_b64 exec, 32", pl2, "s_mov_b64 exec, -1"] + lastw[:3] + ["s_nop 1"] + lastw[3:] + ["s_mov_b32 s%d, 0x40000" % sCnt, "s_waitcnt lgkmcnt(0)", "s_barrier"])
    for rt in range(7):
        for wv in range(1, 4): a.e(redr(rt, wv, OF + 12 * rt + 4 * (wv - 1)))
    a.e("s_mov_b64 exec, 32")
    a.lab("L_poll2")
    a.e(["s_waitcnt vmcnt(0)", "v_cmp_eq_u32 vcc, v%d, v%d" % (vT, vFc), "s_sub_u32 s%d, s%d, 1" % (sCnt, sCnt), "s_cbranch_vccz L_go2", "s_cbranch_scc1 L_go2", pl2, "s_branch L_poll2"])
    a.lab("L_go2")
    a.e(["s_mov_b64 exec, -1"] + ldP)
    for rt in range(7):
        a.e("s_waitcnt lgkmcnt(%d)" % min(15, 3 * (6 - rt)))
        b = ACC3 + 16 * rt; t = OF + 12 * rt
        for h in range(2):
            a.e("v_pk_add_f32 %s, %s, %s" % (vr(b + 2 * h, 2), vr(b + 2 * h, 2), vr(t + 2 * h, 2)))
            a.e("v_pk_add_f32 %s, %s, %s" % (vr(t + 4 + 2 * h, 2), vr(t + 4 + 2 * h, 2), vr(t + 8 + 2 * h, 2)))
        for h in range(2): a.e("v_pk_add_f32 %s, %s, %s" % (vr(b + 2 * h, 2), vr(b + 2 * h, 2), vr(t + 4 + 2 * h, 2)))
    for rt in range(7):
        b = ACC3 + 16 * rt; t = PB + 4 * rt
        a.e(["s_waitcnt vmcnt(6)"] + ["v_pk_add_f32 %s, %s, %s" % (vr(b + 2 * h, 2), vr(b + 2 * h, 2), vr(t + 2 * h, 2)) for h in range(2)])
        a.e(["v_cvt_pk_bf16_f32 v%d, v%d, v%d" % (b, b, b + 1), "v_cvt_pk_bf16_f32 v%d, v%d, v%d" % (b + 1, b + 2, b + 3),
             "s_mov_b32 s%d, %d" % (sT, rt * 32768),
             "buffer_store_dwordx2 %s, v%d, s[%d:%d], s%d offen %s" % (vr(b, 2), vOut, sOut, sOut + 3, sT, O.out_flags)])
    if O.stamps:
        a.e(["s_waitcnt vmcnt(0)"])
        if not O.ts: stamp()
        a.e(["s_memrealtime s[78:79]", "s_waitcnt lgkmcnt(0)", "s_lshl_b32 s%d, s2, 2" % sT, "s_add_u32 s%d, s%d, s%d" % (sT, sT, sWv), "s_lshl_b32 s%d, s%d, 6" % (sT, sT),
             "s_add_u32 s%d, s%d, 0x%x" % (sT, sT, STAMP_OFF),
             "s_add_u32 s%d, s%d, s%d" % (sO, pWs, sT), "s_addc_u32 s%d, s%d, 0" % (sO + 1, pWs + 1), "s_mov_b32 s%d, 64" % (sO + 2), "v_mov_b32 v%d, 0" % vT])
        for i in range(nst[0]):
            a.e(["s_sub_u32 s%d, s%d, s%d" % (sT, sST + 2 * i, sST), "v_mov_b32 v%d, s%d" % (vT2, sT),
                 "buffer_store_dword v%d, v%d, s[%d:%d], 0 offen offset:%d" % (vT2, vT, sO, sO + 3, 4 * i)])
        for i, r_ in enumerate((10, 6, 4, sST, 78)):
            a.e(["v_mov_b32 v%d, s%d" % (vT2, r_), "buffer_store_dword v%d, v%d, s[%d:%d], 0 offen offset:%d" % (vT2, vT, sO, sO + 3, 44 + 4 * i)])
    if O.ts:
        a.e(["s_lshl_b32 s%d, s2, 9" % sT, "s_add_u32 s%d, s%d, 0x%x" % (sT, sT, STAMP_OFF + 0x200000),
             "s_add_u32 s%d, s%d, s%d" % (sO, pWs, sT), "s_addc_u32 s%d, s%d, 0" % (sO + 1, pWs + 1), "s_mov_b32 s%d, 512" % (sO + 2),
             "v_lshlrev_b32 v%d, 2, v%d" % (vT, vL), "buffer_store_dword v252, v%d, s[%d:%d], 0 offen" % (vT, sO, sO + 3)])
    a.lab("L_end")
    a.e("s_endpgm")

    if O.wo_at >= 100:
        a.lab("L_wopf")
        a.e(["s_lshl_b32 s%d, s2, 2" % sT, "s_add_u32 s%d, s%d, s%d" % (sT, sT, sWv), "s_lshl_b32 s%d, s%d, 13" % (sT, sT),
             "v_lshlrev_b32 v%d, 7, v%d" % (vT, vL), "v_add_u32 v%d, s%d, v%d" % (vT, sT, vT),
             "global_load_dword v%d, v%d, s[%d:%d]" % (vDum, vT, pWo, pWo + 1), "s_branch L_wopf_ret"])
    a.lab("L_slow")
    a.e(["s_waitcnt vmcnt(0) lgkmcnt(0)", "s_barrier", "s_mov_b32 s%d, 1" % sPass] + lane_setup() + ["s_branch L_restart"])
    a.lab("L_maxpass")
    a.e(["s_waitcnt vmcnt(0) lgkmcnt(0)", "s_barrier"] + Cq(6) + ["s_mov_b32 s%d, 16" % sCnt] + setK(0))
    a.e([zero16(ar(176 + 16 * i, 16)) for i in range(3)] + ["s_nop 7"])
    for rt in range(7): a.e("v_mov_b32 v%d, 0xff800000" % (M + 4 * rt))
    a.lab("L_slow_loop")
    a.e(kvtile(0))
    a.e(["s_waitcnt vmcnt(0)", "s_barrier"])
    a.e([rdK(i, 0) for i in range(8)])
    a.e(["s_waitcnt lgkmcnt(0)", "s_barrier"])
    for rt in range(7):
        for i in range(8):
            t, ks = i & 1, i >> 1
            d = vr(S + 4 * t, 4)
            a.e(mfma(d, ar(aK + 16 * t + 4 * ks, 4), ar(aQ + 16 * rt + 4 * ks, 4), "0" if ks == 0 else d))
        a.e("s_nop 7")
        for i in range(4): a.e("v_max3_f32 v%d, v%d, v%d, v%d" % (M + 4 * rt, M + 4 * rt, S + 2 * i, S + 2 * i + 1))
    a.e(["s_sub_u32 s%d, s%d, 1" % (sCnt, sCnt), "s_cmp_lg_u32 s%d, 0" % sCnt, "s_cbranch_scc1 L_slow_loop"])
    a.e(xlane("v_max_f32", [M + 4 * rt for rt in range(7)], [M + 4 * rt + 1 for rt in range(7)]))
    a.e(["v_add_u32 v%d, s%d, v%d" % (vTc, sSp, vL16), "v_xor_b32 v%d, 16384, v%d" % (vT3, vTc)])
    for rt in range(7): a.e("ds_write_b32 v%d, v%d offset:%d" % (vTc, M + 4 * rt, rt * 1024))
    a.e(["s_waitcnt lgkmcnt(0)", "s_barrier"])
    for rt in range(7): a.e("ds_read_b32 v%d, v%d offset:%d" % (M + 4 * rt + 1, vT3, rt * 1024))
    a.e(setK(0))
    for tl in range(4): a.e(kvtile(tl))
    a.e("s_waitcnt lgkmcnt(0)")
    for rt in range(7): a.e("v_max_f32 v%d, v%d, v%d" % (M + 4 * rt, M + 4 * rt, M + 4 * rt + 1))
    a.e(["s_waitcnt vmcnt(16)", "s_barrier"])
    a.e([rdK(i, 0) for i in range(8)])
    a.e([zero16(vr(V, 16)), zero16(vr(V + 16, 16))])
    a.e(["v_sub_f32 v%d, 0, v%d" % (M + 4 * rt + i, M + 4 * rt) for rt in range(7) for i in (1, 2, 3, 0)])
    a.e(["v_mov_b32 v%d, 0" % i for i in range(L, L + 7)] + ["v_mov_b32 v%d, 0" % i for i in range(P + 4, P + 8)])
    a.e(["s_mov_b32 s%d, 3" % sCnt, "s_waitcnt lgkmcnt(0)"] + qk(0, 0) + initD + ["s_nop 5"])
    for r in range(5): step(0, r)
    a.e("s_branch L_loop")

def build():
    ref = open("cdna_kernels/%s.s.ref" % NAME).read()
    hdr = ref.split("; Override launch")[0]
    a = Asm()
    k = NAME + "_kernel"
    a.raw(".amdgcn_target \"amdgcn-amd-amdhsa--gfx950\"\n.text")
    a.raw(".globl %s\n.p2align 8\n.type %s,@function" % (k, k))
    kernel(a)
    for e in check(a.L): print(e, file=sys.stderr)
    t = hdr + "; @launch grid=(256,1,1) block=(256,1,1) lds=163840\n" + a.text()
    t += """.section .rodata,"a"
.p2align 6
.amdhsa_kernel %s
  .amdhsa_next_free_vgpr 512
  .amdhsa_next_free_sgpr 102
  .amdhsa_accum_offset 256
  .amdhsa_group_segment_fixed_size 0
  .amdhsa_kernarg_size 64
  .amdhsa_user_sgpr_count 2
  .amdhsa_user_sgpr_kernarg_segment_ptr 1
  .amdhsa_system_sgpr_workgroup_id_x 1
  .amdhsa_float_denorm_mode_32 %d
.end_amdhsa_kernel
""" % (k, O.denorm)
    return t

if __name__ == "__main__":
    out = sys.argv[1] if len(sys.argv) > 1 else "cdna_kernels/%s.s" % NAME
    for kv in sys.argv[2:]:
        k, v = kv.split("=")
        cur = getattr(O, k)
        setattr(O, k, (v == "1") if isinstance(cur, bool) else type(cur)(v))
    open(out, "w").write(build())
```

```python
import sys, math, struct
from asmlib import *

NAME = "standalone__mha_block_cached__near_ridge"
def f32(x): return struct.unpack("<I", struct.pack("<f", x))[0]
CSCALE = f32(128 ** -0.5 * math.log2(math.e))
THR = f32(2.0 ** 30)

class Opt:
    stamps = False
    ts = False
    kv_nt = True
    nxe = 5
    p1_span = 26
    force_slow = False
    pf_xw = True
    pf_wo = True
    pf_code = True
    w_n = 0
    w_late = 8
    wl2 = 0
    out_flags = ""
    pfl = 0
    burst = 4
    ws1 = 12
    dbg3 = 0
    f2gap = 156
    wo2 = "0.3,2.2"
    lag = 0
    ilv = True
    pts = "5.13,5.15,6.9,6.11"
    th = 5
    xwf = ""
    w3f = ""
    pf3 = 0
    denorm = 3
    wfin = True
    nb = 0
    padn = 0
    kvf = "nt"
    dmax = 1
    force_skip = 0
    pack = True
    verbose = False
    x1mask = 0
    rd_first = False
    wqc = False
    tb4 = False
    wo_r = 3
    bstep = 2
    t3late = False
    wo_at = 1
    dynw = True
    wggo = False
    olook = 3
    sset = 1
    nost = False
    st_flags = "sc1"
    x3mask = 7
    burn = 0
    tsched = 1
    pf_flags = ""
    wpf = 0
O = Opt()
STAMP_OFF = 0x8000000
FLAG_OFF = 0x1000000
PART_OFF = 0x2000000

def zero16(d): return "v_mfma_f32_32x32x16_bf16 %s, v[12:15], v[12:15], 0" % d

class VM:
    def __init__(self, init): self.ops = list(init)
    def issue(self, tag, opt=False): self.ops.append(tag + "?" if opt else tag)
    def n(self, tag):
        idx = max(i for i, t in enumerate(self.ops) if t.rstrip("?") == tag)
        if self.ops[idx].endswith("?"): return min(63, len(self.ops) - 1 - idx)
        return min(63, sum(1 for t in self.ops[idx + 1:] if not t.endswith("?")))

def kernel(a):
    KVF = " " + O.kvf
    pX, pK, pV, pWq, pWo, pOut, pDbg, pWs = 4, 6, 8, 10, 12, 14, 16, 18
    sX, sW, sKV, sO, sOs, sWs, sOut = 20, 24, 28, 32, 36, 40, 44
    (sWv, sB, sH, sRH, sKH, sXoff, sWoff, sCnt, sMX, sMW, sReg, sRing, sSp, sG, sFlip, sK0, sPass, sT, sT2, sRB, sCT, sWo, sD1, sD2) = range(48, 72)
    sP = 3 if not O.ts else 81
    sOf = 1; sPm = 0
    sC = 72; sRt = 74; sPC = 82; sVV = 84; sST = 88; sK1 = sFlip
    KH, TS_ = (8192, 16384) if O.ilv else (131072, 8192)
    vL, vT, vT2, vT3, vL16 = 1, 2, 3, 4, 5
    vKV, vW = 6, 10
    OK, ACC = 16, 128
    M, S, E, P, V, L = 128, 156, 172, 180, 188, 220
    vTa, vTb, vTc = 237, 238, 236
    E2 = 228
    vX, vXr, vWr = 240, 247, 251
    vKr, vVr, vK0 = 240, 241, 243
    vD, vR = 244, 10
    vQw, vQr = 2, 3
    PK = 16
    vFo, vFc, vDum = 254, 255, 253
    vCp = 0
    aQ, aO, aK = 0, 112, 224
    aXF, aWF = 0, 224
    nst = [0]
    def stamp(m=3):
        if O.stamps and (m & O.sset):
            assert nst[0] < 7
            a.e("s_memrealtime s[%d:%d]" % (sST + 2 * nst[0], sST + 2 * nst[0] + 1)); nst[0] += 1
    def flagp(v, t):
        return ["s_and_b32 s%d, s%d, 1" % (sT, sB), "s_lshl_b32 s%d, s%d, 6" % (sT, sT), "s_lshr_b32 s%d, s%d, 1" % (sG, sB), "s_lshl_b32 s%d, s%d, 3" % (sG, sG),
                "s_add_u32 s%d, s%d, s%d" % (sT, sT, sG), "s_lshr_b32 s%d, s%d, 2" % (sG, sH), "s_add_u32 s%d, s%d, s%d" % (sT, sT, sG), "s_lshl_b32 s%d, s%d, 7" % (sT, sT),
                "s_and_b32 s%d, s%d, 3" % (sG, sH), "s_lshl_b32 s%d, s%d, 2" % (sG, sG), "s_add_u32 s%d, s%d, s%d" % (sT, sT, sG), "s_add_u32 s%d, s%d, 0x%x" % (sT, sT, FLAG_OFF),
                "v_lshrrev_b32 v%d, 1, v%d" % (v, vL), "v_lshlrev_b32 v%d, 14, v%d" % (v, v), "v_and_b32 v%d, 1, v%d" % (t, vL),
                "v_lshl_add_u32 v%d, v%d, 12, v%d" % (v, t, v), "v_add_u32 v%d, s%d, v%d" % (v, sT, v),
                "s_xor_b32 s%d, s2, 1" % sT, "s_lshl_b32 s%d, s%d, 9" % (sT, sT), "s_add_u32 s%d, s%d, 0x%x" % (sT, sT, FLAG_OFF + 16),
                "v_and_b32 v%d, 3, v%d" % (t, vL), "v_lshlrev_b32 v%d, 7, v%d" % (t, t), "v_cmp_gt_u32 vcc, 16, v%d" % vL, "v_add_u32 v%d, s%d, v%d" % (t, sT, t),
                "s_nop 0", "v_cndmask_b32 v%d, v%d, v%d, vcc" % (v, t, v)]
    def flagc(v):
        return ["s_lshl_b32 s%d, s2, 2" % sT, "s_add_u32 s%d, s%d, s%d" % (sT, sT, sWv), "s_lshl_b32 s%d, s%d, 7" % (sT, sT), "s_add_u32 s%d, s%d, 0x%x" % (sT, sT, FLAG_OFF),
                "v_min_u32 v%d, 5, v%d" % (v, vL), "v_lshlrev_b32 v%d, 2, v%d" % (v, v), "v_add_u32 v%d, s%d, v%d" % (v, sT, v),
                "s_mov_b64 exec, 64", "v_xor_b32 v%d, 0x200, v%d" % (v, v), "s_mov_b64 exec, -1"]
    def boxaddr(v):
        return ["s_lshl_b32 s%d, s2, 2" % sT, "s_add_u32 s%d, s%d, s%d" % (sT, sT, sWv), "s_lshl_b32 s%d, s%d, 13" % (sT, sT),
                "s_add_u32 s%d, s%d, 0x%x" % (sT, sT, PART_OFF + 3072), "v_add_u32 v%d, s%d, v%d" % (v, sT, vL16)]
    def codepf(lo, hi, t0):
        return ["v_min_u32 v%d, %s-%s-4, v%d" % (t0, hi, lo, vCp), "v_add_u32 v%d, %s-L_pc, v%d" % (t0, lo, t0),
                "v_mov_b32 v%d, s%d" % (t0 + 1, sPC + 1), "v_add_co_u32 v%d, vcc, s%d, v%d" % (t0, sPC, t0), "s_nop 1",
                "v_addc_co_u32 v%d, vcc, 0, v%d, vcc" % (t0 + 1, t0 + 1), "global_load_dword v%d, v[%d:%d], off" % (vDum, t0, t0 + 1)]

    a.lab(NAME + "_kernel")
    a.e(["s_cmp_ge_u32 s2, 256", "s_cbranch_scc1 L_end",
         "s_load_dwordx8 s[4:11], s[0:1], 0", "s_load_dwordx8 s[12:19], s[0:1], 32"])
    stamp(7)
    a.e(["s_getpc_b64 s[%d:%d]" % (sPC, sPC + 1)])
    a.lab("L_pc")
    a.e(["v_and_b32 v%d, 63, v0" % vL, "v_lshrrev_b32 v%d, 6, v0" % vT,
         "s_and_b32 s%d, s2, 7" % sT, "s_lshr_b32 s%d, s2, 3" % sT2,
         "v_readfirstlane_b32 s%d, v%d" % (sWv, vT),
         "v_min_u32 v%d, 2, v%d" % (vCp, vL), "v_lshl_add_u32 v%d, v%d, 2, v%d" % (vCp, vCp, vT), "v_lshlrev_b32 v%d, 5, v%d" % (vCp, vCp),
         "v_add_lshl_u32 v%d, v%d, s%d, 7" % (vCp, vCp, sT2)])
    if O.pf_code: a.e(codepf("L_pc", "L_end", vT))
    a.e(["s_mov_b32 s%d, 0" % sPass,
         "s_and_b32 s%d, s%d, 1" % (sB, sT), "s_lshl_b32 s%d, s%d, 2" % (sB, sB),
         "s_and_b32 s%d, s%d, 3" % (sG, sT2), "s_add_u32 s%d, s%d, s%d" % (sB, sB, sG),
         "s_lshr_b32 s%d, s%d, 1" % (sH, sT), "s_lshl_b32 s%d, s%d, 2" % (sRB, sH), "s_add_u32 s%d, s%d, s%d" % (sRB, sRB, sG), "s_lshl_b32 s%d, s%d, 3" % (sH, sH),
         "s_lshr_b32 s%d, s%d, 2" % (sCT, sT2), "s_add_u32 s%d, s%d, s%d" % (sH, sH, sCT),
         "s_and_b32 s%d, s%d, 1" % (sRH, sWv), "s_lshr_b32 s%d, s%d, 1" % (sKH, sWv)])
    a.e(["s_lshl_b32 s%d, s%d, 15" % (sMX, sKH), "s_mul_i32 s%d, s%d, 7168" % (sT, sRH),
         "s_add_u32 s%d, s%d, s%d" % (sMX, sMX, sT), "s_add_u32 s%d, s%d, 16384" % (sMX, sMX),
         "s_lshl_b32 s%d, s%d, 11" % (sMW, sWv), "s_add_u32 s%d, s%d, 131072" % (sMW, sMW),
         "s_lshl_b32 s%d, s%d, 15" % (sReg, sWv),
         "s_mov_b32 s%d, 458752" % (sX + 2), "s_mov_b32 s%d, 0x20000" % (sX + 3), "s_mov_b32 s%d, 0x20000" % (sW + 3),
         "s_mul_i32 s%d, s%d, 458752" % (sD1, sB), "s_lshl_b32 s%d, s%d, 8" % (sD2, sH), "s_sub_u32 s%d, 0x800000, s%d" % (sW + 2, sD2)])
    def lane_setup():
        o = ["v_lshrrev_b32 v%d, 3, v%d" % (vT, vL), "v_and_b32 v%d, 7, v%d" % (vT2, vL), "v_and_b32 v%d, 6, v%d" % (vT3, vT),
             "v_xor_b32 v%d, v%d, v%d" % (vT3, vT3, vT2), "v_lshlrev_b32 v%d, 4, v%d" % (vT3, vT3),
             "v_lshl_add_u32 v%d, v%d, 11, v%d" % (vX, vT, vT3),
             "s_mul_i32 s%d, s%d, %d" % (sT, sWv, 7 * 16384), "v_add_u32 v%d, s%d, v%d" % (vX, sT, vX)]
        o += ["v_add_u32 v%d, %d, v%d" % (vX + j, j * 16384 - (j & 3) * 1024, vX) for j in range(1, 7)]
        o += ["v_and_b32 v%d, 2, v%d" % (vT3, vT), "v_lshlrev_b32 v%d, 1, v%d" % (vT3, vT3),
              "v_xor_b32 v%d, v%d, v%d" % (vT3, vT3, vT2), "v_lshlrev_b32 v%d, 4, v%d" % (vT3, vT3),
              "v_lshl_add_u32 v%d, v%d, 13, v%d" % (vW, vT, vT3),
              "s_lshl_b32 s%d, s%d, 17" % (sT, sRH), "s_lshl_b32 s%d, s%d, 7" % (sG, sKH), "s_add_u32 s%d, s%d, s%d" % (sT, sT, sG),
              "v_add_u32 v%d, s%d, v%d" % (vW, sT, vW), "v_add_u32 v%d, %d, v%d" % (vW + 1, 8 * 8192 - 1024, vW)]
        return o
    a.e(lane_setup())
    a.e(["s_waitcnt lgkmcnt(0)",
         "s_add_u32 s%d, s%d, s%d" % (sW, pWq, sD2), "s_addc_u32 s%d, s%d, 0" % (sW + 1, pWq + 1),
         "s_add_u32 s%d, s%d, s%d" % (sX, pX, sD1), "s_addc_u32 s%d, s%d, 0" % (sX + 1, pX + 1)])
    stamp(4)
    a.lab("L_restart")

    TS_A = ["s_memrealtime s[100:101]"]
    TS_B = ["s_mov_b32 s3, m0", "s_mov_b32 m0, s81", "v_writelane_b32 v252, s100, m0", "s_add_u32 s81, s81, 1", "s_mov_b32 m0, s3"]
    def dmaX(j): return "buffer_load_dwordx4 v%d, s[%d:%d], s%d offen offset:%d %s lds" % (vX + j, sX, sX + 3, sXoff, (j & 3) * 1024, O.xwf)
    def m0X(buf, hi): return "s_add_u32 m0, s%d, %d" % (sMX, buf * 65536 + hi * 4096)
    def dmaW(j): return "buffer_load_dwordx4 v%d, s[%d:%d], s%d offen offset:%d %s lds" % (vW + j, sW, sW + 3, sWoff, j * 1024, O.xwf)
    def m0W(slot): return "s_add_u32 m0, s%d, %d" % (sMW, slot * 8192)
    def ptm0(reg, slot): return "s_add_u32 m0, s%d, %d" % (sMW, (reg * 32768 + slot * 8192 - 131072) & 0xffffffff)
    def ptld(reg): return ["buffer_load_dwordx4 v%d, s[%d:%d], s%d offen offset:%d%s lds" % (vKV + (2 if reg == 3 else 0) + j, sVV if reg & 1 else sKV, (sVV if reg & 1 else sKV) + 3,
                           sK1 if reg >> 1 else sK0, j * 1024, KVF) for j in range(2)]
    incK = ["s_add_u32 s%d, s%d, %d" % (sK0, sK0, TS_), "s_add_u32 s%d, s%d, %d" % (sK1, sK1, TS_)]
    def setK(tile): return ["s_mov_b32 s%d, %d" % (sK0, tile * TS_), "s_mov_b32 s%d, %d" % (sK1, tile * TS_ + KH)]
    PORD = (0, 2, 1, 3)
    def kvtile(slot): return [x for reg in PORD for x in [ptm0(reg, slot), "s_nop 0"] + ptld(reg)] + incK
    sXl, sWl, sOx, sOw = 10, 11, sWo, sK0
    incW = ["s_add_u32 s%d, s%d, 262144" % (sWl, sWl), "s_xor_b32 s%d, s%d, s%d" % (sWoff, sWl, sOw)]
    incX = ["s_add_u32 s%d, s%d, 128" % (sXl, sXl), "s_xor_b32 s%d, s%d, s%d" % (sXoff, sXl, sOx)]

    a.e(["s_mov_b32 s%d, 0" % sXl, "s_mov_b32 s%d, 0" % sWl, "s_xor_b32 s%d, s%d, s%d" % (sT, sB, sH), "s_and_b32 s%d, s%d, %d" % (sT, sT, O.x1mask),
         "s_lshl_b32 s%d, s%d, 19" % (sOw, sT), "s_lshl_b32 s%d, s%d, 7" % (sOx, sT), "s_mov_b32 s%d, s%d" % (sWoff, sOw), "s_mov_b32 s%d, s%d" % (sXoff, sOx)])
    def stage_loads(st):
        return ([m0W(2 * st), "s_nop 0", dmaW(0), dmaW(1), m0X(st, 0)] + incW + [dmaX(j) for j in range(4)] + [m0X(st, 1), "s_nop 0"] + [dmaX(j) for j in range(4, 7)]
                + [m0W(2 * st + 1)] + incX + [dmaW(0), dmaW(1)] + incW)
    a.e(stage_loads(0))
    stamp(4)
    a.e(["v_mov_b32 v%d, 0" % i for i in range(12, 16)])
    su0 = len(a.L)
    a.e(["s_lshl_b32 s%d, s%d, 5" % (sT, sB), "s_add_u32 s%d, s%d, s%d" % (sT, sT, sH), "s_lshl_b32 s%d, s%d, 18" % (sT, sT),
         "s_add_u32 s%d, s%d, s%d" % (sKV, pK, sT), "s_addc_u32 s%d, s%d, 0" % (sKV + 1, pK + 1),
         "s_mov_b32 s%d, 0x40000" % (sKV + 2), "s_mov_b32 s%d, 0x20000" % (sKV + 3),
         "s_add_u32 s%d, s%d, s%d" % (sVV, pV, sT), "s_addc_u32 s%d, s%d, 0" % (sVV + 1, pV + 1),
         "s_mov_b32 s%d, 0x40000" % (sVV + 2), "s_mov_b32 s%d, 0x20000" % (sVV + 3),
         "v_bfe_u32 v%d, v%d, 2, 2" % (vT, vL), "v_lshrrev_b32 v%d, 4, v%d" % (vT2, vL), "v_lshlrev_b32 v%d, 6, v%d" % (vT2, vT2),
         "v_lshl_add_u32 v%d, v%d, 8, v%d" % (vT2, vT, vT2), "v_and_b32 v%d, 3, v%d" % (vT, vL), "v_lshl_add_u32 v%d, v%d, 4, v%d" % (vT2, vT, vT2),
         "s_lshl_b32 s%d, s%d, 5" % (sG, sRH), "v_xor_b32 v%d, s%d, v%d" % (vT2, sG, vT2), "s_lshl_b32 s%d, s%d, 11" % (sG, sWv),
         "v_add_u32 v%d, s%d, v%d" % (vKV, sG, vT2), "v_xor_b32 v%d, 48, v%d" % (vKV + 1, vKV),
         "v_xor_b32 v%d, 0x80, v%d" % (vKV + 2, vKV), "v_xor_b32 v%d, 0x80, v%d" % (vKV + 3, vKV + 1)])
    pPx, pPw = PK + 20, PK + 21
    a.e(["s_mul_i32 s%d, s%d, 14336" % (sT, sH), "s_lshl_b32 s%d, s%d, 12" % (sG, sWv), "s_add_u32 s%d, s%d, s%d" % (sT, sT, sG),
         "v_and_b32 v%d, 31, v%d" % (pPx, vL), "v_lshlrev_b32 v%d, 7, v%d" % (pPx, pPx), "v_add_u32 v%d, s%d, v%d" % (pPx, sT, pPx),
         ] + ([
         "s_and_b32 s%d, s%d, 7" % (sG, sH), "s_lshl_b32 s%d, s%d, 3" % (sT, sB), "s_add_u32 s%d, s%d, s%d" % (sT, sT, sG), "s_lshl_b32 s%d, s%d, 2" % (sT, sT),
         "s_add_u32 s%d, s%d, s%d" % (sT, sT, sWv), "s_lshl_b32 s%d, s%d, 15" % (sT, sT), "s_lshl_b32 s%d, s%d, 8" % (sG, sG), "s_sub_u32 s%d, s%d, s%d" % (sT, sT, sG),
         "v_lshrrev_b32 v%d, 4, v%d" % (pPw, vL), "v_lshlrev_b32 v%d, 13, v%d" % (pPw, pPw),
         "v_and_b32 v%d, 15, v%d" % (vT2, vL), "v_lshl_add_u32 v%d, v%d, 7, v%d" % (pPw, vT2, pPw), "v_add_u32 v%d, s%d, v%d" % (pPw, sT, pPw)] if O.wqc else [
         "s_lshl_b32 s%d, s%d, 2" % (sT, sB), "s_add_u32 s%d, s%d, s%d" % (sT, sT, sWv), "s_lshl_b32 s%d, s%d, 18" % (sT, sT),
         "v_lshrrev_b32 v%d, 1, v%d" % (pPw, vL), "v_lshlrev_b32 v%d, 13, v%d" % (pPw, pPw),
         "v_and_b32 v%d, 1, v%d" % (vT2, vL), "v_lshl_add_u32 v%d, v%d, 7, v%d" % (pPw, vT2, pPw), "v_add_u32 v%d, s%d, v%d" % (pPw, sT, pPw)]))
    a.e(["v_lshlrev_b32 v%d, 4, v%d" % (vL16, vL),
         "v_and_b32 v%d, 15, v%d" % (vT, vL), "v_lshrrev_b32 v%d, 4, v%d" % (vT2, vL),
         "v_and_b32 v%d, 6, v%d" % (vT3, vT), "v_xor_b32 v%d, v%d, v%d" % (vT3, vT3, vT2), "v_lshlrev_b32 v%d, 4, v%d" % (vT3, vT3),
         "v_lshl_add_u32 v%d, v%d, 7, v%d" % (vT3, vT, vT3),
         "s_lshl_b32 s%d, s%d, 15" % (sT, sRH), "s_add_u32 s%d, s%d, 16384" % (sT, sT),
         "v_add_u32 v%d, s%d, v%d" % (vXr, sT, vT3), "v_xor_b32 v%d, 64, v%d" % (vXr + 1, vXr),
         "v_add_u32 v%d, 0x10000, v%d" % (vXr + 2, vXr), "v_add_u32 v%d, 0x10000, v%d" % (vXr + 3, vXr + 1)])
    a.e(["v_bfe_u32 v%d, v%d, 2, 2" % (vT, vL), "v_lshl_add_u32 v%d, v%d, 3, v%d" % (vT, vT2, vT),
         "v_and_b32 v%d, 2, v%d" % (vT3, vT), "v_lshlrev_b32 v%d, 1, v%d" % (vT3, vT3),
         "v_and_b32 v%d, 3, v%d" % (vT2, vL), "v_xor_b32 v%d, v%d, v%d" % (vT3, vT3, vT2), "v_lshlrev_b32 v%d, 4, v%d" % (vT3, vT3),
         "v_lshl_add_u32 v%d, v%d, 7, v%d" % (vT3, vT, vT3),
         "s_lshl_b32 s%d, s%d, 12" % (sT, sKH), "s_add_u32 s%d, s%d, 131072" % (sT, sT),
         "v_add_u32 v%d, s%d, v%d" % (vWr, sT, vT3), "v_xor_b32 v%d, 64, v%d" % (vWr + 1, vWr)])
    a.e(["s_mul_i32 s%d, s%d, 14" % (sT, sB), "s_mul_i32 s%d, s%d, 7" % (sG, sRH), "s_add_u32 s%d, s%d, s%d" % (sT, sT, sG),
         "s_lshl_b32 s%d, s%d, 7" % (sT, sT), "s_lshl_b32 s%d, s%d, 2" % (sG, sH), "s_add_u32 s%d, s%d, s%d" % (sT, sT, sG),
         "s_lshl_b32 s%d, s%d, 1" % (sG, sKH), "s_add_u32 s%d, s%d, s%d" % (sT, sT, sG), "s_lshl_b32 s%d, s%d, 10" % (sT, sT),
         "s_add_u32 s%d, s%d, s%d" % (sO, pWs, sT), "s_addc_u32 s%d, s%d, 0" % (sO + 1, pWs + 1),
         "s_mov_b32 s%d, %d" % (sO + 2, 6 * 131072 + 2048), "s_mov_b32 s%d, 0x20000" % (sO + 3),
         "s_mov_b32 s%d, 0x%x" % (sC, CSCALE), "s_mov_b32 s%d, 0x%x" % (sC + 1, CSCALE),
         "s_and_b32 s%d, s%d, 4" % (sPm, sB), "s_add_u32 s%d, s%d, s%d" % (sPm, sPm, sWv),
         "s_mul_i32 s%d, s%d, %d" % (sT, sRB, 7 * 131072), "s_lshl_b32 s%d, s%d, 14" % (sG, sPm), "s_add_u32 s%d, s%d, s%d" % (sT, sT, sG),
         "s_add_u32 s%d, s%d, s%d" % (sOs, pWs, sT), "s_addc_u32 s%d, s%d, 0" % (sOs + 1, pWs + 1),
         "s_mov_b32 s%d, %d" % (sOs + 2, 6 * 131072 + 16384), "s_mov_b32 s%d, 0x20000" % (sOs + 3),
         "s_lshl_b32 s%d, s%d, 20" % (sT, sPm), "s_lshl_b32 s%d, s%d, 8" % (sG, sCT), "s_add_u32 s%d, s%d, s%d" % (sT, sT, sG),
         "s_add_u32 s%d, s%d, s%d" % (sWs, pWo, sT), "s_addc_u32 s%d, s%d, 0" % (sWs + 1, pWo + 1),
         "s_sub_u32 s%d, 0x100000, s%d" % (sWs + 2, sG), "s_mov_b32 s%d, 0x20000" % (sWs + 3),
         "s_mul_i32 s%d, s%d, %d" % (sT, sRB, 112 * 2048), "s_add_u32 s%d, s%d, s%d" % (sOut, pOut, sT), "s_addc_u32 s%d, s%d, 0" % (sOut + 1, pOut + 1),
         "s_mov_b32 s%d, %d" % (sOut + 2, 112 * 2048), "s_mov_b32 s%d, 0x20000" % (sOut + 3),
         "s_xor_b32 s%d, s%d, 0x10000" % (sRing, sReg),
         "s_lshl_b32 s%d, s%d, 13" % (sSp, sWv), "s_add_u32 s%d, s%d, 131072" % (sSp, sSp),
         "s_sub_u32 s%d, s%d, s%d" % (sD1, sSp, sReg), "s_sub_u32 s%d, s%d, s%d" % (sD2, sRing, sSp)])
    for rt in range(7): a.e("s_mov_b32 s%d, %d" % (sRt + rt, rt * 131072))
    pKr, pVr, pK0, pD, pR, pQ, pFp, pFc, pWoP, pCp = PK, PK + 1, PK + 3, PK + 4, PK + 8, PK + 10, PK + 12, PK + 13, PK + 14, PK + 16
    a.e(flagp(pFp, vT2) + flagc(pFc))
    a.e(["v_bfe_u32 v%d, v%d, 2, 2" % (vT, vL), "v_sub_u32 v%d, 0, v%d" % (vT2, vT), "v_lshrrev_b32 v%d, 4, v%d" % (vT3, vL),
         "v_xor_b32 v%d, v%d, v%d" % (vT2, vT2, vT3), "v_and_b32 v%d, 3, v%d" % (vT2, vT2), "v_lshlrev_b32 v%d, 4, v%d" % (vT2, vT2),
         "v_lshl_add_u32 v%d, v%d, 10, v%d" % (vT2, vT, vT2), "v_and_b32 v%d, 3, v%d" % (pK0, vL), "v_lshlrev_b32 v%d, 6, v%d" % (pK0, pK0),
         "s_lshl_b32 s%d, s%d, 16" % (sG, sKH), "v_add3_u32 v%d, v%d, v%d, s%d" % (pKr, pK0, vT2, sG),
         "v_lshl_add_u32 v%d, v%d, 4, v%d" % (pK0, vT3, pK0),
         "v_sub_u32 v%d, 0, v%d" % (vT2, vT3), "v_bfe_u32 v%d, v%d, 1, 1" % (pVr + 1, vL), "v_xor_b32 v%d, v%d, v%d" % (vT2, vT2, pVr + 1),
         "v_and_b32 v%d, 3, v%d" % (vT2, vT2), "v_lshlrev_b32 v%d, 4, v%d" % (vT2, vT2),
         "v_lshl_add_u32 v%d, v%d, 10, v%d" % (vT2, vT3, vT2), "v_lshl_add_u32 v%d, v%d, 6, v%d" % (vT2, vT, vT2),
         "v_and_b32 v%d, 1, v%d" % (pVr + 1, vL), "v_lshl_add_u32 v%d, v%d, 3, v%d" % (vT2, pVr + 1, vT2),
         "s_add_u32 s%d, s%d, 32768" % (sG, sG), "v_add_u32 v%d, s%d, v%d" % (pVr, sG, vT2), "v_xor_b32 v%d, 32, v%d" % (pVr + 1, pVr),
         "v_add_u32 v%d, s%d, v%d" % (pR, sReg, vT2), "v_xor_b32 v%d, 32, v%d" % (pR + 1, pR),
         "v_lshlrev_b32 v%d, 6, v%d" % (vT2, vT3), "v_lshl_add_u32 v%d, v%d, 11, v%d" % (vT2, vT, vT2), "v_and_b32 v%d, 3, v%d" % (vT, vL),
         "v_lshl_add_u32 v%d, v%d, 4, v%d" % (vT2, vT, vT2), "s_lshl_b32 s%d, s%d, 5" % (sT, sPm), "v_xor_b32 v%d, s%d, v%d" % (pD, sT, vT2)])
    for j in range(1, 4): a.e(["v_xor_b32 v%d, %d, v%d" % (pD + j, ((-j) & 3) * 16, pD), "v_add_u32 v%d, %d, v%d" % (pD + j, j * (8192 - 1024), pD + j)])
    a.e(["v_add_u32 v%d, s%d, v%d" % (pQ, sMW, vL16), "s_lshl_b32 s%d, s%d, 11" % (sT, sRH), "s_add_u32 s%d, s%d, 131072" % (sT, sT), "v_add_u32 v%d, s%d, v%d" % (pQ + 1, sT, vL16),
         "s_lshl_b32 s%d, s2, 2" % sT, "s_add_u32 s%d, s%d, s%d" % (sT, sT, sWv), "s_lshl_b32 s%d, s%d, 13" % (sT, sT),
         "v_lshlrev_b32 v%d, 7, v%d" % (pWoP, vL), "v_add_u32 v%d, s%d, v%d" % (pWoP, sT, pWoP),
         "s_lshl_b32 s%d, s%d, 1" % (sOf, sRB), "s_xor_b32 s%d, s%d, s%d" % (sOf, sOf, sCT), "s_and_b32 s%d, s%d, %d" % (sOf, sOf, O.x3mask), "s_lshl_b32 s%d, s%d, 16" % (sOf, sOf)])
    cp2 = codepf("L_tr", "L_epi", pCp)
    a.e(cp2[:-1])
    a.e([
         "s_lshl_b32 s%d, s2, 15" % sT, "s_lshl_b32 s%d, s%d, 10" % (sG, sWv), "s_add_u32 s%d, s%d, s%d" % (sT, sT, sG),
         "v_and_b32 v%d, 7, v%d" % (vT3, vL), "v_lshlrev_b32 v%d, 7, v%d" % (vT3, vT3), "v_add_u32 v%d, s%d, v%d" % (vT3, sT, vT3), "s_mov_b32 s%d, 0" % sP])
    kvpf = "global_load_dword v%d, v%d, s[%d:%d]" % (vDum, vT3, pWo, pWo + 1)
    zs = [zero16(vr(ACC + 16 * i, 16)) for i in range(7)] + [zero16(vr(OK + 16 * i, 16)) for i in range(2, 7)] + [zero16(ar(aO + 16 * i, 16)) for i in range(4)]
    seg = a.L[su0:]; del a.L[su0:]
    for i_, ln in enumerate(seg):
        if i_ % 7 == 3 and zs: a.e(zs.pop(0))
        a.L.append(ln)
    assert not zs and not any("exec" in ln for ln in seg[:120])
    late = stage_loads(1) + ["buffer_load_dword v%d, v%d, s[%d:%d], 0 offen" % (vDum, pPx, sX, sX + 3), "buffer_load_dword v%d, v%d, s[%d:%d], 0 offen" % (vDum, pPw, sW, sW + 3),
                              kvpf if O.wo_at != 0 else "global_load_dword v%d, v%d, s[%d:%d]" % (vDum, pWoP, pWo, pWo + 1)]
    def kvb(v, off): return "global_load_lds_dwordx4 v%d, s[4:5] offset:%d%s" % (v, off, KVF)
    kvq = ["s_cmp_lt_u32 s%d, 4" % sP, "s_cselect_b32 s4, s%d, s%d" % (sKV, sVV), "s_cselect_b32 s5, s%d, s%d" % (sKV + 1, sVV + 1),
           "s_and_b32 s%d, s%d, 1" % (sT, sP), "s_and_b32 s%d, s%d, 2" % (sG, sP), "s_lshl_b32 s%d, s%d, 12" % (sG, sG),
           "s_lshl_b32 s%d, s%d, 16" % (sT2, sT), "s_add_u32 s%d, s%d, s%d" % (sT2, sT2, sG), "s_mul_i32 s%d, s%d, %d" % (sT, sT, KH),
           "s_mul_i32 s%d, s%d, %d" % (sG, sG, TS_ // 8192), "s_add_u32 s%d, s%d, s%d" % (sT, sT, sG),
           "v_add_u32 v%d, s%d, v%d" % (vT, sT, vKV), "v_add_u32 v%d, s%d, v%d" % (vT2, sT, vKV + 1),
           "s_and_b32 s%d, s%d, 4" % (sG, sP), "s_lshl_b32 s%d, s%d, 13" % (sG, sG), "s_add_u32 s%d, s%d, s%d" % (sT2, sT2, sG),
           "s_and_b32 s%d, s%d, 5" % (sT, sP), "s_cmp_eq_u32 s%d, 5" % sT, "s_cselect_b32 s%d, 128, 0" % sT,
           "v_xor_b32 v%d, s%d, v%d" % (vT, sT, vT), "v_xor_b32 v%d, s%d, v%d" % (vT2, sT, vT2),
           "s_add_u32 s%d, s%d, s%d" % (sT2, sT2, sMW), "s_add_u32 s%d, s%d, 1" % (sP, sP)]
    kvq_m0 = "s_sub_u32 m0, s%d, 0x20000" % sT2

    def wreg(k): return {30: 192, 31: 208}.get(k, aWF + 16 * (k & 1))
    def xreg(k, rt): return 16 * rt + 4 * (k & 3)
    def rdW(k):
        out = []
        for dt in range(4):
            dp, t = dt >> 1, dt & 1
            for sec in range(2):
                out.append("ds_read_b64_tr_b16 %s, v%d offset:%d" % (ar(wreg(k) + 4 * dt + 2 * sec, 2), vWr + dp, (k & 3) * 8192 + sec * 512 + t * 8))
        return out
    def rdX1(s, kk, rt): return "ds_read_b128 %s, v%d offset:%d" % (ar(xreg(2 * s + kk, rt), 4), vXr + 2 * (s & 1) + kk, rt * 2048)
    def rdX(s): return [rdX1(s, kk, rt) for kk in range(2) for rt in range(7)]
    def A(rt, k): return [mfma(vr(ACC + 16 * rt + 4 * dt, 4), ar(wreg(k) + 4 * dt, 4), ar(xreg(k, rt), 4), vr(ACC + 16 * rt + 4 * dt, 4)) for dt in range(4)]
    stamp(4)
    if not O.rd_first: a.e(late)
    a.e(["s_waitcnt vmcnt(%d)" % (2 if O.rd_first else 16), "s_barrier"])
    stamp(4)
    a.e(rdW(0) + rdX(0))
    if O.rd_first: a.e(late)
    a.e(["s_mov_b32 s%d, 7" % sCnt, "s_waitcnt vmcnt(14) lgkmcnt(0)", "s_barrier"])

    wopf = "global_load_dword v%d, v%d, s[%d:%d]" % (vDum, pWoP, pWo, pWo + 1)
    addr28 = ["v_mov_b32 v%d, v%d" % (240 + i, PK + i) for i in range(8)] + ["v_mov_b32 v%d, v%d" % (vR + i, pR + i) for i in range(2)]
    addr28 += ["v_mov_b32 v%d, v%d" % (vQw + i, pQ + i) for i in range(2)] + setK(2)

    def p1_kstep(km, mode, ctl=False):
        sp, kk = km >> 1, km & 1
        mf = [m_ for rt in range(7) for m_ in A(rt, km)]
        gaps = [[] for _ in range(28)]
        rd = rdW(km + 1)
        if kk == 1: rd += rdX(sp + 1)
        dm = []; nxe = O.nxe; tailops = []
        if mode == "loop":
            def xs(js):
                r = []
                for j in js:
                    if j == 4 and j != js[0]: r += [m0X(sp, 1)]
                    r.append(dmaX(j))
                return r
            if kk == 0: dm += [m0W(km), dmaW(0), dmaW(1), m0X(sp, 0)] + incW + xs(list(range(nxe)))
            else:
                if nxe < 7: dm += ([m0X(sp, 1)] if nxe == 4 else []) + xs(list(range(nxe, 7)))
                dm += [m0W(km)] + incX + [dmaW(0), dmaW(1)] + incW
                if km == 3:
                    dm += [kvq_m0]; tailops = [kvb(vT, 0), kvb(vT2, 1024), kvpf]
            endw = "s_waitcnt vmcnt(%d) lgkmcnt(0)" % ((4 + nxe + (3 if km == 0 else 0)) if kk == 0 else 14)
        elif mode == 28:
            endw = "s_waitcnt vmcnt(5) lgkmcnt(0)"
        for g, x in enumerate(rd): gaps[g].append(x)
        def place(items, lo, hi):
            g_ = lo
            for y in items:
                if y.startswith("global_load"): g_ = min(g_ + 1, hi); gaps[g_].insert(0, y); continue
                while g_ < hi and len(gaps[g_]) >= 2: g_ += 1
                gaps[g_].append(y)
        nld = sum(1 for x in dm if x.startswith("buffer_load"))
        if nld:
            pos = [1 + (i * O.p1_span) // nld for i in range(nld)]
            li = 0; pend = []; prev = -1
            for x in dm:
                if x.startswith("buffer_load"):
                    place(pend, max(prev, 0), pos[li] - 1); pend = []
                    gaps[pos[li]].insert(0, x); prev = pos[li]; li += 1
                else: pend.append(x)
            place(pend, prev, 25)
        for i_, x in enumerate(tailops): gaps[23 + i_].insert(0, x)
        if mode == "loop" and km == 2: place(kvq + (["v_add_u32 v%d, 4096, v%d" % (vT3, vT3)] if O.wo_at == 1 else []), 8, 25)
        if mode == 28:
            place(kvq + [kvq_m0], 0, 15); gaps[16].insert(0, kvb(vT, 0)); gaps[17].insert(0, kvb(vT2, 1024)); place(addr28, 18, 25)
        if endw: gaps[26].append(endw); gaps[27].append("s_barrier")
        if ctl:
            gaps[25].append("s_sub_u32 s%d, s%d, 1" % (sCnt, sCnt)); gaps[26].append("s_cmp_lg_u32 s%d, 0" % sCnt)
        weave(a, mf, gaps)
    stamp(4)
    a.raw(".p2align 5")
    a.lab("L_p1")
    for km in range(4): p1_kstep(km, "loop", ctl=(km == 3))
    a.e("s_cbranch_scc1 L_p1")
    p1_kstep(0, 28)
    stamp(4)
    a.lab("L_tr")
    a.e(["s_cmp_lg_u32 s%d, 0" % sPass, "s_cbranch_scc1 L_nofl",
         "global_load_dword v%d, v%d, s[%d:%d] sc1" % (vFc, pFc, pWs, pWs + 1),
         "s_cmp_lg_u32 s%d, 0" % sWv, "s_cbranch_scc1 L_nofl",
         "global_load_dword v%d, v%d, s[%d:%d] sc1" % (vFo, pFp, pWs, pWs + 1)])
    a.lab("L_nofl")
    def ismem(x): return x.startswith(("ds_", "buffer_", "global_", "s_barrier"))
    def spread(mf, side, lo=0, hi=None):
        n = len(mf); hi = n - 1 if hi is None else hi
        gaps = [[] for _ in range(n)]
        g = lo
        for i_, x in enumerate(side):
            g = max(g, lo + (i_ * (hi - lo + 1)) // len(side))
            if ismem(x) and any(y.startswith("v_") for y in gaps[g]) and g < hi: g += 1
            gaps[g].append(x)
        weave(a, mf, gaps)
    def rdK(i, slot):
        t, ks = i & 1, i >> 1
        return "ds_read_b128 %s, v%d offset:%d" % (ar(aK + 16 * t + 4 * ks, 4), vKr, slot * 8192 + t * 4096 + ks * 256)
    def xlane(op, regs_, tmp):
        out = []
        for sw in ("v_permlane32_swap_b32", "v_permlane16_swap_b32"):
            out += ["v_mov_b32 v%d, v%d" % (t_, r_) for r_, t_ in zip(regs_, tmp)]
            out += ["%s v%d, v%d" % (sw, r_, t_) for r_, t_ in zip(regs_, tmp)]
            out += ["%s v%d, v%d, v%d" % (op, r_, r_, t_) for r_, t_ in zip(regs_, tmp)]
        return out
    def qk(rt, sb):
        out = []
        for i in range(8):
            t, ks = i & 1, i >> 1
            d = vr(S + 8 * sb + 4 * t, 4)
            out.append(mfma(d, ar(aK + 16 * t + 4 * ks, 4), ar(aQ + 16 * rt + 4 * ks, 4), vr(M + 4 * rt, 4) if ks == 0 else d))
        return out
    def oacc(rt, i): return vr(OK + 16 * rt + 4 * i, 4) if i < 4 else ar(aO + 16 * rt + 4 * (i - 4), 4)
    def pv(rt, pb): return [mfma(oacc(rt, i), vr(V + 4 * i, 4), vr(P + 4 * pb, 4), oacc(rt, i)) for i in range(8)]
    aK0 = 176
    def Bq(rt):
        o = []
        for dp in range(2):
            b = ACC + 16 * rt + 8 * dp
            for i in range(4): o += ["v_mul_f32 v%d, s%d, v%d" % (b + 2 * i, sC, b + 2 * i), "v_mul_f32 v%d, s%d, v%d" % (b + 2 * i + 1, sC, b + 2 * i + 1),
                                     "v_cvt_pk_bf16_f32 v%d, v%d, v%d" % (b + i, b + 2 * i, b + 2 * i + 1)]
            if dp == 0: o.append("s_waitcnt lgkmcnt(0)")
            o.append("ds_write_b128 v%d, %s offset:%d" % (vQw, vr(b, 4), (rt & 3) * 8192 + dp * 1024))
        return o
    def Cq(rt): return ["ds_read_b128 %s, v%d offset:%d" % (ar(aQ + 16 * rt + 4 * ks, 4), vQr, (rt & 3) * 8192 + (ks >> 1) * 4096 + (ks & 1) * 1024) for ks in range(4)]
    def PP(rt): return [mfma(vr(M + 4 * rt, 4), ar(aK0 + 4 * ks, 4), ar(aQ + 16 * rt + 4 * ks, 4), "0" if ks == 0 else vr(M + 4 * rt, 4)) for ks in range(4)]
    def Dq(rt):
        b = M + 4 * rt
        return ["v_max3_f32 v%d, v%d, v%d, v%d" % (b, b, b + 1, b + 2), "v_max_f32 v%d, v%d, v%d" % (b, b, b + 3)] + ["v_sub_f32 v%d, 0, v%d" % (b + i, b) for i in (1, 2, 3, 0)]
    sync = ["s_waitcnt lgkmcnt(0)", "s_barrier"]
    kvs = [[ptm0(reg, sl), "s_nop 0"] + ptld(reg) + (incK if reg == 3 else []) for sl in (2, 3) for reg in PORD]
    if O.t3late: kvs = [kvs[0], [], kvs[1], [], kvs[2], [], kvs[3], []]
    pfs = ([cp2[-1]] if O.pf_code else []) + ([wopf] if O.wo_at == 29 else [])
    t1 = rdW(30) + [rdX1(15, 0, 0)] + rdW(31) + [rdX1(15, 1, 0)] + [rdX1(15, kk, rt) for rt in range(1, 7) for kk in range(2)]
    spread([m_ for rt in range(5) for m_ in A(rt, 29)], t1 + pfs + sync, 0, 19)
    stamp(1)
    for i in range(8):
        mf = (A(i, 30) + A(i, 31) if i < 7 else qk(0, 0)) + (A(5 + i, 29) if i < 2 else PP(i - 2))
        side = []
        if i == 0: mf += [zero16(vr(OK, 16)), zero16(vr(OK + 16, 16))]
        if i == 1: side += ["s_waitcnt vmcnt(%d)" % (2 + len(pfs)), "s_barrier"] + ["ds_read_b128 %s, v%d offset:%d" % (ar(aK0 + 4 * ks, 4), vK0, ks * 256) for ks in range(4)]
        bq = Bq(i - 1) if i >= 1 else []
        nb = O.nb if i >= 2 else 0
        if nb:
            bq = [x for x in bq if not x.startswith("s_waitcnt")]
            w0 = [x for x in bq if x.startswith("ds_write")][0]; bq.remove(w0)
            bq = bq[:18] + ["s_waitcnt lgkmcnt(0)", w0] + bq[18:]
        side += bq[:nb]
        if i >= 2: side += sync + Cq(i - 2)
        if i in (3, 4): side += [rdK(j, 0) for j in range(4 * (i - 3), 4 * (i - 2))]
        side += bq[nb:]
        if i >= 3: side += Dq(i - 3)
        if i == 7: side += ["v_mov_b32 v%d, 0" % j for j in range(L, L + 4)] + ["s_mov_b32 s%d, 3" % sCnt]
        side += kvs[i]
        spread(mf, side)
    if O.ts: a.e(["s_mov_b32 s81, 0", "v_mov_b32 v252, 0"])
    a.e(["s_cmp_lg_u32 s%d, 0" % sPass, "s_cbranch_scc1 L_maxpass"])
    stamp(1)
    NA = 0

    def dma3(j): return "buffer_load_dwordx4 v%d, s[%d:%d], s%d offen offset:%d %s lds" % (vD + j, sWs, sWs + 3, sWo, j * 1024, O.w3f)
    def setWo(u): return "s_xor_b32 s%d, s%d, 0x%x" % (sWo, sOf, u * 32768)
    def wset(n): return (0, 32, 64, 224)[n & 3]
    def rd3(k, off, dts=range(8)):
        return ["ds_read_b64_tr_b16 %s, v%d offset:%d" % (ar(wset(k) + 4 * dt + 2 * sec, 2), vR + (dt & 1), off + (dt >> 1) * 256 + sec * 4096) for dt in dts for sec in range(2)]
    def xw(rt): return ["ds_write_b128 v%d, %s offset:%d" % (vTa, ar(aO + 16 * rt + 4 * i, 4), rt * 4096 + i * 1024) for i in range(4)]
    vm = VM(["kv"])
    sDyn, sDd = 10, 11
    KV = " ;kv"
    def dm0(reg): return "s_add_u32 m0, s%d, %d" % (sDyn, reg * 32768)
    incD = incK + ["s_add_u32 s%d, s%d, 8192" % (sDyn, sDyn), "s_and_b32 s%d, s%d, 0x7fff" % (sDyn, sDyn)]
    initD = ["s_sub_u32 s%d, s%d, 0x20000" % (sDyn, sMW), "s_mov_b32 s%d, 0" % sDd]
    vFp, vFa = 239, 252
    def loff(rt): return 28672 + (rt & 3) * 4 + (rt >> 2) * 1024
    def lw(rt): return "ds_write_b32 v%d, v%d offset:%d" % (vTa, L + rt, loff(rt))
    def rdc(rt, pb): return ["ds_read_b32 v%d, v%d offset:%d" % (E2 + 2 + (rt & 1), vTb, loff(rt))] + ["ds_read_b128 %s, v%d offset:%d" % (vr(pb + 4 * i, 4), vTb, (rt * 4 + i) * 1024) for i in range(4)]
    def comb(rt, pb):
        ob = OK + 16 * rt; t = E2 + 2 + (rt & 1)
        return (["v_add_f32 v%d, v%d, v%d" % (t, t, L + rt), "v_rcp_f32 v%d, v%d" % (t, t)] + ["v_add_f32 v%d, v%d, v%d" % (ob + i, ob + i, pb + i) for i in range(16)]
                + [x for i in range(8) for x in ("v_mul_f32 v%d, v%d, v%d" % (ob + 2 * i, ob + 2 * i, t), "v_mul_f32 v%d, v%d, v%d" % (ob + 2 * i + 1, ob + 2 * i + 1, t),
                                                 "v_cvt_pk_bf16_f32 v%d, v%d, v%d" % (ob + i, ob + 2 * i, ob + 2 * i + 1))])
    def ost(rt): return ["buffer_store_dwordx4 %s, v%d, s[%d:%d], s%d offen offset:%d sc1" % (vr(OK + 16 * rt + 4 * p, 4), vL16, sO, sO + 3, sRt + rt, p * 1024) for p in range(2)]
    pend = []; cost = [0]
    def step(js, r, last=False, first=False, kv=False, ctl=False):
        u = 7 * js + r
        fin = last and js == 3
        mf = ([] if (fin and r == 6) else qk((r + 1) % 7, (u + 1) & 1)) + pv((r + 6) % 7, (u + 1) & 1)
        mem = [[] for _ in range(16)]; val = [[] for _ in range(16)]
        pk = not fin and not (first and r == 0)
        Eb = E2 if (pk and u & 1) else E
        for e in range(8):
            val[2 * e].append("v_exp_f32 v%d, v%d" % (Eb + e, S + 8 * (u & 1) + e))
            if not pk: val[2 * e + 1].append("v_add_f32 v%d, v%d, v%d" % (L + r, L + r, Eb + e))
            if e & 1: val[2 * e + 1].append("v_cvt_pk_bf16_f32 v%d, v%d, v%d" % (P + 4 * (u & 1) + (e >> 1), Eb + e - 1, Eb + e))
        if first and r == 0:
            mf = mf[:8] + PP(6) + [zero16(ar(192, 16)), zero16(ar(208, 16))]
            mem[0] += sync + Cq(6)[:2]; mem[1] += Cq(6)[2:]; mem[7].append("s_waitcnt lgkmcnt(0)")
            for i_, x in enumerate(Dq(5)): val[3 + 2 * i_].append(x)
        if first and r == 1:
            for i_, x in enumerate(Dq(6) + ["v_mov_b32 v%d, 0" % j for j in range(L + 4, L + 7)]): val[1 + 4 * (i_ % 4)].append(x) if i_ >= 6 else val[1 + 2 * i_].append(x)
        if first and r == 2: mem[9].append(zero16(ar(176, 16)))
        if first and r == 3: mem[1].append(initD[0]); mem[5].append(initD[1])
        if O.pf3 and first and r == 4:
            for i_, x in enumerate(codepf("L_last", "L_go", 250)[:-1]): val[1 + 2 * i_].append(x)
        if O.pf3 and not first and not last and js == O.pf3 % 4 and r == 1: mem[9].append(codepf("L_last", "L_go", 250)[-1])
        vrd = ["ds_read_b64_tr_b16 %s, v%d offset:%d" % (vr(V + 4 * i + 2 * sec, 2), vVr + (i & 1), js * 8192 + (i >> 1) * 256 + sec * 4096) for i in range(8) for sec in range(2)]
        if not fin and not first:
            if r == 0: mem[9] += vrd[0:3]; mem[11] += vrd[3:5]; mem[13] += vrd[5:8]; mem[15] += vrd[8:10]
            if r == 1:
                mem[1] += vrd[10:12]; mem[3] += vrd[12:14]; mem[5] += vrd[14:16]
                mem[7].append("s_waitcnt lgkmcnt(4)"); mem[13].append("s_waitcnt lgkmcnt(0)")
        else:
            if r == 0:
                for i in range(16): mem[8 + i // 2].append(vrd[i])
            if r == 1: mem[5].append("s_waitcnt lgkmcnt(%d)" % (5 if fin else 0))
        if r == 5 and not fin: mem[0].append("s_barrier")
        if r == 4 and not last: mem[13].append("s_getreg_b32 s%d, hwreg(HW_REG_IB_STS)" % sT2)
        if r == 4 and ctl: mem[9].append("s_sub_u32 s%d, s%d, 1" % (sCnt, sCnt)); mem[11].append("s_cmp_lg_u32 s%d, 0" % sCnt)
        if kv:
            pts = [tuple(int(y) for y in x.split(".")) for x in O.pts.split(",")]
            pos = [((pr_ - 5) % 7) * 16 + pg_ for pr_, pg_ in pts]
            here = ((r - 5) % 7) * 16
            def put(p_, xs):
                if here <= p_ < here + 16: mem[p_ - here] += [x + KV for x in xs]
            for n_ in range(4):
                put(pos[n_] - 2, [dm0(PORD[n_])]); put(pos[n_], ptld(PORD[n_]))
            put(pos[3] + 2, incD[0:2]); put(pos[3] + 4, incD[2:4])
        if last:
            sched = {(0, 6): 0, (1, 1): 6, (1, 3): 1, (1, 6): 7, (2, 0): 2, (2, 2): 3, (2, 5): 4, (3, 0): 5}
            if (js, r) in sched:
                k = sched[(js, r)]
                base, off = (sReg, k * 4096) if k < 6 else (sSp, (k - 6) * 4096)
                g0 = (9, 11, 13, 15) if r == 5 else ((1, 3, 5, 7) if r == 0 else (1, 5, 9, 13))
                mem[g0[0] - 1] += ["s_add_u32 m0, s%d, %d" % (base, off), setWo(k)]
                for j in range(4): mem[g0[j]].append(("w%d" % k, dma3(j)))
            if r == 4 and js < 3: mem[13].append(("wait", "kv"))
            if r == 5 and js < 2:
                mem[11].append("s_cmp_ge_u32 s%d, %d" % (sK0, 16 * TS_))
                mem[13].append(("kv", ["s_cbranch_scc1 L_ok%d" % js] + [x for reg in PORD for x in [dm0(reg), "s_nop 0"] + ptld(reg)] + incD + ["L_ok%d:" % js]))
            if js == 2 and r == 3 and O.pf_code:
                pf = codepf("L_epi", "L_end", vT)
                for i_, x in enumerate(pf[:-1]): val[1 + 2 * i_].append(x)
                mem[15].append(("pf", pf[-1]))
            if js == 1 and r == 2:
                val[1] += ["v_add_u32 v%d, s%d, v%d" % (vTa, sReg, vL16)]; val[5] += ["v_add_u32 v%d, s%d, v%d" % (vTb, sRing, vL16)]
            if js == 1 and r == 4:
                for i_, x in enumerate(flagp(vFp, vT2)): val[1 + 2 * (i_ // 4)].append(x)
            if js == 2 and r == 1:
                for i_, x in enumerate(["s_lshr_b32 s%d, s%d, 6" % (sT, sOf), "v_add_u32 v248, s%d, v%d" % (sT, vL16), "v_add_u32 v%d, 1, v%d" % (vFo, vFo)]): val[9 + 2 * i_].append(x)
            if js == 2 and r == 4:
                fc = flagc(vFa)
                for i_, x in enumerate(fc[:-3]): val[1 + 2 * (i_ // 2)].append(x)
                val[11] += fc[-3:]
            if fin:
                h2 = 8 if 2 <= r < 6 else 0
                if r < 6:
                    if r % 2 == 0: mem[h2] += [("wait", "w%d" % r), ("wait", "w%d" % (r + 1))]
                if r == 1: mem[9].append("s_barrier")
                g1 = list(range(0, 8)) if r < 6 else [8, 8, 9, 9, 10, 10, 11, 11]
                g2 = list(range(8, 16)) if r < 6 else [12, 12, 13, 13, 14, 14, 15, 15]
                if r >= 3: mem[g1[0]].append("s_waitcnt lgkmcnt(0)")
                if r >= 2:
                    for i_, x in enumerate(xw(r - 2) + [lw(r - 2)]): mem[g1[1 + i_]].append(x)
                    mem[g2[0]] += sync
                    for i_, x in enumerate(rdc(r - 2, 128)): mem[g2[(i_ + 1) // 2]].append(x)
                if r < 6:
                    for i_, x in enumerate(rd3(r >> 1, (r >> 1) * 8192, range(4 * (r & 1), 4 * (r & 1) + 4))): mem[h2 + (i_ if h2 == 0 else 3 + i_ // 2)].append(x)
                else:
                    mem[8] += [("wait", "w6"), ("wait", "w7")]
                    for i_, x in enumerate(rd3(3, 0)): mem[8 + i_ // 2].append(x)
                vg = r < 6
                if r >= 3:
                    cb = comb(r - 3, 128)
                    for i_, x in enumerate(cb[:18]): val[(i_ * 8) // 18].append(x)
                    for i_, x in enumerate(cb[18:]): val[8 + (i_ * 6) // 24].append(x)
                    mem[15] += [("st", x) for x in ost(r - 3)]
                    if O.wfin and r >= 4:
                        u_ = 8 + r - 4
                        mem[g1[0]] += ["s_add_u32 m0, s%d, %d" % (sRing, (u_ & 7) * 4096), setWo(u_)]
                        for j in range(4): mem[g1[2 + j]].append(("w%d" % u_, dma3(j)))
                if r >= 1:
                    for i_, x in enumerate(xlane("v_add_f32", [L + r - 1], [E2])): val[3 + 2 * i_].append(x)
                if r == 5: val[15] += ["v_add_u32 v%d, s%d, v%d" % (vR + i, sD1, vR + i) for i in range(2)]
        if r == 5 and not fin:
            for i in range(8): mem[(1, 1, 3, 5, 5, 7, 9, 9)[i]].append(rdK(i, (js + 1) & 3))
            mem[15].insert(0, "s_waitcnt lgkmcnt(0)")
            if O.ts: mem[11] += TS_A; mem[15] += TS_B
        if fin and r == 6:
            mem = [mem[8 + i] for i in range(8)]
            val = [val[2 * i] + val[2 * i + 1] for i in range(8)]
            val = [[v_[0], "s_nop 0"] + v_[1:] for v_ in val]
            a.e("s_nop 1")
        if first and r == 0:
            mem = mem[:12] + [mem[12] + mem[13], mem[14] + mem[15]]
            val = val[:12] + [val[12] + ["s_nop 0"] + val[13], val[14] + ["s_nop 0"] + val[15]]
        if pk:
            flush = r == 4 or (last and js == 2 and r == 6)
            old_ = len(pend)
            for g in range(1, 16, 2):
                pend.append("v_add_f32 v%d, v%d, v%d" % (L + r, L + r, Eb + g // 2))
                n_ = max(0, 2 - len(mem[g]) - len(val[g]))
                if g == 15: n_ = max(n_, len(pend) if flush else old_)
                n_ = min(n_, len(pend))
                val[g] += pend[:n_]; del pend[:n_]; old_ = max(0, old_ - n_)
        else: assert not pend
        if O.padn and pk:
            for i_ in range(O.padn): val[2 * i_].append("s_nop 0")
        for g_, v_ in zip(mem, val): cost[0] += max(16, 8 + sum(8 if (isinstance(x, str) and "v_exp" in x) else 4 for x in g_ + v_))
        if r == 4:
            if O.verbose: print("unit ending", js, last, first, "model cycles", cost[0], file=sys.stderr)
            cost[0] = 0
        for m_, g_, v_ in zip(mf, mem, val):
            a.e(m_)
            for x in g_:
                if isinstance(x, tuple):
                    if x[0] == "wait": a.e("s_waitcnt vmcnt(%d)" % vm.n(x[1]))
                    elif x[0] == "kv": vm.issue("kv", True); a.e(x[1])
                    else: vm.issue(x[0]); a.e(x[1])
                else: a.e(x)
            a.e(v_)
    for r in range(5): step(0, r, first=True)
    quiet = []
    a.raw(".p2align 5")
    a.lab("L_loop")
    for js in range(4):
        if O.force_skip & (1 << js): a.e("s_or_b32 s%d, s%d, 15" % (sT2, sT2))
        a.e(["s_and_b32 s%d, s%d, 0xc0000f" % (sT2, sT2), "s_cbranch_scc1 L_h%d" % js])
        a.lab("L_u%d" % js)
        q0 = len(a.L)
        for r in (5, 6): step(js, r, kv=True)
        step((js + 1) & 3, 0, kv=True)
        qe = max(i_ for i_ in range(q0, len(a.L)) if a.L[i_].endswith(KV)) + 1
        quiet.append([ln for ln in a.L[q0:qe] if not ln.endswith(KV)])
        a.L.insert(qe, "L_j%d:" % js)
        for r in range(1, 5): step((js + 1) & 3, r, ctl=(js == 3))
    a.e(["s_cbranch_scc1 L_loop", "s_branch L_last"])
    for js in range(4):
        a.lab("L_h%d" % js)
        a.e(["s_cmp_lt_u32 s%d, 2" % sDd, "s_cbranch_scc1 L_hs%d" % js, "s_waitcnt vmcnt(0)", "s_branch L_u%d" % js])
        a.lab("L_hs%d" % js)
        a.e(["s_waitcnt vmcnt(8)", "s_cmp_le_u32 s%d, %d" % (sT2, O.th), "s_cbranch_scc1 L_u%d" % js] + (
             ["s_cmp_ge_u32 s%d, %d" % (sDd, O.dmax), "s_cbranch_scc1 L_u%d" % js] if O.dmax < 2 else []) + [ "s_add_u32 s%d, s%d, 1" % (sDd, sDd)])
        a.L += quiet[js]
        a.e("s_branch L_j%d" % js)
    a.lab("L_last")
    a.e(["s_cmp_lt_u32 s%d, 2" % sDd, "s_cbranch_scc1 L_d1", "s_waitcnt vmcnt(0)", "L_d1:", "s_waitcnt vmcnt(8)"])
    for r in (5, 6): step(0, r, last=True)
    for js in range(1, 4):
        for r in range(7): step(js, r, last=True)
    stamp()

    a.lab("L_epi")
    misc = ["v_add_f32 v%d, v%d, v%d" % (vTc, L, L + 1)] + ["v_add_f32 v%d, v%d, v%d" % (vTc, vTc, L + i) for i in range(2, 7)]
    misc += ["s_mov_b32 s%d, 0x%x" % (sT, THR if not O.force_slow else 0), "s_lshl_b32 s%d, s%d, 2" % (sG, sWv),
             "v_cmp_ngt_f32 vcc, s%d, v%d" % (sT, vTc),
             "s_add_u32 s%d, s%d, 30720" % (sG, sG), "v_mov_b32 v%d, s%d" % (vT, sG),
             "s_cmp_lg_u64 vcc, 0", "s_cselect_b32 s%d, 1, 0" % sT, "v_mov_b32 v%d, 30720" % vT2, "v_mov_b32 v%d, s%d" % (L + 7, sT)]
    xl = xlane("v_add_f32", [L + 6], [E2])
    pvl = pv(6, 1); pvl = pvl[4:] + pvl[:4]
    gp = [[] for _ in range(8)]
    for i_, x in enumerate(xw(5) + [lw(5)]): gp[2 + i_].append(x)
    for i_, x in enumerate(misc): gp[(i_ * 8) // len(misc)].append(x)
    for i_, x in enumerate(xl): gp[2 + i_].append(x)
    a.e(["s_waitcnt lgkmcnt(0)", "s_nop 0"])
    weave(a, pvl, gp)
    a.e(xw(6) + [lw(6), "ds_write_b32 v%d, v%d" % (vT, L + 7)])
    def combp(rt, pb):
        ob = OK + 16 * rt; t = E2 + 2
        o = ["v_add_f32 v%d, v%d, v%d" % (t + (rt & 1), t + (rt & 1), L + rt), "v_rcp_f32 v%d, v%d" % (t + (rt & 1), t + (rt & 1))]
        o += ["v_pk_add_f32 %s, %s, %s" % (vr(ob + 2 * i, 2), vr(ob + 2 * i, 2), vr(pb + 2 * i, 2)) for i in range(8)]
        o += ["v_pk_mul_f32 %s, %s, %s %s" % (vr(ob + 2 * i, 2), vr(ob + 2 * i, 2), vr(t, 2), "op_sel:[0,1]" if rt & 1 else "op_sel_hi:[1,0]") for i in range(8)]
        return o + ["v_cvt_pk_bf16_f32 v%d, v%d, v%d" % (ob + i, ob + 2 * i, ob + 2 * i + 1) for i in range(8)]
    def stores(rt):
        for x in ost(rt): vm.issue("st"); a.e(x)
    c4 = combp(4, 128)
    a.e(c4[:18] + sync)
    stamp(2)
    a.e(["ds_read_b128 %s, v%d" % (vr(216, 4), vT2)] + rdc(5, 144) + rdc(6, 160) + c4[18:])
    stores(4)
    a.e(["v_add_u32 v%d, s%d, v%d" % (vR + i, sD2, vR + i) for i in range(2)])
    a.e(["s_waitcnt lgkmcnt(5)", "v_or3_b32 v216, v216, v217, v218", "v_or_b32 v216, v216, v219"] + combp(5, 144) + ["v_readfirstlane_b32 s%d, v216" % sT])
    stores(5)
    a.e(["s_waitcnt lgkmcnt(0)"] + combp(6, 160))
    stores(6)
    a.e(["s_andn2_b32 s%d, s%d, s%d" % (sT, sT, sPass), "s_cbranch_scc1 L_slow"])
    def wload(k, j):
        if j == 0: a.e(["s_add_u32 m0, s%d, %d" % (sRing, (k & 7) * 4096), setWo(k)])
        vm.issue("w%d" % k); a.e(dma3(j))
    wi = 12 if O.wfin else 0
    stamp(2)
    ACC3, OF = 16, 128
    vS, vOo, vOut, vPs = 6, 248, 249, 250
    def acc3(rt, sl):
        hb, wv = sl >> 2, sl & 3
        return vr(ACC3 + 16 * rt + 4 * (2 * hb + wv), 4) if wv < 2 else ar(112 + 16 * rt + 4 * (2 * hb + wv - 2), 4)
    for _ in range(min(O.w_late, 28 - wi)): wload(8 + wi // 4, wi % 4); wi += 1
    a.e(["s_lshl_b32 s%d, s%d, 5" % (sT, sB), "s_add_u32 s%d, s%d, s%d" % (sT, sT, sH), "v_mov_b32 v%d, s%d" % (vT2, sT), "v_mov_b32 v%d, 1" % vT3,
         "v_xor_b32 v243, 0x80, v%d" % vT2, "v_mov_b32 v241, v%d" % vFa,
         "s_lshr_b32 s%d, s%d, 1" % (sT, sRB), "s_lshl_b32 s%d, s%d, 5" % (sT, sT), "s_lshl_b32 s%d, s%d, 2" % (sG, sPm), "s_add_u32 s%d, s%d, s%d" % (sT, sT, sG),
         "v_mov_b32 v242, s%d" % sT, "s_mov_b32 s%d, 0x40000" % sCnt])
    a.e(["s_waitcnt vmcnt(%d)" % vm.n("st"), "s_barrier"])
    stamp(2)
    if O.stamps: a.e("s_memrealtime s[6:7]")
    a.e(["s_cmp_lg_u32 s%d, 0" % sWv, "s_cbranch_scc1 L_noflag",
         "s_mov_b64 exec, 0xfffff", "global_store_dword v%d, v%d, s[%d:%d] sc1" % (vFp, vFo, pWs, pWs + 1),
         "s_mov_b64 exec, 1", "global_store_byte v%d, v%d, s[%d:%d] sc1" % (vT2, vT3, pDbg, pDbg + 1), "s_mov_b64 exec, -1"])
    a.lab("L_noflag")
    stamp(2)
    def wpieces(lo, hi):
        out = []
        for p_ in range(lo, hi):
            u, j = 8 + p_ // 4, p_ % 4
            out.append((["s_add_u32 m0, s%d, %d" % (sRing, (u & 7) * 4096), setWo(u)] if j == 0 else [], ("w%d" % u, dma3(j))))
        return out
    if O.dynw:
        a.e(["s_mov_b64 exec, 31", "global_load_dword v%d, v241, s[%d:%d] sc1" % (vT, pWs, pWs + 1), "s_waitcnt vmcnt(0)", "v_cmp_eq_u32 vcc, v%d, v%d" % (vT, vFc), "s_nop 0", "s_cbranch_vccz L_go", "s_mov_b64 exec, -1"])
        for pre, op in wpieces(wi, 32): a.e(pre + [op[1]])
    a.e("s_mov_b64 exec, 31")
    a.lab("L_poll")
    a.e(["global_load_dword v%d, v241, s[%d:%d] sc1" % (vT, pWs, pWs + 1), "s_sub_u32 s%d, s%d, 1" % (sCnt, sCnt), "s_cbranch_scc1 L_go",
         "s_waitcnt vmcnt(0)", "v_cmp_eq_u32 s[%d:%d], v%d, v%d" % (sC, sC + 1, vT, vFc), "s_nop 0", "s_cmp_eq_u64 s[%d:%d], 0" % (sC, sC + 1), "s_cbranch_scc1 L_go",
         "s_and_b32 s%d, s%d, 15" % (sT, sCnt), "s_cbranch_scc1 L_poll",
         "global_load_dword v%d, v242, s[%d:%d] sc1" % (vT, pDbg, pDbg + 1), "global_load_ubyte v%d, v243, s[%d:%d] sc1" % (vT2, pDbg, pDbg + 1), "s_waitcnt vmcnt(0)",
         "v_add_u32 v%d, v%d, v%d" % (vT, vT, vT2), "s_nop 0", "v_readfirstlane_b32 s%d, v%d" % (sT, vT),
         "s_nop 0", "s_cmp_eq_u32 s%d, 0x01010102" % sT, "s_cbranch_scc0 L_poll"])
    a.lab("L_go")
    a.e("s_mov_b64 exec, -1")
    if O.wggo: a.e("s_barrier")
    stamp()
    if O.stamps: a.e(["s_memrealtime s[4:5]", "s_sub_u32 s10, 0x40000, s11"])
    def ldO(rt, k): return "buffer_load_dwordx4 %s, v%d, s[%d:%d], s%d offen sc1" % (vr(OF + 28 * (k & 3) + 4 * rt, 4), vOo, sOs, sOs + 3, sRt + rt)
    def incO(k): return "v_xor_b32 v%d, 0x%x, v%d" % (vOo, (k ^ (k + 1)) << 10, vOo)
    for k in range(2):
        for rt in range(7): vm.issue("o%d" % k); a.e(ldO(rt, k))
        a.e(incO(k))
    a.e(["v_add_u32 v%d, s%d, v%d" % (vS, sRing, vL16)])
    for i in range(1, 4): a.e(["v_xor_b32 v%d, 0x%x, v%d" % (vS + i, i << 15, vS)])
    a.e(["v_and_b32 v%d, 15, v%d" % (vT, vL), "v_lshrrev_b32 v%d, 4, v%d" % (vT2, vL), "v_lshlrev_b32 v%d, 3, v%d" % (vT2, vT2),
         "v_lshl_add_u32 v%d, v%d, 11, v%d" % (vT, vT, vT2),
         "s_lshl_b32 s%d, s%d, 8" % (sT, sCT), "s_lshl_b32 s%d, s%d, 5" % (sG, sPm), "s_add_u32 s%d, s%d, s%d" % (sT, sT, sG),
         "v_add_u32 v%d, s%d, v%d" % (vOut, sT, vT)] + boxaddr(vPs) + ["v_xor_b32 v%d, 0x8000, v%d" % (vPs + 1, vPs)])
    a.e(["s_waitcnt vmcnt(%d)" % (vm.n("o0") + 6)])
    def redw(rt, hb, wv): return "ds_write_b128 v%d, %s offset:%d" % (vS, acc3(rt, 4 * hb + wv), (wv - 1) * 7168 + rt * 1024)
    def redr(rt, wv, d): return "ds_read_b128 %s, v%d offset:%d" % (vr(d, 4), vS + wv, (wv - 1) * 7168 + rt * 1024)
    def mf3(rt, sl, k): return mfma(acc3(rt, sl), ar(wset(k) + 4 * sl, 4), vr(OF + 28 * (k & 3) + 4 * rt, 4), acc3(rt, sl) if k else "0")
    def emit(mf, gaps):
        for m_, g_ in zip(mf, gaps):
            a.e(m_)
            for x in g_:
                if isinstance(x, tuple):
                    if x[0] == "wait": a.e("s_waitcnt vmcnt(%d)%s" % (min(vm.n(t_) for t_ in x[1]), " lgkmcnt(0)" if x[2] else ""))
                    elif x[0] == "wait0": a.e("s_waitcnt vmcnt(%d)" % (vm.n("o0") + x[1]))
                    elif isinstance(x[1], list):
                        nsk[0] += 1
                        for _ in range(4): vm.issue(x[0], True)
                        a.e(["s_cbranch_vccnz L_sk%d" % nsk[0]] + x[1]); a.lab("L_sk%d" % nsk[0])
                    elif (O.dbg3 & 1 and x[0][0] == "w") or (O.dbg3 & 2 and x[0][0] == "o" and int(x[0][1:]) > 3): vm.issue(x[0])
                    else: vm.issue(x[0]); a.e(x[1])
                elif O.dbg3 & 4 and x.startswith("ds_read_b64"): pass
                else: a.e(x)
    nsk = [0]
    ws0, ws1 = 2, O.ws1
    pstep = [ws0 + (p_ * (ws1 - ws0)) // 64 for p_ in range(64)]
    rstep = {m_: m_ - 3 for m_ in range(4, 8)}
    for m_ in range(8, 16):
        rstep[m_] = max(m_ - 3, pstep[8 * (m_ - 8) + 7] + 2)
        assert pstep[8 * (m_ - 8)] > rstep[m_ - 4] and rstep[m_] <= min(m_ - 1, 13) and (m_ == 15 or rstep[m_] <= 12), m_
    for k in range(13):
        mf = [mf3(rt, sl, k) for rt in range(7) for sl in range(8)]
        gaps = [[] for _ in range(56)]
        rds = [m_ for m_ in rstep if rstep[m_] == k]
        for g, x in enumerate([y for m_ in rds for y in rd3(m_, (m_ & 3) * 8192)]): gaps[g].append(x)
        wl = []
        if k < 3:
            assert wi % 4 == 0 and wi >= 8 and O.dynw
            us = list(range(wi // 4, 8)); us = us[(len(us) * k) // 3:(len(us) * (k + 1)) // 3]
            wl = [([], ("w%d" % (8 + u_), [y for pre, op in wpieces(4 * u_, 4 * u_ + 4) for y in pre + [op[1]]])) for u_ in us]
        ps_ = [p_ for p_ in range(64) if pstep[p_] == k]
        if ps_: wl += wpieces(32 + ps_[0], 32 + ps_[-1] + 1)
        ol = [([], ("o%d" % kk_, ldO(rt, kk_))) + ((incO(kk_),) if rt == 6 else ()) for kk_ in ([2, 3] if k == 0 else [k + 3]) for rt in range(7)]
        ld = sorted([((i_ + 0.5) / len(wl), x) for i_, x in enumerate(wl)] + [((i_ + 0.25) / len(ol), x) for i_, x in enumerate(ol)], key=lambda t_: t_[0])
        for i_, (_, x) in enumerate(ld):
            g = 1 + (i_ * 53) // len(ld)
            gaps[g - 1] += x[0]; gaps[g].insert(0, x[1])
            if len(x) > 2: gaps[g].append(x[2])
        if k == 0:
            for rt in range(1, 7): gaps[8 * rt - 1].append(("wait0", 6 - rt))
        need_ = ["o%d" % (k + 1)] + ["w%d" % (2 * m_ + 1) for m_ in rstep if rstep[m_] == k + 1]
        gaps[55].append(("wait", need_, bool(rds)))
        emit(mf, gaps)
    mf = [mf3(rt, 4 * hb + wv, k) for hb in (1, 0) for k in (13, 14, 15) for rt in range(7) for wv in range(4)]
    gaps = [[] for _ in range(168)]
    if rstep[15] == 13:
        for g, x in enumerate(rd3(15, 3 * 8192)): gaps[g].append(x)
    gaps[27].append(("wait", ["o14"], False)); gaps[55].append(("wait", ["o15"], True))
    for rt in range(7):
        for wv in range(1, 4): gaps[56 + 4 * rt + wv + 8].append(redw(rt, 1, wv))
    gaps[94].append("s_waitcnt lgkmcnt(0)"); gaps[95].append("s_barrier")
    def tmp1(rt, wv): return (ACC3 + 16 * rt + 12, OF + 4 * rt, OF + 28 + 4 * rt)[wv - 1]
    for rt in range(7):
        g = 96 + 4 * rt
        gaps[g] += [redr(rt, 1, tmp1(rt, 1)), redr(rt, 2, tmp1(rt, 2))]; gaps[g + 1].append(redr(rt, 3, tmp1(rt, 3)))
    for rt in range(7):
        g = 96 + 4 * rt + 6; b = ACC3 + 16 * rt + 8
        gaps[g - 1].append("s_waitcnt lgkmcnt(%d)" % (3 if rt < 6 else 0))
        ads = ["v_add_f32 v%d, v%d, v%d" % (b + i, b + i, tmp1(rt, 1) + i) for i in range(4)]
        ads += ["v_add_f32 v%d, v%d, v%d" % (tmp1(rt, 2) + i, tmp1(rt, 2) + i, tmp1(rt, 3) + i) for i in range(4)]
        ads += ["v_add_f32 v%d, v%d, v%d" % (b + i, b + i, tmp1(rt, 2) + i) for i in range(4)]
        gaps[g] += ads[0:4]; gaps[g + 1] += ads[4:8]; gaps[g + 2] += ads[8:10]; gaps[g + 3] += ads[10:12]
        gaps[g + 4].insert(0, ("ps", "global_store_dwordx4 v%d, %s, s[%d:%d] offset:%d sc1" % (vPs + 1, vr(b, 4), pWs, pWs + 1, rt * 1024 - 3072)))
    gaps[132].append("s_barrier")
    gaps[134].append("v_add_u32 v%d, 1, v%d" % (vT2, vFc))
    gaps[O.f2gap] += ["s_waitcnt vmcnt(0)", "s_mov_b64 exec, 64", "global_store_dword v241, v%d, s[%d:%d] sc1" % (vT2, pWs, pWs + 1), "s_mov_b64 exec, -1"]
    lastw = []
    for rt in range(7):
        for wv in range(1, 4):
            g2 = 140 + 4 * rt + wv + 8
            if g2 < 168: gaps[g2].insert(0, redw(rt, 0, wv))
            else: lastw.append(redw(rt, 0, wv))
    emit(mf, gaps)
    stamp()
    PB = OF + 84
    ldP = ["global_load_dwordx4 %s, v%d, s[%d:%d] offset:%d sc1" % (vr(PB + 4 * rt, 4), vPs, pWs, pWs + 1, rt * 1024 - 3072) for rt in range(7)]
    pl2 = "global_load_dword v%d, v241, s[%d:%d] sc1" % (vT, pWs, pWs + 1)
    a.e(["s_mov_b64 exec, 32", pl2, "s_mov_b64 exec, -1"] + lastw[:3] + ["s_nop 1"] + lastw[3:] + ["s_mov_b32 s%d, 0x40000" % sCnt, "s_waitcnt lgkmcnt(0)", "s_barrier"])
    for rt in range(7):
        for wv in range(1, 4): a.e(redr(rt, wv, OF + 12 * rt + 4 * (wv - 1)))
    a.e("s_mov_b64 exec, 32")
    a.lab("L_poll2")
    a.e(["s_waitcnt vmcnt(0)", "v_cmp_eq_u32 vcc, v%d, v%d" % (vT, vFc), "s_sub_u32 s%d, s%d, 1" % (sCnt, sCnt), "s_cbranch_vccz L_go2", "s_cbranch_scc1 L_go2", pl2, "s_branch L_poll2"])
    a.lab("L_go2")
    a.e(["s_mov_b64 exec, -1"] + ldP)
    for rt in range(7):
        a.e("s_waitcnt lgkmcnt(%d)" % min(15, 3 * (6 - rt)))
        b = ACC3 + 16 * rt; t = OF + 12 * rt
        for h in range(2):
            a.e("v_pk_add_f32 %s, %s, %s" % (vr(b + 2 * h, 2), vr(b + 2 * h, 2), vr(t + 2 * h, 2)))
            a.e("v_pk_add_f32 %s, %s, %s" % (vr(t + 4 + 2 * h, 2), vr(t + 4 + 2 * h, 2), vr(t + 8 + 2 * h, 2)))
        for h in range(2): a.e("v_pk_add_f32 %s, %s, %s" % (vr(b + 2 * h, 2), vr(b + 2 * h, 2), vr(t + 4 + 2 * h, 2)))
    for rt in range(7):
        b = ACC3 + 16 * rt; t = PB + 4 * rt
        a.e(["s_waitcnt vmcnt(6)"] + ["v_pk_add_f32 %s, %s, %s" % (vr(b + 2 * h, 2), vr(b + 2 * h, 2), vr(t + 2 * h, 2)) for h in range(2)])
        a.e(["v_cvt_pk_bf16_f32 v%d, v%d, v%d" % (b, b, b + 1), "v_cvt_pk_bf16_f32 v%d, v%d, v%d" % (b + 1, b + 2, b + 3),
             "s_mov_b32 s%d, %d" % (sT, rt * 32768),
             "buffer_store_dwordx2 %s, v%d, s[%d:%d], s%d offen %s" % (vr(b, 2), vOut, sOut, sOut + 3, sT, O.out_flags)])
    if O.stamps:
        a.e(["s_waitcnt vmcnt(0)"])
        if not O.ts: stamp()
        a.e(["s_memrealtime s[78:79]", "s_waitcnt lgkmcnt(0)", "s_lshl_b32 s%d, s2, 2" % sT, "s_add_u32 s%d, s%d, s%d" % (sT, sT, sWv), "s_lshl_b32 s%d, s%d, 6" % (sT, sT),
             "s_add_u32 s%d, s%d, 0x%x" % (sT, sT, STAMP_OFF),
             "s_add_u32 s%d, s%d, s%d" % (sO, pWs, sT), "s_addc_u32 s%d, s%d, 0" % (sO + 1, pWs + 1), "s_mov_b32 s%d, 64" % (sO + 2), "v_mov_b32 v%d, 0" % vT])
        for i in range(nst[0]):
            a.e(["s_sub_u32 s%d, s%d, s%d" % (sT, sST + 2 * i, sST), "v_mov_b32 v%d, s%d" % (vT2, sT),
                 "buffer_store_dword v%d, v%d, s[%d:%d], 0 offen offset:%d" % (vT2, vT, sO, sO + 3, 4 * i)])
        for i, r_ in enumerate((10, 6, 4, sST, 78)):
            a.e(["v_mov_b32 v%d, s%d" % (vT2, r_), "buffer_store_dword v%d, v%d, s[%d:%d], 0 offen offset:%d" % (vT2, vT, sO, sO + 3, 44 + 4 * i)])
    if O.ts:
        a.e(["s_lshl_b32 s%d, s2, 9" % sT, "s_add_u32 s%d, s%d, 0x%x" % (sT, sT, STAMP_OFF + 0x200000),
             "s_add_u32 s%d, s%d, s%d" % (sO, pWs, sT), "s_addc_u32 s%d, s%d, 0" % (sO + 1, pWs + 1), "s_mov_b32 s%d, 512" % (sO + 2),
             "v_lshlrev_b32 v%d, 2, v%d" % (vT, vL), "buffer_store_dword v252, v%d, s[%d:%d], 0 offen" % (vT, sO, sO + 3)])
    a.lab("L_end")
    a.e("s_endpgm")

    if O.wo_at >= 100:
        a.lab("L_wopf")
        a.e(["s_lshl_b32 s%d, s2, 2" % sT, "s_add_u32 s%d, s%d, s%d" % (sT, sT, sWv), "s_lshl_b32 s%d, s%d, 13" % (sT, sT),
             "v_lshlrev_b32 v%d, 7, v%d" % (vT, vL), "v_add_u32 v%d, s%d, v%d" % (vT, sT, vT),
             "global_load_dword v%d, v%d, s[%d:%d]" % (vDum, vT, pWo, pWo + 1), "s_branch L_wopf_ret"])
    a.lab("L_slow")
    a.e(["s_waitcnt vmcnt(0) lgkmcnt(0)", "s_barrier", "s_mov_b32 s%d, 1" % sPass] + lane_setup() + ["s_branch L_restart"])
    a.lab("L_maxpass")
    a.e(["s_waitcnt vmcnt(0) lgkmcnt(0)", "s_barrier"] + Cq(6) + ["s_mov_b32 s%d, 16" % sCnt] + setK(0))
    a.e([zero16(ar(176 + 16 * i, 16)) for i in range(3)] + ["s_nop 7"])
    for rt in range(7): a.e("v_mov_b32 v%d, 0xff800000" % (M + 4 * rt))
    a.lab("L_slow_loop")
    a.e(kvtile(0))
    a.e(["s_waitcnt vmcnt(0)", "s_barrier"])
    a.e([rdK(i, 0) for i in range(8)])
    a.e(["s_waitcnt lgkmcnt(0)", "s_barrier"])
    for rt in range(7):
        for i in range(8):
            t, ks = i & 1, i >> 1
            d = vr(S + 4 * t, 4)
            a.e(mfma(d, ar(aK + 16 * t + 4 * ks, 4), ar(aQ + 16 * rt + 4 * ks, 4), "0" if ks == 0 else d))
        a.e("s_nop 7")
        for i in range(4): a.e("v_max3_f32 v%d, v%d, v%d, v%d" % (M + 4 * rt, M + 4 * rt, S + 2 * i, S + 2 * i + 1))
    a.e(["s_sub_u32 s%d, s%d, 1" % (sCnt, sCnt), "s_cmp_lg_u32 s%d, 0" % sCnt, "s_cbranch_scc1 L_slow_loop"])
    a.e(xlane("v_max_f32", [M + 4 * rt for rt in range(7)], [M + 4 * rt + 1 for rt in range(7)]))
    a.e(["v_add_u32 v%d, s%d, v%d" % (vTc, sSp, vL16), "v_xor_b32 v%d, 16384, v%d" % (vT3, vTc)])
    for rt in range(7): a.e("ds_write_b32 v%d, v%d offset:%d" % (vTc, M + 4 * rt, rt * 1024))
    a.e(["s_waitcnt lgkmcnt(0)", "s_barrier"])
    for rt in range(7): a.e("ds_read_b32 v%d, v%d offset:%d" % (M + 4 * rt + 1, vT3, rt * 1024))
    a.e(setK(0))
    for tl in range(4): a.e(kvtile(tl))
    a.e("s_waitcnt lgkmcnt(0)")
    for rt in range(7): a.e("v_max_f32 v%d, v%d, v%d" % (M + 4 * rt, M + 4 * rt, M + 4 * rt + 1))
    a.e(["s_waitcnt vmcnt(16)", "s_barrier"])
    a.e([rdK(i, 0) for i in range(8)])
    a.e([zero16(vr(V, 16)), zero16(vr(V + 16, 16))])
    a.e(["v_sub_f32 v%d, 0, v%d" % (M + 4 * rt + i, M + 4 * rt) for rt in range(7) for i in (1, 2, 3, 0)])
    a.e(["v_mov_b32 v%d, 0" % i for i in range(L, L + 7)] + ["v_mov_b32 v%d, 0" % i for i in range(P + 4, P + 8)])
    a.e(["s_mov_b32 s%d, 3" % sCnt, "s_waitcnt lgkmcnt(0)"] + qk(0, 0) + initD + codepf("L_last", "L_go", 250)[:-1] + ["s_nop 5"])
    for r in range(5): step(0, r)
    a.e("s_branch L_loop")

def build():
    ref = open("cdna_kernels/%s.s.ref" % NAME).read()
    hdr = ref.split("; Override launch")[0]
    a = Asm()
    k = NAME + "_kernel"
    a.raw(".amdgcn_target \"amdgcn-amd-amdhsa--gfx950\"\n.text")
    a.raw(".globl %s\n.p2align 8\n.type %s,@function" % (k, k))
    kernel(a)
    for e in check(a.L): print(e, file=sys.stderr)
    doc = """;
"""
    t = hdr + "; @launch grid=(256,1,1) block=(256,1,1) lds=163840\n" + doc + a.text()
    t += """.section .rodata,"a"
.p2align 6
.amdhsa_kernel %s
  .amdhsa_next_free_vgpr 512
  .amdhsa_next_free_sgpr 102
  .amdhsa_accum_offset 256
  .amdhsa_group_segment_fixed_size 0
  .amdhsa_kernarg_size 64
  .amdhsa_user_sgpr_count 2
  .amdhsa_user_sgpr_kernarg_segment_ptr 1
  .amdhsa_system_sgpr_workgroup_id_x 1
  .amdhsa_float_denorm_mode_32 %d
.end_amdhsa_kernel
""" % (k, O.denorm)
    return t

if __name__ == "__main__":
    out = sys.argv[1] if len(sys.argv) > 1 else "cdna_kernels/%s.s" % NAME
    for kv in sys.argv[2:]:
        k, v = kv.split("=")
        cur = getattr(O, k)
        setattr(O, k, (v == "1") if isinstance(cur, bool) else type(cur)(v))
    open(out, "w").write(build())
```

```python
import sys, math, struct
from asmlib import *

NAME = "standalone__mha_block_cached__near_ridge"
def f32(x): return struct.unpack("<I", struct.pack("<f", x))[0]
CSCALE = f32(128 ** -0.5 * math.log2(math.e))
THR = f32(2.0 ** 30)

class Opt:
    stamps = False
    ts = False
    kv_nt = True
    nxe = 5
    p1_span = 26
    force_slow = False
    pf_xw = True
    pf_wo = True
    pf_code = True
    w_n = 0
    w_late = 8
    wl2 = 0
    out_flags = ""
    pfl = 0
    burst = 4
    ws1 = 12
    dbg3 = 0
    f2gap = 156
    wo2 = "0.3,2.2"
    lag = 0
    ilv = True
    pts = "5.13,5.15,6.9,6.11"
    th = 5
    pkg = 1
    xwf = ""
    w3f = ""
    pf3 = 0
    denorm = 3
    wfin = True
    nb = 0
    padn = 0
    kvf = "nt"
    dmax = 1
    force_skip = 0
    pack = True
    verbose = False
    x1mask = 0
    rd_first = False
    wqc = False
    tb4 = False
    wo_r = 3
    bstep = 2
    t3late = False
    wo_at = 1
    dynw = True
    wggo = False
    olook = 3
    sset = 1
    nost = False
    st_flags = "sc1"
    x3mask = 7
    burn = 0
    tsched = 1
    pf_flags = ""
    wpf = 0
O = Opt()
STAMP_OFF = 0x8000000
FLAG_OFF = 0x1000000
PART_OFF = 0x2000000

def zero16(d): return "v_mfma_f32_32x32x16_bf16 %s, v[12:15], v[12:15], 0" % d

class VM:
    def __init__(self, init): self.ops = list(init)
    def issue(self, tag, opt=False): self.ops.append(tag + "?" if opt else tag)
    def n(self, tag):
        idx = max(i for i, t in enumerate(self.ops) if t.rstrip("?") == tag)
        if self.ops[idx].endswith("?"): return min(63, len(self.ops) - 1 - idx)
        return min(63, sum(1 for t in self.ops[idx + 1:] if not t.endswith("?")))

def kernel(a):
    KVF = " " + O.kvf
    pX, pK, pV, pWq, pWo, pOut, pDbg, pWs = 4, 6, 8, 10, 12, 14, 16, 18
    sX, sW, sKV, sO, sOs, sWs, sOut = 20, 24, 28, 32, 36, 40, 44
    (sWv, sB, sH, sRH, sKH, sXoff, sWoff, sCnt, sMX, sMW, sReg, sRing, sSp, sG, sFlip, sK0, sPass, sT, sT2, sRB, sCT, sWo, sD1, sD2) = range(48, 72)
    sP = 3 if not O.ts else 81
    sOf = 1; sPm = 0
    sC = 72; sRt = 74; sPC = 82; sVV = 84; sST = 88; sK1 = sFlip
    KH, TS_ = (8192, 16384) if O.ilv else (131072, 8192)
    vL, vT, vT2, vT3, vL16 = 1, 2, 3, 4, 5
    vKV, vW = 6, 10
    OK, ACC = 16, 128
    M, S, E, P, V, L = 128, 156, 172, 180, 188, 220
    vTa, vTb, vTc = 237, 238, 236
    E2 = 228
    vX, vXr, vWr = 240, 247, 251
    vKr, vVr, vK0 = 240, 241, 243
    vD, vR = 244, 10
    vQw, vQr = 2, 3
    PK = 16
    vFo, vFc, vDum = 254, 255, 253
    vCp = 0
    aQ, aO, aK = 0, 112, 224
    aXF, aWF = 0, 224
    nst = [0]
    def stamp(m=3):
        if O.stamps and (m & O.sset):
            assert nst[0] < 7
            a.e("s_memrealtime s[%d:%d]" % (sST + 2 * nst[0], sST + 2 * nst[0] + 1)); nst[0] += 1
    def flagp(v, t):
        return ["s_and_b32 s%d, s%d, 1" % (sT, sB), "s_lshl_b32 s%d, s%d, 6" % (sT, sT), "s_lshr_b32 s%d, s%d, 1" % (sG, sB), "s_lshl_b32 s%d, s%d, 3" % (sG, sG),
                "s_add_u32 s%d, s%d, s%d" % (sT, sT, sG), "s_lshr_b32 s%d, s%d, 2" % (sG, sH), "s_add_u32 s%d, s%d, s%d" % (sT, sT, sG), "s_lshl_b32 s%d, s%d, 7" % (sT, sT),
                "s_and_b32 s%d, s%d, 3" % (sG, sH), "s_lshl_b32 s%d, s%d, 2" % (sG, sG), "s_add_u32 s%d, s%d, s%d" % (sT, sT, sG), "s_add_u32 s%d, s%d, 0x%x" % (sT, sT, FLAG_OFF),
                "v_lshrrev_b32 v%d, 1, v%d" % (v, vL), "v_lshlrev_b32 v%d, 14, v%d" % (v, v), "v_and_b32 v%d, 1, v%d" % (t, vL),
                "v_lshl_add_u32 v%d, v%d, 12, v%d" % (v, t, v), "v_add_u32 v%d, s%d, v%d" % (v, sT, v),
                "s_xor_b32 s%d, s2, 1" % sT, "s_lshl_b32 s%d, s%d, 9" % (sT, sT), "s_add_u32 s%d, s%d, 0x%x" % (sT, sT, FLAG_OFF + 16),
                "v_and_b32 v%d, 3, v%d" % (t, vL), "v_lshlrev_b32 v%d, 7, v%d" % (t, t), "v_cmp_gt_u32 vcc, 16, v%d" % vL, "v_add_u32 v%d, s%d, v%d" % (t, sT, t),
                "s_nop 0", "v_cndmask_b32 v%d, v%d, v%d, vcc" % (v, t, v)]
    def flagc(v):
        return ["s_lshl_b32 s%d, s2, 2" % sT, "s_add_u32 s%d, s%d, s%d" % (sT, sT, sWv), "s_lshl_b32 s%d, s%d, 7" % (sT, sT), "s_add_u32 s%d, s%d, 0x%x" % (sT, sT, FLAG_OFF),
                "v_min_u32 v%d, 5, v%d" % (v, vL), "v_lshlrev_b32 v%d, 2, v%d" % (v, v), "v_add_u32 v%d, s%d, v%d" % (v, sT, v),
                "s_mov_b64 exec, 64", "v_xor_b32 v%d, 0x200, v%d" % (v, v), "s_mov_b64 exec, -1"]
    def boxaddr(v):
        return ["s_lshl_b32 s%d, s2, 2" % sT, "s_add_u32 s%d, s%d, s%d" % (sT, sT, sWv), "s_lshl_b32 s%d, s%d, 13" % (sT, sT),
                "s_add_u32 s%d, s%d, 0x%x" % (sT, sT, PART_OFF + 3072), "v_add_u32 v%d, s%d, v%d" % (v, sT, vL16)]
    def codepf(lo, hi, t0):
        return ["v_min_u32 v%d, %s-%s-4, v%d" % (t0, hi, lo, vCp), "v_add_u32 v%d, %s-L_pc, v%d" % (t0, lo, t0),
                "v_mov_b32 v%d, s%d" % (t0 + 1, sPC + 1), "v_add_co_u32 v%d, vcc, s%d, v%d" % (t0, sPC, t0), "s_nop 1",
                "v_addc_co_u32 v%d, vcc, 0, v%d, vcc" % (t0 + 1, t0 + 1), "global_load_dword v%d, v[%d:%d], off" % (vDum, t0, t0 + 1)]

    a.lab(NAME + "_kernel")
    a.e(["s_cmp_ge_u32 s2, 256", "s_cbranch_scc1 L_end",
         "s_load_dwordx8 s[4:11], s[0:1], 0", "s_load_dwordx8 s[12:19], s[0:1], 32"])
    stamp(7)
    a.e(["s_getpc_b64 s[%d:%d]" % (sPC, sPC + 1)])
    a.lab("L_pc")
    a.e(["v_and_b32 v%d, 63, v0" % vL, "v_lshrrev_b32 v%d, 6, v0" % vT,
         "s_and_b32 s%d, s2, 7" % sT, "s_lshr_b32 s%d, s2, 3" % sT2,
         "v_readfirstlane_b32 s%d, v%d" % (sWv, vT),
         "v_min_u32 v%d, 2, v%d" % (vCp, vL), "v_lshl_add_u32 v%d, v%d, 2, v%d" % (vCp, vCp, vT), "v_lshlrev_b32 v%d, 5, v%d" % (vCp, vCp),
         "v_add_lshl_u32 v%d, v%d, s%d, 7" % (vCp, vCp, sT2)])
    if O.pf_code: a.e(codepf("L_pc", "L_end", vT))
    a.e(["s_mov_b32 s%d, 0" % sPass,
         "s_and_b32 s%d, s%d, 1" % (sB, sT), "s_lshl_b32 s%d, s%d, 2" % (sB, sB),
         "s_and_b32 s%d, s%d, 3" % (sG, sT2), "s_add_u32 s%d, s%d, s%d" % (sB, sB, sG),
         "s_lshr_b32 s%d, s%d, 1" % (sH, sT), "s_lshl_b32 s%d, s%d, 2" % (sRB, sH), "s_add_u32 s%d, s%d, s%d" % (sRB, sRB, sG), "s_lshl_b32 s%d, s%d, 3" % (sH, sH),
         "s_lshr_b32 s%d, s%d, 2" % (sCT, sT2), "s_add_u32 s%d, s%d, s%d" % (sH, sH, sCT),
         "s_and_b32 s%d, s%d, 1" % (sRH, sWv), "s_lshr_b32 s%d, s%d, 1" % (sKH, sWv)])
    a.e(["s_lshl_b32 s%d, s%d, 15" % (sMX, sKH), "s_mul_i32 s%d, s%d, 7168" % (sT, sRH),
         "s_add_u32 s%d, s%d, s%d" % (sMX, sMX, sT), "s_add_u32 s%d, s%d, 16384" % (sMX, sMX),
         "s_lshl_b32 s%d, s%d, 11" % (sMW, sWv), "s_add_u32 s%d, s%d, 131072" % (sMW, sMW),
         "s_lshl_b32 s%d, s%d, 15" % (sReg, sWv),
         "s_mov_b32 s%d, 458752" % (sX + 2), "s_mov_b32 s%d, 0x20000" % (sX + 3), "s_mov_b32 s%d, 0x20000" % (sW + 3),
         "s_mul_i32 s%d, s%d, 458752" % (sD1, sB), "s_lshl_b32 s%d, s%d, 8" % (sD2, sH), "s_sub_u32 s%d, 0x800000, s%d" % (sW + 2, sD2)])
    def lane_setup():
        o = ["v_lshrrev_b32 v%d, 3, v%d" % (vT, vL), "v_and_b32 v%d, 7, v%d" % (vT2, vL), "v_and_b32 v%d, 6, v%d" % (vT3, vT),
             "v_xor_b32 v%d, v%d, v%d" % (vT3, vT3, vT2), "v_lshlrev_b32 v%d, 4, v%d" % (vT3, vT3),
             "v_lshl_add_u32 v%d, v%d, 11, v%d" % (vX, vT, vT3),
             "s_mul_i32 s%d, s%d, %d" % (sT, sWv, 7 * 16384), "v_add_u32 v%d, s%d, v%d" % (vX, sT, vX)]
        o += ["v_add_u32 v%d, %d, v%d" % (vX + j, j * 16384 - (j & 3) * 1024, vX) for j in range(1, 7)]
        o += ["v_and_b32 v%d, 2, v%d" % (vT3, vT), "v_lshlrev_b32 v%d, 1, v%d" % (vT3, vT3),
              "v_xor_b32 v%d, v%d, v%d" % (vT3, vT3, vT2), "v_lshlrev_b32 v%d, 4, v%d" % (vT3, vT3),
              "v_lshl_add_u32 v%d, v%d, 13, v%d" % (vW, vT, vT3),
              "s_lshl_b32 s%d, s%d, 17" % (sT, sRH), "s_lshl_b32 s%d, s%d, 7" % (sG, sKH), "s_add_u32 s%d, s%d, s%d" % (sT, sT, sG),
              "v_add_u32 v%d, s%d, v%d" % (vW, sT, vW), "v_add_u32 v%d, %d, v%d" % (vW + 1, 8 * 8192 - 1024, vW)]
        return o
    a.e(lane_setup())
    a.e(["s_waitcnt lgkmcnt(0)",
         "s_add_u32 s%d, s%d, s%d" % (sW, pWq, sD2), "s_addc_u32 s%d, s%d, 0" % (sW + 1, pWq + 1),
         "s_add_u32 s%d, s%d, s%d" % (sX, pX, sD1), "s_addc_u32 s%d, s%d, 0" % (sX + 1, pX + 1)])
    stamp(4)
    a.lab("L_restart")

    TS_A = ["s_memrealtime s[100:101]"]
    TS_B = ["s_mov_b32 s3, m0", "s_mov_b32 m0, s81", "v_writelane_b32 v252, s100, m0", "s_add_u32 s81, s81, 1", "s_mov_b32 m0, s3"]
    def dmaX(j): return "buffer_load_dwordx4 v%d, s[%d:%d], s%d offen offset:%d %s lds" % (vX + j, sX, sX + 3, sXoff, (j & 3) * 1024, O.xwf)
    def m0X(buf, hi): return "s_add_u32 m0, s%d, %d" % (sMX, buf * 65536 + hi * 4096)
    def dmaW(j): return "buffer_load_dwordx4 v%d, s[%d:%d], s%d offen offset:%d %s lds" % (vW + j, sW, sW + 3, sWoff, j * 1024, O.xwf)
    def m0W(slot): return "s_add_u32 m0, s%d, %d" % (sMW, slot * 8192)
    def ptm0(reg, slot): return "s_add_u32 m0, s%d, %d" % (sMW, (reg * 32768 + slot * 8192 - 131072) & 0xffffffff)
    def ptld(reg): return ["buffer_load_dwordx4 v%d, s[%d:%d], s%d offen offset:%d%s lds" % (vKV + (2 if reg == 3 else 0) + j, sVV if reg & 1 else sKV, (sVV if reg & 1 else sKV) + 3,
                           sK1 if reg >> 1 else sK0, j * 1024, KVF) for j in range(2)]
    incK = ["s_add_u32 s%d, s%d, %d" % (sK0, sK0, TS_), "s_add_u32 s%d, s%d, %d" % (sK1, sK1, TS_)]
    def setK(tile): return ["s_mov_b32 s%d, %d" % (sK0, tile * TS_), "s_mov_b32 s%d, %d" % (sK1, tile * TS_ + KH)]
    PORD = (0, 2, 1, 3)
    def kvtile(slot): return [x for reg in PORD for x in [ptm0(reg, slot), "s_nop 0"] + ptld(reg)] + incK
    sXl, sWl, sOx, sOw = 10, 11, sWo, sK0
    incW = ["s_add_u32 s%d, s%d, 262144" % (sWl, sWl), "s_xor_b32 s%d, s%d, s%d" % (sWoff, sWl, sOw)]
    incX = ["s_add_u32 s%d, s%d, 128" % (sXl, sXl), "s_xor_b32 s%d, s%d, s%d" % (sXoff, sXl, sOx)]

    a.e(["s_mov_b32 s%d, 0" % sXl, "s_mov_b32 s%d, 0" % sWl, "s_xor_b32 s%d, s%d, s%d" % (sT, sB, sH), "s_and_b32 s%d, s%d, %d" % (sT, sT, O.x1mask),
         "s_lshl_b32 s%d, s%d, 19" % (sOw, sT), "s_lshl_b32 s%d, s%d, 7" % (sOx, sT), "s_mov_b32 s%d, s%d" % (sWoff, sOw), "s_mov_b32 s%d, s%d" % (sXoff, sOx)])
    def stage_loads(st):
        return ([m0W(2 * st), "s_nop 0", dmaW(0), dmaW(1), m0X(st, 0)] + incW + [dmaX(j) for j in range(4)] + [m0X(st, 1), "s_nop 0"] + [dmaX(j) for j in range(4, 7)]
                + [m0W(2 * st + 1)] + incX + [dmaW(0), dmaW(1)] + incW)
    a.e(stage_loads(0))
    stamp(4)
    a.e(["v_mov_b32 v%d, 0" % i for i in range(12, 16)])
    su0 = len(a.L)
    a.e(["s_lshl_b32 s%d, s%d, 5" % (sT, sB), "s_add_u32 s%d, s%d, s%d" % (sT, sT, sH), "s_lshl_b32 s%d, s%d, 18" % (sT, sT),
         "s_add_u32 s%d, s%d, s%d" % (sKV, pK, sT), "s_addc_u32 s%d, s%d, 0" % (sKV + 1, pK + 1),
         "s_mov_b32 s%d, 0x40000" % (sKV + 2), "s_mov_b32 s%d, 0x20000" % (sKV + 3),
         "s_add_u32 s%d, s%d, s%d" % (sVV, pV, sT), "s_addc_u32 s%d, s%d, 0" % (sVV + 1, pV + 1),
         "s_mov_b32 s%d, 0x40000" % (sVV + 2), "s_mov_b32 s%d, 0x20000" % (sVV + 3),
         "v_bfe_u32 v%d, v%d, 2, 2" % (vT, vL), "v_lshrrev_b32 v%d, 4, v%d" % (vT2, vL), "v_lshlrev_b32 v%d, 6, v%d" % (vT2, vT2),
         "v_lshl_add_u32 v%d, v%d, 8, v%d" % (vT2, vT, vT2), "v_and_b32 v%d, 3, v%d" % (vT, vL), "v_lshl_add_u32 v%d, v%d, 4, v%d" % (vT2, vT, vT2),
         "s_lshl_b32 s%d, s%d, 5" % (sG, sRH), "v_xor_b32 v%d, s%d, v%d" % (vT2, sG, vT2), "s_lshl_b32 s%d, s%d, 11" % (sG, sWv),
         "v_add_u32 v%d, s%d, v%d" % (vKV, sG, vT2), "v_xor_b32 v%d, 48, v%d" % (vKV + 1, vKV),
         "v_xor_b32 v%d, 0x80, v%d" % (vKV + 2, vKV), "v_xor_b32 v%d, 0x80, v%d" % (vKV + 3, vKV + 1)])
    pPx, pPw = PK + 20, PK + 21
    a.e(["s_mul_i32 s%d, s%d, 14336" % (sT, sH), "s_lshl_b32 s%d, s%d, 12" % (sG, sWv), "s_add_u32 s%d, s%d, s%d" % (sT, sT, sG),
         "v_and_b32 v%d, 31, v%d" % (pPx, vL), "v_lshlrev_b32 v%d, 7, v%d" % (pPx, pPx), "v_add_u32 v%d, s%d, v%d" % (pPx, sT, pPx),
         ] + ([
         "s_and_b32 s%d, s%d, 7" % (sG, sH), "s_lshl_b32 s%d, s%d, 3" % (sT, sB), "s_add_u32 s%d, s%d, s%d" % (sT, sT, sG), "s_lshl_b32 s%d, s%d, 2" % (sT, sT),
         "s_add_u32 s%d, s%d, s%d" % (sT, sT, sWv), "s_lshl_b32 s%d, s%d, 15" % (sT, sT), "s_lshl_b32 s%d, s%d, 8" % (sG, sG), "s_sub_u32 s%d, s%d, s%d" % (sT, sT, sG),
         "v_lshrrev_b32 v%d, 4, v%d" % (pPw, vL), "v_lshlrev_b32 v%d, 13, v%d" % (pPw, pPw),
         "v_and_b32 v%d, 15, v%d" % (vT2, vL), "v_lshl_add_u32 v%d, v%d, 7, v%d" % (pPw, vT2, pPw), "v_add_u32 v%d, s%d, v%d" % (pPw, sT, pPw)] if O.wqc else [
         "s_lshl_b32 s%d, s%d, 2" % (sT, sB), "s_add_u32 s%d, s%d, s%d" % (sT, sT, sWv), "s_lshl_b32 s%d, s%d, 18" % (sT, sT),
         "v_lshrrev_b32 v%d, 1, v%d" % (pPw, vL), "v_lshlrev_b32 v%d, 13, v%d" % (pPw, pPw),
         "v_and_b32 v%d, 1, v%d" % (vT2, vL), "v_lshl_add_u32 v%d, v%d, 7, v%d" % (pPw, vT2, pPw), "v_add_u32 v%d, s%d, v%d" % (pPw, sT, pPw)]))
    a.e(["v_lshlrev_b32 v%d, 4, v%d" % (vL16, vL),
         "v_and_b32 v%d, 15, v%d" % (vT, vL), "v_lshrrev_b32 v%d, 4, v%d" % (vT2, vL),
         "v_and_b32 v%d, 6, v%d" % (vT3, vT), "v_xor_b32 v%d, v%d, v%d" % (vT3, vT3, vT2), "v_lshlrev_b32 v%d, 4, v%d" % (vT3, vT3),
         "v_lshl_add_u32 v%d, v%d, 7, v%d" % (vT3, vT, vT3),
         "s_lshl_b32 s%d, s%d, 15" % (sT, sRH), "s_add_u32 s%d, s%d, 16384" % (sT, sT),
         "v_add_u32 v%d, s%d, v%d" % (vXr, sT, vT3), "v_xor_b32 v%d, 64, v%d" % (vXr + 1, vXr),
         "v_add_u32 v%d, 0x10000, v%d" % (vXr + 2, vXr), "v_add_u32 v%d, 0x10000, v%d" % (vXr + 3, vXr + 1)])
    a.e(["v_bfe_u32 v%d, v%d, 2, 2" % (vT, vL), "v_lshl_add_u32 v%d, v%d, 3, v%d" % (vT, vT2, vT),
         "v_and_b32 v%d, 2, v%d" % (vT3, vT), "v_lshlrev_b32 v%d, 1, v%d" % (vT3, vT3),
         "v_and_b32 v%d, 3, v%d" % (vT2, vL), "v_xor_b32 v%d, v%d, v%d" % (vT3, vT3, vT2), "v_lshlrev_b32 v%d, 4, v%d" % (vT3, vT3),
         "v_lshl_add_u32 v%d, v%d, 7, v%d" % (vT3, vT, vT3),
         "s_lshl_b32 s%d, s%d, 12" % (sT, sKH), "s_add_u32 s%d, s%d, 131072" % (sT, sT),
         "v_add_u32 v%d, s%d, v%d" % (vWr, sT, vT3), "v_xor_b32 v%d, 64, v%d" % (vWr + 1, vWr)])
    a.e(["s_mul_i32 s%d, s%d, 14" % (sT, sB), "s_mul_i32 s%d, s%d, 7" % (sG, sRH), "s_add_u32 s%d, s%d, s%d" % (sT, sT, sG),
         "s_lshl_b32 s%d, s%d, 7" % (sT, sT), "s_lshl_b32 s%d, s%d, 2" % (sG, sH), "s_add_u32 s%d, s%d, s%d" % (sT, sT, sG),
         "s_lshl_b32 s%d, s%d, 1" % (sG, sKH), "s_add_u32 s%d, s%d, s%d" % (sT, sT, sG), "s_lshl_b32 s%d, s%d, 10" % (sT, sT),
         "s_add_u32 s%d, s%d, s%d" % (sO, pWs, sT), "s_addc_u32 s%d, s%d, 0" % (sO + 1, pWs + 1),
         "s_mov_b32 s%d, %d" % (sO + 2, 6 * 131072 + 2048), "s_mov_b32 s%d, 0x20000" % (sO + 3),
         "s_mov_b32 s%d, 0x%x" % (sC, CSCALE), "s_mov_b32 s%d, 0x%x" % (sC + 1, CSCALE),
         "s_and_b32 s%d, s%d, 4" % (sPm, sB), "s_add_u32 s%d, s%d, s%d" % (sPm, sPm, sWv),
         "s_mul_i32 s%d, s%d, %d" % (sT, sRB, 7 * 131072), "s_lshl_b32 s%d, s%d, 14" % (sG, sPm), "s_add_u32 s%d, s%d, s%d" % (sT, sT, sG),
         "s_add_u32 s%d, s%d, s%d" % (sOs, pWs, sT), "s_addc_u32 s%d, s%d, 0" % (sOs + 1, pWs + 1),
         "s_mov_b32 s%d, %d" % (sOs + 2, 6 * 131072 + 16384), "s_mov_b32 s%d, 0x20000" % (sOs + 3),
         "s_lshl_b32 s%d, s%d, 20" % (sT, sPm), "s_lshl_b32 s%d, s%d, 8" % (sG, sCT), "s_add_u32 s%d, s%d, s%d" % (sT, sT, sG),
         "s_add_u32 s%d, s%d, s%d" % (sWs, pWo, sT), "s_addc_u32 s%d, s%d, 0" % (sWs + 1, pWo + 1),
         "s_sub_u32 s%d, 0x100000, s%d" % (sWs + 2, sG), "s_mov_b32 s%d, 0x20000" % (sWs + 3),
         "s_mul_i32 s%d, s%d, %d" % (sT, sRB, 112 * 2048), "s_add_u32 s%d, s%d, s%d" % (sOut, pOut, sT), "s_addc_u32 s%d, s%d, 0" % (sOut + 1, pOut + 1),
         "s_mov_b32 s%d, %d" % (sOut + 2, 112 * 2048), "s_mov_b32 s%d, 0x20000" % (sOut + 3),
         "s_xor_b32 s%d, s%d, 0x10000" % (sRing, sReg),
         "s_lshl_b32 s%d, s%d, 13" % (sSp, sWv), "s_add_u32 s%d, s%d, 131072" % (sSp, sSp),
         "s_sub_u32 s%d, s%d, s%d" % (sD1, sSp, sReg), "s_sub_u32 s%d, s%d, s%d" % (sD2, sRing, sSp)])
    for rt in range(7): a.e("s_mov_b32 s%d, %d" % (sRt + rt, rt * 131072))
    pKr, pVr, pK0, pD, pR, pQ, pFp, pFc, pWoP, pCp = PK, PK + 1, PK + 3, PK + 4, PK + 8, PK + 10, PK + 12, PK + 13, PK + 14, PK + 16
    a.e(flagp(pFp, vT2) + flagc(pFc))
    a.e(["v_bfe_u32 v%d, v%d, 2, 2" % (vT, vL), "v_sub_u32 v%d, 0, v%d" % (vT2, vT), "v_lshrrev_b32 v%d, 4, v%d" % (vT3, vL),
         "v_xor_b32 v%d, v%d, v%d" % (vT2, vT2, vT3), "v_and_b32 v%d, 3, v%d" % (vT2, vT2), "v_lshlrev_b32 v%d, 4, v%d" % (vT2, vT2),
         "v_lshl_add_u32 v%d, v%d, 10, v%d" % (vT2, vT, vT2), "v_and_b32 v%d, 3, v%d" % (pK0, vL), "v_lshlrev_b32 v%d, 6, v%d" % (pK0, pK0),
         "s_lshl_b32 s%d, s%d, 16" % (sG, sKH), "v_add3_u32 v%d, v%d, v%d, s%d" % (pKr, pK0, vT2, sG),
         "v_lshl_add_u32 v%d, v%d, 4, v%d" % (pK0, vT3, pK0),
         "v_sub_u32 v%d, 0, v%d" % (vT2, vT3), "v_bfe_u32 v%d, v%d, 1, 1" % (pVr + 1, vL), "v_xor_b32 v%d, v%d, v%d" % (vT2, vT2, pVr + 1),
         "v_and_b32 v%d, 3, v%d" % (vT2, vT2), "v_lshlrev_b32 v%d, 4, v%d" % (vT2, vT2),
         "v_lshl_add_u32 v%d, v%d, 10, v%d" % (vT2, vT3, vT2), "v_lshl_add_u32 v%d, v%d, 6, v%d" % (vT2, vT, vT2),
         "v_and_b32 v%d, 1, v%d" % (pVr + 1, vL), "v_lshl_add_u32 v%d, v%d, 3, v%d" % (vT2, pVr + 1, vT2),
         "s_add_u32 s%d, s%d, 32768" % (sG, sG), "v_add_u32 v%d, s%d, v%d" % (pVr, sG, vT2), "v_xor_b32 v%d, 32, v%d" % (pVr + 1, pVr),
         "v_add_u32 v%d, s%d, v%d" % (pR, sReg, vT2), "v_xor_b32 v%d, 32, v%d" % (pR + 1, pR),
         "v_lshlrev_b32 v%d, 6, v%d" % (vT2, vT3), "v_lshl_add_u32 v%d, v%d, 11, v%d" % (vT2, vT, vT2), "v_and_b32 v%d, 3, v%d" % (vT, vL),
         "v_lshl_add_u32 v%d, v%d, 4, v%d" % (vT2, vT, vT2), "s_lshl_b32 s%d, s%d, 5" % (sT, sPm), "v_xor_b32 v%d, s%d, v%d" % (pD, sT, vT2)])
    for j in range(1, 4): a.e(["v_xor_b32 v%d, %d, v%d" % (pD + j, ((-j) & 3) * 16, pD), "v_add_u32 v%d, %d, v%d" % (pD + j, j * (8192 - 1024), pD + j)])
    a.e(["v_add_u32 v%d, s%d, v%d" % (pQ, sMW, vL16), "s_lshl_b32 s%d, s%d, 11" % (sT, sRH), "s_add_u32 s%d, s%d, 131072" % (sT, sT), "v_add_u32 v%d, s%d, v%d" % (pQ + 1, sT, vL16),
         "s_lshl_b32 s%d, s2, 2" % sT, "s_add_u32 s%d, s%d, s%d" % (sT, sT, sWv), "s_lshl_b32 s%d, s%d, 13" % (sT, sT),
         "v_lshlrev_b32 v%d, 7, v%d" % (pWoP, vL), "v_add_u32 v%d, s%d, v%d" % (pWoP, sT, pWoP),
         "s_lshl_b32 s%d, s%d, 1" % (sOf, sRB), "s_xor_b32 s%d, s%d, s%d" % (sOf, sOf, sCT), "s_and_b32 s%d, s%d, %d" % (sOf, sOf, O.x3mask), "s_lshl_b32 s%d, s%d, 16" % (sOf, sOf)])
    cp2 = codepf("L_tr", "L_epi", pCp)
    a.e(cp2[:-1])
    a.e([
         "s_lshl_b32 s%d, s2, 15" % sT, "s_lshl_b32 s%d, s%d, 10" % (sG, sWv), "s_add_u32 s%d, s%d, s%d" % (sT, sT, sG),
         "v_and_b32 v%d, 7, v%d" % (vT3, vL), "v_lshlrev_b32 v%d, 7, v%d" % (vT3, vT3), "v_add_u32 v%d, s%d, v%d" % (vT3, sT, vT3), "s_mov_b32 s%d, 0" % sP])
    kvpf = "global_load_dword v%d, v%d, s[%d:%d]" % (vDum, vT3, pWo, pWo + 1)
    zs = [zero16(vr(ACC + 16 * i, 16)) for i in range(7)] + [zero16(vr(OK + 16 * i, 16)) for i in range(2, 7)] + [zero16(ar(aO + 16 * i, 16)) for i in range(4)]
    seg = a.L[su0:]; del a.L[su0:]
    for i_, ln in enumerate(seg):
        if i_ % 7 == 3 and zs: a.e(zs.pop(0))
        a.L.append(ln)
    assert not zs and not any("exec" in ln for ln in seg[:120])
    late = stage_loads(1) + ["buffer_load_dword v%d, v%d, s[%d:%d], 0 offen" % (vDum, pPx, sX, sX + 3), "buffer_load_dword v%d, v%d, s[%d:%d], 0 offen" % (vDum, pPw, sW, sW + 3),
                              kvpf if O.wo_at != 0 else "global_load_dword v%d, v%d, s[%d:%d]" % (vDum, pWoP, pWo, pWo + 1)]
    def kvb(v, off): return "global_load_lds_dwordx4 v%d, s[4:5] offset:%d%s" % (v, off, KVF)
    kvq = ["s_cmp_lt_u32 s%d, 4" % sP, "s_cselect_b32 s4, s%d, s%d" % (sKV, sVV), "s_cselect_b32 s5, s%d, s%d" % (sKV + 1, sVV + 1),
           "s_and_b32 s%d, s%d, 1" % (sT, sP), "s_and_b32 s%d, s%d, 2" % (sG, sP), "s_lshl_b32 s%d, s%d, 12" % (sG, sG),
           "s_lshl_b32 s%d, s%d, 16" % (sT2, sT), "s_add_u32 s%d, s%d, s%d" % (sT2, sT2, sG), "s_mul_i32 s%d, s%d, %d" % (sT, sT, KH),
           "s_mul_i32 s%d, s%d, %d" % (sG, sG, TS_ // 8192), "s_add_u32 s%d, s%d, s%d" % (sT, sT, sG),
           "v_add_u32 v%d, s%d, v%d" % (vT, sT, vKV), "v_add_u32 v%d, s%d, v%d" % (vT2, sT, vKV + 1),
           "s_and_b32 s%d, s%d, 4" % (sG, sP), "s_lshl_b32 s%d, s%d, 13" % (sG, sG), "s_add_u32 s%d, s%d, s%d" % (sT2, sT2, sG),
           "s_and_b32 s%d, s%d, 5" % (sT, sP), "s_cmp_eq_u32 s%d, 5" % sT, "s_cselect_b32 s%d, 128, 0" % sT,
           "v_xor_b32 v%d, s%d, v%d" % (vT, sT, vT), "v_xor_b32 v%d, s%d, v%d" % (vT2, sT, vT2),
           "s_add_u32 s%d, s%d, s%d" % (sT2, sT2, sMW), "s_add_u32 s%d, s%d, 1" % (sP, sP)]
    kvq_m0 = "s_sub_u32 m0, s%d, 0x20000" % sT2

    def wreg(k): return {30: 192, 31: 208}.get(k, aWF + 16 * (k & 1))
    def xreg(k, rt): return 16 * rt + 4 * (k & 3)
    def rdW(k):
        out = []
        for dt in range(4):
            dp, t = dt >> 1, dt & 1
            for sec in range(2):
                out.append("ds_read_b64_tr_b16 %s, v%d offset:%d" % (ar(wreg(k) + 4 * dt + 2 * sec, 2), vWr + dp, (k & 3) * 8192 + sec * 512 + t * 8))
        return out
    def rdX1(s, kk, rt): return "ds_read_b128 %s, v%d offset:%d" % (ar(xreg(2 * s + kk, rt), 4), vXr + 2 * (s & 1) + kk, rt * 2048)
    def rdX(s): return [rdX1(s, kk, rt) for kk in range(2) for rt in range(7)]
    def A(rt, k): return [mfma(vr(ACC + 16 * rt + 4 * dt, 4), ar(wreg(k) + 4 * dt, 4), ar(xreg(k, rt), 4), vr(ACC + 16 * rt + 4 * dt, 4)) for dt in range(4)]
    stamp(4)
    if not O.rd_first: a.e(late)
    a.e(["s_waitcnt vmcnt(%d)" % (2 if O.rd_first else 16), "s_barrier"])
    stamp(4)
    a.e(rdW(0) + rdX(0))
    if O.rd_first: a.e(late)
    a.e(["s_mov_b32 s%d, 7" % sCnt, "s_waitcnt vmcnt(14) lgkmcnt(0)", "s_barrier"])

    wopf = "global_load_dword v%d, v%d, s[%d:%d]" % (vDum, pWoP, pWo, pWo + 1)
    addr28 = ["v_mov_b32 v%d, v%d" % (240 + i, PK + i) for i in range(8)] + ["v_mov_b32 v%d, v%d" % (vR + i, pR + i) for i in range(2)]
    addr28 += ["v_mov_b32 v%d, v%d" % (vQw + i, pQ + i) for i in range(2)] + setK(2)

    def p1_kstep(km, mode, ctl=False):
        sp, kk = km >> 1, km & 1
        mf = [m_ for rt in range(7) for m_ in A(rt, km)]
        gaps = [[] for _ in range(28)]
        rd = rdW(km + 1)
        if kk == 1: rd += rdX(sp + 1)
        dm = []; nxe = O.nxe; tailops = []
        if mode == "loop":
            def xs(js):
                r = []
                for j in js:
                    if j == 4 and j != js[0]: r += [m0X(sp, 1)]
                    r.append(dmaX(j))
                return r
            if kk == 0: dm += [m0W(km), dmaW(0), dmaW(1), m0X(sp, 0)] + incW + xs(list(range(nxe)))
            else:
                if nxe < 7: dm += ([m0X(sp, 1)] if nxe == 4 else []) + xs(list(range(nxe, 7)))
                dm += [m0W(km)] + incX + [dmaW(0), dmaW(1)] + incW
                if km == 3:
                    dm += [kvq_m0]; tailops = [kvb(vT, 0), kvb(vT2, 1024), kvpf]
            endw = "s_waitcnt vmcnt(%d) lgkmcnt(0)" % ((4 + nxe + (3 if km == 0 else 0)) if kk == 0 else 14)
        elif mode == 28:
            endw = "s_waitcnt vmcnt(5) lgkmcnt(0)"
        for g, x in enumerate(rd): gaps[g].append(x)
        def place(items, lo, hi):
            g_ = lo
            for y in items:
                if y.startswith("global_load"): g_ = min(g_ + 1, hi); gaps[g_].insert(0, y); continue
                while g_ < hi and len(gaps[g_]) >= 2: g_ += 1
                gaps[g_].append(y)
        nld = sum(1 for x in dm if x.startswith("buffer_load"))
        if nld:
            pos = [1 + (i * O.p1_span) // nld for i in range(nld)]
            li = 0; pend = []; prev = -1
            for x in dm:
                if x.startswith("buffer_load"):
                    place(pend, max(prev, 0), pos[li] - 1); pend = []
                    gaps[pos[li]].insert(0, x); prev = pos[li]; li += 1
                else: pend.append(x)
            place(pend, prev, 25)
        for i_, x in enumerate(tailops): gaps[23 + i_].insert(0, x)
        if mode == "loop" and km == 2: place(kvq + (["v_add_u32 v%d, 4096, v%d" % (vT3, vT3)] if O.wo_at == 1 else []), 8, 25)
        if mode == 28:
            place(kvq + [kvq_m0], 0, 15); gaps[16].insert(0, kvb(vT, 0)); gaps[17].insert(0, kvb(vT2, 1024)); place(addr28, 18, 25)
        if endw: gaps[26].append(endw); gaps[27].append("s_barrier")
        if ctl:
            gaps[25].append("s_sub_u32 s%d, s%d, 1" % (sCnt, sCnt)); gaps[26].append("s_cmp_lg_u32 s%d, 0" % sCnt)
        weave(a, mf, gaps)
    stamp(4)
    a.raw(".p2align 5")
    a.lab("L_p1")
    for km in range(4): p1_kstep(km, "loop", ctl=(km == 3))
    a.e("s_cbranch_scc1 L_p1")
    p1_kstep(0, 28)
    stamp(4)
    a.lab("L_tr")
    a.e(["s_cmp_lg_u32 s%d, 0" % sPass, "s_cbranch_scc1 L_nofl",
         "global_load_dword v%d, v%d, s[%d:%d] sc1" % (vFc, pFc, pWs, pWs + 1),
         "s_cmp_lg_u32 s%d, 0" % sWv, "s_cbranch_scc1 L_nofl",
         "global_load_dword v%d, v%d, s[%d:%d] sc1" % (vFo, pFp, pWs, pWs + 1)])
    a.lab("L_nofl")
    def ismem(x): return x.startswith(("ds_", "buffer_", "global_", "s_barrier"))
    def spread(mf, side, lo=0, hi=None):
        n = len(mf); hi = n - 1 if hi is None else hi
        gaps = [[] for _ in range(n)]
        g = lo
        if any(isinstance(x, list) for x in side):
            n0 = [isinstance(x, list) for x in side].index(True)
            pre = side[:n0]
            gaps[lo] += pre[:-5]; gaps[lo + 1] += pre[-5:] + side[n0]
            side = side[n0 + 1:]; lo += 2; g = lo
        for i_, x in enumerate(side):
            g = max(g, lo + (i_ * (hi - lo + 1)) // len(side))
            if ismem(x) and any(y.startswith("v_") for y in gaps[g]) and g < hi: g += 1
            gaps[g].append(x)
        weave(a, mf, gaps)
    def rdK(i, slot):
        t, ks = i & 1, i >> 1
        return "ds_read_b128 %s, v%d offset:%d" % (ar(aK + 16 * t + 4 * ks, 4), vKr, slot * 8192 + t * 4096 + ks * 256)
    def xlane(op, regs_, tmp):
        out = []
        for sw in ("v_permlane32_swap_b32", "v_permlane16_swap_b32"):
            out += ["v_mov_b32 v%d, v%d" % (t_, r_) for r_, t_ in zip(regs_, tmp)]
            out += ["%s v%d, v%d" % (sw, r_, t_) for r_, t_ in zip(regs_, tmp)]
            out += ["%s v%d, v%d, v%d" % (op, r_, r_, t_) for r_, t_ in zip(regs_, tmp)]
        return out
    def qk(rt, sb):
        out = []
        for i in range(8):
            t, ks = i & 1, i >> 1
            d = vr(S + 8 * sb + 4 * t, 4)
            out.append(mfma(d, ar(aK + 16 * t + 4 * ks, 4), ar(aQ + 16 * rt + 4 * ks, 4), vr(M + 4 * rt, 4) if ks == 0 else d))
        return out
    def oacc(rt, i): return vr(OK + 16 * rt + 4 * i, 4) if i < 4 else ar(aO + 16 * rt + 4 * (i - 4), 4)
    def pv(rt, pb): return [mfma(oacc(rt, i), vr(V + 4 * i, 4), vr(P + 4 * pb, 4), oacc(rt, i)) for i in range(8)]
    aK0 = 176
    def Bq(rt):
        o = []
        if O.pkg & 2: o.append(["v_pk_mul_f32 %s, %s, s[%d:%d]" % (vr(ACC + 16 * rt + 2 * i, 2), vr(ACC + 16 * rt + 2 * i, 2), sC, sC + 1) for i in range(8)])
        for dp in range(2):
            b = ACC + 16 * rt + 8 * dp
            for i in range(4):
                if not O.pkg & 2: o += ["v_mul_f32 v%d, s%d, v%d" % (b + 2 * i, sC, b + 2 * i), "v_mul_f32 v%d, s%d, v%d" % (b + 2 * i + 1, sC, b + 2 * i + 1)]
                o.append("v_cvt_pk_bf16_f32 v%d, v%d, v%d" % (b + i, b + 2 * i, b + 2 * i + 1))
            if dp == 0: o.append("s_waitcnt lgkmcnt(0)")
            o.append("ds_write_b128 v%d, %s offset:%d" % (vQw, vr(b, 4), (rt & 3) * 8192 + dp * 1024))
        return o
    def Cq(rt): return ["ds_read_b128 %s, v%d offset:%d" % (ar(aQ + 16 * rt + 4 * ks, 4), vQr, (rt & 3) * 8192 + (ks >> 1) * 4096 + (ks & 1) * 1024) for ks in range(4)]
    def PP(rt): return [mfma(vr(M + 4 * rt, 4), ar(aK0 + 4 * ks, 4), ar(aQ + 16 * rt + 4 * ks, 4), "0" if ks == 0 else vr(M + 4 * rt, 4)) for ks in range(4)]
    def Dq(rt):
        b = M + 4 * rt
        return ["v_max3_f32 v%d, v%d, v%d, v%d" % (b, b, b + 1, b + 2), "v_max_f32 v%d, v%d, v%d" % (b, b, b + 3)] + ["v_sub_f32 v%d, 0, v%d" % (b + i, b) for i in (1, 2, 3, 0)]
    sync = ["s_waitcnt lgkmcnt(0)", "s_barrier"]
    kvs = [[ptm0(reg, sl), "s_nop 0"] + ptld(reg) + (incK if reg == 3 else []) for sl in (2, 3) for reg in PORD]
    if O.t3late: kvs = [kvs[0], [], kvs[1], [], kvs[2], [], kvs[3], []]
    pfs = ([cp2[-1]] if O.pf_code else []) + ([wopf] if O.wo_at == 29 else [])
    t1 = rdW(30) + [rdX1(15, 0, 0)] + rdW(31) + [rdX1(15, 1, 0)] + [rdX1(15, kk, rt) for rt in range(1, 7) for kk in range(2)]
    spread([m_ for rt in range(5) for m_ in A(rt, 29)], t1 + pfs + sync, 0, 19)
    stamp(1)
    for i in range(8):
        mf = (A(i, 30) + A(i, 31) if i < 7 else qk(0, 0)) + (A(5 + i, 29) if i < 2 else PP(i - 2))
        side = []
        if i == 0: mf += [zero16(vr(OK, 16)), zero16(vr(OK + 16, 16))]
        if i == 0: side += ["ds_read_b128 %s, v%d offset:%d" % (ar(aK0 + 4 * ks, 4), vK0, ks * 256) for ks in range(4)]
        bq = Bq(i - 1) if i >= 1 else []
        nb = O.nb if i >= 2 else 0
        if nb:
            bq = [x for x in bq if not x.startswith("s_waitcnt")]
            w0 = [x for x in bq if x.startswith("ds_write")][0]; bq.remove(w0)
            bq = bq[:18] + ["s_waitcnt lgkmcnt(0)", w0] + bq[18:]
        side += bq[:nb]
        if i >= 2: side += sync + Cq(i - 2)
        if i in (3, 4): side += [rdK(j, 0) for j in range(4 * (i - 3), 4 * (i - 2))]
        side += bq[nb:]
        if i >= 3: side += Dq(i - 3)
        if i == 7: side += ["v_mov_b32 v%d, 0" % j for j in range(L, L + 4)] + ["s_mov_b32 s%d, 3" % sCnt]
        side += kvs[i]
        spread(mf, side)
    if O.ts: a.e(["s_mov_b32 s81, 0", "v_mov_b32 v252, 0"])
    a.e(["s_cmp_lg_u32 s%d, 0" % sPass, "s_cbranch_scc1 L_maxpass"])
    stamp(1)
    NA = 0

    def dma3(j): return "buffer_load_dwordx4 v%d, s[%d:%d], s%d offen offset:%d %s lds" % (vD + j, sWs, sWs + 3, sWo, j * 1024, O.w3f)
    def setWo(u): return "s_xor_b32 s%d, s%d, 0x%x" % (sWo, sOf, u * 32768)
    def wset(n): return (0, 32, 64, 224)[n & 3]
    def rd3(k, off, dts=range(8)):
        return ["ds_read_b64_tr_b16 %s, v%d offset:%d" % (ar(wset(k) + 4 * dt + 2 * sec, 2), vR + (dt & 1), off + (dt >> 1) * 256 + sec * 4096) for dt in dts for sec in range(2)]
    def xw(rt): return ["ds_write_b128 v%d, %s offset:%d" % (vTa, ar(aO + 16 * rt + 4 * i, 4), rt * 4096 + i * 1024) for i in range(4)]
    vm = VM(["kv"])
    sDyn, sDd = 10, 11
    KV = " ;kv"
    def dm0(reg): return "s_add_u32 m0, s%d, %d" % (sDyn, reg * 32768)
    incD = incK + ["s_add_u32 s%d, s%d, 8192" % (sDyn, sDyn), "s_and_b32 s%d, s%d, 0x7fff" % (sDyn, sDyn)]
    initD = ["s_sub_u32 s%d, s%d, 0x20000" % (sDyn, sMW), "s_mov_b32 s%d, %d" % (sDd, O.th)]
    vFp, vFa = 239, 252
    def loff(rt): return 28672 + (rt & 3) * 4 + (rt >> 2) * 1024
    def lw(rt): return "ds_write_b32 v%d, v%d offset:%d" % (vTa, L + rt, loff(rt))
    def rdc(rt, pb): return ["ds_read_b32 v%d, v%d offset:%d" % (E2 + 2 + (rt & 1), vTb, loff(rt))] + ["ds_read_b128 %s, v%d offset:%d" % (vr(pb + 4 * i, 4), vTb, (rt * 4 + i) * 1024) for i in range(4)]
    def comb(rt, pb):
        ob = OK + 16 * rt; t = E2 + 2 + (rt & 1)
        return (["v_add_f32 v%d, v%d, v%d" % (t, t, L + rt), "v_rcp_f32 v%d, v%d" % (t, t)] + ["v_add_f32 v%d, v%d, v%d" % (ob + i, ob + i, pb + i) for i in range(16)]
                + [x for i in range(8) for x in ("v_mul_f32 v%d, v%d, v%d" % (ob + 2 * i, ob + 2 * i, t), "v_mul_f32 v%d, v%d, v%d" % (ob + 2 * i + 1, ob + 2 * i + 1, t),
                                                 "v_cvt_pk_bf16_f32 v%d, v%d, v%d" % (ob + i, ob + 2 * i, ob + 2 * i + 1))])
    def combp(rt, pb):
        ob = OK + 16 * rt; t = E2 + 2
        o = ["v_add_f32 v%d, v%d, v%d" % (t + (rt & 1), t + (rt & 1), L + rt), "v_rcp_f32 v%d, v%d" % (t + (rt & 1), t + (rt & 1))]
        o += ["v_pk_add_f32 %s, %s, %s" % (vr(ob + 2 * i, 2), vr(ob + 2 * i, 2), vr(pb + 2 * i, 2)) for i in range(8)]
        o += ["v_pk_mul_f32 %s, %s, %s %s" % (vr(ob + 2 * i, 2), vr(ob + 2 * i, 2), vr(t, 2), "op_sel:[0,1]" if rt & 1 else "op_sel_hi:[1,0]") for i in range(8)]
        return o + ["v_cvt_pk_bf16_f32 v%d, v%d, v%d" % (ob + i, ob + 2 * i, ob + 2 * i + 1) for i in range(8)]
    def ost(rt): return ["buffer_store_dwordx4 %s, v%d, s[%d:%d], s%d offen offset:%d sc1" % (vr(OK + 16 * rt + 4 * p, 4), vL16, sO, sO + 3, sRt + rt, p * 1024) for p in range(2)]
    pend = []; cost = [0]
    def step(js, r, last=False, first=False, kv=False, ctl=False):
        u = 7 * js + r
        fin = last and js == 3
        mf = ([] if (fin and r == 6) else qk((r + 1) % 7, (u + 1) & 1)) + pv((r + 6) % 7, (u + 1) & 1)
        mem = [[] for _ in range(16)]; val = [[] for _ in range(16)]
        pk = not fin and not (first and r == 0)
        Eb = E2 if (pk and u & 1) else E
        for e in range(8):
            val[2 * e].append("v_exp_f32 v%d, v%d" % (Eb + e, S + 8 * (u & 1) + e))
            if not pk: val[2 * e + 1].append("v_add_f32 v%d, v%d, v%d" % (L + r, L + r, Eb + e))
            if e & 1: val[2 * e + 1].append("v_cvt_pk_bf16_f32 v%d, v%d, v%d" % (P + 4 * (u & 1) + (e >> 1), Eb + e - 1, Eb + e))
        if first and r == 0:
            mf = mf[:8] + PP(6) + [zero16(ar(192, 16)), zero16(ar(208, 16))]
            mem[0] += sync + Cq(6)[:2]; mem[1] += Cq(6)[2:]; mem[7].append("s_waitcnt lgkmcnt(0)")
            for i_, x in enumerate(Dq(5)): val[3 + 2 * i_].append(x)
        if first and r == 1:
            for i_, x in enumerate(Dq(6) + ["v_mov_b32 v%d, 0" % j for j in range(L + 4, L + 7)]): val[1 + 4 * (i_ % 4)].append(x) if i_ >= 6 else val[1 + 2 * i_].append(x)
        if first and r == 2: mem[9].append(zero16(ar(176, 16)))
        if first and r == 3: mem[1].append(initD[0]); mem[5].append(initD[1])
        if O.pf3 and first and r == 4:
            for i_, x in enumerate(codepf("L_last", "L_go", 250)[:-1]): val[1 + 2 * i_].append(x)
        if O.pf3 and not first and not last and js == O.pf3 % 4 and r == 1: mem[9].append(codepf("L_last", "L_go", 250)[-1])
        vrd = ["ds_read_b64_tr_b16 %s, v%d offset:%d" % (vr(V + 4 * i + 2 * sec, 2), vVr + (i & 1), js * 8192 + (i >> 1) * 256 + sec * 4096) for i in range(8) for sec in range(2)]
        if not fin and not first:
            if r == 0: mem[9] += vrd[0:3]; mem[11] += vrd[3:5]; mem[13] += vrd[5:8]; mem[15] += vrd[8:10]
            if r == 1:
                mem[1] += vrd[10:12]; mem[3] += vrd[12:14]; mem[5] += vrd[14:16]
                mem[7].append("s_waitcnt lgkmcnt(4)"); mem[13].append("s_waitcnt lgkmcnt(0)")
        else:
            if r == 0:
                for i in range(16): mem[8 + i // 2].append(vrd[i])
            if r == 1: mem[5].append("s_waitcnt lgkmcnt(%d)" % (5 if fin else 0))
        if r == 5 and not fin: mem[0].append("s_barrier")
        if r == 4 and not last: mem[13] += ["s_getreg_b32 s%d, hwreg(HW_REG_IB_STS, 0, 4)" % sT2]; mem[15].append("s_waitcnt vmcnt(8)")
        if r == 4 and ctl: mem[9].append("s_sub_u32 s%d, s%d, 1" % (sCnt, sCnt)); mem[11].append("s_cmp_lg_u32 s%d, 0" % sCnt)
        if kv:
            pts = [tuple(int(y) for y in x.split(".")) for x in O.pts.split(",")]
            pos = [((pr_ - 5) % 7) * 16 + pg_ for pr_, pg_ in pts]
            here = ((r - 5) % 7) * 16
            def put(p_, xs):
                if here <= p_ < here + 16: mem[p_ - here] += [x + KV for x in xs]
            for n_ in range(4):
                put(pos[n_] - 2, [dm0(PORD[n_])]); put(pos[n_], ptld(PORD[n_]))
            put(pos[3] + 2, incD[0:2]); put(pos[3] + 4, incD[2:4])
        if last:
            sched = {(0, 6): 0, (1, 1): 6, (1, 3): 1, (1, 6): 7, (2, 0): 2, (2, 2): 3, (2, 5): 4, (3, 0): 5}
            if (js, r) in sched:
                k = sched[(js, r)]
                base, off = (sReg, k * 4096) if k < 6 else (sSp, (k - 6) * 4096)
                g0 = (9, 11, 13, 15) if r == 5 else ((1, 3, 5, 7) if r == 0 else (1, 5, 9, 13))
                mem[g0[0] - 1] += ["s_add_u32 m0, s%d, %d" % (base, off), setWo(k)]
                for j in range(4): mem[g0[j]].append(("w%d" % k, dma3(j)))
            if r == 4 and js == 1: mem[13].append(("wait8", "kv"))
            if r == 4 and js == 2: mem[13].append(("wait", "kv"))
            if r == 5 and js < 1:
                mem[11].append("s_cmp_ge_u32 s%d, %d" % (sK0, 16 * TS_))
                mem[13].append(("kv", ["s_cbranch_scc1 L_ok%d" % js] + [x for reg in PORD for x in [dm0(reg), "s_nop 0"] + ptld(reg)] + incD + ["L_ok%d:" % js]))
            if js == 2 and r == 3 and O.pf_code:
                pf = codepf("L_epi", "L_end", vT)
                for i_, x in enumerate(pf[:-1]): val[1 + 2 * i_].append(x)
                mem[15].append(("pf", pf[-1]))
            if js == 1 and r == 2:
                val[1] += ["v_add_u32 v%d, s%d, v%d" % (vTa, sReg, vL16)]; val[5] += ["v_add_u32 v%d, s%d, v%d" % (vTb, sRing, vL16)]
            if js == 1 and r == 4:
                for i_, x in enumerate(flagp(vFp, vT2)): val[1 + 2 * (i_ // 4)].append(x)
            if js == 2 and r == 1:
                for i_, x in enumerate(["s_lshr_b32 s%d, s%d, 6" % (sT, sOf), "v_add_u32 v248, s%d, v%d" % (sT, vL16), "v_add_u32 v%d, 1, v%d" % (vFo, vFo)]): val[9 + 2 * i_].append(x)
            if js == 2 and r == 4:
                fc = flagc(vFa)
                for i_, x in enumerate(fc[:-3]): val[1 + 2 * (i_ // 2)].append(x)
                val[11] += fc[-3:]
            if fin:
                h2 = 8 if 2 <= r < 6 else 0
                if r < 6:
                    if r % 2 == 0: mem[h2] += [("wait", "w%d" % r), ("wait", "w%d" % (r + 1))]
                if r == 1: mem[9].append("s_barrier")
                g1 = list(range(0, 8)) if r < 6 else [8, 8, 9, 9, 10, 10, 11, 11]
                g2 = list(range(8, 16)) if r < 6 else [12, 12, 13, 13, 14, 14, 15, 15]
                if r >= 3: mem[g1[0]].append("s_waitcnt lgkmcnt(0)")
                if r >= 2:
                    for i_, x in enumerate(xw(r - 2) + [lw(r - 2)]): mem[g1[1 + i_]].append(x)
                    mem[g2[0]] += sync
                    for i_, x in enumerate(rdc(r - 2, 128)): mem[g2[(i_ + 1) // 2]].append(x)
                if r < 6:
                    for i_, x in enumerate(rd3(r >> 1, (r >> 1) * 8192, range(4 * (r & 1), 4 * (r & 1) + 4))): mem[h2 + (i_ if h2 == 0 else 3 + i_ // 2)].append(x)
                else:
                    mem[8] += [("wait", "w6"), ("wait", "w7")]
                    for i_, x in enumerate(rd3(3, 0)): mem[8 + i_ // 2].append(x)
                vg = r < 6
                if r >= 3:
                    if O.pkg & 1:
                        cb = combp(r - 3, 128)
                        val[1] += cb[:2]; late3 = cb[2:10]; late7 = cb[10:18]
                        for i_, x in enumerate(cb[18:]): val[8 + (i_ * 6) // 8].append(x)
                    else:
                        cb = comb(r - 3, 128)
                        for i_, x in enumerate(cb[:18]): val[(i_ * 8) // 18].append(x)
                        for i_, x in enumerate(cb[18:]): val[8 + (i_ * 6) // 24].append(x)
                    mem[15] += [("st", x) for x in ost(r - 3)]
                    if O.wfin and r >= 4:
                        u_ = 8 + r - 4
                        mem[g1[0]] += ["s_add_u32 m0, s%d, %d" % (sRing, (u_ & 7) * 4096), setWo(u_)]
                        for j in range(4): mem[g1[2 + j]].append(("w%d" % u_, dma3(j)))
                if r >= 1:
                    for i_, x in enumerate(xlane("v_add_f32", [L + r - 1], [E2])): val[3 + 2 * i_].append(x)
                if r >= 3 and O.pkg & 1: val[3] += late3 + late7
                if r == 5: val[15] += ["v_add_u32 v%d, s%d, v%d" % (vR + i, sD1, vR + i) for i in range(2)]
        if r == 5 and not fin:
            for i in range(8): mem[(1, 1, 3, 5, 5, 7, 9, 9)[i]].append(rdK(i, (js + 1) & 3))
            mem[15].insert(0, "s_waitcnt lgkmcnt(0)")
            if O.ts: mem[11] += TS_A; mem[15] += TS_B
        if fin and r == 6:
            mem = [mem[8 + i] for i in range(8)]
            val = [val[2 * i] + val[2 * i + 1] for i in range(8)]
            val = [[v_[0], "s_nop 0"] + v_[1:] for v_ in val]
            a.e("s_nop 1")
        if first and r == 0:
            mem = mem[:12] + [mem[12] + mem[13], mem[14] + mem[15]]
            val = val[:12] + [val[12] + ["s_nop 0"] + val[13], val[14] + ["s_nop 0"] + val[15]]
        if pk:
            flush = r == 4 or (last and js == 2 and r == 6)
            old_ = len(pend)
            for g in range(1, 16, 2):
                pend.append("v_add_f32 v%d, v%d, v%d" % (L + r, L + r, Eb + g // 2))
                n_ = max(0, 2 - len(mem[g]) - len(val[g]))
                if g == 15: n_ = max(n_, len(pend) if flush else old_)
                n_ = min(n_, len(pend))
                val[g] += pend[:n_]; del pend[:n_]; old_ = max(0, old_ - n_)
        else: assert not pend
        if O.padn and pk:
            for i_ in range(O.padn): val[2 * i_].append("s_nop 0")
        for g_, v_ in zip(mem, val): cost[0] += max(16, 8 + sum(8 if (isinstance(x, str) and "v_exp" in x) else 4 for x in g_ + v_))
        if r == 4:
            if O.verbose: print("unit ending", js, last, first, "model cycles", cost[0], file=sys.stderr)
            cost[0] = 0
        for m_, g_, v_ in zip(mf, mem, val):
            a.e(m_)
            for x in g_:
                if isinstance(x, tuple):
                    if x[0] == "wait": a.e("s_waitcnt vmcnt(%d)" % vm.n(x[1]))
                    elif x[0] == "wait8": a.e("s_waitcnt vmcnt(%d)" % (vm.n(x[1]) + 8))
                    elif x[0] == "kv": vm.issue("kv", True); a.e(x[1])
                    else: vm.issue(x[0]); a.e(x[1])
                else: a.e(x)
            a.e(v_)
    for r in range(5): step(0, r, first=True)
    quiet = []
    a.raw(".p2align 5")
    a.lab("L_loop")
    for js in range(4):
        if O.force_skip & (1 << js): a.e("s_or_b32 s%d, s%d, 15" % (sT2, sT2))
        a.e(["s_cmp_gt_u32 s%d, s%d" % (sT2, sDd), "s_cbranch_scc1 L_h%d" % js])
        a.lab("L_u%d" % js)
        q0 = len(a.L)
        for r in (5, 6): step(js, r, kv=True)
        step((js + 1) & 3, 0, kv=True)
        qe = max(i_ for i_ in range(q0, len(a.L)) if a.L[i_].endswith(KV)) + 1
        quiet.append([ln for ln in a.L[q0:qe] if not ln.endswith(KV)])
        a.L.insert(qe, "L_j%d:" % js)
        for r in range(1, 5): step((js + 1) & 3, r, ctl=(js == 3))
    a.e(["s_cbranch_scc1 L_loop", "s_branch L_last"])
    for js in range(4):
        a.lab("L_h%d" % js)
        a.e("s_mov_b32 s%d, 99" % sDd)
        a.L += quiet[js]
        a.e("s_branch L_j%d" % js)
    a.lab("L_last")
    for r in (5, 6): step(0, r, last=True)
    for js in range(1, 4):
        for r in range(7): step(js, r, last=True)
    stamp()

    a.lab("L_epi")
    misc = ["v_add_f32 v%d, v%d, v%d" % (vTc, L, L + 1)] + ["v_add_f32 v%d, v%d, v%d" % (vTc, vTc, L + i) for i in range(2, 7)]
    misc += ["s_mov_b32 s%d, 0x%x" % (sT, THR if not O.force_slow else 0), "s_lshl_b32 s%d, s%d, 2" % (sG, sWv),
             "v_cmp_ngt_f32 vcc, s%d, v%d" % (sT, vTc),
             "s_add_u32 s%d, s%d, 30720" % (sG, sG), "v_mov_b32 v%d, s%d" % (vT, sG),
             "s_cmp_lg_u64 vcc, 0", "s_cselect_b32 s%d, 1, 0" % sT, "v_mov_b32 v%d, 30720" % vT2, "v_mov_b32 v%d, s%d" % (L + 7, sT)]
    xl = xlane("v_add_f32", [L + 6], [E2])
    pvl = pv(6, 1); pvl = pvl[4:] + pvl[:4]
    gp = [[] for _ in range(8)]
    for i_, x in enumerate(xw(5) + [lw(5)]): gp[2 + i_].append(x)
    for i_, x in enumerate(misc): gp[(i_ * 8) // len(misc)].append(x)
    for i_, x in enumerate(xl): gp[2 + i_].append(x)
    a.e(["s_waitcnt lgkmcnt(0)", "s_nop 0"])
    weave(a, pvl, gp)
    a.e(xw(6) + [lw(6), "ds_write_b32 v%d, v%d" % (vT, L + 7)])
    def stores(rt):
        for x in ost(rt): vm.issue("st"); a.e(x)
    c4 = combp(4, 128)
    a.e(c4[:18] + sync)
    stamp(2)
    a.e(["ds_read_b128 %s, v%d" % (vr(216, 4), vT2)] + rdc(5, 144) + rdc(6, 160) + c4[18:])
    stores(4)
    a.e(["v_add_u32 v%d, s%d, v%d" % (vR + i, sD2, vR + i) for i in range(2)])
    a.e(["s_waitcnt lgkmcnt(5)", "v_or3_b32 v216, v216, v217, v218", "v_or_b32 v216, v216, v219"] + combp(5, 144) + ["v_readfirstlane_b32 s%d, v216" % sT])
    stores(5)
    a.e(["s_waitcnt lgkmcnt(0)"] + combp(6, 160))
    stores(6)
    a.e(["s_andn2_b32 s%d, s%d, s%d" % (sT, sT, sPass), "s_cbranch_scc1 L_slow"])
    def wload(k, j):
        if j == 0: a.e(["s_add_u32 m0, s%d, %d" % (sRing, (k & 7) * 4096), setWo(k)])
        vm.issue("w%d" % k); a.e(dma3(j))
    wi = 12 if O.wfin else 0
    stamp(2)
    ACC3, OF = 16, 128
    vS, vOo, vOut, vPs = 6, 248, 249, 250
    def acc3(rt, sl):
        hb, wv = sl >> 2, sl & 3
        return vr(ACC3 + 16 * rt + 4 * (2 * hb + wv), 4) if wv < 2 else ar(112 + 16 * rt + 4 * (2 * hb + wv - 2), 4)
    for _ in range(min(O.w_late, 28 - wi)): wload(8 + wi // 4, wi % 4); wi += 1
    a.e(["s_lshl_b32 s%d, s%d, 5" % (sT, sB), "s_add_u32 s%d, s%d, s%d" % (sT, sT, sH), "v_mov_b32 v%d, s%d" % (vT2, sT), "v_mov_b32 v%d, 1" % vT3,
         "v_xor_b32 v243, 0x80, v%d" % vT2, "v_mov_b32 v241, v%d" % vFa,
         "s_lshr_b32 s%d, s%d, 1" % (sT, sRB), "s_lshl_b32 s%d, s%d, 5" % (sT, sT), "s_lshl_b32 s%d, s%d, 2" % (sG, sPm), "s_add_u32 s%d, s%d, s%d" % (sT, sT, sG),
         "v_mov_b32 v242, s%d" % sT, "s_mov_b32 s%d, 0x40000" % sCnt])
    a.e(["s_waitcnt vmcnt(%d)" % vm.n("st"), "s_barrier"])
    stamp(2)
    if O.stamps: a.e("s_memrealtime s[6:7]")
    a.e(["s_cmp_lg_u32 s%d, 0" % sWv, "s_cbranch_scc1 L_noflag",
         "s_mov_b64 exec, 0xfffff", "global_store_dword v%d, v%d, s[%d:%d] sc1" % (vFp, vFo, pWs, pWs + 1),
         "s_mov_b64 exec, 1", "global_store_byte v%d, v%d, s[%d:%d] sc1" % (vT2, vT3, pDbg, pDbg + 1), "s_mov_b64 exec, -1"])
    a.lab("L_noflag")
    stamp(2)
    def wpieces(lo, hi):
        out = []
        for p_ in range(lo, hi):
            u, j = 8 + p_ // 4, p_ % 4
            out.append((["s_add_u32 m0, s%d, %d" % (sRing, (u & 7) * 4096), setWo(u)] if j == 0 else [], ("w%d" % u, dma3(j))))
        return out
    if O.dynw:
        a.e(["s_mov_b64 exec, 31", "global_load_dword v%d, v241, s[%d:%d] sc1" % (vT, pWs, pWs + 1), "s_waitcnt vmcnt(0)", "v_cmp_eq_u32 vcc, v%d, v%d" % (vT, vFc), "s_nop 0", "s_cbranch_vccz L_go", "s_mov_b64 exec, -1"])
        for pre, op in wpieces(wi, 32): a.e(pre + [op[1]])
    a.e("s_mov_b64 exec, 31")
    a.lab("L_poll")
    a.e(["global_load_dword v%d, v241, s[%d:%d] sc1" % (vT, pWs, pWs + 1), "s_sub_u32 s%d, s%d, 1" % (sCnt, sCnt), "s_cbranch_scc1 L_go",
         "s_waitcnt vmcnt(0)", "v_cmp_eq_u32 s[%d:%d], v%d, v%d" % (sC, sC + 1, vT, vFc), "s_nop 0", "s_cmp_eq_u64 s[%d:%d], 0" % (sC, sC + 1), "s_cbranch_scc1 L_go",
         "s_and_b32 s%d, s%d, 15" % (sT, sCnt), "s_cbranch_scc1 L_poll",
         "global_load_dword v%d, v242, s[%d:%d] sc1" % (vT, pDbg, pDbg + 1), "global_load_ubyte v%d, v243, s[%d:%d] sc1" % (vT2, pDbg, pDbg + 1), "s_waitcnt vmcnt(0)",
         "v_add_u32 v%d, v%d, v%d" % (vT, vT, vT2), "s_nop 0", "v_readfirstlane_b32 s%d, v%d" % (sT, vT),
         "s_nop 0", "s_cmp_eq_u32 s%d, 0x01010102" % sT, "s_cbranch_scc0 L_poll"])
    a.lab("L_go")
    a.e("s_mov_b64 exec, -1")
    if O.wggo: a.e("s_barrier")
    stamp()
    if O.stamps: a.e(["s_memrealtime s[4:5]", "s_sub_u32 s10, 0x40000, s11"])
    def ldO(rt, k): return "buffer_load_dwordx4 %s, v%d, s[%d:%d], s%d offen sc1" % (vr(OF + 28 * (k & 3) + 4 * rt, 4), vOo, sOs, sOs + 3, sRt + rt)
    def incO(k): return "v_xor_b32 v%d, 0x%x, v%d" % (vOo, (k ^ (k + 1)) << 10, vOo)
    for k in range(2):
        for rt in range(7): vm.issue("o%d" % k); a.e(ldO(rt, k))
        a.e(incO(k))
    a.e(["v_add_u32 v%d, s%d, v%d" % (vS, sRing, vL16)])
    for i in range(1, 4): a.e(["v_xor_b32 v%d, 0x%x, v%d" % (vS + i, i << 15, vS)])
    a.e(["v_and_b32 v%d, 15, v%d" % (vT, vL), "v_lshrrev_b32 v%d, 4, v%d" % (vT2, vL), "v_lshlrev_b32 v%d, 3, v%d" % (vT2, vT2),
         "v_lshl_add_u32 v%d, v%d, 11, v%d" % (vT, vT, vT2),
         "s_lshl_b32 s%d, s%d, 8" % (sT, sCT), "s_lshl_b32 s%d, s%d, 5" % (sG, sPm), "s_add_u32 s%d, s%d, s%d" % (sT, sT, sG),
         "v_add_u32 v%d, s%d, v%d" % (vOut, sT, vT)] + boxaddr(vPs) + ["v_xor_b32 v%d, 0x8000, v%d" % (vPs + 1, vPs)])
    a.e(["s_waitcnt vmcnt(%d)" % (vm.n("o0") + 6)])
    def redw(rt, hb, wv): return "ds_write_b128 v%d, %s offset:%d" % (vS, acc3(rt, 4 * hb + wv), (wv - 1) * 7168 + rt * 1024)
    def redr(rt, wv, d): return "ds_read_b128 %s, v%d offset:%d" % (vr(d, 4), vS + wv, (wv - 1) * 7168 + rt * 1024)
    def mf3(rt, sl, k): return mfma(acc3(rt, sl), ar(wset(k) + 4 * sl, 4), vr(OF + 28 * (k & 3) + 4 * rt, 4), acc3(rt, sl) if k else "0")
    def emit(mf, gaps):
        for m_, g_ in zip(mf, gaps):
            a.e(m_)
            for x in g_:
                if isinstance(x, tuple):
                    if x[0] == "wait": a.e("s_waitcnt vmcnt(%d)%s" % (min(vm.n(t_) for t_ in x[1]), " lgkmcnt(0)" if x[2] else ""))
                    elif x[0] == "wait0": a.e("s_waitcnt vmcnt(%d)" % (vm.n("o0") + x[1]))
                    elif isinstance(x[1], list):
                        nsk[0] += 1
                        for _ in range(4): vm.issue(x[0], True)
                        a.e(["s_cbranch_vccnz L_sk%d" % nsk[0]] + x[1]); a.lab("L_sk%d" % nsk[0])
                    elif (O.dbg3 & 1 and x[0][0] == "w") or (O.dbg3 & 2 and x[0][0] == "o" and int(x[0][1:]) > 3): vm.issue(x[0])
                    else: vm.issue(x[0]); a.e(x[1])
                elif O.dbg3 & 4 and x.startswith("ds_read_b64"): pass
                else: a.e(x)
    nsk = [0]
    ws0, ws1 = 2, O.ws1
    pstep = [ws0 + (p_ * (ws1 - ws0)) // 64 for p_ in range(64)]
    rstep = {m_: m_ - 3 for m_ in range(4, 8)}
    for m_ in range(8, 16):
        rstep[m_] = max(m_ - 3, pstep[8 * (m_ - 8) + 7] + 2)
        assert pstep[8 * (m_ - 8)] > rstep[m_ - 4] and rstep[m_] <= min(m_ - 1, 13) and (m_ == 15 or rstep[m_] <= 12), m_
    for k in range(13):
        mf = [mf3(rt, sl, k) for rt in range(7) for sl in range(8)]
        gaps = [[] for _ in range(56)]
        rds = [m_ for m_ in rstep if rstep[m_] == k]
        for g, x in enumerate([y for m_ in rds for y in rd3(m_, (m_ & 3) * 8192)]): gaps[g].append(x)
        wl = []
        if k < 3:
            assert wi % 4 == 0 and wi >= 8 and O.dynw
            us = list(range(wi // 4, 8)); us = us[(len(us) * k) // 3:(len(us) * (k + 1)) // 3]
            wl = [([], ("w%d" % (8 + u_), [y for pre, op in wpieces(4 * u_, 4 * u_ + 4) for y in pre + [op[1]]])) for u_ in us]
        ps_ = [p_ for p_ in range(64) if pstep[p_] == k]
        if ps_: wl += wpieces(32 + ps_[0], 32 + ps_[-1] + 1)
        ol = [([], ("o%d" % kk_, ldO(rt, kk_))) + ((incO(kk_),) if rt == 6 else ()) for kk_ in ([2, 3] if k == 0 else [k + 3]) for rt in range(7)]
        ld = sorted([((i_ + 0.5) / len(wl), x) for i_, x in enumerate(wl)] + [((i_ + 0.25) / len(ol), x) for i_, x in enumerate(ol)], key=lambda t_: t_[0])
        for i_, (_, x) in enumerate(ld):
            g = 1 + (i_ * 53) // len(ld)
            gaps[g - 1] += x[0]; gaps[g].insert(0, x[1])
            if len(x) > 2: gaps[g].append(x[2])
        if k == 0:
            for rt in range(1, 7): gaps[8 * rt - 1].append(("wait0", 6 - rt))
        need_ = ["o%d" % (k + 1)] + ["w%d" % (2 * m_ + 1) for m_ in rstep if rstep[m_] == k + 1]
        gaps[55].append(("wait", need_, bool(rds)))
        emit(mf, gaps)
    mf = [mf3(rt, 4 * hb + wv, k) for hb in (1, 0) for k in (13, 14, 15) for rt in range(7) for wv in range(4)]
    gaps = [[] for _ in range(168)]
    if rstep[15] == 13:
        for g, x in enumerate(rd3(15, 3 * 8192)): gaps[g].append(x)
    gaps[27].append(("wait", ["o14"], False)); gaps[55].append(("wait", ["o15"], True))
    for rt in range(7):
        for wv in range(1, 4): gaps[56 + 4 * rt + wv + 8].append(redw(rt, 1, wv))
    gaps[94].append("s_waitcnt lgkmcnt(0)"); gaps[95].append("s_barrier")
    def tmp1(rt, wv): return (ACC3 + 16 * rt + 12, OF + 4 * rt, OF + 28 + 4 * rt)[wv - 1]
    for rt in range(7):
        g = 96 + 4 * rt
        gaps[g] += [redr(rt, 1, tmp1(rt, 1)), redr(rt, 2, tmp1(rt, 2))]; gaps[g + 1].append(redr(rt, 3, tmp1(rt, 3)))
    for rt in range(7):
        g = 96 + 4 * rt + 6; b = ACC3 + 16 * rt + 8
        gaps[g - 1].append("s_waitcnt lgkmcnt(%d)" % (3 if rt < 6 else 0))
        ads = ["v_add_f32 v%d, v%d, v%d" % (b + i, b + i, tmp1(rt, 1) + i) for i in range(4)]
        ads += ["v_add_f32 v%d, v%d, v%d" % (tmp1(rt, 2) + i, tmp1(rt, 2) + i, tmp1(rt, 3) + i) for i in range(4)]
        ads += ["v_add_f32 v%d, v%d, v%d" % (b + i, b + i, tmp1(rt, 2) + i) for i in range(4)]
        gaps[g] += ads[0:4]; gaps[g + 1] += ads[4:8]; gaps[g + 2] += ads[8:10]; gaps[g + 3] += ads[10:12]
        gaps[g + 4].insert(0, ("ps", "global_store_dwordx4 v%d, %s, s[%d:%d] offset:%d sc1" % (vPs + 1, vr(b, 4), pWs, pWs + 1, rt * 1024 - 3072)))
    gaps[132].append("s_barrier")
    gaps[134].append("v_add_u32 v%d, 1, v%d" % (vT2, vFc))
    gaps[O.f2gap] += ["s_waitcnt vmcnt(0)", "s_mov_b64 exec, 64", "global_store_dword v241, v%d, s[%d:%d] sc1" % (vT2, pWs, pWs + 1), "s_mov_b64 exec, -1"]
    lastw = []
    for rt in range(7):
        for wv in range(1, 4):
            g2 = 140 + 4 * rt + wv + 8
            if g2 < 168: gaps[g2].insert(0, redw(rt, 0, wv))
            else: lastw.append(redw(rt, 0, wv))
    emit(mf, gaps)
    stamp()
    PB = OF + 84
    ldP = ["global_load_dwordx4 %s, v%d, s[%d:%d] offset:%d sc1" % (vr(PB + 4 * rt, 4), vPs, pWs, pWs + 1, rt * 1024 - 3072) for rt in range(7)]
    pl2 = "global_load_dword v%d, v241, s[%d:%d] sc1" % (vT, pWs, pWs + 1)
    a.e(["s_mov_b64 exec, 32", pl2, "s_mov_b64 exec, -1"] + lastw[:3] + ["s_nop 1"] + lastw[3:] + ["s_mov_b32 s%d, 0x40000" % sCnt, "s_waitcnt lgkmcnt(0)", "s_barrier"])
    for rt in range(7):
        for wv in range(1, 4): a.e(redr(rt, wv, OF + 12 * rt + 4 * (wv - 1)))
    a.e("s_mov_b64 exec, 32")
    a.lab("L_poll2")
    a.e(["s_waitcnt vmcnt(0)", "v_cmp_eq_u32 vcc, v%d, v%d" % (vT, vFc), "s_sub_u32 s%d, s%d, 1" % (sCnt, sCnt), "s_cbranch_vccz L_go2", "s_cbranch_scc1 L_go2", pl2, "s_branch L_poll2"])
    a.lab("L_go2")
    a.e(["s_mov_b64 exec, -1"] + ldP)
    for rt in range(7):
        a.e("s_waitcnt lgkmcnt(%d)" % min(15, 3 * (6 - rt)))
        b = ACC3 + 16 * rt; t = OF + 12 * rt
        for h in range(2):
            a.e("v_pk_add_f32 %s, %s, %s" % (vr(b + 2 * h, 2), vr(b + 2 * h, 2), vr(t + 2 * h, 2)))
            a.e("v_pk_add_f32 %s, %s, %s" % (vr(t + 4 + 2 * h, 2), vr(t + 4 + 2 * h, 2), vr(t + 8 + 2 * h, 2)))
        for h in range(2): a.e("v_pk_add_f32 %s, %s, %s" % (vr(b + 2 * h, 2), vr(b + 2 * h, 2), vr(t + 4 + 2 * h, 2)))
    for rt in range(7):
        b = ACC3 + 16 * rt; t = PB + 4 * rt
        a.e(["s_waitcnt vmcnt(6)"] + ["v_pk_add_f32 %s, %s, %s" % (vr(b + 2 * h, 2), vr(b + 2 * h, 2), vr(t + 2 * h, 2)) for h in range(2)])
        a.e(["v_cvt_pk_bf16_f32 v%d, v%d, v%d" % (b, b, b + 1), "v_cvt_pk_bf16_f32 v%d, v%d, v%d" % (b + 1, b + 2, b + 3),
             "s_mov_b32 s%d, %d" % (sT, rt * 32768),
             "buffer_store_dwordx2 %s, v%d, s[%d:%d], s%d offen %s" % (vr(b, 2), vOut, sOut, sOut + 3, sT, O.out_flags)])
    if O.stamps:
        a.e(["s_waitcnt vmcnt(0)"])
        if not O.ts: stamp()
        a.e(["s_memrealtime s[78:79]", "s_waitcnt lgkmcnt(0)", "s_lshl_b32 s%d, s2, 2" % sT, "s_add_u32 s%d, s%d, s%d" % (sT, sT, sWv), "s_lshl_b32 s%d, s%d, 6" % (sT, sT),
             "s_add_u32 s%d, s%d, 0x%x" % (sT, sT, STAMP_OFF),
             "s_add_u32 s%d, s%d, s%d" % (sO, pWs, sT), "s_addc_u32 s%d, s%d, 0" % (sO + 1, pWs + 1), "s_mov_b32 s%d, 64" % (sO + 2), "v_mov_b32 v%d, 0" % vT])
        for i in range(nst[0]):
            a.e(["s_sub_u32 s%d, s%d, s%d" % (sT, sST + 2 * i, sST), "v_mov_b32 v%d, s%d" % (vT2, sT),
                 "buffer_store_dword v%d, v%d, s[%d:%d], 0 offen offset:%d" % (vT2, vT, sO, sO + 3, 4 * i)])
        for i, r_ in enumerate((10, 6, 4, sST, 78)):
            a.e(["v_mov_b32 v%d, s%d" % (vT2, r_), "buffer_store_dword v%d, v%d, s[%d:%d], 0 offen offset:%d" % (vT2, vT, sO, sO + 3, 44 + 4 * i)])
    if O.ts:
        a.e(["s_lshl_b32 s%d, s2, 9" % sT, "s_add_u32 s%d, s%d, 0x%x" % (sT, sT, STAMP_OFF + 0x200000),
             "s_add_u32 s%d, s%d, s%d" % (sO, pWs, sT), "s_addc_u32 s%d, s%d, 0" % (sO + 1, pWs + 1), "s_mov_b32 s%d, 512" % (sO + 2),
             "v_lshlrev_b32 v%d, 2, v%d" % (vT, vL), "buffer_store_dword v252, v%d, s[%d:%d], 0 offen" % (vT, sO, sO + 3)])
    a.lab("L_end")
    a.e("s_endpgm")

    if O.wo_at >= 100:
        a.lab("L_wopf")
        a.e(["s_lshl_b32 s%d, s2, 2" % sT, "s_add_u32 s%d, s%d, s%d" % (sT, sT, sWv), "s_lshl_b32 s%d, s%d, 13" % (sT, sT),
             "v_lshlrev_b32 v%d, 7, v%d" % (vT, vL), "v_add_u32 v%d, s%d, v%d" % (vT, sT, vT),
             "global_load_dword v%d, v%d, s[%d:%d]" % (vDum, vT, pWo, pWo + 1), "s_branch L_wopf_ret"])
    a.lab("L_slow")
    a.e(["s_waitcnt vmcnt(0) lgkmcnt(0)", "s_barrier", "s_mov_b32 s%d, 1" % sPass] + lane_setup() + ["s_branch L_restart"])
    a.lab("L_maxpass")
    a.e(["s_waitcnt vmcnt(0) lgkmcnt(0)", "s_barrier"] + Cq(6) + ["s_mov_b32 s%d, 16" % sCnt] + setK(0))
    a.e([zero16(ar(176 + 16 * i, 16)) for i in range(3)] + ["s_nop 7"])
    for rt in range(7): a.e("v_mov_b32 v%d, 0xff800000" % (M + 4 * rt))
    a.lab("L_slow_loop")
    a.e(kvtile(0))
    a.e(["s_waitcnt vmcnt(0)", "s_barrier"])
    a.e([rdK(i, 0) for i in range(8)])
    a.e(["s_waitcnt lgkmcnt(0)", "s_barrier"])
    for rt in range(7):
        for i in range(8):
            t, ks = i & 1, i >> 1
            d = vr(S + 4 * t, 4)
            a.e(mfma(d, ar(aK + 16 * t + 4 * ks, 4), ar(aQ + 16 * rt + 4 * ks, 4), "0" if ks == 0 else d))
        a.e("s_nop 7")
        for i in range(4): a.e("v_max3_f32 v%d, v%d, v%d, v%d" % (M + 4 * rt, M + 4 * rt, S + 2 * i, S + 2 * i + 1))
    a.e(["s_sub_u32 s%d, s%d, 1" % (sCnt, sCnt), "s_cmp_lg_u32 s%d, 0" % sCnt, "s_cbranch_scc1 L_slow_loop"])
    a.e(xlane("v_max_f32", [M + 4 * rt for rt in range(7)], [M + 4 * rt + 1 for rt in range(7)]))
    a.e(["v_add_u32 v%d, s%d, v%d" % (vTc, sSp, vL16), "v_xor_b32 v%d, 16384, v%d" % (vT3, vTc)])
    for rt in range(7): a.e("ds_write_b32 v%d, v%d offset:%d" % (vTc, M + 4 * rt, rt * 1024))
    a.e(["s_waitcnt lgkmcnt(0)", "s_barrier"])
    for rt in range(7): a.e("ds_read_b32 v%d, v%d offset:%d" % (M + 4 * rt + 1, vT3, rt * 1024))
    a.e(setK(0))
    for tl in range(4): a.e(kvtile(tl))
    a.e("s_waitcnt lgkmcnt(0)")
    for rt in range(7): a.e("v_max_f32 v%d, v%d, v%d" % (M + 4 * rt, M + 4 * rt, M + 4 * rt + 1))
    a.e(["s_waitcnt vmcnt(16)", "s_barrier"])
    a.e([rdK(i, 0) for i in range(8)])
    a.e([zero16(vr(V, 16)), zero16(vr(V + 16, 16))])
    a.e(["v_sub_f32 v%d, 0, v%d" % (M + 4 * rt + i, M + 4 * rt) for rt in range(7) for i in (1, 2, 3, 0)])
    a.e(["v_mov_b32 v%d, 0" % i for i in range(L, L + 7)] + ["v_mov_b32 v%d, 0" % i for i in range(P + 4, P + 8)])
    a.e(["s_mov_b32 s%d, 3" % sCnt, "s_waitcnt lgkmcnt(0)"] + qk(0, 0) + initD + codepf("L_last", "L_go", 250)[:-1] + ["s_nop 5"])
    for r in range(5): step(0, r)
    a.e("s_branch L_loop")

def build():
    ref = open("cdna_kernels/%s.s.ref" % NAME).read()
    hdr = ref.split("; Override launch")[0]
    a = Asm()
    k = NAME + "_kernel"
    a.raw(".amdgcn_target \"amdgcn-amd-amdhsa--gfx950\"\n.text")
    a.raw(".globl %s\n.p2align 8\n.type %s,@function" % (k, k))
    kernel(a)
    for e in check(a.L): print(e, file=sys.stderr)
    doc = """;
"""
    t = hdr + "; @launch grid=(256,1,1) block=(256,1,1) lds=163840\n" + doc + a.text()
    t += """.section .rodata,"a"
.p2align 6
.amdhsa_kernel %s
  .amdhsa_next_free_vgpr 512
  .amdhsa_next_free_sgpr 102
  .amdhsa_accum_offset 256
  .amdhsa_group_segment_fixed_size 0
  .amdhsa_kernarg_size 64
  .amdhsa_user_sgpr_count 2
  .amdhsa_user_sgpr_kernarg_segment_ptr 1
  .amdhsa_system_sgpr_workgroup_id_x 1
  .amdhsa_float_denorm_mode_32 %d
.end_amdhsa_kernel
""" % (k, O.denorm)
    return t

if __name__ == "__main__":
    out = sys.argv[1] if len(sys.argv) > 1 else "cdna_kernels/%s.s" % NAME
    for kv in sys.argv[2:]:
        k, v = kv.split("=")
        cur = getattr(O, k)
        setattr(O, k, (v == "1") if isinstance(cur, bool) else type(cur)(v))
    open(out, "w").write(build())
```

```python
import sys, math, struct
from asmlib import *

NAME = "standalone__mha_block_cached__near_ridge"
def f32(x): return struct.unpack("<I", struct.pack("<f", x))[0]
CSCALE = f32(128 ** -0.5 * math.log2(math.e))
THR = f32(2.0 ** 30)

class Opt:
    stamps = False
    ts = False
    kv_nt = True
    nxe = 5
    p1_span = 26
    force_slow = False
    pf_xw = True
    pf_wo = True
    pf_code = True
    w_n = 0
    w_late = 8
    wl2 = 0
    out_flags = ""
    pfl = 0
    burst = 4
    ws1 = 12
    dbg3 = 0
    f2gap = 156
    wo2 = "0.3,2.2"
    lag = 0
    ilv = True
    pts = "5.13,5.15,6.9,6.11"
    th = 5
    ts9 = 0
    splitpf = False
    pkg = 1
    xwf = ""
    w3f = ""
    pf3 = 0
    denorm = 3
    wfin = True
    nb = 0
    padn = 0
    kvf = "nt"
    dmax = 1
    force_skip = 0
    pack = True
    verbose = False
    x1mask = 0
    rd_first = False
    wqc = False
    tb4 = False
    wo_r = 3
    bstep = 2
    t3late = False
    wo_at = 1
    dynw = True
    wggo = False
    olook = 3
    sset = 1
    nost = False
    st_flags = "sc1"
    x3mask = 7
    burn = 0
    tsched = 1
    pf_flags = ""
    wpf = 0
O = Opt()
STAMP_OFF = 0x8000000
FLAG_OFF = 0x1000000
PART_OFF = 0x2000000

def zero16(d): return "v_mfma_f32_32x32x16_bf16 %s, v[12:15], v[12:15], 0" % d

class VM:
    def __init__(self, init): self.ops = list(init)
    def issue(self, tag, opt=False): self.ops.append(tag + "?" if opt else tag)
    def n(self, tag):
        idx = max(i for i, t in enumerate(self.ops) if t.rstrip("?") == tag)
        if self.ops[idx].endswith("?"): return min(63, len(self.ops) - 1 - idx)
        return min(63, sum(1 for t in self.ops[idx + 1:] if not t.endswith("?")))

def kernel(a):
    KVF = " " + O.kvf
    pX, pK, pV, pWq, pWo, pOut, pDbg, pWs = 4, 6, 8, 10, 12, 14, 16, 18
    sX, sW, sKV, sO, sOs, sWs, sOut = 20, 24, 28, 32, 36, 40, 44
    (sWv, sB, sH, sRH, sKH, sXoff, sWoff, sCnt, sMX, sMW, sReg, sRing, sSp, sG, sFlip, sK0, sPass, sT, sT2, sRB, sCT, sWo, sD1, sD2) = range(48, 72)
    sP = 3
    sOf = 1; sPm = 0
    sC = 72; sRt = 74; sPC = 82; sVV = 84; sST = 88; sK1 = sFlip
    KH, TS_ = (8192, 16384) if O.ilv else (131072, 8192)
    vL, vT, vT2, vT3, vL16 = 1, 2, 3, 4, 5
    vKV, vW = 6, 10
    OK, ACC = 16, 128
    M, S, E, P, V, L = 128, 156, 172, 180, 188, 220
    vTa, vTb, vTc = 237, 238, 236
    E2 = 228
    vX, vXr, vWr = 240, 247, 251
    vKr, vVr, vK0 = 240, 241, 243
    vD, vR = 244, 10
    vQw, vQr = 2, 3
    PK = 16
    vFo, vFc, vDum = 254, 255, 253
    vCp = 0
    aQ, aO, aK = 0, 112, 224
    aXF, aWF = 0, 224
    nst = [0]
    def stamp(m=3):
        if O.stamps and (m & O.sset) and not (O.ts and nst[0] >= 1):
            assert nst[0] < 7
            a.e("s_memrealtime s[%d:%d]" % (sST + 2 * nst[0], sST + 2 * nst[0] + 1)); nst[0] += 1
    def flagp(v, t):
        return ["s_and_b32 s%d, s%d, 1" % (sT, sB), "s_lshl_b32 s%d, s%d, 6" % (sT, sT), "s_lshr_b32 s%d, s%d, 1" % (sG, sB), "s_lshl_b32 s%d, s%d, 3" % (sG, sG),
                "s_add_u32 s%d, s%d, s%d" % (sT, sT, sG), "s_lshr_b32 s%d, s%d, 2" % (sG, sH), "s_add_u32 s%d, s%d, s%d" % (sT, sT, sG), "s_lshl_b32 s%d, s%d, 7" % (sT, sT),
                "s_and_b32 s%d, s%d, 3" % (sG, sH), "s_lshl_b32 s%d, s%d, 2" % (sG, sG), "s_add_u32 s%d, s%d, s%d" % (sT, sT, sG), "s_add_u32 s%d, s%d, 0x%x" % (sT, sT, FLAG_OFF),
                "v_lshrrev_b32 v%d, 1, v%d" % (v, vL), "v_lshlrev_b32 v%d, 14, v%d" % (v, v), "v_and_b32 v%d, 1, v%d" % (t, vL),
                "v_lshl_add_u32 v%d, v%d, 12, v%d" % (v, t, v), "v_add_u32 v%d, s%d, v%d" % (v, sT, v),
                "s_xor_b32 s%d, s2, 1" % sT, "s_lshl_b32 s%d, s%d, 9" % (sT, sT), "s_add_u32 s%d, s%d, 0x%x" % (sT, sT, FLAG_OFF + 16),
                "v_and_b32 v%d, 3, v%d" % (t, vL), "v_lshlrev_b32 v%d, 7, v%d" % (t, t), "v_cmp_gt_u32 vcc, 16, v%d" % vL, "v_add_u32 v%d, s%d, v%d" % (t, sT, t),
                "s_nop 0", "v_cndmask_b32 v%d, v%d, v%d, vcc" % (v, t, v)]
    def flagc(v):
        return ["s_lshl_b32 s%d, s2, 2" % sT, "s_add_u32 s%d, s%d, s%d" % (sT, sT, sWv), "s_lshl_b32 s%d, s%d, 7" % (sT, sT), "s_add_u32 s%d, s%d, 0x%x" % (sT, sT, FLAG_OFF),
                "v_min_u32 v%d, 5, v%d" % (v, vL), "v_lshlrev_b32 v%d, 2, v%d" % (v, v), "v_add_u32 v%d, s%d, v%d" % (v, sT, v),
                "s_mov_b64 exec, 64", "v_xor_b32 v%d, 0x200, v%d" % (v, v), "s_mov_b64 exec, -1"]
    def boxaddr(v):
        return ["s_lshl_b32 s%d, s2, 2" % sT, "s_add_u32 s%d, s%d, s%d" % (sT, sT, sWv), "s_lshl_b32 s%d, s%d, 13" % (sT, sT),
                "s_add_u32 s%d, s%d, 0x%x" % (sT, sT, PART_OFF + 3072), "v_add_u32 v%d, s%d, v%d" % (v, sT, vL16)]
    def codepf(lo, hi, t0):
        return ["v_min_u32 v%d, %s-%s-4, v%d" % (t0, hi, lo, vCp), "v_add_u32 v%d, %s-L_pc, v%d" % (t0, lo, t0),
                "v_mov_b32 v%d, s%d" % (t0 + 1, sPC + 1), "v_add_co_u32 v%d, vcc, s%d, v%d" % (t0, sPC, t0), "s_nop 1",
                "v_addc_co_u32 v%d, vcc, 0, v%d, vcc" % (t0 + 1, t0 + 1), "global_load_dword v%d, v[%d:%d], off" % (vDum, t0, t0 + 1)]

    a.lab(NAME + "_kernel")
    a.e(["s_cmp_ge_u32 s2, 256", "s_cbranch_scc1 L_end",
         "s_load_dwordx8 s[4:11], s[0:1], 0", "s_load_dwordx8 s[12:19], s[0:1], 32"])
    stamp(7)
    a.e(["s_getpc_b64 s[%d:%d]" % (sPC, sPC + 1)])
    a.lab("L_pc")
    a.e(["v_and_b32 v%d, 63, v0" % vL, "v_lshrrev_b32 v%d, 6, v0" % vT,
         "s_and_b32 s%d, s2, 7" % sT, "s_lshr_b32 s%d, s2, 3" % sT2,
         "v_readfirstlane_b32 s%d, v%d" % (sWv, vT),
         "v_min_u32 v%d, 2, v%d" % (vCp, vL), "v_lshl_add_u32 v%d, v%d, 2, v%d" % (vCp, vCp, vT), "v_lshlrev_b32 v%d, 5, v%d" % (vCp, vCp),
         "v_add_lshl_u32 v%d, v%d, s%d, 7" % (vCp, vCp, sT2)])
    if O.pf_code: a.e(codepf("L_pc", "L_end", vT))
    a.e(["s_mov_b32 s%d, 0" % sPass,
         "s_and_b32 s%d, s%d, 1" % (sB, sT), "s_lshl_b32 s%d, s%d, 2" % (sB, sB),
         "s_and_b32 s%d, s%d, 3" % (sG, sT2), "s_add_u32 s%d, s%d, s%d" % (sB, sB, sG),
         "s_lshr_b32 s%d, s%d, 1" % (sH, sT), "s_lshl_b32 s%d, s%d, 2" % (sRB, sH), "s_add_u32 s%d, s%d, s%d" % (sRB, sRB, sG), "s_lshl_b32 s%d, s%d, 3" % (sH, sH),
         "s_lshr_b32 s%d, s%d, 2" % (sCT, sT2), "s_add_u32 s%d, s%d, s%d" % (sH, sH, sCT),
         "s_and_b32 s%d, s%d, 1" % (sRH, sWv), "s_lshr_b32 s%d, s%d, 1" % (sKH, sWv)])
    a.e(["s_lshl_b32 s%d, s%d, 15" % (sMX, sKH), "s_mul_i32 s%d, s%d, 7168" % (sT, sRH),
         "s_add_u32 s%d, s%d, s%d" % (sMX, sMX, sT), "s_add_u32 s%d, s%d, 16384" % (sMX, sMX),
         "s_lshl_b32 s%d, s%d, 11" % (sMW, sWv), "s_add_u32 s%d, s%d, 131072" % (sMW, sMW),
         "s_lshl_b32 s%d, s%d, 15" % (sReg, sWv),
         "s_mov_b32 s%d, 458752" % (sX + 2), "s_mov_b32 s%d, 0x20000" % (sX + 3), "s_mov_b32 s%d, 0x20000" % (sW + 3),
         "s_mul_i32 s%d, s%d, 458752" % (sD1, sB), "s_lshl_b32 s%d, s%d, 8" % (sD2, sH), "s_sub_u32 s%d, 0x800000, s%d" % (sW + 2, sD2)])
    def lane_setup():
        o = ["v_lshrrev_b32 v%d, 3, v%d" % (vT, vL), "v_and_b32 v%d, 7, v%d" % (vT2, vL), "v_and_b32 v%d, 6, v%d" % (vT3, vT),
             "v_xor_b32 v%d, v%d, v%d" % (vT3, vT3, vT2), "v_lshlrev_b32 v%d, 4, v%d" % (vT3, vT3),
             "v_lshl_add_u32 v%d, v%d, 11, v%d" % (vX, vT, vT3),
             "s_mul_i32 s%d, s%d, %d" % (sT, sWv, 7 * 16384), "v_add_u32 v%d, s%d, v%d" % (vX, sT, vX)]
        o += ["v_add_u32 v%d, %d, v%d" % (vX + j, j * 16384 - (j & 3) * 1024, vX) for j in range(1, 7)]
        o += ["v_and_b32 v%d, 2, v%d" % (vT3, vT), "v_lshlrev_b32 v%d, 1, v%d" % (vT3, vT3),
              "v_xor_b32 v%d, v%d, v%d" % (vT3, vT3, vT2), "v_lshlrev_b32 v%d, 4, v%d" % (vT3, vT3),
              "v_lshl_add_u32 v%d, v%d, 13, v%d" % (vW, vT, vT3),
              "s_lshl_b32 s%d, s%d, 17" % (sT, sRH), "s_lshl_b32 s%d, s%d, 7" % (sG, sKH), "s_add_u32 s%d, s%d, s%d" % (sT, sT, sG),
              "v_add_u32 v%d, s%d, v%d" % (vW, sT, vW), "v_add_u32 v%d, %d, v%d" % (vW + 1, 8 * 8192 - 1024, vW)]
        return o
    a.e(lane_setup())
    a.e(["s_waitcnt lgkmcnt(0)",
         "s_add_u32 s%d, s%d, s%d" % (sW, pWq, sD2), "s_addc_u32 s%d, s%d, 0" % (sW + 1, pWq + 1),
         "s_add_u32 s%d, s%d, s%d" % (sX, pX, sD1), "s_addc_u32 s%d, s%d, 0" % (sX + 1, pX + 1)])
    stamp(4)
    a.lab("L_restart")

    TS_A = ["s_memrealtime s[100:101]"]
    TS_B = ["s_mov_b32 s99, m0", "s_mov_b32 m0, s81", "v_writelane_b32 v0, s100, m0", "s_addk_i32 s81, 1", "s_mov_b32 m0, s99"]
    TS_F = TS_A + ["s_waitcnt lgkmcnt(0)"] + TS_B
    def dmaX(j): return "buffer_load_dwordx4 v%d, s[%d:%d], s%d offen offset:%d %s lds" % (vX + j, sX, sX + 3, sXoff, (j & 3) * 1024, O.xwf)
    def m0X(buf, hi): return "s_add_u32 m0, s%d, %d" % (sMX, buf * 65536 + hi * 4096)
    def dmaW(j): return "buffer_load_dwordx4 v%d, s[%d:%d], s%d offen offset:%d %s lds" % (vW + j, sW, sW + 3, sWoff, j * 1024, O.xwf)
    def m0W(slot): return "s_add_u32 m0, s%d, %d" % (sMW, slot * 8192)
    def ptm0(reg, slot): return "s_add_u32 m0, s%d, %d" % (sMW, (reg * 32768 + slot * 8192 - 131072) & 0xffffffff)
    def ptld(reg): return ["buffer_load_dwordx4 v%d, s[%d:%d], s%d offen offset:%d%s lds" % (vKV + (2 if reg == 3 else 0) + j, sVV if reg & 1 else sKV, (sVV if reg & 1 else sKV) + 3,
                           sK1 if reg >> 1 else sK0, j * 1024, KVF) for j in range(2)]
    incK = ["s_add_u32 s%d, s%d, %d" % (sK0, sK0, TS_), "s_add_u32 s%d, s%d, %d" % (sK1, sK1, TS_)]
    def setK(tile): return ["s_mov_b32 s%d, %d" % (sK0, tile * TS_), "s_mov_b32 s%d, %d" % (sK1, tile * TS_ + KH)]
    PORD = (0, 2, 1, 3)
    def kvtile(slot): return [x for reg in PORD for x in [ptm0(reg, slot), "s_nop 0"] + ptld(reg)] + incK
    sXl, sWl, sOx, sOw = 10, 11, sWo, sK0
    incW = ["s_add_u32 s%d, s%d, 262144" % (sWl, sWl), "s_xor_b32 s%d, s%d, s%d" % (sWoff, sWl, sOw)]
    incX = ["s_add_u32 s%d, s%d, 128" % (sXl, sXl), "s_xor_b32 s%d, s%d, s%d" % (sXoff, sXl, sOx)]

    a.e(["s_mov_b32 s%d, 0" % sXl, "s_mov_b32 s%d, 0" % sWl, "s_xor_b32 s%d, s%d, s%d" % (sT, sB, sH), "s_and_b32 s%d, s%d, %d" % (sT, sT, O.x1mask),
         "s_lshl_b32 s%d, s%d, 19" % (sOw, sT), "s_lshl_b32 s%d, s%d, 7" % (sOx, sT), "s_mov_b32 s%d, s%d" % (sWoff, sOw), "s_mov_b32 s%d, s%d" % (sXoff, sOx)])
    def stage_loads(st):
        return ([m0W(2 * st), "s_nop 0", dmaW(0), dmaW(1), m0X(st, 0)] + incW + [dmaX(j) for j in range(4)] + [m0X(st, 1), "s_nop 0"] + [dmaX(j) for j in range(4, 7)]
                + [m0W(2 * st + 1)] + incX + [dmaW(0), dmaW(1)] + incW)
    a.e(stage_loads(0))
    stamp(4)
    a.e(["v_mov_b32 v%d, 0" % i for i in range(12, 16)])
    su0 = len(a.L)
    a.e(["s_lshl_b32 s%d, s%d, 5" % (sT, sB), "s_add_u32 s%d, s%d, s%d" % (sT, sT, sH), "s_lshl_b32 s%d, s%d, 18" % (sT, sT),
         "s_add_u32 s%d, s%d, s%d" % (sKV, pK, sT), "s_addc_u32 s%d, s%d, 0" % (sKV + 1, pK + 1),
         "s_mov_b32 s%d, 0x40000" % (sKV + 2), "s_mov_b32 s%d, 0x20000" % (sKV + 3),
         "s_add_u32 s%d, s%d, s%d" % (sVV, pV, sT), "s_addc_u32 s%d, s%d, 0" % (sVV + 1, pV + 1),
         "s_mov_b32 s%d, 0x40000" % (sVV + 2), "s_mov_b32 s%d, 0x20000" % (sVV + 3),
         "v_bfe_u32 v%d, v%d, 2, 2" % (vT, vL), "v_lshrrev_b32 v%d, 4, v%d" % (vT2, vL), "v_lshlrev_b32 v%d, 6, v%d" % (vT2, vT2),
         "v_lshl_add_u32 v%d, v%d, 8, v%d" % (vT2, vT, vT2), "v_and_b32 v%d, 3, v%d" % (vT, vL), "v_lshl_add_u32 v%d, v%d, 4, v%d" % (vT2, vT, vT2),
         "s_lshl_b32 s%d, s%d, 5" % (sG, sRH), "v_xor_b32 v%d, s%d, v%d" % (vT2, sG, vT2), "s_lshl_b32 s%d, s%d, 11" % (sG, sWv),
         "v_add_u32 v%d, s%d, v%d" % (vKV, sG, vT2), "v_xor_b32 v%d, 48, v%d" % (vKV + 1, vKV),
         "v_xor_b32 v%d, 0x80, v%d" % (vKV + 2, vKV), "v_xor_b32 v%d, 0x80, v%d" % (vKV + 3, vKV + 1)])
    pPx, pPw = PK + 20, PK + 21
    a.e(["s_mul_i32 s%d, s%d, 14336" % (sT, sH), "s_lshl_b32 s%d, s%d, 12" % (sG, sWv), "s_add_u32 s%d, s%d, s%d" % (sT, sT, sG),
         "v_and_b32 v%d, 31, v%d" % (pPx, vL), "v_lshlrev_b32 v%d, 7, v%d" % (pPx, pPx), "v_add_u32 v%d, s%d, v%d" % (pPx, sT, pPx),
         ] + ([
         "s_and_b32 s%d, s%d, 7" % (sG, sH), "s_lshl_b32 s%d, s%d, 3" % (sT, sB), "s_add_u32 s%d, s%d, s%d" % (sT, sT, sG), "s_lshl_b32 s%d, s%d, 2" % (sT, sT),
         "s_add_u32 s%d, s%d, s%d" % (sT, sT, sWv), "s_lshl_b32 s%d, s%d, 15" % (sT, sT), "s_lshl_b32 s%d, s%d, 8" % (sG, sG), "s_sub_u32 s%d, s%d, s%d" % (sT, sT, sG),
         "v_lshrrev_b32 v%d, 4, v%d" % (pPw, vL), "v_lshlrev_b32 v%d, 13, v%d" % (pPw, pPw),
         "v_and_b32 v%d, 15, v%d" % (vT2, vL), "v_lshl_add_u32 v%d, v%d, 7, v%d" % (pPw, vT2, pPw), "v_add_u32 v%d, s%d, v%d" % (pPw, sT, pPw)] if O.wqc else [
         "s_lshl_b32 s%d, s%d, 2" % (sT, sB), "s_add_u32 s%d, s%d, s%d" % (sT, sT, sWv), "s_lshl_b32 s%d, s%d, 18" % (sT, sT),
         "v_lshrrev_b32 v%d, 1, v%d" % (pPw, vL), "v_lshlrev_b32 v%d, 13, v%d" % (pPw, pPw),
         "v_and_b32 v%d, 1, v%d" % (vT2, vL), "v_lshl_add_u32 v%d, v%d, 7, v%d" % (pPw, vT2, pPw), "v_add_u32 v%d, s%d, v%d" % (pPw, sT, pPw)]))
    pQx, pQw = PK + 22, PK + 23
    if O.splitpf:
        a.e(["v_min_u32 v%d, 10, v%d" % (vT, vL), "s_mul_i32 s%d, s%d, 11" % (sG, sWv), "v_add_u32 v%d, s%d, v%d" % (vT, sG, vT), "v_min_u32 v%d, 41, v%d" % (vT, vT),
             "v_mul_u32_u24 v%d, 43, v%d" % (vT2, vT), "v_lshrrev_b32 v%d, 8, v%d" % (vT2, vT2), "v_mul_u32_u24 v%d, 10, v%d" % (vT2, vT2),
             "v_add_u32 v%d, v%d, v%d" % (vT, vT, vT2), "v_lshlrev_b32 v%d, 7, v%d" % (vT, vT), "s_mul_i32 s%d, s%d, 14336" % (sT, sH), "s_add_u32 s%d, s%d, 256" % (sG, sT),
             "v_add_u32 v%d, s%d, v%d" % (pPx, sG, vT),
             "v_bfe_u32 v%d, v%d, 1, 1" % (vT, vL), "s_lshl_b32 s%d, s%d, 1" % (sG, sWv), "v_add_u32 v%d, s%d, v%d" % (vT, sG, vT), "v_min_u32 v%d, 6, v%d" % (vT, vT),
             "v_and_b32 v%d, 1, v%d" % (vT2, vL), "v_lshlrev_b32 v%d, 7, v%d" % (vT2, vT2), "v_lshl_add_u32 v%d, v%d, 11, v%d" % (vT, vT, vT2),
             "s_add_u32 s%d, s%d, 512" % (sT, sT), "v_add_u32 v%d, s%d, v%d" % (pQx, sT, vT),
             "v_lshrrev_b32 v%d, 1, v%d" % (vT, vL), "v_min_u32 v%d, 11, v%d" % (vT, vT), "v_lshl_add_u32 v%d, v%d, 13, v%d" % (vT, vT, vT2),
             "s_lshl_b32 s%d, s%d, 2" % (sT, sB), "s_add_u32 s%d, s%d, s%d" % (sT, sT, sWv), "s_mul_i32 s%d, s%d, %d" % (sG, sT, 12 * 8192), "s_add_u32 s%d, s%d, %d" % (sG, sG, 128 * 8192),
             "v_add_u32 v%d, s%d, v%d" % (pPw, sG, vT),
             "v_bfe_u32 v%d, v%d, 1, 2" % (vT, vL), "v_lshl_add_u32 v%d, v%d, 13, v%d" % (vT, vT, vT2), "s_lshl_b32 s%d, s%d, 15" % (sT, sT), "s_add_u32 s%d, s%d, %d" % (sT, sT, 8 * 262144),
             "v_add_u32 v%d, s%d, v%d" % (pQw, sT, vT)])
    farpf = ["buffer_load_dword v%d, v%d, s[%d:%d], s%d offen" % (vDum, pQx, sX, sX + 3, sXoff), "buffer_load_dword v%d, v%d, s[%d:%d], s%d offen" % (vDum, pQw, sW, sW + 3, sWoff)]
    NE = 5 if O.splitpf else 3
    a.e(["v_lshlrev_b32 v%d, 4, v%d" % (vL16, vL),
         "v_and_b32 v%d, 15, v%d" % (vT, vL), "v_lshrrev_b32 v%d, 4, v%d" % (vT2, vL),
         "v_and_b32 v%d, 6, v%d" % (vT3, vT), "v_xor_b32 v%d, v%d, v%d" % (vT3, vT3, vT2), "v_lshlrev_b32 v%d, 4, v%d" % (vT3, vT3),
         "v_lshl_add_u32 v%d, v%d, 7, v%d" % (vT3, vT, vT3),
         "s_lshl_b32 s%d, s%d, 15" % (sT, sRH), "s_add_u32 s%d, s%d, 16384" % (sT, sT),
         "v_add_u32 v%d, s%d, v%d" % (vXr, sT, vT3), "v_xor_b32 v%d, 64, v%d" % (vXr + 1, vXr),
         "v_add_u32 v%d, 0x10000, v%d" % (vXr + 2, vXr), "v_add_u32 v%d, 0x10000, v%d" % (vXr + 3, vXr + 1)])
    a.e(["v_bfe_u32 v%d, v%d, 2, 2" % (vT, vL), "v_lshl_add_u32 v%d, v%d, 3, v%d" % (vT, vT2, vT),
         "v_and_b32 v%d, 2, v%d" % (vT3, vT), "v_lshlrev_b32 v%d, 1, v%d" % (vT3, vT3),
         "v_and_b32 v%d, 3, v%d" % (vT2, vL), "v_xor_b32 v%d, v%d, v%d" % (vT3, vT3, vT2), "v_lshlrev_b32 v%d, 4, v%d" % (vT3, vT3),
         "v_lshl_add_u32 v%d, v%d, 7, v%d" % (vT3, vT, vT3),
         "s_lshl_b32 s%d, s%d, 12" % (sT, sKH), "s_add_u32 s%d, s%d, 131072" % (sT, sT),
         "v_add_u32 v%d, s%d, v%d" % (vWr, sT, vT3), "v_xor_b32 v%d, 64, v%d" % (vWr + 1, vWr)])
    a.e(["s_mul_i32 s%d, s%d, 14" % (sT, sB), "s_mul_i32 s%d, s%d, 7" % (sG, sRH), "s_add_u32 s%d, s%d, s%d" % (sT, sT, sG),
         "s_lshl_b32 s%d, s%d, 7" % (sT, sT), "s_lshl_b32 s%d, s%d, 2" % (sG, sH), "s_add_u32 s%d, s%d, s%d" % (sT, sT, sG),
         "s_lshl_b32 s%d, s%d, 1" % (sG, sKH), "s_add_u32 s%d, s%d, s%d" % (sT, sT, sG), "s_lshl_b32 s%d, s%d, 10" % (sT, sT),
         "s_add_u32 s%d, s%d, s%d" % (sO, pWs, sT), "s_addc_u32 s%d, s%d, 0" % (sO + 1, pWs + 1),
         "s_mov_b32 s%d, %d" % (sO + 2, 6 * 131072 + 2048), "s_mov_b32 s%d, 0x20000" % (sO + 3),
         "s_mov_b32 s%d, 0x%x" % (sC, CSCALE), "s_mov_b32 s%d, 0x%x" % (sC + 1, CSCALE),
         "s_and_b32 s%d, s%d, 4" % (sPm, sB), "s_add_u32 s%d, s%d, s%d" % (sPm, sPm, sWv),
         "s_mul_i32 s%d, s%d, %d" % (sT, sRB, 7 * 131072), "s_lshl_b32 s%d, s%d, 14" % (sG, sPm), "s_add_u32 s%d, s%d, s%d" % (sT, sT, sG),
         "s_add_u32 s%d, s%d, s%d" % (sOs, pWs, sT), "s_addc_u32 s%d, s%d, 0" % (sOs + 1, pWs + 1),
         "s_mov_b32 s%d, %d" % (sOs + 2, 6 * 131072 + 16384), "s_mov_b32 s%d, 0x20000" % (sOs + 3),
         "s_lshl_b32 s%d, s%d, 20" % (sT, sPm), "s_lshl_b32 s%d, s%d, 8" % (sG, sCT), "s_add_u32 s%d, s%d, s%d" % (sT, sT, sG),
         "s_add_u32 s%d, s%d, s%d" % (sWs, pWo, sT), "s_addc_u32 s%d, s%d, 0" % (sWs + 1, pWo + 1),
         "s_sub_u32 s%d, 0x100000, s%d" % (sWs + 2, sG), "s_mov_b32 s%d, 0x20000" % (sWs + 3),
         "s_mul_i32 s%d, s%d, %d" % (sT, sRB, 112 * 2048), "s_add_u32 s%d, s%d, s%d" % (sOut, pOut, sT), "s_addc_u32 s%d, s%d, 0" % (sOut + 1, pOut + 1),
         "s_mov_b32 s%d, %d" % (sOut + 2, 112 * 2048), "s_mov_b32 s%d, 0x20000" % (sOut + 3),
         "s_xor_b32 s%d, s%d, 0x10000" % (sRing, sReg),
         "s_lshl_b32 s%d, s%d, 13" % (sSp, sWv), "s_add_u32 s%d, s%d, 131072" % (sSp, sSp),
         "s_sub_u32 s%d, s%d, s%d" % (sD1, sSp, sReg), "s_sub_u32 s%d, s%d, s%d" % (sD2, sRing, sSp)])
    for rt in range(7): a.e("s_mov_b32 s%d, %d" % (sRt + rt, rt * 131072))
    pKr, pVr, pK0, pD, pR, pQ, pFp, pFc, pWoP, pCp = PK, PK + 1, PK + 3, PK + 4, PK + 8, PK + 10, PK + 12, PK + 13, PK + 14, PK + 16
    a.e(flagp(pFp, vT2) + flagc(pFc))
    a.e(["v_bfe_u32 v%d, v%d, 2, 2" % (vT, vL), "v_sub_u32 v%d, 0, v%d" % (vT2, vT), "v_lshrrev_b32 v%d, 4, v%d" % (vT3, vL),
         "v_xor_b32 v%d, v%d, v%d" % (vT2, vT2, vT3), "v_and_b32 v%d, 3, v%d" % (vT2, vT2), "v_lshlrev_b32 v%d, 4, v%d" % (vT2, vT2),
         "v_lshl_add_u32 v%d, v%d, 10, v%d" % (vT2, vT, vT2), "v_and_b32 v%d, 3, v%d" % (pK0, vL), "v_lshlrev_b32 v%d, 6, v%d" % (pK0, pK0),
         "s_lshl_b32 s%d, s%d, 16" % (sG, sKH), "v_add3_u32 v%d, v%d, v%d, s%d" % (pKr, pK0, vT2, sG),
         "v_lshl_add_u32 v%d, v%d, 4, v%d" % (pK0, vT3, pK0),
         "v_sub_u32 v%d, 0, v%d" % (vT2, vT3), "v_bfe_u32 v%d, v%d, 1, 1" % (pVr + 1, vL), "v_xor_b32 v%d, v%d, v%d" % (vT2, vT2, pVr + 1),
         "v_and_b32 v%d, 3, v%d" % (vT2, vT2), "v_lshlrev_b32 v%d, 4, v%d" % (vT2, vT2),
         "v_lshl_add_u32 v%d, v%d, 10, v%d" % (vT2, vT3, vT2), "v_lshl_add_u32 v%d, v%d, 6, v%d" % (vT2, vT, vT2),
         "v_and_b32 v%d, 1, v%d" % (pVr + 1, vL), "v_lshl_add_u32 v%d, v%d, 3, v%d" % (vT2, pVr + 1, vT2),
         "s_add_u32 s%d, s%d, 32768" % (sG, sG), "v_add_u32 v%d, s%d, v%d" % (pVr, sG, vT2), "v_xor_b32 v%d, 32, v%d" % (pVr + 1, pVr),
         "v_add_u32 v%d, s%d, v%d" % (pR, sReg, vT2), "v_xor_b32 v%d, 32, v%d" % (pR + 1, pR),
         "v_lshlrev_b32 v%d, 6, v%d" % (vT2, vT3), "v_lshl_add_u32 v%d, v%d, 11, v%d" % (vT2, vT, vT2), "v_and_b32 v%d, 3, v%d" % (vT, vL),
         "v_lshl_add_u32 v%d, v%d, 4, v%d" % (vT2, vT, vT2), "s_lshl_b32 s%d, s%d, 5" % (sT, sPm), "v_xor_b32 v%d, s%d, v%d" % (pD, sT, vT2)])
    for j in range(1, 4): a.e(["v_xor_b32 v%d, %d, v%d" % (pD + j, ((-j) & 3) * 16, pD), "v_add_u32 v%d, %d, v%d" % (pD + j, j * (8192 - 1024), pD + j)])
    a.e(["v_add_u32 v%d, s%d, v%d" % (pQ, sMW, vL16), "s_lshl_b32 s%d, s%d, 11" % (sT, sRH), "s_add_u32 s%d, s%d, 131072" % (sT, sT), "v_add_u32 v%d, s%d, v%d" % (pQ + 1, sT, vL16),
         "s_lshl_b32 s%d, s2, 2" % sT, "s_add_u32 s%d, s%d, s%d" % (sT, sT, sWv), "s_lshl_b32 s%d, s%d, 13" % (sT, sT),
         "v_lshlrev_b32 v%d, 7, v%d" % (pWoP, vL), "v_add_u32 v%d, s%d, v%d" % (pWoP, sT, pWoP),
         "s_lshl_b32 s%d, s%d, 1" % (sOf, sRB), "s_xor_b32 s%d, s%d, s%d" % (sOf, sOf, sCT), "s_and_b32 s%d, s%d, %d" % (sOf, sOf, O.x3mask), "s_lshl_b32 s%d, s%d, 16" % (sOf, sOf)])
    cp2 = codepf("L_tr", "L_epi", pCp)
    a.e(cp2[:-1])
    a.e([
         "s_lshl_b32 s%d, s2, 15" % sT, "s_lshl_b32 s%d, s%d, 10" % (sG, sWv), "s_add_u32 s%d, s%d, s%d" % (sT, sT, sG),
         "v_and_b32 v%d, 7, v%d" % (vT3, vL), "v_lshlrev_b32 v%d, 7, v%d" % (vT3, vT3), "v_add_u32 v%d, s%d, v%d" % (vT3, sT, vT3), "s_mov_b32 s%d, 0" % sP])
    kvpf = "global_load_dword v%d, v%d, s[%d:%d]" % (vDum, vT3, pWo, pWo + 1)
    zs = [zero16(vr(ACC + 16 * i, 16)) for i in range(7)] + [zero16(vr(OK + 16 * i, 16)) for i in range(2, 7)] + [zero16(ar(aO + 16 * i, 16)) for i in range(4)]
    seg = a.L[su0:]; del a.L[su0:]
    for i_, ln in enumerate(seg):
        if i_ % 7 == 3 and zs: a.e(zs.pop(0))
        a.L.append(ln)
    assert not zs and not any("exec" in ln for ln in seg[:120])
    late = stage_loads(1) + ["buffer_load_dword v%d, v%d, s[%d:%d], 0 offen" % (vDum, pPx, sX, sX + 3), "buffer_load_dword v%d, v%d, s[%d:%d], 0 offen" % (vDum, pPw, sW, sW + 3),
                              kvpf if O.wo_at != 0 else "global_load_dword v%d, v%d, s[%d:%d]" % (vDum, pWoP, pWo, pWo + 1)] + (farpf if O.splitpf else [])
    def kvb(v, off): return "global_load_lds_dwordx4 v%d, s[4:5] offset:%d%s" % (v, off, KVF)
    kvq = ["s_cmp_lt_u32 s%d, 4" % sP, "s_cselect_b32 s4, s%d, s%d" % (sKV, sVV), "s_cselect_b32 s5, s%d, s%d" % (sKV + 1, sVV + 1),
           "s_and_b32 s%d, s%d, 1" % (sT, sP), "s_and_b32 s%d, s%d, 2" % (sG, sP), "s_lshl_b32 s%d, s%d, 12" % (sG, sG),
           "s_lshl_b32 s%d, s%d, 16" % (sT2, sT), "s_add_u32 s%d, s%d, s%d" % (sT2, sT2, sG), "s_mul_i32 s%d, s%d, %d" % (sT, sT, KH),
           "s_mul_i32 s%d, s%d, %d" % (sG, sG, TS_ // 8192), "s_add_u32 s%d, s%d, s%d" % (sT, sT, sG),
           "v_add_u32 v%d, s%d, v%d" % (vT, sT, vKV), "v_add_u32 v%d, s%d, v%d" % (vT2, sT, vKV + 1),
           "s_and_b32 s%d, s%d, 4" % (sG, sP), "s_lshl_b32 s%d, s%d, 13" % (sG, sG), "s_add_u32 s%d, s%d, s%d" % (sT2, sT2, sG),
           "s_and_b32 s%d, s%d, 5" % (sT, sP), "s_cmp_eq_u32 s%d, 5" % sT, "s_cselect_b32 s%d, 128, 0" % sT,
           "v_xor_b32 v%d, s%d, v%d" % (vT, sT, vT), "v_xor_b32 v%d, s%d, v%d" % (vT2, sT, vT2),
           "s_add_u32 s%d, s%d, s%d" % (sT2, sT2, sMW), "s_add_u32 s%d, s%d, 1" % (sP, sP)]
    kvq_m0 = "s_sub_u32 m0, s%d, 0x20000" % sT2

    def wreg(k): return {30: 192, 31: 208}.get(k, aWF + 16 * (k & 1))
    def xreg(k, rt): return 16 * rt + 4 * (k & 3)
    def rdW(k):
        out = []
        for dt in range(4):
            dp, t = dt >> 1, dt & 1
            for sec in range(2):
                out.append("ds_read_b64_tr_b16 %s, v%d offset:%d" % (ar(wreg(k) + 4 * dt + 2 * sec, 2), vWr + dp, (k & 3) * 8192 + sec * 512 + t * 8))
        return out
    def rdX1(s, kk, rt): return "ds_read_b128 %s, v%d offset:%d" % (ar(xreg(2 * s + kk, rt), 4), vXr + 2 * (s & 1) + kk, rt * 2048)
    def rdX(s): return [rdX1(s, kk, rt) for kk in range(2) for rt in range(7)]
    def A(rt, k): return [mfma(vr(ACC + 16 * rt + 4 * dt, 4), ar(wreg(k) + 4 * dt, 4), ar(xreg(k, rt), 4), vr(ACC + 16 * rt + 4 * dt, 4)) for dt in range(4)]
    stamp(4)
    if not O.rd_first: a.e(late)
    a.e(["s_waitcnt vmcnt(%d)" % (2 if O.rd_first else 13 + NE), "s_barrier"])
    stamp(4)
    if O.ts: a.e(["s_mov_b32 s81, 0"] + TS_F)
    a.e(rdW(0) + rdX(0))
    if O.rd_first: a.e(late)
    a.e(["s_mov_b32 s%d, 7" % sCnt, "s_waitcnt vmcnt(%d) lgkmcnt(0)" % (11 + NE), "s_barrier"])

    wopf = "global_load_dword v%d, v%d, s[%d:%d]" % (vDum, pWoP, pWo, pWo + 1)
    addr28 = ["v_mov_b32 v%d, v%d" % (240 + i, PK + i) for i in range(8)] + ["v_mov_b32 v%d, v%d" % (vR + i, pR + i) for i in range(2)]
    addr28 += ["v_mov_b32 v%d, v%d" % (vQw + i, pQ + i) for i in range(2)] + setK(2)

    def p1_kstep(km, mode, ctl=False):
        sp, kk = km >> 1, km & 1
        mf = [m_ for rt in range(7) for m_ in A(rt, km)]
        gaps = [[] for _ in range(28)]
        rd = rdW(km + 1)
        if kk == 1: rd += rdX(sp + 1)
        dm = []; nxe = O.nxe; tailops = []
        if mode == "loop":
            def xs(js):
                r = []
                for j in js:
                    if j == 4 and j != js[0]: r += [m0X(sp, 1)]
                    r.append(dmaX(j))
                return r
            if kk == 0: dm += [m0W(km), dmaW(0), dmaW(1), m0X(sp, 0)] + incW + xs(list(range(nxe)))
            else:
                if nxe < 7: dm += ([m0X(sp, 1)] if nxe == 4 else []) + xs(list(range(nxe, 7)))
                dm += [m0W(km)] + incX + [dmaW(0), dmaW(1)] + incW
                if km == 3:
                    dm += [kvq_m0]; tailops = [kvb(vT, 0), kvb(vT2, 1024), kvpf] + (farpf if O.splitpf else [])
            endw = "s_waitcnt vmcnt(%d) lgkmcnt(0)" % ((4 + nxe + (NE if km == 0 else 0)) if kk == 0 else 11 + NE)
        elif mode == 28:
            endw = "s_waitcnt vmcnt(%d) lgkmcnt(0)" % (NE + 2)
        for g, x in enumerate(rd): gaps[g].append(x)
        def place(items, lo, hi):
            g_ = lo
            for y in items:
                if y.startswith("global_load"): g_ = min(g_ + 1, hi); gaps[g_].insert(0, y); continue
                while g_ < hi and len(gaps[g_]) >= 2: g_ += 1
                gaps[g_].append(y)
        nld = sum(1 for x in dm if x.startswith("buffer_load"))
        if nld:
            pos = [1 + (i * O.p1_span) // nld for i in range(nld)]
            li = 0; pend = []; prev = -1
            for x in dm:
                if x.startswith("buffer_load"):
                    place(pend, max(prev, 0), pos[li] - 1); pend = []
                    gaps[pos[li]].insert(0, x); prev = pos[li]; li += 1
                else: pend.append(x)
            place(pend, prev, 25)
        if tailops: assert not gaps[24] and not gaps[25] and not any("m0" in y or "s%d," % sWoff in y for y in gaps[23]), gaps[22:]
        for i_, x in enumerate(tailops): gaps[23 + min(i_, (i_ + 1) // 2)].append(x) if i_ else gaps[23].insert(0, x)
        if mode == "loop" and km == 2: place(kvq + (["v_add_u32 v%d, 4096, v%d" % (vT3, vT3)] if O.wo_at == 1 else []), 8, 25)
        if mode == 28:
            place(kvq + [kvq_m0], 0, 15); gaps[16].insert(0, kvb(vT, 0)); gaps[17].insert(0, kvb(vT2, 1024)); place(addr28, 18, 25)
        if endw: gaps[26].append(endw); gaps[27].append("s_barrier")
        if O.ts and km in (0, 2): gaps[22] += TS_A; gaps[27] += TS_B
        if ctl:
            gaps[25].append("s_sub_u32 s%d, s%d, 1" % (sCnt, sCnt)); gaps[26].append("s_cmp_lg_u32 s%d, 0" % sCnt)
        weave(a, mf, gaps)
    stamp(4)
    a.raw(".p2align 5")
    a.lab("L_p1")
    for km in range(4): p1_kstep(km, "loop", ctl=(km == 3))
    a.e("s_cbranch_scc1 L_p1")
    p1_kstep(0, 28)
    stamp(4)
    a.lab("L_tr")
    a.e(["s_cmp_lg_u32 s%d, 0" % sPass, "s_cbranch_scc1 L_nofl",
         "global_load_dword v%d, v%d, s[%d:%d] sc1" % (vFc, pFc, pWs, pWs + 1),
         "s_cmp_lg_u32 s%d, 0" % sWv, "s_cbranch_scc1 L_nofl",
         "global_load_dword v%d, v%d, s[%d:%d] sc1" % (vFo, pFp, pWs, pWs + 1)])
    a.lab("L_nofl")
    def ismem(x): return x.startswith(("ds_", "buffer_", "global_", "s_barrier"))
    def spread(mf, side, lo=0, hi=None):
        n = len(mf); hi = n - 1 if hi is None else hi
        gaps = [[] for _ in range(n)]
        g = lo
        if any(isinstance(x, list) for x in side):
            n0 = [isinstance(x, list) for x in side].index(True)
            pre = side[:n0]
            gaps[lo] += pre[:-5]; gaps[lo + 1] += pre[-5:] + side[n0]
            side = side[n0 + 1:]; lo += 2; g = lo
        for i_, x in enumerate(side):
            g = max(g, lo + (i_ * (hi - lo + 1)) // len(side))
            if ismem(x) and any(y.startswith("v_") for y in gaps[g]) and g < hi: g += 1
            gaps[g].append(x)
        weave(a, mf, gaps)
    def rdK(i, slot):
        t, ks = i & 1, i >> 1
        return "ds_read_b128 %s, v%d offset:%d" % (ar(aK + 16 * t + 4 * ks, 4), vKr, slot * 8192 + t * 4096 + ks * 256)
    def xlane(op, regs_, tmp):
        out = []
        for sw in ("v_permlane32_swap_b32", "v_permlane16_swap_b32"):
            out += ["v_mov_b32 v%d, v%d" % (t_, r_) for r_, t_ in zip(regs_, tmp)]
            out += ["%s v%d, v%d" % (sw, r_, t_) for r_, t_ in zip(regs_, tmp)]
            out += ["%s v%d, v%d, v%d" % (op, r_, r_, t_) for r_, t_ in zip(regs_, tmp)]
        return out
    def qk(rt, sb):
        out = []
        for i in range(8):
            t, ks = i & 1, i >> 1
            d = vr(S + 8 * sb + 4 * t, 4)
            out.append(mfma(d, ar(aK + 16 * t + 4 * ks, 4), ar(aQ + 16 * rt + 4 * ks, 4), vr(M + 4 * rt, 4) if ks == 0 else d))
        return out
    def oacc(rt, i): return vr(OK + 16 * rt + 4 * i, 4) if i < 4 else ar(aO + 16 * rt + 4 * (i - 4), 4)
    def pv(rt, pb): return [mfma(oacc(rt, i), vr(V + 4 * i, 4), vr(P + 4 * pb, 4), oacc(rt, i)) for i in range(8)]
    aK0 = 176
    def Bq(rt):
        o = []
        if O.pkg & 2: o.append(["v_pk_mul_f32 %s, %s, s[%d:%d]" % (vr(ACC + 16 * rt + 2 * i, 2), vr(ACC + 16 * rt + 2 * i, 2), sC, sC + 1) for i in range(8)])
        for dp in range(2):
            b = ACC + 16 * rt + 8 * dp
            for i in range(4):
                if not O.pkg & 2: o += ["v_mul_f32 v%d, s%d, v%d" % (b + 2 * i, sC, b + 2 * i), "v_mul_f32 v%d, s%d, v%d" % (b + 2 * i + 1, sC, b + 2 * i + 1)]
                o.append("v_cvt_pk_bf16_f32 v%d, v%d, v%d" % (b + i, b + 2 * i, b + 2 * i + 1))
            if dp == 0: o.append("s_waitcnt lgkmcnt(0)")
            o.append("ds_write_b128 v%d, %s offset:%d" % (vQw, vr(b, 4), (rt & 3) * 8192 + dp * 1024))
        return o
    def Cq(rt): return ["ds_read_b128 %s, v%d offset:%d" % (ar(aQ + 16 * rt + 4 * ks, 4), vQr, (rt & 3) * 8192 + (ks >> 1) * 4096 + (ks & 1) * 1024) for ks in range(4)]
    def PP(rt): return [mfma(vr(M + 4 * rt, 4), ar(aK0 + 4 * ks, 4), ar(aQ + 16 * rt + 4 * ks, 4), "0" if ks == 0 else vr(M + 4 * rt, 4)) for ks in range(4)]
    def Dq(rt):
        b = M + 4 * rt
        return ["v_max3_f32 v%d, v%d, v%d, v%d" % (b, b, b + 1, b + 2), "v_max_f32 v%d, v%d, v%d" % (b, b, b + 3)] + ["v_sub_f32 v%d, 0, v%d" % (b + i, b) for i in (1, 2, 3, 0)]
    sync = ["s_waitcnt lgkmcnt(0)", "s_barrier"]
    kvs = [[ptm0(reg, sl), "s_nop 0"] + ptld(reg) + (incK if reg == 3 else []) for sl in (2, 3) for reg in PORD]
    if O.t3late: kvs = [kvs[0], [], kvs[1], [], kvs[2], [], kvs[3], []]
    pfs = ([cp2[-1]] if O.pf_code else []) + ([wopf] if O.wo_at == 29 else [])
    t1 = rdW(30) + [rdX1(15, 0, 0)] + rdW(31) + [rdX1(15, 1, 0)] + [rdX1(15, kk, rt) for rt in range(1, 7) for kk in range(2)]
    spread([m_ for rt in range(5) for m_ in A(rt, 29)], t1 + pfs + sync, 0, 19)
    stamp(1)
    for i in range(8):
        mf = (A(i, 30) + A(i, 31) if i < 7 else qk(0, 0)) + (A(5 + i, 29) if i < 2 else PP(i - 2))
        side = []
        if i == 0: mf += [zero16(vr(OK, 16)), zero16(vr(OK + 16, 16))]
        if i == 0: side += ["ds_read_b128 %s, v%d offset:%d" % (ar(aK0 + 4 * ks, 4), vK0, ks * 256) for ks in range(4)]
        bq = Bq(i - 1) if i >= 1 else []
        nb = O.nb if i >= 2 else 0
        if nb:
            bq = [x for x in bq if not x.startswith("s_waitcnt")]
            w0 = [x for x in bq if x.startswith("ds_write")][0]; bq.remove(w0)
            bq = bq[:18] + ["s_waitcnt lgkmcnt(0)", w0] + bq[18:]
        side += bq[:nb]
        if i >= 2: side += sync + Cq(i - 2)
        if i in (3, 4): side += [rdK(j, 0) for j in range(4 * (i - 3), 4 * (i - 2))]
        side += bq[nb:]
        if i >= 3: side += Dq(i - 3)
        if i == 7: side += ["v_mov_b32 v%d, 0" % j for j in range(L, L + 4)] + ["s_mov_b32 s%d, 3" % sCnt]
        side += kvs[i]
        spread(mf, side)
    if O.ts: a.e(TS_F)
    a.e(["s_cmp_lg_u32 s%d, 0" % sPass, "s_cbranch_scc1 L_maxpass"])
    stamp(1)
    NA = 0

    def dma3(j): return "buffer_load_dwordx4 v%d, s[%d:%d], s%d offen offset:%d %s lds" % (vD + j, sWs, sWs + 3, sWo, j * 1024, O.w3f)
    def setWo(u): return "s_xor_b32 s%d, s%d, 0x%x" % (sWo, sOf, u * 32768)
    def wset(n): return (0, 32, 64, 224)[n & 3]
    def rd3(k, off, dts=range(8)):
        return ["ds_read_b64_tr_b16 %s, v%d offset:%d" % (ar(wset(k) + 4 * dt + 2 * sec, 2), vR + (dt & 1), off + (dt >> 1) * 256 + sec * 4096) for dt in dts for sec in range(2)]
    def xw(rt): return ["ds_write_b128 v%d, %s offset:%d" % (vTa, ar(aO + 16 * rt + 4 * i, 4), rt * 4096 + i * 1024) for i in range(4)]
    vm = VM(["kv"])
    sDyn, sDd = 10, 11
    KV = " ;kv"
    def dm0(reg): return "s_add_u32 m0, s%d, %d" % (sDyn, reg * 32768)
    incD = incK + ["s_add_u32 s%d, s%d, 8192" % (sDyn, sDyn), "s_and_b32 s%d, s%d, 0x7fff" % (sDyn, sDyn)]
    initD = ["s_sub_u32 s%d, s%d, 0x20000" % (sDyn, sMW), "s_mov_b32 s%d, %d" % (sDd, O.th)]
    vFp, vFa = 239, 252
    def loff(rt): return 28672 + (rt & 3) * 4 + (rt >> 2) * 1024
    def lw(rt): return "ds_write_b32 v%d, v%d offset:%d" % (vTa, L + rt, loff(rt))
    def rdc(rt, pb): return ["ds_read_b32 v%d, v%d offset:%d" % (E2 + 2 + (rt & 1), vTb, loff(rt))] + ["ds_read_b128 %s, v%d offset:%d" % (vr(pb + 4 * i, 4), vTb, (rt * 4 + i) * 1024) for i in range(4)]
    def comb(rt, pb):
        ob = OK + 16 * rt; t = E2 + 2 + (rt & 1)
        return (["v_add_f32 v%d, v%d, v%d" % (t, t, L + rt), "v_rcp_f32 v%d, v%d" % (t, t)] + ["v_add_f32 v%d, v%d, v%d" % (ob + i, ob + i, pb + i) for i in range(16)]
                + [x for i in range(8) for x in ("v_mul_f32 v%d, v%d, v%d" % (ob + 2 * i, ob + 2 * i, t), "v_mul_f32 v%d, v%d, v%d" % (ob + 2 * i + 1, ob + 2 * i + 1, t),
                                                 "v_cvt_pk_bf16_f32 v%d, v%d, v%d" % (ob + i, ob + 2 * i, ob + 2 * i + 1))])
    def combp(rt, pb):
        ob = OK + 16 * rt; t = E2 + 2
        o = ["v_add_f32 v%d, v%d, v%d" % (t + (rt & 1), t + (rt & 1), L + rt), "v_rcp_f32 v%d, v%d" % (t + (rt & 1), t + (rt & 1))]
        o += ["v_pk_add_f32 %s, %s, %s" % (vr(ob + 2 * i, 2), vr(ob + 2 * i, 2), vr(pb + 2 * i, 2)) for i in range(8)]
        o += ["v_pk_mul_f32 %s, %s, %s %s" % (vr(ob + 2 * i, 2), vr(ob + 2 * i, 2), vr(t, 2), "op_sel:[0,1]" if rt & 1 else "op_sel_hi:[1,0]") for i in range(8)]
        return o + ["v_cvt_pk_bf16_f32 v%d, v%d, v%d" % (ob + i, ob + 2 * i, ob + 2 * i + 1) for i in range(8)]
    def ost(rt): return ["buffer_store_dwordx4 %s, v%d, s[%d:%d], s%d offen offset:%d sc1" % (vr(OK + 16 * rt + 4 * p, 4), vL16, sO, sO + 3, sRt + rt, p * 1024) for p in range(2)]
    pend = []; cost = [0]
    def step(js, r, last=False, first=False, kv=False, ctl=False):
        u = 7 * js + r
        fin = last and js == 3
        mf = ([] if (fin and r == 6) else qk((r + 1) % 7, (u + 1) & 1)) + pv((r + 6) % 7, (u + 1) & 1)
        mem = [[] for _ in range(16)]; val = [[] for _ in range(16)]
        pk = not fin and not (first and r == 0)
        Eb = E2 if (pk and u & 1) else E
        for e in range(8):
            val[2 * e].append("v_exp_f32 v%d, v%d" % (Eb + e, S + 8 * (u & 1) + e))
            if not pk: val[2 * e + 1].append("v_add_f32 v%d, v%d, v%d" % (L + r, L + r, Eb + e))
            if e & 1: val[2 * e + 1].append("v_cvt_pk_bf16_f32 v%d, v%d, v%d" % (P + 4 * (u & 1) + (e >> 1), Eb + e - 1, Eb + e))
        if first and r == 0:
            mf = mf[:8] + PP(6) + [zero16(ar(192, 16)), zero16(ar(208, 16))]
            mem[0] += sync + Cq(6)[:2]; mem[1] += Cq(6)[2:]; mem[7].append("s_waitcnt lgkmcnt(0)")
            for i_, x in enumerate(Dq(5)): val[3 + 2 * i_].append(x)
        if first and r == 1:
            for i_, x in enumerate(Dq(6) + ["v_mov_b32 v%d, 0" % j for j in range(L + 4, L + 7)]): val[1 + 4 * (i_ % 4)].append(x) if i_ >= 6 else val[1 + 2 * i_].append(x)
        if first and r == 2: mem[9].append(zero16(ar(176, 16)))
        if first and r == 3: mem[1].append(initD[0]); mem[5].append(initD[1])
        if O.pf3 and first and r == 4:
            for i_, x in enumerate(codepf("L_last", "L_go", 250)[:-1]): val[1 + 2 * i_].append(x)
        if O.pf3 and not first and not last and js == O.pf3 % 4 and r == 1: mem[9].append(codepf("L_last", "L_go", 250)[-1])
        vrd = ["ds_read_b64_tr_b16 %s, v%d offset:%d" % (vr(V + 4 * i + 2 * sec, 2), vVr + (i & 1), js * 8192 + (i >> 1) * 256 + sec * 4096) for i in range(8) for sec in range(2)]
        if not fin and not first:
            if r == 0: mem[9] += vrd[0:3]; mem[11] += vrd[3:5]; mem[13] += vrd[5:8]; mem[15] += vrd[8:10]
            if r == 1:
                mem[1] += vrd[10:12]; mem[3] += vrd[12:14]; mem[5] += vrd[14:16]
                mem[7].append("s_waitcnt lgkmcnt(4)"); mem[13].append("s_waitcnt lgkmcnt(0)")
        else:
            if r == 0:
                for i in range(16): mem[8 + i // 2].append(vrd[i])
            if r == 1: mem[5].append("s_waitcnt lgkmcnt(%d)" % (5 if fin else 0))
        if r == 5 and not fin: mem[0].append("s_barrier")
        if r == 4 and not last: mem[13] += ["s_getreg_b32 s%d, hwreg(HW_REG_IB_STS, 0, 4)" % sT2]; mem[15].append("s_waitcnt vmcnt(8)")
        if r == 4 and ctl: mem[9].append("s_sub_u32 s%d, s%d, 1" % (sCnt, sCnt)); mem[11].append("s_cmp_lg_u32 s%d, 0" % sCnt)
        if kv:
            pts = [tuple(int(y) for y in x.split(".")) for x in O.pts.split(",")]
            pos = [((pr_ - 5) % 7) * 16 + pg_ for pr_, pg_ in pts]
            here = ((r - 5) % 7) * 16
            def put(p_, xs):
                if here <= p_ < here + 16: mem[p_ - here] += [x + KV for x in xs]
            for n_ in range(4):
                put(pos[n_] - 2, [dm0(PORD[n_])]); put(pos[n_], ptld(PORD[n_]))
            put(pos[3] + 2, incD[0:2]); put(pos[3] + 4, incD[2:4])
        if last:
            sched = [{(0, 6): 0, (1, 1): 6, (1, 3): 1, (1, 6): 7, (2, 0): 2, (2, 2): 3, (2, 5): 4, (3, 0): 5},
                     {(1, 1): 0, (1, 3): 1, (1, 6): 6, (2, 1): 2, (2, 2): 3, (2, 6): 4, (3, 0): 5, (3, 1): 7},
                     {(1, 2): 0, (1, 3): 1, (1, 6): 6, (2, 0): 7, (2, 2): 2, (2, 4): 3, (2, 6): 4, (3, 1): 5}][O.ts9]
            if (js, r) in sched:
                k = sched[(js, r)]
                base, off = (sReg, k * 4096) if k < 6 else (sSp, (k - 6) * 4096)
                g0 = (9, 11, 13, 15) if r == 5 else ((1, 3, 5, 7) if r == 0 else (1, 5, 9, 13))
                mem[g0[0] - 1] += ["s_add_u32 m0, s%d, %d" % (base, off), setWo(k)]
                for j in range(4): mem[g0[j]].append(("w%d" % k, dma3(j)))
            if r == 4 and js == 1: mem[13].append(("wait8", "kv"))
            if r == 4 and js == 2: mem[13].append(("wait", "kv"))
            if r == 5 and js < 1:
                mem[11].append("s_cmp_ge_u32 s%d, %d" % (sK0, 16 * TS_))
                mem[13].append(("kv", ["s_cbranch_scc1 L_ok%d" % js] + [x for reg in PORD for x in [dm0(reg), "s_nop 0"] + ptld(reg)] + incD + ["L_ok%d:" % js]))
            if js == 2 and r == 3 and O.pf_code and not O.ts:
                pf = codepf("L_epi", "L_end", vT)
                for i_, x in enumerate(pf[:-1]): val[1 + 2 * i_].append(x)
                mem[15].append(("pf", pf[-1]))
            if js == 1 and r == 2:
                val[1] += ["v_add_u32 v%d, s%d, v%d" % (vTa, sReg, vL16)]; val[5] += ["v_add_u32 v%d, s%d, v%d" % (vTb, sRing, vL16)]
            if js == 1 and r == 4:
                for i_, x in enumerate(flagp(vFp, vT2)): val[1 + 2 * (i_ // 4)].append(x)
            if js == 2 and r == 1:
                for i_, x in enumerate(["s_lshr_b32 s%d, s%d, 6" % (sT, sOf), "v_add_u32 v248, s%d, v%d" % (sT, vL16), "v_add_u32 v%d, 1, v%d" % (vFo, vFo)]): val[9 + 2 * i_].append(x)
            if js == 2 and r == 4:
                fc = flagc(vFa)
                for i_, x in enumerate(fc[:-3]): val[1 + 2 * (i_ // 2)].append(x)
                val[11] += fc[-3:]
            if fin:
                h2 = 8 if 2 <= r < 6 else 0
                if r < 6:
                    if r % 2 == 0: mem[h2] += [("wait", "w%d" % r), ("wait", "w%d" % (r + 1))]
                if r == 1: mem[9].append("s_barrier")
                g1 = list(range(0, 8)) if r < 6 else [8, 8, 9, 9, 10, 10, 11, 11]
                g2 = list(range(8, 16)) if r < 6 else [12, 12, 13, 13, 14, 14, 15, 15]
                if r >= 3: mem[g1[0]].append("s_waitcnt lgkmcnt(0)")
                if r >= 2:
                    for i_, x in enumerate(xw(r - 2) + [lw(r - 2)]): mem[g1[1 + i_]].append(x)
                    mem[g2[0]] += sync
                    for i_, x in enumerate(rdc(r - 2, 128)): mem[g2[(i_ + 1) // 2]].append(x)
                if r < 6:
                    for i_, x in enumerate(rd3(r >> 1, (r >> 1) * 8192, range(4 * (r & 1), 4 * (r & 1) + 4))): mem[h2 + (i_ if h2 == 0 else 3 + i_ // 2)].append(x)
                else:
                    mem[8] += [("wait", "w6"), ("wait", "w7")]
                    for i_, x in enumerate(rd3(3, 0)): mem[8 + i_ // 2].append(x)
                vg = r < 6
                if r >= 3:
                    if O.pkg & 1:
                        cb = combp(r - 3, 128)
                        val[1] += cb[:2]; late3 = cb[2:10]; late7 = cb[10:18]
                        for i_, x in enumerate(cb[18:]): val[8 + (i_ * 6) // 8].append(x)
                    else:
                        cb = comb(r - 3, 128)
                        for i_, x in enumerate(cb[:18]): val[(i_ * 8) // 18].append(x)
                        for i_, x in enumerate(cb[18:]): val[8 + (i_ * 6) // 24].append(x)
                    mem[15] += [("st", x) for x in ost(r - 3)]
                    if O.wfin and r >= 4:
                        u_ = 8 + r - 4
                        mem[g1[0]] += ["s_add_u32 m0, s%d, %d" % (sRing, (u_ & 7) * 4096), setWo(u_)]
                        for j in range(4): mem[g1[2 + j]].append(("w%d" % u_, dma3(j)))
                if r >= 1:
                    for i_, x in enumerate(xlane("v_add_f32", [L + r - 1], [E2])): val[3 + 2 * i_].append(x)
                if r >= 3 and O.pkg & 1: val[3] += late3 + late7
                if r == 5: val[15] += ["v_add_u32 v%d, s%d, v%d" % (vR + i, sD1, vR + i) for i in range(2)]
        if r == 5 and not fin:
            for i in range(8): mem[(1, 1, 3, 5, 5, 7, 9, 9)[i]].append(rdK(i, (js + 1) & 3))
            mem[15].insert(0, "s_waitcnt lgkmcnt(0)")
            if O.ts: mem[11] += TS_A; mem[15] += TS_B
        if fin and r == 6:
            mem = [mem[8 + i] for i in range(8)]
            val = [val[2 * i] + val[2 * i + 1] for i in range(8)]
            val = [[v_[0], "s_nop 0"] + v_[1:] for v_ in val]
            a.e("s_nop 1")
        if first and r == 0:
            mem = mem[:12] + [mem[12] + mem[13], mem[14] + mem[15]]
            val = val[:12] + [val[12] + ["s_nop 0"] + val[13], val[14] + ["s_nop 0"] + val[15]]
        if pk:
            flush = r == 4 or (last and js == 2 and r == 6)
            old_ = len(pend)
            for g in range(1, 16, 2):
                pend.append("v_add_f32 v%d, v%d, v%d" % (L + r, L + r, Eb + g // 2))
                n_ = max(0, 2 - len(mem[g]) - len(val[g]))
                if g == 15: n_ = max(n_, len(pend) if flush else old_)
                n_ = min(n_, len(pend))
                val[g] += pend[:n_]; del pend[:n_]; old_ = max(0, old_ - n_)
        else: assert not pend
        if O.padn and pk:
            for i_ in range(O.padn): val[2 * i_].append("s_nop 0")
        for g_, v_ in zip(mem, val): cost[0] += max(16, 8 + sum(8 if (isinstance(x, str) and "v_exp" in x) else 4 for x in g_ + v_))
        if r == 4:
            if O.verbose: print("unit ending", js, last, first, "model cycles", cost[0], file=sys.stderr)
            cost[0] = 0
        for m_, g_, v_ in zip(mf, mem, val):
            a.e(m_)
            for x in g_:
                if isinstance(x, tuple):
                    if x[0] == "wait": a.e("s_waitcnt vmcnt(%d)" % vm.n(x[1]))
                    elif x[0] == "wait8": a.e("s_waitcnt vmcnt(%d)" % (vm.n(x[1]) + 8))
                    elif x[0] == "kv": vm.issue("kv", True); a.e(x[1])
                    else: vm.issue(x[0]); a.e(x[1])
                else: a.e(x)
            a.e(v_)
    for r in range(5): step(0, r, first=True)
    quiet = []
    a.raw(".p2align 5")
    a.lab("L_loop")
    for js in range(4):
        if O.force_skip & (1 << js): a.e("s_or_b32 s%d, s%d, 15" % (sT2, sT2))
        a.e(["s_cmp_gt_u32 s%d, s%d" % (sT2, sDd), "s_cbranch_scc1 L_h%d" % js])
        a.lab("L_u%d" % js)
        q0 = len(a.L)
        for r in (5, 6): step(js, r, kv=True)
        step((js + 1) & 3, 0, kv=True)
        qe = max(i_ for i_ in range(q0, len(a.L)) if a.L[i_].endswith(KV)) + 1
        quiet.append([ln for ln in a.L[q0:qe] if not ln.endswith(KV)])
        a.L.insert(qe, "L_j%d:" % js)
        for r in range(1, 5): step((js + 1) & 3, r, ctl=(js == 3))
    a.e(["s_cbranch_scc1 L_loop", "s_branch L_last"])
    for js in range(4):
        a.lab("L_h%d" % js)
        a.e("s_mov_b32 s%d, 99" % sDd)
        a.L += quiet[js]
        a.e("s_branch L_j%d" % js)
    a.lab("L_last")
    for r in (5, 6): step(0, r, last=True)
    for js in range(1, 4):
        for r in range(7): step(js, r, last=True)
    stamp()

    a.lab("L_epi")
    if O.ts: a.e(TS_F)
    misc = ["v_add_f32 v%d, v%d, v%d" % (vTc, L, L + 1)] + ["v_add_f32 v%d, v%d, v%d" % (vTc, vTc, L + i) for i in range(2, 7)]
    misc += ["s_mov_b32 s%d, 0x%x" % (sT, THR if not O.force_slow else 0), "s_lshl_b32 s%d, s%d, 2" % (sG, sWv),
             "v_cmp_ngt_f32 vcc, s%d, v%d" % (sT, vTc),
             "s_add_u32 s%d, s%d, 30720" % (sG, sG), "v_mov_b32 v%d, s%d" % (vT, sG),
             "s_cmp_lg_u64 vcc, 0", "s_cselect_b32 s%d, 1, 0" % sT, "v_mov_b32 v%d, 30720" % vT2, "v_mov_b32 v%d, s%d" % (L + 7, sT)]
    xl = xlane("v_add_f32", [L + 6], [E2])
    pvl = pv(6, 1); pvl = pvl[4:] + pvl[:4]
    gp = [[] for _ in range(8)]
    for i_, x in enumerate(xw(5) + [lw(5)]): gp[2 + i_].append(x)
    for i_, x in enumerate(misc): gp[(i_ * 8) // len(misc)].append(x)
    for i_, x in enumerate(xl): gp[2 + i_].append(x)
    a.e(["s_waitcnt lgkmcnt(0)", "s_nop 0"])
    weave(a, pvl, gp)
    a.e(xw(6) + [lw(6), "ds_write_b32 v%d, v%d" % (vT, L + 7)])
    def stores(rt):
        for x in ost(rt): vm.issue("st"); a.e(x)
    c4 = combp(4, 128)
    a.e(c4[:18] + sync)
    stamp(2)
    a.e(["ds_read_b128 %s, v%d" % (vr(216, 4), vT2)] + rdc(5, 144) + rdc(6, 160) + c4[18:])
    stores(4)
    a.e(["v_add_u32 v%d, s%d, v%d" % (vR + i, sD2, vR + i) for i in range(2)])
    a.e(["s_waitcnt lgkmcnt(5)", "v_or3_b32 v216, v216, v217, v218", "v_or_b32 v216, v216, v219"] + combp(5, 144) + ["v_readfirstlane_b32 s%d, v216" % sT])
    stores(5)
    a.e(["s_waitcnt lgkmcnt(0)"] + combp(6, 160))
    stores(6)
    a.e(["s_andn2_b32 s%d, s%d, s%d" % (sT, sT, sPass), "s_cbranch_scc1 L_slow"])
    def wload(k, j):
        if j == 0: a.e(["s_add_u32 m0, s%d, %d" % (sRing, (k & 7) * 4096), setWo(k)])
        vm.issue("w%d" % k); a.e(dma3(j))
    wi = 12 if O.wfin else 0
    stamp(2)
    ACC3, OF = 16, 128
    vS, vOo, vOut, vPs = 6, 248, 249, 250
    def acc3(rt, sl):
        hb, wv = sl >> 2, sl & 3
        return vr(ACC3 + 16 * rt + 4 * (2 * hb + wv), 4) if wv < 2 else ar(112 + 16 * rt + 4 * (2 * hb + wv - 2), 4)
    for _ in range(min(O.w_late, 28 - wi)): wload(8 + wi // 4, wi % 4); wi += 1
    a.e(["s_lshl_b32 s%d, s%d, 5" % (sT, sB), "s_add_u32 s%d, s%d, s%d" % (sT, sT, sH), "v_mov_b32 v%d, s%d" % (vT2, sT), "v_mov_b32 v%d, 1" % vT3,
         "v_xor_b32 v243, 0x80, v%d" % vT2, "v_mov_b32 v241, v%d" % vFa,
         "s_lshr_b32 s%d, s%d, 1" % (sT, sRB), "s_lshl_b32 s%d, s%d, 5" % (sT, sT), "s_lshl_b32 s%d, s%d, 2" % (sG, sPm), "s_add_u32 s%d, s%d, s%d" % (sT, sT, sG),
         "v_mov_b32 v242, s%d" % sT, "s_mov_b32 s%d, 0x40000" % sCnt])
    if O.ts: a.e(TS_F)
    a.e(["s_waitcnt vmcnt(%d)" % vm.n("st"), "s_barrier"])
    if O.ts: a.e(TS_F)
    stamp(2)
    if O.stamps: a.e("s_memrealtime s[6:7]")
    a.e(["s_cmp_lg_u32 s%d, 0" % sWv, "s_cbranch_scc1 L_noflag",
         "s_mov_b64 exec, 0xfffff", "global_store_dword v%d, v%d, s[%d:%d] sc1" % (vFp, vFo, pWs, pWs + 1),
         "s_mov_b64 exec, 1", "global_store_byte v%d, v%d, s[%d:%d] sc1" % (vT2, vT3, pDbg, pDbg + 1), "s_mov_b64 exec, -1"])
    a.lab("L_noflag")
    stamp(2)
    def wpieces(lo, hi):
        out = []
        for p_ in range(lo, hi):
            u, j = 8 + p_ // 4, p_ % 4
            out.append((["s_add_u32 m0, s%d, %d" % (sRing, (u & 7) * 4096), setWo(u)] if j == 0 else [], ("w%d" % u, dma3(j))))
        return out
    if O.dynw:
        a.e(["s_mov_b64 exec, 31", "global_load_dword v%d, v241, s[%d:%d] sc1" % (vT, pWs, pWs + 1), "s_waitcnt vmcnt(0)", "v_cmp_eq_u32 vcc, v%d, v%d" % (vT, vFc), "s_nop 0", "s_cbranch_vccz L_go", "s_mov_b64 exec, -1"])
        for pre, op in wpieces(wi, 32): a.e(pre + [op[1]])
    a.e("s_mov_b64 exec, 31")
    a.lab("L_poll")
    a.e(["global_load_dword v%d, v241, s[%d:%d] sc1" % (vT, pWs, pWs + 1), "s_sub_u32 s%d, s%d, 1" % (sCnt, sCnt), "s_cbranch_scc1 L_go",
         "s_waitcnt vmcnt(0)", "v_cmp_eq_u32 s[%d:%d], v%d, v%d" % (sC, sC + 1, vT, vFc), "s_nop 0", "s_cmp_eq_u64 s[%d:%d], 0" % (sC, sC + 1), "s_cbranch_scc1 L_go",
         "s_and_b32 s%d, s%d, 15" % (sT, sCnt), "s_cbranch_scc1 L_poll",
         "global_load_dword v%d, v242, s[%d:%d] sc1" % (vT, pDbg, pDbg + 1), "global_load_ubyte v%d, v243, s[%d:%d] sc1" % (vT2, pDbg, pDbg + 1), "s_waitcnt vmcnt(0)",
         "v_add_u32 v%d, v%d, v%d" % (vT, vT, vT2), "s_nop 0", "v_readfirstlane_b32 s%d, v%d" % (sT, vT),
         "s_nop 0", "s_cmp_eq_u32 s%d, 0x01010102" % sT, "s_cbranch_scc0 L_poll"])
    a.lab("L_go")
    a.e("s_mov_b64 exec, -1")
    if O.wggo: a.e("s_barrier")
    stamp()
    if O.stamps: a.e(["s_memrealtime s[4:5]", "s_sub_u32 s10, 0x40000, s11"])
    def ldO(rt, k): return "buffer_load_dwordx4 %s, v%d, s[%d:%d], s%d offen sc1" % (vr(OF + 28 * (k & 3) + 4 * rt, 4), vOo, sOs, sOs + 3, sRt + rt)
    def incO(k): return "v_xor_b32 v%d, 0x%x, v%d" % (vOo, (k ^ (k + 1)) << 10, vOo)
    for k in range(2):
        for rt in range(7): vm.issue("o%d" % k); a.e(ldO(rt, k))
        a.e(incO(k))
    a.e(["v_add_u32 v%d, s%d, v%d" % (vS, sRing, vL16)])
    for i in range(1, 4): a.e(["v_xor_b32 v%d, 0x%x, v%d" % (vS + i, i << 15, vS)])
    a.e(["v_and_b32 v%d, 15, v%d" % (vT, vL), "v_lshrrev_b32 v%d, 4, v%d" % (vT2, vL), "v_lshlrev_b32 v%d, 3, v%d" % (vT2, vT2),
         "v_lshl_add_u32 v%d, v%d, 11, v%d" % (vT, vT, vT2),
         "s_lshl_b32 s%d, s%d, 8" % (sT, sCT), "s_lshl_b32 s%d, s%d, 5" % (sG, sPm), "s_add_u32 s%d, s%d, s%d" % (sT, sT, sG),
         "v_add_u32 v%d, s%d, v%d" % (vOut, sT, vT)] + boxaddr(vPs) + ["v_xor_b32 v%d, 0x8000, v%d" % (vPs + 1, vPs)])
    if O.ts: a.e(TS_F)
    a.e(["s_waitcnt vmcnt(%d)" % (vm.n("o0") + 6)])
    def redw(rt, hb, wv): return "ds_write_b128 v%d, %s offset:%d" % (vS, acc3(rt, 4 * hb + wv), (wv - 1) * 7168 + rt * 1024)
    def redr(rt, wv, d): return "ds_read_b128 %s, v%d offset:%d" % (vr(d, 4), vS + wv, (wv - 1) * 7168 + rt * 1024)
    def mf3(rt, sl, k): return mfma(acc3(rt, sl), ar(wset(k) + 4 * sl, 4), vr(OF + 28 * (k & 3) + 4 * rt, 4), acc3(rt, sl) if k else "0")
    def emit(mf, gaps):
        for m_, g_ in zip(mf, gaps):
            a.e(m_)
            for x in g_:
                if isinstance(x, tuple):
                    if x[0] == "wait": a.e("s_waitcnt vmcnt(%d)%s" % (min(vm.n(t_) for t_ in x[1]), " lgkmcnt(0)" if x[2] else ""))
                    elif x[0] == "wait0": a.e("s_waitcnt vmcnt(%d)" % (vm.n("o0") + x[1]))
                    elif isinstance(x[1], list):
                        nsk[0] += 1
                        for _ in range(4): vm.issue(x[0], True)
                        a.e(["s_cbranch_vccnz L_sk%d" % nsk[0]] + x[1]); a.lab("L_sk%d" % nsk[0])
                    elif (O.dbg3 & 1 and x[0][0] == "w") or (O.dbg3 & 2 and x[0][0] == "o" and int(x[0][1:]) > 3): vm.issue(x[0])
                    else: vm.issue(x[0]); a.e(x[1])
                elif O.dbg3 & 4 and x.startswith("ds_read_b64"): pass
                else: a.e(x)
    nsk = [0]
    ws0, ws1 = 2, O.ws1
    pstep = [ws0 + (p_ * (ws1 - ws0)) // 64 for p_ in range(64)]
    rstep = {m_: m_ - 3 for m_ in range(4, 8)}
    for m_ in range(8, 16):
        rstep[m_] = max(m_ - 3, pstep[8 * (m_ - 8) + 7] + 2)
        assert pstep[8 * (m_ - 8)] > rstep[m_ - 4] and rstep[m_] <= min(m_ - 1, 13) and (m_ == 15 or rstep[m_] <= 12), m_
    for k in range(13):
        mf = [mf3(rt, sl, k) for rt in range(7) for sl in range(8)]
        gaps = [[] for _ in range(56)]
        rds = [m_ for m_ in rstep if rstep[m_] == k]
        for g, x in enumerate([y for m_ in rds for y in rd3(m_, (m_ & 3) * 8192)]): gaps[g].append(x)
        wl = []
        if k < 3:
            assert wi % 4 == 0 and wi >= 8 and O.dynw
            us = list(range(wi // 4, 8)); us = us[(len(us) * k) // 3:(len(us) * (k + 1)) // 3]
            wl = [([], ("w%d" % (8 + u_), [y for pre, op in wpieces(4 * u_, 4 * u_ + 4) for y in pre + [op[1]]])) for u_ in us]
        ps_ = [p_ for p_ in range(64) if pstep[p_] == k]
        if ps_: wl += wpieces(32 + ps_[0], 32 + ps_[-1] + 1)
        ol = [([], ("o%d" % kk_, ldO(rt, kk_))) + ((incO(kk_),) if rt == 6 else ()) for kk_ in ([2, 3] if k == 0 else [k + 3]) for rt in range(7)]
        ld = sorted([((i_ + 0.5) / len(wl), x) for i_, x in enumerate(wl)] + [((i_ + 0.25) / len(ol), x) for i_, x in enumerate(ol)], key=lambda t_: t_[0])
        for i_, (_, x) in enumerate(ld):
            g = 1 + (i_ * 53) // len(ld)
            gaps[g - 1] += x[0]; gaps[g].insert(0, x[1])
            if len(x) > 2: gaps[g].append(x[2])
        if k == 0:
            for rt in range(1, 7): gaps[8 * rt - 1].append(("wait0", 6 - rt))
        need_ = ["o%d" % (k + 1)] + ["w%d" % (2 * m_ + 1) for m_ in rstep if rstep[m_] == k + 1]
        gaps[55].append(("wait", need_, bool(rds)))
        if O.ts: gaps[55] += TS_F
        emit(mf, gaps)
    mf = [mf3(rt, 4 * hb + wv, k) for hb in (1, 0) for k in (13, 14, 15) for rt in range(7) for wv in range(4)]
    gaps = [[] for _ in range(168)]
    if rstep[15] == 13:
        for g, x in enumerate(rd3(15, 3 * 8192)): gaps[g].append(x)
    gaps[27].append(("wait", ["o14"], False)); gaps[55].append(("wait", ["o15"], True))
    for rt in range(7):
        for wv in range(1, 4): gaps[56 + 4 * rt + wv + 8].append(redw(rt, 1, wv))
    gaps[94].append("s_waitcnt lgkmcnt(0)"); gaps[95].append("s_barrier")
    def tmp1(rt, wv): return (ACC3 + 16 * rt + 12, OF + 4 * rt, OF + 28 + 4 * rt)[wv - 1]
    for rt in range(7):
        g = 96 + 4 * rt
        gaps[g] += [redr(rt, 1, tmp1(rt, 1)), redr(rt, 2, tmp1(rt, 2))]; gaps[g + 1].append(redr(rt, 3, tmp1(rt, 3)))
    for rt in range(7):
        g = 96 + 4 * rt + 6; b = ACC3 + 16 * rt + 8
        gaps[g - 1].append("s_waitcnt lgkmcnt(%d)" % (3 if rt < 6 else 0))
        ads = ["v_add_f32 v%d, v%d, v%d" % (b + i, b + i, tmp1(rt, 1) + i) for i in range(4)]
        ads += ["v_add_f32 v%d, v%d, v%d" % (tmp1(rt, 2) + i, tmp1(rt, 2) + i, tmp1(rt, 3) + i) for i in range(4)]
        ads += ["v_add_f32 v%d, v%d, v%d" % (b + i, b + i, tmp1(rt, 2) + i) for i in range(4)]
        gaps[g] += ads[0:4]; gaps[g + 1] += ads[4:8]; gaps[g + 2] += ads[8:10]; gaps[g + 3] += ads[10:12]
        gaps[g + 4].insert(0, ("ps", "global_store_dwordx4 v%d, %s, s[%d:%d] offset:%d sc1" % (vPs + 1, vr(b, 4), pWs, pWs + 1, rt * 1024 - 3072)))
    gaps[132].append("s_barrier")
    gaps[134].append("v_add_u32 v%d, 1, v%d" % (vT2, vFc))
    gaps[O.f2gap] += ["s_waitcnt vmcnt(0)", "s_mov_b64 exec, 64", "global_store_dword v241, v%d, s[%d:%d] sc1" % (vT2, pWs, pWs + 1), "s_mov_b64 exec, -1"]
    lastw = []
    for rt in range(7):
        for wv in range(1, 4):
            g2 = 140 + 4 * rt + wv + 8
            if g2 < 168: gaps[g2].insert(0, redw(rt, 0, wv))
            else: lastw.append(redw(rt, 0, wv))
    emit(mf, gaps)
    stamp()
    if O.ts: a.e(TS_F)
    PB = OF + 84
    ldP = ["global_load_dwordx4 %s, v%d, s[%d:%d] offset:%d sc1" % (vr(PB + 4 * rt, 4), vPs, pWs, pWs + 1, rt * 1024 - 3072) for rt in range(7)]
    pl2 = "global_load_dword v%d, v241, s[%d:%d] sc1" % (vT, pWs, pWs + 1)
    a.e(["s_mov_b64 exec, 32", pl2, "s_mov_b64 exec, -1"] + lastw[:3] + ["s_nop 1"] + lastw[3:] + ["s_mov_b32 s%d, 0x40000" % sCnt, "s_waitcnt lgkmcnt(0)", "s_barrier"])
    for rt in range(7):
        for wv in range(1, 4): a.e(redr(rt, wv, OF + 12 * rt + 4 * (wv - 1)))
    a.e("s_mov_b64 exec, 32")
    a.lab("L_poll2")
    a.e(["s_waitcnt vmcnt(0)", "v_cmp_eq_u32 vcc, v%d, v%d" % (vT, vFc), "s_sub_u32 s%d, s%d, 1" % (sCnt, sCnt), "s_cbranch_vccz L_go2", "s_cbranch_scc1 L_go2", pl2, "s_branch L_poll2"])
    a.lab("L_go2")
    a.e(["s_mov_b64 exec, -1"] + ldP)
    for rt in range(7):
        a.e("s_waitcnt lgkmcnt(%d)" % min(15, 3 * (6 - rt)))
        b = ACC3 + 16 * rt; t = OF + 12 * rt
        for h in range(2):
            a.e("v_pk_add_f32 %s, %s, %s" % (vr(b + 2 * h, 2), vr(b + 2 * h, 2), vr(t + 2 * h, 2)))
            a.e("v_pk_add_f32 %s, %s, %s" % (vr(t + 4 + 2 * h, 2), vr(t + 4 + 2 * h, 2), vr(t + 8 + 2 * h, 2)))
        for h in range(2): a.e("v_pk_add_f32 %s, %s, %s" % (vr(b + 2 * h, 2), vr(b + 2 * h, 2), vr(t + 4 + 2 * h, 2)))
    for rt in range(7):
        b = ACC3 + 16 * rt; t = PB + 4 * rt
        a.e(["s_waitcnt vmcnt(6)"] + ["v_pk_add_f32 %s, %s, %s" % (vr(b + 2 * h, 2), vr(b + 2 * h, 2), vr(t + 2 * h, 2)) for h in range(2)])
        a.e(["v_cvt_pk_bf16_f32 v%d, v%d, v%d" % (b, b, b + 1), "v_cvt_pk_bf16_f32 v%d, v%d, v%d" % (b + 1, b + 2, b + 3),
             "s_mov_b32 s%d, %d" % (sT, rt * 32768),
             "buffer_store_dwordx2 %s, v%d, s[%d:%d], s%d offen %s" % (vr(b, 2), vOut, sOut, sOut + 3, sT, O.out_flags)])
    if O.stamps:
        a.e(["s_waitcnt vmcnt(0)"])
        if O.ts: a.e(TS_F)
        stamp()
        a.e(["s_memrealtime s[78:79]", "s_waitcnt lgkmcnt(0)", "s_lshl_b32 s%d, s2, 2" % sT, "s_add_u32 s%d, s%d, s%d" % (sT, sT, sWv), "s_lshl_b32 s%d, s%d, 6" % (sT, sT),
             "s_add_u32 s%d, s%d, 0x%x" % (sT, sT, STAMP_OFF),
             "s_add_u32 s%d, s%d, s%d" % (sO, pWs, sT), "s_addc_u32 s%d, s%d, 0" % (sO + 1, pWs + 1), "s_mov_b32 s%d, 64" % (sO + 2), "v_mov_b32 v%d, 0" % vT])
        for i in range(nst[0]):
            a.e(["s_sub_u32 s%d, s%d, s%d" % (sT, sST + 2 * i, sST), "v_mov_b32 v%d, s%d" % (vT2, sT),
                 "buffer_store_dword v%d, v%d, s[%d:%d], 0 offen offset:%d" % (vT2, vT, sO, sO + 3, 4 * i)])
        for i, r_ in enumerate((10, 6, 4, sST, 78)):
            a.e(["v_mov_b32 v%d, s%d" % (vT2, r_), "buffer_store_dword v%d, v%d, s[%d:%d], 0 offen offset:%d" % (vT2, vT, sO, sO + 3, 44 + 4 * i)])
    if O.ts:
        a.e(["s_lshl_b32 s%d, s2, 9" % sT, "s_add_u32 s%d, s%d, 0x%x" % (sT, sT, STAMP_OFF + 0x200000),
             "s_add_u32 s%d, s%d, s%d" % (sO, pWs, sT), "s_addc_u32 s%d, s%d, 0" % (sO + 1, pWs + 1), "s_mov_b32 s%d, 512" % (sO + 2),
             "v_lshlrev_b32 v%d, 2, v%d" % (vT, vL), "buffer_store_dword v0, v%d, s[%d:%d], 0 offen" % (vT, sO, sO + 3)])
    a.lab("L_end")
    a.e("s_endpgm")

    if O.wo_at >= 100:
        a.lab("L_wopf")
        a.e(["s_lshl_b32 s%d, s2, 2" % sT, "s_add_u32 s%d, s%d, s%d" % (sT, sT, sWv), "s_lshl_b32 s%d, s%d, 13" % (sT, sT),
             "v_lshlrev_b32 v%d, 7, v%d" % (vT, vL), "v_add_u32 v%d, s%d, v%d" % (vT, sT, vT),
             "global_load_dword v%d, v%d, s[%d:%d]" % (vDum, vT, pWo, pWo + 1), "s_branch L_wopf_ret"])
    a.lab("L_slow")
    a.e(["s_waitcnt vmcnt(0) lgkmcnt(0)", "s_barrier", "s_mov_b32 s%d, 1" % sPass] + lane_setup() + ["s_branch L_restart"])
    a.lab("L_maxpass")
    a.e(["s_waitcnt vmcnt(0) lgkmcnt(0)", "s_barrier"] + Cq(6) + ["s_mov_b32 s%d, 16" % sCnt] + setK(0))
    a.e([zero16(ar(176 + 16 * i, 16)) for i in range(3)] + ["s_nop 7"])
    for rt in range(7): a.e("v_mov_b32 v%d, 0xff800000" % (M + 4 * rt))
    a.lab("L_slow_loop")
    a.e(kvtile(0))
    a.e(["s_waitcnt vmcnt(0)", "s_barrier"])
    a.e([rdK(i, 0) for i in range(8)])
    a.e(["s_waitcnt lgkmcnt(0)", "s_barrier"])
    for rt in range(7):
        for i in range(8):
            t, ks = i & 1, i >> 1
            d = vr(S + 4 * t, 4)
            a.e(mfma(d, ar(aK + 16 * t + 4 * ks, 4), ar(aQ + 16 * rt + 4 * ks, 4), "0" if ks == 0 else d))
        a.e("s_nop 7")
        for i in range(4): a.e("v_max3_f32 v%d, v%d, v%d, v%d" % (M + 4 * rt, M + 4 * rt, S + 2 * i, S + 2 * i + 1))
    a.e(["s_sub_u32 s%d, s%d, 1" % (sCnt, sCnt), "s_cmp_lg_u32 s%d, 0" % sCnt, "s_cbranch_scc1 L_slow_loop"])
    a.e(xlane("v_max_f32", [M + 4 * rt for rt in range(7)], [M + 4 * rt + 1 for rt in range(7)]))
    a.e(["v_add_u32 v%d, s%d, v%d" % (vTc, sSp, vL16), "v_xor_b32 v%d, 16384, v%d" % (vT3, vTc)])
    for rt in range(7): a.e("ds_write_b32 v%d, v%d offset:%d" % (vTc, M + 4 * rt, rt * 1024))
    a.e(["s_waitcnt lgkmcnt(0)", "s_barrier"])
    for rt in range(7): a.e("ds_read_b32 v%d, v%d offset:%d" % (M + 4 * rt + 1, vT3, rt * 1024))
    a.e(setK(0))
    for tl in range(4): a.e(kvtile(tl))
    a.e("s_waitcnt lgkmcnt(0)")
    for rt in range(7): a.e("v_max_f32 v%d, v%d, v%d" % (M + 4 * rt, M + 4 * rt, M + 4 * rt + 1))
    a.e(["s_waitcnt vmcnt(16)", "s_barrier"])
    a.e([rdK(i, 0) for i in range(8)])
    a.e([zero16(vr(V, 16)), zero16(vr(V + 16, 16))])
    a.e(["v_sub_f32 v%d, 0, v%d" % (M + 4 * rt + i, M + 4 * rt) for rt in range(7) for i in (1, 2, 3, 0)])
    a.e(["v_mov_b32 v%d, 0" % i for i in range(L, L + 7)] + ["v_mov_b32 v%d, 0" % i for i in range(P + 4, P + 8)])
    a.e(["s_mov_b32 s%d, 3" % sCnt, "s_waitcnt lgkmcnt(0)"] + qk(0, 0) + initD + codepf("L_last", "L_go", 250)[:-1] + ["s_nop 5"])
    for r in range(5): step(0, r)
    a.e("s_branch L_loop")

def build():
    ref = open("cdna_kernels/%s.s.ref" % NAME).read()
    hdr = ref.split("; Override launch")[0]
    a = Asm()
    k = NAME + "_kernel"
    a.raw(".amdgcn_target \"amdgcn-amd-amdhsa--gfx950\"\n.text")
    a.raw(".globl %s\n.p2align 8\n.type %s,@function" % (k, k))
    kernel(a)
    for e in check(a.L): print(e, file=sys.stderr)
    doc = """;
"""
    t = hdr + "; @launch grid=(256,1,1) block=(256,1,1) lds=163840\n" + doc + a.text()
    t += """.section .rodata,"a"
.p2align 6
.amdhsa_kernel %s
  .amdhsa_next_free_vgpr 512
  .amdhsa_next_free_sgpr 102
  .amdhsa_accum_offset 256
  .amdhsa_group_segment_fixed_size 0
  .amdhsa_kernarg_size 64
  .amdhsa_user_sgpr_count 2
  .amdhsa_user_sgpr_kernarg_segment_ptr 1
  .amdhsa_system_sgpr_workgroup_id_x 1
  .amdhsa_float_denorm_mode_32 %d
.end_amdhsa_kernel
""" % (k, O.denorm)
    return t

if __name__ == "__main__":
    out = sys.argv[1] if len(sys.argv) > 1 else "cdna_kernels/%s.s" % NAME
    for kv in sys.argv[2:]:
        k, v = kv.split("=")
        cur = getattr(O, k)
        setattr(O, k, (v == "1") if isinstance(cur, bool) else type(cur)(v))
    open(out, "w").write(build())
```

```python
import sys, math, struct
from asmlib import *

NAME = "standalone__mha_block_cached__near_ridge"
def f32(x): return struct.unpack("<I", struct.pack("<f", x))[0]
CSCALE = f32(128 ** -0.5 * math.log2(math.e))
THR = f32(2.0 ** 30)

class Opt:
    stamps = False
    ts = False
    kv_nt = True
    nxe = 5
    p1_span = 26
    force_slow = False
    pf_xw = True
    pf_wo = True
    pf_code = True
    w_n = 0
    w_late = 8
    wl2 = 0
    out_flags = ""
    pfl = 0
    burst = 4
    ws1 = 12
    dbg3 = 0
    f2gap = 156
    wo2 = "0.3,2.2"
    lag = 0
    ilv = True
    pts = "5.13,5.15,6.9,6.11"
    th = 5
    tlb = 2
    tlb2 = False
    ts9 = 0
    splitpf = False
    pkg = 1
    xwf = ""
    w3f = ""
    pf3 = 0
    denorm = 3
    wfin = True
    nb = 0
    padn = 0
    kvf = "nt"
    dmax = 1
    force_skip = 0
    pack = True
    verbose = False
    x1mask = 0
    rd_first = False
    wqc = False
    tb4 = False
    wo_r = 3
    bstep = 2
    t3late = False
    wo_at = 1
    dynw = True
    wggo = False
    olook = 3
    sset = 1
    nost = False
    st_flags = "sc1"
    x3mask = 7
    burn = 0
    tsched = 1
    pf_flags = ""
    wpf = 0
O = Opt()
STAMP_OFF = 0x8000000
FLAG_OFF = 0x1000000
PART_OFF = 0x2000000

def zero16(d): return "v_mfma_f32_32x32x16_bf16 %s, v[12:15], v[12:15], 0" % d

class VM:
    def __init__(self, init): self.ops = list(init)
    def issue(self, tag, opt=False): self.ops.append(tag + "?" if opt else tag)
    def n(self, tag):
        idx = max(i for i, t in enumerate(self.ops) if t.rstrip("?") == tag)
        if self.ops[idx].endswith("?"): return min(63, len(self.ops) - 1 - idx)
        return min(63, sum(1 for t in self.ops[idx + 1:] if not t.endswith("?")))

def kernel(a):
    KVF = " " + O.kvf
    pX, pK, pV, pWq, pWo, pOut, pDbg, pWs = 4, 6, 8, 10, 12, 14, 16, 18
    sX, sW, sKV, sO, sOs, sWs, sOut = 20, 24, 28, 32, 36, 40, 44
    (sWv, sB, sH, sRH, sKH, sXoff, sWoff, sCnt, sMX, sMW, sReg, sRing, sSp, sG, sFlip, sK0, sPass, sT, sT2, sRB, sCT, sWo, sD1, sD2) = range(48, 72)
    sP = 3
    sOf = 1; sPm = 0
    sC = 72; sRt = 74; sPC = 82; sVV = 84; sST = 88; sK1 = sFlip
    KH, TS_ = (8192, 16384) if O.ilv else (131072, 8192)
    vL, vT, vT2, vT3, vL16 = 1, 2, 3, 4, 5
    vKV, vW = 6, 10
    OK, ACC = 16, 128
    M, S, E, P, V, L = 128, 156, 172, 180, 188, 220
    vTa, vTb, vTc = 237, 238, 236
    E2 = 228
    vX, vXr, vWr = 240, 247, 251
    vKr, vVr, vK0 = 240, 241, 243
    vD, vR = 244, 10
    vQw, vQr = 2, 3
    PK = 16
    vFo, vFc, vDum = 254, 255, 253
    vCp = 0
    aQ, aO, aK = 0, 112, 224
    aXF, aWF = 0, 224
    nst = [0]
    def stamp(m=3):
        if O.stamps and (m & O.sset) and not (O.ts and nst[0] >= 1):
            assert nst[0] < 7
            a.e("s_memrealtime s[%d:%d]" % (sST + 2 * nst[0], sST + 2 * nst[0] + 1)); nst[0] += 1
    def flagp(v, t):
        return ["s_and_b32 s%d, s%d, 1" % (sT, sB), "s_lshl_b32 s%d, s%d, 6" % (sT, sT), "s_lshr_b32 s%d, s%d, 1" % (sG, sB), "s_lshl_b32 s%d, s%d, 3" % (sG, sG),
                "s_add_u32 s%d, s%d, s%d" % (sT, sT, sG), "s_lshr_b32 s%d, s%d, 2" % (sG, sH), "s_add_u32 s%d, s%d, s%d" % (sT, sT, sG), "s_lshl_b32 s%d, s%d, 7" % (sT, sT),
                "s_and_b32 s%d, s%d, 3" % (sG, sH), "s_lshl_b32 s%d, s%d, 2" % (sG, sG), "s_add_u32 s%d, s%d, s%d" % (sT, sT, sG), "s_add_u32 s%d, s%d, 0x%x" % (sT, sT, FLAG_OFF),
                "v_lshrrev_b32 v%d, 1, v%d" % (v, vL), "v_lshlrev_b32 v%d, 14, v%d" % (v, v), "v_and_b32 v%d, 1, v%d" % (t, vL),
                "v_lshl_add_u32 v%d, v%d, 12, v%d" % (v, t, v), "v_add_u32 v%d, s%d, v%d" % (v, sT, v),
                "s_xor_b32 s%d, s2, 1" % sT, "s_lshl_b32 s%d, s%d, 9" % (sT, sT), "s_add_u32 s%d, s%d, 0x%x" % (sT, sT, FLAG_OFF + 16),
                "v_and_b32 v%d, 3, v%d" % (t, vL), "v_lshlrev_b32 v%d, 7, v%d" % (t, t), "v_cmp_gt_u32 vcc, 16, v%d" % vL, "v_add_u32 v%d, s%d, v%d" % (t, sT, t),
                "s_nop 0", "v_cndmask_b32 v%d, v%d, v%d, vcc" % (v, t, v)]
    def flagc(v):
        return ["s_lshl_b32 s%d, s2, 2" % sT, "s_add_u32 s%d, s%d, s%d" % (sT, sT, sWv), "s_lshl_b32 s%d, s%d, 7" % (sT, sT), "s_add_u32 s%d, s%d, 0x%x" % (sT, sT, FLAG_OFF),
                "v_min_u32 v%d, 5, v%d" % (v, vL), "v_lshlrev_b32 v%d, 2, v%d" % (v, v), "v_add_u32 v%d, s%d, v%d" % (v, sT, v),
                "s_mov_b64 exec, 64", "v_xor_b32 v%d, 0x200, v%d" % (v, v), "s_mov_b64 exec, -1"]
    def boxaddr(v):
        return ["s_lshl_b32 s%d, s2, 2" % sT, "s_add_u32 s%d, s%d, s%d" % (sT, sT, sWv), "s_lshl_b32 s%d, s%d, 13" % (sT, sT),
                "s_add_u32 s%d, s%d, 0x%x" % (sT, sT, PART_OFF + 3072), "v_add_u32 v%d, s%d, v%d" % (v, sT, vL16)]
    def codepf(lo, hi, t0):
        return ["v_min_u32 v%d, %s-%s-4, v%d" % (t0, hi, lo, vCp), "v_add_u32 v%d, %s-L_pc, v%d" % (t0, lo, t0),
                "v_mov_b32 v%d, s%d" % (t0 + 1, sPC + 1), "v_add_co_u32 v%d, vcc, s%d, v%d" % (t0, sPC, t0), "s_nop 1",
                "v_addc_co_u32 v%d, vcc, 0, v%d, vcc" % (t0 + 1, t0 + 1), "global_load_dword v%d, v[%d:%d], off" % (vDum, t0, t0 + 1)]

    a.lab(NAME + "_kernel")
    a.e(["s_cmp_ge_u32 s2, 256", "s_cbranch_scc1 L_end",
         "s_load_dwordx8 s[4:11], s[0:1], 0", "s_load_dwordx8 s[12:19], s[0:1], 32"])
    stamp(7)
    a.e(["s_getpc_b64 s[%d:%d]" % (sPC, sPC + 1)])
    a.lab("L_pc")
    a.e(["v_and_b32 v%d, 63, v0" % vL, "v_lshrrev_b32 v%d, 6, v0" % vT,
         "s_and_b32 s%d, s2, 7" % sT, "s_lshr_b32 s%d, s2, 3" % sT2,
         "v_readfirstlane_b32 s%d, v%d" % (sWv, vT),
         "v_min_u32 v%d, 2, v%d" % (vCp, vL), "v_lshl_add_u32 v%d, v%d, 2, v%d" % (vCp, vCp, vT), "v_lshlrev_b32 v%d, 5, v%d" % (vCp, vCp),
         "v_add_lshl_u32 v%d, v%d, s%d, 7" % (vCp, vCp, sT2)])
    if O.pf_code: a.e(codepf("L_pc", "L_end", vT))
    a.e(["s_mov_b32 s%d, 0" % sPass,
         "s_and_b32 s%d, s%d, 1" % (sB, sT), "s_lshl_b32 s%d, s%d, 2" % (sB, sB),
         "s_and_b32 s%d, s%d, 3" % (sG, sT2), "s_add_u32 s%d, s%d, s%d" % (sB, sB, sG),
         "s_lshr_b32 s%d, s%d, 1" % (sH, sT), "s_lshl_b32 s%d, s%d, 2" % (sRB, sH), "s_add_u32 s%d, s%d, s%d" % (sRB, sRB, sG), "s_lshl_b32 s%d, s%d, 3" % (sH, sH),
         "s_lshr_b32 s%d, s%d, 2" % (sCT, sT2), "s_add_u32 s%d, s%d, s%d" % (sH, sH, sCT),
         "s_and_b32 s%d, s%d, 1" % (sRH, sWv), "s_lshr_b32 s%d, s%d, 1" % (sKH, sWv)])
    a.e(["s_lshl_b32 s%d, s%d, 15" % (sMX, sKH), "s_mul_i32 s%d, s%d, 7168" % (sT, sRH),
         "s_add_u32 s%d, s%d, s%d" % (sMX, sMX, sT), "s_add_u32 s%d, s%d, 16384" % (sMX, sMX),
         "s_lshl_b32 s%d, s%d, 11" % (sMW, sWv), "s_add_u32 s%d, s%d, 131072" % (sMW, sMW),
         "s_lshl_b32 s%d, s%d, 15" % (sReg, sWv),
         "s_mov_b32 s%d, 458752" % (sX + 2), "s_mov_b32 s%d, 0x20000" % (sX + 3), "s_mov_b32 s%d, 0x20000" % (sW + 3),
         "s_mul_i32 s%d, s%d, 458752" % (sD1, sB), "s_lshl_b32 s%d, s%d, 8" % (sD2, sH), "s_sub_u32 s%d, 0x800000, s%d" % (sW + 2, sD2)])
    def lane_setup():
        o = ["v_lshrrev_b32 v%d, 3, v%d" % (vT, vL), "v_and_b32 v%d, 7, v%d" % (vT2, vL), "v_and_b32 v%d, 6, v%d" % (vT3, vT),
             "v_xor_b32 v%d, v%d, v%d" % (vT3, vT3, vT2), "v_lshlrev_b32 v%d, 4, v%d" % (vT3, vT3),
             "v_lshl_add_u32 v%d, v%d, 11, v%d" % (vX, vT, vT3),
             "s_mul_i32 s%d, s%d, %d" % (sT, sWv, 7 * 16384), "v_add_u32 v%d, s%d, v%d" % (vX, sT, vX)]
        o += ["v_add_u32 v%d, %d, v%d" % (vX + j, j * 16384 - (j & 3) * 1024, vX) for j in range(1, 7)]
        o += ["v_and_b32 v%d, 2, v%d" % (vT3, vT), "v_lshlrev_b32 v%d, 1, v%d" % (vT3, vT3),
              "v_xor_b32 v%d, v%d, v%d" % (vT3, vT3, vT2), "v_lshlrev_b32 v%d, 4, v%d" % (vT3, vT3),
              "v_lshl_add_u32 v%d, v%d, 13, v%d" % (vW, vT, vT3),
              "s_lshl_b32 s%d, s%d, 17" % (sT, sRH), "s_lshl_b32 s%d, s%d, 7" % (sG, sKH), "s_add_u32 s%d, s%d, s%d" % (sT, sT, sG),
              "v_add_u32 v%d, s%d, v%d" % (vW, sT, vW), "v_add_u32 v%d, %d, v%d" % (vW + 1, 8 * 8192 - 1024, vW)]
        return o
    a.e(lane_setup())
    if O.tlb == 2:
        a.e(["s_lshl_b32 s%d, s%d, 5" % (sT, sB), "s_add_u32 s%d, s%d, s%d" % (sT, sT, sH), "s_lshl_b32 s%d, s%d, 18" % (sT, sT),
             "v_mov_b32 v16, s%d" % sT])
    a.e(["s_waitcnt lgkmcnt(0)",
         "s_add_u32 s%d, s%d, s%d" % (sW, pWq, sD2), "s_addc_u32 s%d, s%d, 0" % (sW + 1, pWq + 1),
         "s_add_u32 s%d, s%d, s%d" % (sX, pX, sD1), "s_addc_u32 s%d, s%d, 0" % (sX + 1, pX + 1)])
    if O.tlb == 2:
        def tg(v, p): return "global_load_dword v%d, v%d, s[%d:%d] sc1" % (vDum, v, p, p + 1)
        for w_, ops in enumerate(([tg(16, pK)], [tg(16, pV)])):
            a.e(["s_cmp_lg_u32 s%d, %d" % (sWv, w_), "s_cbranch_scc1 L_tl%d" % w_] + ops + ["L_tl%d:" % w_])
    stamp(4)
    a.lab("L_restart")

    TS_A = ["s_memrealtime s[100:101]"]
    TS_B = ["s_mov_b32 s99, m0", "s_mov_b32 m0, s81", "v_writelane_b32 v0, s100, m0", "s_addk_i32 s81, 1", "s_mov_b32 m0, s99"]
    TS_F = TS_A + ["s_waitcnt lgkmcnt(0)"] + TS_B
    def dmaX(j): return "buffer_load_dwordx4 v%d, s[%d:%d], s%d offen offset:%d %s lds" % (vX + j, sX, sX + 3, sXoff, (j & 3) * 1024, O.xwf)
    def m0X(buf, hi): return "s_add_u32 m0, s%d, %d" % (sMX, buf * 65536 + hi * 4096)
    def dmaW(j): return "buffer_load_dwordx4 v%d, s[%d:%d], s%d offen offset:%d %s lds" % (vW + j, sW, sW + 3, sWoff, j * 1024, O.xwf)
    def m0W(slot): return "s_add_u32 m0, s%d, %d" % (sMW, slot * 8192)
    def ptm0(reg, slot): return "s_add_u32 m0, s%d, %d" % (sMW, (reg * 32768 + slot * 8192 - 131072) & 0xffffffff)
    def ptld(reg): return ["buffer_load_dwordx4 v%d, s[%d:%d], s%d offen offset:%d%s lds" % (vKV + (2 if reg == 3 else 0) + j, sVV if reg & 1 else sKV, (sVV if reg & 1 else sKV) + 3,
                           sK1 if reg >> 1 else sK0, j * 1024, KVF) for j in range(2)]
    incK = ["s_add_u32 s%d, s%d, %d" % (sK0, sK0, TS_), "s_add_u32 s%d, s%d, %d" % (sK1, sK1, TS_)]
    def setK(tile): return ["s_mov_b32 s%d, %d" % (sK0, tile * TS_), "s_mov_b32 s%d, %d" % (sK1, tile * TS_ + KH)]
    PORD = (0, 2, 1, 3)
    def kvtile(slot): return [x for reg in PORD for x in [ptm0(reg, slot), "s_nop 0"] + ptld(reg)] + incK
    sXl, sWl, sOx, sOw = 10, 11, sWo, sK0
    incW = ["s_add_u32 s%d, s%d, 262144" % (sWl, sWl), "s_xor_b32 s%d, s%d, s%d" % (sWoff, sWl, sOw)]
    incX = ["s_add_u32 s%d, s%d, 128" % (sXl, sXl), "s_xor_b32 s%d, s%d, s%d" % (sXoff, sXl, sOx)]

    a.e(["s_mov_b32 s%d, 0" % sXl, "s_mov_b32 s%d, 0" % sWl, "s_xor_b32 s%d, s%d, s%d" % (sT, sB, sH), "s_and_b32 s%d, s%d, %d" % (sT, sT, O.x1mask),
         "s_lshl_b32 s%d, s%d, 19" % (sOw, sT), "s_lshl_b32 s%d, s%d, 7" % (sOx, sT), "s_mov_b32 s%d, s%d" % (sWoff, sOw), "s_mov_b32 s%d, s%d" % (sXoff, sOx)])
    def stage_loads(st):
        return ([m0W(2 * st), "s_nop 0", dmaW(0), dmaW(1), m0X(st, 0)] + incW + [dmaX(j) for j in range(4)] + [m0X(st, 1), "s_nop 0"] + [dmaX(j) for j in range(4, 7)]
                + [m0W(2 * st + 1)] + incX + [dmaW(0), dmaW(1)] + incW)
    a.e(stage_loads(0))
    stamp(4)
    a.e(["v_mov_b32 v%d, 0" % i for i in range(12, 16)])
    su0 = len(a.L)
    a.e(["s_lshl_b32 s%d, s%d, 5" % (sT, sB), "s_add_u32 s%d, s%d, s%d" % (sT, sT, sH), "s_lshl_b32 s%d, s%d, 18" % (sT, sT),
         "s_add_u32 s%d, s%d, s%d" % (sKV, pK, sT), "s_addc_u32 s%d, s%d, 0" % (sKV + 1, pK + 1),
         "s_mov_b32 s%d, 0x40000" % (sKV + 2), "s_mov_b32 s%d, 0x20000" % (sKV + 3),
         "s_add_u32 s%d, s%d, s%d" % (sVV, pV, sT), "s_addc_u32 s%d, s%d, 0" % (sVV + 1, pV + 1),
         "s_mov_b32 s%d, 0x40000" % (sVV + 2), "s_mov_b32 s%d, 0x20000" % (sVV + 3),
         "v_bfe_u32 v%d, v%d, 2, 2" % (vT, vL), "v_lshrrev_b32 v%d, 4, v%d" % (vT2, vL), "v_lshlrev_b32 v%d, 6, v%d" % (vT2, vT2),
         "v_lshl_add_u32 v%d, v%d, 8, v%d" % (vT2, vT, vT2), "v_and_b32 v%d, 3, v%d" % (vT, vL), "v_lshl_add_u32 v%d, v%d, 4, v%d" % (vT2, vT, vT2),
         "s_lshl_b32 s%d, s%d, 5" % (sG, sRH), "v_xor_b32 v%d, s%d, v%d" % (vT2, sG, vT2), "s_lshl_b32 s%d, s%d, 11" % (sG, sWv),
         "v_add_u32 v%d, s%d, v%d" % (vKV, sG, vT2), "v_xor_b32 v%d, 48, v%d" % (vKV + 1, vKV),
         "v_xor_b32 v%d, 0x80, v%d" % (vKV + 2, vKV), "v_xor_b32 v%d, 0x80, v%d" % (vKV + 3, vKV + 1)])
    pPx, pPw = PK + 20, PK + 21
    a.e(["s_mul_i32 s%d, s%d, 14336" % (sT, sH), "s_lshl_b32 s%d, s%d, 12" % (sG, sWv), "s_add_u32 s%d, s%d, s%d" % (sT, sT, sG),
         "v_and_b32 v%d, 31, v%d" % (pPx, vL), "v_lshlrev_b32 v%d, 7, v%d" % (pPx, pPx), "v_add_u32 v%d, s%d, v%d" % (pPx, sT, pPx),
         ] + ([
         "s_and_b32 s%d, s%d, 7" % (sG, sH), "s_lshl_b32 s%d, s%d, 3" % (sT, sB), "s_add_u32 s%d, s%d, s%d" % (sT, sT, sG), "s_lshl_b32 s%d, s%d, 2" % (sT, sT),
         "s_add_u32 s%d, s%d, s%d" % (sT, sT, sWv), "s_lshl_b32 s%d, s%d, 15" % (sT, sT), "s_lshl_b32 s%d, s%d, 8" % (sG, sG), "s_sub_u32 s%d, s%d, s%d" % (sT, sT, sG),
         "v_lshrrev_b32 v%d, 4, v%d" % (pPw, vL), "v_lshlrev_b32 v%d, 13, v%d" % (pPw, pPw),
         "v_and_b32 v%d, 15, v%d" % (vT2, vL), "v_lshl_add_u32 v%d, v%d, 7, v%d" % (pPw, vT2, pPw), "v_add_u32 v%d, s%d, v%d" % (pPw, sT, pPw)] if O.wqc else [
         "s_lshl_b32 s%d, s%d, 2" % (sT, sB), "s_add_u32 s%d, s%d, s%d" % (sT, sT, sWv), "s_lshl_b32 s%d, s%d, 18" % (sT, sT),
         "v_lshrrev_b32 v%d, 1, v%d" % (pPw, vL), "v_lshlrev_b32 v%d, 13, v%d" % (pPw, pPw),
         "v_and_b32 v%d, 1, v%d" % (vT2, vL), "v_lshl_add_u32 v%d, v%d, 7, v%d" % (pPw, vT2, pPw), "v_add_u32 v%d, s%d, v%d" % (pPw, sT, pPw)]))
    pQx, pQw = PK + 22, PK + 23
    if O.splitpf:
        a.e(["v_min_u32 v%d, 10, v%d" % (vT, vL), "s_mul_i32 s%d, s%d, 11" % (sG, sWv), "v_add_u32 v%d, s%d, v%d" % (vT, sG, vT), "v_min_u32 v%d, 41, v%d" % (vT, vT),
             "v_mul_u32_u24 v%d, 43, v%d" % (vT2, vT), "v_lshrrev_b32 v%d, 8, v%d" % (vT2, vT2), "v_mul_u32_u24 v%d, 10, v%d" % (vT2, vT2),
             "v_add_u32 v%d, v%d, v%d" % (vT, vT, vT2), "v_lshlrev_b32 v%d, 7, v%d" % (vT, vT), "s_mul_i32 s%d, s%d, 14336" % (sT, sH), "s_add_u32 s%d, s%d, 256" % (sG, sT),
             "v_add_u32 v%d, s%d, v%d" % (pPx, sG, vT),
             "v_bfe_u32 v%d, v%d, 1, 1" % (vT, vL), "s_lshl_b32 s%d, s%d, 1" % (sG, sWv), "v_add_u32 v%d, s%d, v%d" % (vT, sG, vT), "v_min_u32 v%d, 6, v%d" % (vT, vT),
             "v_and_b32 v%d, 1, v%d" % (vT2, vL), "v_lshlrev_b32 v%d, 7, v%d" % (vT2, vT2), "v_lshl_add_u32 v%d, v%d, 11, v%d" % (vT, vT, vT2),
             "s_add_u32 s%d, s%d, 512" % (sT, sT), "v_add_u32 v%d, s%d, v%d" % (pQx, sT, vT),
             "v_lshrrev_b32 v%d, 1, v%d" % (vT, vL), "v_min_u32 v%d, 11, v%d" % (vT, vT), "v_lshl_add_u32 v%d, v%d, 13, v%d" % (vT, vT, vT2),
             "s_lshl_b32 s%d, s%d, 2" % (sT, sB), "s_add_u32 s%d, s%d, s%d" % (sT, sT, sWv), "s_mul_i32 s%d, s%d, %d" % (sG, sT, 12 * 8192), "s_add_u32 s%d, s%d, %d" % (sG, sG, 128 * 8192),
             "v_add_u32 v%d, s%d, v%d" % (pPw, sG, vT),
             "v_bfe_u32 v%d, v%d, 1, 2" % (vT, vL), "v_lshl_add_u32 v%d, v%d, 13, v%d" % (vT, vT, vT2), "s_lshl_b32 s%d, s%d, 15" % (sT, sT), "s_add_u32 s%d, s%d, %d" % (sT, sT, 8 * 262144),
             "v_add_u32 v%d, s%d, v%d" % (pQw, sT, vT)])
    farpf = ["buffer_load_dword v%d, v%d, s[%d:%d], s%d offen" % (vDum, pQx, sX, sX + 3, sXoff), "buffer_load_dword v%d, v%d, s[%d:%d], s%d offen" % (vDum, pQw, sW, sW + 3, sWoff)]
    NE = 5 if O.splitpf else 3
    a.e(["v_lshlrev_b32 v%d, 4, v%d" % (vL16, vL),
         "v_and_b32 v%d, 15, v%d" % (vT, vL), "v_lshrrev_b32 v%d, 4, v%d" % (vT2, vL),
         "v_and_b32 v%d, 6, v%d" % (vT3, vT), "v_xor_b32 v%d, v%d, v%d" % (vT3, vT3, vT2), "v_lshlrev_b32 v%d, 4, v%d" % (vT3, vT3),
         "v_lshl_add_u32 v%d, v%d, 7, v%d" % (vT3, vT, vT3),
         "s_lshl_b32 s%d, s%d, 15" % (sT, sRH), "s_add_u32 s%d, s%d, 16384" % (sT, sT),
         "v_add_u32 v%d, s%d, v%d" % (vXr, sT, vT3), "v_xor_b32 v%d, 64, v%d" % (vXr + 1, vXr),
         "v_add_u32 v%d, 0x10000, v%d" % (vXr + 2, vXr), "v_add_u32 v%d, 0x10000, v%d" % (vXr + 3, vXr + 1)])
    a.e(["v_bfe_u32 v%d, v%d, 2, 2" % (vT, vL), "v_lshl_add_u32 v%d, v%d, 3, v%d" % (vT, vT2, vT),
         "v_and_b32 v%d, 2, v%d" % (vT3, vT), "v_lshlrev_b32 v%d, 1, v%d" % (vT3, vT3),
         "v_and_b32 v%d, 3, v%d" % (vT2, vL), "v_xor_b32 v%d, v%d, v%d" % (vT3, vT3, vT2), "v_lshlrev_b32 v%d, 4, v%d" % (vT3, vT3),
         "v_lshl_add_u32 v%d, v%d, 7, v%d" % (vT3, vT, vT3),
         "s_lshl_b32 s%d, s%d, 12" % (sT, sKH), "s_add_u32 s%d, s%d, 131072" % (sT, sT),
         "v_add_u32 v%d, s%d, v%d" % (vWr, sT, vT3), "v_xor_b32 v%d, 64, v%d" % (vWr + 1, vWr)])
    a.e(["s_mul_i32 s%d, s%d, 14" % (sT, sB), "s_mul_i32 s%d, s%d, 7" % (sG, sRH), "s_add_u32 s%d, s%d, s%d" % (sT, sT, sG),
         "s_lshl_b32 s%d, s%d, 7" % (sT, sT), "s_lshl_b32 s%d, s%d, 2" % (sG, sH), "s_add_u32 s%d, s%d, s%d" % (sT, sT, sG),
         "s_lshl_b32 s%d, s%d, 1" % (sG, sKH), "s_add_u32 s%d, s%d, s%d" % (sT, sT, sG), "s_lshl_b32 s%d, s%d, 10" % (sT, sT),
         "s_add_u32 s%d, s%d, s%d" % (sO, pWs, sT), "s_addc_u32 s%d, s%d, 0" % (sO + 1, pWs + 1),
         "s_mov_b32 s%d, %d" % (sO + 2, 6 * 131072 + 2048), "s_mov_b32 s%d, 0x20000" % (sO + 3),
         "s_mov_b32 s%d, 0x%x" % (sC, CSCALE), "s_mov_b32 s%d, 0x%x" % (sC + 1, CSCALE),
         "s_and_b32 s%d, s%d, 4" % (sPm, sB), "s_add_u32 s%d, s%d, s%d" % (sPm, sPm, sWv),
         "s_mul_i32 s%d, s%d, %d" % (sT, sRB, 7 * 131072), "s_lshl_b32 s%d, s%d, 14" % (sG, sPm), "s_add_u32 s%d, s%d, s%d" % (sT, sT, sG),
         "s_add_u32 s%d, s%d, s%d" % (sOs, pWs, sT), "s_addc_u32 s%d, s%d, 0" % (sOs + 1, pWs + 1),
         "s_mov_b32 s%d, %d" % (sOs + 2, 6 * 131072 + 16384), "s_mov_b32 s%d, 0x20000" % (sOs + 3),
         "s_lshl_b32 s%d, s%d, 20" % (sT, sPm), "s_lshl_b32 s%d, s%d, 8" % (sG, sCT), "s_add_u32 s%d, s%d, s%d" % (sT, sT, sG),
         "s_add_u32 s%d, s%d, s%d" % (sWs, pWo, sT), "s_addc_u32 s%d, s%d, 0" % (sWs + 1, pWo + 1),
         "s_sub_u32 s%d, 0x100000, s%d" % (sWs + 2, sG), "s_mov_b32 s%d, 0x20000" % (sWs + 3),
         "s_mul_i32 s%d, s%d, %d" % (sT, sRB, 112 * 2048), "s_add_u32 s%d, s%d, s%d" % (sOut, pOut, sT), "s_addc_u32 s%d, s%d, 0" % (sOut + 1, pOut + 1),
         "s_mov_b32 s%d, %d" % (sOut + 2, 112 * 2048), "s_mov_b32 s%d, 0x20000" % (sOut + 3),
         "s_xor_b32 s%d, s%d, 0x10000" % (sRing, sReg),
         "s_lshl_b32 s%d, s%d, 13" % (sSp, sWv), "s_add_u32 s%d, s%d, 131072" % (sSp, sSp),
         "s_sub_u32 s%d, s%d, s%d" % (sD1, sSp, sReg), "s_sub_u32 s%d, s%d, s%d" % (sD2, sRing, sSp)])
    for rt in range(7): a.e("s_mov_b32 s%d, %d" % (sRt + rt, rt * 131072))
    pKr, pVr, pK0, pD, pR, pQ, pFp, pFc, pWoP, pCp = PK, PK + 1, PK + 3, PK + 4, PK + 8, PK + 10, PK + 12, PK + 13, PK + 14, PK + 16
    a.e(flagp(pFp, vT2) + flagc(pFc))
    a.e(["v_bfe_u32 v%d, v%d, 2, 2" % (vT, vL), "v_sub_u32 v%d, 0, v%d" % (vT2, vT), "v_lshrrev_b32 v%d, 4, v%d" % (vT3, vL),
         "v_xor_b32 v%d, v%d, v%d" % (vT2, vT2, vT3), "v_and_b32 v%d, 3, v%d" % (vT2, vT2), "v_lshlrev_b32 v%d, 4, v%d" % (vT2, vT2),
         "v_lshl_add_u32 v%d, v%d, 10, v%d" % (vT2, vT, vT2), "v_and_b32 v%d, 3, v%d" % (pK0, vL), "v_lshlrev_b32 v%d, 6, v%d" % (pK0, pK0),
         "s_lshl_b32 s%d, s%d, 16" % (sG, sKH), "v_add3_u32 v%d, v%d, v%d, s%d" % (pKr, pK0, vT2, sG),
         "v_lshl_add_u32 v%d, v%d, 4, v%d" % (pK0, vT3, pK0),
         "v_sub_u32 v%d, 0, v%d" % (vT2, vT3), "v_bfe_u32 v%d, v%d, 1, 1" % (pVr + 1, vL), "v_xor_b32 v%d, v%d, v%d" % (vT2, vT2, pVr + 1),
         "v_and_b32 v%d, 3, v%d" % (vT2, vT2), "v_lshlrev_b32 v%d, 4, v%d" % (vT2, vT2),
         "v_lshl_add_u32 v%d, v%d, 10, v%d" % (vT2, vT3, vT2), "v_lshl_add_u32 v%d, v%d, 6, v%d" % (vT2, vT, vT2),
         "v_and_b32 v%d, 1, v%d" % (pVr + 1, vL), "v_lshl_add_u32 v%d, v%d, 3, v%d" % (vT2, pVr + 1, vT2),
         "s_add_u32 s%d, s%d, 32768" % (sG, sG), "v_add_u32 v%d, s%d, v%d" % (pVr, sG, vT2), "v_xor_b32 v%d, 32, v%d" % (pVr + 1, pVr),
         "v_add_u32 v%d, s%d, v%d" % (pR, sReg, vT2), "v_xor_b32 v%d, 32, v%d" % (pR + 1, pR),
         "v_lshlrev_b32 v%d, 6, v%d" % (vT2, vT3), "v_lshl_add_u32 v%d, v%d, 11, v%d" % (vT2, vT, vT2), "v_and_b32 v%d, 3, v%d" % (vT, vL),
         "v_lshl_add_u32 v%d, v%d, 4, v%d" % (vT2, vT, vT2), "s_lshl_b32 s%d, s%d, 5" % (sT, sPm), "v_xor_b32 v%d, s%d, v%d" % (pD, sT, vT2)])
    for j in range(1, 4): a.e(["v_xor_b32 v%d, %d, v%d" % (pD + j, ((-j) & 3) * 16, pD), "v_add_u32 v%d, %d, v%d" % (pD + j, j * (8192 - 1024), pD + j)])
    a.e(["v_add_u32 v%d, s%d, v%d" % (pQ, sMW, vL16), "s_lshl_b32 s%d, s%d, 11" % (sT, sRH), "s_add_u32 s%d, s%d, 131072" % (sT, sT), "v_add_u32 v%d, s%d, v%d" % (pQ + 1, sT, vL16),
         "s_lshl_b32 s%d, s2, 2" % sT, "s_add_u32 s%d, s%d, s%d" % (sT, sT, sWv), "s_lshl_b32 s%d, s%d, 13" % (sT, sT),
         "v_lshlrev_b32 v%d, 7, v%d" % (pWoP, vL), "v_add_u32 v%d, s%d, v%d" % (pWoP, sT, pWoP),
         "s_lshl_b32 s%d, s%d, 1" % (sOf, sRB), "s_xor_b32 s%d, s%d, s%d" % (sOf, sOf, sCT), "s_and_b32 s%d, s%d, %d" % (sOf, sOf, O.x3mask), "s_lshl_b32 s%d, s%d, 16" % (sOf, sOf)])
    cp2 = codepf("L_tr", "L_epi", pCp)
    a.e(cp2[:-1])
    a.e([
         "s_lshl_b32 s%d, s2, 15" % sT, "s_lshl_b32 s%d, s%d, 10" % (sG, sWv), "s_add_u32 s%d, s%d, s%d" % (sT, sT, sG),
         "v_and_b32 v%d, 7, v%d" % (vT3, vL), "v_lshlrev_b32 v%d, 7, v%d" % (vT3, vT3), "v_add_u32 v%d, s%d, v%d" % (vT3, sT, vT3), "s_mov_b32 s%d, 0" % sP])
    kvpf = "global_load_dword v%d, v%d, s[%d:%d]" % (vDum, vT3, pWo, pWo + 1)
    zs = [zero16(vr(ACC + 16 * i, 16)) for i in range(7)] + [zero16(vr(OK + 16 * i, 16)) for i in range(2, 7)] + [zero16(ar(aO + 16 * i, 16)) for i in range(4)]
    seg = a.L[su0:]; del a.L[su0:]
    for i_, ln in enumerate(seg):
        if i_ % 7 == 3 and zs: a.e(zs.pop(0))
        a.L.append(ln)
    assert not zs and not any("exec" in ln for ln in seg[:120])
    NT = 0
    if O.tlb == 1:
        pTl, pBx = PK + 24, PK + 25
        def tch(srd): return "buffer_load_dword v%d, v%d, s[%d:%d], 0 offen sc1" % (vDum, pTl, srd, srd + 3)
        def tcg(v): return "global_load_dword v%d, v%d, s[%d:%d] sc1" % (vDum, v, pWs, pWs + 1)
        a.e(["v_lshlrev_b32 v%d, 19, v%d" % (pTl, vL)] + boxaddr(pBx)[:-1] + ["v_mov_b32 v%d, s%d" % (pBx, sT), tch(sWs)])
        for w_, ops in enumerate(([tch(sKV), tch(sVV)], [tch(sO), tch(sOs)], [tch(sOut), tch(sW)], [tcg(pFc), tcg(pBx)])):
            a.e(["s_cmp_lg_u32 s%d, %d" % (sWv, w_), "s_cbranch_scc1 L_tl%d" % w_] + ops + ["L_tl%d:" % w_])
        NT = 3
    late = stage_loads(1) + ["buffer_load_dword v%d, v%d, s[%d:%d], 0 offen" % (vDum, pPx, sX, sX + 3), "buffer_load_dword v%d, v%d, s[%d:%d], 0 offen" % (vDum, pPw, sW, sW + 3),
                              kvpf if O.wo_at != 0 else "global_load_dword v%d, v%d, s[%d:%d]" % (vDum, pWoP, pWo, pWo + 1)] + (farpf if O.splitpf else [])
    def kvb(v, off): return "global_load_lds_dwordx4 v%d, s[4:5] offset:%d%s" % (v, off, KVF)
    kvq = ["s_cmp_lt_u32 s%d, 4" % sP, "s_cselect_b32 s4, s%d, s%d" % (sKV, sVV), "s_cselect_b32 s5, s%d, s%d" % (sKV + 1, sVV + 1),
           "s_and_b32 s%d, s%d, 1" % (sT, sP), "s_and_b32 s%d, s%d, 2" % (sG, sP), "s_lshl_b32 s%d, s%d, 12" % (sG, sG),
           "s_lshl_b32 s%d, s%d, 16" % (sT2, sT), "s_add_u32 s%d, s%d, s%d" % (sT2, sT2, sG), "s_mul_i32 s%d, s%d, %d" % (sT, sT, KH),
           "s_mul_i32 s%d, s%d, %d" % (sG, sG, TS_ // 8192), "s_add_u32 s%d, s%d, s%d" % (sT, sT, sG),
           "v_add_u32 v%d, s%d, v%d" % (vT, sT, vKV), "v_add_u32 v%d, s%d, v%d" % (vT2, sT, vKV + 1),
           "s_and_b32 s%d, s%d, 4" % (sG, sP), "s_lshl_b32 s%d, s%d, 13" % (sG, sG), "s_add_u32 s%d, s%d, s%d" % (sT2, sT2, sG),
           "s_and_b32 s%d, s%d, 5" % (sT, sP), "s_cmp_eq_u32 s%d, 5" % sT, "s_cselect_b32 s%d, 128, 0" % sT,
           "v_xor_b32 v%d, s%d, v%d" % (vT, sT, vT), "v_xor_b32 v%d, s%d, v%d" % (vT2, sT, vT2),
           "s_add_u32 s%d, s%d, s%d" % (sT2, sT2, sMW), "s_add_u32 s%d, s%d, 1" % (sP, sP)]
    kvq_m0 = "s_sub_u32 m0, s%d, 0x20000" % sT2

    def wreg(k): return {30: 192, 31: 208}.get(k, aWF + 16 * (k & 1))
    def xreg(k, rt): return 16 * rt + 4 * (k & 3)
    def rdW(k):
        out = []
        for dt in range(4):
            dp, t = dt >> 1, dt & 1
            for sec in range(2):
                out.append("ds_read_b64_tr_b16 %s, v%d offset:%d" % (ar(wreg(k) + 4 * dt + 2 * sec, 2), vWr + dp, (k & 3) * 8192 + sec * 512 + t * 8))
        return out
    def rdX1(s, kk, rt): return "ds_read_b128 %s, v%d offset:%d" % (ar(xreg(2 * s + kk, rt), 4), vXr + 2 * (s & 1) + kk, rt * 2048)
    def rdX(s): return [rdX1(s, kk, rt) for kk in range(2) for rt in range(7)]
    def A(rt, k): return [mfma(vr(ACC + 16 * rt + 4 * dt, 4), ar(wreg(k) + 4 * dt, 4), ar(xreg(k, rt), 4), vr(ACC + 16 * rt + 4 * dt, 4)) for dt in range(4)]
    stamp(4)
    if not O.rd_first: a.e(late)
    a.e(["s_waitcnt vmcnt(%d)" % (2 + NT if O.rd_first else 13 + NE + NT), "s_barrier"])
    stamp(4)
    if O.ts: a.e(["s_mov_b32 s81, 0"] + TS_F)
    a.e(rdW(0) + rdX(0))
    if O.rd_first: a.e(late)
    a.e(["s_mov_b32 s%d, 7" % sCnt, "s_waitcnt vmcnt(%d) lgkmcnt(0)" % (11 + NE + NT), "s_barrier"])

    wopf = "global_load_dword v%d, v%d, s[%d:%d]" % (vDum, pWoP, pWo, pWo + 1)
    addr28 = ["v_mov_b32 v%d, v%d" % (240 + i, PK + i) for i in range(8)] + ["v_mov_b32 v%d, v%d" % (vR + i, pR + i) for i in range(2)]
    addr28 += ["v_mov_b32 v%d, v%d" % (vQw + i, pQ + i) for i in range(2)] + setK(2)

    def p1_kstep(km, mode, ctl=False):
        sp, kk = km >> 1, km & 1
        mf = [m_ for rt in range(7) for m_ in A(rt, km)]
        gaps = [[] for _ in range(28)]
        rd = rdW(km + 1)
        if kk == 1: rd += rdX(sp + 1)
        dm = []; nxe = O.nxe; tailops = []
        if mode == "loop":
            def xs(js):
                r = []
                for j in js:
                    if j == 4 and j != js[0]: r += [m0X(sp, 1)]
                    r.append(dmaX(j))
                return r
            if kk == 0: dm += [m0W(km), dmaW(0), dmaW(1), m0X(sp, 0)] + incW + xs(list(range(nxe)))
            else:
                if nxe < 7: dm += ([m0X(sp, 1)] if nxe == 4 else []) + xs(list(range(nxe, 7)))
                dm += [m0W(km)] + incX + [dmaW(0), dmaW(1)] + incW
                if km == 3:
                    dm += [kvq_m0]; tailops = [kvb(vT, 0), kvb(vT2, 1024), kvpf] + (farpf if O.splitpf else [])
            endw = "s_waitcnt vmcnt(%d) lgkmcnt(0)" % ((4 + nxe + (NE if km == 0 else 0)) if kk == 0 else 11 + NE)
        elif mode == 28:
            endw = "s_waitcnt vmcnt(%d) lgkmcnt(0)" % (NE + 2)
        for g, x in enumerate(rd): gaps[g].append(x)
        def place(items, lo, hi):
            g_ = lo
            for y in items:
                if y.startswith("global_load"): g_ = min(g_ + 1, hi); gaps[g_].insert(0, y); continue
                while g_ < hi and len(gaps[g_]) >= 2: g_ += 1
                gaps[g_].append(y)
        nld = sum(1 for x in dm if x.startswith("buffer_load"))
        if nld:
            pos = [1 + (i * O.p1_span) // nld for i in range(nld)]
            li = 0; pend = []; prev = -1
            for x in dm:
                if x.startswith("buffer_load"):
                    place(pend, max(prev, 0), pos[li] - 1); pend = []
                    gaps[pos[li]].insert(0, x); prev = pos[li]; li += 1
                else: pend.append(x)
            place(pend, prev, 25)
        if tailops: assert not gaps[24] and not gaps[25] and not any("m0" in y or "s%d," % sWoff in y for y in gaps[23]), gaps[22:]
        for i_, x in enumerate(tailops): gaps[23 + min(i_, (i_ + 1) // 2)].append(x) if i_ else gaps[23].insert(0, x)
        if mode == "loop" and km == 2: place(kvq + (["v_add_u32 v%d, 4096, v%d" % (vT3, vT3)] if O.wo_at == 1 else []), 8, 25)
        if mode == 28:
            place(kvq + [kvq_m0], 0, 15); gaps[16].insert(0, kvb(vT, 0)); gaps[17].insert(0, kvb(vT2, 1024)); place(addr28, 18, 25)
        if endw: gaps[26].append(endw); gaps[27].append("s_barrier")
        if O.ts and km in (0, 2): gaps[22] += TS_A; gaps[27] += TS_B
        if ctl:
            gaps[25].append("s_sub_u32 s%d, s%d, 1" % (sCnt, sCnt)); gaps[26].append("s_cmp_lg_u32 s%d, 0" % sCnt)
        weave(a, mf, gaps)
    stamp(4)
    a.raw(".p2align 5")
    a.lab("L_p1")
    for km in range(4): p1_kstep(km, "loop", ctl=(km == 3))
    a.e("s_cbranch_scc1 L_p1")
    p1_kstep(0, 28)
    stamp(4)
    a.lab("L_tr")
    a.e(["s_cmp_lg_u32 s%d, 0" % sPass, "s_cbranch_scc1 L_nofl",
         "global_load_dword v%d, v%d, s[%d:%d] sc1" % (vFc, pFc, pWs, pWs + 1),
         "s_cmp_lg_u32 s%d, 0" % sWv, "s_cbranch_scc1 L_nofl",
         "global_load_dword v%d, v%d, s[%d:%d] sc1" % (vFo, pFp, pWs, pWs + 1)])
    a.lab("L_nofl")
    def ismem(x): return x.startswith(("ds_", "buffer_", "global_", "s_barrier"))
    def spread(mf, side, lo=0, hi=None):
        n = len(mf); hi = n - 1 if hi is None else hi
        gaps = [[] for _ in range(n)]
        g = lo
        if any(isinstance(x, list) for x in side):
            n0 = [isinstance(x, list) for x in side].index(True)
            pre = side[:n0]
            gaps[lo] += pre[:-5]; gaps[lo + 1] += pre[-5:] + side[n0]
            side = side[n0 + 1:]; lo += 2; g = lo
        for i_, x in enumerate(side):
            g = max(g, lo + (i_ * (hi - lo + 1)) // len(side))
            if ismem(x) and any(y.startswith("v_") for y in gaps[g]) and g < hi: g += 1
            gaps[g].append(x)
        weave(a, mf, gaps)
    def rdK(i, slot):
        t, ks = i & 1, i >> 1
        return "ds_read_b128 %s, v%d offset:%d" % (ar(aK + 16 * t + 4 * ks, 4), vKr, slot * 8192 + t * 4096 + ks * 256)
    def xlane(op, regs_, tmp):
        out = []
        for sw in ("v_permlane32_swap_b32", "v_permlane16_swap_b32"):
            out += ["v_mov_b32 v%d, v%d" % (t_, r_) for r_, t_ in zip(regs_, tmp)]
            out += ["%s v%d, v%d" % (sw, r_, t_) for r_, t_ in zip(regs_, tmp)]
            out += ["%s v%d, v%d, v%d" % (op, r_, r_, t_) for r_, t_ in zip(regs_, tmp)]
        return out
    def qk(rt, sb):
        out = []
        for i in range(8):
            t, ks = i & 1, i >> 1
            d = vr(S + 8 * sb + 4 * t, 4)
            out.append(mfma(d, ar(aK + 16 * t + 4 * ks, 4), ar(aQ + 16 * rt + 4 * ks, 4), vr(M + 4 * rt, 4) if ks == 0 else d))
        return out
    def oacc(rt, i): return vr(OK + 16 * rt + 4 * i, 4) if i < 4 else ar(aO + 16 * rt + 4 * (i - 4), 4)
    def pv(rt, pb): return [mfma(oacc(rt, i), vr(V + 4 * i, 4), vr(P + 4 * pb, 4), oacc(rt, i)) for i in range(8)]
    aK0 = 176
    def Bq(rt):
        o = []
        if O.pkg & 2: o.append(["v_pk_mul_f32 %s, %s, s[%d:%d]" % (vr(ACC + 16 * rt + 2 * i, 2), vr(ACC + 16 * rt + 2 * i, 2), sC, sC + 1) for i in range(8)])
        for dp in range(2):
            b = ACC + 16 * rt + 8 * dp
            for i in range(4):
                if not O.pkg & 2: o += ["v_mul_f32 v%d, s%d, v%d" % (b + 2 * i, sC, b + 2 * i), "v_mul_f32 v%d, s%d, v%d" % (b + 2 * i + 1, sC, b + 2 * i + 1)]
                o.append("v_cvt_pk_bf16_f32 v%d, v%d, v%d" % (b + i, b + 2 * i, b + 2 * i + 1))
            if dp == 0: o.append("s_waitcnt lgkmcnt(0)")
            o.append("ds_write_b128 v%d, %s offset:%d" % (vQw, vr(b, 4), (rt & 3) * 8192 + dp * 1024))
        return o
    def Cq(rt): return ["ds_read_b128 %s, v%d offset:%d" % (ar(aQ + 16 * rt + 4 * ks, 4), vQr, (rt & 3) * 8192 + (ks >> 1) * 4096 + (ks & 1) * 1024) for ks in range(4)]
    def PP(rt): return [mfma(vr(M + 4 * rt, 4), ar(aK0 + 4 * ks, 4), ar(aQ + 16 * rt + 4 * ks, 4), "0" if ks == 0 else vr(M + 4 * rt, 4)) for ks in range(4)]
    def Dq(rt):
        b = M + 4 * rt
        return ["v_max3_f32 v%d, v%d, v%d, v%d" % (b, b, b + 1, b + 2), "v_max_f32 v%d, v%d, v%d" % (b, b, b + 3)] + ["v_sub_f32 v%d, 0, v%d" % (b + i, b) for i in (1, 2, 3, 0)]
    sync = ["s_waitcnt lgkmcnt(0)", "s_barrier"]
    kvs = [[ptm0(reg, sl), "s_nop 0"] + ptld(reg) + (incK if reg == 3 else []) for sl in (2, 3) for reg in PORD]
    if O.t3late: kvs = [kvs[0], [], kvs[1], [], kvs[2], [], kvs[3], []]
    pfs = ([cp2[-1]] if O.pf_code else []) + ([wopf] if O.wo_at == 29 else [])
    t1 = rdW(30) + [rdX1(15, 0, 0)] + rdW(31) + [rdX1(15, 1, 0)] + [rdX1(15, kk, rt) for rt in range(1, 7) for kk in range(2)]
    spread([m_ for rt in range(5) for m_ in A(rt, 29)], t1 + pfs + sync, 0, 19)
    stamp(1)
    for i in range(8):
        mf = (A(i, 30) + A(i, 31) if i < 7 else qk(0, 0)) + (A(5 + i, 29) if i < 2 else PP(i - 2))
        side = []
        if i == 0: mf += [zero16(vr(OK, 16)), zero16(vr(OK + 16, 16))]
        if i == 0: side += ["ds_read_b128 %s, v%d offset:%d" % (ar(aK0 + 4 * ks, 4), vK0, ks * 256) for ks in range(4)]
        bq = Bq(i - 1) if i >= 1 else []
        nb = O.nb if i >= 2 else 0
        if nb:
            bq = [x for x in bq if not x.startswith("s_waitcnt")]
            w0 = [x for x in bq if x.startswith("ds_write")][0]; bq.remove(w0)
            bq = bq[:18] + ["s_waitcnt lgkmcnt(0)", w0] + bq[18:]
        side += bq[:nb]
        if i >= 2: side += sync + Cq(i - 2)
        if i in (3, 4): side += [rdK(j, 0) for j in range(4 * (i - 3), 4 * (i - 2))]
        side += bq[nb:]
        if i >= 3: side += Dq(i - 3)
        if i == 7: side += ["v_mov_b32 v%d, 0" % j for j in range(L, L + 4)] + ["s_mov_b32 s%d, 3" % sCnt]
        side += kvs[i]
        spread(mf, side)
    if O.ts: a.e(TS_F)
    a.e(["s_cmp_lg_u32 s%d, 0" % sPass, "s_cbranch_scc1 L_maxpass"])
    stamp(1)
    NA = 0

    def dma3(j): return "buffer_load_dwordx4 v%d, s[%d:%d], s%d offen offset:%d %s lds" % (vD + j, sWs, sWs + 3, sWo, j * 1024, O.w3f)
    def setWo(u): return "s_xor_b32 s%d, s%d, 0x%x" % (sWo, sOf, u * 32768)
    def wset(n): return (0, 32, 64, 224)[n & 3]
    def rd3(k, off, dts=range(8)):
        return ["ds_read_b64_tr_b16 %s, v%d offset:%d" % (ar(wset(k) + 4 * dt + 2 * sec, 2), vR + (dt & 1), off + (dt >> 1) * 256 + sec * 4096) for dt in dts for sec in range(2)]
    def xw(rt): return ["ds_write_b128 v%d, %s offset:%d" % (vTa, ar(aO + 16 * rt + 4 * i, 4), rt * 4096 + i * 1024) for i in range(4)]
    vm = VM(["kv"])
    sDyn, sDd = 10, 11
    KV = " ;kv"
    def dm0(reg): return "s_add_u32 m0, s%d, %d" % (sDyn, reg * 32768)
    incD = incK + ["s_add_u32 s%d, s%d, 8192" % (sDyn, sDyn), "s_and_b32 s%d, s%d, 0x7fff" % (sDyn, sDyn)]
    initD = ["s_sub_u32 s%d, s%d, 0x20000" % (sDyn, sMW), "s_mov_b32 s%d, %d" % (sDd, O.th)]
    vFp, vFa = 239, 252
    def loff(rt): return 28672 + (rt & 3) * 4 + (rt >> 2) * 1024
    def lw(rt): return "ds_write_b32 v%d, v%d offset:%d" % (vTa, L + rt, loff(rt))
    def rdc(rt, pb): return ["ds_read_b32 v%d, v%d offset:%d" % (E2 + 2 + (rt & 1), vTb, loff(rt))] + ["ds_read_b128 %s, v%d offset:%d" % (vr(pb + 4 * i, 4), vTb, (rt * 4 + i) * 1024) for i in range(4)]
    def comb(rt, pb):
        ob = OK + 16 * rt; t = E2 + 2 + (rt & 1)
        return (["v_add_f32 v%d, v%d, v%d" % (t, t, L + rt), "v_rcp_f32 v%d, v%d" % (t, t)] + ["v_add_f32 v%d, v%d, v%d" % (ob + i, ob + i, pb + i) for i in range(16)]
                + [x for i in range(8) for x in ("v_mul_f32 v%d, v%d, v%d" % (ob + 2 * i, ob + 2 * i, t), "v_mul_f32 v%d, v%d, v%d" % (ob + 2 * i + 1, ob + 2 * i + 1, t),
                                                 "v_cvt_pk_bf16_f32 v%d, v%d, v%d" % (ob + i, ob + 2 * i, ob + 2 * i + 1))])
    def combp(rt, pb):
        ob = OK + 16 * rt; t = E2 + 2
        o = ["v_add_f32 v%d, v%d, v%d" % (t + (rt & 1), t + (rt & 1), L + rt), "v_rcp_f32 v%d, v%d" % (t + (rt & 1), t + (rt & 1))]
        o += ["v_pk_add_f32 %s, %s, %s" % (vr(ob + 2 * i, 2), vr(ob + 2 * i, 2), vr(pb + 2 * i, 2)) for i in range(8)]
        o += ["v_pk_mul_f32 %s, %s, %s %s" % (vr(ob + 2 * i, 2), vr(ob + 2 * i, 2), vr(t, 2), "op_sel:[0,1]" if rt & 1 else "op_sel_hi:[1,0]") for i in range(8)]
        return o + ["v_cvt_pk_bf16_f32 v%d, v%d, v%d" % (ob + i, ob + 2 * i, ob + 2 * i + 1) for i in range(8)]
    def ost(rt): return ["buffer_store_dwordx4 %s, v%d, s[%d:%d], s%d offen offset:%d sc1" % (vr(OK + 16 * rt + 4 * p, 4), vL16, sO, sO + 3, sRt + rt, p * 1024) for p in range(2)]
    pend = []; cost = [0]
    def step(js, r, last=False, first=False, kv=False, ctl=False):
        u = 7 * js + r
        fin = last and js == 3
        mf = ([] if (fin and r == 6) else qk((r + 1) % 7, (u + 1) & 1)) + pv((r + 6) % 7, (u + 1) & 1)
        mem = [[] for _ in range(16)]; val = [[] for _ in range(16)]
        pk = not fin and not (first and r == 0)
        Eb = E2 if (pk and u & 1) else E
        for e in range(8):
            val[2 * e].append("v_exp_f32 v%d, v%d" % (Eb + e, S + 8 * (u & 1) + e))
            if not pk: val[2 * e + 1].append("v_add_f32 v%d, v%d, v%d" % (L + r, L + r, Eb + e))
            if e & 1: val[2 * e + 1].append("v_cvt_pk_bf16_f32 v%d, v%d, v%d" % (P + 4 * (u & 1) + (e >> 1), Eb + e - 1, Eb + e))
        if first and r == 0:
            mf = mf[:8] + PP(6) + [zero16(ar(192, 16)), zero16(ar(208, 16))]
            mem[0] += sync + Cq(6)[:2]; mem[1] += Cq(6)[2:]; mem[7].append("s_waitcnt lgkmcnt(0)")
            for i_, x in enumerate(Dq(5)): val[3 + 2 * i_].append(x)
        if first and r == 1:
            for i_, x in enumerate(Dq(6) + ["v_mov_b32 v%d, 0" % j for j in range(L + 4, L + 7)]): val[1 + 4 * (i_ % 4)].append(x) if i_ >= 6 else val[1 + 2 * i_].append(x)
        if first and r == 2: mem[9].append(zero16(ar(176, 16)))
        if first and r == 3: mem[1].append(initD[0]); mem[5].append(initD[1])
        if O.tlb2 and first and r == 2:
            val[1] += ["v_lshlrev_b32 v250, 19, v%d" % vL] + boxaddr(251)[:2]; val[3] += boxaddr(251)[2:4]; val[5] += ["v_mov_b32 v251, s%d" % sT]
        if O.tlb2 and first and r == 3:
            for i_, srd in enumerate((sO, sOs, sOut)): mem[7 + 2 * i_].append("buffer_load_dword v%d, v250, s[%d:%d], 0 offen sc1" % (vDum, srd, srd + 3))
            mem[13].append("global_load_dword v%d, v251, s[%d:%d] sc1" % (vDum, pWs, pWs + 1))
        if O.pf3 and first and r == 4:
            for i_, x in enumerate(codepf("L_last", "L_go", 250)[:-1]): val[1 + 2 * i_].append(x)
        if O.pf3 and not first and not last and js == O.pf3 % 4 and r == 1: mem[9].append(codepf("L_last", "L_go", 250)[-1])
        vrd = ["ds_read_b64_tr_b16 %s, v%d offset:%d" % (vr(V + 4 * i + 2 * sec, 2), vVr + (i & 1), js * 8192 + (i >> 1) * 256 + sec * 4096) for i in range(8) for sec in range(2)]
        if not fin and not first:
            if r == 0: mem[9] += vrd[0:3]; mem[11] += vrd[3:5]; mem[13] += vrd[5:8]; mem[15] += vrd[8:10]
            if r == 1:
                mem[1] += vrd[10:12]; mem[3] += vrd[12:14]; mem[5] += vrd[14:16]
                mem[7].append("s_waitcnt lgkmcnt(4)"); mem[13].append("s_waitcnt lgkmcnt(0)")
        else:
            if r == 0:
                for i in range(16): mem[8 + i // 2].append(vrd[i])
            if r == 1: mem[5].append("s_waitcnt lgkmcnt(%d)" % (5 if fin else 0))
        if r == 5 and not fin: mem[0].append("s_barrier")
        if r == 4 and not last: mem[13] += ["s_getreg_b32 s%d, hwreg(HW_REG_IB_STS, 0, 4)" % sT2]; mem[15].append("s_waitcnt vmcnt(8)")
        if r == 4 and ctl: mem[9].append("s_sub_u32 s%d, s%d, 1" % (sCnt, sCnt)); mem[11].append("s_cmp_lg_u32 s%d, 0" % sCnt)
        if kv:
            pts = [tuple(int(y) for y in x.split(".")) for x in O.pts.split(",")]
            pos = [((pr_ - 5) % 7) * 16 + pg_ for pr_, pg_ in pts]
            here = ((r - 5) % 7) * 16
            def put(p_, xs):
                if here <= p_ < here + 16: mem[p_ - here] += [x + KV for x in xs]
            for n_ in range(4):
                put(pos[n_] - 2, [dm0(PORD[n_])]); put(pos[n_], ptld(PORD[n_]))
            put(pos[3] + 2, incD[0:2]); put(pos[3] + 4, incD[2:4])
        if last:
            sched = [{(0, 6): 0, (1, 1): 6, (1, 3): 1, (1, 6): 7, (2, 0): 2, (2, 2): 3, (2, 5): 4, (3, 0): 5},
                     {(1, 1): 0, (1, 3): 1, (1, 6): 6, (2, 1): 2, (2, 2): 3, (2, 6): 4, (3, 0): 5, (3, 1): 7},
                     {(1, 2): 0, (1, 3): 1, (1, 6): 6, (2, 0): 7, (2, 2): 2, (2, 4): 3, (2, 6): 4, (3, 1): 5}][O.ts9]
            if (js, r) in sched:
                k = sched[(js, r)]
                base, off = (sReg, k * 4096) if k < 6 else (sSp, (k - 6) * 4096)
                g0 = (9, 11, 13, 15) if r == 5 else ((1, 3, 5, 7) if r == 0 else (1, 5, 9, 13))
                mem[g0[0] - 1] += ["s_add_u32 m0, s%d, %d" % (base, off), setWo(k)]
                for j in range(4): mem[g0[j]].append(("w%d" % k, dma3(j)))
            if r == 4 and js == 1: mem[13].append(("wait8", "kv"))
            if r == 4 and js == 2: mem[13].append(("wait", "kv"))
            if r == 5 and js < 1:
                mem[11].append("s_cmp_ge_u32 s%d, %d" % (sK0, 16 * TS_))
                mem[13].append(("kv", ["s_cbranch_scc1 L_ok%d" % js] + [x for reg in PORD for x in [dm0(reg), "s_nop 0"] + ptld(reg)] + incD + ["L_ok%d:" % js]))
            if js == 2 and r == 3 and O.pf_code and not O.ts:
                pf = codepf("L_epi", "L_end", vT)
                for i_, x in enumerate(pf[:-1]): val[1 + 2 * i_].append(x)
                mem[15].append(("pf", pf[-1]))
            if js == 1 and r == 2:
                val[1] += ["v_add_u32 v%d, s%d, v%d" % (vTa, sReg, vL16)]; val[5] += ["v_add_u32 v%d, s%d, v%d" % (vTb, sRing, vL16)]
            if js == 1 and r == 4:
                for i_, x in enumerate(flagp(vFp, vT2)): val[1 + 2 * (i_ // 4)].append(x)
            if js == 2 and r == 1:
                for i_, x in enumerate(["s_lshr_b32 s%d, s%d, 6" % (sT, sOf), "v_add_u32 v248, s%d, v%d" % (sT, vL16), "v_add_u32 v%d, 1, v%d" % (vFo, vFo)]): val[9 + 2 * i_].append(x)
            if js == 2 and r == 4:
                fc = flagc(vFa)
                for i_, x in enumerate(fc[:-3]): val[1 + 2 * (i_ // 2)].append(x)
                val[11] += fc[-3:]
            if fin:
                h2 = 8 if 2 <= r < 6 else 0
                if r < 6:
                    if r % 2 == 0: mem[h2] += [("wait", "w%d" % r), ("wait", "w%d" % (r + 1))]
                if r == 1: mem[9].append("s_barrier")
                g1 = list(range(0, 8)) if r < 6 else [8, 8, 9, 9, 10, 10, 11, 11]
                g2 = list(range(8, 16)) if r < 6 else [12, 12, 13, 13, 14, 14, 15, 15]
                if r >= 3: mem[g1[0]].append("s_waitcnt lgkmcnt(0)")
                if r >= 2:
                    for i_, x in enumerate(xw(r - 2) + [lw(r - 2)]): mem[g1[1 + i_]].append(x)
                    mem[g2[0]] += sync
                    for i_, x in enumerate(rdc(r - 2, 128)): mem[g2[(i_ + 1) // 2]].append(x)
                if r < 6:
                    for i_, x in enumerate(rd3(r >> 1, (r >> 1) * 8192, range(4 * (r & 1), 4 * (r & 1) + 4))): mem[h2 + (i_ if h2 == 0 else 3 + i_ // 2)].append(x)
                else:
                    mem[8] += [("wait", "w6"), ("wait", "w7")]
                    for i_, x in enumerate(rd3(3, 0)): mem[8 + i_ // 2].append(x)
                vg = r < 6
                if r >= 3:
                    if O.pkg & 1:
                        cb = combp(r - 3, 128)
                        val[1] += cb[:2]; late3 = cb[2:10]; late7 = cb[10:18]
                        for i_, x in enumerate(cb[18:]): val[8 + (i_ * 6) // 8].append(x)
                    else:
                        cb = comb(r - 3, 128)
                        for i_, x in enumerate(cb[:18]): val[(i_ * 8) // 18].append(x)
                        for i_, x in enumerate(cb[18:]): val[8 + (i_ * 6) // 24].append(x)
                    mem[15] += [("st", x) for x in ost(r - 3)]
                    if O.wfin and r >= 4:
                        u_ = 8 + r - 4
                        mem[g1[0]] += ["s_add_u32 m0, s%d, %d" % (sRing, (u_ & 7) * 4096), setWo(u_)]
                        for j in range(4): mem[g1[2 + j]].append(("w%d" % u_, dma3(j)))
                if r >= 1:
                    for i_, x in enumerate(xlane("v_add_f32", [L + r - 1], [E2])): val[3 + 2 * i_].append(x)
                if r >= 3 and O.pkg & 1: val[3] += late3 + late7
                if r == 5: val[15] += ["v_add_u32 v%d, s%d, v%d" % (vR + i, sD1, vR + i) for i in range(2)]
        if r == 5 and not fin:
            for i in range(8): mem[(1, 1, 3, 5, 5, 7, 9, 9)[i]].append(rdK(i, (js + 1) & 3))
            mem[15].insert(0, "s_waitcnt lgkmcnt(0)")
            if O.ts: mem[11] += TS_A; mem[15] += TS_B
        if fin and r == 6:
            mem = [mem[8 + i] for i in range(8)]
            val = [val[2 * i] + val[2 * i + 1] for i in range(8)]
            val = [[v_[0], "s_nop 0"] + v_[1:] for v_ in val]
            a.e("s_nop 1")
        if first and r == 0:
            mem = mem[:12] + [mem[12] + mem[13], mem[14] + mem[15]]
            val = val[:12] + [val[12] + ["s_nop 0"] + val[13], val[14] + ["s_nop 0"] + val[15]]
        if pk:
            flush = r == 4 or (last and js == 2 and r == 6)
            old_ = len(pend)
            for g in range(1, 16, 2):
                pend.append("v_add_f32 v%d, v%d, v%d" % (L + r, L + r, Eb + g // 2))
                n_ = max(0, 2 - len(mem[g]) - len(val[g]))
                if g == 15: n_ = max(n_, len(pend) if flush else old_)
                n_ = min(n_, len(pend))
                val[g] += pend[:n_]; del pend[:n_]; old_ = max(0, old_ - n_)
        else: assert not pend
        if O.padn and pk:
            for i_ in range(O.padn): val[2 * i_].append("s_nop 0")
        for g_, v_ in zip(mem, val): cost[0] += max(16, 8 + sum(8 if (isinstance(x, str) and "v_exp" in x) else 4 for x in g_ + v_))
        if r == 4:
            if O.verbose: print("unit ending", js, last, first, "model cycles", cost[0], file=sys.stderr)
            cost[0] = 0
        for m_, g_, v_ in zip(mf, mem, val):
            a.e(m_)
            for x in g_:
                if isinstance(x, tuple):
                    if x[0] == "wait": a.e("s_waitcnt vmcnt(%d)" % vm.n(x[1]))
                    elif x[0] == "wait8": a.e("s_waitcnt vmcnt(%d)" % (vm.n(x[1]) + 8))
                    elif x[0] == "kv": vm.issue("kv", True); a.e(x[1])
                    else: vm.issue(x[0]); a.e(x[1])
                else: a.e(x)
            a.e(v_)
    for r in range(5): step(0, r, first=True)
    quiet = []
    a.raw(".p2align 5")
    a.lab("L_loop")
    for js in range(4):
        if O.force_skip & (1 << js): a.e("s_or_b32 s%d, s%d, 15" % (sT2, sT2))
        a.e(["s_cmp_gt_u32 s%d, s%d" % (sT2, sDd), "s_cbranch_scc1 L_h%d" % js])
        a.lab("L_u%d" % js)
        q0 = len(a.L)
        for r in (5, 6): step(js, r, kv=True)
        step((js + 1) & 3, 0, kv=True)
        qe = max(i_ for i_ in range(q0, len(a.L)) if a.L[i_].endswith(KV)) + 1
        quiet.append([ln for ln in a.L[q0:qe] if not ln.endswith(KV)])
        a.L.insert(qe, "L_j%d:" % js)
        for r in range(1, 5): step((js + 1) & 3, r, ctl=(js == 3))
    a.e(["s_cbranch_scc1 L_loop", "s_branch L_last"])
    for js in range(4):
        a.lab("L_h%d" % js)
        a.e("s_mov_b32 s%d, 99" % sDd)
        a.L += quiet[js]
        a.e("s_branch L_j%d" % js)
    a.lab("L_last")
    for r in (5, 6): step(0, r, last=True)
    for js in range(1, 4):
        for r in range(7): step(js, r, last=True)
    stamp()

    a.lab("L_epi")
    if O.ts: a.e(TS_F)
    misc = ["v_add_f32 v%d, v%d, v%d" % (vTc, L, L + 1)] + ["v_add_f32 v%d, v%d, v%d" % (vTc, vTc, L + i) for i in range(2, 7)]
    misc += ["s_mov_b32 s%d, 0x%x" % (sT, THR if not O.force_slow else 0), "s_lshl_b32 s%d, s%d, 2" % (sG, sWv),
             "v_cmp_ngt_f32 vcc, s%d, v%d" % (sT, vTc),
             "s_add_u32 s%d, s%d, 30720" % (sG, sG), "v_mov_b32 v%d, s%d" % (vT, sG),
             "s_cmp_lg_u64 vcc, 0", "s_cselect_b32 s%d, 1, 0" % sT, "v_mov_b32 v%d, 30720" % vT2, "v_mov_b32 v%d, s%d" % (L + 7, sT)]
    xl = xlane("v_add_f32", [L + 6], [E2])
    pvl = pv(6, 1); pvl = pvl[4:] + pvl[:4]
    gp = [[] for _ in range(8)]
    for i_, x in enumerate(xw(5) + [lw(5)]): gp[2 + i_].append(x)
    for i_, x in enumerate(misc): gp[(i_ * 8) // len(misc)].append(x)
    for i_, x in enumerate(xl): gp[2 + i_].append(x)
    a.e(["s_waitcnt lgkmcnt(0)", "s_nop 0"])
    weave(a, pvl, gp)
    a.e(xw(6) + [lw(6), "ds_write_b32 v%d, v%d" % (vT, L + 7)])
    def stores(rt):
        for x in ost(rt): vm.issue("st"); a.e(x)
    c4 = combp(4, 128)
    a.e(c4[:18] + sync)
    stamp(2)
    a.e(["ds_read_b128 %s, v%d" % (vr(216, 4), vT2)] + rdc(5, 144) + rdc(6, 160) + c4[18:])
    stores(4)
    a.e(["v_add_u32 v%d, s%d, v%d" % (vR + i, sD2, vR + i) for i in range(2)])
    a.e(["s_waitcnt lgkmcnt(5)", "v_or3_b32 v216, v216, v217, v218", "v_or_b32 v216, v216, v219"] + combp(5, 144) + ["v_readfirstlane_b32 s%d, v216" % sT])
    stores(5)
    a.e(["s_waitcnt lgkmcnt(0)"] + combp(6, 160))
    stores(6)
    a.e(["s_andn2_b32 s%d, s%d, s%d" % (sT, sT, sPass), "s_cbranch_scc1 L_slow"])
    def wload(k, j):
        if j == 0: a.e(["s_add_u32 m0, s%d, %d" % (sRing, (k & 7) * 4096), setWo(k)])
        vm.issue("w%d" % k); a.e(dma3(j))
    wi = 12 if O.wfin else 0
    stamp(2)
    ACC3, OF = 16, 128
    vS, vOo, vOut, vPs = 6, 248, 249, 250
    def acc3(rt, sl):
        hb, wv = sl >> 2, sl & 3
        return vr(ACC3 + 16 * rt + 4 * (2 * hb + wv), 4) if wv < 2 else ar(112 + 16 * rt + 4 * (2 * hb + wv - 2), 4)
    for _ in range(min(O.w_late, 28 - wi)): wload(8 + wi // 4, wi % 4); wi += 1
    a.e(["s_lshl_b32 s%d, s%d, 5" % (sT, sB), "s_add_u32 s%d, s%d, s%d" % (sT, sT, sH), "v_mov_b32 v%d, s%d" % (vT2, sT), "v_mov_b32 v%d, 1" % vT3,
         "v_xor_b32 v243, 0x80, v%d" % vT2, "v_mov_b32 v241, v%d" % vFa,
         "s_lshr_b32 s%d, s%d, 1" % (sT, sRB), "s_lshl_b32 s%d, s%d, 5" % (sT, sT), "s_lshl_b32 s%d, s%d, 2" % (sG, sPm), "s_add_u32 s%d, s%d, s%d" % (sT, sT, sG),
         "v_mov_b32 v242, s%d" % sT, "s_mov_b32 s%d, 0x40000" % sCnt])
    if O.ts: a.e(TS_F)
    a.e(["s_waitcnt vmcnt(%d)" % vm.n("st"), "s_barrier"])
    if O.ts: a.e(TS_F)
    stamp(2)
    if O.stamps: a.e("s_memrealtime s[6:7]")
    a.e(["s_cmp_lg_u32 s%d, 0" % sWv, "s_cbranch_scc1 L_noflag",
         "s_mov_b64 exec, 0xfffff", "global_store_dword v%d, v%d, s[%d:%d] sc1" % (vFp, vFo, pWs, pWs + 1),
         "s_mov_b64 exec, 1", "global_store_byte v%d, v%d, s[%d:%d] sc1" % (vT2, vT3, pDbg, pDbg + 1), "s_mov_b64 exec, -1"])
    a.lab("L_noflag")
    stamp(2)
    def wpieces(lo, hi):
        out = []
        for p_ in range(lo, hi):
            u, j = 8 + p_ // 4, p_ % 4
            out.append((["s_add_u32 m0, s%d, %d" % (sRing, (u & 7) * 4096), setWo(u)] if j == 0 else [], ("w%d" % u, dma3(j))))
        return out
    if O.dynw:
        a.e(["s_mov_b64 exec, 31", "global_load_dword v%d, v241, s[%d:%d] sc1" % (vT, pWs, pWs + 1), "s_waitcnt vmcnt(0)", "v_cmp_eq_u32 vcc, v%d, v%d" % (vT, vFc), "s_nop 0", "s_cbranch_vccz L_go", "s_mov_b64 exec, -1"])
        for pre, op in wpieces(wi, 32): a.e(pre + [op[1]])
    a.e("s_mov_b64 exec, 31")
    a.lab("L_poll")
    a.e(["global_load_dword v%d, v241, s[%d:%d] sc1" % (vT, pWs, pWs + 1), "s_sub_u32 s%d, s%d, 1" % (sCnt, sCnt), "s_cbranch_scc1 L_go",
         "s_waitcnt vmcnt(0)", "v_cmp_eq_u32 s[%d:%d], v%d, v%d" % (sC, sC + 1, vT, vFc), "s_nop 0", "s_cmp_eq_u64 s[%d:%d], 0" % (sC, sC + 1), "s_cbranch_scc1 L_go",
         "s_and_b32 s%d, s%d, 15" % (sT, sCnt), "s_cbranch_scc1 L_poll",
         "global_load_dword v%d, v242, s[%d:%d] sc1" % (vT, pDbg, pDbg + 1), "global_load_ubyte v%d, v243, s[%d:%d] sc1" % (vT2, pDbg, pDbg + 1), "s_waitcnt vmcnt(0)",
         "v_add_u32 v%d, v%d, v%d" % (vT, vT, vT2), "s_nop 0", "v_readfirstlane_b32 s%d, v%d" % (sT, vT),
         "s_nop 0", "s_cmp_eq_u32 s%d, 0x01010102" % sT, "s_cbranch_scc0 L_poll"])
    a.lab("L_go")
    a.e("s_mov_b64 exec, -1")
    if O.wggo: a.e("s_barrier")
    stamp()
    if O.stamps: a.e(["s_memrealtime s[4:5]", "s_sub_u32 s10, 0x40000, s11"])
    def ldO(rt, k): return "buffer_load_dwordx4 %s, v%d, s[%d:%d], s%d offen sc1" % (vr(OF + 28 * (k & 3) + 4 * rt, 4), vOo, sOs, sOs + 3, sRt + rt)
    def incO(k): return "v_xor_b32 v%d, 0x%x, v%d" % (vOo, (k ^ (k + 1)) << 10, vOo)
    for k in range(2):
        for rt in range(7): vm.issue("o%d" % k); a.e(ldO(rt, k))
        a.e(incO(k))
    a.e(["v_add_u32 v%d, s%d, v%d" % (vS, sRing, vL16)])
    for i in range(1, 4): a.e(["v_xor_b32 v%d, 0x%x, v%d" % (vS + i, i << 15, vS)])
    a.e(["v_and_b32 v%d, 15, v%d" % (vT, vL), "v_lshrrev_b32 v%d, 4, v%d" % (vT2, vL), "v_lshlrev_b32 v%d, 3, v%d" % (vT2, vT2),
         "v_lshl_add_u32 v%d, v%d, 11, v%d" % (vT, vT, vT2),
         "s_lshl_b32 s%d, s%d, 8" % (sT, sCT), "s_lshl_b32 s%d, s%d, 5" % (sG, sPm), "s_add_u32 s%d, s%d, s%d" % (sT, sT, sG),
         "v_add_u32 v%d, s%d, v%d" % (vOut, sT, vT)] + boxaddr(vPs) + ["v_xor_b32 v%d, 0x8000, v%d" % (vPs + 1, vPs)])
    if O.ts: a.e(TS_F)
    a.e(["s_waitcnt vmcnt(%d)" % (vm.n("o0") + 6)])
    def redw(rt, hb, wv): return "ds_write_b128 v%d, %s offset:%d" % (vS, acc3(rt, 4 * hb + wv), (wv - 1) * 7168 + rt * 1024)
    def redr(rt, wv, d): return "ds_read_b128 %s, v%d offset:%d" % (vr(d, 4), vS + wv, (wv - 1) * 7168 + rt * 1024)
    def mf3(rt, sl, k): return mfma(acc3(rt, sl), ar(wset(k) + 4 * sl, 4), vr(OF + 28 * (k & 3) + 4 * rt, 4), acc3(rt, sl) if k else "0")
    def emit(mf, gaps):
        for m_, g_ in zip(mf, gaps):
            a.e(m_)
            for x in g_:
                if isinstance(x, tuple):
                    if x[0] == "wait": a.e("s_waitcnt vmcnt(%d)%s" % (min(vm.n(t_) for t_ in x[1]), " lgkmcnt(0)" if x[2] else ""))
                    elif x[0] == "wait0": a.e("s_waitcnt vmcnt(%d)" % (vm.n("o0") + x[1]))
                    elif isinstance(x[1], list):
                        nsk[0] += 1
                        for _ in range(4): vm.issue(x[0], True)
                        a.e(["s_cbranch_vccnz L_sk%d" % nsk[0]] + x[1]); a.lab("L_sk%d" % nsk[0])
                    elif (O.dbg3 & 1 and x[0][0] == "w") or (O.dbg3 & 2 and x[0][0] == "o" and int(x[0][1:]) > 3): vm.issue(x[0])
                    else: vm.issue(x[0]); a.e(x[1])
                elif O.dbg3 & 4 and x.startswith("ds_read_b64"): pass
                else: a.e(x)
    nsk = [0]
    ws0, ws1 = 2, O.ws1
    pstep = [ws0 + (p_ * (ws1 - ws0)) // 64 for p_ in range(64)]
    rstep = {m_: m_ - 3 for m_ in range(4, 8)}
    for m_ in range(8, 16):
        rstep[m_] = max(m_ - 3, pstep[8 * (m_ - 8) + 7] + 2)
        assert pstep[8 * (m_ - 8)] > rstep[m_ - 4] and rstep[m_] <= min(m_ - 1, 13) and (m_ == 15 or rstep[m_] <= 12), m_
    for k in range(13):
        mf = [mf3(rt, sl, k) for rt in range(7) for sl in range(8)]
        gaps = [[] for _ in range(56)]
        rds = [m_ for m_ in rstep if rstep[m_] == k]
        for g, x in enumerate([y for m_ in rds for y in rd3(m_, (m_ & 3) * 8192)]): gaps[g].append(x)
        wl = []
        if k < 3:
            assert wi % 4 == 0 and wi >= 8 and O.dynw
            us = list(range(wi // 4, 8)); us = us[(len(us) * k) // 3:(len(us) * (k + 1)) // 3]
            wl = [([], ("w%d" % (8 + u_), [y for pre, op in wpieces(4 * u_, 4 * u_ + 4) for y in pre + [op[1]]])) for u_ in us]
        ps_ = [p_ for p_ in range(64) if pstep[p_] == k]
        if ps_: wl += wpieces(32 + ps_[0], 32 + ps_[-1] + 1)
        ol = [([], ("o%d" % kk_, ldO(rt, kk_))) + ((incO(kk_),) if rt == 6 else ()) for kk_ in ([2, 3] if k == 0 else [k + 3]) for rt in range(7)]
        ld = sorted([((i_ + 0.5) / len(wl), x) for i_, x in enumerate(wl)] + [((i_ + 0.25) / len(ol), x) for i_, x in enumerate(ol)], key=lambda t_: t_[0])
        for i_, (_, x) in enumerate(ld):
            g = 1 + (i_ * 53) // len(ld)
            gaps[g - 1] += x[0]; gaps[g].insert(0, x[1])
            if len(x) > 2: gaps[g].append(x[2])
        if k == 0:
            for rt in range(1, 7): gaps[8 * rt - 1].append(("wait0", 6 - rt))
        need_ = ["o%d" % (k + 1)] + ["w%d" % (2 * m_ + 1) for m_ in rstep if rstep[m_] == k + 1]
        gaps[55].append(("wait", need_, bool(rds)))
        if O.ts: gaps[55] += TS_F
        emit(mf, gaps)
    mf = [mf3(rt, 4 * hb + wv, k) for hb in (1, 0) for k in (13, 14, 15) for rt in range(7) for wv in range(4)]
    gaps = [[] for _ in range(168)]
    if rstep[15] == 13:
        for g, x in enumerate(rd3(15, 3 * 8192)): gaps[g].append(x)
    gaps[27].append(("wait", ["o14"], False)); gaps[55].append(("wait", ["o15"], True))
    for rt in range(7):
        for wv in range(1, 4): gaps[56 + 4 * rt + wv + 8].append(redw(rt, 1, wv))
    gaps[94].append("s_waitcnt lgkmcnt(0)"); gaps[95].append("s_barrier")
    def tmp1(rt, wv): return (ACC3 + 16 * rt + 12, OF + 4 * rt, OF + 28 + 4 * rt)[wv - 1]
    for rt in range(7):
        g = 96 + 4 * rt
        gaps[g] += [redr(rt, 1, tmp1(rt, 1)), redr(rt, 2, tmp1(rt, 2))]; gaps[g + 1].append(redr(rt, 3, tmp1(rt, 3)))
    for rt in range(7):
        g = 96 + 4 * rt + 6; b = ACC3 + 16 * rt + 8
        gaps[g - 1].append("s_waitcnt lgkmcnt(%d)" % (3 if rt < 6 else 0))
        ads = ["v_add_f32 v%d, v%d, v%d" % (b + i, b + i, tmp1(rt, 1) + i) for i in range(4)]
        ads += ["v_add_f32 v%d, v%d, v%d" % (tmp1(rt, 2) + i, tmp1(rt, 2) + i, tmp1(rt, 3) + i) for i in range(4)]
        ads += ["v_add_f32 v%d, v%d, v%d" % (b + i, b + i, tmp1(rt, 2) + i) for i in range(4)]
        gaps[g] += ads[0:4]; gaps[g + 1] += ads[4:8]; gaps[g + 2] += ads[8:10]; gaps[g + 3] += ads[10:12]
        gaps[g + 4].insert(0, ("ps", "global_store_dwordx4 v%d, %s, s[%d:%d] offset:%d sc1" % (vPs + 1, vr(b, 4), pWs, pWs + 1, rt * 1024 - 3072)))
    gaps[132].append("s_barrier")
    gaps[134].append("v_add_u32 v%d, 1, v%d" % (vT2, vFc))
    gaps[O.f2gap] += ["s_waitcnt vmcnt(0)", "s_mov_b64 exec, 64", "global_store_dword v241, v%d, s[%d:%d] sc1" % (vT2, pWs, pWs + 1), "s_mov_b64 exec, -1"]
    lastw = []
    for rt in range(7):
        for wv in range(1, 4):
            g2 = 140 + 4 * rt + wv + 8
            if g2 < 168: gaps[g2].insert(0, redw(rt, 0, wv))
            else: lastw.append(redw(rt, 0, wv))
    emit(mf, gaps)
    stamp()
    if O.ts: a.e(TS_F)
    PB = OF + 84
    ldP = ["global_load_dwordx4 %s, v%d, s[%d:%d] offset:%d sc1" % (vr(PB + 4 * rt, 4), vPs, pWs, pWs + 1, rt * 1024 - 3072) for rt in range(7)]
    pl2 = "global_load_dword v%d, v241, s[%d:%d] sc1" % (vT, pWs, pWs + 1)
    a.e(["s_mov_b64 exec, 32", pl2, "s_mov_b64 exec, -1"] + lastw[:3] + ["s_nop 1"] + lastw[3:] + ["s_mov_b32 s%d, 0x40000" % sCnt, "s_waitcnt lgkmcnt(0)", "s_barrier"])
    for rt in range(7):
        for wv in range(1, 4): a.e(redr(rt, wv, OF + 12 * rt + 4 * (wv - 1)))
    a.e("s_mov_b64 exec, 32")
    a.lab("L_poll2")
    a.e(["s_waitcnt vmcnt(0)", "v_cmp_eq_u32 vcc, v%d, v%d" % (vT, vFc), "s_sub_u32 s%d, s%d, 1" % (sCnt, sCnt), "s_cbranch_vccz L_go2", "s_cbranch_scc1 L_go2", pl2, "s_branch L_poll2"])
    a.lab("L_go2")
    a.e(["s_mov_b64 exec, -1"] + ldP)
    for rt in range(7):
        a.e("s_waitcnt lgkmcnt(%d)" % min(15, 3 * (6 - rt)))
        b = ACC3 + 16 * rt; t = OF + 12 * rt
        for h in range(2):
            a.e("v_pk_add_f32 %s, %s, %s" % (vr(b + 2 * h, 2), vr(b + 2 * h, 2), vr(t + 2 * h, 2)))
            a.e("v_pk_add_f32 %s, %s, %s" % (vr(t + 4 + 2 * h, 2), vr(t + 4 + 2 * h, 2), vr(t + 8 + 2 * h, 2)))
        for h in range(2): a.e("v_pk_add_f32 %s, %s, %s" % (vr(b + 2 * h, 2), vr(b + 2 * h, 2), vr(t + 4 + 2 * h, 2)))
    for rt in range(7):
        b = ACC3 + 16 * rt; t = PB + 4 * rt
        a.e(["s_waitcnt vmcnt(6)"] + ["v_pk_add_f32 %s, %s, %s" % (vr(b + 2 * h, 2), vr(b + 2 * h, 2), vr(t + 2 * h, 2)) for h in range(2)])
        a.e(["v_cvt_pk_bf16_f32 v%d, v%d, v%d" % (b, b, b + 1), "v_cvt_pk_bf16_f32 v%d, v%d, v%d" % (b + 1, b + 2, b + 3),
             "s_mov_b32 s%d, %d" % (sT, rt * 32768),
             "buffer_store_dwordx2 %s, v%d, s[%d:%d], s%d offen %s" % (vr(b, 2), vOut, sOut, sOut + 3, sT, O.out_flags)])
    if O.stamps:
        a.e(["s_waitcnt vmcnt(0)"])
        if O.ts: a.e(TS_F)
        stamp()
        a.e(["s_memrealtime s[78:79]", "s_waitcnt lgkmcnt(0)", "s_lshl_b32 s%d, s2, 2" % sT, "s_add_u32 s%d, s%d, s%d" % (sT, sT, sWv), "s_lshl_b32 s%d, s%d, 6" % (sT, sT),
             "s_add_u32 s%d, s%d, 0x%x" % (sT, sT, STAMP_OFF),
             "s_add_u32 s%d, s%d, s%d" % (sO, pWs, sT), "s_addc_u32 s%d, s%d, 0" % (sO + 1, pWs + 1), "s_mov_b32 s%d, 64" % (sO + 2), "v_mov_b32 v%d, 0" % vT])
        for i in range(nst[0]):
            a.e(["s_sub_u32 s%d, s%d, s%d" % (sT, sST + 2 * i, sST), "v_mov_b32 v%d, s%d" % (vT2, sT),
                 "buffer_store_dword v%d, v%d, s[%d:%d], 0 offen offset:%d" % (vT2, vT, sO, sO + 3, 4 * i)])
        for i, r_ in enumerate((10, 6, 4, sST, 78)):
            a.e(["v_mov_b32 v%d, s%d" % (vT2, r_), "buffer_store_dword v%d, v%d, s[%d:%d], 0 offen offset:%d" % (vT2, vT, sO, sO + 3, 44 + 4 * i)])
    if O.ts:
        a.e(["s_lshl_b32 s%d, s2, 9" % sT, "s_add_u32 s%d, s%d, 0x%x" % (sT, sT, STAMP_OFF + 0x200000),
             "s_add_u32 s%d, s%d, s%d" % (sO, pWs, sT), "s_addc_u32 s%d, s%d, 0" % (sO + 1, pWs + 1), "s_mov_b32 s%d, 512" % (sO + 2),
             "v_lshlrev_b32 v%d, 2, v%d" % (vT, vL), "buffer_store_dword v0, v%d, s[%d:%d], 0 offen" % (vT, sO, sO + 3)])
    a.lab("L_end")
    a.e("s_endpgm")

    if O.wo_at >= 100:
        a.lab("L_wopf")
        a.e(["s_lshl_b32 s%d, s2, 2" % sT, "s_add_u32 s%d, s%d, s%d" % (sT, sT, sWv), "s_lshl_b32 s%d, s%d, 13" % (sT, sT),
             "v_lshlrev_b32 v%d, 7, v%d" % (vT, vL), "v_add_u32 v%d, s%d, v%d" % (vT, sT, vT),
             "global_load_dword v%d, v%d, s[%d:%d]" % (vDum, vT, pWo, pWo + 1), "s_branch L_wopf_ret"])
    a.lab("L_slow")
    a.e(["s_waitcnt vmcnt(0) lgkmcnt(0)", "s_barrier", "s_mov_b32 s%d, 1" % sPass] + lane_setup() + ["s_branch L_restart"])
    a.lab("L_maxpass")
    a.e(["s_waitcnt vmcnt(0) lgkmcnt(0)", "s_barrier"] + Cq(6) + ["s_mov_b32 s%d, 16" % sCnt] + setK(0))
    a.e([zero16(ar(176 + 16 * i, 16)) for i in range(3)] + ["s_nop 7"])
    for rt in range(7): a.e("v_mov_b32 v%d, 0xff800000" % (M + 4 * rt))
    a.lab("L_slow_loop")
    a.e(kvtile(0))
    a.e(["s_waitcnt vmcnt(0)", "s_barrier"])
    a.e([rdK(i, 0) for i in range(8)])
    a.e(["s_waitcnt lgkmcnt(0)", "s_barrier"])
    for rt in range(7):
        for i in range(8):
            t, ks = i & 1, i >> 1
            d = vr(S + 4 * t, 4)
            a.e(mfma(d, ar(aK + 16 * t + 4 * ks, 4), ar(aQ + 16 * rt + 4 * ks, 4), "0" if ks == 0 else d))
        a.e("s_nop 7")
        for i in range(4): a.e("v_max3_f32 v%d, v%d, v%d, v%d" % (M + 4 * rt, M + 4 * rt, S + 2 * i, S + 2 * i + 1))
    a.e(["s_sub_u32 s%d, s%d, 1" % (sCnt, sCnt), "s_cmp_lg_u32 s%d, 0" % sCnt, "s_cbranch_scc1 L_slow_loop"])
    a.e(xlane("v_max_f32", [M + 4 * rt for rt in range(7)], [M + 4 * rt + 1 for rt in range(7)]))
    a.e(["v_add_u32 v%d, s%d, v%d" % (vTc, sSp, vL16), "v_xor_b32 v%d, 16384, v%d" % (vT3, vTc)])
    for rt in range(7): a.e("ds_write_b32 v%d, v%d offset:%d" % (vTc, M + 4 * rt, rt * 1024))
    a.e(["s_waitcnt lgkmcnt(0)", "s_barrier"])
    for rt in range(7): a.e("ds_read_b32 v%d, v%d offset:%d" % (M + 4 * rt + 1, vT3, rt * 1024))
    a.e(setK(0))
    for tl in range(4): a.e(kvtile(tl))
    a.e("s_waitcnt lgkmcnt(0)")
    for rt in range(7): a.e("v_max_f32 v%d, v%d, v%d" % (M + 4 * rt, M + 4 * rt, M + 4 * rt + 1))
    a.e(["s_waitcnt vmcnt(16)", "s_barrier"])
    a.e([rdK(i, 0) for i in range(8)])
    a.e([zero16(vr(V, 16)), zero16(vr(V + 16, 16))])
    a.e(["v_sub_f32 v%d, 0, v%d" % (M + 4 * rt + i, M + 4 * rt) for rt in range(7) for i in (1, 2, 3, 0)])
    a.e(["v_mov_b32 v%d, 0" % i for i in range(L, L + 7)] + ["v_mov_b32 v%d, 0" % i for i in range(P + 4, P + 8)])
    a.e(["s_mov_b32 s%d, 3" % sCnt, "s_waitcnt lgkmcnt(0)"] + qk(0, 0) + initD + codepf("L_last", "L_go", 250)[:-1] + ["s_nop 5"])
    for r in range(5): step(0, r)
    a.e("s_branch L_loop")

def build():
    ref = open("cdna_kernels/%s.s.ref" % NAME).read()
    hdr = ref.split("; Override launch")[0]
    a = Asm()
    k = NAME + "_kernel"
    a.raw(".amdgcn_target \"amdgcn-amd-amdhsa--gfx950\"\n.text")
    a.raw(".globl %s\n.p2align 8\n.type %s,@function" % (k, k))
    kernel(a)
    for e in check(a.L): print(e, file=sys.stderr)
    doc = """;
"""
    t = hdr + "; @launch grid=(256,1,1) block=(256,1,1) lds=163840\n" + doc + a.text()
    t += """.section .rodata,"a"
.p2align 6
.amdhsa_kernel %s
  .amdhsa_next_free_vgpr 512
  .amdhsa_next_free_sgpr 102
  .amdhsa_accum_offset 256
  .amdhsa_group_segment_fixed_size 0
  .amdhsa_kernarg_size 64
  .amdhsa_user_sgpr_count 2
  .amdhsa_user_sgpr_kernarg_segment_ptr 1
  .amdhsa_system_sgpr_workgroup_id_x 1
  .amdhsa_float_denorm_mode_32 %d
.end_amdhsa_kernel
""" % (k, O.denorm)
    return t

if __name__ == "__main__":
    out = sys.argv[1] if len(sys.argv) > 1 else "cdna_kernels/%s.s" % NAME
    for kv in sys.argv[2:]:
        k, v = kv.split("=")
        cur = getattr(O, k)
        setattr(O, k, (v == "1") if isinstance(cur, bool) else type(cur)(v))
    open(out, "w").write(build())
```

```python
import sys, math, struct
from asmlib import *

NAME = "standalone__mha_block_cached__near_ridge"
def f32(x): return struct.unpack("<I", struct.pack("<f", x))[0]
CSCALE = f32(128 ** -0.5 * math.log2(math.e))
THR = f32(2.0 ** 30)

class Opt:
    stamps = False
    ts = False
    kv_nt = True
    nxe = 5
    p1_span = 26
    force_slow = False
    pf_xw = True
    pf_wo = True
    pf_code = True
    w_n = 0
    w_late = 8
    wl2 = 0
    out_flags = ""
    pfl = 0
    burst = 4
    ws1 = 12
    dbg3 = 0
    f2gap = 156
    wo2 = "0.3,2.2"
    lag = 0
    ilv = True
    pts = "5.13,5.15,6.9,6.11"
    th = 5
    dynfail = True
    wl3 = 0
    tlb = 0
    tlb2 = False
    ts9 = 0
    splitpf = False
    pkg = 1
    xwf = ""
    w3f = ""
    pf3 = 0
    denorm = 3
    wfin = True
    nb = 0
    padn = 0
    kvf = "nt"
    dmax = 1
    force_skip = 0
    pack = True
    verbose = False
    x1mask = 0
    rd_first = False
    wqc = False
    tb4 = False
    wo_r = 3
    bstep = 2
    t3late = False
    wo_at = 1
    dynw = True
    wggo = False
    olook = 3
    sset = 1
    nost = False
    st_flags = "sc1"
    x3mask = 7
    burn = 0
    tsched = 1
    pf_flags = ""
    wpf = 0
O = Opt()
STAMP_OFF = 0x8000000
FLAG_OFF = 0x1000000
PART_OFF = 0x2000000

def zero16(d): return "v_mfma_f32_32x32x16_bf16 %s, v[12:15], v[12:15], 0" % d

class VM:
    def __init__(self, init): self.ops = list(init)
    def issue(self, tag, opt=False): self.ops.append(tag + "?" if opt else tag)
    def n(self, tag):
        idx = max(i for i, t in enumerate(self.ops) if t.rstrip("?") == tag)
        if self.ops[idx].endswith("?"): return min(63, len(self.ops) - 1 - idx)
        return min(63, sum(1 for t in self.ops[idx + 1:] if not t.endswith("?")))

def kernel(a):
    KVF = " " + O.kvf
    pX, pK, pV, pWq, pWo, pOut, pDbg, pWs = 4, 6, 8, 10, 12, 14, 16, 18
    sX, sW, sKV, sO, sOs, sWs, sOut = 20, 24, 28, 32, 36, 40, 44
    (sWv, sB, sH, sRH, sKH, sXoff, sWoff, sCnt, sMX, sMW, sReg, sRing, sSp, sG, sFlip, sK0, sPass, sT, sT2, sRB, sCT, sWo, sD1, sD2) = range(48, 72)
    sP = 3
    sOf = 1; sPm = 0
    sC = 72; sRt = 74; sPC = 82; sVV = 84; sST = 88; sK1 = sFlip
    KH, TS_ = (8192, 16384) if O.ilv else (131072, 8192)
    vL, vT, vT2, vT3, vL16 = 1, 2, 3, 4, 5
    vKV, vW = 6, 10
    OK, ACC = 16, 128
    M, S, E, P, V, L = 128, 156, 172, 180, 188, 220
    vTa, vTb, vTc = 237, 238, 236
    E2 = 228
    vX, vXr, vWr = 240, 247, 251
    vKr, vVr, vK0 = 240, 241, 243
    vD, vR = 244, 10
    vQw, vQr = 2, 3
    PK = 16
    vFo, vFc, vDum = 254, 255, 253
    vCp = 0
    aQ, aO, aK = 0, 112, 224
    aXF, aWF = 0, 224
    nst = [0]
    def stamp(m=3):
        if O.stamps and (m & O.sset) and not (O.ts and nst[0] >= 1):
            assert nst[0] < 7
            a.e("s_memrealtime s[%d:%d]" % (sST + 2 * nst[0], sST + 2 * nst[0] + 1)); nst[0] += 1
    def flagp(v, t):
        return ["s_and_b32 s%d, s%d, 1" % (sT, sB), "s_lshl_b32 s%d, s%d, 6" % (sT, sT), "s_lshr_b32 s%d, s%d, 1" % (sG, sB), "s_lshl_b32 s%d, s%d, 3" % (sG, sG),
                "s_add_u32 s%d, s%d, s%d" % (sT, sT, sG), "s_lshr_b32 s%d, s%d, 2" % (sG, sH), "s_add_u32 s%d, s%d, s%d" % (sT, sT, sG), "s_lshl_b32 s%d, s%d, 7" % (sT, sT),
                "s_and_b32 s%d, s%d, 3" % (sG, sH), "s_lshl_b32 s%d, s%d, 2" % (sG, sG), "s_add_u32 s%d, s%d, s%d" % (sT, sT, sG), "s_add_u32 s%d, s%d, 0x%x" % (sT, sT, FLAG_OFF),
                "v_lshrrev_b32 v%d, 1, v%d" % (v, vL), "v_lshlrev_b32 v%d, 14, v%d" % (v, v), "v_and_b32 v%d, 1, v%d" % (t, vL),
                "v_lshl_add_u32 v%d, v%d, 12, v%d" % (v, t, v), "v_add_u32 v%d, s%d, v%d" % (v, sT, v),
                "s_xor_b32 s%d, s2, 1" % sT, "s_lshl_b32 s%d, s%d, 9" % (sT, sT), "s_add_u32 s%d, s%d, 0x%x" % (sT, sT, FLAG_OFF + 16),
                "v_and_b32 v%d, 3, v%d" % (t, vL), "v_lshlrev_b32 v%d, 7, v%d" % (t, t), "v_cmp_gt_u32 vcc, 16, v%d" % vL, "v_add_u32 v%d, s%d, v%d" % (t, sT, t),
                "s_nop 0", "v_cndmask_b32 v%d, v%d, v%d, vcc" % (v, t, v)]
    def flagc(v):
        return ["s_lshl_b32 s%d, s2, 2" % sT, "s_add_u32 s%d, s%d, s%d" % (sT, sT, sWv), "s_lshl_b32 s%d, s%d, 7" % (sT, sT), "s_add_u32 s%d, s%d, 0x%x" % (sT, sT, FLAG_OFF),
                "v_min_u32 v%d, 5, v%d" % (v, vL), "v_lshlrev_b32 v%d, 2, v%d" % (v, v), "v_add_u32 v%d, s%d, v%d" % (v, sT, v),
                "s_mov_b64 exec, 64", "v_xor_b32 v%d, 0x200, v%d" % (v, v), "s_mov_b64 exec, -1"]
    def boxaddr(v):
        return ["s_lshl_b32 s%d, s2, 2" % sT, "s_add_u32 s%d, s%d, s%d" % (sT, sT, sWv), "s_lshl_b32 s%d, s%d, 13" % (sT, sT),
                "s_add_u32 s%d, s%d, 0x%x" % (sT, sT, PART_OFF + 3072), "v_add_u32 v%d, s%d, v%d" % (v, sT, vL16)]
    def codepf(lo, hi, t0):
        return ["v_min_u32 v%d, %s-%s-4, v%d" % (t0, hi, lo, vCp), "v_add_u32 v%d, %s-L_pc, v%d" % (t0, lo, t0),
                "v_mov_b32 v%d, s%d" % (t0 + 1, sPC + 1), "v_add_co_u32 v%d, vcc, s%d, v%d" % (t0, sPC, t0), "s_nop 1",
                "v_addc_co_u32 v%d, vcc, 0, v%d, vcc" % (t0 + 1, t0 + 1), "global_load_dword v%d, v[%d:%d], off" % (vDum, t0, t0 + 1)]

    a.lab(NAME + "_kernel")
    a.e(["s_cmp_ge_u32 s2, 256", "s_cbranch_scc1 L_end",
         "s_load_dwordx8 s[4:11], s[0:1], 0", "s_load_dwordx8 s[12:19], s[0:1], 32"])
    stamp(7)
    a.e(["s_getpc_b64 s[%d:%d]" % (sPC, sPC + 1)])
    a.lab("L_pc")
    a.e(["v_and_b32 v%d, 63, v0" % vL, "v_lshrrev_b32 v%d, 6, v0" % vT,
         "s_and_b32 s%d, s2, 7" % sT, "s_lshr_b32 s%d, s2, 3" % sT2,
         "v_readfirstlane_b32 s%d, v%d" % (sWv, vT),
         "v_min_u32 v%d, 2, v%d" % (vCp, vL), "v_lshl_add_u32 v%d, v%d, 2, v%d" % (vCp, vCp, vT), "v_lshlrev_b32 v%d, 5, v%d" % (vCp, vCp),
         "v_add_lshl_u32 v%d, v%d, s%d, 7" % (vCp, vCp, sT2)])
    if O.pf_code: a.e(codepf("L_pc", "L_end", vT))
    a.e(["s_mov_b32 s%d, 0" % sPass,
         "s_and_b32 s%d, s%d, 1" % (sB, sT), "s_lshl_b32 s%d, s%d, 2" % (sB, sB),
         "s_and_b32 s%d, s%d, 3" % (sG, sT2), "s_add_u32 s%d, s%d, s%d" % (sB, sB, sG),
         "s_lshr_b32 s%d, s%d, 1" % (sH, sT), "s_lshl_b32 s%d, s%d, 2" % (sRB, sH), "s_add_u32 s%d, s%d, s%d" % (sRB, sRB, sG), "s_lshl_b32 s%d, s%d, 3" % (sH, sH),
         "s_lshr_b32 s%d, s%d, 2" % (sCT, sT2), "s_add_u32 s%d, s%d, s%d" % (sH, sH, sCT),
         "s_and_b32 s%d, s%d, 1" % (sRH, sWv), "s_lshr_b32 s%d, s%d, 1" % (sKH, sWv)])
    a.e(["s_lshl_b32 s%d, s%d, 15" % (sMX, sKH), "s_mul_i32 s%d, s%d, 7168" % (sT, sRH),
         "s_add_u32 s%d, s%d, s%d" % (sMX, sMX, sT), "s_add_u32 s%d, s%d, 16384" % (sMX, sMX),
         "s_lshl_b32 s%d, s%d, 11" % (sMW, sWv), "s_add_u32 s%d, s%d, 131072" % (sMW, sMW),
         "s_lshl_b32 s%d, s%d, 15" % (sReg, sWv),
         "s_mov_b32 s%d, 458752" % (sX + 2), "s_mov_b32 s%d, 0x20000" % (sX + 3), "s_mov_b32 s%d, 0x20000" % (sW + 3),
         "s_mul_i32 s%d, s%d, 458752" % (sD1, sB), "s_lshl_b32 s%d, s%d, 8" % (sD2, sH), "s_sub_u32 s%d, 0x800000, s%d" % (sW + 2, sD2)])
    def lane_setup():
        o = ["v_lshrrev_b32 v%d, 3, v%d" % (vT, vL), "v_and_b32 v%d, 7, v%d" % (vT2, vL), "v_and_b32 v%d, 6, v%d" % (vT3, vT),
             "v_xor_b32 v%d, v%d, v%d" % (vT3, vT3, vT2), "v_lshlrev_b32 v%d, 4, v%d" % (vT3, vT3),
             "v_lshl_add_u32 v%d, v%d, 11, v%d" % (vX, vT, vT3),
             "s_mul_i32 s%d, s%d, %d" % (sT, sWv, 7 * 16384), "v_add_u32 v%d, s%d, v%d" % (vX, sT, vX)]
        o += ["v_add_u32 v%d, %d, v%d" % (vX + j, j * 16384 - (j & 3) * 1024, vX) for j in range(1, 7)]
        o += ["v_and_b32 v%d, 2, v%d" % (vT3, vT), "v_lshlrev_b32 v%d, 1, v%d" % (vT3, vT3),
              "v_xor_b32 v%d, v%d, v%d" % (vT3, vT3, vT2), "v_lshlrev_b32 v%d, 4, v%d" % (vT3, vT3),
              "v_lshl_add_u32 v%d, v%d, 13, v%d" % (vW, vT, vT3),
              "s_lshl_b32 s%d, s%d, 17" % (sT, sRH), "s_lshl_b32 s%d, s%d, 7" % (sG, sKH), "s_add_u32 s%d, s%d, s%d" % (sT, sT, sG),
              "v_add_u32 v%d, s%d, v%d" % (vW, sT, vW), "v_add_u32 v%d, %d, v%d" % (vW + 1, 8 * 8192 - 1024, vW)]
        return o
    a.e(lane_setup())
    if O.tlb == 2:
        a.e(["s_lshl_b32 s%d, s%d, 5" % (sT, sB), "s_add_u32 s%d, s%d, s%d" % (sT, sT, sH), "s_lshl_b32 s%d, s%d, 18" % (sT, sT),
             "v_mov_b32 v16, s%d" % sT])
    a.e(["s_waitcnt lgkmcnt(0)",
         "s_add_u32 s%d, s%d, s%d" % (sW, pWq, sD2), "s_addc_u32 s%d, s%d, 0" % (sW + 1, pWq + 1),
         "s_add_u32 s%d, s%d, s%d" % (sX, pX, sD1), "s_addc_u32 s%d, s%d, 0" % (sX + 1, pX + 1)])
    if O.tlb == 2:
        def tg(v, p): return "global_load_dword v%d, v%d, s[%d:%d] sc1" % (vDum, v, p, p + 1)
        for w_, ops in enumerate(([tg(16, pK)], [tg(16, pV)])):
            a.e(["s_cmp_lg_u32 s%d, %d" % (sWv, w_), "s_cbranch_scc1 L_tl%d" % w_] + ops + ["L_tl%d:" % w_])
    stamp(4)
    a.lab("L_restart")

    TS_A = ["s_memrealtime s[100:101]"]
    TS_B = ["s_mov_b32 s99, m0", "s_mov_b32 m0, s81", "v_writelane_b32 v0, s100, m0", "s_addk_i32 s81, 1", "s_mov_b32 m0, s99"]
    TS_F = TS_A + ["s_waitcnt lgkmcnt(0)"] + TS_B
    def dmaX(j): return "buffer_load_dwordx4 v%d, s[%d:%d], s%d offen offset:%d %s lds" % (vX + j, sX, sX + 3, sXoff, (j & 3) * 1024, O.xwf)
    def m0X(buf, hi): return "s_add_u32 m0, s%d, %d" % (sMX, buf * 65536 + hi * 4096)
    def dmaW(j): return "buffer_load_dwordx4 v%d, s[%d:%d], s%d offen offset:%d %s lds" % (vW + j, sW, sW + 3, sWoff, j * 1024, O.xwf)
    def m0W(slot): return "s_add_u32 m0, s%d, %d" % (sMW, slot * 8192)
    def ptm0(reg, slot): return "s_add_u32 m0, s%d, %d" % (sMW, (reg * 32768 + slot * 8192 - 131072) & 0xffffffff)
    def ptld(reg): return ["buffer_load_dwordx4 v%d, s[%d:%d], s%d offen offset:%d%s lds" % (vKV + (2 if reg == 3 else 0) + j, sVV if reg & 1 else sKV, (sVV if reg & 1 else sKV) + 3,
                           sK1 if reg >> 1 else sK0, j * 1024, KVF) for j in range(2)]
    incK = ["s_add_u32 s%d, s%d, %d" % (sK0, sK0, TS_), "s_add_u32 s%d, s%d, %d" % (sK1, sK1, TS_)]
    def setK(tile): return ["s_mov_b32 s%d, %d" % (sK0, tile * TS_), "s_mov_b32 s%d, %d" % (sK1, tile * TS_ + KH)]
    PORD = (0, 2, 1, 3)
    def kvtile(slot): return [x for reg in PORD for x in [ptm0(reg, slot), "s_nop 0"] + ptld(reg)] + incK
    sXl, sWl, sOx, sOw = 10, 11, sWo, sK0
    incW = ["s_add_u32 s%d, s%d, 262144" % (sWl, sWl), "s_xor_b32 s%d, s%d, s%d" % (sWoff, sWl, sOw)]
    incX = ["s_add_u32 s%d, s%d, 128" % (sXl, sXl), "s_xor_b32 s%d, s%d, s%d" % (sXoff, sXl, sOx)]

    a.e(["s_mov_b32 s%d, 0" % sXl, "s_mov_b32 s%d, 0" % sWl, "s_xor_b32 s%d, s%d, s%d" % (sT, sB, sH), "s_and_b32 s%d, s%d, %d" % (sT, sT, O.x1mask),
         "s_lshl_b32 s%d, s%d, 19" % (sOw, sT), "s_lshl_b32 s%d, s%d, 7" % (sOx, sT), "s_mov_b32 s%d, s%d" % (sWoff, sOw), "s_mov_b32 s%d, s%d" % (sXoff, sOx)])
    def stage_loads(st):
        return ([m0W(2 * st), "s_nop 0", dmaW(0), dmaW(1), m0X(st, 0)] + incW + [dmaX(j) for j in range(4)] + [m0X(st, 1), "s_nop 0"] + [dmaX(j) for j in range(4, 7)]
                + [m0W(2 * st + 1)] + incX + [dmaW(0), dmaW(1)] + incW)
    a.e(stage_loads(0))
    stamp(4)
    a.e(["v_mov_b32 v%d, 0" % i for i in range(12, 16)])
    su0 = len(a.L)
    a.e(["s_lshl_b32 s%d, s%d, 5" % (sT, sB), "s_add_u32 s%d, s%d, s%d" % (sT, sT, sH), "s_lshl_b32 s%d, s%d, 18" % (sT, sT),
         "s_add_u32 s%d, s%d, s%d" % (sKV, pK, sT), "s_addc_u32 s%d, s%d, 0" % (sKV + 1, pK + 1),
         "s_mov_b32 s%d, 0x40000" % (sKV + 2), "s_mov_b32 s%d, 0x20000" % (sKV + 3),
         "s_add_u32 s%d, s%d, s%d" % (sVV, pV, sT), "s_addc_u32 s%d, s%d, 0" % (sVV + 1, pV + 1),
         "s_mov_b32 s%d, 0x40000" % (sVV + 2), "s_mov_b32 s%d, 0x20000" % (sVV + 3),
         "v_bfe_u32 v%d, v%d, 2, 2" % (vT, vL), "v_lshrrev_b32 v%d, 4, v%d" % (vT2, vL), "v_lshlrev_b32 v%d, 6, v%d" % (vT2, vT2),
         "v_lshl_add_u32 v%d, v%d, 8, v%d" % (vT2, vT, vT2), "v_and_b32 v%d, 3, v%d" % (vT, vL), "v_lshl_add_u32 v%d, v%d, 4, v%d" % (vT2, vT, vT2),
         "s_lshl_b32 s%d, s%d, 5" % (sG, sRH), "v_xor_b32 v%d, s%d, v%d" % (vT2, sG, vT2), "s_lshl_b32 s%d, s%d, 11" % (sG, sWv),
         "v_add_u32 v%d, s%d, v%d" % (vKV, sG, vT2), "v_xor_b32 v%d, 48, v%d" % (vKV + 1, vKV),
         "v_xor_b32 v%d, 0x80, v%d" % (vKV + 2, vKV), "v_xor_b32 v%d, 0x80, v%d" % (vKV + 3, vKV + 1)])
    pPx, pPw = PK + 20, PK + 21
    a.e(["s_mul_i32 s%d, s%d, 14336" % (sT, sH), "s_lshl_b32 s%d, s%d, 12" % (sG, sWv), "s_add_u32 s%d, s%d, s%d" % (sT, sT, sG),
         "v_and_b32 v%d, 31, v%d" % (pPx, vL), "v_lshlrev_b32 v%d, 7, v%d" % (pPx, pPx), "v_add_u32 v%d, s%d, v%d" % (pPx, sT, pPx),
         ] + ([
         "s_and_b32 s%d, s%d, 7" % (sG, sH), "s_lshl_b32 s%d, s%d, 3" % (sT, sB), "s_add_u32 s%d, s%d, s%d" % (sT, sT, sG), "s_lshl_b32 s%d, s%d, 2" % (sT, sT),
         "s_add_u32 s%d, s%d, s%d" % (sT, sT, sWv), "s_lshl_b32 s%d, s%d, 15" % (sT, sT), "s_lshl_b32 s%d, s%d, 8" % (sG, sG), "s_sub_u32 s%d, s%d, s%d" % (sT, sT, sG),
         "v_lshrrev_b32 v%d, 4, v%d" % (pPw, vL), "v_lshlrev_b32 v%d, 13, v%d" % (pPw, pPw),
         "v_and_b32 v%d, 15, v%d" % (vT2, vL), "v_lshl_add_u32 v%d, v%d, 7, v%d" % (pPw, vT2, pPw), "v_add_u32 v%d, s%d, v%d" % (pPw, sT, pPw)] if O.wqc else [
         "s_lshl_b32 s%d, s%d, 2" % (sT, sB), "s_add_u32 s%d, s%d, s%d" % (sT, sT, sWv), "s_lshl_b32 s%d, s%d, 18" % (sT, sT),
         "v_lshrrev_b32 v%d, 1, v%d" % (pPw, vL), "v_lshlrev_b32 v%d, 13, v%d" % (pPw, pPw),
         "v_and_b32 v%d, 1, v%d" % (vT2, vL), "v_lshl_add_u32 v%d, v%d, 7, v%d" % (pPw, vT2, pPw), "v_add_u32 v%d, s%d, v%d" % (pPw, sT, pPw)]))
    pQx, pQw = PK + 22, PK + 23
    if O.splitpf:
        a.e(["v_min_u32 v%d, 10, v%d" % (vT, vL), "s_mul_i32 s%d, s%d, 11" % (sG, sWv), "v_add_u32 v%d, s%d, v%d" % (vT, sG, vT), "v_min_u32 v%d, 41, v%d" % (vT, vT),
             "v_mul_u32_u24 v%d, 43, v%d" % (vT2, vT), "v_lshrrev_b32 v%d, 8, v%d" % (vT2, vT2), "v_mul_u32_u24 v%d, 10, v%d" % (vT2, vT2),
             "v_add_u32 v%d, v%d, v%d" % (vT, vT, vT2), "v_lshlrev_b32 v%d, 7, v%d" % (vT, vT), "s_mul_i32 s%d, s%d, 14336" % (sT, sH), "s_add_u32 s%d, s%d, 256" % (sG, sT),
             "v_add_u32 v%d, s%d, v%d" % (pPx, sG, vT),
             "v_bfe_u32 v%d, v%d, 1, 1" % (vT, vL), "s_lshl_b32 s%d, s%d, 1" % (sG, sWv), "v_add_u32 v%d, s%d, v%d" % (vT, sG, vT), "v_min_u32 v%d, 6, v%d" % (vT, vT),
             "v_and_b32 v%d, 1, v%d" % (vT2, vL), "v_lshlrev_b32 v%d, 7, v%d" % (vT2, vT2), "v_lshl_add_u32 v%d, v%d, 11, v%d" % (vT, vT, vT2),
             "s_add_u32 s%d, s%d, 512" % (sT, sT), "v_add_u32 v%d, s%d, v%d" % (pQx, sT, vT),
             "v_lshrrev_b32 v%d, 1, v%d" % (vT, vL), "v_min_u32 v%d, 11, v%d" % (vT, vT), "v_lshl_add_u32 v%d, v%d, 13, v%d" % (vT, vT, vT2),
             "s_lshl_b32 s%d, s%d, 2" % (sT, sB), "s_add_u32 s%d, s%d, s%d" % (sT, sT, sWv), "s_mul_i32 s%d, s%d, %d" % (sG, sT, 12 * 8192), "s_add_u32 s%d, s%d, %d" % (sG, sG, 128 * 8192),
             "v_add_u32 v%d, s%d, v%d" % (pPw, sG, vT),
             "v_bfe_u32 v%d, v%d, 1, 2" % (vT, vL), "v_lshl_add_u32 v%d, v%d, 13, v%d" % (vT, vT, vT2), "s_lshl_b32 s%d, s%d, 15" % (sT, sT), "s_add_u32 s%d, s%d, %d" % (sT, sT, 8 * 262144),
             "v_add_u32 v%d, s%d, v%d" % (pQw, sT, vT)])
    farpf = ["buffer_load_dword v%d, v%d, s[%d:%d], s%d offen" % (vDum, pQx, sX, sX + 3, sXoff), "buffer_load_dword v%d, v%d, s[%d:%d], s%d offen" % (vDum, pQw, sW, sW + 3, sWoff)]
    NE = 5 if O.splitpf else 3
    a.e(["v_lshlrev_b32 v%d, 4, v%d" % (vL16, vL),
         "v_and_b32 v%d, 15, v%d" % (vT, vL), "v_lshrrev_b32 v%d, 4, v%d" % (vT2, vL),
         "v_and_b32 v%d, 6, v%d" % (vT3, vT), "v_xor_b32 v%d, v%d, v%d" % (vT3, vT3, vT2), "v_lshlrev_b32 v%d, 4, v%d" % (vT3, vT3),
         "v_lshl_add_u32 v%d, v%d, 7, v%d" % (vT3, vT, vT3),
         "s_lshl_b32 s%d, s%d, 15" % (sT, sRH), "s_add_u32 s%d, s%d, 16384" % (sT, sT),
         "v_add_u32 v%d, s%d, v%d" % (vXr, sT, vT3), "v_xor_b32 v%d, 64, v%d" % (vXr + 1, vXr),
         "v_add_u32 v%d, 0x10000, v%d" % (vXr + 2, vXr), "v_add_u32 v%d, 0x10000, v%d" % (vXr + 3, vXr + 1)])
    a.e(["v_bfe_u32 v%d, v%d, 2, 2" % (vT, vL), "v_lshl_add_u32 v%d, v%d, 3, v%d" % (vT, vT2, vT),
         "v_and_b32 v%d, 2, v%d" % (vT3, vT), "v_lshlrev_b32 v%d, 1, v%d" % (vT3, vT3),
         "v_and_b32 v%d, 3, v%d" % (vT2, vL), "v_xor_b32 v%d, v%d, v%d" % (vT3, vT3, vT2), "v_lshlrev_b32 v%d, 4, v%d" % (vT3, vT3),
         "v_lshl_add_u32 v%d, v%d, 7, v%d" % (vT3, vT, vT3),
         "s_lshl_b32 s%d, s%d, 12" % (sT, sKH), "s_add_u32 s%d, s%d, 131072" % (sT, sT),
         "v_add_u32 v%d, s%d, v%d" % (vWr, sT, vT3), "v_xor_b32 v%d, 64, v%d" % (vWr + 1, vWr)])
    a.e(["s_mul_i32 s%d, s%d, 14" % (sT, sB), "s_mul_i32 s%d, s%d, 7" % (sG, sRH), "s_add_u32 s%d, s%d, s%d" % (sT, sT, sG),
         "s_lshl_b32 s%d, s%d, 7" % (sT, sT), "s_lshl_b32 s%d, s%d, 2" % (sG, sH), "s_add_u32 s%d, s%d, s%d" % (sT, sT, sG),
         "s_lshl_b32 s%d, s%d, 1" % (sG, sKH), "s_add_u32 s%d, s%d, s%d" % (sT, sT, sG), "s_lshl_b32 s%d, s%d, 10" % (sT, sT),
         "s_add_u32 s%d, s%d, s%d" % (sO, pWs, sT), "s_addc_u32 s%d, s%d, 0" % (sO + 1, pWs + 1),
         "s_mov_b32 s%d, %d" % (sO + 2, 6 * 131072 + 2048), "s_mov_b32 s%d, 0x20000" % (sO + 3),
         "s_mov_b32 s%d, 0x%x" % (sC, CSCALE), "s_mov_b32 s%d, 0x%x" % (sC + 1, CSCALE),
         "s_and_b32 s%d, s%d, 4" % (sPm, sB), "s_add_u32 s%d, s%d, s%d" % (sPm, sPm, sWv),
         "s_mul_i32 s%d, s%d, %d" % (sT, sRB, 7 * 131072), "s_lshl_b32 s%d, s%d, 14" % (sG, sPm), "s_add_u32 s%d, s%d, s%d" % (sT, sT, sG),
         "s_add_u32 s%d, s%d, s%d" % (sOs, pWs, sT), "s_addc_u32 s%d, s%d, 0" % (sOs + 1, pWs + 1),
         "s_mov_b32 s%d, %d" % (sOs + 2, 6 * 131072 + 16384), "s_mov_b32 s%d, 0x20000" % (sOs + 3),
         "s_lshl_b32 s%d, s%d, 20" % (sT, sPm), "s_lshl_b32 s%d, s%d, 8" % (sG, sCT), "s_add_u32 s%d, s%d, s%d" % (sT, sT, sG),
         "s_add_u32 s%d, s%d, s%d" % (sWs, pWo, sT), "s_addc_u32 s%d, s%d, 0" % (sWs + 1, pWo + 1),
         "s_sub_u32 s%d, 0x100000, s%d" % (sWs + 2, sG), "s_mov_b32 s%d, 0x20000" % (sWs + 3),
         "s_mul_i32 s%d, s%d, %d" % (sT, sRB, 112 * 2048), "s_add_u32 s%d, s%d, s%d" % (sOut, pOut, sT), "s_addc_u32 s%d, s%d, 0" % (sOut + 1, pOut + 1),
         "s_mov_b32 s%d, %d" % (sOut + 2, 112 * 2048), "s_mov_b32 s%d, 0x20000" % (sOut + 3),
         "s_xor_b32 s%d, s%d, 0x10000" % (sRing, sReg),
         "s_lshl_b32 s%d, s%d, 13" % (sSp, sWv), "s_add_u32 s%d, s%d, 131072" % (sSp, sSp),
         "s_sub_u32 s%d, s%d, s%d" % (sD1, sSp, sReg), "s_sub_u32 s%d, s%d, s%d" % (sD2, sRing, sSp)])
    for rt in range(7): a.e("s_mov_b32 s%d, %d" % (sRt + rt, rt * 131072))
    pKr, pVr, pK0, pD, pR, pQ, pFp, pFc, pWoP, pCp = PK, PK + 1, PK + 3, PK + 4, PK + 8, PK + 10, PK + 12, PK + 13, PK + 14, PK + 16
    a.e(flagp(pFp, vT2) + flagc(pFc))
    a.e(["v_bfe_u32 v%d, v%d, 2, 2" % (vT, vL), "v_sub_u32 v%d, 0, v%d" % (vT2, vT), "v_lshrrev_b32 v%d, 4, v%d" % (vT3, vL),
         "v_xor_b32 v%d, v%d, v%d" % (vT2, vT2, vT3), "v_and_b32 v%d, 3, v%d" % (vT2, vT2), "v_lshlrev_b32 v%d, 4, v%d" % (vT2, vT2),
         "v_lshl_add_u32 v%d, v%d, 10, v%d" % (vT2, vT, vT2), "v_and_b32 v%d, 3, v%d" % (pK0, vL), "v_lshlrev_b32 v%d, 6, v%d" % (pK0, pK0),
         "s_lshl_b32 s%d, s%d, 16" % (sG, sKH), "v_add3_u32 v%d, v%d, v%d, s%d" % (pKr, pK0, vT2, sG),
         "v_lshl_add_u32 v%d, v%d, 4, v%d" % (pK0, vT3, pK0),
         "v_sub_u32 v%d, 0, v%d" % (vT2, vT3), "v_bfe_u32 v%d, v%d, 1, 1" % (pVr + 1, vL), "v_xor_b32 v%d, v%d, v%d" % (vT2, vT2, pVr + 1),
         "v_and_b32 v%d, 3, v%d" % (vT2, vT2), "v_lshlrev_b32 v%d, 4, v%d" % (vT2, vT2),
         "v_lshl_add_u32 v%d, v%d, 10, v%d" % (vT2, vT3, vT2), "v_lshl_add_u32 v%d, v%d, 6, v%d" % (vT2, vT, vT2),
         "v_and_b32 v%d, 1, v%d" % (pVr + 1, vL), "v_lshl_add_u32 v%d, v%d, 3, v%d" % (vT2, pVr + 1, vT2),
         "s_add_u32 s%d, s%d, 32768" % (sG, sG), "v_add_u32 v%d, s%d, v%d" % (pVr, sG, vT2), "v_xor_b32 v%d, 32, v%d" % (pVr + 1, pVr),
         "v_add_u32 v%d, s%d, v%d" % (pR, sReg, vT2), "v_xor_b32 v%d, 32, v%d" % (pR + 1, pR),
         "v_lshlrev_b32 v%d, 6, v%d" % (vT2, vT3), "v_lshl_add_u32 v%d, v%d, 11, v%d" % (vT2, vT, vT2), "v_and_b32 v%d, 3, v%d" % (vT, vL),
         "v_lshl_add_u32 v%d, v%d, 4, v%d" % (vT2, vT, vT2), "s_lshl_b32 s%d, s%d, 5" % (sT, sPm), "v_xor_b32 v%d, s%d, v%d" % (pD, sT, vT2)])
    for j in range(1, 4): a.e(["v_xor_b32 v%d, %d, v%d" % (pD + j, ((-j) & 3) * 16, pD), "v_add_u32 v%d, %d, v%d" % (pD + j, j * (8192 - 1024), pD + j)])
    a.e(["v_add_u32 v%d, s%d, v%d" % (pQ, sMW, vL16), "s_lshl_b32 s%d, s%d, 11" % (sT, sRH), "s_add_u32 s%d, s%d, 131072" % (sT, sT), "v_add_u32 v%d, s%d, v%d" % (pQ + 1, sT, vL16),
         "s_lshl_b32 s%d, s2, 2" % sT, "s_add_u32 s%d, s%d, s%d" % (sT, sT, sWv), "s_lshl_b32 s%d, s%d, 13" % (sT, sT),
         "v_lshlrev_b32 v%d, 7, v%d" % (pWoP, vL), "v_add_u32 v%d, s%d, v%d" % (pWoP, sT, pWoP),
         "s_lshl_b32 s%d, s%d, 1" % (sOf, sRB), "s_xor_b32 s%d, s%d, s%d" % (sOf, sOf, sCT), "s_and_b32 s%d, s%d, %d" % (sOf, sOf, O.x3mask), "s_lshl_b32 s%d, s%d, 16" % (sOf, sOf)])
    cp2 = codepf("L_tr", "L_epi", pCp)
    a.e(cp2[:-1])
    a.e([
         "s_lshl_b32 s%d, s2, 15" % sT, "s_lshl_b32 s%d, s%d, 10" % (sG, sWv), "s_add_u32 s%d, s%d, s%d" % (sT, sT, sG),
         "v_and_b32 v%d, 7, v%d" % (vT3, vL), "v_lshlrev_b32 v%d, 7, v%d" % (vT3, vT3), "v_add_u32 v%d, s%d, v%d" % (vT3, sT, vT3), "s_mov_b32 s%d, 0" % sP])
    kvpf = "global_load_dword v%d, v%d, s[%d:%d]" % (vDum, vT3, pWo, pWo + 1)
    zs = [zero16(vr(ACC + 16 * i, 16)) for i in range(7)] + [zero16(vr(OK + 16 * i, 16)) for i in range(2, 7)] + [zero16(ar(aO + 16 * i, 16)) for i in range(4)]
    seg = a.L[su0:]; del a.L[su0:]
    for i_, ln in enumerate(seg):
        if i_ % 7 == 3 and zs: a.e(zs.pop(0))
        a.L.append(ln)
    assert not zs and not any("exec" in ln for ln in seg[:120])
    NT = 0
    if O.tlb == 1:
        pTl, pBx = PK + 24, PK + 25
        def tch(srd): return "buffer_load_dword v%d, v%d, s[%d:%d], 0 offen sc1" % (vDum, pTl, srd, srd + 3)
        def tcg(v): return "global_load_dword v%d, v%d, s[%d:%d] sc1" % (vDum, v, pWs, pWs + 1)
        a.e(["v_lshlrev_b32 v%d, 19, v%d" % (pTl, vL)] + boxaddr(pBx)[:-1] + ["v_mov_b32 v%d, s%d" % (pBx, sT), tch(sWs)])
        for w_, ops in enumerate(([tch(sKV), tch(sVV)], [tch(sO), tch(sOs)], [tch(sOut), tch(sW)], [tcg(pFc), tcg(pBx)])):
            a.e(["s_cmp_lg_u32 s%d, %d" % (sWv, w_), "s_cbranch_scc1 L_tl%d" % w_] + ops + ["L_tl%d:" % w_])
        NT = 3
    late = stage_loads(1) + ["buffer_load_dword v%d, v%d, s[%d:%d], 0 offen" % (vDum, pPx, sX, sX + 3), "buffer_load_dword v%d, v%d, s[%d:%d], 0 offen" % (vDum, pPw, sW, sW + 3),
                              kvpf if O.wo_at != 0 else "global_load_dword v%d, v%d, s[%d:%d]" % (vDum, pWoP, pWo, pWo + 1)] + (farpf if O.splitpf else [])
    def kvb(v, off): return "global_load_lds_dwordx4 v%d, s[4:5] offset:%d%s" % (v, off, KVF)
    kvq = ["s_cmp_lt_u32 s%d, 4" % sP, "s_cselect_b32 s4, s%d, s%d" % (sKV, sVV), "s_cselect_b32 s5, s%d, s%d" % (sKV + 1, sVV + 1),
           "s_and_b32 s%d, s%d, 1" % (sT, sP), "s_and_b32 s%d, s%d, 2" % (sG, sP), "s_lshl_b32 s%d, s%d, 12" % (sG, sG),
           "s_lshl_b32 s%d, s%d, 16" % (sT2, sT), "s_add_u32 s%d, s%d, s%d" % (sT2, sT2, sG), "s_mul_i32 s%d, s%d, %d" % (sT, sT, KH),
           "s_mul_i32 s%d, s%d, %d" % (sG, sG, TS_ // 8192), "s_add_u32 s%d, s%d, s%d" % (sT, sT, sG),
           "v_add_u32 v%d, s%d, v%d" % (vT, sT, vKV), "v_add_u32 v%d, s%d, v%d" % (vT2, sT, vKV + 1),
           "s_and_b32 s%d, s%d, 4" % (sG, sP), "s_lshl_b32 s%d, s%d, 13" % (sG, sG), "s_add_u32 s%d, s%d, s%d" % (sT2, sT2, sG),
           "s_and_b32 s%d, s%d, 5" % (sT, sP), "s_cmp_eq_u32 s%d, 5" % sT, "s_cselect_b32 s%d, 128, 0" % sT,
           "v_xor_b32 v%d, s%d, v%d" % (vT, sT, vT), "v_xor_b32 v%d, s%d, v%d" % (vT2, sT, vT2),
           "s_add_u32 s%d, s%d, s%d" % (sT2, sT2, sMW), "s_add_u32 s%d, s%d, 1" % (sP, sP)]
    kvq_m0 = "s_sub_u32 m0, s%d, 0x20000" % sT2

    def wreg(k): return {30: 192, 31: 208}.get(k, aWF + 16 * (k & 1))
    def xreg(k, rt): return 16 * rt + 4 * (k & 3)
    def rdW(k):
        out = []
        for dt in range(4):
            dp, t = dt >> 1, dt & 1
            for sec in range(2):
                out.append("ds_read_b64_tr_b16 %s, v%d offset:%d" % (ar(wreg(k) + 4 * dt + 2 * sec, 2), vWr + dp, (k & 3) * 8192 + sec * 512 + t * 8))
        return out
    def rdX1(s, kk, rt): return "ds_read_b128 %s, v%d offset:%d" % (ar(xreg(2 * s + kk, rt), 4), vXr + 2 * (s & 1) + kk, rt * 2048)
    def rdX(s): return [rdX1(s, kk, rt) for kk in range(2) for rt in range(7)]
    def A(rt, k): return [mfma(vr(ACC + 16 * rt + 4 * dt, 4), ar(wreg(k) + 4 * dt, 4), ar(xreg(k, rt), 4), vr(ACC + 16 * rt + 4 * dt, 4)) for dt in range(4)]
    stamp(4)
    if not O.rd_first: a.e(late)
    a.e(["s_waitcnt vmcnt(%d)" % (2 + NT if O.rd_first else 13 + NE + NT), "s_barrier"])
    stamp(4)
    if O.ts: a.e(["s_mov_b32 s81, 0"] + TS_F)
    a.e(rdW(0) + rdX(0))
    if O.rd_first: a.e(late)
    a.e(["s_mov_b32 s%d, 7" % sCnt, "s_waitcnt vmcnt(%d) lgkmcnt(0)" % (11 + NE + NT), "s_barrier"])

    wopf = "global_load_dword v%d, v%d, s[%d:%d]" % (vDum, pWoP, pWo, pWo + 1)
    addr28 = ["v_mov_b32 v%d, v%d" % (240 + i, PK + i) for i in range(8)] + ["v_mov_b32 v%d, v%d" % (vR + i, pR + i) for i in range(2)]
    addr28 += ["v_mov_b32 v%d, v%d" % (vQw + i, pQ + i) for i in range(2)] + setK(2)

    def p1_kstep(km, mode, ctl=False):
        sp, kk = km >> 1, km & 1
        mf = [m_ for rt in range(7) for m_ in A(rt, km)]
        gaps = [[] for _ in range(28)]
        rd = rdW(km + 1)
        if kk == 1: rd += rdX(sp + 1)
        dm = []; nxe = O.nxe; tailops = []
        if mode == "loop":
            def xs(js):
                r = []
                for j in js:
                    if j == 4 and j != js[0]: r += [m0X(sp, 1)]
                    r.append(dmaX(j))
                return r
            if kk == 0: dm += [m0W(km), dmaW(0), dmaW(1), m0X(sp, 0)] + incW + xs(list(range(nxe)))
            else:
                if nxe < 7: dm += ([m0X(sp, 1)] if nxe == 4 else []) + xs(list(range(nxe, 7)))
                dm += [m0W(km)] + incX + [dmaW(0), dmaW(1)] + incW
                if km == 3:
                    dm += [kvq_m0]; tailops = [kvb(vT, 0), kvb(vT2, 1024), kvpf] + (farpf if O.splitpf else [])
            endw = "s_waitcnt vmcnt(%d) lgkmcnt(0)" % ((4 + nxe + (NE if km == 0 else 0)) if kk == 0 else 11 + NE)
        elif mode == 28:
            endw = "s_waitcnt vmcnt(%d) lgkmcnt(0)" % (NE + 2)
        for g, x in enumerate(rd): gaps[g].append(x)
        def place(items, lo, hi):
            g_ = lo
            for y in items:
                if y.startswith("global_load"): g_ = min(g_ + 1, hi); gaps[g_].insert(0, y); continue
                while g_ < hi and len(gaps[g_]) >= 2: g_ += 1
                gaps[g_].append(y)
        nld = sum(1 for x in dm if x.startswith("buffer_load"))
        if nld:
            pos = [1 + (i * O.p1_span) // nld for i in range(nld)]
            li = 0; pend = []; prev = -1
            for x in dm:
                if x.startswith("buffer_load"):
                    place(pend, max(prev, 0), pos[li] - 1); pend = []
                    gaps[pos[li]].insert(0, x); prev = pos[li]; li += 1
                else: pend.append(x)
            place(pend, prev, 25)
        if tailops: assert not gaps[24] and not gaps[25] and not any("m0" in y or "s%d," % sWoff in y for y in gaps[23]), gaps[22:]
        for i_, x in enumerate(tailops): gaps[23 + min(i_, (i_ + 1) // 2)].append(x) if i_ else gaps[23].insert(0, x)
        if mode == "loop" and km == 2: place(kvq + (["v_add_u32 v%d, 4096, v%d" % (vT3, vT3)] if O.wo_at == 1 else []), 8, 25)
        if mode == 28:
            place(kvq + [kvq_m0], 0, 15); gaps[16].insert(0, kvb(vT, 0)); gaps[17].insert(0, kvb(vT2, 1024)); place(addr28, 18, 25)
        if endw: gaps[26].append(endw); gaps[27].append("s_barrier")
        if O.ts and km in (0, 2): gaps[22] += TS_A; gaps[27] += TS_B
        if ctl:
            gaps[25].append("s_sub_u32 s%d, s%d, 1" % (sCnt, sCnt)); gaps[26].append("s_cmp_lg_u32 s%d, 0" % sCnt)
        weave(a, mf, gaps)
    stamp(4)
    a.raw(".p2align 5")
    a.lab("L_p1")
    for km in range(4): p1_kstep(km, "loop", ctl=(km == 3))
    a.e("s_cbranch_scc1 L_p1")
    p1_kstep(0, 28)
    stamp(4)
    a.lab("L_tr")
    a.e(["s_cmp_lg_u32 s%d, 0" % sPass, "s_cbranch_scc1 L_nofl",
         "global_load_dword v%d, v%d, s[%d:%d] sc1" % (vFc, pFc, pWs, pWs + 1),
         "s_cmp_lg_u32 s%d, 0" % sWv, "s_cbranch_scc1 L_nofl",
         "global_load_dword v%d, v%d, s[%d:%d] sc1" % (vFo, pFp, pWs, pWs + 1)])
    a.lab("L_nofl")
    def ismem(x): return x.startswith(("ds_", "buffer_", "global_", "s_barrier"))
    def spread(mf, side, lo=0, hi=None):
        n = len(mf); hi = n - 1 if hi is None else hi
        gaps = [[] for _ in range(n)]
        g = lo
        if any(isinstance(x, list) for x in side):
            n0 = [isinstance(x, list) for x in side].index(True)
            pre = side[:n0]
            gaps[lo] += pre[:-5]; gaps[lo + 1] += pre[-5:] + side[n0]
            side = side[n0 + 1:]; lo += 2; g = lo
        for i_, x in enumerate(side):
            g = max(g, lo + (i_ * (hi - lo + 1)) // len(side))
            if ismem(x) and any(y.startswith("v_") for y in gaps[g]) and g < hi: g += 1
            gaps[g].append(x)
        weave(a, mf, gaps)
    def rdK(i, slot):
        t, ks = i & 1, i >> 1
        return "ds_read_b128 %s, v%d offset:%d" % (ar(aK + 16 * t + 4 * ks, 4), vKr, slot * 8192 + t * 4096 + ks * 256)
    def xlane(op, regs_, tmp):
        out = []
        for sw in ("v_permlane32_swap_b32", "v_permlane16_swap_b32"):
            out += ["v_mov_b32 v%d, v%d" % (t_, r_) for r_, t_ in zip(regs_, tmp)]
            out += ["%s v%d, v%d" % (sw, r_, t_) for r_, t_ in zip(regs_, tmp)]
            out += ["%s v%d, v%d, v%d" % (op, r_, r_, t_) for r_, t_ in zip(regs_, tmp)]
        return out
    def qk(rt, sb):
        out = []
        for i in range(8):
            t, ks = i & 1, i >> 1
            d = vr(S + 8 * sb + 4 * t, 4)
            out.append(mfma(d, ar(aK + 16 * t + 4 * ks, 4), ar(aQ + 16 * rt + 4 * ks, 4), vr(M + 4 * rt, 4) if ks == 0 else d))
        return out
    def oacc(rt, i): return vr(OK + 16 * rt + 4 * i, 4) if i < 4 else ar(aO + 16 * rt + 4 * (i - 4), 4)
    def pv(rt, pb): return [mfma(oacc(rt, i), vr(V + 4 * i, 4), vr(P + 4 * pb, 4), oacc(rt, i)) for i in range(8)]
    aK0 = 176
    def Bq(rt):
        o = []
        if O.pkg & 2: o.append(["v_pk_mul_f32 %s, %s, s[%d:%d]" % (vr(ACC + 16 * rt + 2 * i, 2), vr(ACC + 16 * rt + 2 * i, 2), sC, sC + 1) for i in range(8)])
        for dp in range(2):
            b = ACC + 16 * rt + 8 * dp
            for i in range(4):
                if not O.pkg & 2: o += ["v_mul_f32 v%d, s%d, v%d" % (b + 2 * i, sC, b + 2 * i), "v_mul_f32 v%d, s%d, v%d" % (b + 2 * i + 1, sC, b + 2 * i + 1)]
                o.append("v_cvt_pk_bf16_f32 v%d, v%d, v%d" % (b + i, b + 2 * i, b + 2 * i + 1))
            if dp == 0: o.append("s_waitcnt lgkmcnt(0)")
            o.append("ds_write_b128 v%d, %s offset:%d" % (vQw, vr(b, 4), (rt & 3) * 8192 + dp * 1024))
        return o
    def Cq(rt): return ["ds_read_b128 %s, v%d offset:%d" % (ar(aQ + 16 * rt + 4 * ks, 4), vQr, (rt & 3) * 8192 + (ks >> 1) * 4096 + (ks & 1) * 1024) for ks in range(4)]
    def PP(rt): return [mfma(vr(M + 4 * rt, 4), ar(aK0 + 4 * ks, 4), ar(aQ + 16 * rt + 4 * ks, 4), "0" if ks == 0 else vr(M + 4 * rt, 4)) for ks in range(4)]
    def Dq(rt):
        b = M + 4 * rt
        return ["v_max3_f32 v%d, v%d, v%d, v%d" % (b, b, b + 1, b + 2), "v_max_f32 v%d, v%d, v%d" % (b, b, b + 3)] + ["v_sub_f32 v%d, 0, v%d" % (b + i, b) for i in (1, 2, 3, 0)]
    sync = ["s_waitcnt lgkmcnt(0)", "s_barrier"]
    kvs = [[ptm0(reg, sl), "s_nop 0"] + ptld(reg) + (incK if reg == 3 else []) for sl in (2, 3) for reg in PORD]
    if O.t3late: kvs = [kvs[0], [], kvs[1], [], kvs[2], [], kvs[3], []]
    pfs = ([cp2[-1]] if O.pf_code else []) + ([wopf] if O.wo_at == 29 else [])
    t1 = rdW(30) + [rdX1(15, 0, 0)] + rdW(31) + [rdX1(15, 1, 0)] + [rdX1(15, kk, rt) for rt in range(1, 7) for kk in range(2)]
    spread([m_ for rt in range(5) for m_ in A(rt, 29)], t1 + pfs + sync, 0, 19)
    stamp(1)
    for i in range(8):
        mf = (A(i, 30) + A(i, 31) if i < 7 else qk(0, 0)) + (A(5 + i, 29) if i < 2 else PP(i - 2))
        side = []
        if i == 0: mf += [zero16(vr(OK, 16)), zero16(vr(OK + 16, 16))]
        if i == 0: side += ["ds_read_b128 %s, v%d offset:%d" % (ar(aK0 + 4 * ks, 4), vK0, ks * 256) for ks in range(4)]
        bq = Bq(i - 1) if i >= 1 else []
        nb = O.nb if i >= 2 else 0
        if nb:
            bq = [x for x in bq if not x.startswith("s_waitcnt")]
            w0 = [x for x in bq if x.startswith("ds_write")][0]; bq.remove(w0)
            bq = bq[:18] + ["s_waitcnt lgkmcnt(0)", w0] + bq[18:]
        side += bq[:nb]
        if i >= 2: side += sync + Cq(i - 2)
        if i in (3, 4): side += [rdK(j, 0) for j in range(4 * (i - 3), 4 * (i - 2))]
        side += bq[nb:]
        if i >= 3: side += Dq(i - 3)
        if i == 7: side += ["v_mov_b32 v%d, 0" % j for j in range(L, L + 4)] + ["s_mov_b32 s%d, 3" % sCnt]
        side += kvs[i]
        spread(mf, side)
    if O.ts: a.e(TS_F)
    a.e(["s_cmp_lg_u32 s%d, 0" % sPass, "s_cbranch_scc1 L_maxpass"])
    stamp(1)
    NA = 0

    def dma3(j): return "buffer_load_dwordx4 v%d, s[%d:%d], s%d offen offset:%d %s lds" % (vD + j, sWs, sWs + 3, sWo, j * 1024, O.w3f)
    def setWo(u): return "s_xor_b32 s%d, s%d, 0x%x" % (sWo, sOf, u * 32768)
    def wset(n): return (0, 32, 64, 224)[n & 3]
    def rd3(k, off, dts=range(8)):
        return ["ds_read_b64_tr_b16 %s, v%d offset:%d" % (ar(wset(k) + 4 * dt + 2 * sec, 2), vR + (dt & 1), off + (dt >> 1) * 256 + sec * 4096) for dt in dts for sec in range(2)]
    def xw(rt): return ["ds_write_b128 v%d, %s offset:%d" % (vTa, ar(aO + 16 * rt + 4 * i, 4), rt * 4096 + i * 1024) for i in range(4)]
    vm = VM(["kv"])
    sDyn, sDd = 10, 11
    KV = " ;kv"
    def dm0(reg): return "s_add_u32 m0, s%d, %d" % (sDyn, reg * 32768)
    incD = incK + ["s_add_u32 s%d, s%d, 8192" % (sDyn, sDyn), "s_and_b32 s%d, s%d, 0x7fff" % (sDyn, sDyn)]
    initD = ["s_sub_u32 s%d, s%d, 0x20000" % (sDyn, sMW), "s_mov_b32 s%d, %d" % (sDd, O.th)]
    vFp, vFa = 239, 252
    def loff(rt): return 28672 + (rt & 3) * 4 + (rt >> 2) * 1024
    def lw(rt): return "ds_write_b32 v%d, v%d offset:%d" % (vTa, L + rt, loff(rt))
    def rdc(rt, pb): return ["ds_read_b32 v%d, v%d offset:%d" % (E2 + 2 + (rt & 1), vTb, loff(rt))] + ["ds_read_b128 %s, v%d offset:%d" % (vr(pb + 4 * i, 4), vTb, (rt * 4 + i) * 1024) for i in range(4)]
    def comb(rt, pb):
        ob = OK + 16 * rt; t = E2 + 2 + (rt & 1)
        return (["v_add_f32 v%d, v%d, v%d" % (t, t, L + rt), "v_rcp_f32 v%d, v%d" % (t, t)] + ["v_add_f32 v%d, v%d, v%d" % (ob + i, ob + i, pb + i) for i in range(16)]
                + [x for i in range(8) for x in ("v_mul_f32 v%d, v%d, v%d" % (ob + 2 * i, ob + 2 * i, t), "v_mul_f32 v%d, v%d, v%d" % (ob + 2 * i + 1, ob + 2 * i + 1, t),
                                                 "v_cvt_pk_bf16_f32 v%d, v%d, v%d" % (ob + i, ob + 2 * i, ob + 2 * i + 1))])
    def combp(rt, pb):
        ob = OK + 16 * rt; t = E2 + 2
        o = ["v_add_f32 v%d, v%d, v%d" % (t + (rt & 1), t + (rt & 1), L + rt), "v_rcp_f32 v%d, v%d" % (t + (rt & 1), t + (rt & 1))]
        o += ["v_pk_add_f32 %s, %s, %s" % (vr(ob + 2 * i, 2), vr(ob + 2 * i, 2), vr(pb + 2 * i, 2)) for i in range(8)]
        o += ["v_pk_mul_f32 %s, %s, %s %s" % (vr(ob + 2 * i, 2), vr(ob + 2 * i, 2), vr(t, 2), "op_sel:[0,1]" if rt & 1 else "op_sel_hi:[1,0]") for i in range(8)]
        return o + ["v_cvt_pk_bf16_f32 v%d, v%d, v%d" % (ob + i, ob + 2 * i, ob + 2 * i + 1) for i in range(8)]
    def ost(rt): return ["buffer_store_dwordx4 %s, v%d, s[%d:%d], s%d offen offset:%d sc1" % (vr(OK + 16 * rt + 4 * p, 4), vL16, sO, sO + 3, sRt + rt, p * 1024) for p in range(2)]
    pend = []; cost = [0]
    def step(js, r, last=False, first=False, kv=False, ctl=False):
        u = 7 * js + r
        fin = last and js == 3
        mf = ([] if (fin and r == 6) else qk((r + 1) % 7, (u + 1) & 1)) + pv((r + 6) % 7, (u + 1) & 1)
        mem = [[] for _ in range(16)]; val = [[] for _ in range(16)]
        pk = not fin and not (first and r == 0)
        Eb = E2 if (pk and u & 1) else E
        for e in range(8):
            val[2 * e].append("v_exp_f32 v%d, v%d" % (Eb + e, S + 8 * (u & 1) + e))
            if not pk: val[2 * e + 1].append("v_add_f32 v%d, v%d, v%d" % (L + r, L + r, Eb + e))
            if e & 1: val[2 * e + 1].append("v_cvt_pk_bf16_f32 v%d, v%d, v%d" % (P + 4 * (u & 1) + (e >> 1), Eb + e - 1, Eb + e))
        if first and r == 0:
            mf = mf[:8] + PP(6) + [zero16(ar(192, 16)), zero16(ar(208, 16))]
            mem[0] += sync + Cq(6)[:2]; mem[1] += Cq(6)[2:]; mem[7].append("s_waitcnt lgkmcnt(0)")
            for i_, x in enumerate(Dq(5)): val[3 + 2 * i_].append(x)
        if first and r == 1:
            for i_, x in enumerate(Dq(6) + ["v_mov_b32 v%d, 0" % j for j in range(L + 4, L + 7)]): val[1 + 4 * (i_ % 4)].append(x) if i_ >= 6 else val[1 + 2 * i_].append(x)
        if first and r == 2: mem[9].append(zero16(ar(176, 16)))
        if first and r == 3: mem[1].append(initD[0]); mem[5].append(initD[1])
        if O.tlb2 and first and r == 2:
            val[1] += ["v_lshlrev_b32 v250, 19, v%d" % vL] + boxaddr(251)[:2]; val[3] += boxaddr(251)[2:4]; val[5] += ["v_mov_b32 v251, s%d" % sT]
        if O.tlb2 and first and r == 3:
            for i_, srd in enumerate((sO, sOs, sOut)): mem[7 + 2 * i_].append("buffer_load_dword v%d, v250, s[%d:%d], 0 offen sc1" % (vDum, srd, srd + 3))
            mem[13].append("global_load_dword v%d, v251, s[%d:%d] sc1" % (vDum, pWs, pWs + 1))
        if O.pf3 and first and r == 4:
            for i_, x in enumerate(codepf("L_last", "L_go", 250)[:-1]): val[1 + 2 * i_].append(x)
        if O.pf3 and not first and not last and js == O.pf3 % 4 and r == 1: mem[9].append(codepf("L_last", "L_go", 250)[-1])
        vrd = ["ds_read_b64_tr_b16 %s, v%d offset:%d" % (vr(V + 4 * i + 2 * sec, 2), vVr + (i & 1), js * 8192 + (i >> 1) * 256 + sec * 4096) for i in range(8) for sec in range(2)]
        if not fin and not first:
            if r == 0: mem[9] += vrd[0:3]; mem[11] += vrd[3:5]; mem[13] += vrd[5:8]; mem[15] += vrd[8:10]
            if r == 1:
                mem[1] += vrd[10:12]; mem[3] += vrd[12:14]; mem[5] += vrd[14:16]
                mem[7].append("s_waitcnt lgkmcnt(4)"); mem[13].append("s_waitcnt lgkmcnt(0)")
        else:
            if r == 0:
                for i in range(16): mem[8 + i // 2].append(vrd[i])
            if r == 1: mem[5].append("s_waitcnt lgkmcnt(%d)" % (5 if fin else 0))
        if r == 5 and not fin: mem[0].append("s_barrier")
        if r == 4 and not last: mem[13] += ["s_getreg_b32 s%d, hwreg(HW_REG_IB_STS, 0, 4)" % sT2]; mem[15].append("s_waitcnt vmcnt(8)")
        if r == 4 and ctl: mem[9].append("s_sub_u32 s%d, s%d, 1" % (sCnt, sCnt)); mem[11].append("s_cmp_lg_u32 s%d, 0" % sCnt)
        if kv:
            pts = [tuple(int(y) for y in x.split(".")) for x in O.pts.split(",")]
            pos = [((pr_ - 5) % 7) * 16 + pg_ for pr_, pg_ in pts]
            here = ((r - 5) % 7) * 16
            def put(p_, xs):
                if here <= p_ < here + 16: mem[p_ - here] += [x + KV for x in xs]
            for n_ in range(4):
                put(pos[n_] - 2, [dm0(PORD[n_])]); put(pos[n_], ptld(PORD[n_]))
            put(pos[3] + 2, incD[0:2]); put(pos[3] + 4, incD[2:4])
        if last:
            sched = [{(0, 6): 0, (1, 1): 6, (1, 3): 1, (1, 6): 7, (2, 0): 2, (2, 2): 3, (2, 5): 4, (3, 0): 5},
                     {(1, 1): 0, (1, 3): 1, (1, 6): 6, (2, 1): 2, (2, 2): 3, (2, 6): 4, (3, 0): 5, (3, 1): 7},
                     {(1, 2): 0, (1, 3): 1, (1, 6): 6, (2, 0): 7, (2, 2): 2, (2, 4): 3, (2, 6): 4, (3, 1): 5}][O.ts9]
            if (js, r) in sched:
                k = sched[(js, r)]
                base, off = (sReg, k * 4096) if k < 6 else (sSp, (k - 6) * 4096)
                g0 = (9, 11, 13, 15) if r == 5 else ((1, 3, 5, 7) if r == 0 else (1, 5, 9, 13))
                mem[g0[0] - 1] += ["s_add_u32 m0, s%d, %d" % (base, off), setWo(k)]
                for j in range(4): mem[g0[j]].append(("w%d" % k, dma3(j)))
            if r == 4 and js == 1: mem[13].append(("wait8", "kv"))
            if r == 4 and js == 2: mem[13].append(("wait", "kv"))
            if r == 5 and js < 1:
                mem[11].append("s_cmp_ge_u32 s%d, %d" % (sK0, 16 * TS_))
                mem[13].append(("kv", ["s_cbranch_scc1 L_ok%d" % js] + [x for reg in PORD for x in [dm0(reg), "s_nop 0"] + ptld(reg)] + incD + ["L_ok%d:" % js]))
            if js == 2 and r == 3 and O.pf_code and not O.ts:
                pf = codepf("L_epi", "L_end", vT)
                for i_, x in enumerate(pf[:-1]): val[1 + 2 * i_].append(x)
                mem[15].append(("pf", pf[-1]))
            if js == 1 and r == 2:
                val[1] += ["v_add_u32 v%d, s%d, v%d" % (vTa, sReg, vL16)]; val[5] += ["v_add_u32 v%d, s%d, v%d" % (vTb, sRing, vL16)]
            if js == 1 and r == 4:
                for i_, x in enumerate(flagp(vFp, vT2)): val[1 + 2 * (i_ // 4)].append(x)
            if js == 2 and r == 1:
                for i_, x in enumerate(["s_lshr_b32 s%d, s%d, 6" % (sT, sOf), "v_add_u32 v248, s%d, v%d" % (sT, vL16), "v_add_u32 v%d, 1, v%d" % (vFo, vFo)]): val[9 + 2 * i_].append(x)
            if js == 2 and r == 4:
                fc = flagc(vFa)
                for i_, x in enumerate(fc[:-3]): val[1 + 2 * (i_ // 2)].append(x)
                val[11] += fc[-3:]
            if fin:
                h2 = 8 if 2 <= r < 6 else 0
                if r < 6:
                    if r % 2 == 0: mem[h2] += [("wait", "w%d" % r), ("wait", "w%d" % (r + 1))]
                if r == 1: mem[9].append("s_barrier")
                g1 = list(range(0, 8)) if r < 6 else [8, 8, 9, 9, 10, 10, 11, 11]
                g2 = list(range(8, 16)) if r < 6 else [12, 12, 13, 13, 14, 14, 15, 15]
                if r >= 3: mem[g1[0]].append("s_waitcnt lgkmcnt(0)")
                if r >= 2:
                    for i_, x in enumerate(xw(r - 2) + [lw(r - 2)]): mem[g1[1 + i_]].append(x)
                    mem[g2[0]] += sync
                    for i_, x in enumerate(rdc(r - 2, 128)): mem[g2[(i_ + 1) // 2]].append(x)
                if r < 6:
                    for i_, x in enumerate(rd3(r >> 1, (r >> 1) * 8192, range(4 * (r & 1), 4 * (r & 1) + 4))): mem[h2 + (i_ if h2 == 0 else 3 + i_ // 2)].append(x)
                else:
                    mem[8] += [("wait", "w6"), ("wait", "w7")]
                    for i_, x in enumerate(rd3(3, 0)): mem[8 + i_ // 2].append(x)
                vg = r < 6
                if r >= 3:
                    if O.pkg & 1:
                        cb = combp(r - 3, 128)
                        val[1] += cb[:2]; late3 = cb[2:10]; late7 = cb[10:18]
                        for i_, x in enumerate(cb[18:]): val[8 + (i_ * 6) // 8].append(x)
                    else:
                        cb = comb(r - 3, 128)
                        for i_, x in enumerate(cb[:18]): val[(i_ * 8) // 18].append(x)
                        for i_, x in enumerate(cb[18:]): val[8 + (i_ * 6) // 24].append(x)
                    mem[15] += [("st", x) for x in ost(r - 3)]
                    if O.wfin and r >= 4:
                        u_ = 8 + r - 4
                        mem[g1[0]] += ["s_add_u32 m0, s%d, %d" % (sRing, (u_ & 7) * 4096), setWo(u_)]
                        for j in range(4): mem[g1[2 + j]].append(("w%d" % u_, dma3(j)))
                if r >= 1:
                    for i_, x in enumerate(xlane("v_add_f32", [L + r - 1], [E2])): val[3 + 2 * i_].append(x)
                if r >= 3 and O.pkg & 1: val[3] += late3 + late7
                if r == 5: val[15] += ["v_add_u32 v%d, s%d, v%d" % (vR + i, sD1, vR + i) for i in range(2)]
        if r == 5 and not fin:
            for i in range(8): mem[(1, 1, 3, 5, 5, 7, 9, 9)[i]].append(rdK(i, (js + 1) & 3))
            mem[15].insert(0, "s_waitcnt lgkmcnt(0)")
            if O.ts: mem[11] += TS_A; mem[15] += TS_B
        if fin and r == 6:
            mem = [mem[8 + i] for i in range(8)]
            val = [val[2 * i] + val[2 * i + 1] for i in range(8)]
            val = [[v_[0], "s_nop 0"] + v_[1:] for v_ in val]
            a.e("s_nop 1")
        if first and r == 0:
            mem = mem[:12] + [mem[12] + mem[13], mem[14] + mem[15]]
            val = val[:12] + [val[12] + ["s_nop 0"] + val[13], val[14] + ["s_nop 0"] + val[15]]
        if pk:
            flush = r == 4 or (last and js == 2 and r == 6)
            old_ = len(pend)
            for g in range(1, 16, 2):
                pend.append("v_add_f32 v%d, v%d, v%d" % (L + r, L + r, Eb + g // 2))
                n_ = max(0, 2 - len(mem[g]) - len(val[g]))
                if g == 15: n_ = max(n_, len(pend) if flush else old_)
                n_ = min(n_, len(pend))
                val[g] += pend[:n_]; del pend[:n_]; old_ = max(0, old_ - n_)
        else: assert not pend
        if O.padn and pk:
            for i_ in range(O.padn): val[2 * i_].append("s_nop 0")
        for g_, v_ in zip(mem, val): cost[0] += max(16, 8 + sum(8 if (isinstance(x, str) and "v_exp" in x) else 4 for x in g_ + v_))
        if r == 4:
            if O.verbose: print("unit ending", js, last, first, "model cycles", cost[0], file=sys.stderr)
            cost[0] = 0
        for m_, g_, v_ in zip(mf, mem, val):
            a.e(m_)
            for x in g_:
                if isinstance(x, tuple):
                    if x[0] == "wait": a.e("s_waitcnt vmcnt(%d)" % vm.n(x[1]))
                    elif x[0] == "wait8": a.e("s_waitcnt vmcnt(%d)" % (vm.n(x[1]) + 8))
                    elif x[0] == "kv": vm.issue("kv", True); a.e(x[1])
                    else: vm.issue(x[0]); a.e(x[1])
                else: a.e(x)
            a.e(v_)
    for r in range(5): step(0, r, first=True)
    quiet = []
    a.raw(".p2align 5")
    a.lab("L_loop")
    for js in range(4):
        if O.force_skip & (1 << js): a.e("s_or_b32 s%d, s%d, 15" % (sT2, sT2))
        a.e(["s_cmp_gt_u32 s%d, s%d" % (sT2, sDd), "s_cbranch_scc1 L_h%d" % js])
        a.lab("L_u%d" % js)
        q0 = len(a.L)
        for r in (5, 6): step(js, r, kv=True)
        step((js + 1) & 3, 0, kv=True)
        qe = max(i_ for i_ in range(q0, len(a.L)) if a.L[i_].endswith(KV)) + 1
        quiet.append([ln for ln in a.L[q0:qe] if not ln.endswith(KV)])
        a.L.insert(qe, "L_j%d:" % js)
        for r in range(1, 5): step((js + 1) & 3, r, ctl=(js == 3))
    a.e(["s_cbranch_scc1 L_loop", "s_branch L_last"])
    for js in range(4):
        a.lab("L_h%d" % js)
        a.e("s_mov_b32 s%d, 99" % sDd)
        a.L += quiet[js]
        a.e("s_branch L_j%d" % js)
    a.lab("L_last")
    for r in (5, 6): step(0, r, last=True)
    for js in range(1, 4):
        for r in range(7): step(js, r, last=True)
    stamp()

    a.lab("L_epi")
    if O.ts: a.e(TS_F)
    misc = ["v_add_f32 v%d, v%d, v%d" % (vTc, L, L + 1)] + ["v_add_f32 v%d, v%d, v%d" % (vTc, vTc, L + i) for i in range(2, 7)]
    misc += ["s_mov_b32 s%d, 0x%x" % (sT, THR if not O.force_slow else 0), "s_lshl_b32 s%d, s%d, 2" % (sG, sWv),
             "v_cmp_ngt_f32 vcc, s%d, v%d" % (sT, vTc),
             "s_add_u32 s%d, s%d, 30720" % (sG, sG), "v_mov_b32 v%d, s%d" % (vT, sG),
             "s_cmp_lg_u64 vcc, 0", "s_cselect_b32 s%d, 1, 0" % sT, "v_mov_b32 v%d, 30720" % vT2, "v_mov_b32 v%d, s%d" % (L + 7, sT)]
    xl = xlane("v_add_f32", [L + 6], [E2])
    pvl = pv(6, 1); pvl = pvl[4:] + pvl[:4]
    gp = [[] for _ in range(8)]
    for i_, x in enumerate(xw(5) + [lw(5)]): gp[2 + i_].append(x)
    for i_, x in enumerate(misc): gp[(i_ * 8) // len(misc)].append(x)
    for i_, x in enumerate(xl): gp[2 + i_].append(x)
    a.e(["s_waitcnt lgkmcnt(0)", "s_nop 0"])
    weave(a, pvl, gp)
    vm.issue("pl"); a.e(["s_mov_b64 exec, 31", "global_load_dword v249, v%d, s[%d:%d] sc1" % (vFa, pWs, pWs + 1), "s_mov_b64 exec, -1"])
    a.e(xw(6) + [lw(6), "ds_write_b32 v%d, v%d" % (vT, L + 7)])
    def stores(rt):
        for x in ost(rt): vm.issue("st"); a.e(x)
    c4 = combp(4, 128)
    a.e(c4[:18] + sync)
    stamp(2)
    a.e(["ds_read_b128 %s, v%d" % (vr(216, 4), vT2)] + rdc(5, 144) + rdc(6, 160) + c4[18:])
    stores(4)
    a.e(["v_add_u32 v%d, s%d, v%d" % (vR + i, sD2, vR + i) for i in range(2)])
    a.e(["s_waitcnt lgkmcnt(5)", "v_or3_b32 v216, v216, v217, v218", "v_or_b32 v216, v216, v219"] + combp(5, 144) + ["v_readfirstlane_b32 s%d, v216" % sT])
    stores(5)
    a.e(["s_waitcnt lgkmcnt(0)"] + combp(6, 160))
    stores(6)
    a.e(["s_andn2_b32 s%d, s%d, s%d" % (sT, sT, sPass), "s_cbranch_scc1 L_slow"])
    def wload(k, j):
        if j == 0: a.e(["s_add_u32 m0, s%d, %d" % (sRing, (k & 7) * 4096), setWo(k)])
        vm.issue("w%d" % k); a.e(dma3(j))
    wi = 12 if O.wfin else 0
    stamp(2)
    ACC3, OF = 16, 128
    vS, vOo, vOut, vPs = 6, 248, 249, 250
    def acc3(rt, sl):
        hb, wv = sl >> 2, sl & 3
        return vr(ACC3 + 16 * rt + 4 * (2 * hb + wv), 4) if wv < 2 else ar(112 + 16 * rt + 4 * (2 * hb + wv - 2), 4)
    def ldO(rt, k): return "buffer_load_dwordx4 %s, v%d, s[%d:%d], s%d offen sc1" % (vr(OF + 28 * (k & 3) + 4 * rt, 4), vOo, sOs, sOs + 3, sRt + rt)
    def incO(k): return "v_xor_b32 v%d, 0x%x, v%d" % (vOo, (k ^ (k + 1)) << 10, vOo)
    ld01 = [x for k in range(2) for x in [ldO(rt, k) for rt in range(7)] + [incO(k)]]
    fset = ["s_lshl_b32 s%d, s%d, 5" % (sT, sB), "s_add_u32 s%d, s%d, s%d" % (sT, sT, sH), "v_mov_b32 v%d, s%d" % (vT2, sT), "v_mov_b32 v%d, 1" % vT3, "v_mov_b32 v241, v%d" % vFa]
    def publish(lab):
        a.e(["s_barrier", "s_cmp_lg_u32 s%d, 0" % sWv, "s_cbranch_scc1 %s" % lab,
             "s_mov_b64 exec, 0xfffff", "global_store_dword v%d, v%d, s[%d:%d] sc1" % (vFp, vFo, pWs, pWs + 1),
             "s_mov_b64 exec, 1", "global_store_byte v%d, v%d, s[%d:%d] sc1" % (vT2, vT3, pDbg, pDbg + 1), "s_mov_b64 exec, -1"])
    def wpieces(lo, hi):
        out = []
        for p_ in range(lo, hi):
            u, j = 8 + p_ // 4, p_ % 4
            out.append((["s_add_u32 m0, s%d, %d" % (sRing, (u & 7) * 4096), setWo(u)] if j == 0 else [], ("w%d" % u, dma3(j))))
        return out
    a.e(["s_waitcnt vmcnt(%d)" % vm.n("pl"), "v_cmp_eq_u32 s[%d:%d], v249, v%d" % (sC, sC + 1, vFc), "s_mov_b64 vcc, 0", "s_and_b32 s%d, s%d, 31" % (sC, sC), "s_cbranch_scc1 L_late"])
    a.e(ld01 + fset + ["s_waitcnt vmcnt(14)"])
    publish("L_join")
    a.e("s_branch L_join")
    a.lab("L_late")
    a.e(["s_mov_b64 exec, 31", "global_load_dword v%d, v%d, s[%d:%d] sc1" % (vT, vFa, pWs, pWs + 1), "s_mov_b64 exec, -1"] + fset + ["v_xor_b32 v243, 0x80, v%d" % vT2,
         "s_lshr_b32 s%d, s%d, 1" % (sT, sRB), "s_lshl_b32 s%d, s%d, 5" % (sT, sT), "s_lshl_b32 s%d, s%d, 2" % (sG, sPm), "s_add_u32 s%d, s%d, s%d" % (sT, sT, sG),
         "v_mov_b32 v242, s%d" % sT, "s_mov_b32 s%d, 0x40000" % sCnt, "s_waitcnt vmcnt(0)", "v_cmp_eq_u32 s[%d:%d], v%d, v%d" % (sC, sC + 1, vT, vFc)])
    publish("L_noflag")
    a.lab("L_noflag")
    a.e(["s_and_b32 s%d, s%d, 31" % (sC, sC), "s_cbranch_scc0 L_go", "s_mov_b64 vcc, -1"])
    for pre, op in wpieces(wi, 32): a.e(pre + [op[1]])
    a.e("s_mov_b64 exec, 31")
    a.lab("L_poll")
    a.e(["global_load_dword v%d, v241, s[%d:%d] sc1" % (vT, pWs, pWs + 1), "s_waitcnt vmcnt(0)", "s_sub_u32 s%d, s%d, 1" % (sCnt, sCnt), "s_cbranch_scc1 L_go",
         "v_cmp_eq_u32 s[%d:%d], v%d, v%d" % (sC, sC + 1, vT, vFc), "s_nop 0", "s_cmp_eq_u64 s[%d:%d], 0" % (sC, sC + 1), "s_cbranch_scc1 L_go",
         "s_and_b32 s%d, s%d, 15" % (sT, sCnt), "s_cbranch_scc1 L_poll",
         "global_load_dword v%d, v242, s[%d:%d] sc1" % (vT, pDbg, pDbg + 1), "global_load_ubyte v%d, v243, s[%d:%d] sc1" % (vT2, pDbg, pDbg + 1), "s_waitcnt vmcnt(0)",
         "v_add_u32 v%d, v%d, v%d" % (vT, vT, vT2), "s_nop 0", "v_readfirstlane_b32 s%d, v%d" % (sT, vT),
         "s_nop 0", "s_cmp_eq_u32 s%d, 0x01010102" % sT, "s_cbranch_scc0 L_poll"])
    a.lab("L_go")
    a.e(["s_mov_b64 exec, -1"] + ld01)
    a.lab("L_join")
    for k in range(2):
        for rt in range(7): vm.issue("o%d" % k)
    stamp()
    if O.stamps: a.e(["s_memrealtime s[4:5]", "s_memrealtime s[6:7]", "s_sub_u32 s10, 0x40000, s11"])
    a.e(["v_add_u32 v%d, s%d, v%d" % (vS, sRing, vL16)])
    for i in range(1, 4): a.e(["v_xor_b32 v%d, 0x%x, v%d" % (vS + i, i << 15, vS)])
    a.e(["v_and_b32 v%d, 15, v%d" % (vT, vL), "v_lshrrev_b32 v%d, 4, v%d" % (vT2, vL), "v_lshlrev_b32 v%d, 3, v%d" % (vT2, vT2),
         "v_lshl_add_u32 v%d, v%d, 11, v%d" % (vT, vT, vT2),
         "s_lshl_b32 s%d, s%d, 8" % (sT, sCT), "s_lshl_b32 s%d, s%d, 5" % (sG, sPm), "s_add_u32 s%d, s%d, s%d" % (sT, sT, sG),
         "v_add_u32 v%d, s%d, v%d" % (vOut, sT, vT)] + boxaddr(vPs) + ["v_xor_b32 v%d, 0x8000, v%d" % (vPs + 1, vPs)])
    if O.ts: a.e(TS_F)
    a.e(["s_waitcnt vmcnt(%d)" % (vm.n("o0") + 6)])
    def redw(rt, hb, wv): return "ds_write_b128 v%d, %s offset:%d" % (vS, acc3(rt, 4 * hb + wv), (wv - 1) * 7168 + rt * 1024)
    def redr(rt, wv, d): return "ds_read_b128 %s, v%d offset:%d" % (vr(d, 4), vS + wv, (wv - 1) * 7168 + rt * 1024)
    def mf3(rt, sl, k): return mfma(acc3(rt, sl), ar(wset(k) + 4 * sl, 4), vr(OF + 28 * (k & 3) + 4 * rt, 4), acc3(rt, sl) if k else "0")
    def emit(mf, gaps):
        for m_, g_ in zip(mf, gaps):
            a.e(m_)
            for x in g_:
                if isinstance(x, tuple):
                    if x[0] == "wait": a.e("s_waitcnt vmcnt(%d)%s" % (min(vm.n(t_) for t_ in x[1]), " lgkmcnt(0)" if x[2] else ""))
                    elif x[0] == "wait0": a.e("s_waitcnt vmcnt(%d)" % (vm.n("o0") + x[1]))
                    elif isinstance(x[1], list):
                        nsk[0] += 1
                        for _ in range(4): vm.issue(x[0], True)
                        a.e(["s_cbranch_vccnz L_sk%d" % nsk[0]] + x[1]); a.lab("L_sk%d" % nsk[0])
                    elif (O.dbg3 & 1 and x[0][0] == "w") or (O.dbg3 & 2 and x[0][0] == "o" and int(x[0][1:]) > 3): vm.issue(x[0])
                    else: vm.issue(x[0]); a.e(x[1])
                elif O.dbg3 & 4 and x.startswith("ds_read_b64"): pass
                else: a.e(x)
    nsk = [0]
    ws0, ws1 = 2, O.ws1
    pstep = [ws0 + (p_ * (ws1 - ws0)) // 64 for p_ in range(64)]
    rstep = {m_: m_ - 3 for m_ in range(4, 8)}
    for m_ in range(8, 16):
        rstep[m_] = max(m_ - 3, pstep[8 * (m_ - 8) + 7] + 2)
        assert pstep[8 * (m_ - 8)] > rstep[m_ - 4] and rstep[m_] <= min(m_ - 1, 13) and (m_ == 15 or rstep[m_] <= 12), m_
    for k in range(13):
        mf = [mf3(rt, sl, k) for rt in range(7) for sl in range(8)]
        gaps = [[] for _ in range(56)]
        rds = [m_ for m_ in rstep if rstep[m_] == k]
        for g, x in enumerate([y for m_ in rds for y in rd3(m_, (m_ & 3) * 8192)]): gaps[g].append(x)
        wl = []
        if k < 3:
            assert wi % 4 == 0 and wi >= 8 and O.dynw
            us = list(range(wi // 4, 8)); us = us[(len(us) * k) // 3:(len(us) * (k + 1)) // 3]
            wl = [([], ("w%d" % (8 + u_), [y for pre, op in wpieces(4 * u_, 4 * u_ + 4) for y in pre + [op[1]]])) for u_ in us]
        ps_ = [p_ for p_ in range(64) if pstep[p_] == k]
        if ps_: wl += wpieces(32 + ps_[0], 32 + ps_[-1] + 1)
        ol = [([], ("o%d" % kk_, ldO(rt, kk_))) + ((incO(kk_),) if rt == 6 else ()) for kk_ in ([2, 3] if k == 0 else [k + 3]) for rt in range(7)]
        ld = sorted([((i_ + 0.5) / len(wl), x) for i_, x in enumerate(wl)] + [((i_ + 0.25) / len(ol), x) for i_, x in enumerate(ol)], key=lambda t_: t_[0])
        for i_, (_, x) in enumerate(ld):
            g = 1 + (i_ * 53) // len(ld)
            gaps[g - 1] += x[0]; gaps[g].insert(0, x[1])
            if len(x) > 2: gaps[g].append(x[2])
        if k == 0:
            for rt in range(1, 7): gaps[8 * rt - 1].append(("wait0", 6 - rt))
        need_ = ["o%d" % (k + 1)] + ["w%d" % (2 * m_ + 1) for m_ in rstep if rstep[m_] == k + 1]
        gaps[55].append(("wait", need_, bool(rds)))
        if O.ts: gaps[55] += TS_F
        emit(mf, gaps)
    mf = [mf3(rt, 4 * hb + wv, k) for hb in (1, 0) for k in (13, 14, 15) for rt in range(7) for wv in range(4)]
    gaps = [[] for _ in range(168)]
    if rstep[15] == 13:
        for g, x in enumerate(rd3(15, 3 * 8192)): gaps[g].append(x)
    gaps[27].append(("wait", ["o14"], False)); gaps[55].append(("wait", ["o15"], True))
    for rt in range(7):
        for wv in range(1, 4): gaps[56 + 4 * rt + wv + 8].append(redw(rt, 1, wv))
    gaps[94].append("s_waitcnt lgkmcnt(0)"); gaps[95].append("s_barrier")
    def tmp1(rt, wv): return (ACC3 + 16 * rt + 12, OF + 4 * rt, OF + 28 + 4 * rt)[wv - 1]
    for rt in range(7):
        g = 96 + 4 * rt
        gaps[g] += [redr(rt, 1, tmp1(rt, 1)), redr(rt, 2, tmp1(rt, 2))]; gaps[g + 1].append(redr(rt, 3, tmp1(rt, 3)))
    for rt in range(7):
        g = 96 + 4 * rt + 6; b = ACC3 + 16 * rt + 8
        gaps[g - 1].append("s_waitcnt lgkmcnt(%d)" % (3 if rt < 6 else 0))
        ads = ["v_add_f32 v%d, v%d, v%d" % (b + i, b + i, tmp1(rt, 1) + i) for i in range(4)]
        ads += ["v_add_f32 v%d, v%d, v%d" % (tmp1(rt, 2) + i, tmp1(rt, 2) + i, tmp1(rt, 3) + i) for i in range(4)]
        ads += ["v_add_f32 v%d, v%d, v%d" % (b + i, b + i, tmp1(rt, 2) + i) for i in range(4)]
        gaps[g] += ads[0:4]; gaps[g + 1] += ads[4:8]; gaps[g + 2] += ads[8:10]; gaps[g + 3] += ads[10:12]
        gaps[g + 4].insert(0, ("ps", "global_store_dwordx4 v%d, %s, s[%d:%d] offset:%d sc1" % (vPs + 1, vr(b, 4), pWs, pWs + 1, rt * 1024 - 3072)))
    gaps[132].append("s_barrier")
    gaps[134].append("v_add_u32 v%d, 1, v%d" % (vT2, vFc))
    gaps[O.f2gap] += ["s_waitcnt vmcnt(0)", "s_mov_b64 exec, 64", "global_store_dword v241, v%d, s[%d:%d] sc1" % (vT2, pWs, pWs + 1), "s_mov_b64 exec, -1"]
    lastw = []
    for rt in range(7):
        for wv in range(1, 4):
            g2 = 140 + 4 * rt + wv + 8
            if g2 < 168: gaps[g2].insert(0, redw(rt, 0, wv))
            else: lastw.append(redw(rt, 0, wv))
    emit(mf, gaps)
    stamp()
    if O.ts: a.e(TS_F)
    PB = OF + 84
    ldP = ["global_load_dwordx4 %s, v%d, s[%d:%d] offset:%d sc1" % (vr(PB + 4 * rt, 4), vPs, pWs, pWs + 1, rt * 1024 - 3072) for rt in range(7)]
    pl2 = "global_load_dword v%d, v241, s[%d:%d] sc1" % (vT, pWs, pWs + 1)
    a.e(["s_mov_b64 exec, 32", pl2, "s_mov_b64 exec, -1"] + lastw[:3] + ["s_nop 1"] + lastw[3:] + ["s_mov_b32 s%d, 0x40000" % sCnt, "s_waitcnt lgkmcnt(0)", "s_barrier"])
    for rt in range(7):
        for wv in range(1, 4): a.e(redr(rt, wv, OF + 12 * rt + 4 * (wv - 1)))
    a.e("s_mov_b64 exec, 32")
    a.lab("L_poll2")
    a.e(["s_waitcnt vmcnt(0)", "v_cmp_eq_u32 vcc, v%d, v%d" % (vT, vFc), "s_sub_u32 s%d, s%d, 1" % (sCnt, sCnt), "s_cbranch_vccz L_go2", "s_cbranch_scc1 L_go2", pl2, "s_branch L_poll2"])
    a.lab("L_go2")
    a.e(["s_mov_b64 exec, -1"] + ldP)
    for rt in range(7):
        a.e("s_waitcnt lgkmcnt(%d)" % min(15, 3 * (6 - rt)))
        b = ACC3 + 16 * rt; t = OF + 12 * rt
        for h in range(2):
            a.e("v_pk_add_f32 %s, %s, %s" % (vr(b + 2 * h, 2), vr(b + 2 * h, 2), vr(t + 2 * h, 2)))
            a.e("v_pk_add_f32 %s, %s, %s" % (vr(t + 4 + 2 * h, 2), vr(t + 4 + 2 * h, 2), vr(t + 8 + 2 * h, 2)))
        for h in range(2): a.e("v_pk_add_f32 %s, %s, %s" % (vr(b + 2 * h, 2), vr(b + 2 * h, 2), vr(t + 4 + 2 * h, 2)))
    for rt in range(7):
        b = ACC3 + 16 * rt; t = PB + 4 * rt
        a.e(["s_waitcnt vmcnt(6)"] + ["v_pk_add_f32 %s, %s, %s" % (vr(b + 2 * h, 2), vr(b + 2 * h, 2), vr(t + 2 * h, 2)) for h in range(2)])
        a.e(["v_cvt_pk_bf16_f32 v%d, v%d, v%d" % (b, b, b + 1), "v_cvt_pk_bf16_f32 v%d, v%d, v%d" % (b + 1, b + 2, b + 3),
             "s_mov_b32 s%d, %d" % (sT, rt * 32768),
             "buffer_store_dwordx2 %s, v%d, s[%d:%d], s%d offen %s" % (vr(b, 2), vOut, sOut, sOut + 3, sT, O.out_flags)])
    if O.stamps:
        a.e(["s_waitcnt vmcnt(0)"])
        if O.ts: a.e(TS_F)
        stamp()
        a.e(["s_memrealtime s[78:79]", "s_waitcnt lgkmcnt(0)", "s_lshl_b32 s%d, s2, 2" % sT, "s_add_u32 s%d, s%d, s%d" % (sT, sT, sWv), "s_lshl_b32 s%d, s%d, 6" % (sT, sT),
             "s_add_u32 s%d, s%d, 0x%x" % (sT, sT, STAMP_OFF),
             "s_add_u32 s%d, s%d, s%d" % (sO, pWs, sT), "s_addc_u32 s%d, s%d, 0" % (sO + 1, pWs + 1), "s_mov_b32 s%d, 64" % (sO + 2), "v_mov_b32 v%d, 0" % vT])
        for i in range(nst[0]):
            a.e(["s_sub_u32 s%d, s%d, s%d" % (sT, sST + 2 * i, sST), "v_mov_b32 v%d, s%d" % (vT2, sT),
                 "buffer_store_dword v%d, v%d, s[%d:%d], 0 offen offset:%d" % (vT2, vT, sO, sO + 3, 4 * i)])
        for i, r_ in enumerate((10, 6, 4, sST, 78)):
            a.e(["v_mov_b32 v%d, s%d" % (vT2, r_), "buffer_store_dword v%d, v%d, s[%d:%d], 0 offen offset:%d" % (vT2, vT, sO, sO + 3, 44 + 4 * i)])
    if O.ts:
        a.e(["s_lshl_b32 s%d, s2, 9" % sT, "s_add_u32 s%d, s%d, 0x%x" % (sT, sT, STAMP_OFF + 0x200000),
             "s_add_u32 s%d, s%d, s%d" % (sO, pWs, sT), "s_addc_u32 s%d, s%d, 0" % (sO + 1, pWs + 1), "s_mov_b32 s%d, 512" % (sO + 2),
             "v_lshlrev_b32 v%d, 2, v%d" % (vT, vL), "buffer_store_dword v0, v%d, s[%d:%d], 0 offen" % (vT, sO, sO + 3)])
    a.lab("L_end")
    a.e("s_endpgm")

    if O.wo_at >= 100:
        a.lab("L_wopf")
        a.e(["s_lshl_b32 s%d, s2, 2" % sT, "s_add_u32 s%d, s%d, s%d" % (sT, sT, sWv), "s_lshl_b32 s%d, s%d, 13" % (sT, sT),
             "v_lshlrev_b32 v%d, 7, v%d" % (vT, vL), "v_add_u32 v%d, s%d, v%d" % (vT, sT, vT),
             "global_load_dword v%d, v%d, s[%d:%d]" % (vDum, vT, pWo, pWo + 1), "s_branch L_wopf_ret"])
    a.lab("L_slow")
    a.e(["s_waitcnt vmcnt(0) lgkmcnt(0)", "s_barrier", "s_mov_b32 s%d, 1" % sPass] + lane_setup() + ["s_branch L_restart"])
    a.lab("L_maxpass")
    a.e(["s_waitcnt vmcnt(0) lgkmcnt(0)", "s_barrier"] + Cq(6) + ["s_mov_b32 s%d, 16" % sCnt] + setK(0))
    a.e([zero16(ar(176 + 16 * i, 16)) for i in range(3)] + ["s_nop 7"])
    for rt in range(7): a.e("v_mov_b32 v%d, 0xff800000" % (M + 4 * rt))
    a.lab("L_slow_loop")
    a.e(kvtile(0))
    a.e(["s_waitcnt vmcnt(0)", "s_barrier"])
    a.e([rdK(i, 0) for i in range(8)])
    a.e(["s_waitcnt lgkmcnt(0)", "s_barrier"])
    for rt in range(7):
        for i in range(8):
            t, ks = i & 1, i >> 1
            d = vr(S + 4 * t, 4)
            a.e(mfma(d, ar(aK + 16 * t + 4 * ks, 4), ar(aQ + 16 * rt + 4 * ks, 4), "0" if ks == 0 else d))
        a.e("s_nop 7")
        for i in range(4): a.e("v_max3_f32 v%d, v%d, v%d, v%d" % (M + 4 * rt, M + 4 * rt, S + 2 * i, S + 2 * i + 1))
    a.e(["s_sub_u32 s%d, s%d, 1" % (sCnt, sCnt), "s_cmp_lg_u32 s%d, 0" % sCnt, "s_cbranch_scc1 L_slow_loop"])
    a.e(xlane("v_max_f32", [M + 4 * rt for rt in range(7)], [M + 4 * rt + 1 for rt in range(7)]))
    a.e(["v_add_u32 v%d, s%d, v%d" % (vTc, sSp, vL16), "v_xor_b32 v%d, 16384, v%d" % (vT3, vTc)])
    for rt in range(7): a.e("ds_write_b32 v%d, v%d offset:%d" % (vTc, M + 4 * rt, rt * 1024))
    a.e(["s_waitcnt lgkmcnt(0)", "s_barrier"])
    for rt in range(7): a.e("ds_read_b32 v%d, v%d offset:%d" % (M + 4 * rt + 1, vT3, rt * 1024))
    a.e(setK(0))
    for tl in range(4): a.e(kvtile(tl))
    a.e("s_waitcnt lgkmcnt(0)")
    for rt in range(7): a.e("v_max_f32 v%d, v%d, v%d" % (M + 4 * rt, M + 4 * rt, M + 4 * rt + 1))
    a.e(["s_waitcnt vmcnt(16)", "s_barrier"])
    a.e([rdK(i, 0) for i in range(8)])
    a.e([zero16(vr(V, 16)), zero16(vr(V + 16, 16))])
    a.e(["v_sub_f32 v%d, 0, v%d" % (M + 4 * rt + i, M + 4 * rt) for rt in range(7) for i in (1, 2, 3, 0)])
    a.e(["v_mov_b32 v%d, 0" % i for i in range(L, L + 7)] + ["v_mov_b32 v%d, 0" % i for i in range(P + 4, P + 8)])
    a.e(["s_mov_b32 s%d, 3" % sCnt, "s_waitcnt lgkmcnt(0)"] + qk(0, 0) + initD + codepf("L_last", "L_go", 250)[:-1] + ["s_nop 5"])
    for r in range(5): step(0, r)
    a.e("s_branch L_loop")

def build():
    ref = open("cdna_kernels/%s.s.ref" % NAME).read()
    hdr = ref.split("; Override launch")[0]
    a = Asm()
    k = NAME + "_kernel"
    a.raw(".amdgcn_target \"amdgcn-amd-amdhsa--gfx950\"\n.text")
    a.raw(".globl %s\n.p2align 8\n.type %s,@function" % (k, k))
    kernel(a)
    for e in check(a.L): print(e, file=sys.stderr)
    doc = """;
"""
    t = hdr + "; @launch grid=(256,1,1) block=(256,1,1) lds=163840\n" + doc + a.text()
    t += """.section .rodata,"a"
.p2align 6
.amdhsa_kernel %s
  .amdhsa_next_free_vgpr 512
  .amdhsa_next_free_sgpr 102
  .amdhsa_accum_offset 256
  .amdhsa_group_segment_fixed_size 0
  .amdhsa_kernarg_size 64
  .amdhsa_user_sgpr_count 2
  .amdhsa_user_sgpr_kernarg_segment_ptr 1
  .amdhsa_system_sgpr_workgroup_id_x 1
  .amdhsa_float_denorm_mode_32 %d
.end_amdhsa_kernel
""" % (k, O.denorm)
    return t

if __name__ == "__main__":
    out = sys.argv[1] if len(sys.argv) > 1 else "cdna_kernels/%s.s" % NAME
    for kv in sys.argv[2:]:
        k, v = kv.split("=")
        cur = getattr(O, k)
        setattr(O, k, (v == "1") if isinstance(cur, bool) else type(cur)(v))
    open(out, "w").write(build())
```

```python
import sys, math, struct
from asmlib import *

NAME = "standalone__mha_block_cached__near_ridge"
def f32(x): return struct.unpack("<I", struct.pack("<f", x))[0]
CSCALE = f32(128 ** -0.5 * math.log2(math.e))
THR = f32(2.0 ** 30)

class Opt:
    stamps = False
    ts = False
    kv_nt = True
    nxe = 5
    p1_span = 26
    force_slow = False
    pf_xw = True
    pf_wo = True
    pf_code = True
    w_n = 0
    w_late = 8
    wl2 = 0
    out_flags = ""
    pfl = 0
    burst = 4
    ws1 = 12
    dbg3 = 0
    f2gap = 156
    wo2 = "0.3,2.2"
    lag = 0
    ilv = True
    pts = "5.13,5.15,6.9,6.11"
    th = 5
    trimpf = False
    mixl = 0
    dynfail = True
    wl3 = 0
    tlb = 0
    tlb2 = False
    ts9 = 0
    splitpf = False
    pkg = 1
    xwf = ""
    w3f = ""
    pf3 = 0
    denorm = 3
    wfin = True
    nb = 0
    padn = 0
    kvf = "nt"
    dmax = 1
    force_skip = 0
    pack = True
    verbose = False
    x1mask = 0
    rd_first = False
    wqc = False
    tb4 = False
    wo_r = 3
    bstep = 2
    t3late = False
    wo_at = 1
    dynw = True
    wggo = False
    olook = 3
    sset = 1
    nost = False
    st_flags = "sc1"
    x3mask = 7
    burn = 0
    tsched = 1
    pf_flags = ""
    wpf = 0
O = Opt()
STAMP_OFF = 0x8000000
FLAG_OFF = 0x1000000
PART_OFF = 0x2000000

def zero16(d): return "v_mfma_f32_32x32x16_bf16 %s, v[12:15], v[12:15], 0" % d

class VM:
    def __init__(self, init): self.ops = list(init)
    def issue(self, tag, opt=False): self.ops.append(tag + "?" if opt else tag)
    def n(self, tag):
        idx = max(i for i, t in enumerate(self.ops) if t.rstrip("?") == tag)
        if self.ops[idx].endswith("?"): return min(63, len(self.ops) - 1 - idx)
        return min(63, sum(1 for t in self.ops[idx + 1:] if not t.endswith("?")))

def kernel(a):
    KVF = " " + O.kvf
    pX, pK, pV, pWq, pWo, pOut, pDbg, pWs = 4, 6, 8, 10, 12, 14, 16, 18
    sX, sW, sKV, sO, sOs, sWs, sOut = 20, 24, 28, 32, 36, 40, 44
    (sWv, sB, sH, sRH, sKH, sXoff, sWoff, sCnt, sMX, sMW, sReg, sRing, sSp, sG, sFlip, sK0, sPass, sT, sT2, sRB, sCT, sWo, sD1, sD2) = range(48, 72)
    sP = 3
    sOf = 1; sPm = 0
    sC = 72; sRt = 74; sPC = 82; sVV = 84; sST = 88; sK1 = sFlip
    KH, TS_ = (8192, 16384) if O.ilv else (131072, 8192)
    vL, vT, vT2, vT3, vL16 = 1, 2, 3, 4, 5
    vKV, vW = 6, 10
    OK, ACC = 16, 128
    M, S, E, P, V, L = 128, 156, 172, 180, 188, 220
    vTa, vTb, vTc = 237, 238, 236
    E2 = 228
    vX, vXr, vWr = 240, 247, 251
    vKr, vVr, vK0 = 240, 241, 243
    vD, vR = 244, 10
    vQw, vQr = 2, 3
    PK = 16
    vFo, vFc, vDum = 254, 255, 253
    vCp = 0
    aQ, aO, aK = 0, 112, 224
    aXF, aWF = 0, 224
    nst = [0]
    def stamp(m=3):
        if O.stamps and (m & O.sset) and not (O.ts and nst[0] >= 1):
            assert nst[0] < 7
            a.e("s_memrealtime s[%d:%d]" % (sST + 2 * nst[0], sST + 2 * nst[0] + 1)); nst[0] += 1
    def flagp(v, t):
        return ["s_and_b32 s%d, s%d, 1" % (sT, sB), "s_lshl_b32 s%d, s%d, 6" % (sT, sT), "s_lshr_b32 s%d, s%d, 1" % (sG, sB), "s_lshl_b32 s%d, s%d, 3" % (sG, sG),
                "s_add_u32 s%d, s%d, s%d" % (sT, sT, sG), "s_lshr_b32 s%d, s%d, 2" % (sG, sH), "s_add_u32 s%d, s%d, s%d" % (sT, sT, sG), "s_lshl_b32 s%d, s%d, 7" % (sT, sT),
                "s_and_b32 s%d, s%d, 3" % (sG, sH), "s_lshl_b32 s%d, s%d, 2" % (sG, sG), "s_add_u32 s%d, s%d, s%d" % (sT, sT, sG), "s_add_u32 s%d, s%d, 0x%x" % (sT, sT, FLAG_OFF),
                "v_lshrrev_b32 v%d, 1, v%d" % (v, vL), "v_lshlrev_b32 v%d, 14, v%d" % (v, v), "v_and_b32 v%d, 1, v%d" % (t, vL),
                "v_lshl_add_u32 v%d, v%d, 12, v%d" % (v, t, v), "v_add_u32 v%d, s%d, v%d" % (v, sT, v),
                "s_xor_b32 s%d, s2, 1" % sT, "s_lshl_b32 s%d, s%d, 9" % (sT, sT), "s_add_u32 s%d, s%d, 0x%x" % (sT, sT, FLAG_OFF + 16),
                "v_and_b32 v%d, 3, v%d" % (t, vL), "v_lshlrev_b32 v%d, 7, v%d" % (t, t), "v_cmp_gt_u32 vcc, 16, v%d" % vL, "v_add_u32 v%d, s%d, v%d" % (t, sT, t),
                "s_nop 0", "v_cndmask_b32 v%d, v%d, v%d, vcc" % (v, t, v)]
    def flagc(v):
        return ["s_lshl_b32 s%d, s2, 2" % sT, "s_add_u32 s%d, s%d, s%d" % (sT, sT, sWv), "s_lshl_b32 s%d, s%d, 7" % (sT, sT), "s_add_u32 s%d, s%d, 0x%x" % (sT, sT, FLAG_OFF),
                "v_min_u32 v%d, 5, v%d" % (v, vL), "v_lshlrev_b32 v%d, 2, v%d" % (v, v), "v_add_u32 v%d, s%d, v%d" % (v, sT, v),
                "s_mov_b64 exec, 64", "v_xor_b32 v%d, 0x200, v%d" % (v, v), "s_mov_b64 exec, -1"]
    def boxaddr(v):
        return ["s_lshl_b32 s%d, s2, 2" % sT, "s_add_u32 s%d, s%d, s%d" % (sT, sT, sWv), "s_lshl_b32 s%d, s%d, 13" % (sT, sT),
                "s_add_u32 s%d, s%d, 0x%x" % (sT, sT, PART_OFF + 3072), "v_add_u32 v%d, s%d, v%d" % (v, sT, vL16)]
    def codepf(lo, hi, t0):
        return ["v_min_u32 v%d, %s-%s-4, v%d" % (t0, hi, lo, vCp), "v_add_u32 v%d, %s-L_pc, v%d" % (t0, lo, t0),
                "v_mov_b32 v%d, s%d" % (t0 + 1, sPC + 1), "v_add_co_u32 v%d, vcc, s%d, v%d" % (t0, sPC, t0), "s_nop 1",
                "v_addc_co_u32 v%d, vcc, 0, v%d, vcc" % (t0 + 1, t0 + 1), "global_load_dword v%d, v[%d:%d], off" % (vDum, t0, t0 + 1)]

    a.lab(NAME + "_kernel")
    a.e(["s_cmp_ge_u32 s2, 256", "s_cbranch_scc1 L_end",
         "s_load_dwordx8 s[4:11], s[0:1], 0", "s_load_dwordx8 s[12:19], s[0:1], 32"])
    stamp(7)
    a.e(["s_getpc_b64 s[%d:%d]" % (sPC, sPC + 1)])
    a.lab("L_pc")
    a.e(["v_and_b32 v%d, 63, v0" % vL, "v_lshrrev_b32 v%d, 6, v0" % vT,
         "s_and_b32 s%d, s2, 7" % sT, "s_lshr_b32 s%d, s2, 3" % sT2,
         "v_readfirstlane_b32 s%d, v%d" % (sWv, vT),
         "v_min_u32 v%d, 2, v%d" % (vCp, vL), "v_lshl_add_u32 v%d, v%d, 2, v%d" % (vCp, vCp, vT), "v_lshlrev_b32 v%d, 5, v%d" % (vCp, vCp),
         "v_add_lshl_u32 v%d, v%d, s%d, 7" % (vCp, vCp, sT2)])
    if O.pf_code: a.e(codepf("L_pc", "L_end", vT))
    a.e(["s_mov_b32 s%d, 0" % sPass,
         "s_and_b32 s%d, s%d, 1" % (sB, sT), "s_lshl_b32 s%d, s%d, 2" % (sB, sB),
         "s_and_b32 s%d, s%d, 3" % (sG, sT2), "s_add_u32 s%d, s%d, s%d" % (sB, sB, sG),
         "s_lshr_b32 s%d, s%d, 1" % (sH, sT), "s_lshl_b32 s%d, s%d, 2" % (sRB, sH), "s_add_u32 s%d, s%d, s%d" % (sRB, sRB, sG), "s_lshl_b32 s%d, s%d, 3" % (sH, sH),
         "s_lshr_b32 s%d, s%d, 2" % (sCT, sT2), "s_add_u32 s%d, s%d, s%d" % (sH, sH, sCT),
         "s_and_b32 s%d, s%d, 1" % (sRH, sWv), "s_lshr_b32 s%d, s%d, 1" % (sKH, sWv)])
    a.e(["s_lshl_b32 s%d, s%d, 15" % (sMX, sKH), "s_mul_i32 s%d, s%d, 7168" % (sT, sRH),
         "s_add_u32 s%d, s%d, s%d" % (sMX, sMX, sT), "s_add_u32 s%d, s%d, 16384" % (sMX, sMX),
         "s_lshl_b32 s%d, s%d, 11" % (sMW, sWv), "s_add_u32 s%d, s%d, 131072" % (sMW, sMW),
         "s_lshl_b32 s%d, s%d, 15" % (sReg, sWv),
         "s_mov_b32 s%d, 458752" % (sX + 2), "s_mov_b32 s%d, 0x20000" % (sX + 3), "s_mov_b32 s%d, 0x20000" % (sW + 3),
         "s_mul_i32 s%d, s%d, 458752" % (sD1, sB), "s_lshl_b32 s%d, s%d, 8" % (sD2, sH), "s_sub_u32 s%d, 0x800000, s%d" % (sW + 2, sD2)])
    def lane_setup():
        o = ["v_lshrrev_b32 v%d, 3, v%d" % (vT, vL), "v_and_b32 v%d, 7, v%d" % (vT2, vL), "v_and_b32 v%d, 6, v%d" % (vT3, vT),
             "v_xor_b32 v%d, v%d, v%d" % (vT3, vT3, vT2), "v_lshlrev_b32 v%d, 4, v%d" % (vT3, vT3),
             "v_lshl_add_u32 v%d, v%d, 11, v%d" % (vX, vT, vT3),
             "s_mul_i32 s%d, s%d, %d" % (sT, sWv, 7 * 16384), "v_add_u32 v%d, s%d, v%d" % (vX, sT, vX)]
        o += ["v_add_u32 v%d, %d, v%d" % (vX + j, j * 16384 - (j & 3) * 1024, vX) for j in range(1, 7)]
        o += ["v_and_b32 v%d, 2, v%d" % (vT3, vT), "v_lshlrev_b32 v%d, 1, v%d" % (vT3, vT3),
              "v_xor_b32 v%d, v%d, v%d" % (vT3, vT3, vT2), "v_lshlrev_b32 v%d, 4, v%d" % (vT3, vT3),
              "v_lshl_add_u32 v%d, v%d, 13, v%d" % (vW, vT, vT3),
              "s_lshl_b32 s%d, s%d, 17" % (sT, sRH), "s_lshl_b32 s%d, s%d, 7" % (sG, sKH), "s_add_u32 s%d, s%d, s%d" % (sT, sT, sG),
              "v_add_u32 v%d, s%d, v%d" % (vW, sT, vW), "v_add_u32 v%d, %d, v%d" % (vW + 1, 8 * 8192 - 1024, vW)]
        return o
    a.e(lane_setup())
    if O.tlb == 2:
        a.e(["s_lshl_b32 s%d, s%d, 5" % (sT, sB), "s_add_u32 s%d, s%d, s%d" % (sT, sT, sH), "s_lshl_b32 s%d, s%d, 18" % (sT, sT),
             "v_mov_b32 v16, s%d" % sT])
    a.e(["s_waitcnt lgkmcnt(0)",
         "s_add_u32 s%d, s%d, s%d" % (sW, pWq, sD2), "s_addc_u32 s%d, s%d, 0" % (sW + 1, pWq + 1),
         "s_add_u32 s%d, s%d, s%d" % (sX, pX, sD1), "s_addc_u32 s%d, s%d, 0" % (sX + 1, pX + 1)])
    if O.tlb == 2:
        def tg(v, p): return "global_load_dword v%d, v%d, s[%d:%d] sc1" % (vDum, v, p, p + 1)
        for w_, ops in enumerate(([tg(16, pK)], [tg(16, pV)])):
            a.e(["s_cmp_lg_u32 s%d, %d" % (sWv, w_), "s_cbranch_scc1 L_tl%d" % w_] + ops + ["L_tl%d:" % w_])
    stamp(4)
    a.lab("L_restart")

    TS_A = ["s_memrealtime s[100:101]"]
    TS_B = ["s_mov_b32 s99, m0", "s_mov_b32 m0, s81", "v_writelane_b32 v0, s100, m0", "s_addk_i32 s81, 1", "s_mov_b32 m0, s99"]
    TS_F = TS_A + ["s_waitcnt lgkmcnt(0)"] + TS_B
    def dmaX(j): return "buffer_load_dwordx4 v%d, s[%d:%d], s%d offen offset:%d %s lds" % (vX + j, sX, sX + 3, sXoff, (j & 3) * 1024, O.xwf)
    def m0X(buf, hi): return "s_add_u32 m0, s%d, %d" % (sMX, buf * 65536 + hi * 4096)
    def dmaW(j): return "buffer_load_dwordx4 v%d, s[%d:%d], s%d offen offset:%d %s lds" % (vW + j, sW, sW + 3, sWoff, j * 1024, O.xwf)
    def m0W(slot): return "s_add_u32 m0, s%d, %d" % (sMW, slot * 8192)
    def ptm0(reg, slot): return "s_add_u32 m0, s%d, %d" % (sMW, (reg * 32768 + slot * 8192 - 131072) & 0xffffffff)
    def ptld(reg): return ["buffer_load_dwordx4 v%d, s[%d:%d], s%d offen offset:%d%s lds" % (vKV + (2 if reg == 3 else 0) + j, sVV if reg & 1 else sKV, (sVV if reg & 1 else sKV) + 3,
                           sK1 if reg >> 1 else sK0, j * 1024, KVF) for j in range(2)]
    incK = ["s_add_u32 s%d, s%d, %d" % (sK0, sK0, TS_), "s_add_u32 s%d, s%d, %d" % (sK1, sK1, TS_)]
    def setK(tile): return ["s_mov_b32 s%d, %d" % (sK0, tile * TS_), "s_mov_b32 s%d, %d" % (sK1, tile * TS_ + KH)]
    PORD = (0, 2, 1, 3)
    def kvtile(slot): return [x for reg in PORD for x in [ptm0(reg, slot), "s_nop 0"] + ptld(reg)] + incK
    sXl, sWl, sOx, sOw = 10, 11, sWo, sK0
    incW = ["s_add_u32 s%d, s%d, 262144" % (sWl, sWl), "s_xor_b32 s%d, s%d, s%d" % (sWoff, sWl, sOw)]
    incX = ["s_add_u32 s%d, s%d, 128" % (sXl, sXl), "s_xor_b32 s%d, s%d, s%d" % (sXoff, sXl, sOx)]

    a.e(["s_mov_b32 s%d, 0" % sXl, "s_mov_b32 s%d, 0" % sWl, "s_xor_b32 s%d, s%d, s%d" % (sT, sB, sH), "s_and_b32 s%d, s%d, %d" % (sT, sT, O.x1mask),
         "s_lshl_b32 s%d, s%d, 19" % (sOw, sT), "s_lshl_b32 s%d, s%d, 7" % (sOx, sT), "s_mov_b32 s%d, s%d" % (sWoff, sOw), "s_mov_b32 s%d, s%d" % (sXoff, sOx)])
    def stage_loads(st):
        return ([m0W(2 * st), "s_nop 0", dmaW(0), dmaW(1), m0X(st, 0)] + incW + [dmaX(j) for j in range(4)] + [m0X(st, 1), "s_nop 0"] + [dmaX(j) for j in range(4, 7)]
                + [m0W(2 * st + 1)] + incX + [dmaW(0), dmaW(1)] + incW)
    a.e(stage_loads(0))
    stamp(4)
    a.e(["v_mov_b32 v%d, 0" % i for i in range(12, 16)])
    su0 = len(a.L)
    a.e(["s_lshl_b32 s%d, s%d, 5" % (sT, sB), "s_add_u32 s%d, s%d, s%d" % (sT, sT, sH), "s_lshl_b32 s%d, s%d, 18" % (sT, sT),
         "s_add_u32 s%d, s%d, s%d" % (sKV, pK, sT), "s_addc_u32 s%d, s%d, 0" % (sKV + 1, pK + 1),
         "s_mov_b32 s%d, 0x40000" % (sKV + 2), "s_mov_b32 s%d, 0x20000" % (sKV + 3),
         "s_add_u32 s%d, s%d, s%d" % (sVV, pV, sT), "s_addc_u32 s%d, s%d, 0" % (sVV + 1, pV + 1),
         "s_mov_b32 s%d, 0x40000" % (sVV + 2), "s_mov_b32 s%d, 0x20000" % (sVV + 3),
         "v_bfe_u32 v%d, v%d, 2, 2" % (vT, vL), "v_lshrrev_b32 v%d, 4, v%d" % (vT2, vL), "v_lshlrev_b32 v%d, 6, v%d" % (vT2, vT2),
         "v_lshl_add_u32 v%d, v%d, 8, v%d" % (vT2, vT, vT2), "v_and_b32 v%d, 3, v%d" % (vT, vL), "v_lshl_add_u32 v%d, v%d, 4, v%d" % (vT2, vT, vT2),
         "s_lshl_b32 s%d, s%d, 5" % (sG, sRH), "v_xor_b32 v%d, s%d, v%d" % (vT2, sG, vT2), "s_lshl_b32 s%d, s%d, 11" % (sG, sWv),
         "v_add_u32 v%d, s%d, v%d" % (vKV, sG, vT2), "v_xor_b32 v%d, 48, v%d" % (vKV + 1, vKV),
         "v_xor_b32 v%d, 0x80, v%d" % (vKV + 2, vKV), "v_xor_b32 v%d, 0x80, v%d" % (vKV + 3, vKV + 1)])
    pPx, pPw = PK + 20, PK + 21
    a.e(["s_mul_i32 s%d, s%d, 14336" % (sT, sH), "s_lshl_b32 s%d, s%d, 12" % (sG, sWv), "s_add_u32 s%d, s%d, s%d" % (sT, sT, sG),
         "v_and_b32 v%d, 31, v%d" % (pPx, vL), "v_lshlrev_b32 v%d, 7, v%d" % (pPx, pPx), "v_add_u32 v%d, s%d, v%d" % (pPx, sT, pPx),
         ] + ([
         "s_and_b32 s%d, s%d, 7" % (sG, sH), "s_lshl_b32 s%d, s%d, 3" % (sT, sB), "s_add_u32 s%d, s%d, s%d" % (sT, sT, sG), "s_lshl_b32 s%d, s%d, 2" % (sT, sT),
         "s_add_u32 s%d, s%d, s%d" % (sT, sT, sWv), "s_lshl_b32 s%d, s%d, 15" % (sT, sT), "s_lshl_b32 s%d, s%d, 8" % (sG, sG), "s_sub_u32 s%d, s%d, s%d" % (sT, sT, sG),
         "v_lshrrev_b32 v%d, 4, v%d" % (pPw, vL), "v_lshlrev_b32 v%d, 13, v%d" % (pPw, pPw),
         "v_and_b32 v%d, 15, v%d" % (vT2, vL), "v_lshl_add_u32 v%d, v%d, 7, v%d" % (pPw, vT2, pPw), "v_add_u32 v%d, s%d, v%d" % (pPw, sT, pPw)] if O.wqc else [
         "s_lshl_b32 s%d, s%d, 2" % (sT, sB), "s_add_u32 s%d, s%d, s%d" % (sT, sT, sWv), "s_lshl_b32 s%d, s%d, 18" % (sT, sT),
         "v_lshrrev_b32 v%d, 1, v%d" % (pPw, vL), "v_lshlrev_b32 v%d, 13, v%d" % (pPw, pPw),
         "v_and_b32 v%d, 1, v%d" % (vT2, vL), "v_lshl_add_u32 v%d, v%d, 7, v%d" % (pPw, vT2, pPw), "v_add_u32 v%d, s%d, v%d" % (pPw, sT, pPw)]))
    pQx, pQw = PK + 22, PK + 23
    if O.splitpf:
        a.e(["v_min_u32 v%d, 10, v%d" % (vT, vL), "s_mul_i32 s%d, s%d, 11" % (sG, sWv), "v_add_u32 v%d, s%d, v%d" % (vT, sG, vT), "v_min_u32 v%d, 41, v%d" % (vT, vT),
             "v_mul_u32_u24 v%d, 43, v%d" % (vT2, vT), "v_lshrrev_b32 v%d, 8, v%d" % (vT2, vT2), "v_mul_u32_u24 v%d, 10, v%d" % (vT2, vT2),
             "v_add_u32 v%d, v%d, v%d" % (vT, vT, vT2), "v_lshlrev_b32 v%d, 7, v%d" % (vT, vT), "s_mul_i32 s%d, s%d, 14336" % (sT, sH), "s_add_u32 s%d, s%d, 256" % (sG, sT),
             "v_add_u32 v%d, s%d, v%d" % (pPx, sG, vT),
             "v_bfe_u32 v%d, v%d, 1, 1" % (vT, vL), "s_lshl_b32 s%d, s%d, 1" % (sG, sWv), "v_add_u32 v%d, s%d, v%d" % (vT, sG, vT), "v_min_u32 v%d, 6, v%d" % (vT, vT),
             "v_and_b32 v%d, 1, v%d" % (vT2, vL), "v_lshlrev_b32 v%d, 7, v%d" % (vT2, vT2), "v_lshl_add_u32 v%d, v%d, 11, v%d" % (vT, vT, vT2),
             "s_add_u32 s%d, s%d, 512" % (sT, sT), "v_add_u32 v%d, s%d, v%d" % (pQx, sT, vT),
             "v_lshrrev_b32 v%d, 1, v%d" % (vT, vL), "v_min_u32 v%d, 11, v%d" % (vT, vT), "v_lshl_add_u32 v%d, v%d, 13, v%d" % (vT, vT, vT2),
             "s_lshl_b32 s%d, s%d, 2" % (sT, sB), "s_add_u32 s%d, s%d, s%d" % (sT, sT, sWv), "s_mul_i32 s%d, s%d, %d" % (sG, sT, 12 * 8192), "s_add_u32 s%d, s%d, %d" % (sG, sG, 128 * 8192),
             "v_add_u32 v%d, s%d, v%d" % (pPw, sG, vT),
             "v_bfe_u32 v%d, v%d, 1, 2" % (vT, vL), "v_lshl_add_u32 v%d, v%d, 13, v%d" % (vT, vT, vT2), "s_lshl_b32 s%d, s%d, 15" % (sT, sT), "s_add_u32 s%d, s%d, %d" % (sT, sT, 8 * 262144),
             "v_add_u32 v%d, s%d, v%d" % (pQw, sT, vT)])
    if O.trimpf:
        a.e(["v_min_u32 v%d, 22, v%d" % (vT, vL), "s_mul_i32 s%d, s%d, 23" % (sG, sWv), "v_add_u32 v%d, s%d, v%d" % (vT, sG, vT), "v_min_u32 v%d, 90, v%d" % (vT, vT),
             "v_mul_u32_u24 v%d, 79, v%d" % (vT2, vT), "v_lshrrev_b32 v%d, 10, v%d" % (vT2, vT2), "v_mul_u32_u24 v%d, 3, v%d" % (vT2, vT2),
             "v_add_u32 v%d, v%d, v%d" % (vT, vT, vT2), "v_lshlrev_b32 v%d, 7, v%d" % (vT, vT), "s_mul_i32 s%d, s%d, 14336" % (sT, sH), "s_add_u32 s%d, s%d, 384" % (sG, sT),
             "v_add_u32 v%d, s%d, v%d" % (pPx, sG, vT),
             "v_and_b32 v%d, 1, v%d" % (vT2, vL), "v_lshlrev_b32 v%d, 7, v%d" % (vT2, vT2),
             "v_lshrrev_b32 v%d, 1, v%d" % (vT, vL), "v_min_u32 v%d, 25, v%d" % (vT, vT), "v_lshl_add_u32 v%d, v%d, 13, v%d" % (vT, vT, vT2),
             "s_lshl_b32 s%d, s%d, 2" % (sT, sB), "s_add_u32 s%d, s%d, s%d" % (sT, sT, sWv), "s_mul_i32 s%d, s%d, %d" % (sG, sT, 26 * 8192), "s_add_u32 s%d, s%d, %d" % (sG, sG, 192 * 8192),
             "v_add_u32 v%d, s%d, v%d" % (pPw, sG, vT)])
    farpf = ["buffer_load_dword v%d, v%d, s[%d:%d], s%d offen" % (vDum, pQx, sX, sX + 3, sXoff), "buffer_load_dword v%d, v%d, s[%d:%d], s%d offen" % (vDum, pQw, sW, sW + 3, sWoff)]
    NE = 5 if O.splitpf else 3
    a.e(["v_lshlrev_b32 v%d, 4, v%d" % (vL16, vL),
         "v_and_b32 v%d, 15, v%d" % (vT, vL), "v_lshrrev_b32 v%d, 4, v%d" % (vT2, vL),
         "v_and_b32 v%d, 6, v%d" % (vT3, vT), "v_xor_b32 v%d, v%d, v%d" % (vT3, vT3, vT2), "v_lshlrev_b32 v%d, 4, v%d" % (vT3, vT3),
         "v_lshl_add_u32 v%d, v%d, 7, v%d" % (vT3, vT, vT3),
         "s_lshl_b32 s%d, s%d, 15" % (sT, sRH), "s_add_u32 s%d, s%d, 16384" % (sT, sT),
         "v_add_u32 v%d, s%d, v%d" % (vXr, sT, vT3), "v_xor_b32 v%d, 64, v%d" % (vXr + 1, vXr),
         "v_add_u32 v%d, 0x10000, v%d" % (vXr + 2, vXr), "v_add_u32 v%d, 0x10000, v%d" % (vXr + 3, vXr + 1)])
    a.e(["v_bfe_u32 v%d, v%d, 2, 2" % (vT, vL), "v_lshl_add_u32 v%d, v%d, 3, v%d" % (vT, vT2, vT),
         "v_and_b32 v%d, 2, v%d" % (vT3, vT), "v_lshlrev_b32 v%d, 1, v%d" % (vT3, vT3),
         "v_and_b32 v%d, 3, v%d" % (vT2, vL), "v_xor_b32 v%d, v%d, v%d" % (vT3, vT3, vT2), "v_lshlrev_b32 v%d, 4, v%d" % (vT3, vT3),
         "v_lshl_add_u32 v%d, v%d, 7, v%d" % (vT3, vT, vT3),
         "s_lshl_b32 s%d, s%d, 12" % (sT, sKH), "s_add_u32 s%d, s%d, 131072" % (sT, sT),
         "v_add_u32 v%d, s%d, v%d" % (vWr, sT, vT3), "v_xor_b32 v%d, 64, v%d" % (vWr + 1, vWr)])
    a.e(["s_mul_i32 s%d, s%d, 14" % (sT, sB), "s_mul_i32 s%d, s%d, 7" % (sG, sRH), "s_add_u32 s%d, s%d, s%d" % (sT, sT, sG),
         "s_lshl_b32 s%d, s%d, 7" % (sT, sT), "s_lshl_b32 s%d, s%d, 2" % (sG, sH), "s_add_u32 s%d, s%d, s%d" % (sT, sT, sG),
         "s_lshl_b32 s%d, s%d, 1" % (sG, sKH), "s_add_u32 s%d, s%d, s%d" % (sT, sT, sG), "s_lshl_b32 s%d, s%d, 10" % (sT, sT),
         "s_add_u32 s%d, s%d, s%d" % (sO, pWs, sT), "s_addc_u32 s%d, s%d, 0" % (sO + 1, pWs + 1),
         "s_mov_b32 s%d, %d" % (sO + 2, 6 * 131072 + 2048), "s_mov_b32 s%d, 0x20000" % (sO + 3),
         "s_mov_b32 s%d, 0x%x" % (sC, CSCALE), "s_mov_b32 s%d, 0x%x" % (sC + 1, CSCALE),
         "s_and_b32 s%d, s%d, 4" % (sPm, sB), "s_add_u32 s%d, s%d, s%d" % (sPm, sPm, sWv),
         "s_mul_i32 s%d, s%d, %d" % (sT, sRB, 7 * 131072), "s_lshl_b32 s%d, s%d, 14" % (sG, sPm), "s_add_u32 s%d, s%d, s%d" % (sT, sT, sG),
         "s_add_u32 s%d, s%d, s%d" % (sOs, pWs, sT), "s_addc_u32 s%d, s%d, 0" % (sOs + 1, pWs + 1),
         "s_mov_b32 s%d, %d" % (sOs + 2, 6 * 131072 + 16384), "s_mov_b32 s%d, 0x20000" % (sOs + 3),
         "s_lshl_b32 s%d, s%d, 20" % (sT, sPm), "s_lshl_b32 s%d, s%d, 8" % (sG, sCT), "s_add_u32 s%d, s%d, s%d" % (sT, sT, sG),
         "s_add_u32 s%d, s%d, s%d" % (sWs, pWo, sT), "s_addc_u32 s%d, s%d, 0" % (sWs + 1, pWo + 1),
         "s_sub_u32 s%d, 0x100000, s%d" % (sWs + 2, sG), "s_mov_b32 s%d, 0x20000" % (sWs + 3),
         "s_mul_i32 s%d, s%d, %d" % (sT, sRB, 112 * 2048), "s_add_u32 s%d, s%d, s%d" % (sOut, pOut, sT), "s_addc_u32 s%d, s%d, 0" % (sOut + 1, pOut + 1),
         "s_mov_b32 s%d, %d" % (sOut + 2, 112 * 2048), "s_mov_b32 s%d, 0x20000" % (sOut + 3),
         "s_xor_b32 s%d, s%d, 0x10000" % (sRing, sReg),
         "s_lshl_b32 s%d, s%d, 13" % (sSp, sWv), "s_add_u32 s%d, s%d, 131072" % (sSp, sSp),
         "s_sub_u32 s%d, s%d, s%d" % (sD1, sSp, sReg), "s_sub_u32 s%d, s%d, s%d" % (sD2, sRing, sSp)])
    for rt in range(7): a.e("s_mov_b32 s%d, %d" % (sRt + rt, rt * 131072))
    pKr, pVr, pK0, pD, pR, pQ, pFp, pFc, pWoP, pCp = PK, PK + 1, PK + 3, PK + 4, PK + 8, PK + 10, PK + 12, PK + 13, PK + 14, PK + 16
    a.e(flagp(pFp, vT2) + flagc(pFc))
    a.e(["v_bfe_u32 v%d, v%d, 2, 2" % (vT, vL), "v_sub_u32 v%d, 0, v%d" % (vT2, vT), "v_lshrrev_b32 v%d, 4, v%d" % (vT3, vL),
         "v_xor_b32 v%d, v%d, v%d" % (vT2, vT2, vT3), "v_and_b32 v%d, 3, v%d" % (vT2, vT2), "v_lshlrev_b32 v%d, 4, v%d" % (vT2, vT2),
         "v_lshl_add_u32 v%d, v%d, 10, v%d" % (vT2, vT, vT2), "v_and_b32 v%d, 3, v%d" % (pK0, vL), "v_lshlrev_b32 v%d, 6, v%d" % (pK0, pK0),
         "s_lshl_b32 s%d, s%d, 16" % (sG, sKH), "v_add3_u32 v%d, v%d, v%d, s%d" % (pKr, pK0, vT2, sG),
         "v_lshl_add_u32 v%d, v%d, 4, v%d" % (pK0, vT3, pK0),
         "v_sub_u32 v%d, 0, v%d" % (vT2, vT3), "v_bfe_u32 v%d, v%d, 1, 1" % (pVr + 1, vL), "v_xor_b32 v%d, v%d, v%d" % (vT2, vT2, pVr + 1),
         "v_and_b32 v%d, 3, v%d" % (vT2, vT2), "v_lshlrev_b32 v%d, 4, v%d" % (vT2, vT2),
         "v_lshl_add_u32 v%d, v%d, 10, v%d" % (vT2, vT3, vT2), "v_lshl_add_u32 v%d, v%d, 6, v%d" % (vT2, vT, vT2),
         "v_and_b32 v%d, 1, v%d" % (pVr + 1, vL), "v_lshl_add_u32 v%d, v%d, 3, v%d" % (vT2, pVr + 1, vT2),
         "s_add_u32 s%d, s%d, 32768" % (sG, sG), "v_add_u32 v%d, s%d, v%d" % (pVr, sG, vT2), "v_xor_b32 v%d, 32, v%d" % (pVr + 1, pVr),
         "v_add_u32 v%d, s%d, v%d" % (pR, sReg, vT2), "v_xor_b32 v%d, 32, v%d" % (pR + 1, pR),
         "v_lshlrev_b32 v%d, 6, v%d" % (vT2, vT3), "v_lshl_add_u32 v%d, v%d, 11, v%d" % (vT2, vT, vT2), "v_and_b32 v%d, 3, v%d" % (vT, vL),
         "v_lshl_add_u32 v%d, v%d, 4, v%d" % (vT2, vT, vT2), "s_lshl_b32 s%d, s%d, 5" % (sT, sPm), "v_xor_b32 v%d, s%d, v%d" % (pD, sT, vT2)])
    for j in range(1, 4): a.e(["v_xor_b32 v%d, %d, v%d" % (pD + j, ((-j) & 3) * 16, pD), "v_add_u32 v%d, %d, v%d" % (pD + j, j * (8192 - 1024), pD + j)])
    a.e(["v_add_u32 v%d, s%d, v%d" % (pQ, sMW, vL16), "s_lshl_b32 s%d, s%d, 11" % (sT, sRH), "s_add_u32 s%d, s%d, 131072" % (sT, sT), "v_add_u32 v%d, s%d, v%d" % (pQ + 1, sT, vL16),
         "s_lshl_b32 s%d, s2, 2" % sT, "s_add_u32 s%d, s%d, s%d" % (sT, sT, sWv), "s_lshl_b32 s%d, s%d, 13" % (sT, sT),
         "v_lshlrev_b32 v%d, 7, v%d" % (pWoP, vL), "v_add_u32 v%d, s%d, v%d" % (pWoP, sT, pWoP),
         "s_lshl_b32 s%d, s%d, 1" % (sOf, sRB), "s_xor_b32 s%d, s%d, s%d" % (sOf, sOf, sCT), "s_and_b32 s%d, s%d, %d" % (sOf, sOf, O.x3mask), "s_lshl_b32 s%d, s%d, 16" % (sOf, sOf)])
    cp2 = codepf("L_tr", "L_epi", pCp)
    a.e(cp2[:-1])
    a.e([
         "s_lshl_b32 s%d, s2, 15" % sT, "s_lshl_b32 s%d, s%d, 10" % (sG, sWv), "s_add_u32 s%d, s%d, s%d" % (sT, sT, sG),
         "v_and_b32 v%d, 7, v%d" % (vT3, vL), "v_lshlrev_b32 v%d, 7, v%d" % (vT3, vT3), "v_add_u32 v%d, s%d, v%d" % (vT3, sT, vT3), "s_mov_b32 s%d, 0" % sP])
    kvpf = "global_load_dword v%d, v%d, s[%d:%d]" % (vDum, vT3, pWo, pWo + 1)
    zs = [zero16(vr(ACC + 16 * i, 16)) for i in range(7)] + [zero16(vr(OK + 16 * i, 16)) for i in range(2, 7)] + [zero16(ar(aO + 16 * i, 16)) for i in range(4)]
    seg = a.L[su0:]; del a.L[su0:]
    for i_, ln in enumerate(seg):
        if i_ % 7 == 3 and zs: a.e(zs.pop(0))
        a.L.append(ln)
    assert not zs and not any("exec" in ln for ln in seg[:120])
    NT = 0
    if O.tlb == 1:
        pTl, pBx = PK + 24, PK + 25
        def tch(srd): return "buffer_load_dword v%d, v%d, s[%d:%d], 0 offen sc1" % (vDum, pTl, srd, srd + 3)
        def tcg(v): return "global_load_dword v%d, v%d, s[%d:%d] sc1" % (vDum, v, pWs, pWs + 1)
        a.e(["v_lshlrev_b32 v%d, 19, v%d" % (pTl, vL)] + boxaddr(pBx)[:-1] + ["v_mov_b32 v%d, s%d" % (pBx, sT), tch(sWs)])
        for w_, ops in enumerate(([tch(sKV), tch(sVV)], [tch(sO), tch(sOs)], [tch(sOut), tch(sW)], [tcg(pFc), tcg(pBx)])):
            a.e(["s_cmp_lg_u32 s%d, %d" % (sWv, w_), "s_cbranch_scc1 L_tl%d" % w_] + ops + ["L_tl%d:" % w_])
        NT = 3
    late = stage_loads(1) + ["buffer_load_dword v%d, v%d, s[%d:%d], 0 offen" % (vDum, pPx, sX, sX + 3), "buffer_load_dword v%d, v%d, s[%d:%d], 0 offen" % (vDum, pPw, sW, sW + 3),
                              kvpf if O.wo_at != 0 else "global_load_dword v%d, v%d, s[%d:%d]" % (vDum, pWoP, pWo, pWo + 1)] + (farpf if O.splitpf else [])
    def kvb(v, off): return "global_load_lds_dwordx4 v%d, s[4:5] offset:%d%s" % (v, off, KVF)
    kvq = ["s_cmp_lt_u32 s%d, 4" % sP, "s_cselect_b32 s4, s%d, s%d" % (sKV, sVV), "s_cselect_b32 s5, s%d, s%d" % (sKV + 1, sVV + 1),
           "s_and_b32 s%d, s%d, 1" % (sT, sP), "s_and_b32 s%d, s%d, 2" % (sG, sP), "s_lshl_b32 s%d, s%d, 12" % (sG, sG),
           "s_lshl_b32 s%d, s%d, 16" % (sT2, sT), "s_add_u32 s%d, s%d, s%d" % (sT2, sT2, sG), "s_mul_i32 s%d, s%d, %d" % (sT, sT, KH),
           "s_mul_i32 s%d, s%d, %d" % (sG, sG, TS_ // 8192), "s_add_u32 s%d, s%d, s%d" % (sT, sT, sG),
           "v_add_u32 v%d, s%d, v%d" % (vT, sT, vKV), "v_add_u32 v%d, s%d, v%d" % (vT2, sT, vKV + 1),
           "s_and_b32 s%d, s%d, 4" % (sG, sP), "s_lshl_b32 s%d, s%d, 13" % (sG, sG), "s_add_u32 s%d, s%d, s%d" % (sT2, sT2, sG),
           "s_and_b32 s%d, s%d, 5" % (sT, sP), "s_cmp_eq_u32 s%d, 5" % sT, "s_cselect_b32 s%d, 128, 0" % sT,
           "v_xor_b32 v%d, s%d, v%d" % (vT, sT, vT), "v_xor_b32 v%d, s%d, v%d" % (vT2, sT, vT2),
           "s_add_u32 s%d, s%d, s%d" % (sT2, sT2, sMW), "s_add_u32 s%d, s%d, 1" % (sP, sP)]
    kvq_m0 = "s_sub_u32 m0, s%d, 0x20000" % sT2

    def wreg(k): return {30: 192, 31: 208}.get(k, aWF + 16 * (k & 1))
    def xreg(k, rt): return 16 * rt + 4 * (k & 3)
    def rdW(k):
        out = []
        for dt in range(4):
            dp, t = dt >> 1, dt & 1
            for sec in range(2):
                out.append("ds_read_b64_tr_b16 %s, v%d offset:%d" % (ar(wreg(k) + 4 * dt + 2 * sec, 2), vWr + dp, (k & 3) * 8192 + sec * 512 + t * 8))
        return out
    def rdX1(s, kk, rt): return "ds_read_b128 %s, v%d offset:%d" % (ar(xreg(2 * s + kk, rt), 4), vXr + 2 * (s & 1) + kk, rt * 2048)
    def rdX(s): return [rdX1(s, kk, rt) for kk in range(2) for rt in range(7)]
    def A(rt, k): return [mfma(vr(ACC + 16 * rt + 4 * dt, 4), ar(wreg(k) + 4 * dt, 4), ar(xreg(k, rt), 4), vr(ACC + 16 * rt + 4 * dt, 4)) for dt in range(4)]
    if O.mixl:
        seg = a.L[su0:]; del a.L[su0:]
        st0 = len(seg) * O.mixl // 100
        grp = []; cur = []
        for x in late[:-3]:
            cur.append(x)
            if x.startswith("buffer_load"): grp.append(cur); cur = []
        grp[-1] += cur
        gi = 0
        for i_, ln in enumerate(seg):
            if i_ >= st0 and gi < len(grp) and (i_ - st0) * len(grp) >= gi * (len(seg) - st0) and not ln.strip().startswith(("s_addc", "s_cselect", "v_xor_b32 v%d, 0x200" % pFc, "s_mov_b64 exec")):
                a.e(grp[gi]); gi += 1
            a.L.append(ln)
        assert gi == len(grp)
        late = late[-3:]
    stamp(4)
    if not O.rd_first: a.e(late)
    a.e(["s_waitcnt vmcnt(%d)" % (2 + NT if O.rd_first else 13 + NE + NT), "s_barrier"])
    stamp(4)
    if O.ts: a.e(["s_mov_b32 s81, 0"] + TS_F)
    a.e(rdW(0) + rdX(0))
    if O.rd_first: a.e(late)
    a.e(["s_mov_b32 s%d, 7" % sCnt, "s_waitcnt vmcnt(%d) lgkmcnt(0)" % (11 + NE + NT), "s_barrier"])

    wopf = "global_load_dword v%d, v%d, s[%d:%d]" % (vDum, pWoP, pWo, pWo + 1)
    addr28 = ["v_mov_b32 v%d, v%d" % (240 + i, PK + i) for i in range(8)] + ["v_mov_b32 v%d, v%d" % (vR + i, pR + i) for i in range(2)]
    addr28 += ["v_mov_b32 v%d, v%d" % (vQw + i, pQ + i) for i in range(2)] + setK(2)

    def p1_kstep(km, mode, ctl=False):
        sp, kk = km >> 1, km & 1
        mf = [m_ for rt in range(7) for m_ in A(rt, km)]
        gaps = [[] for _ in range(28)]
        rd = rdW(km + 1)
        if kk == 1: rd += rdX(sp + 1)
        dm = []; nxe = O.nxe; tailops = []
        if mode == "loop":
            def xs(js):
                r = []
                for j in js:
                    if j == 4 and j != js[0]: r += [m0X(sp, 1)]
                    r.append(dmaX(j))
                return r
            if kk == 0: dm += [m0W(km), dmaW(0), dmaW(1), m0X(sp, 0)] + incW + xs(list(range(nxe)))
            else:
                if nxe < 7: dm += ([m0X(sp, 1)] if nxe == 4 else []) + xs(list(range(nxe, 7)))
                dm += [m0W(km)] + incX + [dmaW(0), dmaW(1)] + incW
                if km == 3:
                    dm += [kvq_m0]; tailops = [kvb(vT, 0), kvb(vT2, 1024), kvpf] + (farpf if O.splitpf else [])
            endw = "s_waitcnt vmcnt(%d) lgkmcnt(0)" % ((4 + nxe + (NE if km == 0 else 0)) if kk == 0 else 11 + NE)
        elif mode == 28:
            endw = "s_waitcnt vmcnt(%d) lgkmcnt(0)" % (NE + 2)
        for g, x in enumerate(rd): gaps[g].append(x)
        def place(items, lo, hi):
            g_ = lo
            for y in items:
                if y.startswith("global_load"): g_ = min(g_ + 1, hi); gaps[g_].insert(0, y); continue
                while g_ < hi and len(gaps[g_]) >= 2: g_ += 1
                gaps[g_].append(y)
        nld = sum(1 for x in dm if x.startswith("buffer_load"))
        if nld:
            pos = [1 + (i * O.p1_span) // nld for i in range(nld)]
            li = 0; pend = []; prev = -1
            for x in dm:
                if x.startswith("buffer_load"):
                    place(pend, max(prev, 0), pos[li] - 1); pend = []
                    gaps[pos[li]].insert(0, x); prev = pos[li]; li += 1
                else: pend.append(x)
            place(pend, prev, 25)
        if tailops: assert not gaps[24] and not gaps[25] and not any("m0" in y or "s%d," % sWoff in y for y in gaps[23]), gaps[22:]
        for i_, x in enumerate(tailops): gaps[23 + min(i_, (i_ + 1) // 2)].append(x) if i_ else gaps[23].insert(0, x)
        if mode == "loop" and km == 2: place(kvq + (["v_add_u32 v%d, 4096, v%d" % (vT3, vT3)] if O.wo_at == 1 else []), 8, 25)
        if mode == 28:
            place(kvq + [kvq_m0], 0, 15); gaps[16].insert(0, kvb(vT, 0)); gaps[17].insert(0, kvb(vT2, 1024)); place(addr28, 18, 25)
        if endw: gaps[26].append(endw); gaps[27].append("s_barrier")
        if O.ts and km in (0, 2): gaps[22] += TS_A; gaps[27] += TS_B
        if ctl:
            gaps[25].append("s_sub_u32 s%d, s%d, 1" % (sCnt, sCnt)); gaps[26].append("s_cmp_lg_u32 s%d, 0" % sCnt)
        weave(a, mf, gaps)
    stamp(4)
    a.raw(".p2align 5")
    a.lab("L_p1")
    for km in range(4): p1_kstep(km, "loop", ctl=(km == 3))
    a.e("s_cbranch_scc1 L_p1")
    p1_kstep(0, 28)
    stamp(4)
    a.lab("L_tr")
    a.e(["s_cmp_lg_u32 s%d, 0" % sPass, "s_cbranch_scc1 L_nofl",
         "global_load_dword v%d, v%d, s[%d:%d] sc1" % (vFc, pFc, pWs, pWs + 1),
         "s_cmp_lg_u32 s%d, 0" % sWv, "s_cbranch_scc1 L_nofl",
         "global_load_dword v%d, v%d, s[%d:%d] sc1" % (vFo, pFp, pWs, pWs + 1)])
    a.lab("L_nofl")
    def ismem(x): return x.startswith(("ds_", "buffer_", "global_", "s_barrier"))
    def spread(mf, side, lo=0, hi=None):
        n = len(mf); hi = n - 1 if hi is None else hi
        gaps = [[] for _ in range(n)]
        g = lo
        if any(isinstance(x, list) for x in side):
            n0 = [isinstance(x, list) for x in side].index(True)
            pre = side[:n0]
            gaps[lo] += pre[:-5]; gaps[lo + 1] += pre[-5:] + side[n0]
            side = side[n0 + 1:]; lo += 2; g = lo
        for i_, x in enumerate(side):
            g = max(g, lo + (i_ * (hi - lo + 1)) // len(side))
            if ismem(x) and any(y.startswith("v_") for y in gaps[g]) and g < hi: g += 1
            gaps[g].append(x)
        weave(a, mf, gaps)
    def rdK(i, slot):
        t, ks = i & 1, i >> 1
        return "ds_read_b128 %s, v%d offset:%d" % (ar(aK + 16 * t + 4 * ks, 4), vKr, slot * 8192 + t * 4096 + ks * 256)
    def xlane(op, regs_, tmp):
        out = []
        for sw in ("v_permlane32_swap_b32", "v_permlane16_swap_b32"):
            out += ["v_mov_b32 v%d, v%d" % (t_, r_) for r_, t_ in zip(regs_, tmp)]
            out += ["%s v%d, v%d" % (sw, r_, t_) for r_, t_ in zip(regs_, tmp)]
            out += ["%s v%d, v%d, v%d" % (op, r_, r_, t_) for r_, t_ in zip(regs_, tmp)]
        return out
    def qk(rt, sb):
        out = []
        for i in range(8):
            t, ks = i & 1, i >> 1
            d = vr(S + 8 * sb + 4 * t, 4)
            out.append(mfma(d, ar(aK + 16 * t + 4 * ks, 4), ar(aQ + 16 * rt + 4 * ks, 4), vr(M + 4 * rt, 4) if ks == 0 else d))
        return out
    def oacc(rt, i): return vr(OK + 16 * rt + 4 * i, 4) if i < 4 else ar(aO + 16 * rt + 4 * (i - 4), 4)
    def pv(rt, pb): return [mfma(oacc(rt, i), vr(V + 4 * i, 4), vr(P + 4 * pb, 4), oacc(rt, i)) for i in range(8)]
    aK0 = 176
    def Bq(rt):
        o = []
        if O.pkg & 2: o.append(["v_pk_mul_f32 %s, %s, s[%d:%d]" % (vr(ACC + 16 * rt + 2 * i, 2), vr(ACC + 16 * rt + 2 * i, 2), sC, sC + 1) for i in range(8)])
        for dp in range(2):
            b = ACC + 16 * rt + 8 * dp
            for i in range(4):
                if not O.pkg & 2: o += ["v_mul_f32 v%d, s%d, v%d" % (b + 2 * i, sC, b + 2 * i), "v_mul_f32 v%d, s%d, v%d" % (b + 2 * i + 1, sC, b + 2 * i + 1)]
                o.append("v_cvt_pk_bf16_f32 v%d, v%d, v%d" % (b + i, b + 2 * i, b + 2 * i + 1))
            if dp == 0: o.append("s_waitcnt lgkmcnt(0)")
            o.append("ds_write_b128 v%d, %s offset:%d" % (vQw, vr(b, 4), (rt & 3) * 8192 + dp * 1024))
        return o
    def Cq(rt): return ["ds_read_b128 %s, v%d offset:%d" % (ar(aQ + 16 * rt + 4 * ks, 4), vQr, (rt & 3) * 8192 + (ks >> 1) * 4096 + (ks & 1) * 1024) for ks in range(4)]
    def PP(rt): return [mfma(vr(M + 4 * rt, 4), ar(aK0 + 4 * ks, 4), ar(aQ + 16 * rt + 4 * ks, 4), "0" if ks == 0 else vr(M + 4 * rt, 4)) for ks in range(4)]
    def Dq(rt):
        b = M + 4 * rt
        return ["v_max3_f32 v%d, v%d, v%d, v%d" % (b, b, b + 1, b + 2), "v_max_f32 v%d, v%d, v%d" % (b, b, b + 3)] + ["v_sub_f32 v%d, 0, v%d" % (b + i, b) for i in (1, 2, 3, 0)]
    sync = ["s_waitcnt lgkmcnt(0)", "s_barrier"]
    kvs = [[ptm0(reg, sl), "s_nop 0"] + ptld(reg) + (incK if reg == 3 else []) for sl in (2, 3) for reg in PORD]
    if O.t3late: kvs = [kvs[0], [], kvs[1], [], kvs[2], [], kvs[3], []]
    pfs = ([cp2[-1]] if O.pf_code else []) + ([wopf] if O.wo_at == 29 else [])
    t1 = rdW(30) + [rdX1(15, 0, 0)] + rdW(31) + [rdX1(15, 1, 0)] + [rdX1(15, kk, rt) for rt in range(1, 7) for kk in range(2)]
    spread([m_ for rt in range(5) for m_ in A(rt, 29)], t1 + pfs + sync, 0, 19)
    stamp(1)
    for i in range(8):
        mf = (A(i, 30) + A(i, 31) if i < 7 else qk(0, 0)) + (A(5 + i, 29) if i < 2 else PP(i - 2))
        side = []
        if i == 0: mf += [zero16(vr(OK, 16)), zero16(vr(OK + 16, 16))]
        if i == 0: side += ["ds_read_b128 %s, v%d offset:%d" % (ar(aK0 + 4 * ks, 4), vK0, ks * 256) for ks in range(4)]
        bq = Bq(i - 1) if i >= 1 else []
        nb = O.nb if i >= 2 else 0
        if nb:
            bq = [x for x in bq if not x.startswith("s_waitcnt")]
            w0 = [x for x in bq if x.startswith("ds_write")][0]; bq.remove(w0)
            bq = bq[:18] + ["s_waitcnt lgkmcnt(0)", w0] + bq[18:]
        side += bq[:nb]
        if i >= 2: side += sync + Cq(i - 2)
        if i in (3, 4): side += [rdK(j, 0) for j in range(4 * (i - 3), 4 * (i - 2))]
        side += bq[nb:]
        if i >= 3: side += Dq(i - 3)
        if i == 7: side += ["v_mov_b32 v%d, 0" % j for j in range(L, L + 4)] + ["s_mov_b32 s%d, 3" % sCnt]
        side += kvs[i]
        spread(mf, side)
    if O.ts: a.e(TS_F)
    a.e(["s_cmp_lg_u32 s%d, 0" % sPass, "s_cbranch_scc1 L_maxpass"])
    stamp(1)
    NA = 0

    def dma3(j): return "buffer_load_dwordx4 v%d, s[%d:%d], s%d offen offset:%d %s lds" % (vD + j, sWs, sWs + 3, sWo, j * 1024, O.w3f)
    def setWo(u): return "s_xor_b32 s%d, s%d, 0x%x" % (sWo, sOf, u * 32768)
    def wset(n): return (0, 32, 64, 224)[n & 3]
    def rd3(k, off, dts=range(8)):
        return ["ds_read_b64_tr_b16 %s, v%d offset:%d" % (ar(wset(k) + 4 * dt + 2 * sec, 2), vR + (dt & 1), off + (dt >> 1) * 256 + sec * 4096) for dt in dts for sec in range(2)]
    def xw(rt): return ["ds_write_b128 v%d, %s offset:%d" % (vTa, ar(aO + 16 * rt + 4 * i, 4), rt * 4096 + i * 1024) for i in range(4)]
    vm = VM(["kv"])
    sDyn, sDd = 10, 11
    KV = " ;kv"
    def dm0(reg): return "s_add_u32 m0, s%d, %d" % (sDyn, reg * 32768)
    incD = incK + ["s_add_u32 s%d, s%d, 8192" % (sDyn, sDyn), "s_and_b32 s%d, s%d, 0x7fff" % (sDyn, sDyn)]
    initD = ["s_sub_u32 s%d, s%d, 0x20000" % (sDyn, sMW), "s_mov_b32 s%d, %d" % (sDd, O.th)]
    vFp, vFa = 239, 252
    def loff(rt): return 28672 + (rt & 3) * 4 + (rt >> 2) * 1024
    def lw(rt): return "ds_write_b32 v%d, v%d offset:%d" % (vTa, L + rt, loff(rt))
    def rdc(rt, pb): return ["ds_read_b32 v%d, v%d offset:%d" % (E2 + 2 + (rt & 1), vTb, loff(rt))] + ["ds_read_b128 %s, v%d offset:%d" % (vr(pb + 4 * i, 4), vTb, (rt * 4 + i) * 1024) for i in range(4)]
    def comb(rt, pb):
        ob = OK + 16 * rt; t = E2 + 2 + (rt & 1)
        return (["v_add_f32 v%d, v%d, v%d" % (t, t, L + rt), "v_rcp_f32 v%d, v%d" % (t, t)] + ["v_add_f32 v%d, v%d, v%d" % (ob + i, ob + i, pb + i) for i in range(16)]
                + [x for i in range(8) for x in ("v_mul_f32 v%d, v%d, v%d" % (ob + 2 * i, ob + 2 * i, t), "v_mul_f32 v%d, v%d, v%d" % (ob + 2 * i + 1, ob + 2 * i + 1, t),
                                                 "v_cvt_pk_bf16_f32 v%d, v%d, v%d" % (ob + i, ob + 2 * i, ob + 2 * i + 1))])
    def combp(rt, pb):
        ob = OK + 16 * rt; t = E2 + 2
        o = ["v_add_f32 v%d, v%d, v%d" % (t + (rt & 1), t + (rt & 1), L + rt), "v_rcp_f32 v%d, v%d" % (t + (rt & 1), t + (rt & 1))]
        o += ["v_pk_add_f32 %s, %s, %s" % (vr(ob + 2 * i, 2), vr(ob + 2 * i, 2), vr(pb + 2 * i, 2)) for i in range(8)]
        o += ["v_pk_mul_f32 %s, %s, %s %s" % (vr(ob + 2 * i, 2), vr(ob + 2 * i, 2), vr(t, 2), "op_sel:[0,1]" if rt & 1 else "op_sel_hi:[1,0]") for i in range(8)]
        return o + ["v_cvt_pk_bf16_f32 v%d, v%d, v%d" % (ob + i, ob + 2 * i, ob + 2 * i + 1) for i in range(8)]
    def ost(rt): return ["buffer_store_dwordx4 %s, v%d, s[%d:%d], s%d offen offset:%d sc1" % (vr(OK + 16 * rt + 4 * p, 4), vL16, sO, sO + 3, sRt + rt, p * 1024) for p in range(2)]
    pend = []; cost = [0]
    def step(js, r, last=False, first=False, kv=False, ctl=False):
        u = 7 * js + r
        fin = last and js == 3
        mf = ([] if (fin and r == 6) else qk((r + 1) % 7, (u + 1) & 1)) + pv((r + 6) % 7, (u + 1) & 1)
        mem = [[] for _ in range(16)]; val = [[] for _ in range(16)]
        pk = not fin and not (first and r == 0)
        Eb = E2 if (pk and u & 1) else E
        for e in range(8):
            val[2 * e].append("v_exp_f32 v%d, v%d" % (Eb + e, S + 8 * (u & 1) + e))
            if not pk: val[2 * e + 1].append("v_add_f32 v%d, v%d, v%d" % (L + r, L + r, Eb + e))
            if e & 1: val[2 * e + 1].append("v_cvt_pk_bf16_f32 v%d, v%d, v%d" % (P + 4 * (u & 1) + (e >> 1), Eb + e - 1, Eb + e))
        if first and r == 0:
            mf = mf[:8] + PP(6) + [zero16(ar(192, 16)), zero16(ar(208, 16))]
            mem[0] += sync + Cq(6)[:2]; mem[1] += Cq(6)[2:]; mem[7].append("s_waitcnt lgkmcnt(0)")
            for i_, x in enumerate(Dq(5)): val[3 + 2 * i_].append(x)
        if first and r == 1:
            for i_, x in enumerate(Dq(6) + ["v_mov_b32 v%d, 0" % j for j in range(L + 4, L + 7)]): val[1 + 4 * (i_ % 4)].append(x) if i_ >= 6 else val[1 + 2 * i_].append(x)
        if first and r == 2: mem[9].append(zero16(ar(176, 16)))
        if first and r == 3: mem[1].append(initD[0]); mem[5].append(initD[1])
        if O.tlb2 and first and r == 2:
            val[1] += ["v_lshlrev_b32 v250, 19, v%d" % vL] + boxaddr(251)[:2]; val[3] += boxaddr(251)[2:4]; val[5] += ["v_mov_b32 v251, s%d" % sT]
        if O.tlb2 and first and r == 3:
            for i_, srd in enumerate((sO, sOs, sOut)): mem[7 + 2 * i_].append("buffer_load_dword v%d, v250, s[%d:%d], 0 offen sc1" % (vDum, srd, srd + 3))
            mem[13].append("global_load_dword v%d, v251, s[%d:%d] sc1" % (vDum, pWs, pWs + 1))
        if O.pf3 and first and r == 4:
            for i_, x in enumerate(codepf("L_last", "L_go", 250)[:-1]): val[1 + 2 * i_].append(x)
        if O.pf3 and not first and not last and js == O.pf3 % 4 and r == 1: mem[9].append(codepf("L_last", "L_go", 250)[-1])
        vrd = ["ds_read_b64_tr_b16 %s, v%d offset:%d" % (vr(V + 4 * i + 2 * sec, 2), vVr + (i & 1), js * 8192 + (i >> 1) * 256 + sec * 4096) for i in range(8) for sec in range(2)]
        if not fin and not first:
            if r == 0: mem[9] += vrd[0:3]; mem[11] += vrd[3:5]; mem[13] += vrd[5:8]; mem[15] += vrd[8:10]
            if r == 1:
                mem[1] += vrd[10:12]; mem[3] += vrd[12:14]; mem[5] += vrd[14:16]
                mem[7].append("s_waitcnt lgkmcnt(4)"); mem[13].append("s_waitcnt lgkmcnt(0)")
        else:
            if r == 0:
                for i in range(16): mem[8 + i // 2].append(vrd[i])
            if r == 1: mem[5].append("s_waitcnt lgkmcnt(%d)" % (5 if fin else 0))
        if r == 5 and not fin: mem[0].append("s_barrier")
        if r == 4 and not last: mem[13] += ["s_getreg_b32 s%d, hwreg(HW_REG_IB_STS, 0, 4)" % sT2]; mem[15].append("s_waitcnt vmcnt(8)")
        if r == 4 and ctl: mem[9].append("s_sub_u32 s%d, s%d, 1" % (sCnt, sCnt)); mem[11].append("s_cmp_lg_u32 s%d, 0" % sCnt)
        if kv:
            pts = [tuple(int(y) for y in x.split(".")) for x in O.pts.split(",")]
            pos = [((pr_ - 5) % 7) * 16 + pg_ for pr_, pg_ in pts]
            here = ((r - 5) % 7) * 16
            def put(p_, xs):
                if here <= p_ < here + 16: mem[p_ - here] += [x + KV for x in xs]
            for n_ in range(4):
                put(pos[n_] - 2, [dm0(PORD[n_])]); put(pos[n_], ptld(PORD[n_]))
            put(pos[3] + 2, incD[0:2]); put(pos[3] + 4, incD[2:4])
        if last:
            sched = [{(0, 6): 0, (1, 1): 6, (1, 3): 1, (1, 6): 7, (2, 0): 2, (2, 2): 3, (2, 5): 4, (3, 0): 5},
                     {(1, 1): 0, (1, 3): 1, (1, 6): 6, (2, 1): 2, (2, 2): 3, (2, 6): 4, (3, 0): 5, (3, 1): 7},
                     {(1, 2): 0, (1, 3): 1, (1, 6): 6, (2, 0): 7, (2, 2): 2, (2, 4): 3, (2, 6): 4, (3, 1): 5}][O.ts9]
            if (js, r) in sched:
                k = sched[(js, r)]
                base, off = (sReg, k * 4096) if k < 6 else (sSp, (k - 6) * 4096)
                g0 = (9, 11, 13, 15) if r == 5 else ((1, 3, 5, 7) if r == 0 else (1, 5, 9, 13))
                mem[g0[0] - 1] += ["s_add_u32 m0, s%d, %d" % (base, off), setWo(k)]
                for j in range(4): mem[g0[j]].append(("w%d" % k, dma3(j)))
            if r == 4 and js == 1: mem[13].append(("wait8", "kv"))
            if r == 4 and js == 2: mem[13].append(("wait", "kv"))
            if r == 5 and js < 1:
                mem[11].append("s_cmp_ge_u32 s%d, %d" % (sK0, 16 * TS_))
                mem[13].append(("kv", ["s_cbranch_scc1 L_ok%d" % js] + [x for reg in PORD for x in [dm0(reg), "s_nop 0"] + ptld(reg)] + incD + ["L_ok%d:" % js]))
            if js == 2 and r == 3 and O.pf_code and not O.ts:
                pf = codepf("L_epi", "L_end", vT)
                for i_, x in enumerate(pf[:-1]): val[1 + 2 * i_].append(x)
                mem[15].append(("pf", pf[-1]))
            if js == 1 and r == 2:
                val[1] += ["v_add_u32 v%d, s%d, v%d" % (vTa, sReg, vL16)]; val[5] += ["v_add_u32 v%d, s%d, v%d" % (vTb, sRing, vL16)]
            if js == 1 and r == 4:
                for i_, x in enumerate(flagp(vFp, vT2)): val[1 + 2 * (i_ // 4)].append(x)
            if js == 2 and r == 1:
                for i_, x in enumerate(["s_lshr_b32 s%d, s%d, 6" % (sT, sOf), "v_add_u32 v248, s%d, v%d" % (sT, vL16), "v_add_u32 v%d, 1, v%d" % (vFo, vFo)]): val[9 + 2 * i_].append(x)
            if js == 2 and r == 4:
                fc = flagc(vFa)
                for i_, x in enumerate(fc[:-3]): val[1 + 2 * (i_ // 2)].append(x)
                val[11] += fc[-3:]
            if fin:
                h2 = 8 if 2 <= r < 6 else 0
                if r < 6:
                    if r % 2 == 0: mem[h2] += [("wait", "w%d" % r), ("wait", "w%d" % (r + 1))]
                if r == 1: mem[9].append("s_barrier")
                g1 = list(range(0, 8)) if r < 6 else [8, 8, 9, 9, 10, 10, 11, 11]
                g2 = list(range(8, 16)) if r < 6 else [12, 12, 13, 13, 14, 14, 15, 15]
                if r >= 3: mem[g1[0]].append("s_waitcnt lgkmcnt(0)")
                if r >= 2:
                    for i_, x in enumerate(xw(r - 2) + [lw(r - 2)]): mem[g1[1 + i_]].append(x)
                    mem[g2[0]] += sync
                    for i_, x in enumerate(rdc(r - 2, 128)): mem[g2[(i_ + 1) // 2]].append(x)
                if r < 6:
                    for i_, x in enumerate(rd3(r >> 1, (r >> 1) * 8192, range(4 * (r & 1), 4 * (r & 1) + 4))): mem[h2 + (i_ if h2 == 0 else 3 + i_ // 2)].append(x)
                else:
                    mem[8] += [("wait", "w6"), ("wait", "w7")]
                    for i_, x in enumerate(rd3(3, 0)): mem[8 + i_ // 2].append(x)
                vg = r < 6
                if r >= 3:
                    if O.pkg & 1:
                        cb = combp(r - 3, 128)
                        val[1] += cb[:2]; late3 = cb[2:10]; late7 = cb[10:18]
                        for i_, x in enumerate(cb[18:]): val[8 + (i_ * 6) // 8].append(x)
                    else:
                        cb = comb(r - 3, 128)
                        for i_, x in enumerate(cb[:18]): val[(i_ * 8) // 18].append(x)
                        for i_, x in enumerate(cb[18:]): val[8 + (i_ * 6) // 24].append(x)
                    mem[15] += [("st", x) for x in ost(r - 3)]
                    if O.wfin and r >= 4:
                        u_ = 8 + r - 4
                        mem[g1[0]] += ["s_add_u32 m0, s%d, %d" % (sRing, (u_ & 7) * 4096), setWo(u_)]
                        for j in range(4): mem[g1[2 + j]].append(("w%d" % u_, dma3(j)))
                if r >= 1:
                    for i_, x in enumerate(xlane("v_add_f32", [L + r - 1], [E2])): val[3 + 2 * i_].append(x)
                if r >= 3 and O.pkg & 1: val[3] += late3 + late7
                if r == 5: val[15] += ["v_add_u32 v%d, s%d, v%d" % (vR + i, sD1, vR + i) for i in range(2)]
        if r == 5 and not fin:
            for i in range(8): mem[(1, 1, 3, 5, 5, 7, 9, 9)[i]].append(rdK(i, (js + 1) & 3))
            mem[15].insert(0, "s_waitcnt lgkmcnt(0)")
            if O.ts: mem[11] += TS_A; mem[15] += TS_B
        if fin and r == 6:
            mem = [mem[8 + i] for i in range(8)]
            val = [val[2 * i] + val[2 * i + 1] for i in range(8)]
            val = [[v_[0], "s_nop 0"] + v_[1:] for v_ in val]
            a.e("s_nop 1")
        if first and r == 0:
            mem = mem[:12] + [mem[12] + mem[13], mem[14] + mem[15]]
            val = val[:12] + [val[12] + ["s_nop 0"] + val[13], val[14] + ["s_nop 0"] + val[15]]
        if pk:
            flush = r == 4 or (last and js == 2 and r == 6)
            old_ = len(pend)
            for g in range(1, 16, 2):
                pend.append("v_add_f32 v%d, v%d, v%d" % (L + r, L + r, Eb + g // 2))
                n_ = max(0, 2 - len(mem[g]) - len(val[g]))
                if g == 15: n_ = max(n_, len(pend) if flush else old_)
                n_ = min(n_, len(pend))
                val[g] += pend[:n_]; del pend[:n_]; old_ = max(0, old_ - n_)
        else: assert not pend
        if O.padn and pk:
            for i_ in range(O.padn): val[2 * i_].append("s_nop 0")
        for g_, v_ in zip(mem, val): cost[0] += max(16, 8 + sum(8 if (isinstance(x, str) and "v_exp" in x) else 4 for x in g_ + v_))
        if r == 4:
            if O.verbose: print("unit ending", js, last, first, "model cycles", cost[0], file=sys.stderr)
            cost[0] = 0
        for m_, g_, v_ in zip(mf, mem, val):
            a.e(m_)
            for x in g_:
                if isinstance(x, tuple):
                    if x[0] == "wait": a.e("s_waitcnt vmcnt(%d)" % vm.n(x[1]))
                    elif x[0] == "wait8": a.e("s_waitcnt vmcnt(%d)" % (vm.n(x[1]) + 8))
                    elif x[0] == "kv": vm.issue("kv", True); a.e(x[1])
                    else: vm.issue(x[0]); a.e(x[1])
                else: a.e(x)
            a.e(v_)
    for r in range(5): step(0, r, first=True)
    quiet = []
    a.raw(".p2align 5")
    a.lab("L_loop")
    for js in range(4):
        if O.force_skip & (1 << js): a.e("s_or_b32 s%d, s%d, 15" % (sT2, sT2))
        a.e(["s_cmp_gt_u32 s%d, s%d" % (sT2, sDd), "s_cbranch_scc1 L_h%d" % js])
        a.lab("L_u%d" % js)
        q0 = len(a.L)
        for r in (5, 6): step(js, r, kv=True)
        step((js + 1) & 3, 0, kv=True)
        qe = max(i_ for i_ in range(q0, len(a.L)) if a.L[i_].endswith(KV)) + 1
        quiet.append([ln for ln in a.L[q0:qe] if not ln.endswith(KV)])
        a.L.insert(qe, "L_j%d:" % js)
        for r in range(1, 5): step((js + 1) & 3, r, ctl=(js == 3))
    a.e(["s_cbranch_scc1 L_loop", "s_branch L_last"])
    for js in range(4):
        a.lab("L_h%d" % js)
        a.e("s_mov_b32 s%d, 99" % sDd)
        a.L += quiet[js]
        a.e("s_branch L_j%d" % js)
    a.lab("L_last")
    for r in (5, 6): step(0, r, last=True)
    for js in range(1, 4):
        for r in range(7): step(js, r, last=True)
    stamp()

    a.lab("L_epi")
    if O.ts: a.e(TS_F)
    misc = ["v_add_f32 v%d, v%d, v%d" % (vTc, L, L + 1)] + ["v_add_f32 v%d, v%d, v%d" % (vTc, vTc, L + i) for i in range(2, 7)]
    misc += ["s_mov_b32 s%d, 0x%x" % (sT, THR if not O.force_slow else 0), "s_lshl_b32 s%d, s%d, 2" % (sG, sWv),
             "v_cmp_ngt_f32 vcc, s%d, v%d" % (sT, vTc),
             "s_add_u32 s%d, s%d, 30720" % (sG, sG), "v_mov_b32 v%d, s%d" % (vT, sG),
             "s_cmp_lg_u64 vcc, 0", "s_cselect_b32 s%d, 1, 0" % sT, "v_mov_b32 v%d, 30720" % vT2, "v_mov_b32 v%d, s%d" % (L + 7, sT)]
    xl = xlane("v_add_f32", [L + 6], [E2])
    pvl = pv(6, 1); pvl = pvl[4:] + pvl[:4]
    gp = [[] for _ in range(8)]
    for i_, x in enumerate(xw(5) + [lw(5)]): gp[2 + i_].append(x)
    for i_, x in enumerate(misc): gp[(i_ * 8) // len(misc)].append(x)
    for i_, x in enumerate(xl): gp[2 + i_].append(x)
    a.e(["s_waitcnt lgkmcnt(0)", "s_nop 0"])
    weave(a, pvl, gp)
    vm.issue("pl"); a.e(["s_mov_b64 exec, 31", "global_load_dword v249, v%d, s[%d:%d] sc1" % (vFa, pWs, pWs + 1), "s_mov_b64 exec, -1"])
    a.e(xw(6) + [lw(6), "ds_write_b32 v%d, v%d" % (vT, L + 7)])
    def stores(rt):
        for x in ost(rt): vm.issue("st"); a.e(x)
    c4 = combp(4, 128)
    a.e(c4[:18] + sync)
    stamp(2)
    a.e(["ds_read_b128 %s, v%d" % (vr(216, 4), vT2)] + rdc(5, 144) + rdc(6, 160) + c4[18:])
    stores(4)
    a.e(["v_add_u32 v%d, s%d, v%d" % (vR + i, sD2, vR + i) for i in range(2)])
    a.e(["s_waitcnt lgkmcnt(5)", "v_or3_b32 v216, v216, v217, v218", "v_or_b32 v216, v216, v219"] + combp(5, 144) + ["v_readfirstlane_b32 s%d, v216" % sT])
    stores(5)
    a.e(["s_waitcnt lgkmcnt(0)"] + combp(6, 160))
    stores(6)
    a.e(["s_andn2_b32 s%d, s%d, s%d" % (sT, sT, sPass), "s_cbranch_scc1 L_slow"])
    def wload(k, j):
        if j == 0: a.e(["s_add_u32 m0, s%d, %d" % (sRing, (k & 7) * 4096), setWo(k)])
        vm.issue("w%d" % k); a.e(dma3(j))
    wi = 12 if O.wfin else 0
    stamp(2)
    ACC3, OF = 16, 128
    vS, vOo, vOut, vPs = 6, 248, 249, 250
    def acc3(rt, sl):
        hb, wv = sl >> 2, sl & 3
        return vr(ACC3 + 16 * rt + 4 * (2 * hb + wv), 4) if wv < 2 else ar(112 + 16 * rt + 4 * (2 * hb + wv - 2), 4)
    def ldO(rt, k): return "buffer_load_dwordx4 %s, v%d, s[%d:%d], s%d offen sc1" % (vr(OF + 28 * (k & 3) + 4 * rt, 4), vOo, sOs, sOs + 3, sRt + rt)
    def incO(k): return "v_xor_b32 v%d, 0x%x, v%d" % (vOo, (k ^ (k + 1)) << 10, vOo)
    ld01 = [x for k in range(2) for x in [ldO(rt, k) for rt in range(7)] + [incO(k)]]
    fset = ["s_lshl_b32 s%d, s%d, 5" % (sT, sB), "s_add_u32 s%d, s%d, s%d" % (sT, sT, sH), "v_mov_b32 v%d, s%d" % (vT2, sT), "v_mov_b32 v%d, 1" % vT3, "v_mov_b32 v241, v%d" % vFa]
    def publish(lab):
        a.e(["s_barrier", "s_cmp_lg_u32 s%d, 0" % sWv, "s_cbranch_scc1 %s" % lab,
             "s_mov_b64 exec, 0xfffff", "global_store_dword v%d, v%d, s[%d:%d] sc1" % (vFp, vFo, pWs, pWs + 1),
             "s_mov_b64 exec, 1", "global_store_byte v%d, v%d, s[%d:%d] sc1" % (vT2, vT3, pDbg, pDbg + 1), "s_mov_b64 exec, -1"])
    def wpieces(lo, hi):
        out = []
        for p_ in range(lo, hi):
            u, j = 8 + p_ // 4, p_ % 4
            out.append((["s_add_u32 m0, s%d, %d" % (sRing, (u & 7) * 4096), setWo(u)] if j == 0 else [], ("w%d" % u, dma3(j))))
        return out
    a.e(["s_waitcnt vmcnt(%d)" % vm.n("pl"), "v_cmp_eq_u32 s[%d:%d], v249, v%d" % (sC, sC + 1, vFc), "s_mov_b64 vcc, 0", "s_and_b32 s%d, s%d, 31" % (sC, sC), "s_cbranch_scc1 L_late"])
    a.e(ld01 + fset + ["s_waitcnt vmcnt(14)"])
    publish("L_join")
    a.e("s_branch L_join")
    a.lab("L_late")
    a.e(["s_mov_b64 exec, 31", "global_load_dword v%d, v%d, s[%d:%d] sc1" % (vT, vFa, pWs, pWs + 1), "s_mov_b64 exec, -1"] + fset + ["v_xor_b32 v243, 0x80, v%d" % vT2,
         "s_lshr_b32 s%d, s%d, 1" % (sT, sRB), "s_lshl_b32 s%d, s%d, 5" % (sT, sT), "s_lshl_b32 s%d, s%d, 2" % (sG, sPm), "s_add_u32 s%d, s%d, s%d" % (sT, sT, sG),
         "v_mov_b32 v242, s%d" % sT, "s_mov_b32 s%d, 0x40000" % sCnt, "s_waitcnt vmcnt(0)", "v_cmp_eq_u32 s[%d:%d], v%d, v%d" % (sC, sC + 1, vT, vFc)])
    publish("L_noflag")
    a.lab("L_noflag")
    a.e(["s_and_b32 s%d, s%d, 31" % (sC, sC), "s_cbranch_scc0 L_go", "s_mov_b64 vcc, -1"])
    for pre, op in wpieces(wi, 32): a.e(pre + [op[1]])
    a.e("s_mov_b64 exec, 31")
    a.lab("L_poll")
    a.e(["global_load_dword v%d, v241, s[%d:%d] sc1" % (vT, pWs, pWs + 1), "s_waitcnt vmcnt(0)", "s_sub_u32 s%d, s%d, 1" % (sCnt, sCnt), "s_cbranch_scc1 L_go",
         "v_cmp_eq_u32 s[%d:%d], v%d, v%d" % (sC, sC + 1, vT, vFc), "s_nop 0", "s_cmp_eq_u64 s[%d:%d], 0" % (sC, sC + 1), "s_cbranch_scc1 L_go",
         "s_and_b32 s%d, s%d, 15" % (sT, sCnt), "s_cbranch_scc1 L_poll",
         "global_load_dword v%d, v242, s[%d:%d] sc1" % (vT, pDbg, pDbg + 1), "global_load_ubyte v%d, v243, s[%d:%d] sc1" % (vT2, pDbg, pDbg + 1), "s_waitcnt vmcnt(0)",
         "v_add_u32 v%d, v%d, v%d" % (vT, vT, vT2), "s_nop 0", "v_readfirstlane_b32 s%d, v%d" % (sT, vT),
         "s_nop 0", "s_cmp_eq_u32 s%d, 0x01010102" % sT, "s_cbranch_scc0 L_poll"])
    a.lab("L_go")
    a.e(["s_mov_b64 exec, -1"] + ld01)
    a.lab("L_join")
    for k in range(2):
        for rt in range(7): vm.issue("o%d" % k)
    stamp()
    if O.stamps: a.e(["s_memrealtime s[4:5]", "s_memrealtime s[6:7]", "s_sub_u32 s10, 0x40000, s11"])
    a.e(["v_add_u32 v%d, s%d, v%d" % (vS, sRing, vL16)])
    for i in range(1, 4): a.e(["v_xor_b32 v%d, 0x%x, v%d" % (vS + i, i << 15, vS)])
    a.e(["v_and_b32 v%d, 15, v%d" % (vT, vL), "v_lshrrev_b32 v%d, 4, v%d" % (vT2, vL), "v_lshlrev_b32 v%d, 3, v%d" % (vT2, vT2),
         "v_lshl_add_u32 v%d, v%d, 11, v%d" % (vT, vT, vT2),
         "s_lshl_b32 s%d, s%d, 8" % (sT, sCT), "s_lshl_b32 s%d, s%d, 5" % (sG, sPm), "s_add_u32 s%d, s%d, s%d" % (sT, sT, sG),
         "v_add_u32 v%d, s%d, v%d" % (vOut, sT, vT)] + boxaddr(vPs) + ["v_xor_b32 v%d, 0x8000, v%d" % (vPs + 1, vPs)])
    if O.ts: a.e(TS_F)
    a.e(["s_waitcnt vmcnt(%d)" % (vm.n("o0") + 6)])
    def redw(rt, hb, wv): return "ds_write_b128 v%d, %s offset:%d" % (vS, acc3(rt, 4 * hb + wv), (wv - 1) * 7168 + rt * 1024)
    def redr(rt, wv, d): return "ds_read_b128 %s, v%d offset:%d" % (vr(d, 4), vS + wv, (wv - 1) * 7168 + rt * 1024)
    def mf3(rt, sl, k): return mfma(acc3(rt, sl), ar(wset(k) + 4 * sl, 4), vr(OF + 28 * (k & 3) + 4 * rt, 4), acc3(rt, sl) if k else "0")
    def emit(mf, gaps):
        for m_, g_ in zip(mf, gaps):
            a.e(m_)
            for x in g_:
                if isinstance(x, tuple):
                    if x[0] == "wait": a.e("s_waitcnt vmcnt(%d)%s" % (min(vm.n(t_) for t_ in x[1]), " lgkmcnt(0)" if x[2] else ""))
                    elif x[0] == "wait0": a.e("s_waitcnt vmcnt(%d)" % (vm.n("o0") + x[1]))
                    elif isinstance(x[1], list):
                        nsk[0] += 1
                        for _ in range(4): vm.issue(x[0], True)
                        a.e(["s_cbranch_vccnz L_sk%d" % nsk[0]] + x[1]); a.lab("L_sk%d" % nsk[0])
                    elif (O.dbg3 & 1 and x[0][0] == "w") or (O.dbg3 & 2 and x[0][0] == "o" and int(x[0][1:]) > 3): vm.issue(x[0])
                    else: vm.issue(x[0]); a.e(x[1])
                elif O.dbg3 & 4 and x.startswith("ds_read_b64"): pass
                else: a.e(x)
    nsk = [0]
    ws0, ws1 = 2, O.ws1
    pstep = [ws0 + (p_ * (ws1 - ws0)) // 64 for p_ in range(64)]
    rstep = {m_: m_ - 3 for m_ in range(4, 8)}
    for m_ in range(8, 16):
        rstep[m_] = max(m_ - 3, pstep[8 * (m_ - 8) + 7] + 2)
        assert pstep[8 * (m_ - 8)] > rstep[m_ - 4] and rstep[m_] <= min(m_ - 1, 13) and (m_ == 15 or rstep[m_] <= 12), m_
    for k in range(13):
        mf = [mf3(rt, sl, k) for rt in range(7) for sl in range(8)]
        gaps = [[] for _ in range(56)]
        rds = [m_ for m_ in rstep if rstep[m_] == k]
        for g, x in enumerate([y for m_ in rds for y in rd3(m_, (m_ & 3) * 8192)]): gaps[g].append(x)
        wl = []
        if k < 3:
            assert wi % 4 == 0 and wi >= 8 and O.dynw
            us = list(range(wi // 4, 8)); us = us[(len(us) * k) // 3:(len(us) * (k + 1)) // 3]
            wl = [([], ("w%d" % (8 + u_), [y for pre, op in wpieces(4 * u_, 4 * u_ + 4) for y in pre + [op[1]]])) for u_ in us]
        ps_ = [p_ for p_ in range(64) if pstep[p_] == k]
        if ps_: wl += wpieces(32 + ps_[0], 32 + ps_[-1] + 1)
        ol = [([], ("o%d" % kk_, ldO(rt, kk_))) + ((incO(kk_),) if rt == 6 else ()) for kk_ in ([2, 3] if k == 0 else [k + 3]) for rt in range(7)]
        ld = sorted([((i_ + 0.5) / len(wl), x) for i_, x in enumerate(wl)] + [((i_ + 0.25) / len(ol), x) for i_, x in enumerate(ol)], key=lambda t_: t_[0])
        for i_, (_, x) in enumerate(ld):
            g = 1 + (i_ * 53) // len(ld)
            gaps[g - 1] += x[0]; gaps[g].insert(0, x[1])
            if len(x) > 2: gaps[g].append(x[2])
        if k == 0:
            for rt in range(1, 7): gaps[8 * rt - 1].append(("wait0", 6 - rt))
        need_ = ["o%d" % (k + 1)] + ["w%d" % (2 * m_ + 1) for m_ in rstep if rstep[m_] == k + 1]
        gaps[55].append(("wait", need_, bool(rds)))
        if O.ts: gaps[55] += TS_F
        emit(mf, gaps)
    mf = [mf3(rt, 4 * hb + wv, k) for hb in (1, 0) for k in (13, 14, 15) for rt in range(7) for wv in range(4)]
    gaps = [[] for _ in range(168)]
    if rstep[15] == 13:
        for g, x in enumerate(rd3(15, 3 * 8192)): gaps[g].append(x)
    gaps[27].append(("wait", ["o14"], False)); gaps[55].append(("wait", ["o15"], True))
    for rt in range(7):
        for wv in range(1, 4): gaps[56 + 4 * rt + wv + 8].append(redw(rt, 1, wv))
    gaps[94].append("s_waitcnt lgkmcnt(0)"); gaps[95].append("s_barrier")
    def tmp1(rt, wv): return (ACC3 + 16 * rt + 12, OF + 4 * rt, OF + 28 + 4 * rt)[wv - 1]
    for rt in range(7):
        g = 96 + 4 * rt
        gaps[g] += [redr(rt, 1, tmp1(rt, 1)), redr(rt, 2, tmp1(rt, 2))]; gaps[g + 1].append(redr(rt, 3, tmp1(rt, 3)))
    for rt in range(7):
        g = 96 + 4 * rt + 6; b = ACC3 + 16 * rt + 8
        gaps[g - 1].append("s_waitcnt lgkmcnt(%d)" % (3 if rt < 6 else 0))
        ads = ["v_add_f32 v%d, v%d, v%d" % (b + i, b + i, tmp1(rt, 1) + i) for i in range(4)]
        ads += ["v_add_f32 v%d, v%d, v%d" % (tmp1(rt, 2) + i, tmp1(rt, 2) + i, tmp1(rt, 3) + i) for i in range(4)]
        ads += ["v_add_f32 v%d, v%d, v%d" % (b + i, b + i, tmp1(rt, 2) + i) for i in range(4)]
        gaps[g] += ads[0:4]; gaps[g + 1] += ads[4:8]; gaps[g + 2] += ads[8:10]; gaps[g + 3] += ads[10:12]
        gaps[g + 4].insert(0, ("ps", "global_store_dwordx4 v%d, %s, s[%d:%d] offset:%d sc1" % (vPs + 1, vr(b, 4), pWs, pWs + 1, rt * 1024 - 3072)))
    gaps[132].append("s_barrier")
    gaps[134].append("v_add_u32 v%d, 1, v%d" % (vT2, vFc))
    gaps[O.f2gap] += ["s_waitcnt vmcnt(0)", "s_mov_b64 exec, 64", "global_store_dword v241, v%d, s[%d:%d] sc1" % (vT2, pWs, pWs + 1), "s_mov_b64 exec, -1"]
    lastw = []
    for rt in range(7):
        for wv in range(1, 4):
            g2 = 140 + 4 * rt + wv + 8
            if g2 < 168: gaps[g2].insert(0, redw(rt, 0, wv))
            else: lastw.append(redw(rt, 0, wv))
    emit(mf, gaps)
    stamp()
    if O.ts: a.e(TS_F)
    PB = OF + 84
    ldP = ["global_load_dwordx4 %s, v%d, s[%d:%d] offset:%d sc1" % (vr(PB + 4 * rt, 4), vPs, pWs, pWs + 1, rt * 1024 - 3072) for rt in range(7)]
    pl2 = "global_load_dword v%d, v241, s[%d:%d] sc1" % (vT, pWs, pWs + 1)
    a.e(["s_mov_b64 exec, 32", pl2, "s_mov_b64 exec, -1"] + lastw[:3] + ["s_nop 1"] + lastw[3:] + ["s_mov_b32 s%d, 0x40000" % sCnt, "s_waitcnt lgkmcnt(0)", "s_barrier"])
    for rt in range(7):
        for wv in range(1, 4): a.e(redr(rt, wv, OF + 12 * rt + 4 * (wv - 1)))
    a.e("s_mov_b64 exec, 32")
    a.lab("L_poll2")
    a.e(["s_waitcnt vmcnt(0)", "v_cmp_eq_u32 vcc, v%d, v%d" % (vT, vFc), "s_sub_u32 s%d, s%d, 1" % (sCnt, sCnt), "s_cbranch_vccz L_go2", "s_cbranch_scc1 L_go2", pl2, "s_branch L_poll2"])
    a.lab("L_go2")
    a.e(["s_mov_b64 exec, -1"] + ldP)
    for rt in range(7):
        a.e("s_waitcnt lgkmcnt(%d)" % min(15, 3 * (6 - rt)))
        b = ACC3 + 16 * rt; t = OF + 12 * rt
        for h in range(2):
            a.e("v_pk_add_f32 %s, %s, %s" % (vr(b + 2 * h, 2), vr(b + 2 * h, 2), vr(t + 2 * h, 2)))
            a.e("v_pk_add_f32 %s, %s, %s" % (vr(t + 4 + 2 * h, 2), vr(t + 4 + 2 * h, 2), vr(t + 8 + 2 * h, 2)))
        for h in range(2): a.e("v_pk_add_f32 %s, %s, %s" % (vr(b + 2 * h, 2), vr(b + 2 * h, 2), vr(t + 4 + 2 * h, 2)))
    for rt in range(7):
        b = ACC3 + 16 * rt; t = PB + 4 * rt
        a.e(["s_waitcnt vmcnt(6)"] + ["v_pk_add_f32 %s, %s, %s" % (vr(b + 2 * h, 2), vr(b + 2 * h, 2), vr(t + 2 * h, 2)) for h in range(2)])
        a.e(["v_cvt_pk_bf16_f32 v%d, v%d, v%d" % (b, b, b + 1), "v_cvt_pk_bf16_f32 v%d, v%d, v%d" % (b + 1, b + 2, b + 3),
             "s_mov_b32 s%d, %d" % (sT, rt * 32768),
             "buffer_store_dwordx2 %s, v%d, s[%d:%d], s%d offen %s" % (vr(b, 2), vOut, sOut, sOut + 3, sT, O.out_flags)])
    if O.stamps:
        a.e(["s_waitcnt vmcnt(0)"])
        if O.ts: a.e(TS_F)
        stamp()
        a.e(["s_memrealtime s[78:79]", "s_waitcnt lgkmcnt(0)", "s_lshl_b32 s%d, s2, 2" % sT, "s_add_u32 s%d, s%d, s%d" % (sT, sT, sWv), "s_lshl_b32 s%d, s%d, 6" % (sT, sT),
             "s_add_u32 s%d, s%d, 0x%x" % (sT, sT, STAMP_OFF),
             "s_add_u32 s%d, s%d, s%d" % (sO, pWs, sT), "s_addc_u32 s%d, s%d, 0" % (sO + 1, pWs + 1), "s_mov_b32 s%d, 64" % (sO + 2), "v_mov_b32 v%d, 0" % vT])
        for i in range(nst[0]):
            a.e(["s_sub_u32 s%d, s%d, s%d" % (sT, sST + 2 * i, sST), "v_mov_b32 v%d, s%d" % (vT2, sT),
                 "buffer_store_dword v%d, v%d, s[%d:%d], 0 offen offset:%d" % (vT2, vT, sO, sO + 3, 4 * i)])
        for i, r_ in enumerate((10, 6, 4, sST, 78)):
            a.e(["v_mov_b32 v%d, s%d" % (vT2, r_), "buffer_store_dword v%d, v%d, s[%d:%d], 0 offen offset:%d" % (vT2, vT, sO, sO + 3, 44 + 4 * i)])
    if O.ts:
        a.e(["s_lshl_b32 s%d, s2, 9" % sT, "s_add_u32 s%d, s%d, 0x%x" % (sT, sT, STAMP_OFF + 0x200000),
             "s_add_u32 s%d, s%d, s%d" % (sO, pWs, sT), "s_addc_u32 s%d, s%d, 0" % (sO + 1, pWs + 1), "s_mov_b32 s%d, 512" % (sO + 2),
             "v_lshlrev_b32 v%d, 2, v%d" % (vT, vL), "buffer_store_dword v0, v%d, s[%d:%d], 0 offen" % (vT, sO, sO + 3)])
    a.lab("L_end")
    a.e("s_endpgm")

    if O.wo_at >= 100:
        a.lab("L_wopf")
        a.e(["s_lshl_b32 s%d, s2, 2" % sT, "s_add_u32 s%d, s%d, s%d" % (sT, sT, sWv), "s_lshl_b32 s%d, s%d, 13" % (sT, sT),
             "v_lshlrev_b32 v%d, 7, v%d" % (vT, vL), "v_add_u32 v%d, s%d, v%d" % (vT, sT, vT),
             "global_load_dword v%d, v%d, s[%d:%d]" % (vDum, vT, pWo, pWo + 1), "s_branch L_wopf_ret"])
    a.lab("L_slow")
    a.e(["s_waitcnt vmcnt(0) lgkmcnt(0)", "s_barrier", "s_mov_b32 s%d, 1" % sPass] + lane_setup() + ["s_branch L_restart"])
    a.lab("L_maxpass")
    a.e(["s_waitcnt vmcnt(0) lgkmcnt(0)", "s_barrier"] + Cq(6) + ["s_mov_b32 s%d, 16" % sCnt] + setK(0))
    a.e([zero16(ar(176 + 16 * i, 16)) for i in range(3)] + ["s_nop 7"])
    for rt in range(7): a.e("v_mov_b32 v%d, 0xff800000" % (M + 4 * rt))
    a.lab("L_slow_loop")
    a.e(kvtile(0))
    a.e(["s_waitcnt vmcnt(0)", "s_barrier"])
    a.e([rdK(i, 0) for i in range(8)])
    a.e(["s_waitcnt lgkmcnt(0)", "s_barrier"])
    for rt in range(7):
        for i in range(8):
            t, ks = i & 1, i >> 1
            d = vr(S + 4 * t, 4)
            a.e(mfma(d, ar(aK + 16 * t + 4 * ks, 4), ar(aQ + 16 * rt + 4 * ks, 4), "0" if ks == 0 else d))
        a.e("s_nop 7")
        for i in range(4): a.e("v_max3_f32 v%d, v%d, v%d, v%d" % (M + 4 * rt, M + 4 * rt, S + 2 * i, S + 2 * i + 1))
    a.e(["s_sub_u32 s%d, s%d, 1" % (sCnt, sCnt), "s_cmp_lg_u32 s%d, 0" % sCnt, "s_cbranch_scc1 L_slow_loop"])
    a.e(xlane("v_max_f32", [M + 4 * rt for rt in range(7)], [M + 4 * rt + 1 for rt in range(7)]))
    a.e(["v_add_u32 v%d, s%d, v%d" % (vTc, sSp, vL16), "v_xor_b32 v%d, 16384, v%d" % (vT3, vTc)])
    for rt in range(7): a.e("ds_write_b32 v%d, v%d offset:%d" % (vTc, M + 4 * rt, rt * 1024))
    a.e(["s_waitcnt lgkmcnt(0)", "s_barrier"])
    for rt in range(7): a.e("ds_read_b32 v%d, v%d offset:%d" % (M + 4 * rt + 1, vT3, rt * 1024))
    a.e(setK(0))
    for tl in range(4): a.e(kvtile(tl))
    a.e("s_waitcnt lgkmcnt(0)")
    for rt in range(7): a.e("v_max_f32 v%d, v%d, v%d" % (M + 4 * rt, M + 4 * rt, M + 4 * rt + 1))
    a.e(["s_waitcnt vmcnt(16)", "s_barrier"])
    a.e([rdK(i, 0) for i in range(8)])
    a.e([zero16(vr(V, 16)), zero16(vr(V + 16, 16))])
    a.e(["v_sub_f32 v%d, 0, v%d" % (M + 4 * rt + i, M + 4 * rt) for rt in range(7) for i in (1, 2, 3, 0)])
    a.e(["v_mov_b32 v%d, 0" % i for i in range(L, L + 7)] + ["v_mov_b32 v%d, 0" % i for i in range(P + 4, P + 8)])
    a.e(["s_mov_b32 s%d, 3" % sCnt, "s_waitcnt lgkmcnt(0)"] + qk(0, 0) + initD + codepf("L_last", "L_go", 250)[:-1] + ["s_nop 5"])
    for r in range(5): step(0, r)
    a.e("s_branch L_loop")

def build():
    ref = open("cdna_kernels/%s.s.ref" % NAME).read()
    hdr = ref.split("; Override launch")[0]
    a = Asm()
    k = NAME + "_kernel"
    a.raw(".amdgcn_target \"amdgcn-amd-amdhsa--gfx950\"\n.text")
    a.raw(".globl %s\n.p2align 8\n.type %s,@function" % (k, k))
    kernel(a)
    for e in check(a.L): print(e, file=sys.stderr)
    doc = """;
"""
    t = hdr + "; @launch grid=(256,1,1) block=(256,1,1) lds=163840\n" + doc + a.text()
    t += """.section .rodata,"a"
.p2align 6
.amdhsa_kernel %s
  .amdhsa_next_free_vgpr 512
  .amdhsa_next_free_sgpr 102
  .amdhsa_accum_offset 256
  .amdhsa_group_segment_fixed_size 0
  .amdhsa_kernarg_size 64
  .amdhsa_user_sgpr_count 2
  .amdhsa_user_sgpr_kernarg_segment_ptr 1
  .amdhsa_system_sgpr_workgroup_id_x 1
  .amdhsa_float_denorm_mode_32 %d
.end_amdhsa_kernel
""" % (k, O.denorm)
    return t

if __name__ == "__main__":
    out = sys.argv[1] if len(sys.argv) > 1 else "cdna_kernels/%s.s" % NAME
    for kv in sys.argv[2:]:
        k, v = kv.split("=")
        cur = getattr(O, k)
        setattr(O, k, (v == "1") if isinstance(cur, bool) else type(cur)(v))
    open(out, "w").write(build())
```

```python
import sys, math, struct
from asmlib import *

NAME = "standalone__mha_block_cached__near_ridge"
def f32(x): return struct.unpack("<I", struct.pack("<f", x))[0]
CSCALE = f32(128 ** -0.5 * math.log2(math.e))
THR = f32(2.0 ** 30)

class Opt:
    stamps = False
    ts = False
    kv_nt = True
    nxe = 5
    p1_span = 26
    force_slow = False
    pf_xw = True
    pf_wo = True
    pf_code = True
    w_n = 0
    w_late = 8
    wl2 = 0
    out_flags = ""
    pfl = 0
    burst = 4
    ws1 = 12
    dbg3 = 0
    f2gap = 156
    wo2 = "0.3,2.2"
    lag = 0
    ilv = True
    pts = "5.13,5.15,6.9,6.11"
    th = 5
    chain4 = True
    trimpf = False
    mixl = 0
    dynfail = True
    wl3 = 0
    tlb = 0
    tlb2 = False
    ts9 = 0
    splitpf = False
    pkg = 1
    xwf = ""
    w3f = ""
    pf3 = 0
    denorm = 3
    wfin = True
    nb = 0
    padn = 0
    kvf = "nt"
    dmax = 1
    force_skip = 0
    pack = True
    verbose = False
    x1mask = 0
    rd_first = False
    wqc = False
    tb4 = False
    wo_r = 3
    bstep = 2
    t3late = False
    wo_at = 1
    dynw = True
    wggo = False
    olook = 3
    sset = 1
    nost = False
    st_flags = "sc1"
    x3mask = 7
    burn = 0
    tsched = 1
    pf_flags = ""
    wpf = 0
O = Opt()
STAMP_OFF = 0x8000000
FLAG_OFF = 0x1000000
PART_OFF = 0x2000000

def zero16(d): return "v_mfma_f32_32x32x16_bf16 %s, v[12:15], v[12:15], 0" % d

class VM:
    def __init__(self, init): self.ops = list(init)
    def issue(self, tag, opt=False): self.ops.append(tag + "?" if opt else tag)
    def n(self, tag):
        idx = max(i for i, t in enumerate(self.ops) if t.rstrip("?") == tag)
        if self.ops[idx].endswith("?"): return min(63, len(self.ops) - 1 - idx)
        return min(63, sum(1 for t in self.ops[idx + 1:] if not t.endswith("?")))

def kernel(a):
    KVF = " " + O.kvf
    pX, pK, pV, pWq, pWo, pOut, pDbg, pWs = 4, 6, 8, 10, 12, 14, 16, 18
    sX, sW, sKV, sO, sOs, sWs, sOut = 20, 24, 28, 32, 36, 40, 44
    (sWv, sB, sH, sRH, sKH, sXoff, sWoff, sCnt, sMX, sMW, sReg, sRing, sSp, sG, sFlip, sK0, sPass, sT, sT2, sRB, sCT, sWo, sD1, sD2) = range(48, 72)
    sP = 3
    sOf = 1; sPm = 0
    sC = 72; sRt = 74; sPC = 82; sVV = 84; sST = 88; sK1 = sFlip
    KH, TS_ = (8192, 16384) if O.ilv else (131072, 8192)
    vL, vT, vT2, vT3, vL16 = 1, 2, 3, 4, 5
    vKV, vW = 6, 10
    OK, ACC = 16, 128
    M, S, E, P, V, L = 128, 156, 172, 180, 188, 220
    vTa, vTb, vTc = 237, 238, 236
    E2 = 228
    vX, vXr, vWr = 240, 247, 251
    vKr, vVr, vK0 = 240, 241, 243
    vD, vR = 244, 10
    vQw, vQr = 2, 3
    PK = 16
    vFo, vFc, vDum = 254, 255, 253
    vCp = 0
    aQ, aO, aK = 0, 112, 224
    aXF, aWF = 0, 224
    nst = [0]
    def stamp(m=3):
        if O.stamps and (m & O.sset) and not (O.ts and nst[0] >= 1):
            assert nst[0] < 7
            a.e("s_memrealtime s[%d:%d]" % (sST + 2 * nst[0], sST + 2 * nst[0] + 1)); nst[0] += 1
    def flagp(v, t):
        return ["s_and_b32 s%d, s%d, 1" % (sT, sB), "s_lshl_b32 s%d, s%d, 6" % (sT, sT), "s_lshr_b32 s%d, s%d, 1" % (sG, sB), "s_lshl_b32 s%d, s%d, 3" % (sG, sG),
                "s_add_u32 s%d, s%d, s%d" % (sT, sT, sG), "s_lshr_b32 s%d, s%d, 2" % (sG, sH), "s_add_u32 s%d, s%d, s%d" % (sT, sT, sG), "s_lshl_b32 s%d, s%d, 7" % (sT, sT),
                "s_and_b32 s%d, s%d, 3" % (sG, sH), "s_lshl_b32 s%d, s%d, 2" % (sG, sG), "s_add_u32 s%d, s%d, s%d" % (sT, sT, sG), "s_add_u32 s%d, s%d, 0x%x" % (sT, sT, FLAG_OFF),
                "v_lshrrev_b32 v%d, 1, v%d" % (v, vL), "v_lshlrev_b32 v%d, 14, v%d" % (v, v), "v_and_b32 v%d, 1, v%d" % (t, vL),
                "v_lshl_add_u32 v%d, v%d, 12, v%d" % (v, t, v), "v_add_u32 v%d, s%d, v%d" % (v, sT, v),
                "s_xor_b32 s%d, s2, 1" % sT, "s_lshl_b32 s%d, s%d, 9" % (sT, sT), "s_add_u32 s%d, s%d, 0x%x" % (sT, sT, FLAG_OFF + 16),
                "v_and_b32 v%d, 3, v%d" % (t, vL), "v_lshlrev_b32 v%d, 7, v%d" % (t, t), "v_cmp_gt_u32 vcc, 16, v%d" % vL, "v_add_u32 v%d, s%d, v%d" % (t, sT, t),
                "s_nop 0", "v_cndmask_b32 v%d, v%d, v%d, vcc" % (v, t, v)]
    def flagc(v):
        return ["s_lshl_b32 s%d, s2, 2" % sT, "s_add_u32 s%d, s%d, s%d" % (sT, sT, sWv), "s_lshl_b32 s%d, s%d, 7" % (sT, sT), "s_add_u32 s%d, s%d, 0x%x" % (sT, sT, FLAG_OFF),
                "v_min_u32 v%d, 5, v%d" % (v, vL), "v_lshlrev_b32 v%d, 2, v%d" % (v, v), "v_add_u32 v%d, s%d, v%d" % (v, sT, v),
                "s_mov_b64 exec, 64", "v_xor_b32 v%d, 0x200, v%d" % (v, v), "s_mov_b64 exec, -1"]
    def boxaddr(v):
        return ["s_lshl_b32 s%d, s2, 2" % sT, "s_add_u32 s%d, s%d, s%d" % (sT, sT, sWv), "s_lshl_b32 s%d, s%d, 13" % (sT, sT),
                "s_add_u32 s%d, s%d, 0x%x" % (sT, sT, PART_OFF + 3072), "v_add_u32 v%d, s%d, v%d" % (v, sT, vL16)]
    def codepf(lo, hi, t0):
        return ["v_min_u32 v%d, %s-%s-4, v%d" % (t0, hi, lo, vCp), "v_add_u32 v%d, %s-L_pc, v%d" % (t0, lo, t0),
                "v_mov_b32 v%d, s%d" % (t0 + 1, sPC + 1), "v_add_co_u32 v%d, vcc, s%d, v%d" % (t0, sPC, t0), "s_nop 1",
                "v_addc_co_u32 v%d, vcc, 0, v%d, vcc" % (t0 + 1, t0 + 1), "global_load_dword v%d, v[%d:%d], off" % (vDum, t0, t0 + 1)]

    a.lab(NAME + "_kernel")
    a.e(["s_cmp_ge_u32 s2, 256", "s_cbranch_scc1 L_end",
         "s_load_dwordx8 s[4:11], s[0:1], 0", "s_load_dwordx8 s[12:19], s[0:1], 32"])
    stamp(7)
    a.e(["s_getpc_b64 s[%d:%d]" % (sPC, sPC + 1)])
    a.lab("L_pc")
    a.e(["v_and_b32 v%d, 63, v0" % vL, "v_lshrrev_b32 v%d, 6, v0" % vT,
         "s_and_b32 s%d, s2, 7" % sT, "s_lshr_b32 s%d, s2, 3" % sT2,
         "v_readfirstlane_b32 s%d, v%d" % (sWv, vT),
         "v_min_u32 v%d, 2, v%d" % (vCp, vL), "v_lshl_add_u32 v%d, v%d, 2, v%d" % (vCp, vCp, vT), "v_lshlrev_b32 v%d, 5, v%d" % (vCp, vCp),
         "v_add_lshl_u32 v%d, v%d, s%d, 7" % (vCp, vCp, sT2)])
    if O.pf_code: a.e(codepf("L_pc", "L_end", vT))
    a.e(["s_mov_b32 s%d, 0" % sPass,
         "s_and_b32 s%d, s%d, 1" % (sB, sT), "s_lshl_b32 s%d, s%d, 2" % (sB, sB),
         "s_and_b32 s%d, s%d, 3" % (sG, sT2), "s_add_u32 s%d, s%d, s%d" % (sB, sB, sG),
         "s_lshr_b32 s%d, s%d, 1" % (sH, sT), "s_lshl_b32 s%d, s%d, 2" % (sRB, sH), "s_add_u32 s%d, s%d, s%d" % (sRB, sRB, sG), "s_lshl_b32 s%d, s%d, 3" % (sH, sH),
         "s_lshr_b32 s%d, s%d, 2" % (sCT, sT2), "s_add_u32 s%d, s%d, s%d" % (sH, sH, sCT),
         "s_and_b32 s%d, s%d, 1" % (sRH, sWv), "s_lshr_b32 s%d, s%d, 1" % (sKH, sWv)])
    a.e(["s_lshl_b32 s%d, s%d, 15" % (sMX, sKH), "s_mul_i32 s%d, s%d, 7168" % (sT, sRH),
         "s_add_u32 s%d, s%d, s%d" % (sMX, sMX, sT), "s_add_u32 s%d, s%d, 16384" % (sMX, sMX),
         "s_lshl_b32 s%d, s%d, 11" % (sMW, sWv), "s_add_u32 s%d, s%d, 131072" % (sMW, sMW),
         "s_lshl_b32 s%d, s%d, 15" % (sReg, sWv),
         "s_mov_b32 s%d, 458752" % (sX + 2), "s_mov_b32 s%d, 0x20000" % (sX + 3), "s_mov_b32 s%d, 0x20000" % (sW + 3),
         "s_mul_i32 s%d, s%d, 458752" % (sD1, sB), "s_lshl_b32 s%d, s%d, 8" % (sD2, sH), "s_sub_u32 s%d, 0x800000, s%d" % (sW + 2, sD2)])
    def lane_setup():
        o = ["v_lshrrev_b32 v%d, 3, v%d" % (vT, vL), "v_and_b32 v%d, 7, v%d" % (vT2, vL), "v_and_b32 v%d, 6, v%d" % (vT3, vT),
             "v_xor_b32 v%d, v%d, v%d" % (vT3, vT3, vT2), "v_lshlrev_b32 v%d, 4, v%d" % (vT3, vT3),
             "v_lshl_add_u32 v%d, v%d, 11, v%d" % (vX, vT, vT3),
             "s_mul_i32 s%d, s%d, %d" % (sT, sWv, 7 * 16384), "v_add_u32 v%d, s%d, v%d" % (vX, sT, vX)]
        o += ["v_add_u32 v%d, %d, v%d" % (vX + j, j * 16384 - (j & 3) * 1024, vX) for j in range(1, 7)]
        o += ["v_and_b32 v%d, 2, v%d" % (vT3, vT), "v_lshlrev_b32 v%d, 1, v%d" % (vT3, vT3),
              "v_xor_b32 v%d, v%d, v%d" % (vT3, vT3, vT2), "v_lshlrev_b32 v%d, 4, v%d" % (vT3, vT3),
              "v_lshl_add_u32 v%d, v%d, 13, v%d" % (vW, vT, vT3),
              "s_lshl_b32 s%d, s%d, 17" % (sT, sRH), "s_lshl_b32 s%d, s%d, 7" % (sG, sKH), "s_add_u32 s%d, s%d, s%d" % (sT, sT, sG),
              "v_add_u32 v%d, s%d, v%d" % (vW, sT, vW), "v_add_u32 v%d, %d, v%d" % (vW + 1, 8 * 8192 - 1024, vW)]
        return o
    a.e(lane_setup())
    if O.tlb == 2:
        a.e(["s_lshl_b32 s%d, s%d, 5" % (sT, sB), "s_add_u32 s%d, s%d, s%d" % (sT, sT, sH), "s_lshl_b32 s%d, s%d, 18" % (sT, sT),
             "v_mov_b32 v16, s%d" % sT])
    a.e(["s_waitcnt lgkmcnt(0)",
         "s_add_u32 s%d, s%d, s%d" % (sW, pWq, sD2), "s_addc_u32 s%d, s%d, 0" % (sW + 1, pWq + 1),
         "s_add_u32 s%d, s%d, s%d" % (sX, pX, sD1), "s_addc_u32 s%d, s%d, 0" % (sX + 1, pX + 1)])
    if O.tlb == 2:
        def tg(v, p): return "global_load_dword v%d, v%d, s[%d:%d] sc1" % (vDum, v, p, p + 1)
        for w_, ops in enumerate(([tg(16, pK)], [tg(16, pV)])):
            a.e(["s_cmp_lg_u32 s%d, %d" % (sWv, w_), "s_cbranch_scc1 L_tl%d" % w_] + ops + ["L_tl%d:" % w_])
    stamp(4)
    a.lab("L_restart")

    TS_A = ["s_memrealtime s[100:101]"]
    TS_B = ["s_mov_b32 s99, m0", "s_mov_b32 m0, s81", "v_writelane_b32 v0, s100, m0", "s_addk_i32 s81, 1", "s_mov_b32 m0, s99"]
    TS_F = TS_A + ["s_waitcnt lgkmcnt(0)"] + TS_B
    def dmaX(j): return "buffer_load_dwordx4 v%d, s[%d:%d], s%d offen offset:%d %s lds" % (vX + j, sX, sX + 3, sXoff, (j & 3) * 1024, O.xwf)
    def m0X(buf, hi): return "s_add_u32 m0, s%d, %d" % (sMX, buf * 65536 + hi * 4096)
    def dmaW(j): return "buffer_load_dwordx4 v%d, s[%d:%d], s%d offen offset:%d %s lds" % (vW + j, sW, sW + 3, sWoff, j * 1024, O.xwf)
    def m0W(slot): return "s_add_u32 m0, s%d, %d" % (sMW, slot * 8192)
    def ptm0(reg, slot): return "s_add_u32 m0, s%d, %d" % (sMW, (reg * 32768 + slot * 8192 - 131072) & 0xffffffff)
    def ptld(reg): return ["buffer_load_dwordx4 v%d, s[%d:%d], s%d offen offset:%d%s lds" % (vKV + (2 if reg == 3 else 0) + j, sVV if reg & 1 else sKV, (sVV if reg & 1 else sKV) + 3,
                           sK1 if reg >> 1 else sK0, j * 1024, KVF) for j in range(2)]
    incK = ["s_add_u32 s%d, s%d, %d" % (sK0, sK0, TS_), "s_add_u32 s%d, s%d, %d" % (sK1, sK1, TS_)]
    def setK(tile): return ["s_mov_b32 s%d, %d" % (sK0, tile * TS_), "s_mov_b32 s%d, %d" % (sK1, tile * TS_ + KH)]
    PORD = (0, 2, 1, 3)
    def kvtile(slot): return [x for reg in PORD for x in [ptm0(reg, slot), "s_nop 0"] + ptld(reg)] + incK
    sXl, sWl, sOx, sOw = 10, 11, sWo, sK0
    incW = ["s_add_u32 s%d, s%d, 262144" % (sWl, sWl), "s_xor_b32 s%d, s%d, s%d" % (sWoff, sWl, sOw)]
    incX = ["s_add_u32 s%d, s%d, 128" % (sXl, sXl), "s_xor_b32 s%d, s%d, s%d" % (sXoff, sXl, sOx)]

    a.e(["s_mov_b32 s%d, 0" % sXl, "s_mov_b32 s%d, 0" % sWl, "s_xor_b32 s%d, s%d, s%d" % (sT, sB, sH), "s_and_b32 s%d, s%d, %d" % (sT, sT, O.x1mask),
         "s_lshl_b32 s%d, s%d, 19" % (sOw, sT), "s_lshl_b32 s%d, s%d, 7" % (sOx, sT), "s_mov_b32 s%d, s%d" % (sWoff, sOw), "s_mov_b32 s%d, s%d" % (sXoff, sOx)])
    def stage_loads(st):
        return ([m0W(2 * st), "s_nop 0", dmaW(0), dmaW(1), m0X(st, 0)] + incW + [dmaX(j) for j in range(4)] + [m0X(st, 1), "s_nop 0"] + [dmaX(j) for j in range(4, 7)]
                + [m0W(2 * st + 1)] + incX + [dmaW(0), dmaW(1)] + incW)
    a.e(stage_loads(0))
    stamp(4)
    a.e(["v_mov_b32 v%d, 0" % i for i in range(12, 16)])
    su0 = len(a.L)
    a.e(["s_lshl_b32 s%d, s%d, 5" % (sT, sB), "s_add_u32 s%d, s%d, s%d" % (sT, sT, sH), "s_lshl_b32 s%d, s%d, 18" % (sT, sT),
         "s_add_u32 s%d, s%d, s%d" % (sKV, pK, sT), "s_addc_u32 s%d, s%d, 0" % (sKV + 1, pK + 1),
         "s_mov_b32 s%d, 0x40000" % (sKV + 2), "s_mov_b32 s%d, 0x20000" % (sKV + 3),
         "s_add_u32 s%d, s%d, s%d" % (sVV, pV, sT), "s_addc_u32 s%d, s%d, 0" % (sVV + 1, pV + 1),
         "s_mov_b32 s%d, 0x40000" % (sVV + 2), "s_mov_b32 s%d, 0x20000" % (sVV + 3),
         "v_bfe_u32 v%d, v%d, 2, 2" % (vT, vL), "v_lshrrev_b32 v%d, 4, v%d" % (vT2, vL), "v_lshlrev_b32 v%d, 6, v%d" % (vT2, vT2),
         "v_lshl_add_u32 v%d, v%d, 8, v%d" % (vT2, vT, vT2), "v_and_b32 v%d, 3, v%d" % (vT, vL), "v_lshl_add_u32 v%d, v%d, 4, v%d" % (vT2, vT, vT2),
         "s_lshl_b32 s%d, s%d, 5" % (sG, sRH), "v_xor_b32 v%d, s%d, v%d" % (vT2, sG, vT2), "s_lshl_b32 s%d, s%d, 11" % (sG, sWv),
         "v_add_u32 v%d, s%d, v%d" % (vKV, sG, vT2), "v_xor_b32 v%d, 48, v%d" % (vKV + 1, vKV),
         "v_xor_b32 v%d, 0x80, v%d" % (vKV + 2, vKV), "v_xor_b32 v%d, 0x80, v%d" % (vKV + 3, vKV + 1)])
    pPx, pPw = PK + 20, PK + 21
    a.e(["s_mul_i32 s%d, s%d, 14336" % (sT, sH), "s_lshl_b32 s%d, s%d, 12" % (sG, sWv), "s_add_u32 s%d, s%d, s%d" % (sT, sT, sG),
         "v_and_b32 v%d, 31, v%d" % (pPx, vL), "v_lshlrev_b32 v%d, 7, v%d" % (pPx, pPx), "v_add_u32 v%d, s%d, v%d" % (pPx, sT, pPx),
         ] + ([
         "s_and_b32 s%d, s%d, 7" % (sG, sH), "s_lshl_b32 s%d, s%d, 3" % (sT, sB), "s_add_u32 s%d, s%d, s%d" % (sT, sT, sG), "s_lshl_b32 s%d, s%d, 2" % (sT, sT),
         "s_add_u32 s%d, s%d, s%d" % (sT, sT, sWv), "s_lshl_b32 s%d, s%d, 15" % (sT, sT), "s_lshl_b32 s%d, s%d, 8" % (sG, sG), "s_sub_u32 s%d, s%d, s%d" % (sT, sT, sG),
         "v_lshrrev_b32 v%d, 4, v%d" % (pPw, vL), "v_lshlrev_b32 v%d, 13, v%d" % (pPw, pPw),
         "v_and_b32 v%d, 15, v%d" % (vT2, vL), "v_lshl_add_u32 v%d, v%d, 7, v%d" % (pPw, vT2, pPw), "v_add_u32 v%d, s%d, v%d" % (pPw, sT, pPw)] if O.wqc else [
         "s_lshl_b32 s%d, s%d, 2" % (sT, sB), "s_add_u32 s%d, s%d, s%d" % (sT, sT, sWv), "s_lshl_b32 s%d, s%d, 18" % (sT, sT),
         "v_lshrrev_b32 v%d, 1, v%d" % (pPw, vL), "v_lshlrev_b32 v%d, 13, v%d" % (pPw, pPw),
         "v_and_b32 v%d, 1, v%d" % (vT2, vL), "v_lshl_add_u32 v%d, v%d, 7, v%d" % (pPw, vT2, pPw), "v_add_u32 v%d, s%d, v%d" % (pPw, sT, pPw)]))
    pQx, pQw = PK + 22, PK + 23
    if O.splitpf:
        a.e(["v_min_u32 v%d, 10, v%d" % (vT, vL), "s_mul_i32 s%d, s%d, 11" % (sG, sWv), "v_add_u32 v%d, s%d, v%d" % (vT, sG, vT), "v_min_u32 v%d, 41, v%d" % (vT, vT),
             "v_mul_u32_u24 v%d, 43, v%d" % (vT2, vT), "v_lshrrev_b32 v%d, 8, v%d" % (vT2, vT2), "v_mul_u32_u24 v%d, 10, v%d" % (vT2, vT2),
             "v_add_u32 v%d, v%d, v%d" % (vT, vT, vT2), "v_lshlrev_b32 v%d, 7, v%d" % (vT, vT), "s_mul_i32 s%d, s%d, 14336" % (sT, sH), "s_add_u32 s%d, s%d, 256" % (sG, sT),
             "v_add_u32 v%d, s%d, v%d" % (pPx, sG, vT),
             "v_bfe_u32 v%d, v%d, 1, 1" % (vT, vL), "s_lshl_b32 s%d, s%d, 1" % (sG, sWv), "v_add_u32 v%d, s%d, v%d" % (vT, sG, vT), "v_min_u32 v%d, 6, v%d" % (vT, vT),
             "v_and_b32 v%d, 1, v%d" % (vT2, vL), "v_lshlrev_b32 v%d, 7, v%d" % (vT2, vT2), "v_lshl_add_u32 v%d, v%d, 11, v%d" % (vT, vT, vT2),
             "s_add_u32 s%d, s%d, 512" % (sT, sT), "v_add_u32 v%d, s%d, v%d" % (pQx, sT, vT),
             "v_lshrrev_b32 v%d, 1, v%d" % (vT, vL), "v_min_u32 v%d, 11, v%d" % (vT, vT), "v_lshl_add_u32 v%d, v%d, 13, v%d" % (vT, vT, vT2),
             "s_lshl_b32 s%d, s%d, 2" % (sT, sB), "s_add_u32 s%d, s%d, s%d" % (sT, sT, sWv), "s_mul_i32 s%d, s%d, %d" % (sG, sT, 12 * 8192), "s_add_u32 s%d, s%d, %d" % (sG, sG, 128 * 8192),
             "v_add_u32 v%d, s%d, v%d" % (pPw, sG, vT),
             "v_bfe_u32 v%d, v%d, 1, 2" % (vT, vL), "v_lshl_add_u32 v%d, v%d, 13, v%d" % (vT, vT, vT2), "s_lshl_b32 s%d, s%d, 15" % (sT, sT), "s_add_u32 s%d, s%d, %d" % (sT, sT, 8 * 262144),
             "v_add_u32 v%d, s%d, v%d" % (pQw, sT, vT)])
    if O.trimpf:
        a.e(["v_min_u32 v%d, 22, v%d" % (vT, vL), "s_mul_i32 s%d, s%d, 23" % (sG, sWv), "v_add_u32 v%d, s%d, v%d" % (vT, sG, vT), "v_min_u32 v%d, 90, v%d" % (vT, vT),
             "v_mul_u32_u24 v%d, 79, v%d" % (vT2, vT), "v_lshrrev_b32 v%d, 10, v%d" % (vT2, vT2), "v_mul_u32_u24 v%d, 3, v%d" % (vT2, vT2),
             "v_add_u32 v%d, v%d, v%d" % (vT, vT, vT2), "v_lshlrev_b32 v%d, 7, v%d" % (vT, vT), "s_mul_i32 s%d, s%d, 14336" % (sT, sH), "s_add_u32 s%d, s%d, 384" % (sG, sT),
             "v_add_u32 v%d, s%d, v%d" % (pPx, sG, vT),
             "v_and_b32 v%d, 1, v%d" % (vT2, vL), "v_lshlrev_b32 v%d, 7, v%d" % (vT2, vT2),
             "v_lshrrev_b32 v%d, 1, v%d" % (vT, vL), "v_min_u32 v%d, 25, v%d" % (vT, vT), "v_lshl_add_u32 v%d, v%d, 13, v%d" % (vT, vT, vT2),
             "s_lshl_b32 s%d, s%d, 2" % (sT, sB), "s_add_u32 s%d, s%d, s%d" % (sT, sT, sWv), "s_mul_i32 s%d, s%d, %d" % (sG, sT, 26 * 8192), "s_add_u32 s%d, s%d, %d" % (sG, sG, 192 * 8192),
             "v_add_u32 v%d, s%d, v%d" % (pPw, sG, vT)])
    farpf = ["buffer_load_dword v%d, v%d, s[%d:%d], s%d offen" % (vDum, pQx, sX, sX + 3, sXoff), "buffer_load_dword v%d, v%d, s[%d:%d], s%d offen" % (vDum, pQw, sW, sW + 3, sWoff)]
    NE = 5 if O.splitpf else 3
    a.e(["v_lshlrev_b32 v%d, 4, v%d" % (vL16, vL),
         "v_and_b32 v%d, 15, v%d" % (vT, vL), "v_lshrrev_b32 v%d, 4, v%d" % (vT2, vL),
         "v_and_b32 v%d, 6, v%d" % (vT3, vT), "v_xor_b32 v%d, v%d, v%d" % (vT3, vT3, vT2), "v_lshlrev_b32 v%d, 4, v%d" % (vT3, vT3),
         "v_lshl_add_u32 v%d, v%d, 7, v%d" % (vT3, vT, vT3),
         "s_lshl_b32 s%d, s%d, 15" % (sT, sRH), "s_add_u32 s%d, s%d, 16384" % (sT, sT),
         "v_add_u32 v%d, s%d, v%d" % (vXr, sT, vT3), "v_xor_b32 v%d, 64, v%d" % (vXr + 1, vXr),
         "v_add_u32 v%d, 0x10000, v%d" % (vXr + 2, vXr), "v_add_u32 v%d, 0x10000, v%d" % (vXr + 3, vXr + 1)])
    a.e(["v_bfe_u32 v%d, v%d, 2, 2" % (vT, vL), "v_lshl_add_u32 v%d, v%d, 3, v%d" % (vT, vT2, vT),
         "v_and_b32 v%d, 2, v%d" % (vT3, vT), "v_lshlrev_b32 v%d, 1, v%d" % (vT3, vT3),
         "v_and_b32 v%d, 3, v%d" % (vT2, vL), "v_xor_b32 v%d, v%d, v%d" % (vT3, vT3, vT2), "v_lshlrev_b32 v%d, 4, v%d" % (vT3, vT3),
         "v_lshl_add_u32 v%d, v%d, 7, v%d" % (vT3, vT, vT3),
         "s_lshl_b32 s%d, s%d, 12" % (sT, sKH), "s_add_u32 s%d, s%d, 131072" % (sT, sT),
         "v_add_u32 v%d, s%d, v%d" % (vWr, sT, vT3), "v_xor_b32 v%d, 64, v%d" % (vWr + 1, vWr)])
    a.e(["s_mul_i32 s%d, s%d, 14" % (sT, sB), "s_mul_i32 s%d, s%d, 7" % (sG, sRH), "s_add_u32 s%d, s%d, s%d" % (sT, sT, sG),
         "s_lshl_b32 s%d, s%d, 7" % (sT, sT), "s_lshl_b32 s%d, s%d, 2" % (sG, sH), "s_add_u32 s%d, s%d, s%d" % (sT, sT, sG),
         "s_lshl_b32 s%d, s%d, 1" % (sG, sKH), "s_add_u32 s%d, s%d, s%d" % (sT, sT, sG), "s_lshl_b32 s%d, s%d, 10" % (sT, sT),
         "s_add_u32 s%d, s%d, s%d" % (sO, pWs, sT), "s_addc_u32 s%d, s%d, 0" % (sO + 1, pWs + 1),
         "s_mov_b32 s%d, %d" % (sO + 2, 6 * 131072 + 2048), "s_mov_b32 s%d, 0x20000" % (sO + 3),
         "s_mov_b32 s%d, 0x%x" % (sC, CSCALE), "s_mov_b32 s%d, 0x%x" % (sC + 1, CSCALE),
         "s_and_b32 s%d, s%d, 4" % (sPm, sB), "s_add_u32 s%d, s%d, s%d" % (sPm, sPm, sWv),
         "s_mul_i32 s%d, s%d, %d" % (sT, sRB, 7 * 131072), "s_lshl_b32 s%d, s%d, 14" % (sG, sPm), "s_add_u32 s%d, s%d, s%d" % (sT, sT, sG),
         "s_add_u32 s%d, s%d, s%d" % (sOs, pWs, sT), "s_addc_u32 s%d, s%d, 0" % (sOs + 1, pWs + 1),
         "s_mov_b32 s%d, %d" % (sOs + 2, 6 * 131072 + 16384), "s_mov_b32 s%d, 0x20000" % (sOs + 3),
         "s_lshl_b32 s%d, s%d, 20" % (sT, sPm), "s_lshl_b32 s%d, s%d, 8" % (sG, sCT), "s_add_u32 s%d, s%d, s%d" % (sT, sT, sG),
         "s_add_u32 s%d, s%d, s%d" % (sWs, pWo, sT), "s_addc_u32 s%d, s%d, 0" % (sWs + 1, pWo + 1),
         "s_sub_u32 s%d, 0x100000, s%d" % (sWs + 2, sG), "s_mov_b32 s%d, 0x20000" % (sWs + 3),
         "s_mul_i32 s%d, s%d, %d" % (sT, sRB, 112 * 2048), "s_add_u32 s%d, s%d, s%d" % (sOut, pOut, sT), "s_addc_u32 s%d, s%d, 0" % (sOut + 1, pOut + 1),
         "s_mov_b32 s%d, %d" % (sOut + 2, 112 * 2048), "s_mov_b32 s%d, 0x20000" % (sOut + 3),
         "s_xor_b32 s%d, s%d, 0x10000" % (sRing, sReg),
         "s_lshl_b32 s%d, s%d, 13" % (sSp, sWv), "s_add_u32 s%d, s%d, 131072" % (sSp, sSp),
         "s_sub_u32 s%d, s%d, s%d" % (sD1, sSp, sReg), "s_sub_u32 s%d, s%d, s%d" % (sD2, sRing, sSp)])
    for rt in range(7): a.e("s_mov_b32 s%d, %d" % (sRt + rt, rt * 131072))
    pKr, pVr, pK0, pD, pR, pQ, pFp, pFc, pWoP, pCp = PK, PK + 1, PK + 3, PK + 4, PK + 8, PK + 10, PK + 12, PK + 13, PK + 14, PK + 16
    a.e(flagp(pFp, vT2) + flagc(pFc))
    a.e(["v_bfe_u32 v%d, v%d, 2, 2" % (vT, vL), "v_sub_u32 v%d, 0, v%d" % (vT2, vT), "v_lshrrev_b32 v%d, 4, v%d" % (vT3, vL),
         "v_xor_b32 v%d, v%d, v%d" % (vT2, vT2, vT3), "v_and_b32 v%d, 3, v%d" % (vT2, vT2), "v_lshlrev_b32 v%d, 4, v%d" % (vT2, vT2),
         "v_lshl_add_u32 v%d, v%d, 10, v%d" % (vT2, vT, vT2), "v_and_b32 v%d, 3, v%d" % (pK0, vL), "v_lshlrev_b32 v%d, 6, v%d" % (pK0, pK0),
         "s_lshl_b32 s%d, s%d, 16" % (sG, sKH), "v_add3_u32 v%d, v%d, v%d, s%d" % (pKr, pK0, vT2, sG),
         "v_lshl_add_u32 v%d, v%d, 4, v%d" % (pK0, vT3, pK0),
         "v_sub_u32 v%d, 0, v%d" % (vT2, vT3), "v_bfe_u32 v%d, v%d, 1, 1" % (pVr + 1, vL), "v_xor_b32 v%d, v%d, v%d" % (vT2, vT2, pVr + 1),
         "v_and_b32 v%d, 3, v%d" % (vT2, vT2), "v_lshlrev_b32 v%d, 4, v%d" % (vT2, vT2),
         "v_lshl_add_u32 v%d, v%d, 10, v%d" % (vT2, vT3, vT2), "v_lshl_add_u32 v%d, v%d, 6, v%d" % (vT2, vT, vT2),
         "v_and_b32 v%d, 1, v%d" % (pVr + 1, vL), "v_lshl_add_u32 v%d, v%d, 3, v%d" % (vT2, pVr + 1, vT2),
         "s_add_u32 s%d, s%d, 32768" % (sG, sG), "v_add_u32 v%d, s%d, v%d" % (pVr, sG, vT2), "v_xor_b32 v%d, 32, v%d" % (pVr + 1, pVr),
         "v_add_u32 v%d, s%d, v%d" % (pR, sReg, vT2), "v_xor_b32 v%d, 32, v%d" % (pR + 1, pR),
         "v_lshlrev_b32 v%d, 6, v%d" % (vT2, vT3), "v_lshl_add_u32 v%d, v%d, 11, v%d" % (vT2, vT, vT2), "v_and_b32 v%d, 3, v%d" % (vT, vL),
         "v_lshl_add_u32 v%d, v%d, 4, v%d" % (vT2, vT, vT2), "s_lshl_b32 s%d, s%d, 5" % (sT, sPm), "v_xor_b32 v%d, s%d, v%d" % (pD, sT, vT2)])
    for j in range(1, 4): a.e(["v_xor_b32 v%d, %d, v%d" % (pD + j, ((-j) & 3) * 16, pD), "v_add_u32 v%d, %d, v%d" % (pD + j, j * (8192 - 1024), pD + j)])
    a.e(["v_add_u32 v%d, s%d, v%d" % (pQ, sMW, vL16), "s_lshl_b32 s%d, s%d, 11" % (sT, sRH), "s_add_u32 s%d, s%d, 131072" % (sT, sT), "v_add_u32 v%d, s%d, v%d" % (pQ + 1, sT, vL16),
         "s_lshl_b32 s%d, s2, 2" % sT, "s_add_u32 s%d, s%d, s%d" % (sT, sT, sWv), "s_lshl_b32 s%d, s%d, 13" % (sT, sT),
         "v_lshlrev_b32 v%d, 7, v%d" % (pWoP, vL), "v_add_u32 v%d, s%d, v%d" % (pWoP, sT, pWoP),
         "s_lshl_b32 s%d, s%d, 1" % (sOf, sRB), "s_xor_b32 s%d, s%d, s%d" % (sOf, sOf, sCT), "s_and_b32 s%d, s%d, %d" % (sOf, sOf, O.x3mask), "s_lshl_b32 s%d, s%d, 16" % (sOf, sOf)])
    cp2 = codepf("L_tr", "L_epi", pCp)
    a.e(cp2[:-1])
    a.e([
         "s_lshl_b32 s%d, s2, 15" % sT, "s_lshl_b32 s%d, s%d, 10" % (sG, sWv), "s_add_u32 s%d, s%d, s%d" % (sT, sT, sG),
         "v_and_b32 v%d, 7, v%d" % (vT3, vL), "v_lshlrev_b32 v%d, 7, v%d" % (vT3, vT3), "v_add_u32 v%d, s%d, v%d" % (vT3, sT, vT3), "s_mov_b32 s%d, 0" % sP])
    kvpf = "global_load_dword v%d, v%d, s[%d:%d]" % (vDum, vT3, pWo, pWo + 1)
    zs = [zero16(vr(ACC + 16 * i, 16)) for i in range(7)] + [zero16(vr(OK + 16 * i, 16)) for i in range(2, 7)] + [zero16(ar(aO + 16 * i, 16)) for i in range(4)]
    seg = a.L[su0:]; del a.L[su0:]
    for i_, ln in enumerate(seg):
        if i_ % 7 == 3 and zs: a.e(zs.pop(0))
        a.L.append(ln)
    assert not zs and not any("exec" in ln for ln in seg[:120])
    NT = 0
    if O.tlb == 1:
        pTl, pBx = PK + 24, PK + 25
        def tch(srd): return "buffer_load_dword v%d, v%d, s[%d:%d], 0 offen sc1" % (vDum, pTl, srd, srd + 3)
        def tcg(v): return "global_load_dword v%d, v%d, s[%d:%d] sc1" % (vDum, v, pWs, pWs + 1)
        a.e(["v_lshlrev_b32 v%d, 19, v%d" % (pTl, vL)] + boxaddr(pBx)[:-1] + ["v_mov_b32 v%d, s%d" % (pBx, sT), tch(sWs)])
        for w_, ops in enumerate(([tch(sKV), tch(sVV)], [tch(sO), tch(sOs)], [tch(sOut), tch(sW)], [tcg(pFc), tcg(pBx)])):
            a.e(["s_cmp_lg_u32 s%d, %d" % (sWv, w_), "s_cbranch_scc1 L_tl%d" % w_] + ops + ["L_tl%d:" % w_])
        NT = 3
    late = stage_loads(1) + ["buffer_load_dword v%d, v%d, s[%d:%d], 0 offen" % (vDum, pPx, sX, sX + 3), "buffer_load_dword v%d, v%d, s[%d:%d], 0 offen" % (vDum, pPw, sW, sW + 3),
                              kvpf if O.wo_at != 0 else "global_load_dword v%d, v%d, s[%d:%d]" % (vDum, pWoP, pWo, pWo + 1)] + (farpf if O.splitpf else [])
    def kvb(v, off): return "global_load_lds_dwordx4 v%d, s[4:5] offset:%d%s" % (v, off, KVF)
    kvq = ["s_cmp_lt_u32 s%d, 4" % sP, "s_cselect_b32 s4, s%d, s%d" % (sKV, sVV), "s_cselect_b32 s5, s%d, s%d" % (sKV + 1, sVV + 1),
           "s_and_b32 s%d, s%d, 1" % (sT, sP), "s_and_b32 s%d, s%d, 2" % (sG, sP), "s_lshl_b32 s%d, s%d, 12" % (sG, sG),
           "s_lshl_b32 s%d, s%d, 16" % (sT2, sT), "s_add_u32 s%d, s%d, s%d" % (sT2, sT2, sG), "s_mul_i32 s%d, s%d, %d" % (sT, sT, KH),
           "s_mul_i32 s%d, s%d, %d" % (sG, sG, TS_ // 8192), "s_add_u32 s%d, s%d, s%d" % (sT, sT, sG),
           "v_add_u32 v%d, s%d, v%d" % (vT, sT, vKV), "v_add_u32 v%d, s%d, v%d" % (vT2, sT, vKV + 1),
           "s_and_b32 s%d, s%d, 4" % (sG, sP), "s_lshl_b32 s%d, s%d, 13" % (sG, sG), "s_add_u32 s%d, s%d, s%d" % (sT2, sT2, sG),
           "s_and_b32 s%d, s%d, 5" % (sT, sP), "s_cmp_eq_u32 s%d, 5" % sT, "s_cselect_b32 s%d, 128, 0" % sT,
           "v_xor_b32 v%d, s%d, v%d" % (vT, sT, vT), "v_xor_b32 v%d, s%d, v%d" % (vT2, sT, vT2),
           "s_add_u32 s%d, s%d, s%d" % (sT2, sT2, sMW), "s_add_u32 s%d, s%d, 1" % (sP, sP)]
    kvq_m0 = "s_sub_u32 m0, s%d, 0x20000" % sT2

    def wreg(k): return {30: 192, 31: 208}.get(k, aWF + 16 * (k & 1))
    def xreg(k, rt): return 16 * rt + 4 * (k & 3)
    def rdW(k):
        out = []
        for dt in range(4):
            dp, t = dt >> 1, dt & 1
            for sec in range(2):
                out.append("ds_read_b64_tr_b16 %s, v%d offset:%d" % (ar(wreg(k) + 4 * dt + 2 * sec, 2), vWr + dp, (k & 3) * 8192 + sec * 512 + t * 8))
        return out
    def rdX1(s, kk, rt): return "ds_read_b128 %s, v%d offset:%d" % (ar(xreg(2 * s + kk, rt), 4), vXr + 2 * (s & 1) + kk, rt * 2048)
    def rdX(s): return [rdX1(s, kk, rt) for kk in range(2) for rt in range(7)]
    def A(rt, k): return [mfma(vr(ACC + 16 * rt + 4 * dt, 4), ar(wreg(k) + 4 * dt, 4), ar(xreg(k, rt), 4), vr(ACC + 16 * rt + 4 * dt, 4)) for dt in range(4)]
    if O.mixl:
        seg = a.L[su0:]; del a.L[su0:]
        st0 = len(seg) * O.mixl // 100
        grp = []; cur = []
        for x in late[:-3]:
            cur.append(x)
            if x.startswith("buffer_load"): grp.append(cur); cur = []
        grp[-1] += cur
        gi = 0
        for i_, ln in enumerate(seg):
            if i_ >= st0 and gi < len(grp) and (i_ - st0) * len(grp) >= gi * (len(seg) - st0) and not ln.strip().startswith(("s_addc", "s_cselect", "v_xor_b32 v%d, 0x200" % pFc, "s_mov_b64 exec")):
                a.e(grp[gi]); gi += 1
            a.L.append(ln)
        assert gi == len(grp)
        late = late[-3:]
    stamp(4)
    if not O.rd_first: a.e(late)
    a.e(["s_waitcnt vmcnt(%d)" % (2 + NT if O.rd_first else 13 + NE + NT), "s_barrier"])
    stamp(4)
    if O.ts: a.e(["s_mov_b32 s81, 0"] + TS_F)
    a.e(rdW(0) + rdX(0))
    if O.rd_first: a.e(late)
    a.e(["s_mov_b32 s%d, 7" % sCnt, "s_waitcnt vmcnt(%d) lgkmcnt(0)" % (11 + NE + NT), "s_barrier"])

    wopf = "global_load_dword v%d, v%d, s[%d:%d]" % (vDum, pWoP, pWo, pWo + 1)
    addr28 = ["v_mov_b32 v%d, v%d" % (240 + i, PK + i) for i in range(8)] + ["v_mov_b32 v%d, v%d" % (vR + i, pR + i) for i in range(2)]
    addr28 += ["v_mov_b32 v%d, v%d" % (vQw + i, pQ + i) for i in range(2)] + setK(2)

    def p1_kstep(km, mode, ctl=False):
        sp, kk = km >> 1, km & 1
        mf = [m_ for rt in range(7) for m_ in A(rt, km)]
        gaps = [[] for _ in range(28)]
        rd = rdW(km + 1)
        if kk == 1: rd += rdX(sp + 1)
        dm = []; nxe = O.nxe; tailops = []
        if mode == "loop":
            def xs(js):
                r = []
                for j in js:
                    if j == 4 and j != js[0]: r += [m0X(sp, 1)]
                    r.append(dmaX(j))
                return r
            if kk == 0: dm += [m0W(km), dmaW(0), dmaW(1), m0X(sp, 0)] + incW + xs(list(range(nxe)))
            else:
                if nxe < 7: dm += ([m0X(sp, 1)] if nxe == 4 else []) + xs(list(range(nxe, 7)))
                dm += [m0W(km)] + incX + [dmaW(0), dmaW(1)] + incW
                if km == 3:
                    dm += [kvq_m0]; tailops = [kvb(vT, 0), kvb(vT2, 1024), kvpf] + (farpf if O.splitpf else [])
            endw = "s_waitcnt vmcnt(%d) lgkmcnt(0)" % ((4 + nxe + (NE if km == 0 else 0)) if kk == 0 else 11 + NE)
        elif mode == 28:
            endw = "s_waitcnt vmcnt(%d) lgkmcnt(0)" % (NE + 2)
        for g, x in enumerate(rd): gaps[g].append(x)
        def place(items, lo, hi):
            g_ = lo
            for y in items:
                if y.startswith("global_load"): g_ = min(g_ + 1, hi); gaps[g_].insert(0, y); continue
                while g_ < hi and len(gaps[g_]) >= 2: g_ += 1
                gaps[g_].append(y)
        nld = sum(1 for x in dm if x.startswith("buffer_load"))
        if nld:
            pos = [1 + (i * O.p1_span) // nld for i in range(nld)]
            li = 0; pend = []; prev = -1
            for x in dm:
                if x.startswith("buffer_load"):
                    place(pend, max(prev, 0), pos[li] - 1); pend = []
                    gaps[pos[li]].insert(0, x); prev = pos[li]; li += 1
                else: pend.append(x)
            place(pend, prev, 25)
        if tailops: assert not gaps[24] and not gaps[25] and not any("m0" in y or "s%d," % sWoff in y for y in gaps[23]), gaps[22:]
        for i_, x in enumerate(tailops): gaps[23 + min(i_, (i_ + 1) // 2)].append(x) if i_ else gaps[23].insert(0, x)
        if mode == "loop" and km == 2: place(kvq + (["v_add_u32 v%d, 4096, v%d" % (vT3, vT3)] if O.wo_at == 1 else []), 8, 25)
        if mode == 28:
            place(kvq + [kvq_m0], 0, 15); gaps[16].insert(0, kvb(vT, 0)); gaps[17].insert(0, kvb(vT2, 1024)); place(addr28, 18, 25)
        if endw: gaps[26].append(endw); gaps[27].append("s_barrier")
        if O.ts and km in (0, 2): gaps[22] += TS_A; gaps[27] += TS_B
        if ctl:
            gaps[25].append("s_sub_u32 s%d, s%d, 1" % (sCnt, sCnt)); gaps[26].append("s_cmp_lg_u32 s%d, 0" % sCnt)
        weave(a, mf, gaps)
    stamp(4)
    a.raw(".p2align 5")
    a.lab("L_p1")
    for km in range(4): p1_kstep(km, "loop", ctl=(km == 3))
    a.e("s_cbranch_scc1 L_p1")
    p1_kstep(0, 28)
    stamp(4)
    a.lab("L_tr")
    a.e(["s_cmp_lg_u32 s%d, 0" % sPass, "s_cbranch_scc1 L_nofl",
         "global_load_dword v%d, v%d, s[%d:%d] sc1" % (vFc, pFc, pWs, pWs + 1),
         "s_cmp_lg_u32 s%d, 0" % sWv, "s_cbranch_scc1 L_nofl",
         "global_load_dword v%d, v%d, s[%d:%d] sc1" % (vFo, pFp, pWs, pWs + 1)])
    a.lab("L_nofl")
    def ismem(x): return x.startswith(("ds_", "buffer_", "global_", "s_barrier"))
    def spread(mf, side, lo=0, hi=None):
        n = len(mf); hi = n - 1 if hi is None else hi
        gaps = [[] for _ in range(n)]
        g = lo
        if any(isinstance(x, list) for x in side):
            n0 = [isinstance(x, list) for x in side].index(True)
            pre = side[:n0]
            gaps[lo] += pre[:-5]; gaps[lo + 1] += pre[-5:] + side[n0]
            side = side[n0 + 1:]; lo += 2; g = lo
        for i_, x in enumerate(side):
            g = max(g, lo + (i_ * (hi - lo + 1)) // len(side))
            if ismem(x) and any(y.startswith("v_") for y in gaps[g]) and g < hi: g += 1
            gaps[g].append(x)
        weave(a, mf, gaps)
    def rdK(i, slot):
        t, ks = (i >> 2, i & 3) if O.chain4 else (i & 1, i >> 1)
        return "ds_read_b128 %s, v%d offset:%d" % (ar(aK + 16 * t + 4 * ks, 4), vKr, slot * 8192 + t * 4096 + ks * 256)
    def xlane(op, regs_, tmp):
        out = []
        for sw in ("v_permlane32_swap_b32", "v_permlane16_swap_b32"):
            out += ["v_mov_b32 v%d, v%d" % (t_, r_) for r_, t_ in zip(regs_, tmp)]
            out += ["%s v%d, v%d" % (sw, r_, t_) for r_, t_ in zip(regs_, tmp)]
            out += ["%s v%d, v%d, v%d" % (op, r_, r_, t_) for r_, t_ in zip(regs_, tmp)]
        return out
    def qk(rt, sb):
        out = []
        for i in range(8):
            t, ks = (i >> 2, i & 3) if O.chain4 else (i & 1, i >> 1)
            d = vr(S + 8 * sb + 4 * t, 4)
            out.append(mfma(d, ar(aK + 16 * t + 4 * ks, 4), ar(aQ + 16 * rt + 4 * ks, 4), vr(M + 4 * rt, 4) if ks == 0 else d))
        return out
    def oacc(rt, i): return vr(OK + 16 * rt + 4 * i, 4) if i < 4 else ar(aO + 16 * rt + 4 * (i - 4), 4)
    def pv(rt, pb): return [mfma(oacc(rt, i), vr(V + 4 * i, 4), vr(P + 4 * pb, 4), oacc(rt, i)) for i in range(8)]
    aK0 = 176
    def Bq(rt):
        o = []
        if O.pkg & 2: o.append(["v_pk_mul_f32 %s, %s, s[%d:%d]" % (vr(ACC + 16 * rt + 2 * i, 2), vr(ACC + 16 * rt + 2 * i, 2), sC, sC + 1) for i in range(8)])
        for dp in range(2):
            b = ACC + 16 * rt + 8 * dp
            for i in range(4):
                if not O.pkg & 2: o += ["v_mul_f32 v%d, s%d, v%d" % (b + 2 * i, sC, b + 2 * i), "v_mul_f32 v%d, s%d, v%d" % (b + 2 * i + 1, sC, b + 2 * i + 1)]
                o.append("v_cvt_pk_bf16_f32 v%d, v%d, v%d" % (b + i, b + 2 * i, b + 2 * i + 1))
            if dp == 0: o.append("s_waitcnt lgkmcnt(0)")
            o.append("ds_write_b128 v%d, %s offset:%d" % (vQw, vr(b, 4), (rt & 3) * 8192 + dp * 1024))
        return o
    def Cq(rt): return ["ds_read_b128 %s, v%d offset:%d" % (ar(aQ + 16 * rt + 4 * ks, 4), vQr, (rt & 3) * 8192 + (ks >> 1) * 4096 + (ks & 1) * 1024) for ks in range(4)]
    def PP(rt): return [mfma(vr(M + 4 * rt, 4), ar(aK0 + 4 * ks, 4), ar(aQ + 16 * rt + 4 * ks, 4), "0" if ks == 0 else vr(M + 4 * rt, 4)) for ks in range(4)]
    def Dq(rt):
        b = M + 4 * rt
        return ["v_max3_f32 v%d, v%d, v%d, v%d" % (b, b, b + 1, b + 2), "v_max_f32 v%d, v%d, v%d" % (b, b, b + 3)] + ["v_sub_f32 v%d, 0, v%d" % (b + i, b) for i in (1, 2, 3, 0)]
    sync = ["s_waitcnt lgkmcnt(0)", "s_barrier"]
    kvs = [[ptm0(reg, sl), "s_nop 0"] + ptld(reg) + (incK if reg == 3 else []) for sl in (2, 3) for reg in PORD]
    if O.t3late: kvs = [kvs[0], [], kvs[1], [], kvs[2], [], kvs[3], []]
    pfs = ([cp2[-1]] if O.pf_code else []) + ([wopf] if O.wo_at == 29 else [])
    t1 = rdW(30) + [rdX1(15, 0, 0)] + rdW(31) + [rdX1(15, 1, 0)] + [rdX1(15, kk, rt) for rt in range(1, 7) for kk in range(2)]
    spread([m_ for rt in range(5) for m_ in A(rt, 29)], t1 + pfs + sync, 0, 19)
    stamp(1)
    for i in range(8):
        mf = ([m_ for p_ in zip(A(i, 30), A(i, 31)) for m_ in p_] if i < 7 else qk(0, 0)) + (A(5 + i, 29) if i < 2 else PP(i - 2))
        side = []
        if i == 0: mf += [zero16(vr(OK, 16)), zero16(vr(OK + 16, 16))]
        if i == 0: side += ["ds_read_b128 %s, v%d offset:%d" % (ar(aK0 + 4 * ks, 4), vK0, ks * 256) for ks in range(4)]
        bq = Bq(i - 1) if i >= 1 else []
        nb = O.nb if i >= 2 else 0
        if nb:
            bq = [x for x in bq if not x.startswith("s_waitcnt")]
            w0 = [x for x in bq if x.startswith("ds_write")][0]; bq.remove(w0)
            bq = bq[:18] + ["s_waitcnt lgkmcnt(0)", w0] + bq[18:]
        side += bq[:nb]
        if i >= 2: side += sync + Cq(i - 2)
        if i in (3, 4): side += [rdK(j, 0) for j in range(4 * (i - 3), 4 * (i - 2))]
        side += bq[nb:]
        if i >= 3: side += Dq(i - 3)
        if i == 7: side += ["v_mov_b32 v%d, 0" % j for j in range(L, L + 4)] + ["s_mov_b32 s%d, 3" % sCnt]
        side += kvs[i]
        spread(mf, side)
    if O.ts: a.e(TS_F)
    a.e(["s_cmp_lg_u32 s%d, 0" % sPass, "s_cbranch_scc1 L_maxpass"])
    stamp(1)
    NA = 0

    def dma3(j): return "buffer_load_dwordx4 v%d, s[%d:%d], s%d offen offset:%d %s lds" % (vD + j, sWs, sWs + 3, sWo, j * 1024, O.w3f)
    def setWo(u): return "s_xor_b32 s%d, s%d, 0x%x" % (sWo, sOf, u * 32768)
    def wset(n): return (0, 32, 64, 224)[n & 3]
    def rd3(k, off, dts=range(8)):
        return ["ds_read_b64_tr_b16 %s, v%d offset:%d" % (ar(wset(k) + 4 * dt + 2 * sec, 2), vR + (dt & 1), off + (dt >> 1) * 256 + sec * 4096) for dt in dts for sec in range(2)]
    def xw(rt): return ["ds_write_b128 v%d, %s offset:%d" % (vTa, ar(aO + 16 * rt + 4 * i, 4), rt * 4096 + i * 1024) for i in range(4)]
    vm = VM(["kv"])
    sDyn, sDd = 10, 11
    KV = " ;kv"
    def dm0(reg): return "s_add_u32 m0, s%d, %d" % (sDyn, reg * 32768)
    incD = incK + ["s_add_u32 s%d, s%d, 8192" % (sDyn, sDyn), "s_and_b32 s%d, s%d, 0x7fff" % (sDyn, sDyn)]
    initD = ["s_sub_u32 s%d, s%d, 0x20000" % (sDyn, sMW), "s_mov_b32 s%d, %d" % (sDd, O.th)]
    vFp, vFa = 239, 252
    def loff(rt): return 28672 + (rt & 3) * 4 + (rt >> 2) * 1024
    def lw(rt): return "ds_write_b32 v%d, v%d offset:%d" % (vTa, L + rt, loff(rt))
    def rdc(rt, pb): return ["ds_read_b32 v%d, v%d offset:%d" % (E2 + 2 + (rt & 1), vTb, loff(rt))] + ["ds_read_b128 %s, v%d offset:%d" % (vr(pb + 4 * i, 4), vTb, (rt * 4 + i) * 1024) for i in range(4)]
    def comb(rt, pb):
        ob = OK + 16 * rt; t = E2 + 2 + (rt & 1)
        return (["v_add_f32 v%d, v%d, v%d" % (t, t, L + rt), "v_rcp_f32 v%d, v%d" % (t, t)] + ["v_add_f32 v%d, v%d, v%d" % (ob + i, ob + i, pb + i) for i in range(16)]
                + [x for i in range(8) for x in ("v_mul_f32 v%d, v%d, v%d" % (ob + 2 * i, ob + 2 * i, t), "v_mul_f32 v%d, v%d, v%d" % (ob + 2 * i + 1, ob + 2 * i + 1, t),
                                                 "v_cvt_pk_bf16_f32 v%d, v%d, v%d" % (ob + i, ob + 2 * i, ob + 2 * i + 1))])
    def combp(rt, pb):
        ob = OK + 16 * rt; t = E2 + 2
        o = ["v_add_f32 v%d, v%d, v%d" % (t + (rt & 1), t + (rt & 1), L + rt), "v_rcp_f32 v%d, v%d" % (t + (rt & 1), t + (rt & 1))]
        o += ["v_pk_add_f32 %s, %s, %s" % (vr(ob + 2 * i, 2), vr(ob + 2 * i, 2), vr(pb + 2 * i, 2)) for i in range(8)]
        o += ["v_pk_mul_f32 %s, %s, %s %s" % (vr(ob + 2 * i, 2), vr(ob + 2 * i, 2), vr(t, 2), "op_sel:[0,1]" if rt & 1 else "op_sel_hi:[1,0]") for i in range(8)]
        return o + ["v_cvt_pk_bf16_f32 v%d, v%d, v%d" % (ob + i, ob + 2 * i, ob + 2 * i + 1) for i in range(8)]
    def ost(rt): return ["buffer_store_dwordx4 %s, v%d, s[%d:%d], s%d offen offset:%d sc1" % (vr(OK + 16 * rt + 4 * p, 4), vL16, sO, sO + 3, sRt + rt, p * 1024) for p in range(2)]
    pend = []; cost = [0]
    def step(js, r, last=False, first=False, kv=False, ctl=False):
        u = 7 * js + r
        fin = last and js == 3
        mf = ([] if (fin and r == 6) else qk((r + 1) % 7, (u + 1) & 1)) + pv((r + 6) % 7, (u + 1) & 1)
        mem = [[] for _ in range(16)]; val = [[] for _ in range(16)]
        pk = not fin and not (first and r == 0)
        Eb = E2 if (pk and u & 1) else E
        for e in range(8):
            val[2 * e].append("v_exp_f32 v%d, v%d" % (Eb + e, S + 8 * (u & 1) + e))
            if not pk: val[2 * e + 1].append("v_add_f32 v%d, v%d, v%d" % (L + r, L + r, Eb + e))
            if e & 1: val[2 * e + 1].append("v_cvt_pk_bf16_f32 v%d, v%d, v%d" % (P + 4 * (u & 1) + (e >> 1), Eb + e - 1, Eb + e))
        if first and r == 0:
            mf = mf[:8] + PP(6) + [zero16(ar(192, 16)), zero16(ar(208, 16))]
            mem[0] += sync + Cq(6)[:2]; mem[1] += Cq(6)[2:]; mem[7].append("s_waitcnt lgkmcnt(0)")
            for i_, x in enumerate(Dq(5)): val[3 + 2 * i_].append(x)
        if first and r == 1:
            for i_, x in enumerate(Dq(6) + ["v_mov_b32 v%d, 0" % j for j in range(L + 4, L + 7)]): val[1 + 4 * (i_ % 4)].append(x) if i_ >= 6 else val[1 + 2 * i_].append(x)
        if first and r == 2: mem[9].append(zero16(ar(176, 16)))
        if first and r == 3: mem[1].append(initD[0]); mem[5].append(initD[1])
        if O.tlb2 and first and r == 2:
            val[1] += ["v_lshlrev_b32 v250, 19, v%d" % vL] + boxaddr(251)[:2]; val[3] += boxaddr(251)[2:4]; val[5] += ["v_mov_b32 v251, s%d" % sT]
        if O.tlb2 and first and r == 3:
            for i_, srd in enumerate((sO, sOs, sOut)): mem[7 + 2 * i_].append("buffer_load_dword v%d, v250, s[%d:%d], 0 offen sc1" % (vDum, srd, srd + 3))
            mem[13].append("global_load_dword v%d, v251, s[%d:%d] sc1" % (vDum, pWs, pWs + 1))
        if O.pf3 and first and r == 4:
            for i_, x in enumerate(codepf("L_last", "L_go", 250)[:-1]): val[1 + 2 * i_].append(x)
        if O.pf3 and not first and not last and js == O.pf3 % 4 and r == 1: mem[9].append(codepf("L_last", "L_go", 250)[-1])
        vrd = ["ds_read_b64_tr_b16 %s, v%d offset:%d" % (vr(V + 4 * i + 2 * sec, 2), vVr + (i & 1), js * 8192 + (i >> 1) * 256 + sec * 4096) for i in range(8) for sec in range(2)]
        if not fin and not first:
            if r == 0: mem[9] += vrd[0:3]; mem[11] += vrd[3:5]; mem[13] += vrd[5:8]; mem[15] += vrd[8:10]
            if r == 1:
                mem[1] += vrd[10:12]; mem[3] += vrd[12:14]; mem[5] += vrd[14:16]
                mem[7].append("s_waitcnt lgkmcnt(4)"); mem[13].append("s_waitcnt lgkmcnt(0)")
        else:
            if r == 0:
                for i in range(16): mem[8 + i // 2].append(vrd[i])
            if r == 1: mem[5].append("s_waitcnt lgkmcnt(%d)" % (5 if fin else 0))
        if r == 5 and not fin: mem[0].append("s_barrier")
        if r == 4 and not last: mem[13] += ["s_getreg_b32 s%d, hwreg(HW_REG_IB_STS, 0, 4)" % sT2]; mem[15].append("s_waitcnt vmcnt(8)")
        if r == 4 and ctl: mem[9].append("s_sub_u32 s%d, s%d, 1" % (sCnt, sCnt)); mem[11].append("s_cmp_lg_u32 s%d, 0" % sCnt)
        if kv:
            pts = [tuple(int(y) for y in x.split(".")) for x in O.pts.split(",")]
            pos = [((pr_ - 5) % 7) * 16 + pg_ for pr_, pg_ in pts]
            here = ((r - 5) % 7) * 16
            def put(p_, xs):
                if here <= p_ < here + 16: mem[p_ - here] += [x + KV for x in xs]
            for n_ in range(4):
                put(pos[n_] - 2, [dm0(PORD[n_])]); put(pos[n_], ptld(PORD[n_]))
            put(pos[3] + 2, incD[0:2]); put(pos[3] + 4, incD[2:4])
        if last:
            sched = [{(0, 6): 0, (1, 1): 6, (1, 3): 1, (1, 6): 7, (2, 0): 2, (2, 2): 3, (2, 5): 4, (3, 0): 5},
                     {(1, 1): 0, (1, 3): 1, (1, 6): 6, (2, 1): 2, (2, 2): 3, (2, 6): 4, (3, 0): 5, (3, 1): 7},
                     {(1, 2): 0, (1, 3): 1, (1, 6): 6, (2, 0): 7, (2, 2): 2, (2, 4): 3, (2, 6): 4, (3, 1): 5}][O.ts9]
            if (js, r) in sched:
                k = sched[(js, r)]
                base, off = (sReg, k * 4096) if k < 6 else (sSp, (k - 6) * 4096)
                g0 = (9, 11, 13, 15) if r == 5 else ((1, 3, 5, 7) if r == 0 else (1, 5, 9, 13))
                mem[g0[0] - 1] += ["s_add_u32 m0, s%d, %d" % (base, off), setWo(k)]
                for j in range(4): mem[g0[j]].append(("w%d" % k, dma3(j)))
            if r == 4 and js == 1: mem[13].append(("wait8", "kv"))
            if r == 4 and js == 2: mem[13].append(("wait", "kv"))
            if r == 5 and js < 1:
                mem[11].append("s_cmp_ge_u32 s%d, %d" % (sK0, 16 * TS_))
                mem[13].append(("kv", ["s_cbranch_scc1 L_ok%d" % js] + [x for reg in PORD for x in [dm0(reg), "s_nop 0"] + ptld(reg)] + incD + ["L_ok%d:" % js]))
            if js == 2 and r == 3 and O.pf_code and not O.ts:
                pf = codepf("L_epi", "L_end", vT)
                for i_, x in enumerate(pf[:-1]): val[1 + 2 * i_].append(x)
                mem[15].append(("pf", pf[-1]))
            if js == 1 and r == 2:
                val[1] += ["v_add_u32 v%d, s%d, v%d" % (vTa, sReg, vL16)]; val[5] += ["v_add_u32 v%d, s%d, v%d" % (vTb, sRing, vL16)]
            if js == 1 and r == 4:
                for i_, x in enumerate(flagp(vFp, vT2)): val[1 + 2 * (i_ // 4)].append(x)
            if js == 2 and r == 1:
                for i_, x in enumerate(["s_lshr_b32 s%d, s%d, 6" % (sT, sOf), "v_add_u32 v248, s%d, v%d" % (sT, vL16), "v_add_u32 v%d, 1, v%d" % (vFo, vFo)]): val[9 + 2 * i_].append(x)
            if js == 2 and r == 4:
                fc = flagc(vFa)
                for i_, x in enumerate(fc[:-3]): val[1 + 2 * (i_ // 2)].append(x)
                val[11] += fc[-3:]
            if fin:
                h2 = 8 if 2 <= r < 6 else 0
                if r < 6:
                    if r % 2 == 0: mem[h2] += [("wait", "w%d" % r), ("wait", "w%d" % (r + 1))]
                if r == 1: mem[9].append("s_barrier")
                g1 = list(range(0, 8)) if r < 6 else [8, 8, 9, 9, 10, 10, 11, 11]
                g2 = list(range(8, 16)) if r < 6 else [12, 12, 13, 13, 14, 14, 15, 15]
                if r >= 3: mem[g1[0]].append("s_waitcnt lgkmcnt(0)")
                if r >= 2:
                    for i_, x in enumerate(xw(r - 2) + [lw(r - 2)]): mem[g1[1 + i_]].append(x)
                    mem[g2[0]] += sync
                    for i_, x in enumerate(rdc(r - 2, 128)): mem[g2[(i_ + 1) // 2]].append(x)
                if r < 6:
                    for i_, x in enumerate(rd3(r >> 1, (r >> 1) * 8192, range(4 * (r & 1), 4 * (r & 1) + 4))): mem[h2 + (i_ if h2 == 0 else 3 + i_ // 2)].append(x)
                else:
                    mem[8] += [("wait", "w6"), ("wait", "w7")]
                    for i_, x in enumerate(rd3(3, 0)): mem[8 + i_ // 2].append(x)
                vg = r < 6
                if r >= 3:
                    if O.pkg & 1:
                        cb = combp(r - 3, 128)
                        val[1] += cb[:2]; late3 = cb[2:10]; late7 = cb[10:18]
                        for i_, x in enumerate(cb[18:]): val[8 + (i_ * 6) // 8].append(x)
                    else:
                        cb = comb(r - 3, 128)
                        for i_, x in enumerate(cb[:18]): val[(i_ * 8) // 18].append(x)
                        for i_, x in enumerate(cb[18:]): val[8 + (i_ * 6) // 24].append(x)
                    mem[15] += [("st", x) for x in ost(r - 3)]
                    if O.wfin and r >= 4:
                        u_ = 8 + r - 4
                        mem[g1[0]] += ["s_add_u32 m0, s%d, %d" % (sRing, (u_ & 7) * 4096), setWo(u_)]
                        for j in range(4): mem[g1[2 + j]].append(("w%d" % u_, dma3(j)))
                if r >= 1:
                    for i_, x in enumerate(xlane("v_add_f32", [L + r - 1], [E2])): val[3 + 2 * i_].append(x)
                if r >= 3 and O.pkg & 1: val[3] += late3 + late7
                if r == 5: val[15] += ["v_add_u32 v%d, s%d, v%d" % (vR + i, sD1, vR + i) for i in range(2)]
        if r == 5 and not fin:
            for i in range(8): mem[(1, 1, 3, 5, 5, 7, 9, 9)[i]].append(rdK(i, (js + 1) & 3))
            mem[15].insert(0, "s_waitcnt lgkmcnt(0)")
            if O.ts: mem[11] += TS_A; mem[15] += TS_B
        if fin and r == 6:
            mem = [mem[8 + i] for i in range(8)]
            val = [val[2 * i] + val[2 * i + 1] for i in range(8)]
            val = [[v_[0], "s_nop 0"] + v_[1:] for v_ in val]
            a.e("s_nop 1")
        if first and r == 0:
            mem = mem[:12] + [mem[12] + mem[13], mem[14] + mem[15]]
            val = val[:12] + [val[12] + ["s_nop 0"] + val[13], val[14] + ["s_nop 0"] + val[15]]
        if pk:
            flush = r == 4 or (last and js == 2 and r == 6)
            old_ = len(pend)
            for g in range(1, 16, 2):
                pend.append("v_add_f32 v%d, v%d, v%d" % (L + r, L + r, Eb + g // 2))
                n_ = max(0, 2 - len(mem[g]) - len(val[g]))
                if g == 15: n_ = max(n_, len(pend) if flush else old_)
                n_ = min(n_, len(pend))
                val[g] += pend[:n_]; del pend[:n_]; old_ = max(0, old_ - n_)
        else: assert not pend
        if O.padn and pk:
            for i_ in range(O.padn): val[2 * i_].append("s_nop 0")
        for g_, v_ in zip(mem, val): cost[0] += max(16, 8 + sum(8 if (isinstance(x, str) and "v_exp" in x) else 4 for x in g_ + v_))
        if r == 4:
            if O.verbose: print("unit ending", js, last, first, "model cycles", cost[0], file=sys.stderr)
            cost[0] = 0
        for m_, g_, v_ in zip(mf, mem, val):
            a.e(m_)
            for x in g_:
                if isinstance(x, tuple):
                    if x[0] == "wait": a.e("s_waitcnt vmcnt(%d)" % vm.n(x[1]))
                    elif x[0] == "wait8": a.e("s_waitcnt vmcnt(%d)" % (vm.n(x[1]) + 8))
                    elif x[0] == "kv": vm.issue("kv", True); a.e(x[1])
                    else: vm.issue(x[0]); a.e(x[1])
                else: a.e(x)
            a.e(v_)
    for r in range(5): step(0, r, first=True)
    quiet = []
    a.raw(".p2align 5")
    a.lab("L_loop")
    for js in range(4):
        if O.force_skip & (1 << js): a.e("s_or_b32 s%d, s%d, 15" % (sT2, sT2))
        a.e(["s_cmp_gt_u32 s%d, s%d" % (sT2, sDd), "s_cbranch_scc1 L_h%d" % js])
        a.lab("L_u%d" % js)
        q0 = len(a.L)
        for r in (5, 6): step(js, r, kv=True)
        step((js + 1) & 3, 0, kv=True)
        qe = max(i_ for i_ in range(q0, len(a.L)) if a.L[i_].endswith(KV)) + 1
        quiet.append([ln for ln in a.L[q0:qe] if not ln.endswith(KV)])
        a.L.insert(qe, "L_j%d:" % js)
        for r in range(1, 5): step((js + 1) & 3, r, ctl=(js == 3))
    a.e(["s_cbranch_scc1 L_loop", "s_branch L_last"])
    for js in range(4):
        a.lab("L_h%d" % js)
        a.e("s_mov_b32 s%d, 99" % sDd)
        a.L += quiet[js]
        a.e("s_branch L_j%d" % js)
    a.lab("L_last")
    for r in (5, 6): step(0, r, last=True)
    for js in range(1, 4):
        for r in range(7): step(js, r, last=True)
    stamp()

    a.lab("L_epi")
    if O.ts: a.e(TS_F)
    misc = ["v_add_f32 v%d, v%d, v%d" % (vTc, L, L + 1)] + ["v_add_f32 v%d, v%d, v%d" % (vTc, vTc, L + i) for i in range(2, 7)]
    misc += ["s_mov_b32 s%d, 0x%x" % (sT, THR if not O.force_slow else 0), "s_lshl_b32 s%d, s%d, 2" % (sG, sWv),
             "v_cmp_ngt_f32 vcc, s%d, v%d" % (sT, vTc),
             "s_add_u32 s%d, s%d, 30720" % (sG, sG), "v_mov_b32 v%d, s%d" % (vT, sG),
             "s_cmp_lg_u64 vcc, 0", "s_cselect_b32 s%d, 1, 0" % sT, "v_mov_b32 v%d, 30720" % vT2, "v_mov_b32 v%d, s%d" % (L + 7, sT)]
    xl = xlane("v_add_f32", [L + 6], [E2])
    pvl = pv(6, 1); pvl = pvl[4:] + pvl[:4]
    gp = [[] for _ in range(8)]
    for i_, x in enumerate(xw(5) + [lw(5)]): gp[2 + i_].append(x)
    for i_, x in enumerate(misc): gp[(i_ * 8) // len(misc)].append(x)
    for i_, x in enumerate(xl): gp[2 + i_].append(x)
    a.e(["s_waitcnt lgkmcnt(0)", "s_nop 0"])
    weave(a, pvl, gp)
    vm.issue("pl"); a.e(["s_mov_b64 exec, 31", "global_load_dword v249, v%d, s[%d:%d] sc1" % (vFa, pWs, pWs + 1), "s_mov_b64 exec, -1"])
    a.e(xw(6) + [lw(6), "ds_write_b32 v%d, v%d" % (vT, L + 7)])
    def stores(rt):
        for x in ost(rt): vm.issue("st"); a.e(x)
    c4 = combp(4, 128)
    a.e(c4[:18] + sync)
    stamp(2)
    a.e(["ds_read_b128 %s, v%d" % (vr(216, 4), vT2)] + rdc(5, 144) + rdc(6, 160) + c4[18:])
    stores(4)
    a.e(["v_add_u32 v%d, s%d, v%d" % (vR + i, sD2, vR + i) for i in range(2)])
    a.e(["s_waitcnt lgkmcnt(5)", "v_or3_b32 v216, v216, v217, v218", "v_or_b32 v216, v216, v219"] + combp(5, 144) + ["v_readfirstlane_b32 s%d, v216" % sT])
    stores(5)
    a.e(["s_waitcnt lgkmcnt(0)"] + combp(6, 160))
    stores(6)
    a.e(["s_andn2_b32 s%d, s%d, s%d" % (sT, sT, sPass), "s_cbranch_scc1 L_slow"])
    def wload(k, j):
        if j == 0: a.e(["s_add_u32 m0, s%d, %d" % (sRing, (k & 7) * 4096), setWo(k)])
        vm.issue("w%d" % k); a.e(dma3(j))
    wi = 12 if O.wfin else 0
    stamp(2)
    ACC3, OF = 16, 128
    vS, vOo, vOut, vPs = 6, 248, 249, 250
    def acc3(rt, sl):
        hb, wv = sl >> 2, sl & 3
        return vr(ACC3 + 16 * rt + 4 * (2 * hb + wv), 4) if wv < 2 else ar(112 + 16 * rt + 4 * (2 * hb + wv - 2), 4)
    def ldO(rt, k): return "buffer_load_dwordx4 %s, v%d, s[%d:%d], s%d offen sc1" % (vr(OF + 28 * (k & 3) + 4 * rt, 4), vOo, sOs, sOs + 3, sRt + rt)
    def incO(k): return "v_xor_b32 v%d, 0x%x, v%d" % (vOo, (k ^ (k + 1)) << 10, vOo)
    ld01 = [x for k in range(2) for x in [ldO(rt, k) for rt in range(7)] + [incO(k)]]
    fset = ["s_lshl_b32 s%d, s%d, 5" % (sT, sB), "s_add_u32 s%d, s%d, s%d" % (sT, sT, sH), "v_mov_b32 v%d, s%d" % (vT2, sT), "v_mov_b32 v%d, 1" % vT3, "v_mov_b32 v241, v%d" % vFa]
    def publish(lab):
        a.e(["s_barrier", "s_cmp_lg_u32 s%d, 0" % sWv, "s_cbranch_scc1 %s" % lab,
             "s_mov_b64 exec, 0xfffff", "global_store_dword v%d, v%d, s[%d:%d] sc1" % (vFp, vFo, pWs, pWs + 1),
             "s_mov_b64 exec, 1", "global_store_byte v%d, v%d, s[%d:%d] sc1" % (vT2, vT3, pDbg, pDbg + 1), "s_mov_b64 exec, -1"])
    def wpieces(lo, hi):
        out = []
        for p_ in range(lo, hi):
            u, j = 8 + p_ // 4, p_ % 4
            out.append((["s_add_u32 m0, s%d, %d" % (sRing, (u & 7) * 4096), setWo(u)] if j == 0 else [], ("w%d" % u, dma3(j))))
        return out
    a.e(["s_waitcnt vmcnt(%d)" % vm.n("pl"), "v_cmp_eq_u32 s[%d:%d], v249, v%d" % (sC, sC + 1, vFc), "s_mov_b64 vcc, 0", "s_and_b32 s%d, s%d, 31" % (sC, sC), "s_cbranch_scc1 L_late"])
    a.e(ld01 + fset + ["s_waitcnt vmcnt(14)"])
    publish("L_join")
    a.e("s_branch L_join")
    a.lab("L_late")
    a.e(["s_mov_b64 exec, 31", "global_load_dword v%d, v%d, s[%d:%d] sc1" % (vT, vFa, pWs, pWs + 1), "s_mov_b64 exec, -1"] + fset + ["v_xor_b32 v243, 0x80, v%d" % vT2,
         "s_lshr_b32 s%d, s%d, 1" % (sT, sRB), "s_lshl_b32 s%d, s%d, 5" % (sT, sT), "s_lshl_b32 s%d, s%d, 2" % (sG, sPm), "s_add_u32 s%d, s%d, s%d" % (sT, sT, sG),
         "v_mov_b32 v242, s%d" % sT, "s_mov_b32 s%d, 0x40000" % sCnt, "s_waitcnt vmcnt(0)", "v_cmp_eq_u32 s[%d:%d], v%d, v%d" % (sC, sC + 1, vT, vFc)])
    publish("L_noflag")
    a.lab("L_noflag")
    a.e(["s_and_b32 s%d, s%d, 31" % (sC, sC), "s_cbranch_scc0 L_go", "s_mov_b64 vcc, -1"])
    for pre, op in wpieces(wi, 32): a.e(pre + [op[1]])
    a.e("s_mov_b64 exec, 31")
    a.lab("L_poll")
    a.e(["global_load_dword v%d, v241, s[%d:%d] sc1" % (vT, pWs, pWs + 1), "s_waitcnt vmcnt(0)", "s_sub_u32 s%d, s%d, 1" % (sCnt, sCnt), "s_cbranch_scc1 L_go",
         "v_cmp_eq_u32 s[%d:%d], v%d, v%d" % (sC, sC + 1, vT, vFc), "s_nop 0", "s_cmp_eq_u64 s[%d:%d], 0" % (sC, sC + 1), "s_cbranch_scc1 L_go",
         "s_and_b32 s%d, s%d, 15" % (sT, sCnt), "s_cbranch_scc1 L_poll",
         "global_load_dword v%d, v242, s[%d:%d] sc1" % (vT, pDbg, pDbg + 1), "global_load_ubyte v%d, v243, s[%d:%d] sc1" % (vT2, pDbg, pDbg + 1), "s_waitcnt vmcnt(0)",
         "v_add_u32 v%d, v%d, v%d" % (vT, vT, vT2), "s_nop 0", "v_readfirstlane_b32 s%d, v%d" % (sT, vT),
         "s_nop 0", "s_cmp_eq_u32 s%d, 0x01010102" % sT, "s_cbranch_scc0 L_poll"])
    a.lab("L_go")
    a.e(["s_mov_b64 exec, -1"] + ld01)
    a.lab("L_join")
    for k in range(2):
        for rt in range(7): vm.issue("o%d" % k)
    stamp()
    if O.stamps: a.e(["s_memrealtime s[4:5]", "s_memrealtime s[6:7]", "s_sub_u32 s10, 0x40000, s11"])
    a.e(["v_add_u32 v%d, s%d, v%d" % (vS, sRing, vL16)])
    for i in range(1, 4): a.e(["v_xor_b32 v%d, 0x%x, v%d" % (vS + i, i << 15, vS)])
    a.e(["v_and_b32 v%d, 15, v%d" % (vT, vL), "v_lshrrev_b32 v%d, 4, v%d" % (vT2, vL), "v_lshlrev_b32 v%d, 3, v%d" % (vT2, vT2),
         "v_lshl_add_u32 v%d, v%d, 11, v%d" % (vT, vT, vT2),
         "s_lshl_b32 s%d, s%d, 8" % (sT, sCT), "s_lshl_b32 s%d, s%d, 5" % (sG, sPm), "s_add_u32 s%d, s%d, s%d" % (sT, sT, sG),
         "v_add_u32 v%d, s%d, v%d" % (vOut, sT, vT)] + boxaddr(vPs) + ["v_xor_b32 v%d, 0x8000, v%d" % (vPs + 1, vPs)])
    if O.ts: a.e(TS_F)
    a.e(["s_waitcnt vmcnt(%d)" % (vm.n("o0") + 6)])
    def redw(rt, hb, wv): return "ds_write_b128 v%d, %s offset:%d" % (vS, acc3(rt, 4 * hb + wv), (wv - 1) * 7168 + rt * 1024)
    def redr(rt, wv, d): return "ds_read_b128 %s, v%d offset:%d" % (vr(d, 4), vS + wv, (wv - 1) * 7168 + rt * 1024)
    def mf3(rt, sl, k): return mfma(acc3(rt, sl), ar(wset(k) + 4 * sl, 4), vr(OF + 28 * (k & 3) + 4 * rt, 4), acc3(rt, sl) if k else "0")
    def emit(mf, gaps):
        for m_, g_ in zip(mf, gaps):
            a.e(m_)
            for x in g_:
                if isinstance(x, tuple):
                    if x[0] == "wait": a.e("s_waitcnt vmcnt(%d)%s" % (min(vm.n(t_) for t_ in x[1]), " lgkmcnt(0)" if x[2] else ""))
                    elif x[0] == "wait0": a.e("s_waitcnt vmcnt(%d)" % (vm.n("o0") + x[1]))
                    elif isinstance(x[1], list):
                        nsk[0] += 1
                        for _ in range(4): vm.issue(x[0], True)
                        a.e(["s_cbranch_vccnz L_sk%d" % nsk[0]] + x[1]); a.lab("L_sk%d" % nsk[0])
                    elif (O.dbg3 & 1 and x[0][0] == "w") or (O.dbg3 & 2 and x[0][0] == "o" and int(x[0][1:]) > 3): vm.issue(x[0])
                    else: vm.issue(x[0]); a.e(x[1])
                elif O.dbg3 & 4 and x.startswith("ds_read_b64"): pass
                else: a.e(x)
    nsk = [0]
    ws0, ws1 = 2, O.ws1
    pstep = [ws0 + (p_ * (ws1 - ws0)) // 64 for p_ in range(64)]
    rstep = {m_: m_ - 3 for m_ in range(4, 8)}
    for m_ in range(8, 16):
        rstep[m_] = max(m_ - 3, pstep[8 * (m_ - 8) + 7] + 2)
        assert pstep[8 * (m_ - 8)] > rstep[m_ - 4] and rstep[m_] <= min(m_ - 1, 13) and (m_ == 15 or rstep[m_] <= 12), m_
    for k in range(13):
        mf = [mf3(rt, sl, k) for rt in range(7) for sl in range(8)]
        gaps = [[] for _ in range(56)]
        rds = [m_ for m_ in rstep if rstep[m_] == k]
        for g, x in enumerate([y for m_ in rds for y in rd3(m_, (m_ & 3) * 8192)]): gaps[g].append(x)
        wl = []
        if k < 3:
            assert wi % 4 == 0 and wi >= 8 and O.dynw
            us = list(range(wi // 4, 8)); us = us[(len(us) * k) // 3:(len(us) * (k + 1)) // 3]
            wl = [([], ("w%d" % (8 + u_), [y for pre, op in wpieces(4 * u_, 4 * u_ + 4) for y in pre + [op[1]]])) for u_ in us]
        ps_ = [p_ for p_ in range(64) if pstep[p_] == k]
        if ps_: wl += wpieces(32 + ps_[0], 32 + ps_[-1] + 1)
        ol = [([], ("o%d" % kk_, ldO(rt, kk_))) + ((incO(kk_),) if rt == 6 else ()) for kk_ in ([2, 3] if k == 0 else [k + 3]) for rt in range(7)]
        ld = sorted([((i_ + 0.5) / len(wl), x) for i_, x in enumerate(wl)] + [((i_ + 0.25) / len(ol), x) for i_, x in enumerate(ol)], key=lambda t_: t_[0])
        for i_, (_, x) in enumerate(ld):
            g = 1 + (i_ * 53) // len(ld)
            gaps[g - 1] += x[0]; gaps[g].insert(0, x[1])
            if len(x) > 2: gaps[g].append(x[2])
        if k == 0:
            for rt in range(1, 7): gaps[8 * rt - 1].append(("wait0", 6 - rt))
        need_ = ["o%d" % (k + 1)] + ["w%d" % (2 * m_ + 1) for m_ in rstep if rstep[m_] == k + 1]
        gaps[55].append(("wait", need_, bool(rds)))
        if O.ts: gaps[55] += TS_F
        emit(mf, gaps)
    mf = [mf3(rt, 4 * hb + wv, k) for hb in (1, 0) for k in (13, 14, 15) for rt in range(7) for wv in range(4)]
    gaps = [[] for _ in range(168)]
    if rstep[15] == 13:
        for g, x in enumerate(rd3(15, 3 * 8192)): gaps[g].append(x)
    gaps[27].append(("wait", ["o14"], False)); gaps[55].append(("wait", ["o15"], True))
    for rt in range(7):
        for wv in range(1, 4): gaps[56 + 4 * rt + wv + 8].append(redw(rt, 1, wv))
    gaps[94].append("s_waitcnt lgkmcnt(0)"); gaps[95].append("s_barrier")
    def tmp1(rt, wv): return (ACC3 + 16 * rt + 12, OF + 4 * rt, OF + 28 + 4 * rt)[wv - 1]
    for rt in range(7):
        g = 96 + 4 * rt
        gaps[g] += [redr(rt, 1, tmp1(rt, 1)), redr(rt, 2, tmp1(rt, 2))]; gaps[g + 1].append(redr(rt, 3, tmp1(rt, 3)))
    for rt in range(7):
        g = 96 + 4 * rt + 6; b = ACC3 + 16 * rt + 8
        gaps[g - 1].append("s_waitcnt lgkmcnt(%d)" % (3 if rt < 6 else 0))
        ads = ["v_add_f32 v%d, v%d, v%d" % (b + i, b + i, tmp1(rt, 1) + i) for i in range(4)]
        ads += ["v_add_f32 v%d, v%d, v%d" % (tmp1(rt, 2) + i, tmp1(rt, 2) + i, tmp1(rt, 3) + i) for i in range(4)]
        ads += ["v_add_f32 v%d, v%d, v%d" % (b + i, b + i, tmp1(rt, 2) + i) for i in range(4)]
        gaps[g] += ads[0:4]; gaps[g + 1] += ads[4:8]; gaps[g + 2] += ads[8:10]; gaps[g + 3] += ads[10:12]
        gaps[g + 4].insert(0, ("ps", "global_store_dwordx4 v%d, %s, s[%d:%d] offset:%d sc1" % (vPs + 1, vr(b, 4), pWs, pWs + 1, rt * 1024 - 3072)))
    gaps[132].append("s_barrier")
    gaps[134].append("v_add_u32 v%d, 1, v%d" % (vT2, vFc))
    gaps[O.f2gap] += ["s_waitcnt vmcnt(0)", "s_mov_b64 exec, 64", "global_store_dword v241, v%d, s[%d:%d] sc1" % (vT2, pWs, pWs + 1), "s_mov_b64 exec, -1"]
    lastw = []
    for rt in range(7):
        for wv in range(1, 4):
            g2 = 140 + 4 * rt + wv + 8
            if g2 < 168: gaps[g2].insert(0, redw(rt, 0, wv))
            else: lastw.append(redw(rt, 0, wv))
    emit(mf, gaps)
    stamp()
    if O.ts: a.e(TS_F)
    PB = OF + 84
    ldP = ["global_load_dwordx4 %s, v%d, s[%d:%d] offset:%d sc1" % (vr(PB + 4 * rt, 4), vPs, pWs, pWs + 1, rt * 1024 - 3072) for rt in range(7)]
    pl2 = "global_load_dword v%d, v241, s[%d:%d] sc1" % (vT, pWs, pWs + 1)
    a.e(["s_mov_b64 exec, 32", pl2, "s_mov_b64 exec, -1"] + lastw[:3] + ["s_nop 1"] + lastw[3:] + ["s_mov_b32 s%d, 0x40000" % sCnt, "s_waitcnt lgkmcnt(0)", "s_barrier"])
    for rt in range(7):
        for wv in range(1, 4): a.e(redr(rt, wv, OF + 12 * rt + 4 * (wv - 1)))
    a.e("s_mov_b64 exec, 32")
    a.lab("L_poll2")
    a.e(["s_waitcnt vmcnt(0)", "v_cmp_eq_u32 vcc, v%d, v%d" % (vT, vFc), "s_sub_u32 s%d, s%d, 1" % (sCnt, sCnt), "s_cbranch_vccz L_go2", "s_cbranch_scc1 L_go2", pl2, "s_branch L_poll2"])
    a.lab("L_go2")
    a.e(["s_mov_b64 exec, -1"] + ldP)
    for rt in range(7):
        a.e("s_waitcnt lgkmcnt(%d)" % min(15, 3 * (6 - rt)))
        b = ACC3 + 16 * rt; t = OF + 12 * rt
        for h in range(2):
            a.e("v_pk_add_f32 %s, %s, %s" % (vr(b + 2 * h, 2), vr(b + 2 * h, 2), vr(t + 2 * h, 2)))
            a.e("v_pk_add_f32 %s, %s, %s" % (vr(t + 4 + 2 * h, 2), vr(t + 4 + 2 * h, 2), vr(t + 8 + 2 * h, 2)))
        for h in range(2): a.e("v_pk_add_f32 %s, %s, %s" % (vr(b + 2 * h, 2), vr(b + 2 * h, 2), vr(t + 4 + 2 * h, 2)))
    for rt in range(7):
        b = ACC3 + 16 * rt; t = PB + 4 * rt
        a.e(["s_waitcnt vmcnt(6)"] + ["v_pk_add_f32 %s, %s, %s" % (vr(b + 2 * h, 2), vr(b + 2 * h, 2), vr(t + 2 * h, 2)) for h in range(2)])
        a.e(["v_cvt_pk_bf16_f32 v%d, v%d, v%d" % (b, b, b + 1), "v_cvt_pk_bf16_f32 v%d, v%d, v%d" % (b + 1, b + 2, b + 3),
             "s_mov_b32 s%d, %d" % (sT, rt * 32768),
             "buffer_store_dwordx2 %s, v%d, s[%d:%d], s%d offen %s" % (vr(b, 2), vOut, sOut, sOut + 3, sT, O.out_flags)])
    if O.stamps:
        a.e(["s_waitcnt vmcnt(0)"])
        if O.ts: a.e(TS_F)
        stamp()
        a.e(["s_memrealtime s[78:79]", "s_waitcnt lgkmcnt(0)", "s_lshl_b32 s%d, s2, 2" % sT, "s_add_u32 s%d, s%d, s%d" % (sT, sT, sWv), "s_lshl_b32 s%d, s%d, 6" % (sT, sT),
             "s_add_u32 s%d, s%d, 0x%x" % (sT, sT, STAMP_OFF),
             "s_add_u32 s%d, s%d, s%d" % (sO, pWs, sT), "s_addc_u32 s%d, s%d, 0" % (sO + 1, pWs + 1), "s_mov_b32 s%d, 64" % (sO + 2), "v_mov_b32 v%d, 0" % vT])
        for i in range(nst[0]):
            a.e(["s_sub_u32 s%d, s%d, s%d" % (sT, sST + 2 * i, sST), "v_mov_b32 v%d, s%d" % (vT2, sT),
                 "buffer_store_dword v%d, v%d, s[%d:%d], 0 offen offset:%d" % (vT2, vT, sO, sO + 3, 4 * i)])
        for i, r_ in enumerate((10, 6, 4, sST, 78)):
            a.e(["v_mov_b32 v%d, s%d" % (vT2, r_), "buffer_store_dword v%d, v%d, s[%d:%d], 0 offen offset:%d" % (vT2, vT, sO, sO + 3, 44 + 4 * i)])
    if O.ts:
        a.e(["s_lshl_b32 s%d, s2, 9" % sT, "s_add_u32 s%d, s%d, 0x%x" % (sT, sT, STAMP_OFF + 0x200000),
             "s_add_u32 s%d, s%d, s%d" % (sO, pWs, sT), "s_addc_u32 s%d, s%d, 0" % (sO + 1, pWs + 1), "s_mov_b32 s%d, 512" % (sO + 2),
             "v_lshlrev_b32 v%d, 2, v%d" % (vT, vL), "buffer_store_dword v0, v%d, s[%d:%d], 0 offen" % (vT, sO, sO + 3)])
    a.lab("L_end")
    a.e("s_endpgm")

    if O.wo_at >= 100:
        a.lab("L_wopf")
        a.e(["s_lshl_b32 s%d, s2, 2" % sT, "s_add_u32 s%d, s%d, s%d" % (sT, sT, sWv), "s_lshl_b32 s%d, s%d, 13" % (sT, sT),
             "v_lshlrev_b32 v%d, 7, v%d" % (vT, vL), "v_add_u32 v%d, s%d, v%d" % (vT, sT, vT),
             "global_load_dword v%d, v%d, s[%d:%d]" % (vDum, vT, pWo, pWo + 1), "s_branch L_wopf_ret"])
    a.lab("L_slow")
    a.e(["s_waitcnt vmcnt(0) lgkmcnt(0)", "s_barrier", "s_mov_b32 s%d, 1" % sPass] + lane_setup() + ["s_branch L_restart"])
    a.lab("L_maxpass")
    a.e(["s_waitcnt vmcnt(0) lgkmcnt(0)", "s_barrier"] + Cq(6) + ["s_mov_b32 s%d, 16" % sCnt] + setK(0))
    a.e([zero16(ar(176 + 16 * i, 16)) for i in range(3)] + ["s_nop 7"])
    for rt in range(7): a.e("v_mov_b32 v%d, 0xff800000" % (M + 4 * rt))
    a.lab("L_slow_loop")
    a.e(kvtile(0))
    a.e(["s_waitcnt vmcnt(0)", "s_barrier"])
    a.e([rdK(i, 0) for i in range(8)])
    a.e(["s_waitcnt lgkmcnt(0)", "s_barrier"])
    for rt in range(7):
        for i in range(8):
            t, ks = (i >> 2, i & 3) if O.chain4 else (i & 1, i >> 1)
            d = vr(S + 4 * t, 4)
            a.e(mfma(d, ar(aK + 16 * t + 4 * ks, 4), ar(aQ + 16 * rt + 4 * ks, 4), "0" if ks == 0 else d))
        a.e("s_nop 7")
        for i in range(4): a.e("v_max3_f32 v%d, v%d, v%d, v%d" % (M + 4 * rt, M + 4 * rt, S + 2 * i, S + 2 * i + 1))
    a.e(["s_sub_u32 s%d, s%d, 1" % (sCnt, sCnt), "s_cmp_lg_u32 s%d, 0" % sCnt, "s_cbranch_scc1 L_slow_loop"])
    a.e(xlane("v_max_f32", [M + 4 * rt for rt in range(7)], [M + 4 * rt + 1 for rt in range(7)]))
    a.e(["v_add_u32 v%d, s%d, v%d" % (vTc, sSp, vL16), "v_xor_b32 v%d, 16384, v%d" % (vT3, vTc)])
    for rt in range(7): a.e("ds_write_b32 v%d, v%d offset:%d" % (vTc, M + 4 * rt, rt * 1024))
    a.e(["s_waitcnt lgkmcnt(0)", "s_barrier"])
    for rt in range(7): a.e("ds_read_b32 v%d, v%d offset:%d" % (M + 4 * rt + 1, vT3, rt * 1024))
    a.e(setK(0))
    for tl in range(4): a.e(kvtile(tl))
    a.e("s_waitcnt lgkmcnt(0)")
    for rt in range(7): a.e("v_max_f32 v%d, v%d, v%d" % (M + 4 * rt, M + 4 * rt, M + 4 * rt + 1))
    a.e(["s_waitcnt vmcnt(16)", "s_barrier"])
    a.e([rdK(i, 0) for i in range(8)])
    a.e([zero16(vr(V, 16)), zero16(vr(V + 16, 16))])
    a.e(["v_sub_f32 v%d, 0, v%d" % (M + 4 * rt + i, M + 4 * rt) for rt in range(7) for i in (1, 2, 3, 0)])
    a.e(["v_mov_b32 v%d, 0" % i for i in range(L, L + 7)] + ["v_mov_b32 v%d, 0" % i for i in range(P + 4, P + 8)])
    a.e(["s_mov_b32 s%d, 3" % sCnt, "s_waitcnt lgkmcnt(0)"] + qk(0, 0) + initD + codepf("L_last", "L_go", 250)[:-1] + ["s_nop 5"])
    for r in range(5): step(0, r)
    a.e("s_branch L_loop")

def build():
    ref = open("cdna_kernels/%s.s.ref" % NAME).read()
    hdr = ref.split("; Override launch")[0]
    a = Asm()
    k = NAME + "_kernel"
    a.raw(".amdgcn_target \"amdgcn-amd-amdhsa--gfx950\"\n.text")
    a.raw(".globl %s\n.p2align 8\n.type %s,@function" % (k, k))
    kernel(a)
    for e in check(a.L): print(e, file=sys.stderr)
    doc = """;
"""
    t = hdr + "; @launch grid=(256,1,1) block=(256,1,1) lds=163840\n" + doc + a.text()
    t += """.section .rodata,"a"
.p2align 6
.amdhsa_kernel %s
  .amdhsa_next_free_vgpr 512
  .amdhsa_next_free_sgpr 102
  .amdhsa_accum_offset 256
  .amdhsa_group_segment_fixed_size 0
  .amdhsa_kernarg_size 64
  .amdhsa_user_sgpr_count 2
  .amdhsa_user_sgpr_kernarg_segment_ptr 1
  .amdhsa_system_sgpr_workgroup_id_x 1
  .amdhsa_float_denorm_mode_32 %d
.end_amdhsa_kernel
""" % (k, O.denorm)
    return t

if __name__ == "__main__":
    out = sys.argv[1] if len(sys.argv) > 1 else "cdna_kernels/%s.s" % NAME
    for kv in sys.argv[2:]:
        k, v = kv.split("=")
        cur = getattr(O, k)
        setattr(O, k, (v == "1") if isinstance(cur, bool) else type(cur)(v))
    open(out, "w").write(build())
```
